```python
import torch

def _softmax(x, axis=-1):
    return torch.softmax(x, dim=axis)
def _gelu(x):
    return torch.nn.functional.gelu(x, approximate="tanh")
def _silu(x):
    return torch.nn.functional.silu(x)
def _sigmoid(x):
    return torch.sigmoid(x)
def _layernorm(x, axis=-1, eps=1e-5):
    m = x.mean(dim=axis, keepdim=True)
    v = x.var(dim=axis, keepdim=True, unbiased=False)
    return (x - m) / torch.sqrt(v + eps)
def _scatter_add(tgt, idx, src, axis=0):
    return tgt.clone().index_add_(axis, idx, src)
def _segment_sum(src, seg, n):
    out = torch.zeros((n,) + src.shape[1:], dtype=src.dtype)
    return out.index_add_(0, seg, src)
def _pad(x, pw):
    flat = tuple(v for pair in reversed(pw) for v in pair)
    return torch.nn.functional.pad(x, flat)

kernel_name = 'recurrent_scan__linear_kernel_hedgehog__dense_activation_mish__prompt'

def setup_inputs():

    _w = (lambda a: (lambda t: t.to(torch.bfloat16) if t.is_floating_point() else t)(torch.as_tensor(a)))
    def _A_setup():
        B, S, D, H = 1, 2048, 512, 32
        Dh = D // H
        return {
            "x": _w((lambda *s: torch.randn(*s, dtype=torch.bfloat16) * 0.05)(B, S, D)),
            "wqkv": _w((lambda *s: torch.randn(*s, dtype=torch.bfloat16) * 0.4)(D, 3 * D)),
            "w_phi": _w((lambda *s: torch.randn(*s, dtype=torch.bfloat16) * 0.4)(H, Dh, Dh) * (Dh ** -0.5)),
            "wo": _w((lambda *s: torch.randn(*s, dtype=torch.bfloat16) * 0.2)(D, D)),
        }
    _A_in = _A_setup()

    def _B_setup():
        B, S, D, F = 1, 2048, 512, 1792
        return {
            "x": _w((lambda *s: torch.randn(*s, dtype=torch.bfloat16) * 0.05)(B, S, D)),
            "w1": _w((lambda *s: torch.randn(*s, dtype=torch.bfloat16) * 0.4)(D, F) * (D ** -0.5)),
            "b1": _w((lambda *s: torch.randn(*s, dtype=torch.bfloat16) * 0.1)(F)),
            "w2": _w((lambda *s: torch.randn(*s, dtype=torch.bfloat16) * 0.1)(F, D) * (F ** -0.5)),
        }
    _B_in = _B_setup()

    return {
        "A_x": _A_in["x"],
        "A_wqkv": _A_in["wqkv"],
        "A_w_phi": _A_in["w_phi"],
        "A_wo": _A_in["wo"],
        "B_x": _B_in["x"],
        "B_w1": _B_in["w1"],
        "B_b1": _B_in["b1"],
        "B_w2": _B_in["w2"],
    }

def reference(A_x, A_wqkv, A_w_phi, A_wo, B_x, B_w1, B_b1, B_w2):
    def _A_ref(x, wqkv, w_phi, wo):
        B, S, D = x.shape
        H = 32; Dh = D // H
        qkv = (lambda x, *d: x.permute(*d))((x @ wqkv).reshape(B, S, 3, H, Dh), 2, 0, 3, 1, 4)
        q, k, v = qkv[0], qkv[1], qkv[2]
        pq = torch.einsum("bhsd,hdf->bhsf", q, w_phi)
        pk = torch.einsum("bhsd,hdf->bhsf", k, w_phi)
        phi_q = torch.concatenate([_softmax(pq, axis=-1), _softmax(-pq, axis=-1)], axis=-1)
        phi_k = torch.concatenate([_softmax(pk, axis=-1), _softmax(-pk, axis=-1)], axis=-1)
        kv = torch.einsum("bhsf,bhsd->bhfd", phi_k, v)
        z  = torch.einsum("bhsf->bhf", phi_k)
        num = torch.einsum("bhqf,bhfd->bhqd", phi_q, kv)
        den = torch.einsum("bhqf,bhf->bhq", phi_q, z)[..., None] + 1e-6
        o = num / den
        return (lambda x, *d: x.permute(*d))(o, 0, 2, 1, 3).reshape(B, S, D) @ wo

    def _B_ref(x, w1, b1, w2):
        h = torch.einsum("bsd,df->bsf", x, w1) + b1
        sp = torch.log1p(torch.exp(-torch.abs(h))) + torch.where(h > 0, h, torch.zeros_like(h))
        act = h * torch.tanh(sp)
        return torch.einsum("bsf,fd->bsd", act, w2)

    x = A_x
    xn = _layernorm(x, axis=-1)
    s = _A_ref(xn, A_wqkv, A_w_phi, A_wo)
    g = _silu(_B_ref(xn, B_w1, B_b1, B_w2))
    return x + s * g
```

```python
import re

def _expand(tok):
    tok = tok.strip()
    tok = tok.lstrip('-')
    m = re.match(r'^(?:abs\(|\|)?([vsa])\[(\d+):(\d+)\]', tok)
    if m:
        return [f"{m.group(1)}{i}" for i in range(int(m.group(2)), int(m.group(3)) + 1)]
    m = re.match(r'^(?:abs\(|\|)?([vsa])(\d+)\b', tok)
    if m:
        return [f"{m.group(1)}{m.group(2)}"]
    if tok in ('vcc', 'vcc_lo', 'vcc_hi'): return ['vcc']
    if tok in ('exec', 'exec_lo', 'exec_hi'): return ['exec']
    if tok == 'm0': return ['m0']
    return []

TRANS = ('v_exp_f32', 'v_log_f32', 'v_rcp_f32', 'v_rsq_f32', 'v_sqrt_f32', 'v_sin_f32', 'v_cos_f32')

class I:
    __slots__ = ('text', 'op', 'kind', 'rd', 'wr', 'srcA', 'srcB', 'srcC', 'tag', 'ws', 'wide', 'data')
    def __init__(self, text, tag=None):
        self.text = text; self.tag = tag
        body = text.split(';')[0].strip()
        parts = body.split(None, 1)
        op = parts[0]; self.op = op
        rest = parts[1] if len(parts) > 1 else ''
        ops = []; cur = ''; depth = 0
        for chh in rest:
            if chh in '[(': depth += 1
            if chh in '])': depth -= 1
            if chh == ',' and depth == 0: ops.append(cur.strip()); cur = ''
            else: cur += chh
        if cur.strip(): ops.append(cur.strip())
        mods = ''
        if ops:
            lp = ops[-1].split(None, 1)
            ops[-1] = lp[0]; mods = lp[1] if len(lp) > 1 else ''
        self.rd = []; self.wr = []; self.srcA = self.srcB = self.srcC = []; self.ws = 1; self.wide = False; self.data = []
        base = re.sub(r'_(e32|e64|dpp|sdwa)$', '', op)
        E = [_expand(o) for o in ops]
        if op.startswith('v_mfma'):
            self.kind = 'mfma'; self.wr = E[0]; self.srcA, self.srcB, self.srcC = E[1], E[2], E[3]
            self.rd = E[1] + E[2] + E[3]
        elif op.startswith('v_'):
            self.kind = 'valu'
            if base in TRANS: self.kind = 'trans'
            if base.startswith('v_dot2'): self.kind = 'dot'
            if base.startswith('v_permlane'):
                self.kind = 'perm'; self.wr = E[0] + E[1]; self.rd = E[0] + E[1]
            elif base.startswith('v_cmp'):
                self.wr = E[0]; self.rd = sum(E[1:], [])
            elif base in ('v_add_co_u32', 'v_sub_co_u32', 'v_addc_co_u32'):
                self.wr = E[0] + E[1]; self.rd = sum(E[2:], [])
            else:
                self.wr = E[0]; self.rd = sum(E[1:], [])
                if base in ('v_fmac_f32', 'v_dot2c_f32_bf16', 'v_pk_fmac_f16'):
                    self.rd = self.rd + E[0]; self.srcC = E[0]
                if base == 'v_dot2_f32_bf16': self.srcC = E[3]
                if base in ('v_readfirstlane_b32', 'v_readlane_b32'): self.kind = 'rdlane'
            if 'row_' in mods or 'quad_perm' in mods or 'wave_' in mods: self.kind = 'dpp'
        elif op.startswith('ds_'):
            self.kind = 'ds'
            if op.startswith('ds_read') or op.startswith('ds_bpermute') or op.startswith('ds_permute') or op.startswith('ds_swizzle'):
                self.wr = E[0]; self.rd = sum(E[1:], [])
            else:
                self.rd = sum(E, [])
        elif op.startswith('buffer_') or op.startswith('global_'):
            self.kind = 'vm'
            islds = bool(re.search(r'\blds\b', mods))
            if op in ('buffer_inv', 'buffer_wbl2'):
                pass
            elif 'load' in op and not islds:
                self.wr = E[0]; self.rd = sum(E[1:], [])
            elif islds:
                self.rd = sum(E, []) + ['m0']; self.kind = 'dma'
            else:
                self.rd = sum(E, [])
                self.data = E[0] if op.startswith('buffer_') else E[1]
                if 'atomic' in op and re.search(r'\bsc0\b', mods): self.wr = E[0]
                if 'x4' in op or 'x3' in op: self.wide = True
        elif op == 's_nop':
            self.kind = 'nop'; self.ws = int(ops[0], 0) + 1
        elif op == 's_waitcnt':
            self.kind = 'wait'
        elif op.startswith('s_load') or op in ('s_memtime', 's_memrealtime'):
            self.kind = 'smem'; self.wr = E[0]; self.rd = sum(E[1:], [])
        elif op.startswith('s_'):
            self.kind = 'salu'
            if op.startswith('s_cmp') or op.startswith('s_cbranch') or op in ('s_branch', 's_barrier', 's_endpgm', 's_sleep', 's_setprio', 's_bitcmp1_b32', 's_bitcmp0_b32'):
                self.rd = sum(E, [])
            else:
                self.wr = E[0] if E else []; self.rd = sum(E[1:], [])
                if 'saveexec' in op: self.wr = self.wr + ['exec']
        else:
            self.kind = 'other'

VALUK = ('valu', 'trans', 'dot', 'perm', 'rdlane', 'dpp')

class Stream:
    def __init__(self, name=''):
        self.name = name
        self.out = []
        self.hist = []
        self.lg = []
        self.vm = []
        self.nbar = 0
        self.ool = []
        self.n_issued = 0
        self.issue_at = {}
        self.stats = {'nop': 0, 'wait': 0}
        self.marks = {}
        self.seen = set(); self.released = set()
    def fork(self, name):
        s = Stream(name)
        s.hist = list(self.hist); s.lg = list(self.lg); s.vm = list(self.vm); s.nbar = self.nbar
        s.n_issued = self.n_issued; s.issue_at = dict(self.issue_at)
        return s
    def _need(self, ins):
        need = 0; dist = 0
        rd = set(ins.rd); wr = set(ins.wr)
        for p in reversed(self.hist):
            req = 0
            pw = set(p.wr)
            if p.kind in VALUK:
                vw = {r for r in pw if r[0] in 'va' and r != 'vcc'}
                sw = {r for r in pw if r[0] == 's' or r == 'vcc'}
                if ins.kind == 'mfma' and vw & rd: req = max(req, 3 if p.kind == 'dot' else 2)
                if ins.kind in ('perm', 'dpp') and vw & rd: req = max(req, 2)
                if ins.kind == 'rdlane' and vw & rd: req = max(req, 1)
                if p.kind == 'trans' and ins.kind in VALUK and ins.kind != 'trans' and vw & rd: req = max(req, 1)
                if p.kind == 'trans' and ins.kind in ('ds', 'vm', 'dma', 'trans') and vw & rd: req = max(req, 1)
                if p.kind == 'dot':
                    if ins.kind == 'dot' and ins.op == p.op:
                        if vw & (rd - set(ins.srcC)) : req = max(req, 3)
                        elif vw & wr and not (vw & set(ins.srcC)): req = max(req, 3)
                    elif vw & (rd | wr): req = max(req, 3)
                if sw & rd:
                    if ins.kind in VALUK or ins.kind == 'mfma': req = max(req, 4 if ins.kind == 'rdlane' else 2)
                    if ins.kind in ('vm', 'dma'): req = max(req, 5)
                    if ins.kind in ('salu', 'smem'): req = max(req, 1)
                if 'exec' in pw: req = max(req, 5)
            if p.kind == 'mfma':
                npass = 8 if '32x32x16' in p.op else (4 if '16x16x32' in p.op else 16)
                big = {2: 5, 4: 8, 8: 12, 16: 20}[npass]
                if ins.kind == 'mfma':
                    if pw & (set(ins.srcA) | set(ins.srcB)): req = max(req, big)
                    if pw & set(ins.srcC):
                        if not (list(p.wr) == list(ins.srcC) and p.op == ins.op): req = max(req, big - 2)
                    elif pw & wr: req = max(req, big)
                elif ins.kind in VALUK or ins.kind in ('ds', 'vm', 'dma'):
                    if pw & (rd | wr): req = max(req, big)
                    if ins.kind in VALUK and set(p.srcC) & wr: req = max(req, {2: 1, 4: 3, 8: 7, 16: 15}[npass])
            if p.kind == 'vm' and p.wide and set(p.data) & wr:
                req = max(req, 2)
            if p.kind == 'salu' and 'm0' in pw and ins.kind == 'dma': req = max(req, 1)
            if req - dist > need: need = req - dist
            dist += p.ws
            if dist >= 24: break
        return need
    def _waits(self, ins):
        regs = set(ins.rd) | set(ins.wr)
        lg = vm = None
        for idx in range(len(self.lg) - 1, -1, -1):
            if self.lg[idx][0] & regs:
                lg = len(self.lg) - 1 - idx; break
        for idx in range(len(self.vm) - 1, -1, -1):
            if self.vm[idx][0] & regs:
                vm = len(self.vm) - 1 - idx; break
        return lg, vm
    def _push(self, ins):
        self.out.append(ins); self.hist.append(ins); self.hist = self.hist[-30:]; self.n_issued += 1
    def wait(self, vm=None, lg=None):
        parts = []
        if vm is not None and len(self.vm) > vm:
            vm = min(vm, 63); parts.append(f"vmcnt({vm})"); self.vm = self.vm[len(self.vm) - vm:] if vm else []
        if lg is not None and len(self.lg) > lg:
            lg = min(lg, 15); parts.append(f"lgkmcnt({lg})"); self.lg = self.lg[len(self.lg) - lg:] if lg else []
        if parts:
            self._push(I("s_waitcnt " + " ".join(parts))); self.stats['wait'] += 1
    def wait_tag(self, tag, lg=None):
        n = None
        for idx in range(len(self.vm) - 1, -1, -1):
            if self.vm[idx][1] == tag:
                n = len(self.vm) - 1 - idx; break
        self.wait(vm=n, lg=lg)
    def wait_regs(self, regs):
        class D: pass
        d = D(); d.rd = list(regs); d.wr = []
        lg, vm = self._waits(d)
        self.wait(vm=vm, lg=lg)
    def wait_dswrites(self):
        for idx in range(len(self.lg) - 1, -1, -1):
            if not self.lg[idx][0]:
                self.wait(lg=len(self.lg) - 1 - idx); break
    def cost(self, text):
        ins = I(text)
        need = self._need(ins)
        lg, vm = self._waits(ins)
        age = None
        if lg is not None or vm is not None:
            regs = set(ins.rd) | set(ins.wr)
            age = min(self.n_issued - self.issue_at.get(r, -10**9) for r in regs if r in self.issue_at) if any(r in self.issue_at for r in regs) else None
        return need, age
    def e(self, text, tag=None):
        for line in text.split('\n'):
            line = line.strip()
            if not line: continue
            if line.endswith(':') or line.startswith('.') or line.startswith(';'):
                self.out.append(line); continue
            ins = I(line, tag)
            if ins.kind == 'wait':
                raise ValueError("use wait()")
            lg, vm = self._waits(ins)
            if lg is not None or vm is not None: self.wait(vm=vm, lg=lg)
            need = self._need(ins)
            while need > 0:
                k = min(need, 16)
                self._push(I(f"s_nop {k-1}")); need -= k; self.stats['nop'] += k
            self._push(ins)
            if ins.kind == 'ds':
                self.lg.append((set(ins.wr), tag))
                for r in ins.wr: self.issue_at[r] = self.n_issued
                assert len(self.lg) < 200
            if ins.kind in ('vm', 'dma'):
                self.vm.append((set(ins.wr), tag))
                for r in ins.wr: self.issue_at[r] = self.n_issued
                if len(self.vm) > 63: raise ValueError("more than 63 VMEM ops outstanding: " + line)
            if ins.op == 's_barrier': self.nbar += 1
    def raw(self, text):
        for line in text.split('\n'):
            line = line.strip()
            if not line: continue
            if line.endswith(':') or line.startswith('.') or line.startswith(';'):
                self.out.append(line); continue
            self._push(I(line))
    def text(self):
        L = []
        for o in self.out:
            L.append(o if isinstance(o, str) else "  " + o.text)
        return "\n".join(L)

def interleave(s, steps, filler, per_step, min_age=6):
    fi = 0
    for si, st in enumerate(steps):
        for it in st:
            if callable(it): it(s)
            elif isinstance(it, tuple): s.e(it[0], tag=it[1])
            else: s.e(it)
        budget = per_step if not callable(per_step) else per_step(si)
        while budget > 0 and fi < len(filler):
            f = filler[fi]
            if isinstance(f, tuple) and f[0] == 'skip':
                f = filler[fi] = ('after', si + f[1])
            if isinstance(f, tuple) and f[0] == 'nextbar':
                f = filler[fi] = ('barge', s.nbar + 1)
            if isinstance(f, tuple) and f[0] == 'barge':
                if s.nbar >= f[1]: fi += 1; continue
                break
            if isinstance(f, tuple) and f[0] == 'after':
                if si >= f[1]: fi += 1; continue
                break
            if callable(f):
                f(s); fi += 1; budget -= 1; continue
            txt, tag = (f if isinstance(f, tuple) else (f, None))
            need, age = s.cost(txt)
            if need > 1 or (age is not None and age < min_age): break
            s.e(txt, tag); fi += 1
            budget -= 2 if I(txt).kind == 'trans' else 1
    return filler[fi:]

def drain(s, filler):
    for f in filler:
        if isinstance(f, tuple) and f[0] in ('after', 'skip'): continue
        if isinstance(f, tuple) and f[0] in ('nextbar', 'barge', 'wait'): raise ValueError("barrier-dependent filler left at drain")
        if callable(f): f(s)
        elif isinstance(f, tuple): s.e(f[0], f[1])
        else: s.e(f)
```

```python
import sys
sys.path.insert(0, 'gen')
from ab import *

KNAME = "recurrent_scan__linear_kernel_hedgehog__dense_activation_mish__prompt_kernel"
PROFILE = False
SLOT = 16384
SCR = 9 * SLOT
SCR_PHI = SCR
SCR_RS = SCR + 2048
SCR_ST = SCR + 2560
SCR_CS = SCR + 6656
SCR_Z = SCR + 10752
SCR_KV = SCR + 10752
Z_OFF = 0x900000
KV_OFF = Z_OFF
KVFLAG_OFF = Z_OFF + 0x11000
ACTFLAG_OFF = Z_OFF + 0x14000
PROF_OFF = 0xA00000
BIG = 0x40000000
CFG = dict(AD=10, PL=6, S0=6, S1=4, PRIO=0, VD=10, KP=150, KF=60, OW=0, G16=4, G28=16, TV=12, TB=1, TA=1, TO=11, RATE=38, BURST=24576, ST=90,
    CRED=6, AGE=14, P1B=5, FB=5, QB=[6, 3], IB=200, KB=6, VB=15, KVG=60, EH0=60, FG=60, E1=[120, 100], E2=[100, 80])

sX, sWq, sW1, sW2, sWo, sPhi, sB1, sOut, sDbg, sWs = [f"s[{8+4*i}:{11+4*i}]" for i in range(10)]
sW, sRT, sCH, sI, sG, sTY, sRB, sCB, sKQ, sRT2 = [f"s{48+i}" for i in range(10)]
sT0 = "s3"
sC10, sC01, sC11 = "s58", "s59", "s60"
sM0W = "s61"; sSoW = "s62"
sUA, sUB, sUC, sUD = "s63", "s6", "s7", "s2"
sAF, sFL, sAF2, sFL2, sB2, sBo, sKVs, sKVF, sSCRW, sCNT, sKS, sBID = [f"s{64+i}" for i in range(12)]
sA2y, sA2s, sOo = "s0", "s1", "s5"
STAMP0 = 76

vA16 = "v1"; vDq = "v2"; vD1 = "v3"; vDB = "v4"; vD5 = "v5"
VW = 6
vRS, vRSL, vM2 = "v14", "v15", "v22"
CF = 16
BI0, BI1, BI2 = 23, 24, 25
vPoll = "v27"; vFO = "v28"; vOne = "v10"; vP4 = "v30"; vT = "v31"; vPoll2 = "v9"
ACC_A, ACC_B, ACC_C = 32, 48, 64
WB = 80; PT = 96; PHI = 112; PK = 120; XA = 128
XR = 64; XD = 72; HR = 112; STA = 112; CSB = 116; ASEL = 120; CSA = 124
sXb = "s86"

def R(b, n): return f"v[{b}:{b+n-1}]"
def ldsaddr(regs, byte): return regs[byte >> 16], byte & 0xffff
_nl = [0]
def label():
    _nl[0] += 1; return f"L{_nl[0]}"
def stamp(name):
    def f(s):
        if not PROFILE: return
        if not hasattr(s, 'snames'): s.snames = []
        idx = len(s.snames)
        if idx >= 63: return
        s.snames.append(str(name))
        s.e(f"s_memtime s[{STAMP0+2*(idx%4)}:{STAMP0+1+2*(idx%4)}]")
        if idx >= 2: s.raw(f"v_writelane_b32 v29, s{STAMP0+2*((idx-2)%4)}, {idx-2}")
    return f
def srd(s, dst, lo, hi, size):
    b = int(dst[2:dst.index(':')])
    s.e(f"s_mov_b32 s{b}, {lo}\ns_and_b32 s{b+1}, {hi}, 0xffff\ns_mov_b32 s{b+2}, {size}\ns_mov_b32 s{b+3}, 0x20000")
def poll_issue(s, srd_, soff, vp=vPoll):
    s.e(f"buffer_load_dword {vp}, {vP4}, {srd_}, {soff} offen sc1")
def poll_check(s, srd_, soff, mask, vp=vPoll):
    l1, l2, l3 = label(), label(), label()
    stamp(f"[p{mask:x}")(s)
    s.e(f"v_cmp_ne_u32 vcc, 0, {vp}\ns_andn2_b32 {sT0}, {mask:#x}, vcc_lo\ns_cbranch_scc1 {l1}\n{l2}:")
    stamp(f"p]")(s)
    s.ool.append(f"""{l1}:
  s_mov_b32 {sCNT}, 0x20000
{l3}:
  s_sleep 1
  buffer_load_dword {vp}, {vP4}, {srd_}, {soff} offen sc1
  s_waitcnt vmcnt(0)
  v_cmp_ne_u32 vcc, 0, {vp}
  s_nop 1
  s_andn2_b32 {sT0}, {mask:#x}, vcc_lo
  s_cbranch_scc0 {l2}
  s_sub_u32 {sCNT}, {sCNT}, 1
  s_cmp_lg_u32 {sCNT}, 0
  s_cbranch_scc1 {l3}
  s_branch {l2}""")
def flag_store(tagwait, soff, imm, mark):
    def f(s):
        stamp("(" + mark)(s)
        s.wait_tag(tagwait)
        stamp(mark + ")")(s)
        s.e(f"buffer_store_dword {vOne}, {vFO}, {sWs}, {soff} offen offset:{imm} sc1")
        s.marks[mark] = 1
    return f
def blk(text): return lambda s: s.e(text)

class Ring:
    hold = ()
    def __init__(self, items, free, ch):
        self.items = list(items); self.free = list(free); self.slot = {}; self.q = []; self.log = {}; self.ch = ch
        self.order = {it[0]: k for k, it in enumerate(items)}; self.xres = True
    def release(self, name):
        if name not in self.hold: self.free.append(self.slot[name])
    def assign(self, s, owner='all', upto=None, maxn=99):
        k = 0
        while k < len(self.items) and maxn > 0:
            it = self.items[k]; nm = it[0]
            if upto is not None and self.order[nm] > self.order[upto]: break
            if nm[0] == 'X':
                want = 2 * (int(nm[2]) & 1) + (nm[1] == 'H')
                ok = [x for x in self.free if x == want]
                if not ok: k += 1; continue
            elif nm[0] in 'BF': ok = [x for x in self.free if not (self.xres and x < 4)]
            else: ok = [x for x in self.free if x != 0 and not (self.xres and x < 4)]
            if not ok:
                if nm[0] != 'B': k += 1; continue
                break
            if nm[0] in 'BF' and 0 in ok: ok = [0]
            self.items.pop(k); sl = ok[0]; self.free.remove(sl); self.slot[nm] = sl; maxn -= 1
            self.log[nm] = [s.nbar, None, owner]
            if owner == 'all': self.q += [(it, sl, h, 0) for h in range(2)]
            elif owner == self.ch: self.q += [(it, sl, h, o) for o in range(2) for h in range(2)]
            if nm == 'XH3': self.xres = False
        self.q.sort(key=lambda e: self.order[e[0][0]])
    def pump(self, s, n=1):
        while n > 0 and self.q:
            (name, srd_, voff, sbase, o0, o1, dl), sl, h, other = self.q.pop(0)
            sg = (1 if self.ch == 0 else -1) * other
            vo = voff[h] if isinstance(voff, tuple) else voff
            s.e(f"s_add_u32 m0, {sM0W}, {(sl*SLOT + h*1024 + sg*8192) & 0xffffffff:#x}")
            s.e(f"s_add_u32 {sSoW}, {sbase}, {((o0, o1)[h] + sg*dl) & 0xffffffff:#x}")
            s.e(f"buffer_load_dwordx4 {vo}, {srd_}, {sSoW} offen lds", tag=name)
            n -= 1
    cred = 0
    def pace(self, s, cycles):
        self.cred = min(self.cred + cycles * CFG['RATE'], CFG['BURST'])
        while self.q:
            e = self.q[0]
            cost = (8192 if self.log[e[0][0]][2] == 'all' else 4096) * (2 if e[0][0][0] == 'F' else 1)
            if self.cred < cost: break
            self.cred -= cost; self.pump(s, 1)
    def need(self, s, name):
        assert name in self.slot, f"{name} has no slot yet"
        while any(e[0][0] == name for e in self.q):
            print("  warning: forced DMA issue for", name, "in", s.name)
            self.pump(s)
        if self.log[name][1] is None: self.log[name][1] = s.nbar
        s.wait_tag(name)
def x_items(q):
    return [(f"XL{q}", sX, (f"v{XD}", f"v{XD+1}"), sXb, q * 256, q * 256, 0), (f"XH{q}", sX, (f"v{XD}", f"v{XD+1}"), sXb, 65536 + q * 256, 65536 + q * 256, 0)]
def w_items(name, srd_, voff, sbase, stride):
    return [(f"{name}{c}", srd_, voff, sbase, c * 128 * stride, c * 128 * stride + 8 * stride, 64 * stride) for c in range(4)]
ORDER = [4, 5, 6, 7, 16, 17, 18, 19, 8, 9, 10, 11, 20, 21, 22, 23, 0, 1, 2, 3, 24, 25, 26, 27, 12, 13, 14, 15]
def b_item(hf, c):
    nm = f"B{'ab'[hf]}{c}"
    if c < 7:
        o = hf * 896 * 1024 + ORDER[4 * c] * 16384
        return (nm, sW2, vDB, sB2, o, o + 8192, 448 * 1024)
    o = hf * 256 * 1024 + (c - 7) * 65536
    return (nm, sWo, vDB, sBo, o, o + 8192, 128 * 1024)
def b_items(first):
    it = []
    for c in range(9): it += [b_item(0, c), b_item(1, c)]
    return it

def mish(acc, tmp, so, tag):
    F = []
    for hb in range(2):
        a = acc + 8 * hb
        for j in range(8): F.append(f"v_mul_f32 v{tmp+j}, v{a+j}, {vRSL}")
        for j in range(8): F.append(f"v_exp_f32 v{tmp+j}, v{tmp+j}")
        for j in range(8): F.append(f"v_add_f32 v{tmp+j}, 1.0, v{tmp+j}")
        for j in range(8): F.append(f"v_fma_f32 v{tmp+j}, v{tmp+j}, v{tmp+j}, 1.0")
        for j in range(8): F.append(f"v_rcp_f32 v{tmp+j}, v{tmp+j}")
        for j in range(8): F.append(f"v_fma_f32 v{tmp+j}, v{tmp+j}, {vM2}, {vRS}")
        for j in range(8): F.append(f"v_mul_f32 v{tmp+j}, v{a+j}, v{tmp+j}")
        for j in range(4): F.append(f"v_cvt_pk_bf16_f32 v{a+j}, v{tmp+2*j}, v{tmp+2*j+1}")
        F.append((f"buffer_store_dwordx4 {R(a,4)}, {vA16}, {sWs}, {so} offen offset:{hb*1024} sc1", tag))
    return F
def softmax(P, out, t0, t1):
    F = [f"v_max3_f32 {t0}, v{P}, v{P+1}, v{P+2}", f"v_max3_f32 {t1}, v{P+3}, v{P+4}, v{P+5}",
         f"v_max3_f32 {t0}, {t0}, v{P+6}, v{P+7}", f"v_max3_f32 {t1}, {t1}, v{P+8}, v{P+9}",
         f"v_max3_f32 {t0}, {t0}, v{P+10}, v{P+11}", f"v_max3_f32 {t1}, {t1}, v{P+12}, v{P+13}",
         f"v_max3_f32 {t0}, {t0}, v{P+14}, v{P+15}", f"v_max_f32 {t0}, {t0}, {t1}", f"v_mul_f32_e64 {t0}, -{t0}, {vRSL}"]
    for j in range(16): F.append(f"v_fma_f32 v{P+j}, v{P+j}, {vRSL}, {t0}")
    for j in range(16): F.append(f"v_exp_f32 v{P+j}, v{P+j}")
    F += [f"v_add_f32 {t0}, v{P}, v{P+1}", f"v_add_f32 {t1}, v{P+2}, v{P+3}"]
    for j in range(4, 16, 2):
        F += [f"v_add_f32 {t0}, {t0}, v{P+j}", f"v_add_f32 {t1}, {t1}, v{P+j+1}"]
    F += [f"v_add_f32 {t0}, {t0}, {t1}", f"v_rcp_f32 {t0}, {t0}"]
    for j in range(16): F.append(f"v_mul_f32 v{P+j}, v{P+j}, {t0}")
    for j in range(8): F.append(f"v_cvt_pk_bf16_f32 v{out+j}, v{P+2*j}, v{P+2*j+1}")
    return F
def pack16(acc, out): return [f"v_cvt_pk_bf16_f32 v{out+j}, v{acc+2*j}, v{acc+2*j+1}" for j in range(8)]
def phi_frags():
    F = ["v_bfe_u32 v25, v0, 2, 2", "v_lshrrev_b32 v26, 5, v0", "v_lshl_add_u32 v25, v26, 2, v25", "v_lshlrev_b32 v25, 5, v25",
         "v_bfe_u32 v26, v0, 4, 1", "v_lshl_add_u32 v25, v26, 4, v25", "v_bfe_u32 v26, v0, 1, 1", "v_lshl_add_u32 v25, v26, 3, v25",
         blk(f"s_lshl_b32 s4, {sCH}, 10\ns_add_u32 s4, s4, {SCR_PHI}\nv_add_u32 v25, s4, v25")]
    for h in range(2):
        for rd in range(2): F.append(f"ds_read_b64_tr_b16 {R(PHI+4*h+2*rd,2)}, v25 offset:{h*512 + rd*256}")
    F += ["v_bfe_u32 v26, v0, 2, 1", "v_mul_u32_u24 v26, 0x8000, v26", "v_lshl_or_b32 v26, v26, 16, v26"]
    for j in range(8): F.append(f"v_xor_b32 v{PHI+j}, v26, v{PHI+j}")
    return F

def prologue(s):
    s.e("s_load_dwordx2 s[64:65], s[0:1], 0\ns_load_dwordx2 s[84:85], s[0:1], 80")
    s.e("s_load_dwordx8 s[68:75], s[0:1], 8\ns_load_dwordx8 s[76:83], s[0:1], 40\ns_load_dwordx2 s[66:67], s[0:1], 72")
    s.e("s_cmp_ge_u32 s2, 256\ns_cbranch_scc1 L_end")
    s.e("v_lshrrev_b32 v2, 6, v0\nv_and_b32 v0, 63, v0")
    s.e(f"v_readfirstlane_b32 {sW}, v2")
    s.e("s_and_b32 s3, s2, 7\ns_lshr_b32 s4, s2, 3")
    s.e(f"s_and_b32 s5, s3, 1\ns_lshl_b32 s5, s5, 3\ns_and_b32 {sI}, s4, 7\ns_add_u32 {sI}, {sI}, s5")
    s.e(f"s_lshr_b32 {sKQ}, {sW}, 1\ns_and_b32 {sRT2}, {sW}, 1\ns_lshl_b32 {sM0W}, {sW}, 11")
    s.e(f"s_and_b32 {sRT}, {sW}, 3\ns_lshr_b32 {sCH}, {sW}, 2")
    s.e(f"s_lshr_b32 s5, s3, 1\ns_lshl_b32 s5, s5, 2\ns_lshr_b32 s6, s4, 3\ns_add_u32 s5, s5, s6")
    s.e(f"s_lshr_b32 {sG}, s5, 1\ns_and_b32 {sTY}, s5, 1")
    s.e(f"s_lshl_b32 {sRB}, s3, 2\ns_add_u32 {sRB}, {sRB}, s6\ns_and_b32 {sCB}, s4, 7\ns_mov_b32 s87, s4")
    s.e(f"v_lshrrev_b32 v33, 4, v0\nv_and_b32 v34, 15, v0\ns_lshl_b32 s5, {sRT2}, 3")
    for h in range(2):
        s.e(f"v_add_u32 v35, {4*h}, v33\nv_add_u32 v36, s5, v35\nv_xor_b32 v36, v34, v36\nv_lshlrev_b32 v36, 4, v36\nv_lshl_add_u32 v{XD+h}, v35, 10, v36")
    s.e(f"s_lshl_b32 {sXb}, {sI}, 17\ns_lshl_b32 s5, {sW}, 13\ns_add_u32 {sXb}, {sXb}, s5")
    s.e("v_lshrrev_b32 v36, 3, v0\nv_and_b32 v37, 7, v0\nv_lshlrev_b32 v38, 1, v36\nv_and_b32 v38, 4, v38\nv_xor_b32 v37, v37, v38\nv_lshlrev_b32 v37, 4, v37")
    s.e(f"v_mul_u32_u24 {vDq}, 3072, v36\nv_add_u32 {vDq}, {vDq}, v37\nv_mul_u32_u24 {vD1}, 3584, v36\nv_add_u32 {vD1}, {vD1}, v37")
    s.e(f"v_lshl_add_u32 {vDB}, v36, 10, v37\nv_lshlrev_b32 {vA16}, 4, v0")
    s.raw("s_waitcnt lgkmcnt(0)")
    srd(s, sX, "s64", "s65", 2048 * 512 * 2)
    srd(s, sWq, "s68", "s69", 512 * 1536 * 2)
    srd(s, sW1, "s76", "s77", 512 * 1792 * 2)
    srd(s, sWs, "s84", "s85", 0x10000000)
    s.e("s_cmp_ge_u32 s2, 16\ns_cbranch_scc1 L_noinit")
    s.e("v_mov_b32 v40, 0\nv_mov_b32 v41, 0\nv_mov_b32 v42, 0\nv_mov_b32 v43, 0")
    s.e(f"s_lshl_b32 s5, s2, 13\ns_lshl_b32 s6, {sW}, 10\ns_add_u32 s5, s5, s6\ns_add_u32 s5, s5, {Z_OFF}")
    s.raw(f"buffer_store_dwordx4 v[40:43], {vA16}, {sWs}, s5 offen sc1")
    s.e("L_noinit:")
    s.e("s_mov_b32 s88, s2")

def prologue2(s):
    lab = label()
    s.e(f"s_cmp_lg_u32 {sW}, 7\ns_cbranch_scc1 {lab}")
    s.e(f"s_getpc_b64 s[90:91]\n{lab}x:\ns_sub_u32 s90, s90, {lab}x-{KNAME}\ns_subb_u32 s91, s91, 0\ns_mul_i32 s5, s87, 2560\nv_min_u32 v35, 19, v0\nv_lshlrev_b32 v35, 7, v35\nv_add_u32 v35, s5, v35")
    s.raw("global_load_dword v26, v35, s[90:91]")
    s.e(f"{lab}:")
    srd(s, sPhi, "s70", "s71", 32 * 512)
    srd(s, sB1, "s78", "s79", 1792 * 2)
    srd(s, sW2, "s80", "s81", 1792 * 512 * 2)
    srd(s, sWo, "s72", "s73", 512 * 512 * 2)
    srd(s, sOut, "s82", "s83", 2048 * 512 * 2)
    srd(s, sDbg, "s66", "s67", 256)
    s.e(f"s_mov_b32 {sBID}, s88\ns_mov_b32 {sC11}, 0x3f803f80")
    s.e(f"v_lshrrev_b32 v36, 2, v0\nv_and_b32 v37, 3, v0\nv_lshlrev_b32 v37, 4, v37\nv_mul_u32_u24 {vD5}, 3584, v36\nv_add_u32 {vD5}, {vD5}, v37")
    s.e(f"v_and_b32 {vP4}, 31, v0\nv_lshlrev_b32 {vP4}, 2, {vP4}")
    s.e(f"v_mov_b32 v29, 0\nv_mov_b32 {vFO}, {BIG}\nv_cmp_eq_u32 vcc, 0, v0\nv_cndmask_b32 {vFO}, {vFO}, 0, vcc")
    s.e("v_bfe_u32 v36, v0, 2, 2\nv_and_b32 v37, 3, v0\nv_bfe_u32 v38, v0, 4, 1\nv_lshrrev_b32 v39, 5, v0")
    s.e("v_lshlrev_b32 v40, 3, v37\nv_lshl_add_u32 v40, v38, 5, v40\nv_lshl_add_u32 v41, v39, 3, v36")
    s.e(f"v_lshrrev_b32 v42, 1, v36\nv_xor_b32 v42, {sCH}, v42\nv_lshlrev_b32 v42, 6, v42")
    s.e(f"v_lshl_add_u32 v43, v41, 7, v40\nv_add_u32 v43, v43, v42")
    for j in range(4):
        s.e(f"s_xor_b32 s5, {sRT}, {j}\ns_lshl_b32 s5, s5, 12\ns_add_u32 s5, s5, {SLOT}\nv_add_u32 v{VW+j}, s5, v43\nv_add_u32 v{VW+4+j}, 0x10000, v{VW+j}")
    s.e(f"v_and_b32 v44, 31, v0\ns_lshl_b32 s5, {sRT}, 5\nv_add_u32 v45, s5, v44\nv_xor_b32 v46, v39, v34\nv_lshlrev_b32 v46, 4, v46\nv_lshl_add_u32 v{XR}, v45, 8, v46")
    s.e(f"s_lshl_b32 s5, {sRT}, 6\nv_xor_b32 v{XR}, s5, v{XR}")
    for t in range(1, 8): s.e(f"v_xor_b32 v{XR+t}, {t<<5}, v{XR}")
    s.e(f"v_lshlrev_b32 v44, 2, v38\nv_cmp_eq_u32 vcc, v44, v34\nv_mov_b32 v44, {sC11}\nv_cndmask_b32 v{ASEL}, 0, v44, vcc")
    for j in range(1, 4): s.e(f"v_mov_b32 v{ASEL+j}, v{ASEL}")
    s.e(f"v_mov_b32 v{CF+4}, 0\nv_mov_b32 v{CF+5}, 0")
    s.e(f"s_lshl_b32 s3, {sI}, 2\ns_add_u32 s3, s3, {sRT}\ns_mul_i32 {sAF}, s3, {144*1024}")
    s.e(f"s_mul_i32 {sKS}, {sG}, {14*1024}\ns_add_u32 {sKS}, {sKS}, {sAF}")
    s.e(f"s_lshl_b32 {sFL}, s3, 9\ns_lshr_b32 s4, {sG}, 1\ns_lshl_b32 s4, s4, 7\ns_add_u32 {sFL}, {sFL}, s4")
    s.e(f"s_and_b32 s4, {sG}, 1\ns_lshl_b32 s4, s4, 3\ns_lshl_b32 s5, {sCH}, 2\ns_add_u32 s4, s4, s5\ns_add_u32 {sFL}, {sFL}, s4\ns_add_u32 {sFL}, {sFL}, {ACTFLAG_OFF}")
    s.e(f"s_lshl_b32 s3, {sRB}, 1\ns_add_u32 s3, s3, {sRT2}\ns_mul_i32 {sAF2}, s3, {144*1024}")
    s.e(f"s_lshl_b32 {sFL2}, s3, 9\ns_lshl_b32 s4, {sKQ}, 7\ns_add_u32 {sFL2}, {sFL2}, s4\ns_add_u32 {sFL2}, {sFL2}, {ACTFLAG_OFF}")
    s.e(f"s_mul_i32 {sB2}, {sCH}, {448*1024}\ns_lshl_b32 s4, {sRT}, 14\ns_lshl_b32 s5, {sCB}, 7\ns_add_u32 s4, s4, s5\ns_add_u32 {sB2}, {sB2}, s4")
    s.e(f"s_lshl_b32 {sBo}, {sCH}, 17\ns_add_u32 {sBo}, {sBo}, s4")
    s.e(f"s_lshl_b32 s3, {sG}, 2\ns_add_u32 s3, s3, {sKQ}\ns_mul_i32 {sKVs}, s3, 2176\ns_add_u32 {sKVs}, {sKVs}, {KV_OFF}")
    s.e(f"s_lshl_b32 s3, {sG}, 3\ns_add_u32 s3, s3, {sW}\ns_lshl_b32 {sKVF}, s3, 7\ns_add_u32 {sKVF}, {sKVF}, {KVFLAG_OFF}")
    s.e(f"s_mul_i32 s3, {sKQ}, {28*1024}\ns_add_u32 {sA2y}, {sAF2}, s3")
    s.e(f"s_lshl_b32 s3, {sKQ}, 13\ns_add_u32 {sA2s}, {sAF2}, s3\ns_add_u32 {sA2s}, {sA2s}, {112*1024}")
    s.e(f"v_lshrrev_b32 {vT}, 1, {vP4}")

def unit_bases(s, typ):
    s.e(f"s_mul_i32 s3, {sW}, {16*3072}\ns_lshl_b32 s4, {sG}, 7\ns_add_u32 s3, s3, s4")
    s.e(f"s_mul_i32 s4, {sG}, 448\ns_and_b32 s5, {sG}, 1\ns_cmp_eq_u32 s5, 0")
    if typ == 'A':
        s.e(f"s_cselect_b32 s5, 0, 320\ns_add_u32 s4, s4, s5")
        s.e(f"s_add_u32 {sUA}, s3, 1024\ns_add_u32 {sUB}, s3, 2048")
        s.e(f"s_mul_i32 {sUC}, {sW}, {16*3584}\ns_add_u32 {sUC}, {sUC}, s4")
        s.e(f"s_lshl_b32 s5, {sCH}, 6\ns_add_u32 s92, s4, s5")
        return [f"buffer_load_ushort v{BI0}, {vT}, {sB1}, s92 offen"]
    s.e(f"s_cselect_b32 s5, 128, 64\ns_cselect_b32 {sUD}, 384, 0")
    s.e(f"s_add_u32 s5, s4, s5\ns_add_u32 s92, s4, {sUD}\ns_mov_b32 {sUC}, s3")
    s.e(f"s_mul_i32 {sUA}, {sW}, {16*3584}\ns_add_u32 {sUA}, {sUA}, s5\ns_add_u32 {sUB}, {sUA}, 128")
    s.e(f"s_mul_i32 {sUD}, {sW}, {32*3584}\ns_add_u32 {sUD}, {sUD}, s92")
    s.e(f"s_lshl_b32 s3, {sCH}, 6\ns_add_u32 s93, s5, s3")
    return [f"buffer_load_ushort v{BI2}, {vT}, {sB1}, s92 offen", f"buffer_load_ushort v{BI0}, {vT}, {sB1}, s93 offen",
            f"buffer_load_ushort v{BI1}, {vT}, {sB1}, s93 offen offset:128"]

def start(s, ring, biasloads):
    ring.assign(s, upto=ring.upto0); ring.pump(s, CFG['S0'])
    prologue2(s)
    ring.pump(s, CFG['S1'])
def late_loads(biasloads):
    def f(s):
        s.e(f"v_lshrrev_b32 {vT}, 1, {vP4}")
        for x in biasloads: s.e(x)
        s.e(f"s_lshl_b32 s3, {sG}, 11\ns_lshl_b32 s4, {sRT2}, 10\ns_add_u32 s3, s3, s4\ns_add_u32 m0, s4, {SCR_PHI}")
        s.e(f"buffer_load_dwordx4 {vA16}, {sPhi}, s3 offen lds", tag="phi")
    return f

MF = "v_mfma_f32_32x32x16_bf16"
def bar(s, ring, name, needs=(), rel=(), owner='all', lg0=False, upto=None, extra=(), maxn=99):
    if CFG.get('SB'): stamp("<" + name)(s)
    for n in needs: ring.need(s, n)
    if lg0: s.wait(lg=0)
    s.wait_dswrites()
    s.e("s_barrier")
    stamp(name)(s)
    s.marks[name] = 1
    for n in rel: ring.release(n)
    ring.free += list(extra)
    ring.assign(s, owner, upto, maxn)
def B(ring, *a, **k): return lambda s: bar(s, ring, *a, **k)

class MSeg:
    def __init__(self, ring, u, ch, events=None, posts=None, xpass=False, dma=0):
        self.ring, self.u, self.ch, self.ev, self.posts, self.xp, self.dma = ring, u, ch, events or {}, posts or {}, xpass, dma
        self.nr = 0; self.hs = None
    def reads(self, s, t):
        u, ring = self.u, self.ring
        for e in self.ev.get(t, []): e(s)
        c, p = t // 8, t % 8
        if self.xp:
            for x in {0: (0, 1), 1: (2, 3, 4), 2: (5, 6, 7)}.get(p, ()):
                s.e(f"ds_read_b128 {R(XA+32*c+4*x,4)}, v{XR+x} offset:{(c&1)*32768}")
        it = f"{u['name']}{c}" if u['kind'] == 'w' else f"{u['name']}{c//2}"
        assert ring.log[it][1] is not None, f"{it} read before certified"
        sl = ring.slot[it]; buf = WB + 4 * (t % 4)
        if u['kind'] == 'h5' and self.hs != sl:
            if self.hs is None:
                s.e("v_bfe_u32 v116, v0, 2, 2\nv_lshrrev_b32 v117, 5, v0\nv_lshl_add_u32 v116, v117, 3, v116\nv_lshlrev_b32 v116, 6, v116\nv_bfe_u32 v117, v0, 4, 1\nv_lshl_add_u32 v116, v117, 5, v116\nv_and_b32 v117, 3, v0\nv_lshl_add_u32 v116, v117, 3, v116")
                for j in range(4): s.e(f"s_xor_b32 s3, {sRT}, {j}\ns_lshl_b32 s3, s3, 11\ns_add_u32 s3, s3, {sl*SLOT}\nv_add_u32 v{HR+j}, s3, v116")
            else:
                for j in range(4): s.e(f"v_add_u32 v{HR+j}, {((sl-self.hs)*SLOT) & 0xffffffff:#x}, v{HR+j}")
            self.hs = sl
        for k in range(2):
            if u['kind'] == 'w':
                w = 0 if sl <= 4 else 1
                r, off = f"v{VW+4*w+p//2}", (sl - 1 - 4 * w) * SLOT + (p & 1) * 2048 + k * 512
            else: r, off = f"v{HR+p//2}", (c % 2) * 8192 + (p & 1) * 1024 + k * 256
            s.e(f"ds_read_b64_tr_b16 {R(buf+2*k,2)}, {r} offset:{off}")
    def pre(self, s, n=3):
        while self.nr < n: self.reads(s, self.nr); self.nr += 1
    def run(self, s, nxt=None, F=None, budget=0):
        u = self.u; ch = self.ch
        credit = 0
        if CFG['PRIO'] and not self.xp: s.e("s_setprio 1")
        self.pre(s)
        for t in range(32):
            c, p = t // 8, t % 8
            buf = WB + 4 * (t % 4)
            cin = R(u['acc'], 16) if t > 0 else "0"
            a, b = (R(buf, 4), R(XA + 4 * t, 4)) if u['trans'] else (R(XA + 4 * t, 4), R(buf, 4))
            s.e(f"{MF} {R(u['acc'],16)}, {a}, {b}, {cin}")
            if p < 2: s.e(f"v_mfma_f32_16x16x32_bf16 {R(CSA,4)}, {R(ASEL,4)}, {R(buf,4)}, {R(CSA,4) if t > 0 else '0'}")
            if self.nr < 32: self.reads(s, self.nr); self.nr += 1
            elif nxt is not None: nxt.pre(s, t - 28)
            if self.xp and t < 25: self.ring.pump(s, 1)
            elif self.xp: self.ring.pace(s, CFG['ST'])
            elif self.dma: self.ring.pace(s, self.dma)
            if t == 27:
                s.e(f"s_lshl_b32 s3, {sRT}, 2\ns_add_u32 s3, s3, {SCR_CS + u['csi']*2048 + ch*1024}\nv_add_u32 v{CSA+1}, s3, {vA16}\nds_write_b32 v{CSA+1}, v{CSA}")
            if self.xp and p in (1, 3):
                for x in ((ch, ch + 2) if p == 1 else (ch + 4, ch + 6)):
                    for j in range(4):
                        r = XA + 32 * c + 4 * x + j
                        first = (c == 0 and p == 1 and x == ch and j < 2)
                        s.e(f"v_dot2_f32_bf16 v{STA+(j&1)}, v{r}, {sC11}, {'0' if first else f'v{STA+(j&1)}'}")
                        s.e(f"v_dot2_f32_bf16 v{STA+2+(j&1)}, v{r}, v{r}, {'0' if first else f'v{STA+2+(j&1)}'}")
                if t == 27:
                    q = f"v{STA+2}"
                    s.e(f"v_add_f32 v{STA}, v{STA}, v{STA+1}\nv_add_f32 v{STA+1}, v{STA+2}, v{STA+3}\nv_lshrrev_b32 {q}, 5, v0\nv_lshlrev_b32 {q}, 3, {q}\n"
                        f"v_lshl_add_u32 {q}, {vP4}, 3, {q}\ns_lshl_b32 s3, {sRT}, 10\ns_add_u32 s3, s3, {SCR_ST + ch*16}\nv_add_u32 {q}, s3, {q}\nds_write_b64 {q}, {R(STA,2)}")
            for e in self.posts.get(t, []): e(s)
            if F is not None: credit = fill(s, F, (budget(t) if callable(budget) else budget) + min(credit, CFG['CRED']))
        if CFG['PRIO'] and not self.xp: s.e("s_setprio 0")

def fill(s, F, budget, force=False):
    while budget > 0 and F:
        f = F[0]
        if isinstance(f, tuple) and f[0] == 'wait':
            if f[1] in s.marks: F.pop(0); continue
            return 0
        if isinstance(f, tuple) and f[0] == 'nextbar': f = F[0] = ('barge', s.nbar + 1)
        if isinstance(f, tuple) and f[0] == 'barge':
            if s.nbar >= f[1]: F.pop(0); continue
            return 0
        if isinstance(f, tuple) and f[0] == 'gap':
            f = F[0] = ('until', s.n_issued + f[1])
        if isinstance(f, tuple) and f[0] == 'until':
            if s.n_issued >= f[1] or force: F.pop(0); continue
            return 0
        if callable(f):
            F.pop(0); n0 = s.n_issued; f(s); budget -= max(1, (s.n_issued - n0) * 0.5); continue
        txt, tag = (f if isinstance(f, tuple) else (f, None))
        need, age = s.cost(txt)
        if not force and (need > 1 or (age is not None and age < CFG['AGE'])): return budget
        F.pop(0); s.e(txt, tag)
        k = I(txt).kind
        budget -= 2 if k == 'trans' else (0.5 if k in ('salu', 'ds', 'vm') else 1)
    return 0
def until(s, ring, F, name, every=None):
    n = 0
    while name not in s.marks:
        assert F, name
        l = len(F); fill(s, F, 1, force=True)
        assert len(F) < l, ("stuck", F[0], name, s.name)
        n += 1
        ring.pace(s, 9)
    return n
def vrun(s, ring, F, slots, every=None, flush=True):
    every = every or CFG['VD']
    while slots > 0 and F:
        l = len(F); fill(s, F, min(every, slots), force=True); slots -= every
        ring.pace(s, 9 * every)
        if len(F) == l: break
    if flush: ring.pump(s, 99)

def vseg(s, ring, F, every=None, flush=True):
    every = every or CFG['VD']
    n = 0
    for f in F:
        if isinstance(f, tuple) and f[0] in ('after', 'skip', 'wait', 'gap', 'until'): continue
        drain(s, [f]); n += 1
        ring.pace(s, 10)
    if flush: ring.pump(s, 99)
def split(F, frac, item):
    k = int(len(F) * frac)
    return F[:k] + [item] + F[k:]

def pass0(s, ring, u, ch, bl, nextname, nextneed):
    ev = {}
    for c in range(4):
        def b0(s, c=c):
            if c == 3: s.wait_tag("phi")
            bar(s, ring, f"b0{c}", [f"{u['name']}{c}", f"XL{c}", f"XH{c}"], [f"{u['name']}{c-1}"] if c else [], lg0=True, upto=nextname)
            if c == 0:
                lab = label()
                s.e(f"s_cmp_ge_u32 {sBID}, 16\ns_cbranch_scc1 {lab}\ns_cmp_lg_u32 {sW}, 0\ns_cbranch_scc1 {lab}\ns_lshl_b32 s3, {sBID}, 2")
                s.raw(f"buffer_store_dword {vOne}, {vFO}, {sDbg}, s3 offen sc1")
                s.e(f"{lab}:")
        def bx(s, c=c):
            s.wait_regs([f"v{r}" for r in range(XA + 32 * c, XA + 32 * c + 32)])
            bar(s, ring, f"bx{c}", nextneed if c == 3 else [], [f"XL{c}", f"XH{c}"], upto=(nextname if c < 3 else None))
        ev[8 * c] = [b0]; ev[8 * c + 4] = [bx]
    return MSeg(ring, u, ch, ev, {6: [late_loads(bl)], 24: [lambda s: poll_issue(s, sDbg, "0")]}, xpass=True, dma=1)

def stats_fin(T):
    F = [blk(f"s_lshl_b32 s4, {sRT}, 10\ns_add_u32 s4, s4, {SCR_ST}\nv_lshlrev_b32 {vT}, 3, {vP4}\nv_add_u32 {vT}, s4, {vT}"),
         f"ds_read_b128 {R(T,4)}, {vT}", f"ds_read_b128 {R(T+4,4)}, {vT} offset:16",
         blk(f"s_lshl_b32 s4, {sRT}, 7\ns_add_u32 s4, s4, {SCR_RS}\nv_add_u32 {vT}, s4, {vP4}\nv_cmp_gt_u32 s[94:95], 32, v0")]
    a, b = f"v{T}", f"v{T+1}"
    F += [f"v_add_f32 {a}, {a}, v{T+2}", f"v_add_f32 {b}, {b}, v{T+3}", f"v_add_f32 v{T+4}, v{T+4}, v{T+6}", f"v_add_f32 v{T+5}, v{T+5}, v{T+7}",
          f"v_add_f32 {a}, {a}, v{T+4}", f"v_add_f32 {b}, {b}, v{T+5}", f"v_mul_f32 {a}, 0xbb000000, {a}", f"v_mul_f32 {b}, 0x3b000000, {b}",
          f"v_fma_f32 {b}, -{a}, {a}, {b}", f"v_max_f32 {b}, 0, {b}", f"v_cvt_pk_bf16_f32 {b}, {b}, {b}", f"v_lshlrev_b32 {b}, 16, {b}",
          f"v_add_f32 {b}, 0x3727c5ac, {b}", f"v_cvt_pk_bf16_f32 {b}, {b}, {b}", f"v_lshlrev_b32 {b}, 16, {b}", f"v_sqrt_f32 {b}, {b}",
          f"v_cvt_pk_bf16_f32 {b}, {b}, {a}", f"v_lshlrev_b32 {vRS}, 16, {b}", f"v_rcp_f32 {vRS}, {vRS}",
          f"v_cndmask_b32 v{CF+2}, 0, {b}, s[94:95]", f"v_lshrrev_b32 v{CF+3}, 16, v{CF+2}",
          f"v_mul_f32 {vRSL}, 0x3fb8aa3b, {vRS}", f"v_mul_f32 {vM2}, -2.0, {vRS}", f"ds_write_b32 {vT}, {vRS}"]
    return F
def correct(u, ch, T, bias=None):
    F = [f"v_lshlrev_b32 {vT}, 2, {vP4}", f"v_add_u32 {vT}, {SCR_CS + u['csi']*2048 + ch*1024}, {vT}", f"ds_read_b128 {R(T,4)}, {vT}",
         f"v_add_f32 v{T}, v{T}, v{T+1}", f"v_add_f32 v{T+2}, v{T+2}, v{T+3}", f"v_add_f32 v{T}, v{T}, v{T+2}",
         f"v_cvt_pk_bf16_f32 v{T+1}, v{T}, v{T}", f"v_and_b32 v{CF}, 0xffff0000, v{T+1}", f"v_sub_f32 v{T}, v{T}, v{CF}", f"v_cvt_pk_bf16_f32 v{CF+1}, v{T}, v{T}"]
    if bias is not None: F.append(f"v_or_b32 v{CF}, v{CF}, v{bias}")
    a, b = (R(CF, 4), R(CF + 2, 4)) if u['trans'] else (R(CF + 2, 4), R(CF, 4))
    F.append(f"{MF} {R(u['acc'],16)}, {a}, {b}, {R(u['acc'],16)}")
    return F

def mark(name): return lambda s: s.marks.__setitem__(name, 1)
YA = [48, 64]; SA = [32, 96]
vB0, vB1 = "v5", "v24"
XW = ["v6", "v7", "v8"]; XRD = ["v11", "v12", "v13"]
LB = 128
def breg(t): return XA + 8 * t if t < 16 else LB + 8 * (t % 2)
def bnm(ch, c): return f"B{'ab'[ch]}{c}"
def bread(ring, ch, t):
    def f(s):
        nm = bnm(ch, t // 4)
        assert ring.log[nm][1] is not None, f"{nm} read before certified"
        sl = ring.slot[nm]
        if ring.bsl != sl:
            d = ((sl - ring.bsl) * SLOT) & 0xffffffff
            s.e(f"v_add_u32 {vB0}, {d:#x}, {vB0}\nv_add_u32 {vB1}, {d:#x}, {vB1}")
            ring.bsl = sl
        for ct, r in enumerate((vB0, vB1)):
            for k in range(2):
                s.e(f"ds_read_b64_tr_b16 {R(breg(t) + 4*ct + 2*k, 2)}, {r} offset:{(t%4)*2048 + k*1024}")
    return f
def pull(ring, ch, c): return [bread(ring, ch, 4 * c + k) for k in range(4)]
def p2_setup(ring):
    def chk(s):
        assert not any(x[0][0] == 'F' for x in ring.items) and not any(x[0][0][0] == 'F' for x in ring.q)
        ring.bsl = 0
    return [chk, f"v_bfe_u32 {vB0}, v0, 2, 2", f"v_lshrrev_b32 {vB1}, 5, v0", f"v_lshl_add_u32 {vB0}, {vB1}, 2, {vB0}", f"v_lshlrev_b32 {vB0}, 7, {vB0}",
     f"v_bfe_u32 {vB1}, v0, 3, 1", f"v_lshl_add_u32 {vB0}, {vB1}, 6, {vB0}", f"v_bfe_u32 {vB1}, v0, 4, 1", f"v_lshl_add_u32 {vB0}, {vB1}, 5, {vB0}",
     f"v_and_b32 {vB1}, 3, v0", f"v_lshl_add_u32 {vB0}, {vB1}, 3, {vB0}", blk(f"s_and_b32 s3, {sKQ}, 1\ns_lshl_b32 s3, s3, 13\nv_add_u32 {vB0}, s3, {vB0}"), f"v_xor_b32 {vB1}, 64, {vB0}"]

def xwrite(s, acc2, slots, own, ch):
    l1, l2 = label(), label()
    s.e("s_nop 7")
    s.e(f"s_bitcmp1_b32 {sKQ}, 0\ns_cbranch_scc1 {l1}")
    for kq in (2 * ch, 2 * ch + 1):
        if kq & 1: s.raw(f"{l1}:")
        s.raw("s_nop 1")
        for d in range(4):
            src = acc2[d >> 1] + 8 * (d & 1)
            if d == kq: continue
            idx = (kq - d - 1) % 4
            for h in range(2):
                r, off = ldsaddr(XW, slots[idx] * SLOT + d * 4096 + h * 1024)
                s.raw(f"ds_write_b128 {r}, {R(src+4*h,4)} offset:{off}")
        src = acc2[kq >> 1] + 8 * (kq & 1)
        for j in range(8): s.raw(f"v_mov_b32 v{own+j}, v{src+j}")
        if not kq & 1: s.raw(f"s_branch {l2}")
    s.raw(f"{l2}:")
    for _ in range(6): s.lg.append((set(), None))
def xread(slots, own, tmp):
    F = []
    for i in range(3):
        for h in range(2):
            r, off = ldsaddr(XRD, slots[i] * SLOT + h * 1024)
            F.append(f"ds_read_b128 {R(tmp+8*i+4*h,4)}, {r} offset:{off}")
    G = []
    for i in range(3):
        for j in range(8): G.append(f"v_add_f32 v{own+j}, v{own+j}, v{tmp+8*i+j}")
    return F, G
def fin_setup():
    return [blk(f"s_lshl_b32 {sUC}, {sRB}, 16\ns_lshl_b32 s4, {sRT2}, 15\ns_add_u32 {sUC}, {sUC}, s4\ns_lshl_b32 s4, {sCB}, 7\ns_add_u32 {sUC}, {sUC}, s4\ns_lshl_b32 s4, {sKQ}, 5\ns_add_u32 {sUC}, {sUC}, s4"),
            f"v_lshlrev_b32 v20, 8, {vP4}", "v_lshrrev_b32 v21, 5, v0", "v_lshl_add_u32 v20, v21, 4, v20",
            f"buffer_load_dwordx4 v[16:19], v20, {sX}, {sUC} offen",
            blk(f"s_lshl_b32 s4, {sRT2}, 11\nv_add_u32 v6, s4, {vA16}"), "v_add_u32 v7, 0x10000, v6", "v_add_u32 v8, 0x20000, v6",
            blk(f"s_lshl_b32 s4, {sKQ}, 12\nv_add_u32 v11, s4, v6\nv_add_u32 v12, s4, v7\nv_add_u32 v13, s4, v8")]

def aphase(s, ring, ch, events):
    groups = {0: (0xff, ['f1', 'f2'], -1), 16: (0x5f00, ['f3'], CFG['G16']), 28: (0xf0000, ['fo'], CFG['G28'])}
    pr = lambda c: [bnm(0, c), bnm(1, c)]
    bars = {16: (pr(4) + pr(5), []), 20: ([], pr(4)), 24: (pr(6) + pr(7), pr(5)), 30: (pr(8), pr(6))}
    pool = list(range(80, 128, 4)); areg = {}; issue = {}
    nxt = 0; AD = CFG['AD']
    for i in range(-1, 36):
        if i >= 0:
            pool.append(areg[i])
            if 2 <= i <= 7 or 12 <= i <= 15: pool += [XA + 8 * i, XA + 8 * i + 4]
        n = 0
        while nxt < 36 and nxt - (i + 1) < AD and n < (AD if i < 0 else 3):
            if nxt in groups and i < groups[nxt][2]: break
            ok = [r for r in pool if not (96 <= r < 128 and nxt > 27)]
            if not ok: break
            areg[nxt] = ok[0]; pool.remove(ok[0]); issue[nxt] = i; nxt += 1; n += 1
    posts = {}
    for t in range(36):
        at = issue[t]
        if t in groups:
            mask, req, _ = groups[t]
            def chk(s, mask=mask, req=req, t=t):
                for r in req: assert r in s.marks, f"flag {r} not emitted before poll {t} in {s.name}"
                poll_check(s, sWs, sFL2, mask)
                if t == 0: touchA(1, 0x5f00, vT)(s)
            if t == 28:
                posts.setdefault(CFG['TO'] - 4, []).append(lambda s: poll_issue(s, sWs, sFL2))
                posts.setdefault(CFG['TO'], []).append(touchA(2, 0xf0000, vT))
            if t: posts.setdefault(max(at - CFG['PL'], -1), []).append(lambda s: poll_issue(s, sWs, sFL2))
            posts.setdefault(at, []).append(chk)
        base, off = (sA2y, ORDER[t] * 1024) if t < 28 else (sA2s, (t - 28) * 1024)
        posts.setdefault(at, []).append(blk(f"s_add_u32 {sSoW}, {base}, {off & ~4095}\nbuffer_load_dwordx4 {R(areg[t],4)}, {vA16}, {sWs}, {sSoW} offen offset:{off & 4095} sc1"))
    OWNY = 112; OWNS = 120; XT = 192
    V = []
    for t in range(-1, 36):
        if t >= 0:
            for ct in range(2):
                acc = (YA if t < 28 else SA)[ct]
                cin = "0" if t in (0, 28) else R(acc, 16)
                s.e(f"{MF} {R(acc,16)}, {R(breg(t)+4*ct,4)}, {R(areg[t],4)}, {cin}")
        if t + 1 in bars: bar(s, ring, f"a{t+1}", bars[t + 1][0], bars[t + 1][1], lg0=True)
        if 16 <= t + 1 < 36: bread(ring, ch, t + 1)(s)
        ring.pump(s, 2)
        for e in events.get(t, []): drain(s, [e])
        for e in posts.get(t, []): e(s)
        if t == 27:
            stamp('yend')(s)
            ys = [ring.free.pop(0) for _ in range(3)]
            xwrite(s, YA, ys, OWNY, ch)
            drain(s, ["v_permlane32_swap_b32 v16, v18", "v_permlane32_swap_b32 v17, v19"])
            for j in range(4): drain(s, [f"v_lshlrev_b32 v{XT+24+2*j}, 16, v{16+j}", f"v_and_b32 v{XT+25+2*j}, 0xffff0000, v{16+j}"])
        if t == 29:
            rdl, V = xread(ys, OWNY, XT)
            drain(s, rdl)
            for j in range(8): V.append(f"v_mul_f32 v{XT+j}, 0xbfb8aa3b, v{OWNY+j}")
            for j in range(8): V.append(f"v_exp_f32 v{XT+j}, v{XT+j}")
            for j in range(8): V.append(f"v_add_f32 v{XT+j}, 1.0, v{XT+j}")
            for j in range(8): V.append(f"v_rcp_f32 v{XT+j}, v{XT+j}")
            for j in range(8): V.append(f"v_mul_f32 v{OWNY+j}, v{OWNY+j}, v{XT+j}")
        if 30 <= t < 35:
            drain(s, V[:CFG['TV']]); V = V[CFG['TV']:]
    stamp('send')(s)
    ss = [ring.free.pop(0) for _ in range(2)] + [9]
    xwrite(s, SA, ss, OWNS, ch)
    drain(s, V)
    s.wait(lg=0); s.e("s_barrier")
    rdl, V = xread(ss, OWNS, XT)
    drain(s, rdl + V)
    for j in range(8): s.e(f"v_fma_f32 v{OWNS+j}, v{OWNS+j}, v{OWNY+j}, v{XT+24+j}")
    for j in range(4): s.e(f"v_cvt_pk_bf16_f32 v{16+j}, v{OWNS+2*j}, v{OWNS+2*j+1}")
    s.e("v_permlane32_swap_b32 v16, v18\nv_permlane32_swap_b32 v17, v19")
    s.e(f"buffer_store_dwordx4 v[16:19], v20, {sOut}, {sUC} offen")
    stamp('st')(s)
    if PROFILE:
        s.raw("s_waitcnt vmcnt(0) lgkmcnt(0)")
        stamp("end")(s)
        s.raw("s_waitcnt lgkmcnt(0)")
        n = len(s.snames)
        for i in (n - 2, n - 1): s.raw(f"v_writelane_b32 v29, s{STAMP0+2*(i%4)}, {i}")
        s.e(f"v_subrev_u32 v29, s96, v29\nv_lshlrev_b32 v16, 2, v0")
        s.e(f"s_lshl_b32 s3, {sBID}, 11\ns_lshl_b32 s4, {sW}, 8\ns_add_u32 s3, s3, s4\ns_add_u32 s3, s3, {PROF_OFF}")
        s.e(f"buffer_store_dword v29, v16, {sWs}, s3 offen")
        open(f"snames_{s.name}.txt", "w").write(" ".join(s.snames))
    s.e("s_endpgm")
    s.slots = (dict(ring.slot), ys, ss)
    print("   ring", s.name, " ".join(f"{k}:{v[0]}>{v[1]}" for k, v in ring.log.items()))

SCR_DUM = SCR + 15360
def touchB(s):
    if not CFG['TB']: return
    s.e(f"s_lshl_b32 s4, s87, 3\ns_add_u32 s4, s4, {sW}\ns_mul_i32 s5, s4, 7168\ns_lshl_b32 s4, s4, 11\ns_mov_b32 m0, {SCR_DUM}")
    s.e(f"v_min_u32 {vT}, 55, v0\nv_lshlrev_b32 {vT}, 7, {vT}")
    s.e(f"buffer_load_dword {vT}, {sW2}, s5 offen lds")
    s.e(f"v_min_u32 {vT}, 15, v0\nv_lshlrev_b32 {vT}, 7, {vT}")
    s.e(f"buffer_load_dword {vT}, {sWo}, s4 offen lds")
def touchA(grp, mask, T):
    def f(s):
        if not CFG['TA']: return
        lab = label()
        if grp == 0: s.e(f"v_min_u32 {T}, 15, v0\nv_lshrrev_b32 v21, 3, {T}\nv_lshl_add_u32 {T}, v21, 2, {T}\nv_add_u32 {T}, 4, {T}")
        elif grp == 1: s.e(f"v_min_u32 {T}, 11, v0\nv_lshrrev_b32 v21, 2, {T}\nv_lshl_add_u32 {T}, v21, 3, {T}")
        else: s.e(f"v_min_u32 {T}, 7, v0")
        s.e(f"v_lshlrev_b32 {T}, 10, {T}\ns_lshl_b32 s4, {sCB}, 7\ns_add_u32 s4, s4, {sA2y if grp < 2 else sA2s}\ns_mov_b32 m0, {SCR_DUM}")
        s.e(f"v_cmp_ne_u32 vcc, 0, {vPoll}\ns_andn2_b32 {sT0}, {mask:#x}, vcc_lo\ns_cbranch_scc1 {lab}")
        s.raw(f"buffer_load_dword {T}, {sWs}, s4 offen sc1 lds")
        s.e(f"{lab}:")
    return f

def p0_items(a, b):
    it = []
    for c in range(4): it += x_items(c) + [a[c]]
    return it + b
def packin(acc): return [f"v_cvt_pk_bf16_f32 v{acc+j}, v{acc+2*j}, v{acc+2*j+1}" for j in range(8)]
def N(n, lo, hi): return [f"{n}{c}" for c in range(lo, hi)]
initchk = lambda s: poll_check(s, sDbg, "0", 0xffff)
pollA = lambda s: poll_issue(s, sWs, sFL2)

def stream_A(s0, ch):
    s = s0.fork(f"A{ch}"); s.e(f"L_typeA{ch}:")
    bl = unit_bases(s, 'A')
    items = p0_items(w_items("K", sWq, vDq, sUA, 3072), w_items("V", sWq, vDq, sUB, 3072)) + w_items("H", sW1, vD1, sUC, 3584) + b_items(0)
    ring = Ring(items, range(9), ch); ring.hold = ('XL3', 'XH3'); ring.upto0 = "V3"
    start(s, ring, bl)
    s.e(f"s_lshl_b32 {sSCRW}, {sW}, 12\ns_add_u32 {sSCRW}, {sSCRW}, {2*SLOT}")
    s.marks.update(f1=1, f2=1, fo=1)
    uK = dict(name="K", acc=ACC_A, trans=True, kind='w', csi=0)
    uV = dict(name="V", acc=ACC_B, trans=False, kind='w', csi=1)
    uH = dict(name="H", acc=ACC_C, trans=True, kind='w', csi=0)
    F = [('wait', 'c1')] + stats_fin(PT) + correct(uK, ch, PT + 8) + phi_frags()
    F += [f"v_lshlrev_b32 v25, 4, {vP4}", "v_lshrrev_b32 v26, 5, v0", "v_lshl_add_u32 v25, v26, 5, v25", f"v_add_u32 v25, {sSCRW}, v25", initchk]
    F += packin(ACC_A)
    for h in range(2):
        F += [f"{MF} {R(PT,16)}, {R(PHI+4*h,4)}, {R(ACC_A+4*h,4)}, 0", ('gap', 16)]
        F += softmax(PT, ACC_A + 8, "v26", vT)
        F += [f"ds_write_b128 v25, {R(ACC_A+8,4)} offset:{2048*h}", f"ds_write_b128 v25, {R(ACC_A+12,4)} offset:{2048*h+16}"]
    F += [touchB, ('wait', 'c2')] + correct(uV, ch, PT + 12)
    F += ["v_lshrrev_b32 v26, 5, v0", "v_lshlrev_b32 v26, 4, v26", blk(f"s_lshl_b32 s4, {sRT}, 7\ns_add_u32 s4, s4, {SCR_RS}\nv_add_u32 {vT}, s4, v26")]
    for q in range(4): F.append(f"ds_read_b128 {R(PT+4*q,4)}, {vT} offset:{32*q}")
    F += ["v_bfe_u32 v25, v0, 2, 2", "v_lshlrev_b32 v25, 6, v25", "v_lshl_add_u32 v25, v26, 4, v25", f"v_bfe_u32 {vT}, v0, 4, 1",
          f"v_lshl_add_u32 v25, {vT}, 5, v25", f"v_cmp_eq_u32 s[94:95], 1, {vT}", f"v_and_b32 {vT}, 3, v0", f"v_lshl_add_u32 v25, {vT}, 3, v25",
          f"v_add_u32 v25, {sSCRW}, v25", f"v_mov_b32 {vT}, {sC11}"]
    for t in range(2):
        for rd in range(2): F.append(f"ds_read_b64_tr_b16 {R(PHI+4*t+2*rd,2)}, v25 offset:{2048 + t*1024 + rd*512}")
    for r in range(16): F.append(f"v_mul_f32 v{ACC_B+r}, v{ACC_B+r}, v{PT+r}")
    F += packin(ACC_B)
    for t in range(2):
        for rd in range(2): F.append(f"ds_read_b64_tr_b16 {R(ACC_B+8+4*t+2*rd,2)}, v25 offset:{t*1024 + rd*512}")
    for j in range(8): F.append(f"v_cndmask_b32 v{ACC_A+8+j}, {vT}, v{ACC_B+j}, s[94:95]")
    for j in range(8): F.append(f"v_cndmask_b32 v{ACC_A+j}, v{ACC_B+j}, {vT}, s[94:95]")
    F += [f"{MF} {R(PT,16)}, {R(ACC_A,4)}, {R(ACC_B+8,4)}, 0", f"{MF} {R(PT,16)}, {R(ACC_A+4,4)}, {R(ACC_B+12,4)}, {R(PT,16)}",
          f"{MF} {R(ACC_B,16)}, {R(ACC_A+8,4)}, {R(PHI,4)}, 0", f"{MF} {R(ACC_B,16)}, {R(ACC_A+12,4)}, {R(PHI+4,4)}, {R(ACC_B,16)}"]
    F += [f"v_add_u32 v25, {sSCRW}, {vA16}", blk(f"s_lshl_b32 s4, {sW}, 9\ns_add_u32 s4, s4, {SCR_Z}\nv_lshlrev_b32 v26, 2, v0\nv_add_u32 v26, s4, v26")]
    F += [f"ds_write_b128 v25, {R(PT,4)}", f"ds_write_b128 v25, {R(PT+4,4)} offset:1024", f"ds_write_b32 v26, v{PT+8}",
          f"ds_write_b128 v25, {R(ACC_B+8,4)} offset:2048", f"ds_write_b128 v25, {R(ACC_B+12,4)} offset:3072", f"ds_write_b32 v26, v{ACC_B} offset:256"]
    F += [blk(f"s_lshl_b32 s4, {sRT}, 10\ns_add_u32 s4, s4, {2*SLOT + ch*SLOT}\nv_add_u32 v25, s4, {vA16}"),
          blk(f"s_lshr_b32 s4, {sRT}, 1\ns_lshl_b32 s4, s4, 8\ns_add_u32 s4, s4, {SCR_Z + ch*2048}\nv_add_u32 v26, s4, {vP4}"), mark('kvw')]
    ER = [f"ds_read_b128 {R(PT+4*r,4)}, v25 offset:{r*4096}" for r in range(4)] + [f"ds_read_b32 v{ACC_A+r}, v26 offset:{r*512}" for r in range(4)]
    ER += ["v_lshrrev_b32 v25, 5, v0", f"v_lshl_add_u32 v25, v25, 9, {vP4}", blk(f"s_lshl_b32 s5, {sRT2}, 10\nv_add_u32 v25, s5, v25"),
           f"v_lshrrev_b32 {vT}, 4, v0", f"v_cmp_eq_u32 s[94:95], {sRT2}, {vT}", f"v_mov_b32 {vT}, {BIG}",
           blk(f"s_and_b32 s5, {sG}, 1\ns_mul_i32 s5, s5, {10*1024}\ns_add_u32 s5, s5, {ch*2048}\ns_add_u32 {sUD}, {sKS}, s5\ns_lshl_b32 s4, {sI}, 2\ns_add_u32 {sKVF}, {sKVF}, s4"),
           f"v_cndmask_b32 v26, {vT}, {vP4}, s[94:95]"]
    for j in range(4): ER += [f"v_add_f32 v{PT+j}, v{PT+j}, v{PT+4+j}", f"v_add_f32 v{PT+8+j}, v{PT+8+j}, v{PT+12+j}"]
    for j in range(4): ER.append(f"v_add_f32 v{PT+j}, v{PT+j}, v{PT+8+j}")
    ER += [f"v_add_f32 v{ACC_A}, v{ACC_A}, v{ACC_A+1}", f"v_add_f32 v{ACC_A+2}, v{ACC_A+2}, v{ACC_A+3}", f"v_add_f32 v{ACC_A}, v{ACC_A}, v{ACC_A+2}"]
    for j in range(4): ER.append((f"buffer_atomic_add_f32 v{PT+j}, v25, {sWs}, {sKVs} offen offset:{j*128}", "kv"))
    ER += [(f"buffer_atomic_add_f32 v{ACC_A}, v26, {sWs}, {sKVs} offen offset:2048", "kv"), stamp('kvat')]
    EH = correct(uH, ch, PHI, BI0) + fin_setup() + mish(ACC_C, PT + 8, sUD, "actA")
    fkv = flag_store("kv", sKVF, 0, 'fkv'); f3 = flag_store("actA", sFL, 2 * 16, 'f3')
    pr = lambda c: [bnm(0, c), bnm(1, c)]
    m0 = pass0(s, ring, uK, ch, bl, "V3", N("V", 0, 2))
    mV = MSeg(ring, uV, ch, {4: [B(ring, "c1", N("V", 2, 4), ["K3"])], 20: [B(ring, "d1", N("H", 0, 2), N("V", 0, 2))]}, dma=CFG['ST'])
    F += [('wait', 'd2')] + ER + [mark('kvd'), ('gap', CFG['KVG']), fkv]
    def d2(s):
        print("   A forced before d2:", until(s, ring, F, 'kvw'))
        bar(s, ring, "d2", pr(0), N("H", 0, 2))
    mH = MSeg(ring, uH, ch, {4: [B(ring, "c2", N("H", 2, 4), N("V", 2, 4))], 20: [d2]},
              {22: [lambda s: drain(s, p2_setup(ring))], 24: pull(ring, ch, 0)[:2], 26: pull(ring, ch, 0)[2:]}, dma=CFG['ST'])
    m0.run(s, mV); mV.run(s, mH, F, CFG['KB']); mH.run(s, None, F, lambda t: CFG['VB'])
    print("   A forced kvd:", until(s, ring, F, 'kvd')); ring.pump(s, 99)
    bar(s, ring, "e1", pr(1), N("H", 2, 4) + pr(0), lg0=True, extra=[2, 3])
    vseg(s, ring, EH[:12] + pull(ring, ch, 1) + EH[12:CFG['EH0']] + F, flush=False)
    bar(s, ring, "e2", [], pr(1), lg0=True)
    vseg(s, ring, [pollA] + EH[CFG['EH0']:] + [touchA(0, 0xff, vT)])
    bar(s, ring, "e3", pr(2) + pr(3))
    vseg(s, ring, pull(ring, ch, 2) + pull(ring, ch, 3) + [pollA, f3])
    bar(s, ring, "e4", [], pr(2) + pr(3), lg0=True); ring.pump(s, 99)
    aphase(s, ring, ch, {})
    return s

def stream_B(s0, ch):
    s = s0.fork(f"B{ch}"); s.e(f"L_typeB{ch}:")
    bl = unit_bases(s, 'B')
    H5 = [(f"F{c}", sW1, vD5, sUD, c * 256 * 3584, c * 256 * 3584 + 16 * 3584, 128 * 3584) for c in range(2)]
    items = p0_items(w_items("U", sW1, vD1, sUA, 3584), w_items("Y", sW1, vD1, sUB, 3584)) + H5 + w_items("Q", sWq, vDq, sUC, 3072) + b_items(1)
    ring = Ring(items, range(9), ch); ring.upto0 = "Y3"
    start(s, ring, bl)
    s.e(f"s_and_b32 s5, {sG}, 1\ns_cmp_eq_u32 s5, 0\ns_cselect_b32 s5, 4, 2\ns_cselect_b32 s4, {12*1024}, 0\ns_lshl_b32 s5, s5, 10\n"
        f"s_add_u32 {sSCRW}, {sKS}, s4\ns_add_u32 s5, s5, {ch*2048}\ns_add_u32 {sKS}, {sKS}, s5")
    uU = dict(name="U", acc=ACC_A, trans=True, kind='w', csi=0)
    uY = dict(name="Y", acc=ACC_B, trans=True, kind='w', csi=1)
    uF = dict(name="F", acc=ACC_C, trans=True, kind='h5', csi=0)
    uQ = dict(name="Q", acc=ACC_A, trans=True, kind='w', csi=1)
    EU = stats_fin(PT) + correct(uU, ch, PT + 8, BI0) + [initchk, ('gap', 10)] + mish(ACC_A, PT, sKS, "act1") + [f"s_add_u32 {sKS}, {sKS}, 4096"]
    EY = correct(uY, ch, PT + 8, BI1) + [mark('b1dead'), ('gap', 16)] + mish(ACC_B, PT, sKS, "act2")
    EF = correct(uF, ch, PT + 8, BI2) + [('gap', 16)] + mish(ACC_C, PT, sSCRW, "act5")
    EQ = correct(uQ, ch, PT + 12) + phi_frags() + pack16(ACC_A, PK)
    EQ += [f"{MF} {R(PT,16)}, {R(PHI,4)}, {R(PK,4)}, 0", f"{MF} {R(ACC_B,16)}, {R(PHI+4,4)}, {R(PK+4,4)}, 0"] + fin_setup()
    EQ += softmax(PT, ACC_A, "v26", vT) + softmax(ACC_B, ACC_A + 8, "v26", vT)
    f1 = flag_store("act1", sFL, 0, 'f1'); f2 = flag_store("act2", sFL, 16, 'f2'); f3 = flag_store("act5", sFL, 3 * 16, 'f3')
    pr = lambda c: [bnm(0, c), bnm(1, c)]
    FG = ('gap', CFG['FG'])
    F = [('wait', 'c1')] + EU + [mark('m1'), touchB, ('wait', 'c2')] + split(EY, 0.6, f1) + [mark('m2')]
    if ch == 0: F += [('wait', 'c3')] + split(EF, 0.6, f2) + [mark('m3')]
    else: F += [FG, f2, mark('m3'), mark('f3')]
    m0 = pass0(s, ring, uU, ch, bl, "Y3", N("Y", 0, 2))
    mY = MSeg(ring, uY, ch, {4: [B(ring, "c1", N("Y", 2, 4), ["U3"])], 20: [B(ring, "d1", ["F0", "F1"], N("Y", 0, 2))]}, dma=CFG['ST'])
    c2 = B(ring, "c2", N("Q", 0, 2), N("Y", 2, 4), owner=1)
    mQ = MSeg(ring, uQ, ch, {4: [B(ring, "c3", N("Q", 2, 4) + pr(0), ["F0", "F1"])], 20: [B(ring, "d3", pr(1), N("Q", 0, 2) + pr(0))]},
              {7: [lambda s: (until(s, ring, F, 'b1dead'), drain(s, p2_setup(ring)))], 8: pull(ring, ch, 0)[:2], 10: pull(ring, ch, 0)[2:], 18: pull(ring, ch, 1)[:2], 20: pull(ring, ch, 1)[2:]}, dma=CFG['ST'])
    m0.run(s, mY)
    if ch == 0:
        mF = MSeg(ring, uF, ch, {4: [c2]}, dma=CFG['ST'] // 2)
        mY.run(s, mF, F, CFG['P1B']); mF.run(s, mQ, F, CFG['FB'])
    else:
        mY.run(s, None, F, CFG['P1B']); c2(s); vrun(s, ring, F, CFG['IB']); mQ.pre(s)
    print("   B forced m1:", until(s, ring, F, 'm1'))
    mQ.run(s, None, F, CFG['QB'][ch])
    KS, OD, OD2, OF, OP = WB, PT, ACC_B, PHI, PK
    def kvfetch(s):
        poll_check(s, sWs, sKVF, 0xffff, vPoll2)
        s.e(f"s_lshl_b32 s5, {sRT2}, 10\ns_add_u32 s5, s5, {sKVs}")
        s.e(f"buffer_load_dwordx4 {R(KS,4)}, {vA16}, {sWs}, s5 offen sc1")
        s.e(f"v_and_b32 v21, 3, v0\nv_lshlrev_b32 v21, 4, v21\ns_lshl_b32 s5, {sRT2}, 6\ns_add_u32 s5, s5, {sKVs}")
        s.e(f"buffer_load_dwordx4 {R(KS+4,4)}, v21, {sWs}, s5 offen offset:2048 sc1")
    IM = [f"v_cvt_pk_bf16_f32 v{KS}, v{KS}, v{KS+1}", f"v_cvt_pk_bf16_f32 v{KS+1}, v{KS+2}, v{KS+3}",
          f"v_cvt_pk_bf16_f32 v{KS+4}, v{KS+4}, v{KS+5}", f"v_cvt_pk_bf16_f32 v{KS+5}, v{KS+6}, v{KS+7}",
          blk(f"s_mul_i32 s5, {sKQ}, 1088\ns_add_u32 s5, s5, {SCR_KV}\ns_lshl_b32 s4, {sRT2}, 9\ns_add_u32 s4, s4, s5\nv_lshlrev_b32 v25, 3, v0\nv_add_u32 v25, s4, v25\n"
              f"ds_write_b64 v25, {R(KS,2)}\ns_lshl_b32 s4, {sRT2}, 5\ns_add_u32 s4, s4, s5\nv_lshrrev_b32 v21, 1, v21\nv_add_u32 v21, s4, v21\nds_write_b64 v21, {R(KS+4,2)} offset:1024"),
          f"v_min_u32 v25, 64, {vP4}", "v_lshlrev_b32 v25, 4, v25", "v_lshrrev_b32 v26, 5, v0", "v_lshl_add_u32 v25, v26, 5, v25",
          blk(f"v_add_u32 v25, {SCR_KV + ch*2176}, v25\ns_lshl_b32 s5, {sG}, 12\ns_add_u32 s5, s5, {sAF}\ns_add_u32 {sSCRW}, s5, {112*1024 + ch*2048}")]
    O = [f"ds_read_b128 {R(OF,4)}, v25", f"ds_read_b128 {R(OF+4,4)}, v25 offset:16", f"ds_read_b128 {R(OP,4)}, v25 offset:1088", f"ds_read_b128 {R(OP+4,4)}, v25 offset:1104"]
    O += [f"{MF} {R(OD,16)}, {R(OF,4)}, {R(ACC_A,4)}, 0", f"{MF} {R(OD,16)}, {R(OF+4,4)}, {R(ACC_A+4,4)}, {R(OD,16)}",
          f"{MF} {R(OD2,16)}, {R(OP,4)}, {R(ACC_A+8,4)}, 0", f"{MF} {R(OD2,16)}, {R(OP+4,4)}, {R(ACC_A+12,4)}, {R(OD2,16)}"]
    for h, D in enumerate((OD, OD2)):
        O += [f"v_add_f32 v26, 0x358637bd, v{D+8}", "v_rcp_f32 v26, v26"]
        for j in range(8): O.append(f"v_mul_f32 v{D+j}, v{D+j}, v26")
        for j in range(4): O.append(f"v_cvt_pk_bf16_f32 v{ACC_A+4*h+j}, v{D+2*j}, v{D+2*j+1}")
        O.append((f"buffer_store_dwordx4 {R(ACC_A+4*h,4)}, {vA16}, {sWs}, {sSCRW} offen offset:{h*1024} sc1", "o"))
    O.append(stamp('ost'))
    bar(s, ring, "e1", pr(2), N("Q", 2, 4) + pr(1), lg0=True, owner=1)
    def ins(L, back, item): return L[:len(L) - back] + [item] + L[len(L) - back:]
    F2 = pull(ring, ch, 2) + F + EQ
    if ch == 0: F2 = ins(F2, 150, f3)
    F2 = ins(F2, CFG['KP'], lambda s: poll_issue(s, sWs, sKVF, vPoll2))
    F2 = ins(F2, CFG['KP'] + 1, pollA)
    F2 = ins(F2, CFG['KF'], touchA(0, 0xff, "v25"))
    F2 = ins(F2, CFG['KF'], kvfetch)
    F2 += IM + [pollA]
    vrun(s, ring, F2, CFG['E1'][ch], 6)
    bar(s, ring, "e2", pr(3), pr(2), lg0=True, owner=1)
    F2 = pull(ring, ch, 3) + F2
    vrun(s, ring, F2, CFG['E2'][ch], 6)
    bar(s, ring, "e3", [], pr(3), lg0=True, owner=1)
    vrun(s, ring, F2, 999, 6)
    assert not F2
    bar(s, ring, "e4")
    drain(s, O)
    ev = {CFG['OW']: [flag_store("o", sFL, 4 * 16, 'fo')]}
    aphase(s, ring, ch, ev)
    return s

def build(path, listform=True):
    s0 = Stream("P")
    if PROFILE: s0.e("s_memtime s[96:97]")
    prologue(s0)
    s0.e(f"s_lshl_b32 s5, {sTY}, 1\ns_add_u32 s5, s5, {sCH}\ns_cmp_eq_u32 s5, 0\ns_cbranch_scc1 L_typeA0\ns_cmp_eq_u32 s5, 1\ns_cbranch_scc1 L_typeA1\ns_cmp_eq_u32 s5, 3\ns_cbranch_scc1 L_typeB1")
    B0 = stream_B(s0, 0); B1 = stream_B(s0, 1); A0 = stream_A(s0, 0); A1 = stream_A(s0, 1)
    assert B0.nbar == B1.nbar and A0.nbar == A1.nbar
    assert B0.slots == B1.slots and A0.slots == A1.slots
    hdr = open("recurrent_scan__linear_kernel_hedgehog__dense_activation_mish__prompt.s.ref").read().split("; Override")[0]
    T = [hdr.rstrip(), f"; @launch {'kernel=' + KNAME + ' ' if listform else ''}grid=(256,1,1) block=(512,1,1) lds=163840",
         '.amdgcn_target "amdgcn-amd-amdhsa--gfx950"', ".text", f".globl {KNAME}", ".p2align 8", f".type {KNAME},@function", f"{KNAME}:"]
    S = [s0, B0, B1, A0, A1]
    for st in S:
        T.append(f"; ---- stream {st.name}  nops={st.stats['nop']} waits={st.stats['wait']} barriers={st.nbar}")
        T.append(st.text())
    for st in S: T += st.ool
    T.append("L_end:\n  s_endpgm")
    T.append(".fill 6144, 4, 0xbf800000")
    T.append(f'''.section .rodata,"a"
.p2align 6
.amdhsa_kernel {KNAME}
  .amdhsa_next_free_vgpr 256
  .amdhsa_next_free_sgpr 102
  .amdhsa_accum_offset 256
  .amdhsa_group_segment_fixed_size 0
  .amdhsa_kernarg_size 88
  .amdhsa_user_sgpr_count 2
  .amdhsa_user_sgpr_kernarg_segment_ptr 1
  .amdhsa_system_sgpr_workgroup_id_x 1
.end_amdhsa_kernel''')
    open(path, "w").write("\n".join(T) + "\n")
    for st in S: print(st.name, "instrs", len(st.out), st.stats, "barriers", st.nbar)

if __name__ == "__main__":
    for a in sys.argv[2:]:
        if a == "prof": PROFILE = True
        elif '=' in a:
            k, v = a.split('='); CFG[k] = eval(v)
    build(sys.argv[1], listform=("final" not in sys.argv))
```

```python
import sys
sys.path.insert(0, 'gen')
from ab import *

KNAME = "recurrent_scan__linear_kernel_hedgehog__dense_activation_mish__prompt_kernel"
PROFILE = False
SLOT = 16384
SCR = 9 * SLOT
SCR_PHI = SCR
SCR_RS = SCR + 2048
SCR_ST = SCR + 2560
SCR_CS = SCR + 6656
SCR_Z = SCR + 10752
SCR_KV = SCR + 10752
Z_OFF = 0x900000
KV_OFF = Z_OFF
KVFLAG_OFF = Z_OFF + 0x11000
ACTFLAG_OFF = Z_OFF + 0x14000
PROF_OFF = 0xA00000
BIG = 0x40000000
CFG = dict(AD=10, PL=6, S0=6, S1=4, PRIO=0, VD=10, KP=150, KF=60, OW=0, G16=4, G28=16, TV=12, TB=1, TA=1, TO=11, RATE=38, BURST=24576, ST=90,
    CRED=6, AGE=14, P1B=5, FB=5, QB=[6, 3], IB=200, KB=6, VB=15, KVG=60, EH0=60, FG=60, E1=[120, 100], E2=[100, 80])

sX, sWq, sW1, sW2, sWo, sPhi, sB1, sOut, sDbg, sWs = [f"s[{8+4*i}:{11+4*i}]" for i in range(10)]
sW, sRT, sCH, sI, sG, sTY, sRB, sCB, sKQ, sRT2 = [f"s{48+i}" for i in range(10)]
sT0 = "s3"
sC10, sC01, sC11 = "s58", "s59", "s60"
sM0W = "s61"; sSoW = "s62"
sUA, sUB, sUC, sUD = "s63", "s6", "s7", "s2"
sAF, sFL, sAF2, sFL2, sB2, sBo, sKVs, sKVF, sSCRW, sCNT, sKS, sBID = [f"s{64+i}" for i in range(12)]
sA2y, sA2s, sOo = "s0", "s1", "s5"
STAMP0 = 76

vA16 = "v1"; vDq = "v2"; vD1 = "v3"; vDB = "v4"; vD5 = "v5"
VW = 6
vRS, vRSL, vM2 = "v14", "v15", "v22"
CF = 16
BI0, BI1, BI2 = 23, 24, 25
vPoll = "v27"; vFO = "v28"; vOne = "v10"; vP4 = "v30"; vT = "v31"; vPoll2 = "v9"
ACC_A, ACC_B, ACC_C = 32, 48, 64
WB = 80; PT = 96; PHI = 112; PK = 120; XA = 128
XR = 64; XD = 72; HR = 112; STA = 112; CSB = 116; ASEL = 120; CSA = 124
sXb = "s86"

def R(b, n): return f"v[{b}:{b+n-1}]"
def ldsaddr(regs, byte): return regs[byte >> 16], byte & 0xffff
_nl = [0]
def label():
    _nl[0] += 1; return f"L{_nl[0]}"
def stamp(name):
    def f(s):
        if not PROFILE: return
        if not hasattr(s, 'snames'): s.snames = []
        idx = len(s.snames)
        if idx >= 63: return
        s.snames.append(str(name))
        s.e(f"s_memtime s[{STAMP0+2*(idx%4)}:{STAMP0+1+2*(idx%4)}]")
        if idx >= 2: s.raw(f"v_writelane_b32 v29, s{STAMP0+2*((idx-2)%4)}, {idx-2}")
    return f
def srd(s, dst, lo, hi, size):
    b = int(dst[2:dst.index(':')])
    s.e(f"s_mov_b32 s{b}, {lo}\ns_and_b32 s{b+1}, {hi}, 0xffff\ns_mov_b32 s{b+2}, {size}\ns_mov_b32 s{b+3}, 0x20000")
def poll_issue(s, srd_, soff, vp=vPoll):
    s.e(f"buffer_load_dword {vp}, {vP4}, {srd_}, {soff} offen sc1")
def poll_check(s, srd_, soff, mask, vp=vPoll):
    l1, l2, l3 = label(), label(), label()
    stamp(f"[p{mask:x}")(s)
    s.e(f"v_cmp_ne_u32 vcc, 0, {vp}\ns_andn2_b32 {sT0}, {mask:#x}, vcc_lo\ns_cbranch_scc1 {l1}\n{l2}:")
    stamp(f"p]")(s)
    s.ool.append(f"""{l1}:
  s_mov_b32 {sCNT}, 0x20000
{l3}:
  s_sleep 1
  buffer_load_dword {vp}, {vP4}, {srd_}, {soff} offen sc1
  s_waitcnt vmcnt(0)
  v_cmp_ne_u32 vcc, 0, {vp}
  s_nop 1
  s_andn2_b32 {sT0}, {mask:#x}, vcc_lo
  s_cbranch_scc0 {l2}
  s_sub_u32 {sCNT}, {sCNT}, 1
  s_cmp_lg_u32 {sCNT}, 0
  s_cbranch_scc1 {l3}
  s_branch {l2}""")
def flag_store(tagwait, soff, imm, mark):
    def f(s):
        stamp("(" + mark)(s)
        s.wait_tag(tagwait)
        stamp(mark + ")")(s)
        s.e(f"buffer_store_dword {vOne}, {vFO}, {sWs}, {soff} offen offset:{imm} sc1")
        s.marks[mark] = 1
    return f
def blk(text): return lambda s: s.e(text)

class Ring:
    hold = ()
    def __init__(self, items, free, ch):
        self.items = list(items); self.free = list(free); self.slot = {}; self.q = []; self.log = {}; self.ch = ch
        self.order = {it[0]: k for k, it in enumerate(items)}; self.xres = True
    def release(self, name):
        if name not in self.hold: self.free.append(self.slot[name])
    def assign(self, s, owner='all', upto=None, maxn=99):
        k = 0
        while k < len(self.items) and maxn > 0:
            it = self.items[k]; nm = it[0]
            if upto is not None and self.order[nm] > self.order[upto]: break
            if nm[0] == 'X':
                want = 2 * (int(nm[2]) & 1) + (nm[1] == 'H')
                ok = [x for x in self.free if x == want]
                if not ok: k += 1; continue
            elif nm[0] in 'BF': ok = [x for x in self.free if not (self.xres and x < 4)]
            else: ok = [x for x in self.free if x != 0 and not (self.xres and x < 4)]
            if not ok:
                if nm[0] != 'B': k += 1; continue
                break
            if nm[0] in 'BF' and 0 in ok: ok = [0]
            self.items.pop(k); sl = ok[0]; self.free.remove(sl); self.slot[nm] = sl; maxn -= 1
            self.log[nm] = [s.nbar, None, owner]
            if owner == 'all': self.q += [(it, sl, h, 0) for h in range(2)]
            elif owner == self.ch: self.q += [(it, sl, h, o) for o in range(2) for h in range(2)]
            if nm == 'XH3': self.xres = False
        self.q.sort(key=lambda e: self.order[e[0][0]])
    def pump(self, s, n=1):
        while n > 0 and self.q:
            (name, srd_, voff, sbase, o0, o1, dl), sl, h, other = self.q.pop(0)
            sg = (1 if self.ch == 0 else -1) * other
            vo = voff[h] if isinstance(voff, tuple) else voff
            s.e(f"s_add_u32 m0, {sM0W}, {(sl*SLOT + h*1024 + sg*8192) & 0xffffffff:#x}")
            s.e(f"s_add_u32 {sSoW}, {sbase}, {((o0, o1)[h] + sg*dl) & 0xffffffff:#x}")
            s.e(f"buffer_load_dwordx4 {vo}, {srd_}, {sSoW} offen lds", tag=name)
            n -= 1
    cred = 0
    def pace(self, s, cycles):
        self.cred = min(self.cred + cycles * CFG['RATE'], CFG['BURST'])
        while self.q:
            e = self.q[0]
            cost = (8192 if self.log[e[0][0]][2] == 'all' else 4096) * (2 if e[0][0][0] == 'F' else 1)
            if self.cred < cost: break
            self.cred -= cost; self.pump(s, 1)
    def need(self, s, name):
        assert name in self.slot, f"{name} has no slot yet"
        while any(e[0][0] == name for e in self.q):
            print("  warning: forced DMA issue for", name, "in", s.name)
            self.pump(s)
        if self.log[name][1] is None: self.log[name][1] = s.nbar
        s.wait_tag(name)
def x_items(q):
    return [(f"XL{q}", sX, (f"v{XD}", f"v{XD+1}"), sXb, q * 256, q * 256, 0), (f"XH{q}", sX, (f"v{XD}", f"v{XD+1}"), sXb, 65536 + q * 256, 65536 + q * 256, 0)]
def w_items(name, srd_, voff, sbase, stride):
    return [(f"{name}{c}", srd_, voff, sbase, c * 128 * stride, c * 128 * stride + 8 * stride, 64 * stride) for c in range(4)]
ORDER = [4, 5, 6, 7, 16, 17, 18, 19, 8, 9, 10, 11, 20, 21, 22, 23, 0, 1, 2, 3, 24, 25, 26, 27, 12, 13, 14, 15]
def b_item(hf, c):
    nm = f"B{'ab'[hf]}{c}"
    if c < 7:
        o = hf * 896 * 1024 + ORDER[4 * c] * 16384
        return (nm, sW2, vDB, sB2, o, o + 8192, 448 * 1024)
    o = hf * 256 * 1024 + (c - 7) * 65536
    return (nm, sWo, vDB, sBo, o, o + 8192, 128 * 1024)
def b_items(first):
    it = []
    for c in range(9): it += [b_item(0, c), b_item(1, c)]
    return it

def mish(acc, tmp, so, tag):
    F = []
    for hb in range(2):
        a = acc + 8 * hb
        for j in range(8): F.append(f"v_mul_f32 v{tmp+j}, v{a+j}, {vRSL}")
        for j in range(8): F.append(f"v_exp_f32 v{tmp+j}, v{tmp+j}")
        for j in range(8): F.append(f"v_add_f32 v{tmp+j}, 1.0, v{tmp+j}")
        for j in range(8): F.append(f"v_fma_f32 v{tmp+j}, v{tmp+j}, v{tmp+j}, 1.0")
        for j in range(8): F.append(f"v_rcp_f32 v{tmp+j}, v{tmp+j}")
        for j in range(8): F.append(f"v_fma_f32 v{tmp+j}, v{tmp+j}, {vM2}, {vRS}")
        for j in range(8): F.append(f"v_mul_f32 v{tmp+j}, v{a+j}, v{tmp+j}")
        for j in range(4): F.append(f"v_cvt_pk_bf16_f32 v{a+j}, v{tmp+2*j}, v{tmp+2*j+1}")
        F.append((f"buffer_store_dwordx4 {R(a,4)}, {vA16}, {sWs}, {so} offen offset:{hb*1024} sc1", tag))
    return F
def softmax(P, out, t0, t1):
    F = [f"v_max3_f32 {t0}, v{P}, v{P+1}, v{P+2}", f"v_max3_f32 {t1}, v{P+3}, v{P+4}, v{P+5}",
         f"v_max3_f32 {t0}, {t0}, v{P+6}, v{P+7}", f"v_max3_f32 {t1}, {t1}, v{P+8}, v{P+9}",
         f"v_max3_f32 {t0}, {t0}, v{P+10}, v{P+11}", f"v_max3_f32 {t1}, {t1}, v{P+12}, v{P+13}",
         f"v_max3_f32 {t0}, {t0}, v{P+14}, v{P+15}", f"v_max_f32 {t0}, {t0}, {t1}", f"v_mul_f32_e64 {t0}, -{t0}, {vRSL}"]
    for j in range(16): F.append(f"v_fma_f32 v{P+j}, v{P+j}, {vRSL}, {t0}")
    for j in range(16): F.append(f"v_exp_f32 v{P+j}, v{P+j}")
    F += [f"v_add_f32 {t0}, v{P}, v{P+1}", f"v_add_f32 {t1}, v{P+2}, v{P+3}"]
    for j in range(4, 16, 2):
        F += [f"v_add_f32 {t0}, {t0}, v{P+j}", f"v_add_f32 {t1}, {t1}, v{P+j+1}"]
    F += [f"v_add_f32 {t0}, {t0}, {t1}", f"v_rcp_f32 {t0}, {t0}"]
    for j in range(16): F.append(f"v_mul_f32 v{P+j}, v{P+j}, {t0}")
    for j in range(8): F.append(f"v_cvt_pk_bf16_f32 v{out+j}, v{P+2*j}, v{P+2*j+1}")
    return F
def pack16(acc, out): return [f"v_cvt_pk_bf16_f32 v{out+j}, v{acc+2*j}, v{acc+2*j+1}" for j in range(8)]
def phi_frags():
    F = ["v_bfe_u32 v25, v0, 2, 2", "v_lshrrev_b32 v26, 5, v0", "v_lshl_add_u32 v25, v26, 2, v25", "v_lshlrev_b32 v25, 5, v25",
         "v_bfe_u32 v26, v0, 4, 1", "v_lshl_add_u32 v25, v26, 4, v25", "v_bfe_u32 v26, v0, 1, 1", "v_lshl_add_u32 v25, v26, 3, v25",
         blk(f"s_lshl_b32 s4, {sCH}, 10\ns_add_u32 s4, s4, {SCR_PHI}\nv_add_u32 v25, s4, v25")]
    for h in range(2):
        for rd in range(2): F.append(f"ds_read_b64_tr_b16 {R(PHI+4*h+2*rd,2)}, v25 offset:{h*512 + rd*256}")
    F += ["v_bfe_u32 v26, v0, 2, 1", "v_mul_u32_u24 v26, 0x8000, v26", "v_lshl_or_b32 v26, v26, 16, v26"]
    for j in range(8): F.append(f"v_xor_b32 v{PHI+j}, v26, v{PHI+j}")
    return F

def prologue(s):
    s.e("s_load_dwordx2 s[64:65], s[0:1], 0\ns_load_dwordx2 s[84:85], s[0:1], 80")
    s.e("s_load_dwordx8 s[68:75], s[0:1], 8\ns_load_dwordx8 s[76:83], s[0:1], 40\ns_load_dwordx2 s[66:67], s[0:1], 72")
    s.e("s_cmp_ge_u32 s2, 256\ns_cbranch_scc1 L_end")
    s.e("v_lshrrev_b32 v2, 6, v0\nv_and_b32 v0, 63, v0")
    s.e(f"v_readfirstlane_b32 {sW}, v2")
    s.e("s_and_b32 s3, s2, 7\ns_lshr_b32 s4, s2, 3")
    s.e(f"s_and_b32 s5, s3, 1\ns_lshl_b32 s5, s5, 3\ns_and_b32 {sI}, s4, 7\ns_add_u32 {sI}, {sI}, s5")
    s.e(f"s_lshr_b32 {sKQ}, {sW}, 1\ns_and_b32 {sRT2}, {sW}, 1\ns_lshl_b32 {sM0W}, {sW}, 11")
    s.e(f"s_and_b32 {sRT}, {sW}, 3\ns_lshr_b32 {sCH}, {sW}, 2")
    s.e(f"s_lshr_b32 s5, s3, 1\ns_lshl_b32 s5, s5, 2\ns_lshr_b32 s6, s4, 3\ns_add_u32 s5, s5, s6")
    s.e(f"s_lshr_b32 {sG}, s5, 1\ns_and_b32 {sTY}, s5, 1")
    s.e(f"s_lshl_b32 {sRB}, s3, 2\ns_add_u32 {sRB}, {sRB}, s6\ns_and_b32 {sCB}, s4, 7\ns_mov_b32 s87, s4")
    s.e(f"v_lshrrev_b32 v33, 4, v0\nv_and_b32 v34, 15, v0\ns_lshl_b32 s5, {sRT2}, 3")
    for h in range(2):
        s.e(f"v_add_u32 v35, {4*h}, v33\nv_add_u32 v36, s5, v35\nv_xor_b32 v36, v34, v36\nv_lshlrev_b32 v36, 4, v36\nv_lshl_add_u32 v{XD+h}, v35, 10, v36")
    s.e(f"s_lshl_b32 {sXb}, {sI}, 17\ns_lshl_b32 s5, {sW}, 13\ns_add_u32 {sXb}, {sXb}, s5")
    s.e("v_lshrrev_b32 v36, 3, v0\nv_and_b32 v37, 7, v0\nv_lshlrev_b32 v38, 1, v36\nv_and_b32 v38, 4, v38\nv_xor_b32 v37, v37, v38\nv_lshlrev_b32 v37, 4, v37")
    s.e(f"v_mul_u32_u24 {vDq}, 3072, v36\nv_add_u32 {vDq}, {vDq}, v37\nv_mul_u32_u24 {vD1}, 3584, v36\nv_add_u32 {vD1}, {vD1}, v37")
    s.e(f"v_lshl_add_u32 {vDB}, v36, 10, v37\nv_lshlrev_b32 {vA16}, 4, v0")
    s.raw("s_waitcnt lgkmcnt(0)")
    srd(s, sX, "s64", "s65", 2048 * 512 * 2)
    srd(s, sWq, "s68", "s69", 512 * 1536 * 2)
    srd(s, sW1, "s76", "s77", 512 * 1792 * 2)
    srd(s, sWs, "s84", "s85", 0x10000000)
    s.e("s_cmp_ge_u32 s2, 16\ns_cbranch_scc1 L_noinit")
    s.e("v_mov_b32 v40, 0\nv_mov_b32 v41, 0\nv_mov_b32 v42, 0\nv_mov_b32 v43, 0")
    s.e(f"s_lshl_b32 s5, s2, 13\ns_lshl_b32 s6, {sW}, 10\ns_add_u32 s5, s5, s6\ns_add_u32 s5, s5, {Z_OFF}")
    s.raw(f"buffer_store_dwordx4 v[40:43], {vA16}, {sWs}, s5 offen sc1")
    s.e("L_noinit:")
    s.e("s_mov_b32 s88, s2")

def prologue2(s):
    lab = label()
    s.e(f"s_cmp_lg_u32 {sW}, 7\ns_cbranch_scc1 {lab}")
    s.e(f"s_getpc_b64 s[90:91]\n{lab}x:\ns_sub_u32 s90, s90, {lab}x-{KNAME}\ns_subb_u32 s91, s91, 0\ns_mul_i32 s5, s87, 2560\nv_min_u32 v35, 19, v0\nv_lshlrev_b32 v35, 7, v35\nv_add_u32 v35, s5, v35")
    s.raw("global_load_dword v26, v35, s[90:91]")
    s.e(f"{lab}:")
    srd(s, sPhi, "s70", "s71", 32 * 512)
    srd(s, sB1, "s78", "s79", 1792 * 2)
    srd(s, sW2, "s80", "s81", 1792 * 512 * 2)
    srd(s, sWo, "s72", "s73", 512 * 512 * 2)
    srd(s, sOut, "s82", "s83", 2048 * 512 * 2)
    srd(s, sDbg, "s66", "s67", 256)
    s.e(f"s_mov_b32 {sBID}, s88\ns_mov_b32 {sC11}, 0x3f803f80")
    s.e(f"v_lshrrev_b32 v36, 2, v0\nv_and_b32 v37, 3, v0\nv_lshlrev_b32 v37, 4, v37\nv_mul_u32_u24 {vD5}, 3584, v36\nv_add_u32 {vD5}, {vD5}, v37")
    s.e(f"v_and_b32 {vP4}, 31, v0\nv_lshlrev_b32 {vP4}, 2, {vP4}")
    s.e(f"v_mov_b32 v29, 0\nv_mov_b32 {vFO}, {BIG}\nv_cmp_eq_u32 vcc, 0, v0\nv_cndmask_b32 {vFO}, {vFO}, 0, vcc")
    s.e("v_bfe_u32 v36, v0, 2, 2\nv_and_b32 v37, 3, v0\nv_bfe_u32 v38, v0, 4, 1\nv_lshrrev_b32 v39, 5, v0")
    s.e("v_lshlrev_b32 v40, 3, v37\nv_lshl_add_u32 v40, v38, 5, v40\nv_lshl_add_u32 v41, v39, 3, v36")
    s.e(f"v_lshrrev_b32 v42, 1, v36\nv_xor_b32 v42, {sCH}, v42\nv_lshlrev_b32 v42, 6, v42")
    s.e(f"v_lshl_add_u32 v43, v41, 7, v40\nv_add_u32 v43, v43, v42")
    for j in range(4):
        s.e(f"s_xor_b32 s5, {sRT}, {j}\ns_lshl_b32 s5, s5, 12\ns_add_u32 s5, s5, {SLOT}\nv_add_u32 v{VW+j}, s5, v43\nv_add_u32 v{VW+4+j}, 0x10000, v{VW+j}")
    s.e(f"v_and_b32 v44, 31, v0\ns_lshl_b32 s5, {sRT}, 5\nv_add_u32 v45, s5, v44\nv_xor_b32 v46, v39, v34\nv_lshlrev_b32 v46, 4, v46\nv_lshl_add_u32 v{XR}, v45, 8, v46")
    s.e(f"s_lshl_b32 s5, {sRT}, 6\nv_xor_b32 v{XR}, s5, v{XR}")
    for t in range(1, 8): s.e(f"v_xor_b32 v{XR+t}, {t<<5}, v{XR}")
    s.e(f"v_lshlrev_b32 v44, 2, v38\nv_cmp_eq_u32 vcc, v44, v34\nv_mov_b32 v44, {sC11}\nv_cndmask_b32 v{ASEL}, 0, v44, vcc")
    for j in range(1, 4): s.e(f"v_mov_b32 v{ASEL+j}, v{ASEL}")
    s.e(f"v_mov_b32 v{CF+4}, 0\nv_mov_b32 v{CF+5}, 0")
    s.e(f"s_lshl_b32 s3, {sI}, 2\ns_add_u32 s3, s3, {sRT}\ns_mul_i32 {sAF}, s3, {144*1024}")
    s.e(f"s_mul_i32 {sKS}, {sG}, {14*1024}\ns_add_u32 {sKS}, {sKS}, {sAF}")
    s.e(f"s_lshl_b32 {sFL}, s3, 9\ns_lshr_b32 s4, {sG}, 1\ns_lshl_b32 s4, s4, 7\ns_add_u32 {sFL}, {sFL}, s4")
    s.e(f"s_and_b32 s4, {sG}, 1\ns_lshl_b32 s4, s4, 3\ns_lshl_b32 s5, {sCH}, 2\ns_add_u32 s4, s4, s5\ns_add_u32 {sFL}, {sFL}, s4\ns_add_u32 {sFL}, {sFL}, {ACTFLAG_OFF}")
    s.e(f"s_lshl_b32 s3, {sRB}, 1\ns_add_u32 s3, s3, {sRT2}\ns_mul_i32 {sAF2}, s3, {144*1024}")
    s.e(f"s_lshl_b32 {sFL2}, s3, 9\ns_lshl_b32 s4, {sKQ}, 7\ns_add_u32 {sFL2}, {sFL2}, s4\ns_add_u32 {sFL2}, {sFL2}, {ACTFLAG_OFF}")
    s.e(f"s_mul_i32 {sB2}, {sCH}, {448*1024}\ns_lshl_b32 s4, {sRT}, 14\ns_lshl_b32 s5, {sCB}, 7\ns_add_u32 s4, s4, s5\ns_add_u32 {sB2}, {sB2}, s4")
    s.e(f"s_lshl_b32 {sBo}, {sCH}, 17\ns_add_u32 {sBo}, {sBo}, s4")
    s.e(f"s_lshl_b32 s3, {sG}, 2\ns_add_u32 s3, s3, {sKQ}\ns_mul_i32 {sKVs}, s3, 2176\ns_add_u32 {sKVs}, {sKVs}, {KV_OFF}")
    s.e(f"s_lshl_b32 s3, {sG}, 3\ns_add_u32 s3, s3, {sW}\ns_lshl_b32 {sKVF}, s3, 7\ns_add_u32 {sKVF}, {sKVF}, {KVFLAG_OFF}")
    s.e(f"s_mul_i32 s3, {sKQ}, {28*1024}\ns_add_u32 {sA2y}, {sAF2}, s3")
    s.e(f"s_lshl_b32 s3, {sKQ}, 13\ns_add_u32 {sA2s}, {sAF2}, s3\ns_add_u32 {sA2s}, {sA2s}, {112*1024}")
    s.e(f"v_lshrrev_b32 {vT}, 1, {vP4}")

def unit_bases(s, typ):
    s.e(f"s_mul_i32 s3, {sW}, {16*3072}\ns_lshl_b32 s4, {sG}, 7\ns_add_u32 s3, s3, s4")
    s.e(f"s_mul_i32 s4, {sG}, 448\ns_and_b32 s5, {sG}, 1\ns_cmp_eq_u32 s5, 0")
    if typ == 'A':
        s.e(f"s_cselect_b32 s5, 0, 320\ns_add_u32 s4, s4, s5")
        s.e(f"s_add_u32 {sUA}, s3, 1024\ns_add_u32 {sUB}, s3, 2048")
        s.e(f"s_mul_i32 {sUC}, {sW}, {16*3584}\ns_add_u32 {sUC}, {sUC}, s4")
        s.e(f"s_lshl_b32 s5, {sCH}, 6\ns_add_u32 s92, s4, s5")
        return [f"buffer_load_ushort v{BI0}, {vT}, {sB1}, s92 offen"]
    s.e(f"s_cselect_b32 s5, 128, 64\ns_cselect_b32 {sUD}, 384, 0")
    s.e(f"s_add_u32 s5, s4, s5\ns_add_u32 s92, s4, {sUD}\ns_mov_b32 {sUC}, s3")
    s.e(f"s_mul_i32 {sUA}, {sW}, {16*3584}\ns_add_u32 {sUA}, {sUA}, s5\ns_add_u32 {sUB}, {sUA}, 128")
    s.e(f"s_mul_i32 {sUD}, {sW}, {32*3584}\ns_add_u32 {sUD}, {sUD}, s92")
    s.e(f"s_lshl_b32 s3, {sCH}, 6\ns_add_u32 s93, s5, s3")
    return [f"buffer_load_ushort v{BI2}, {vT}, {sB1}, s92 offen", f"buffer_load_ushort v{BI0}, {vT}, {sB1}, s93 offen",
            f"buffer_load_ushort v{BI1}, {vT}, {sB1}, s93 offen offset:128"]

def start(s, ring, biasloads):
    ring.assign(s, upto=ring.upto0); ring.pump(s, CFG['S0'])
    prologue2(s)
    ring.pump(s, CFG['S1'])
def late_loads(biasloads):
    def f(s):
        s.e(f"v_lshrrev_b32 {vT}, 1, {vP4}")
        for x in biasloads: s.e(x)
        s.e(f"s_lshl_b32 s3, {sG}, 11\ns_lshl_b32 s4, {sRT2}, 10\ns_add_u32 s3, s3, s4\ns_add_u32 m0, s4, {SCR_PHI}")
        s.e(f"buffer_load_dwordx4 {vA16}, {sPhi}, s3 offen lds", tag="phi")
    return f

MF = "v_mfma_f32_32x32x16_bf16"
def bar(s, ring, name, needs=(), rel=(), owner='all', lg0=False, upto=None, extra=(), maxn=99):
    if CFG.get('SB'): stamp("<" + name)(s)
    for n in needs: ring.need(s, n)
    if lg0: s.wait(lg=0)
    s.wait_dswrites()
    s.e("s_barrier")
    stamp(name)(s)
    s.marks[name] = 1
    for n in rel: ring.release(n)
    ring.free += list(extra)
    ring.assign(s, owner, upto, maxn)
def B(ring, *a, **k): return lambda s: bar(s, ring, *a, **k)

class MSeg:
    def __init__(self, ring, u, ch, events=None, posts=None, xpass=False, dma=0):
        self.ring, self.u, self.ch, self.ev, self.posts, self.xp, self.dma = ring, u, ch, events or {}, posts or {}, xpass, dma
        self.nr = 0; self.hs = None
    def reads(self, s, t):
        u, ring = self.u, self.ring
        for e in self.ev.get(t, []): e(s)
        c, p = t // 8, t % 8
        if self.xp:
            for x in {0: (0, 1), 1: (2, 3, 4), 2: (5, 6, 7)}.get(p, ()):
                s.e(f"ds_read_b128 {R(XA+32*c+4*x,4)}, v{XR+x} offset:{(c&1)*32768}")
        it = f"{u['name']}{c}" if u['kind'] == 'w' else f"{u['name']}{c//2}"
        assert ring.log[it][1] is not None, f"{it} read before certified"
        sl = ring.slot[it]; buf = WB + 4 * (t % 4)
        if u['kind'] == 'h5' and self.hs != sl:
            if self.hs is None:
                s.e("v_bfe_u32 v116, v0, 2, 2\nv_lshrrev_b32 v117, 5, v0\nv_lshl_add_u32 v116, v117, 3, v116\nv_lshlrev_b32 v116, 6, v116\nv_bfe_u32 v117, v0, 4, 1\nv_lshl_add_u32 v116, v117, 5, v116\nv_and_b32 v117, 3, v0\nv_lshl_add_u32 v116, v117, 3, v116")
                for j in range(4): s.e(f"s_xor_b32 s3, {sRT}, {j}\ns_lshl_b32 s3, s3, 11\ns_add_u32 s3, s3, {sl*SLOT}\nv_add_u32 v{HR+j}, s3, v116")
            else:
                for j in range(4): s.e(f"v_add_u32 v{HR+j}, {((sl-self.hs)*SLOT) & 0xffffffff:#x}, v{HR+j}")
            self.hs = sl
        for k in range(2):
            if u['kind'] == 'w':
                w = 0 if sl <= 4 else 1
                r, off = f"v{VW+4*w+p//2}", (sl - 1 - 4 * w) * SLOT + (p & 1) * 2048 + k * 512
            else: r, off = f"v{HR+p//2}", (c % 2) * 8192 + (p & 1) * 1024 + k * 256
            s.e(f"ds_read_b64_tr_b16 {R(buf+2*k,2)}, {r} offset:{off}")
    def pre(self, s, n=3):
        while self.nr < n: self.reads(s, self.nr); self.nr += 1
    def run(self, s, nxt=None, F=None, budget=0):
        u = self.u; ch = self.ch
        credit = 0
        if CFG['PRIO'] and not self.xp: s.e("s_setprio 1")
        self.pre(s)
        for t in range(32):
            c, p = t // 8, t % 8
            buf = WB + 4 * (t % 4)
            cin = R(u['acc'], 16) if t > 0 else "0"
            a, b = (R(buf, 4), R(XA + 4 * t, 4)) if u['trans'] else (R(XA + 4 * t, 4), R(buf, 4))
            s.e(f"{MF} {R(u['acc'],16)}, {a}, {b}, {cin}")
            if p < 2: s.e(f"v_mfma_f32_16x16x32_bf16 {R(CSA,4)}, {R(ASEL,4)}, {R(buf,4)}, {R(CSA,4) if t > 0 else '0'}")
            if self.nr < 32: self.reads(s, self.nr); self.nr += 1
            elif nxt is not None: nxt.pre(s, t - 28)
            if self.xp and t < 25: self.ring.pump(s, 1)
            elif self.xp: self.ring.pace(s, CFG['ST'])
            elif self.dma: self.ring.pace(s, self.dma)
            if t == 27:
                s.e(f"s_lshl_b32 s3, {sRT}, 2\ns_add_u32 s3, s3, {SCR_CS + u['csi']*2048 + ch*1024}\nv_add_u32 v{CSA+1}, s3, {vA16}\nds_write_b32 v{CSA+1}, v{CSA}")
            if self.xp and p in (1, 3):
                for x in ((ch, ch + 2) if p == 1 else (ch + 4, ch + 6)):
                    for j in range(4):
                        r = XA + 32 * c + 4 * x + j
                        first = (c == 0 and p == 1 and x == ch and j < 2)
                        s.e(f"v_dot2_f32_bf16 v{STA+(j&1)}, v{r}, {sC11}, {'0' if first else f'v{STA+(j&1)}'}")
                        s.e(f"v_dot2_f32_bf16 v{STA+2+(j&1)}, v{r}, v{r}, {'0' if first else f'v{STA+2+(j&1)}'}")
                if t == 27:
                    q = f"v{STA+2}"
                    s.e(f"v_add_f32 v{STA}, v{STA}, v{STA+1}\nv_add_f32 v{STA+1}, v{STA+2}, v{STA+3}\nv_lshrrev_b32 {q}, 5, v0\nv_lshlrev_b32 {q}, 3, {q}\n"
                        f"v_lshl_add_u32 {q}, {vP4}, 3, {q}\ns_lshl_b32 s3, {sRT}, 10\ns_add_u32 s3, s3, {SCR_ST + ch*16}\nv_add_u32 {q}, s3, {q}\nds_write_b64 {q}, {R(STA,2)}")
            for e in self.posts.get(t, []): e(s)
            if F is not None: credit = fill(s, F, (budget(t) if callable(budget) else budget) + min(credit, CFG['CRED']))
        if CFG['PRIO'] and not self.xp: s.e("s_setprio 0")

def fill(s, F, budget, force=False):
    while budget > 0 and F:
        f = F[0]
        if isinstance(f, tuple) and f[0] == 'wait':
            if f[1] in s.marks: F.pop(0); continue
            return 0
        if isinstance(f, tuple) and f[0] == 'nextbar': f = F[0] = ('barge', s.nbar + 1)
        if isinstance(f, tuple) and f[0] == 'barge':
            if s.nbar >= f[1]: F.pop(0); continue
            return 0
        if isinstance(f, tuple) and f[0] == 'gap':
            f = F[0] = ('until', s.n_issued + f[1])
        if isinstance(f, tuple) and f[0] == 'until':
            if s.n_issued >= f[1] or force: F.pop(0); continue
            return 0
        if callable(f):
            F.pop(0); n0 = s.n_issued; f(s); budget -= max(1, (s.n_issued - n0) * 0.5); continue
        txt, tag = (f if isinstance(f, tuple) else (f, None))
        need, age = s.cost(txt)
        if not force and (need > 1 or (age is not None and age < CFG['AGE'])): return budget
        F.pop(0); s.e(txt, tag)
        k = I(txt).kind
        budget -= 2 if k == 'trans' else (0.5 if k in ('salu', 'ds', 'vm') else 1)
    return 0
def until(s, ring, F, name, every=None):
    n = 0
    while name not in s.marks:
        assert F, name
        l = len(F); fill(s, F, 1, force=True)
        assert len(F) < l, ("stuck", F[0], name, s.name)
        n += 1
        ring.pace(s, 9)
    return n
def vrun(s, ring, F, slots, every=None, flush=True):
    every = every or CFG['VD']
    while slots > 0 and F:
        l = len(F); fill(s, F, min(every, slots), force=True); slots -= every
        ring.pace(s, 9 * every)
        if len(F) == l: break
    if flush: ring.pump(s, 99)

def vseg(s, ring, F, every=None, flush=True):
    every = every or CFG['VD']
    n = 0
    for f in F:
        if isinstance(f, tuple) and f[0] in ('after', 'skip', 'wait', 'gap', 'until'): continue
        drain(s, [f]); n += 1
        ring.pace(s, 10)
    if flush: ring.pump(s, 99)
def split(F, frac, item):
    k = int(len(F) * frac)
    return F[:k] + [item] + F[k:]

def pass0(s, ring, u, ch, bl, nextname, nextneed):
    ev = {}
    for c in range(4):
        def b0(s, c=c):
            if c == 3: s.wait_tag("phi")
            bar(s, ring, f"b0{c}", [f"{u['name']}{c}", f"XL{c}", f"XH{c}"], [f"{u['name']}{c-1}"] if c else [], lg0=True, upto=nextname)
            if c == 0:
                lab = label()
                s.e(f"s_cmp_ge_u32 {sBID}, 16\ns_cbranch_scc1 {lab}\ns_cmp_lg_u32 {sW}, 0\ns_cbranch_scc1 {lab}\ns_lshl_b32 s3, {sBID}, 2")
                s.raw(f"buffer_store_dword {vOne}, {vFO}, {sDbg}, s3 offen offset:64 sc1")
                s.e(f"{lab}:")
        def bx(s, c=c):
            s.wait_regs([f"v{r}" for r in range(XA + 32 * c, XA + 32 * c + 32)])
            bar(s, ring, f"bx{c}", nextneed if c == 3 else [], [f"XL{c}", f"XH{c}"], upto=(nextname if c < 3 else None))
        ev[8 * c] = [b0]; ev[8 * c + 4] = [bx]
    return MSeg(ring, u, ch, ev, {6: [late_loads(bl)], 24: [lambda s: poll_issue(s, sDbg, "0")]}, xpass=True, dma=1)

def stats_fin(T):
    F = [blk(f"s_lshl_b32 s4, {sRT}, 10\ns_add_u32 s4, s4, {SCR_ST}\nv_lshlrev_b32 {vT}, 3, {vP4}\nv_add_u32 {vT}, s4, {vT}"),
         f"ds_read_b128 {R(T,4)}, {vT}", f"ds_read_b128 {R(T+4,4)}, {vT} offset:16",
         blk(f"s_lshl_b32 s4, {sRT}, 7\ns_add_u32 s4, s4, {SCR_RS}\nv_add_u32 {vT}, s4, {vP4}\nv_cmp_gt_u32 s[94:95], 32, v0")]
    a, b = f"v{T}", f"v{T+1}"
    F += [f"v_add_f32 {a}, {a}, v{T+2}", f"v_add_f32 {b}, {b}, v{T+3}", f"v_add_f32 v{T+4}, v{T+4}, v{T+6}", f"v_add_f32 v{T+5}, v{T+5}, v{T+7}",
          f"v_add_f32 {a}, {a}, v{T+4}", f"v_add_f32 {b}, {b}, v{T+5}", f"v_mul_f32 {a}, 0xbb000000, {a}", f"v_mul_f32 {b}, 0x3b000000, {b}",
          f"v_fma_f32 {b}, -{a}, {a}, {b}", f"v_max_f32 {b}, 0, {b}", f"v_cvt_pk_bf16_f32 {b}, {b}, {b}", f"v_lshlrev_b32 {b}, 16, {b}",
          f"v_add_f32 {b}, 0x3727c5ac, {b}", f"v_cvt_pk_bf16_f32 {b}, {b}, {b}", f"v_lshlrev_b32 {b}, 16, {b}", f"v_sqrt_f32 {b}, {b}",
          f"v_cvt_pk_bf16_f32 {b}, {b}, {a}", f"v_lshlrev_b32 {vRS}, 16, {b}", f"v_rcp_f32 {vRS}, {vRS}",
          f"v_cndmask_b32 v{CF+2}, 0, {b}, s[94:95]", f"v_lshrrev_b32 v{CF+3}, 16, v{CF+2}",
          f"v_mul_f32 {vRSL}, 0x3fb8aa3b, {vRS}", f"v_mul_f32 {vM2}, -2.0, {vRS}", f"ds_write_b32 {vT}, {vRS}"]
    return F
def correct(u, ch, T, bias=None):
    F = [f"v_lshlrev_b32 {vT}, 2, {vP4}", f"v_add_u32 {vT}, {SCR_CS + u['csi']*2048 + ch*1024}, {vT}", f"ds_read_b128 {R(T,4)}, {vT}",
         f"v_add_f32 v{T}, v{T}, v{T+1}", f"v_add_f32 v{T+2}, v{T+2}, v{T+3}", f"v_add_f32 v{T}, v{T}, v{T+2}",
         f"v_cvt_pk_bf16_f32 v{T+1}, v{T}, v{T}", f"v_and_b32 v{CF}, 0xffff0000, v{T+1}", f"v_sub_f32 v{T}, v{T}, v{CF}", f"v_cvt_pk_bf16_f32 v{CF+1}, v{T}, v{T}"]
    if bias is not None: F.append(f"v_or_b32 v{CF}, v{CF}, v{bias}")
    a, b = (R(CF, 4), R(CF + 2, 4)) if u['trans'] else (R(CF + 2, 4), R(CF, 4))
    F.append(f"{MF} {R(u['acc'],16)}, {a}, {b}, {R(u['acc'],16)}")
    return F

def mark(name): return lambda s: s.marks.__setitem__(name, 1)
YA = [48, 64]; SA = [32, 96]
vB0, vB1 = "v5", "v24"
XW = ["v6", "v7", "v8"]; XRD = ["v11", "v12", "v13"]
LB = 128
def breg(t): return XA + 8 * t if t < 16 else LB + 8 * (t % 2)
def bnm(ch, c): return f"B{'ab'[ch]}{c}"
def bread(ring, ch, t):
    def f(s):
        nm = bnm(ch, t // 4)
        assert ring.log[nm][1] is not None, f"{nm} read before certified"
        sl = ring.slot[nm]
        if ring.bsl != sl:
            d = ((sl - ring.bsl) * SLOT) & 0xffffffff
            s.e(f"v_add_u32 {vB0}, {d:#x}, {vB0}\nv_add_u32 {vB1}, {d:#x}, {vB1}")
            ring.bsl = sl
        for ct, r in enumerate((vB0, vB1)):
            for k in range(2):
                s.e(f"ds_read_b64_tr_b16 {R(breg(t) + 4*ct + 2*k, 2)}, {r} offset:{(t%4)*2048 + k*1024}")
    return f
def pull(ring, ch, c): return [bread(ring, ch, 4 * c + k) for k in range(4)]
def p2_setup(ring):
    def chk(s):
        assert not any(x[0][0] == 'F' for x in ring.items) and not any(x[0][0][0] == 'F' for x in ring.q)
        ring.bsl = 0
    return [chk, f"v_bfe_u32 {vB0}, v0, 2, 2", f"v_lshrrev_b32 {vB1}, 5, v0", f"v_lshl_add_u32 {vB0}, {vB1}, 2, {vB0}", f"v_lshlrev_b32 {vB0}, 7, {vB0}",
     f"v_bfe_u32 {vB1}, v0, 3, 1", f"v_lshl_add_u32 {vB0}, {vB1}, 6, {vB0}", f"v_bfe_u32 {vB1}, v0, 4, 1", f"v_lshl_add_u32 {vB0}, {vB1}, 5, {vB0}",
     f"v_and_b32 {vB1}, 3, v0", f"v_lshl_add_u32 {vB0}, {vB1}, 3, {vB0}", blk(f"s_and_b32 s3, {sKQ}, 1\ns_lshl_b32 s3, s3, 13\nv_add_u32 {vB0}, s3, {vB0}"), f"v_xor_b32 {vB1}, 64, {vB0}"]

def xwrite(s, acc2, slots, own, ch):
    l1, l2 = label(), label()
    s.e("s_nop 7")
    s.e(f"s_bitcmp1_b32 {sKQ}, 0\ns_cbranch_scc1 {l1}")
    for kq in (2 * ch, 2 * ch + 1):
        if kq & 1: s.raw(f"{l1}:")
        s.raw("s_nop 1")
        for d in range(4):
            src = acc2[d >> 1] + 8 * (d & 1)
            if d == kq: continue
            idx = (kq - d - 1) % 4
            for h in range(2):
                r, off = ldsaddr(XW, slots[idx] * SLOT + d * 4096 + h * 1024)
                s.raw(f"ds_write_b128 {r}, {R(src+4*h,4)} offset:{off}")
        src = acc2[kq >> 1] + 8 * (kq & 1)
        for j in range(8): s.raw(f"v_mov_b32 v{own+j}, v{src+j}")
        if not kq & 1: s.raw(f"s_branch {l2}")
    s.raw(f"{l2}:")
    for _ in range(6): s.lg.append((set(), None))
def xread(slots, own, tmp):
    F = []
    for i in range(3):
        for h in range(2):
            r, off = ldsaddr(XRD, slots[i] * SLOT + h * 1024)
            F.append(f"ds_read_b128 {R(tmp+8*i+4*h,4)}, {r} offset:{off}")
    G = []
    for i in range(3):
        for j in range(8): G.append(f"v_add_f32 v{own+j}, v{own+j}, v{tmp+8*i+j}")
    return F, G
def fin_setup():
    return [blk(f"s_lshl_b32 {sUC}, {sRB}, 16\ns_lshl_b32 s4, {sRT2}, 15\ns_add_u32 {sUC}, {sUC}, s4\ns_lshl_b32 s4, {sCB}, 7\ns_add_u32 {sUC}, {sUC}, s4\ns_lshl_b32 s4, {sKQ}, 5\ns_add_u32 {sUC}, {sUC}, s4"),
            f"v_lshlrev_b32 v20, 8, {vP4}", "v_lshrrev_b32 v21, 5, v0", "v_lshl_add_u32 v20, v21, 4, v20",
            f"buffer_load_dwordx4 v[16:19], v20, {sX}, {sUC} offen",
            blk(f"s_lshl_b32 s4, {sRT2}, 11\nv_add_u32 v6, s4, {vA16}"), "v_add_u32 v7, 0x10000, v6", "v_add_u32 v8, 0x20000, v6",
            blk(f"s_lshl_b32 s4, {sKQ}, 12\nv_add_u32 v11, s4, v6\nv_add_u32 v12, s4, v7\nv_add_u32 v13, s4, v8")]

def aphase(s, ring, ch, events):
    groups = {0: (0xff, ['f1', 'f2'], -1), 16: (0x5f00, ['f3'], CFG['G16']), 28: (0xf0000, ['fo'], CFG['G28'])}
    pr = lambda c: [bnm(0, c), bnm(1, c)]
    bars = {16: (pr(4) + pr(5), []), 20: ([], pr(4)), 24: (pr(6) + pr(7), pr(5)), 30: (pr(8), pr(6))}
    pool = list(range(80, 128, 4)); areg = {}; issue = {}
    nxt = 0; AD = CFG['AD']
    for i in range(-1, 36):
        if i >= 0:
            pool.append(areg[i])
            if 2 <= i <= 7 or 12 <= i <= 15: pool += [XA + 8 * i, XA + 8 * i + 4]
        n = 0
        while nxt < 36 and nxt - (i + 1) < AD and n < (AD if i < 0 else 3):
            if nxt in groups and i < groups[nxt][2]: break
            ok = [r for r in pool if not (96 <= r < 128 and nxt > 27)]
            if not ok: break
            areg[nxt] = ok[0]; pool.remove(ok[0]); issue[nxt] = i; nxt += 1; n += 1
    posts = {}
    for t in range(36):
        at = issue[t]
        if t in groups:
            mask, req, _ = groups[t]
            def chk(s, mask=mask, req=req, t=t):
                for r in req: assert r in s.marks, f"flag {r} not emitted before poll {t} in {s.name}"
                poll_check(s, sWs, sFL2, mask)
                if t == 0: touchA(1, 0x5f00, vT)(s)
            if t == 28:
                posts.setdefault(CFG['TO'] - 4, []).append(lambda s: poll_issue(s, sWs, sFL2))
                posts.setdefault(CFG['TO'], []).append(touchA(2, 0xf0000, vT))
            if t: posts.setdefault(max(at - CFG['PL'], -1), []).append(lambda s: poll_issue(s, sWs, sFL2))
            posts.setdefault(at, []).append(chk)
        base, off = (sA2y, ORDER[t] * 1024) if t < 28 else (sA2s, (t - 28) * 1024)
        posts.setdefault(at, []).append(blk(f"s_add_u32 {sSoW}, {base}, {off & ~4095}\nbuffer_load_dwordx4 {R(areg[t],4)}, {vA16}, {sWs}, {sSoW} offen offset:{off & 4095} sc1"))
    OWNY = 112; OWNS = 120; XT = 192
    V = []
    for t in range(-1, 36):
        if t >= 0:
            for ct in range(2):
                acc = (YA if t < 28 else SA)[ct]
                cin = "0" if t in (0, 28) else R(acc, 16)
                s.e(f"{MF} {R(acc,16)}, {R(breg(t)+4*ct,4)}, {R(areg[t],4)}, {cin}")
        if t + 1 in bars: bar(s, ring, f"a{t+1}", bars[t + 1][0], bars[t + 1][1], lg0=True)
        if 16 <= t + 1 < 36: bread(ring, ch, t + 1)(s)
        ring.pump(s, 2)
        for e in events.get(t, []): drain(s, [e])
        for e in posts.get(t, []): e(s)
        if t == 27:
            stamp('yend')(s)
            ys = [ring.free.pop(0) for _ in range(3)]
            xwrite(s, YA, ys, OWNY, ch)
            drain(s, ["v_permlane32_swap_b32 v16, v18", "v_permlane32_swap_b32 v17, v19"])
            for j in range(4): drain(s, [f"v_lshlrev_b32 v{XT+24+2*j}, 16, v{16+j}", f"v_and_b32 v{XT+25+2*j}, 0xffff0000, v{16+j}"])
        if t == 29:
            rdl, V = xread(ys, OWNY, XT)
            drain(s, rdl)
            for j in range(8): V.append(f"v_mul_f32 v{XT+j}, 0xbfb8aa3b, v{OWNY+j}")
            for j in range(8): V.append(f"v_exp_f32 v{XT+j}, v{XT+j}")
            for j in range(8): V.append(f"v_add_f32 v{XT+j}, 1.0, v{XT+j}")
            for j in range(8): V.append(f"v_rcp_f32 v{XT+j}, v{XT+j}")
            for j in range(8): V.append(f"v_mul_f32 v{OWNY+j}, v{OWNY+j}, v{XT+j}")
        if 30 <= t < 35:
            drain(s, V[:CFG['TV']]); V = V[CFG['TV']:]
    stamp('send')(s)
    ss = [ring.free.pop(0) for _ in range(2)] + [9]
    xwrite(s, SA, ss, OWNS, ch)
    drain(s, V)
    s.wait(lg=0); s.e("s_barrier")
    rdl, V = xread(ss, OWNS, XT)
    drain(s, rdl + V)
    for j in range(8): s.e(f"v_fma_f32 v{OWNS+j}, v{OWNS+j}, v{OWNY+j}, v{XT+24+j}")
    for j in range(4): s.e(f"v_cvt_pk_bf16_f32 v{16+j}, v{OWNS+2*j}, v{OWNS+2*j+1}")
    s.e("v_permlane32_swap_b32 v16, v18\nv_permlane32_swap_b32 v17, v19")
    s.e(f"buffer_store_dwordx4 v[16:19], v20, {sOut}, {sUC} offen")
    stamp('st')(s)
    if PROFILE:
        s.raw("s_waitcnt vmcnt(0) lgkmcnt(0)")
        stamp("end")(s)
        s.raw("s_waitcnt lgkmcnt(0)")
        n = len(s.snames)
        for i in (n - 2, n - 1): s.raw(f"v_writelane_b32 v29, s{STAMP0+2*(i%4)}, {i}")
        s.e(f"v_subrev_u32 v29, s96, v29\nv_lshlrev_b32 v16, 2, v0")
        s.e(f"s_lshl_b32 s3, {sBID}, 11\ns_lshl_b32 s4, {sW}, 8\ns_add_u32 s3, s3, s4\ns_add_u32 s3, s3, {PROF_OFF}")
        s.e(f"buffer_store_dword v29, v16, {sWs}, s3 offen")
        if CFG.get('DBG') is not None:
            lab = label()
            s.e(f"s_cmp_lg_u32 {sBID}, {CFG['DBG']}\ns_cbranch_scc1 {lab}\ns_cmp_lg_u32 {sW}, 0\ns_cbranch_scc1 {lab}")
            idx = list(range(n - 1, -1, -3))[:16][::-1]
            for k, i in enumerate(idx):
                s.raw(f"v_readlane_b32 s4, v29, {i}\ns_nop 1\nv_mov_b32 v17, s4\nbuffer_store_dword v17, {vFO}, {sDbg}, 0 offen offset:{4*k}\ns_nop 1")
            s.e(f"{lab}:")
            if s.name in ('A0', 'B0'): print("DBG", s.name, [s.snames[i] for i in idx])
        open(f"snames_{s.name}.txt", "w").write(" ".join(s.snames))
    s.e("s_endpgm")
    s.slots = (dict(ring.slot), ys, ss)
    print("   ring", s.name, " ".join(f"{k}:{v[0]}>{v[1]}" for k, v in ring.log.items()))

SCR_DUM = SCR + 15360
def touchB(s):
    if not CFG['TB']: return
    s.e(f"s_lshl_b32 s4, s87, 3\ns_add_u32 s4, s4, {sW}\ns_mul_i32 s5, s4, 7168\ns_lshl_b32 s4, s4, 11\ns_mov_b32 m0, {SCR_DUM}")
    s.e(f"v_min_u32 {vT}, 55, v0\nv_lshlrev_b32 {vT}, 7, {vT}")
    s.e(f"buffer_load_dword {vT}, {sW2}, s5 offen lds")
    s.e(f"v_min_u32 {vT}, 15, v0\nv_lshlrev_b32 {vT}, 7, {vT}")
    s.e(f"buffer_load_dword {vT}, {sWo}, s4 offen lds")
def touchA(grp, mask, T):
    def f(s):
        if not CFG['TA']: return
        lab = label()
        if grp == 0: s.e(f"v_min_u32 {T}, 15, v0\nv_lshrrev_b32 v21, 3, {T}\nv_lshl_add_u32 {T}, v21, 2, {T}\nv_add_u32 {T}, 4, {T}")
        elif grp == 1: s.e(f"v_min_u32 {T}, 11, v0\nv_lshrrev_b32 v21, 2, {T}\nv_lshl_add_u32 {T}, v21, 3, {T}")
        else: s.e(f"v_min_u32 {T}, 7, v0")
        s.e(f"v_lshlrev_b32 {T}, 10, {T}\ns_lshl_b32 s4, {sCB}, 7\ns_add_u32 s4, s4, {sA2y if grp < 2 else sA2s}\ns_mov_b32 m0, {SCR_DUM}")
        s.e(f"v_cmp_ne_u32 vcc, 0, {vPoll}\ns_andn2_b32 {sT0}, {mask:#x}, vcc_lo\ns_cbranch_scc1 {lab}")
        s.raw(f"buffer_load_dword {T}, {sWs}, s4 offen sc1 lds")
        s.e(f"{lab}:")
    return f

def p0_items(a, b):
    it = []
    for c in range(4): it += x_items(c) + [a[c]]
    return it + b
def packin(acc): return [f"v_cvt_pk_bf16_f32 v{acc+j}, v{acc+2*j}, v{acc+2*j+1}" for j in range(8)]
def N(n, lo, hi): return [f"{n}{c}" for c in range(lo, hi)]
initchk = lambda s: poll_check(s, sDbg, "0", 0xffff0000)
pollA = lambda s: poll_issue(s, sWs, sFL2)

def stream_A(s0, ch):
    s = s0.fork(f"A{ch}"); s.e(f"L_typeA{ch}:")
    bl = unit_bases(s, 'A')
    items = p0_items(w_items("K", sWq, vDq, sUA, 3072), w_items("V", sWq, vDq, sUB, 3072)) + w_items("H", sW1, vD1, sUC, 3584) + b_items(0)
    ring = Ring(items, range(9), ch); ring.hold = ('XL3', 'XH3'); ring.upto0 = "V3"
    start(s, ring, bl)
    s.e(f"s_lshl_b32 {sSCRW}, {sW}, 12\ns_add_u32 {sSCRW}, {sSCRW}, {2*SLOT}")
    s.marks.update(f1=1, f2=1, fo=1)
    uK = dict(name="K", acc=ACC_A, trans=True, kind='w', csi=0)
    uV = dict(name="V", acc=ACC_B, trans=False, kind='w', csi=1)
    uH = dict(name="H", acc=ACC_C, trans=True, kind='w', csi=0)
    F = [('wait', 'c1')] + stats_fin(PT) + correct(uK, ch, PT + 8) + phi_frags()
    F += [f"v_lshlrev_b32 v25, 4, {vP4}", "v_lshrrev_b32 v26, 5, v0", "v_lshl_add_u32 v25, v26, 5, v25", f"v_add_u32 v25, {sSCRW}, v25", initchk]
    F += packin(ACC_A)
    for h in range(2):
        F += [f"{MF} {R(PT,16)}, {R(PHI+4*h,4)}, {R(ACC_A+4*h,4)}, 0", ('gap', 16)]
        F += softmax(PT, ACC_A + 8, "v26", vT)
        F += [f"ds_write_b128 v25, {R(ACC_A+8,4)} offset:{2048*h}", f"ds_write_b128 v25, {R(ACC_A+12,4)} offset:{2048*h+16}"]
    F += [touchB, ('wait', 'c2')] + correct(uV, ch, PT + 12)
    F += ["v_lshrrev_b32 v26, 5, v0", "v_lshlrev_b32 v26, 4, v26", blk(f"s_lshl_b32 s4, {sRT}, 7\ns_add_u32 s4, s4, {SCR_RS}\nv_add_u32 {vT}, s4, v26")]
    for q in range(4): F.append(f"ds_read_b128 {R(PT+4*q,4)}, {vT} offset:{32*q}")
    F += ["v_bfe_u32 v25, v0, 2, 2", "v_lshlrev_b32 v25, 6, v25", "v_lshl_add_u32 v25, v26, 4, v25", f"v_bfe_u32 {vT}, v0, 4, 1",
          f"v_lshl_add_u32 v25, {vT}, 5, v25", f"v_cmp_eq_u32 s[94:95], 1, {vT}", f"v_and_b32 {vT}, 3, v0", f"v_lshl_add_u32 v25, {vT}, 3, v25",
          f"v_add_u32 v25, {sSCRW}, v25", f"v_mov_b32 {vT}, {sC11}"]
    for t in range(2):
        for rd in range(2): F.append(f"ds_read_b64_tr_b16 {R(PHI+4*t+2*rd,2)}, v25 offset:{2048 + t*1024 + rd*512}")
    for r in range(16): F.append(f"v_mul_f32 v{ACC_B+r}, v{ACC_B+r}, v{PT+r}")
    F += packin(ACC_B)
    for t in range(2):
        for rd in range(2): F.append(f"ds_read_b64_tr_b16 {R(ACC_B+8+4*t+2*rd,2)}, v25 offset:{t*1024 + rd*512}")
    for j in range(8): F.append(f"v_cndmask_b32 v{ACC_A+8+j}, {vT}, v{ACC_B+j}, s[94:95]")
    for j in range(8): F.append(f"v_cndmask_b32 v{ACC_A+j}, v{ACC_B+j}, {vT}, s[94:95]")
    F += [f"{MF} {R(PT,16)}, {R(ACC_A,4)}, {R(ACC_B+8,4)}, 0", f"{MF} {R(PT,16)}, {R(ACC_A+4,4)}, {R(ACC_B+12,4)}, {R(PT,16)}",
          f"{MF} {R(ACC_B,16)}, {R(ACC_A+8,4)}, {R(PHI,4)}, 0", f"{MF} {R(ACC_B,16)}, {R(ACC_A+12,4)}, {R(PHI+4,4)}, {R(ACC_B,16)}"]
    F += [f"v_add_u32 v25, {sSCRW}, {vA16}", blk(f"s_lshl_b32 s4, {sW}, 9\ns_add_u32 s4, s4, {SCR_Z}\nv_lshlrev_b32 v26, 2, v0\nv_add_u32 v26, s4, v26")]
    F += [f"ds_write_b128 v25, {R(PT,4)}", f"ds_write_b128 v25, {R(PT+4,4)} offset:1024", f"ds_write_b32 v26, v{PT+8}",
          f"ds_write_b128 v25, {R(ACC_B+8,4)} offset:2048", f"ds_write_b128 v25, {R(ACC_B+12,4)} offset:3072", f"ds_write_b32 v26, v{ACC_B} offset:256"]
    F += [blk(f"s_lshl_b32 s4, {sRT}, 10\ns_add_u32 s4, s4, {2*SLOT + ch*SLOT}\nv_add_u32 v25, s4, {vA16}"),
          blk(f"s_lshr_b32 s4, {sRT}, 1\ns_lshl_b32 s4, s4, 8\ns_add_u32 s4, s4, {SCR_Z + ch*2048}\nv_add_u32 v26, s4, {vP4}"), mark('kvw')]
    ER = [f"ds_read_b128 {R(PT+4*r,4)}, v25 offset:{r*4096}" for r in range(4)] + [f"ds_read_b32 v{ACC_A+r}, v26 offset:{r*512}" for r in range(4)]
    ER += ["v_lshrrev_b32 v25, 5, v0", f"v_lshl_add_u32 v25, v25, 9, {vP4}", blk(f"s_lshl_b32 s5, {sRT2}, 10\nv_add_u32 v25, s5, v25"),
           f"v_lshrrev_b32 {vT}, 4, v0", f"v_cmp_eq_u32 s[94:95], {sRT2}, {vT}", f"v_mov_b32 {vT}, {BIG}",
           blk(f"s_and_b32 s5, {sG}, 1\ns_mul_i32 s5, s5, {10*1024}\ns_add_u32 s5, s5, {ch*2048}\ns_add_u32 {sUD}, {sKS}, s5\ns_lshl_b32 s4, {sI}, 2\ns_add_u32 {sKVF}, {sKVF}, s4"),
           f"v_cndmask_b32 v26, {vT}, {vP4}, s[94:95]"]
    for j in range(4): ER += [f"v_add_f32 v{PT+j}, v{PT+j}, v{PT+4+j}", f"v_add_f32 v{PT+8+j}, v{PT+8+j}, v{PT+12+j}"]
    for j in range(4): ER.append(f"v_add_f32 v{PT+j}, v{PT+j}, v{PT+8+j}")
    ER += [f"v_add_f32 v{ACC_A}, v{ACC_A}, v{ACC_A+1}", f"v_add_f32 v{ACC_A+2}, v{ACC_A+2}, v{ACC_A+3}", f"v_add_f32 v{ACC_A}, v{ACC_A}, v{ACC_A+2}"]
    for j in range(4): ER.append((f"buffer_atomic_add_f32 v{PT+j}, v25, {sWs}, {sKVs} offen offset:{j*128}", "kv"))
    ER += [(f"buffer_atomic_add_f32 v{ACC_A}, v26, {sWs}, {sKVs} offen offset:2048", "kv"), stamp('kvat')]
    EH = correct(uH, ch, PHI, BI0) + fin_setup() + mish(ACC_C, PT + 8, sUD, "actA")
    fkv = flag_store("kv", sKVF, 0, 'fkv'); f3 = flag_store("actA", sFL, 2 * 16, 'f3')
    pr = lambda c: [bnm(0, c), bnm(1, c)]
    m0 = pass0(s, ring, uK, ch, bl, "V3", N("V", 0, 2))
    mV = MSeg(ring, uV, ch, {4: [B(ring, "c1", N("V", 2, 4), ["K3"])], 20: [B(ring, "d1", N("H", 0, 2), N("V", 0, 2))]}, dma=CFG['ST'])
    F += [('wait', 'd2')] + ER + [mark('kvd'), ('gap', CFG['KVG']), fkv]
    def d2(s):
        print("   A forced before d2:", until(s, ring, F, 'kvw'))
        bar(s, ring, "d2", pr(0), N("H", 0, 2))
    mH = MSeg(ring, uH, ch, {4: [B(ring, "c2", N("H", 2, 4), N("V", 2, 4))], 20: [d2]},
              {22: [lambda s: drain(s, p2_setup(ring))], 24: pull(ring, ch, 0)[:2], 26: pull(ring, ch, 0)[2:]}, dma=CFG['ST'])
    m0.run(s, mV); mV.run(s, mH, F, CFG['KB']); mH.run(s, None, F, lambda t: CFG['VB'])
    print("   A forced kvd:", until(s, ring, F, 'kvd')); ring.pump(s, 99)
    bar(s, ring, "e1", pr(1), N("H", 2, 4) + pr(0), lg0=True, extra=[2, 3])
    vseg(s, ring, EH[:12] + pull(ring, ch, 1) + EH[12:CFG['EH0']] + F, flush=False)
    bar(s, ring, "e2", [], pr(1), lg0=True)
    vseg(s, ring, [pollA] + EH[CFG['EH0']:] + [touchA(0, 0xff, vT)])
    bar(s, ring, "e3", pr(2) + pr(3))
    vseg(s, ring, pull(ring, ch, 2) + pull(ring, ch, 3) + [pollA, f3])
    bar(s, ring, "e4", [], pr(2) + pr(3), lg0=True); ring.pump(s, 99)
    aphase(s, ring, ch, {})
    return s

def stream_B(s0, ch):
    s = s0.fork(f"B{ch}"); s.e(f"L_typeB{ch}:")
    bl = unit_bases(s, 'B')
    H5 = [(f"F{c}", sW1, vD5, sUD, c * 256 * 3584, c * 256 * 3584 + 16 * 3584, 128 * 3584) for c in range(2)]
    items = p0_items(w_items("U", sW1, vD1, sUA, 3584), w_items("Y", sW1, vD1, sUB, 3584)) + H5 + w_items("Q", sWq, vDq, sUC, 3072) + b_items(1)
    ring = Ring(items, range(9), ch); ring.upto0 = "Y3"
    start(s, ring, bl)
    s.e(f"s_and_b32 s5, {sG}, 1\ns_cmp_eq_u32 s5, 0\ns_cselect_b32 s5, 4, 2\ns_cselect_b32 s4, {12*1024}, 0\ns_lshl_b32 s5, s5, 10\n"
        f"s_add_u32 {sSCRW}, {sKS}, s4\ns_add_u32 s5, s5, {ch*2048}\ns_add_u32 {sKS}, {sKS}, s5")
    uU = dict(name="U", acc=ACC_A, trans=True, kind='w', csi=0)
    uY = dict(name="Y", acc=ACC_B, trans=True, kind='w', csi=1)
    uF = dict(name="F", acc=ACC_C, trans=True, kind='h5', csi=0)
    uQ = dict(name="Q", acc=ACC_A, trans=True, kind='w', csi=1)
    EU = stats_fin(PT) + correct(uU, ch, PT + 8, BI0) + [initchk, ('gap', 10)] + mish(ACC_A, PT, sKS, "act1") + [f"s_add_u32 {sKS}, {sKS}, 4096"]
    EY = correct(uY, ch, PT + 8, BI1) + [mark('b1dead'), ('gap', 16)] + mish(ACC_B, PT, sKS, "act2")
    EF = correct(uF, ch, PT + 8, BI2) + [('gap', 16)] + mish(ACC_C, PT, sSCRW, "act5")
    EQ = correct(uQ, ch, PT + 12) + phi_frags() + pack16(ACC_A, PK)
    EQ += [f"{MF} {R(PT,16)}, {R(PHI,4)}, {R(PK,4)}, 0", f"{MF} {R(ACC_B,16)}, {R(PHI+4,4)}, {R(PK+4,4)}, 0"] + fin_setup()
    EQ += softmax(PT, ACC_A, "v26", vT) + softmax(ACC_B, ACC_A + 8, "v26", vT)
    f1 = flag_store("act1", sFL, 0, 'f1'); f2 = flag_store("act2", sFL, 16, 'f2'); f3 = flag_store("act5", sFL, 3 * 16, 'f3')
    pr = lambda c: [bnm(0, c), bnm(1, c)]
    FG = ('gap', CFG['FG'])
    F = [('wait', 'c1')] + EU + [mark('m1'), touchB, ('wait', 'c2')] + split(EY, 0.6, f1) + [mark('m2')]
    if ch == 0: F += [('wait', 'c3')] + split(EF, 0.6, f2) + [mark('m3')]
    else: F += [FG, f2, mark('m3'), mark('f3')]
    m0 = pass0(s, ring, uU, ch, bl, "Y3", N("Y", 0, 2))
    mY = MSeg(ring, uY, ch, {4: [B(ring, "c1", N("Y", 2, 4), ["U3"])], 20: [B(ring, "d1", ["F0", "F1"], N("Y", 0, 2))]}, dma=CFG['ST'])
    c2 = B(ring, "c2", N("Q", 0, 2), N("Y", 2, 4), owner=1)
    mQ = MSeg(ring, uQ, ch, {4: [B(ring, "c3", N("Q", 2, 4) + pr(0), ["F0", "F1"])], 20: [B(ring, "d3", pr(1), N("Q", 0, 2) + pr(0))]},
              {7: [lambda s: (until(s, ring, F, 'b1dead'), drain(s, p2_setup(ring)))], 8: pull(ring, ch, 0)[:2], 10: pull(ring, ch, 0)[2:], 18: pull(ring, ch, 1)[:2], 20: pull(ring, ch, 1)[2:]}, dma=CFG['ST'])
    m0.run(s, mY)
    if ch == 0:
        mF = MSeg(ring, uF, ch, {4: [c2]}, dma=CFG['ST'] // 2)
        mY.run(s, mF, F, CFG['P1B']); mF.run(s, mQ, F, CFG['FB'])
    else:
        mY.run(s, None, F, CFG['P1B']); c2(s); vrun(s, ring, F, CFG['IB']); mQ.pre(s)
    print("   B forced m1:", until(s, ring, F, 'm1'))
    mQ.run(s, None, F, CFG['QB'][ch])
    KS, OD, OD2, OF, OP = WB, PT, ACC_B, PHI, PK
    def kvfetch(s):
        poll_check(s, sWs, sKVF, 0xffff, vPoll2)
        s.e(f"s_lshl_b32 s5, {sRT2}, 10\ns_add_u32 s5, s5, {sKVs}")
        s.e(f"buffer_load_dwordx4 {R(KS,4)}, {vA16}, {sWs}, s5 offen sc1")
        s.e(f"v_and_b32 v21, 3, v0\nv_lshlrev_b32 v21, 4, v21\ns_lshl_b32 s5, {sRT2}, 6\ns_add_u32 s5, s5, {sKVs}")
        s.e(f"buffer_load_dwordx4 {R(KS+4,4)}, v21, {sWs}, s5 offen offset:2048 sc1")
    IM = [f"v_cvt_pk_bf16_f32 v{KS}, v{KS}, v{KS+1}", f"v_cvt_pk_bf16_f32 v{KS+1}, v{KS+2}, v{KS+3}",
          f"v_cvt_pk_bf16_f32 v{KS+4}, v{KS+4}, v{KS+5}", f"v_cvt_pk_bf16_f32 v{KS+5}, v{KS+6}, v{KS+7}",
          blk(f"s_mul_i32 s5, {sKQ}, 1088\ns_add_u32 s5, s5, {SCR_KV}\ns_lshl_b32 s4, {sRT2}, 9\ns_add_u32 s4, s4, s5\nv_lshlrev_b32 v25, 3, v0\nv_add_u32 v25, s4, v25\n"
              f"ds_write_b64 v25, {R(KS,2)}\ns_lshl_b32 s4, {sRT2}, 5\ns_add_u32 s4, s4, s5\nv_lshrrev_b32 v21, 1, v21\nv_add_u32 v21, s4, v21\nds_write_b64 v21, {R(KS+4,2)} offset:1024"),
          f"v_min_u32 v25, 64, {vP4}", "v_lshlrev_b32 v25, 4, v25", "v_lshrrev_b32 v26, 5, v0", "v_lshl_add_u32 v25, v26, 5, v25",
          blk(f"v_add_u32 v25, {SCR_KV + ch*2176}, v25\ns_lshl_b32 s5, {sG}, 12\ns_add_u32 s5, s5, {sAF}\ns_add_u32 {sSCRW}, s5, {112*1024 + ch*2048}")]
    O = [f"ds_read_b128 {R(OF,4)}, v25", f"ds_read_b128 {R(OF+4,4)}, v25 offset:16", f"ds_read_b128 {R(OP,4)}, v25 offset:1088", f"ds_read_b128 {R(OP+4,4)}, v25 offset:1104"]
    O += [f"{MF} {R(OD,16)}, {R(OF,4)}, {R(ACC_A,4)}, 0", f"{MF} {R(OD,16)}, {R(OF+4,4)}, {R(ACC_A+4,4)}, {R(OD,16)}",
          f"{MF} {R(OD2,16)}, {R(OP,4)}, {R(ACC_A+8,4)}, 0", f"{MF} {R(OD2,16)}, {R(OP+4,4)}, {R(ACC_A+12,4)}, {R(OD2,16)}"]
    for h, D in enumerate((OD, OD2)):
        O += [f"v_add_f32 v26, 0x358637bd, v{D+8}", "v_rcp_f32 v26, v26"]
        for j in range(8): O.append(f"v_mul_f32 v{D+j}, v{D+j}, v26")
        for j in range(4): O.append(f"v_cvt_pk_bf16_f32 v{ACC_A+4*h+j}, v{D+2*j}, v{D+2*j+1}")
        O.append((f"buffer_store_dwordx4 {R(ACC_A+4*h,4)}, {vA16}, {sWs}, {sSCRW} offen offset:{h*1024} sc1", "o"))
    O.append(stamp('ost'))
    bar(s, ring, "e1", pr(2), N("Q", 2, 4) + pr(1), lg0=True, owner=1)
    def ins(L, back, item): return L[:len(L) - back] + [item] + L[len(L) - back:]
    F2 = pull(ring, ch, 2) + F + EQ
    if ch == 0: F2 = ins(F2, 150, f3)
    F2 = ins(F2, CFG['KP'], lambda s: poll_issue(s, sWs, sKVF, vPoll2))
    F2 = ins(F2, CFG['KP'] + 1, pollA)
    F2 = ins(F2, CFG['KF'], touchA(0, 0xff, "v25"))
    F2 = ins(F2, CFG['KF'], kvfetch)
    F2 += IM + [pollA]
    vrun(s, ring, F2, CFG['E1'][ch], 6)
    bar(s, ring, "e2", pr(3), pr(2), lg0=True, owner=1)
    F2 = pull(ring, ch, 3) + F2
    vrun(s, ring, F2, CFG['E2'][ch], 6)
    bar(s, ring, "e3", [], pr(3), lg0=True, owner=1)
    vrun(s, ring, F2, 999, 6)
    assert not F2
    bar(s, ring, "e4")
    drain(s, O)
    ev = {CFG['OW']: [flag_store("o", sFL, 4 * 16, 'fo')]}
    aphase(s, ring, ch, ev)
    return s

def build(path, listform=True):
    s0 = Stream("P")
    if PROFILE: s0.e("s_memtime s[96:97]")
    prologue(s0)
    s0.e(f"s_lshl_b32 s5, {sTY}, 1\ns_add_u32 s5, s5, {sCH}\ns_cmp_eq_u32 s5, 0\ns_cbranch_scc1 L_typeA0\ns_cmp_eq_u32 s5, 1\ns_cbranch_scc1 L_typeA1\ns_cmp_eq_u32 s5, 3\ns_cbranch_scc1 L_typeB1")
    B0 = stream_B(s0, 0); B1 = stream_B(s0, 1); A0 = stream_A(s0, 0); A1 = stream_A(s0, 1)
    assert B0.nbar == B1.nbar and A0.nbar == A1.nbar
    assert B0.slots == B1.slots and A0.slots == A1.slots
    hdr = open("recurrent_scan__linear_kernel_hedgehog__dense_activation_mish__prompt.s.ref").read().split("; Override")[0]
    T = [hdr.rstrip(), f"; @launch {'kernel=' + KNAME + ' ' if listform else ''}grid=(256,1,1) block=(512,1,1) lds=163840",
         '.amdgcn_target "amdgcn-amd-amdhsa--gfx950"', ".text", f".globl {KNAME}", ".p2align 8", f".type {KNAME},@function", f"{KNAME}:"]
    S = [s0, B0, B1, A0, A1]
    for st in S:
        T.append(f"; ---- stream {st.name}  nops={st.stats['nop']} waits={st.stats['wait']} barriers={st.nbar}")
        T.append(st.text())
    for st in S: T += st.ool
    T.append("L_end:\n  s_endpgm")
    T.append(".fill 6144, 4, 0xbf800000")
    T.append(f'''.section .rodata,"a"
.p2align 6
.amdhsa_kernel {KNAME}
  .amdhsa_next_free_vgpr 256
  .amdhsa_next_free_sgpr 102
  .amdhsa_accum_offset 256
  .amdhsa_group_segment_fixed_size 0
  .amdhsa_kernarg_size 88
  .amdhsa_user_sgpr_count 2
  .amdhsa_user_sgpr_kernarg_segment_ptr 1
  .amdhsa_system_sgpr_workgroup_id_x 1
.end_amdhsa_kernel''')
    open(path, "w").write("\n".join(T) + "\n")
    for st in S: print(st.name, "instrs", len(st.out), st.stats, "barriers", st.nbar)

if __name__ == "__main__":
    for a in sys.argv[2:]:
        if a == "prof": PROFILE = True
        elif '=' in a:
            k, v = a.split('='); CFG[k] = eval(v)
    build(sys.argv[1], listform=("final" not in sys.argv))
```

```python
import sys
sys.path.insert(0, 'gen')
from ab import *

KNAME = "recurrent_scan__linear_kernel_hedgehog__dense_activation_mish__prompt_kernel"
PROFILE = False
SLOT = 16384
SCR = 9 * SLOT
SCR_PHI = SCR
SCR_RS = SCR + 2048
SCR_ST = SCR + 2560
SCR_CS = SCR + 6656
SCR_Z = SCR + 10752
SCR_KV = SCR + 10752
Z_OFF = 0x900000
KV_OFF = Z_OFF
KVFLAG_OFF = Z_OFF + 0x11000
ACTFLAG_OFF = Z_OFF + 0x14000
PROF_OFF = 0xA00000
BIG = 0x40000000
CFG = dict(AD=16, A0=8, AN=2, BN=1, G8=1, F3G=1, PB=[(200, 40), (80, 55), (80, 40)], SLP=8, PL=4, S0=6, S1=4, PRIO=0, VD=10, KP=90, KF=30, OW=3, G16=8, G28=20, TV=12, TB=1, TBT=28, TA=0, TO=11, T0=0, T1=0, ROT=2, RATE=38, BURST=24576, ST=90,
    CRED=6, AGE=14, P1B=5, FB=5, QB=[10, 3], IB=200, KB=6, VB=15, KVG=60, EH0=60, FG=60, E1=[120, 100], E2=[100, 80])

sX, sWq, sW1, sW2, sWo, sPhi, sB1, sOut, sDbg, sWs = [f"s[{8+4*i}:{11+4*i}]" for i in range(10)]
sW, sRT, sCH, sI, sG, sTY, sRB, sCB, sKQ, sRT2 = [f"s{48+i}" for i in range(10)]
sT0 = "s3"
sC10, sC01, sC11 = "s58", "s59", "s60"
sM0W = "s61"; sSoW = "s62"
sUA, sUB, sUC, sUD = "s63", "s6", "s7", "s2"
sAF, sFL, sAF2, sFL2, sB2, sBo, sKVs, sKVF, sSCRW, sCNT, sKS, sBID = [f"s{64+i}" for i in range(12)]
sA2y, sA2s, sOo = "s0", "s1", "s5"
STAMP0 = 76

vA16 = "v1"; vDq = "v2"; vD1 = "v3"; vDB = "v4"; vD5 = "v5"
VW = 6
vRS, vRSL, vM2 = "v14", "v15", "v22"
CF = 16
BI0, BI1, BI2 = 23, 24, 25
vPoll = "v27"; vFO = "v28"; vOne = "v10"; vP4 = "v30"; vT = "v31"; vPoll2 = "v9"
ACC_A, ACC_B, ACC_C = 32, 48, 64
WB = 80; PT = 96; PHI = 112; PK = 120; XA = 128
XR = 64; XD = 72; HR = 112; STA = 96; CSB = 116; ASEL = 120; CSA = 124
sXb = "s86"; sRot = "s89"; ROT0 = 98

def R(b, n): return f"v[{b}:{b+n-1}]"
def ldsaddr(regs, byte): return regs[byte >> 16], byte & 0xffff
_nl = [0]
def label():
    _nl[0] += 1; return f"L{_nl[0]}"
def stamp(name):
    def f(s):
        if not PROFILE: return
        if not hasattr(s, 'snames'): s.snames = []
        idx = len(s.snames)
        if idx >= 63: return
        s.snames.append(str(name))
        s.e(f"s_memtime s[{STAMP0+2*(idx%4)}:{STAMP0+1+2*(idx%4)}]")
        if idx >= 2: s.raw(f"v_writelane_b32 v29, s{STAMP0+2*((idx-2)%4)}, {idx-2}")
    return f
def srd(s, dst, lo, hi, size):
    b = int(dst[2:dst.index(':')])
    s.e(f"s_mov_b32 s{b}, {lo}\ns_and_b32 s{b+1}, {hi}, 0xffff\ns_mov_b32 s{b+2}, {size}\ns_mov_b32 s{b+3}, 0x20000")
def poll_issue(s, srd_, soff, vp=vPoll):
    s.e(f"buffer_load_dword {vp}, {vP4}, {srd_}, {soff} offen sc1")
def poll_check(s, srd_, soff, mask, vp=vPoll):
    l1, l2, l3 = label(), label(), label()
    stamp(f"[p{mask:x}")(s)
    s.e(f"v_cmp_ne_u32 vcc, 0, {vp}\ns_andn2_b32 {sT0}, {mask:#x}, vcc_lo\ns_cbranch_scc1 {l1}\n{l2}:")
    stamp(f"p]")(s)
    s.ool.append(f"""{l1}:
  s_mov_b32 {sCNT}, 0x10000
{l3}:
  s_sleep {CFG['SLP']}
  buffer_load_dword {vp}, {vP4}, {srd_}, {soff} offen sc1
  s_waitcnt vmcnt(0)
  v_cmp_ne_u32 vcc, 0, {vp}
  s_nop 1
  s_andn2_b32 {sT0}, {mask:#x}, vcc_lo
  s_cbranch_scc0 {l2}
  s_sub_u32 {sCNT}, {sCNT}, 1
  s_cmp_lg_u32 {sCNT}, 0
  s_cbranch_scc1 {l3}
  s_branch {l2}""")
def flag_store(tagwait, soff, imm, mark):
    def f(s):
        stamp("(" + mark)(s)
        s.wait_tag(tagwait)
        stamp(mark + ")")(s)
        s.e(f"buffer_store_dword {vOne}, {vFO}, {sWs}, {soff} offen offset:{imm} sc1")
        s.marks[mark] = 1
    return f
def blk(text): return lambda s: s.e(text)

class Ring:
    hold = ()
    def __init__(self, items, free, ch):
        self.items = list(items); self.free = list(free); self.slot = {}; self.q = []; self.log = {}; self.ch = ch
        self.order = {it[0]: k for k, it in enumerate(items)}; self.xres = True
    def release(self, name):
        if name not in self.hold: self.free.append(self.slot[name])
    def assign(self, s, owner='all', upto=None, maxn=99):
        k = 0
        while k < len(self.items) and maxn > 0:
            it = self.items[k]; nm = it[0]
            if upto is not None and self.order[nm] > self.order[upto]: break
            if nm[0] == 'X':
                want = 2 * (int(nm[2]) & 1) + (nm[1] == 'H')
                ok = [x for x in self.free if x == want]
                if not ok: k += 1; continue
            elif nm[0] in 'BF': ok = [x for x in self.free if not (self.xres and x < 4)]
            else: ok = [x for x in self.free if x != 0 and not (self.xres and x < 4)]
            if not ok:
                if nm[0] != 'B': k += 1; continue
                break
            if nm[0] in 'BF' and 0 in ok: ok = [0]
            self.items.pop(k); sl = ok[0]; self.free.remove(sl); self.slot[nm] = sl; maxn -= 1
            self.log[nm] = [s.nbar, None, owner]
            if owner == 'all': self.q += [(it, sl, h, 0) for h in range(2)]
            elif owner == self.ch: self.q += [(it, sl, h, o) for o in range(2) for h in range(2)]
            if nm == 'XH3': self.xres = False
        self.q.sort(key=lambda e: self.order[e[0][0]])
    def pump(self, s, n=1):
        while n > 0 and self.q:
            it, sl, h, other = self.q.pop(0)
            name, srd_, voff, sbase, o0, o1, dl = it[:7]
            sg = (1 if self.ch == 0 else -1) * other
            vo = voff[h] if isinstance(voff, tuple) else voff
            s.e(f"s_add_u32 m0, {sM0W}, {(sl*SLOT + h*1024 + sg*8192) & 0xffffffff:#x}")
            if len(it) > 7:
                mul, cidx = it[7], it[8](self.ch if not other else 1 - self.ch)
                key = (sbase, mul, cidx)
                if self.rkey != key:
                    s.e(f"s_mul_i32 {sRot}, s{ROT0+cidx}, {mul}\ns_add_u32 {sRot}, {sRot}, {sbase}")
                    self.rkey = key
                sbase = sRot
            s.e(f"s_add_u32 {sSoW}, {sbase}, {((o0, o1)[h] + sg*dl) & 0xffffffff:#x}")
            s.e(f"buffer_load_dwordx4 {vo}, {srd_}, {sSoW} offen lds", tag=name)
            n -= 1
    rkey = None
    cred = 0
    def pace(self, s, cycles):
        self.cred = min(self.cred + cycles * CFG['RATE'], CFG['BURST'])
        while self.q:
            e = self.q[0]
            cost = (8192 if self.log[e[0][0]][2] == 'all' else 4096) * (2 if e[0][0][0] == 'F' else 1)
            if self.cred < cost: break
            self.cred -= cost; self.pump(s, 1)
    def need(self, s, name):
        assert name in self.slot, f"{name} has no slot yet"
        while any(e[0][0] == name for e in self.q):
            print("  warning: forced DMA issue for", name, "in", s.name)
            self.pump(s)
        if self.log[name][1] is None: self.log[name][1] = s.nbar
        s.wait_tag(name)
def x_items(q):
    return [(f"XL{q}", sX, (f"v{XD}", f"v{XD+1}"), sXb, 0, 0, 0, 256, lambda c: q), (f"XH{q}", sX, (f"v{XD}", f"v{XD+1}"), sXb, 65536, 65536, 0, 256, lambda c: q)]
def w_items(name, srd_, voff, sbase, stride):
    return [(f"{name}{c}", srd_, voff, sbase, 0, 8 * stride, 64 * stride, 128 * stride, lambda ch, c=c: c) for c in range(4)]
ORDER = [4, 5, 6, 7, 16, 17, 18, 19, 8, 9, 10, 11, 20, 21, 22, 23, 0, 1, 2, 3, 24, 25, 26, 27, 12, 13, 14, 15]
def b_item(hf, c):
    nm = f"B{'ab'[hf]}{c}"
    if c < 7:
        o = hf * 896 * 1024 + ORDER[4 * c] * 16384
        return (nm, sW2, vDB, sB2, o, o + 8192, 448 * 1024)
    o = hf * 256 * 1024 + (c - 7) * 65536
    return (nm, sWo, vDB, sBo, o, o + 8192, 128 * 1024)
def b_items(first):
    it = []
    for c in range(9): it += [b_item(0, c), b_item(1, c)]
    return it

def mish(acc, tmp, so, tag):
    F = []
    for hb in range(2):
        a = acc + 8 * hb
        for j in range(8): F.append(f"v_mul_f32 v{tmp+j}, v{a+j}, {vRSL}")
        for j in range(8): F.append(f"v_exp_f32 v{tmp+j}, v{tmp+j}")
        for j in range(8): F.append(f"v_add_f32 v{tmp+j}, 1.0, v{tmp+j}")
        for j in range(8): F.append(f"v_fma_f32 v{tmp+j}, v{tmp+j}, v{tmp+j}, 1.0")
        for j in range(8): F.append(f"v_rcp_f32 v{tmp+j}, v{tmp+j}")
        for j in range(8): F.append(f"v_fma_f32 v{tmp+j}, v{tmp+j}, {vM2}, {vRS}")
        for j in range(8): F.append(f"v_mul_f32 v{tmp+j}, v{a+j}, v{tmp+j}")
        for j in range(4): F.append(f"v_cvt_pk_bf16_f32 v{a+j}, v{tmp+2*j}, v{tmp+2*j+1}")
        F.append((f"buffer_store_dwordx4 {R(a,4)}, {vA16}, {sWs}, {so} offen offset:{hb*1024} sc1", tag))
    return F
def softmax(P, out, t0, t1):
    F = [f"v_max3_f32 {t0}, v{P}, v{P+1}, v{P+2}", f"v_max3_f32 {t1}, v{P+3}, v{P+4}, v{P+5}",
         f"v_max3_f32 {t0}, {t0}, v{P+6}, v{P+7}", f"v_max3_f32 {t1}, {t1}, v{P+8}, v{P+9}",
         f"v_max3_f32 {t0}, {t0}, v{P+10}, v{P+11}", f"v_max3_f32 {t1}, {t1}, v{P+12}, v{P+13}",
         f"v_max3_f32 {t0}, {t0}, v{P+14}, v{P+15}", f"v_max_f32 {t0}, {t0}, {t1}", f"v_mul_f32_e64 {t0}, -{t0}, {vRSL}"]
    for j in range(16): F.append(f"v_fma_f32 v{P+j}, v{P+j}, {vRSL}, {t0}")
    for j in range(16): F.append(f"v_exp_f32 v{P+j}, v{P+j}")
    F += [f"v_add_f32 {t0}, v{P}, v{P+1}", f"v_add_f32 {t1}, v{P+2}, v{P+3}"]
    for j in range(4, 16, 2):
        F += [f"v_add_f32 {t0}, {t0}, v{P+j}", f"v_add_f32 {t1}, {t1}, v{P+j+1}"]
    F += [f"v_add_f32 {t0}, {t0}, {t1}", f"v_rcp_f32 {t0}, {t0}"]
    for j in range(16): F.append(f"v_mul_f32 v{P+j}, v{P+j}, {t0}")
    for j in range(8): F.append(f"v_cvt_pk_bf16_f32 v{out+j}, v{P+2*j}, v{P+2*j+1}")
    return F
def pack16(acc, out): return [f"v_cvt_pk_bf16_f32 v{out+j}, v{acc+2*j}, v{acc+2*j+1}" for j in range(8)]
def phi_frags():
    F = ["v_bfe_u32 v25, v0, 2, 2", "v_lshrrev_b32 v26, 5, v0", "v_lshl_add_u32 v25, v26, 2, v25", "v_lshlrev_b32 v25, 5, v25",
         "v_bfe_u32 v26, v0, 4, 1", "v_lshl_add_u32 v25, v26, 4, v25", "v_bfe_u32 v26, v0, 1, 1", "v_lshl_add_u32 v25, v26, 3, v25",
         blk(f"s_lshl_b32 s4, {sCH}, 10\ns_add_u32 s4, s4, {SCR_PHI}\nv_add_u32 v25, s4, v25")]
    for h in range(2):
        for rd in range(2): F.append(f"ds_read_b64_tr_b16 {R(PHI+4*h+2*rd,2)}, v25 offset:{h*512 + rd*256}")
    F += ["v_bfe_u32 v26, v0, 2, 1", "v_mul_u32_u24 v26, 0x8000, v26", "v_lshl_or_b32 v26, v26, 16, v26"]
    for j in range(8): F.append(f"v_xor_b32 v{PHI+j}, v26, v{PHI+j}")
    return F

def prologue(s):
    s.e("s_load_dwordx2 s[64:65], s[0:1], 0\ns_load_dwordx2 s[84:85], s[0:1], 80")
    s.e("s_load_dwordx8 s[68:75], s[0:1], 8\ns_load_dwordx8 s[76:83], s[0:1], 40\ns_load_dwordx2 s[66:67], s[0:1], 72")
    s.e("s_cmp_ge_u32 s2, 256\ns_cbranch_scc1 L_end")
    s.e("v_lshrrev_b32 v2, 6, v0\nv_and_b32 v0, 63, v0")
    s.e(f"v_readfirstlane_b32 {sW}, v2")
    s.e("s_and_b32 s3, s2, 7\ns_lshr_b32 s4, s2, 3" if not CFG.get('BADMAP') else "s_lshr_b32 s3, s2, 5\ns_and_b32 s4, s2, 31")
    s.e(f"s_and_b32 s5, s3, 1\ns_lshl_b32 s5, s5, 3\ns_and_b32 {sI}, s4, 7\ns_add_u32 {sI}, {sI}, s5")
    s.e(f"s_lshr_b32 {sKQ}, {sW}, 1\ns_and_b32 {sRT2}, {sW}, 1\ns_lshl_b32 {sM0W}, {sW}, 11")
    s.e(f"s_and_b32 {sRT}, {sW}, 3\ns_lshr_b32 {sCH}, {sW}, 2")
    s.e(f"s_lshr_b32 s5, s3, 1\ns_lshl_b32 s5, s5, 2\ns_lshr_b32 s6, s4, 3\ns_add_u32 s5, s5, s6")
    s.e(f"s_lshr_b32 {sG}, s5, 1\ns_and_b32 {sTY}, s5, 1")
    s.e({0: f"s_mov_b32 s{ROT0}, 0", 1: f"s_add_u32 s{ROT0}, s5, {sI}", 2: f"s_lshr_b32 s{ROT0}, s3, 1\ns_lshl_b32 s{ROT0+1}, s3, 1\ns_add_u32 s{ROT0}, s{ROT0}, s{ROT0+1}"}[CFG['ROT']])
    for c in range(1, 4): s.e(f"s_add_u32 s{ROT0+c}, s{ROT0}, {c}\ns_and_b32 s{ROT0+c}, s{ROT0+c}, 3")
    s.e(f"s_and_b32 s{ROT0}, s{ROT0}, 3")
    s.e(f"s_lshl_b32 {sRB}, s3, 2\ns_add_u32 {sRB}, {sRB}, s6\ns_and_b32 {sCB}, s4, 7\ns_mov_b32 s87, s4")
    s.e(f"v_lshrrev_b32 v33, 4, v0\nv_and_b32 v34, 15, v0\ns_lshl_b32 s5, {sRT2}, 3")
    for h in range(2):
        s.e(f"v_add_u32 v35, {4*h}, v33\nv_add_u32 v36, s5, v35\nv_xor_b32 v36, v34, v36\nv_lshlrev_b32 v36, 4, v36\nv_lshl_add_u32 v{XD+h}, v35, 10, v36")
    s.e(f"s_lshl_b32 {sXb}, {sI}, 17\ns_lshl_b32 s5, {sW}, 13\ns_add_u32 {sXb}, {sXb}, s5")
    s.e("v_lshrrev_b32 v36, 3, v0\nv_and_b32 v37, 7, v0\nv_lshlrev_b32 v38, 1, v36\nv_and_b32 v38, 4, v38\nv_xor_b32 v37, v37, v38\nv_lshlrev_b32 v37, 4, v37")
    s.e(f"v_mul_u32_u24 {vDq}, 3072, v36\nv_add_u32 {vDq}, {vDq}, v37\nv_mul_u32_u24 {vD1}, 3584, v36\nv_add_u32 {vD1}, {vD1}, v37")
    s.e(f"v_lshl_add_u32 {vDB}, v36, 10, v37\nv_lshlrev_b32 {vA16}, 4, v0")
    s.raw("s_waitcnt lgkmcnt(0)")
    srd(s, sX, "s64", "s65", 2048 * 512 * 2)
    srd(s, sWq, "s68", "s69", 512 * 1536 * 2)
    srd(s, sW1, "s76", "s77", 512 * 1792 * 2)
    srd(s, sWs, "s84", "s85", 0x10000000)
    s.e("s_cmp_ge_u32 s2, 16\ns_cbranch_scc1 L_noinit")
    s.e("v_mov_b32 v40, 0\nv_mov_b32 v41, 0\nv_mov_b32 v42, 0\nv_mov_b32 v43, 0")
    s.e(f"s_lshl_b32 s5, s2, 13\ns_lshl_b32 s6, {sW}, 10\ns_add_u32 s5, s5, s6\ns_add_u32 s5, s5, {Z_OFF}")
    s.raw(f"buffer_store_dwordx4 v[40:43], {vA16}, {sWs}, s5 offen sc1")
    s.e("L_noinit:")
    s.e("s_mov_b32 s88, s2")

def prologue2(s):
    lab = label()
    s.e(f"s_cmp_lg_u32 {sW}, 7\ns_cbranch_scc1 {lab}")
    s.e(f"s_getpc_b64 s[90:91]\n{lab}x:\ns_sub_u32 s90, s90, {lab}x-{KNAME}\ns_subb_u32 s91, s91, 0\ns_mul_i32 s5, s87, 2560\nv_min_u32 v35, 19, v0\nv_lshlrev_b32 v35, 7, v35\nv_add_u32 v35, s5, v35")
    s.raw("global_load_dword v26, v35, s[90:91]")
    s.e(f"{lab}:")
    srd(s, sPhi, "s70", "s71", 32 * 512)
    srd(s, sB1, "s78", "s79", 1792 * 2)
    srd(s, sW2, "s80", "s81", 1792 * 512 * 2)
    srd(s, sWo, "s72", "s73", 512 * 512 * 2)
    srd(s, sOut, "s82", "s83", 2048 * 512 * 2)
    srd(s, sDbg, "s66", "s67", 256)
    s.e(f"s_mov_b32 {sBID}, s88\ns_mov_b32 {sC11}, 0x3f803f80")
    s.e(f"v_lshrrev_b32 v36, 2, v0\nv_and_b32 v37, 3, v0\nv_lshlrev_b32 v37, 4, v37\nv_mul_u32_u24 {vD5}, 3584, v36\nv_add_u32 {vD5}, {vD5}, v37")
    s.e(f"v_and_b32 {vP4}, 31, v0\nv_lshlrev_b32 {vP4}, 2, {vP4}")
    s.e(f"v_mov_b32 v29, 0\nv_mov_b32 {vFO}, {BIG}\nv_cmp_eq_u32 vcc, 0, v0\nv_cndmask_b32 {vFO}, {vFO}, 0, vcc")
    s.e("v_bfe_u32 v36, v0, 2, 2\nv_and_b32 v37, 3, v0\nv_bfe_u32 v38, v0, 4, 1\nv_lshrrev_b32 v39, 5, v0")
    s.e("v_lshlrev_b32 v40, 3, v37\nv_lshl_add_u32 v40, v38, 5, v40\nv_lshl_add_u32 v41, v39, 3, v36")
    s.e(f"v_lshrrev_b32 v42, 1, v36\nv_xor_b32 v42, {sCH}, v42\nv_lshlrev_b32 v42, 6, v42")
    s.e(f"v_lshl_add_u32 v43, v41, 7, v40\nv_add_u32 v43, v43, v42")
    for j in range(4):
        s.e(f"s_xor_b32 s5, {sRT}, {j}\ns_lshl_b32 s5, s5, 12\ns_add_u32 s5, s5, {SLOT}\nv_add_u32 v{VW+j}, s5, v43\nv_add_u32 v{VW+4+j}, 0x10000, v{VW+j}")
    s.e(f"v_and_b32 v44, 31, v0\ns_lshl_b32 s5, {sRT}, 5\nv_add_u32 v45, s5, v44\nv_xor_b32 v46, v39, v34\nv_lshlrev_b32 v46, 4, v46\nv_lshl_add_u32 v{XR}, v45, 8, v46")
    s.e(f"s_lshl_b32 s5, {sRT}, 6\nv_xor_b32 v{XR}, s5, v{XR}")
    for t in range(1, 8): s.e(f"v_xor_b32 v{XR+t}, {t<<5}, v{XR}")
    s.e(f"v_lshlrev_b32 v44, 2, v38\nv_cmp_eq_u32 vcc, v44, v34\nv_mov_b32 v44, {sC11}\nv_cndmask_b32 v{ASEL}, 0, v44, vcc")
    for j in range(1, 4): s.e(f"v_mov_b32 v{ASEL+j}, v{ASEL}")
    s.e(f"v_mov_b32 v{CF+4}, 0\nv_mov_b32 v{CF+5}, 0")
    s.e(f"s_lshl_b32 s3, {sI}, 2\ns_add_u32 s3, s3, {sRT}\ns_mul_i32 {sAF}, s3, {144*1024}")
    s.e(f"s_mul_i32 {sKS}, {sG}, {14*1024}\ns_add_u32 {sKS}, {sKS}, {sAF}")
    s.e(f"s_lshl_b32 {sFL}, s3, 9\ns_lshr_b32 s4, {sG}, 1\ns_lshl_b32 s4, s4, 7\ns_add_u32 {sFL}, {sFL}, s4")
    s.e(f"s_and_b32 s4, {sG}, 1\ns_lshl_b32 s4, s4, 3\ns_lshl_b32 s5, {sCH}, 2\ns_add_u32 s4, s4, s5\ns_add_u32 {sFL}, {sFL}, s4\ns_add_u32 {sFL}, {sFL}, {ACTFLAG_OFF}")
    s.e(f"s_lshl_b32 s3, {sRB}, 1\ns_add_u32 s3, s3, {sRT2}\ns_mul_i32 {sAF2}, s3, {144*1024}")
    s.e(f"s_lshl_b32 {sFL2}, s3, 9\ns_lshl_b32 s4, {sKQ}, 7\ns_add_u32 {sFL2}, {sFL2}, s4\ns_add_u32 {sFL2}, {sFL2}, {ACTFLAG_OFF}")
    s.e(f"s_mul_i32 {sB2}, {sCH}, {448*1024}\ns_lshl_b32 s4, {sRT}, 14\ns_lshl_b32 s5, {sCB}, 7\ns_add_u32 s4, s4, s5\ns_add_u32 {sB2}, {sB2}, s4")
    s.e(f"s_lshl_b32 {sBo}, {sCH}, 17\ns_add_u32 {sBo}, {sBo}, s4")
    s.e(f"s_lshl_b32 s3, {sG}, 2\ns_add_u32 s3, s3, {sKQ}\ns_mul_i32 {sKVs}, s3, 2176\ns_add_u32 {sKVs}, {sKVs}, {KV_OFF}")
    s.e(f"s_lshl_b32 s3, {sG}, 3\ns_add_u32 s3, s3, {sW}\ns_lshl_b32 {sKVF}, s3, 7\ns_add_u32 {sKVF}, {sKVF}, {KVFLAG_OFF}")
    s.e(f"s_mul_i32 s3, {sKQ}, {28*1024}\ns_add_u32 {sA2y}, {sAF2}, s3")
    s.e(f"s_lshl_b32 s3, {sKQ}, 13\ns_add_u32 {sA2s}, {sAF2}, s3\ns_add_u32 {sA2s}, {sA2s}, {112*1024}")
    s.e(f"v_lshrrev_b32 {vT}, 1, {vP4}")

def unit_bases(s, typ):
    s.e(f"s_mul_i32 s3, {sW}, {16*3072}\ns_lshl_b32 s4, {sG}, 7\ns_add_u32 s3, s3, s4")
    s.e(f"s_mul_i32 s4, {sG}, 448\ns_and_b32 s5, {sG}, 1\ns_cmp_eq_u32 s5, 0")
    if typ == 'A':
        s.e(f"s_cselect_b32 s5, 0, 320\ns_add_u32 s4, s4, s5")
        s.e(f"s_add_u32 {sUA}, s3, 1024\ns_add_u32 {sUB}, s3, 2048")
        s.e(f"s_mul_i32 {sUC}, {sW}, {16*3584}\ns_add_u32 {sUC}, {sUC}, s4")
        s.e(f"s_lshl_b32 s5, {sCH}, 6\ns_add_u32 s92, s4, s5")
        return [f"buffer_load_ushort v{BI0}, {vT}, {sB1}, s92 offen"]
    s.e(f"s_cselect_b32 s5, 128, 64\ns_cselect_b32 {sUD}, 384, 0")
    s.e(f"s_add_u32 s5, s4, s5\ns_add_u32 s92, s4, {sUD}\ns_mov_b32 {sUC}, s3")
    s.e(f"s_mul_i32 {sUA}, {sW}, {16*3584}\ns_add_u32 {sUA}, {sUA}, s5\ns_add_u32 {sUB}, {sUA}, 128")
    s.e(f"s_mul_i32 {sUD}, {sRT}, {32*3584}\ns_add_u32 {sUD}, {sUD}, s92")
    s.e(f"s_lshl_b32 s3, {sCH}, 6\ns_add_u32 s93, s5, s3")
    return [f"buffer_load_ushort v{BI2}, {vT}, {sB1}, s92 offen", f"buffer_load_ushort v{BI0}, {vT}, {sB1}, s93 offen",
            f"buffer_load_ushort v{BI1}, {vT}, {sB1}, s93 offen offset:128"]

def start(s, ring, biasloads):
    ring.assign(s, upto=ring.upto0)
    if CFG['T0'] == 1: touch_all(s, ['x', 'q', 'w1'])
    ring.pump(s, CFG['S0'])
    if CFG['T0'] == 2: touch_all(s, ['x', 'q', 'w1'])
    prologue2(s)
    ring.pump(s, CFG['S1'])
    if CFG['T1']: touch_all(s, ['w2', 'wo'])
def touch_all(s, which):
    specs = dict(x=(sX, 64, 4), q=(sWq, 48, 5), w1=(sW1, 56, 6), w2=(sW2, 56, 4), wo=(sWo, 16, 5))
    for nm in which:
        srd_, nl, wv = specs[nm]
        lab = label()
        s.e(f"s_cmp_lg_u32 {sW}, {wv}\ns_cbranch_scc1 {lab}")
        s.e(f"v_min_u32 v47, {nl-1}, v0\nv_lshlrev_b32 v47, 7, v47\ns_mul_i32 s5, s88, {nl*128}\ns_mov_b32 m0, {SCR + 15360}\ns_nop 0")
        s.raw(f"buffer_load_dword v47, {srd_}, s5 offen lds")
        s.e(f"{lab}:")
def late_loads(biasloads):
    def f(s):
        s.e(f"v_lshrrev_b32 {vT}, 1, {vP4}")
        for x in biasloads: s.e(x)
        s.e(f"s_lshl_b32 s3, {sG}, 11\ns_lshl_b32 s4, {sRT2}, 10\ns_add_u32 s3, s3, s4\ns_add_u32 m0, s4, {SCR_PHI}")
        s.e(f"buffer_load_dwordx4 {vA16}, {sPhi}, s3 offen lds", tag="phi")
    return f

MF = "v_mfma_f32_32x32x16_bf16"
def bar(s, ring, name, needs=(), rel=(), owner='all', lg0=False, upto=None, extra=(), maxn=99):
    if CFG.get('SB'): stamp("<" + name)(s)
    for n in needs: ring.need(s, n)
    if lg0: s.wait(lg=0)
    s.wait_dswrites()
    s.e("s_barrier")
    stamp(name)(s)
    s.marks[name] = 1
    for n in rel: ring.release(n)
    ring.free += list(extra)
    ring.assign(s, owner, upto, maxn)
def B(ring, *a, **k): return lambda s: bar(s, ring, *a, **k)

class MSeg:
    def __init__(self, ring, u, ch, events=None, posts=None, xpass=False, dma=0):
        self.ring, self.u, self.ch, self.ev, self.posts, self.xp, self.dma = ring, u, ch, events or {}, posts or {}, xpass, dma
        self.nr = 0; self.hs = None
    def reads(self, s, t):
        u, ring = self.u, self.ring
        for e in self.ev.get(t, []): e(s)
        c, p = t // 8, t % 8
        if self.xp:
            for x in {0: (0, 1), 1: (2, 3, 4), 2: (5, 6, 7)}.get(p, ()):
                s.e(f"ds_read_b128 {R(XA+32*c+4*x,4)}, v{XR+x} offset:{(c&1)*32768}")
        it = f"{u['name']}{c}" if u['kind'] == 'w' else f"{u['name']}{c//2}"
        assert ring.log[it][1] is not None, f"{it} read before certified"
        sl = ring.slot[it]; buf = WB + 4 * (t % 4)
        if u['kind'] == 'h5' and self.hs != sl:
            if self.hs is None:
                s.e("v_bfe_u32 v116, v0, 2, 2\nv_lshrrev_b32 v117, 5, v0\nv_lshl_add_u32 v116, v117, 3, v116\nv_lshlrev_b32 v116, 6, v116\nv_bfe_u32 v117, v0, 4, 1\nv_lshl_add_u32 v116, v117, 5, v116\nv_and_b32 v117, 3, v0\nv_lshl_add_u32 v116, v117, 3, v116")
                for j in range(4): s.e(f"s_xor_b32 s3, {sRT}, {j}\ns_lshl_b32 s3, s3, 11\ns_add_u32 s3, s3, {sl*SLOT}\nv_add_u32 v{HR+j}, s3, v116")
            else:
                for j in range(4): s.e(f"v_add_u32 v{HR+j}, {((sl-self.hs)*SLOT) & 0xffffffff:#x}, v{HR+j}")
            self.hs = sl
        for k in range(2):
            if u['kind'] == 'w':
                w = 0 if sl <= 4 else 1
                r, off = f"v{VW+4*w+p//2}", (sl - 1 - 4 * w) * SLOT + (p & 1) * 2048 + k * 512
            else: r, off = f"v{HR+p//2}", (c % 2) * 8192 + (p & 1) * 1024 + k * 256
            s.e(f"ds_read_b64_tr_b16 {R(buf+2*k,2)}, {r} offset:{off}")
    def pre(self, s, n=3):
        while self.nr < n: self.reads(s, self.nr); self.nr += 1
    def run(self, s, nxt=None, F=None, budget=0):
        u = self.u; ch = self.ch
        credit = 0
        if CFG['PRIO'] and not self.xp: s.e("s_setprio 1")
        self.pre(s)
        for t in range(32):
            c, p = t // 8, t % 8
            buf = WB + 4 * (t % 4)
            cin = R(u['acc'], 16) if t > 0 else "0"
            a, b = (R(buf, 4), R(XA + 4 * t, 4)) if u['trans'] else (R(XA + 4 * t, 4), R(buf, 4))
            s.e(f"{MF} {R(u['acc'],16)}, {a}, {b}, {cin}")
            if p < 2: s.e(f"v_mfma_f32_16x16x32_bf16 {R(CSA,4)}, {R(ASEL,4)}, {R(buf,4)}, {R(CSA,4) if t > 0 else '0'}")
            if self.nr < 32: self.reads(s, self.nr); self.nr += 1
            elif nxt is not None: nxt.pre(s, t - 28)
            if self.xp and t < 25: self.ring.pump(s, 1)
            elif self.xp: self.ring.pace(s, CFG['ST'])
            elif self.dma: self.ring.pace(s, self.dma)
            if t == 27:
                s.e(f"s_lshl_b32 s3, {sRT}, 2\ns_add_u32 s3, s3, {SCR_CS + u['csi']*2048 + ch*1024}\nv_add_u32 v{CSA+1}, s3, {vA16}\nds_write_b32 v{CSA+1}, v{CSA}")
            if self.xp and p in (1, 3):
                for x in ((ch, ch + 2) if p == 1 else (ch + 4, ch + 6)):
                    for j in range(4):
                        r = XA + 32 * c + 4 * x + j
                        first = (c == 0 and p == 1 and x == ch and j < 2)
                        s.e(f"v_dot2_f32_bf16 v{STA+(j&1)}, v{r}, {sC11}, {'0' if first else f'v{STA+(j&1)}'}")
                        s.e(f"v_dot2_f32_bf16 v{STA+2+(j&1)}, v{r}, v{r}, {'0' if first else f'v{STA+2+(j&1)}'}")
                if t == 27:
                    q = f"v{STA+2}"
                    s.e(f"v_add_f32 v{STA}, v{STA}, v{STA+1}\nv_add_f32 v{STA+1}, v{STA+2}, v{STA+3}\nv_lshrrev_b32 {q}, 5, v0\nv_lshlrev_b32 {q}, 3, {q}\n"
                        f"v_lshl_add_u32 {q}, {vP4}, 3, {q}\ns_lshl_b32 s3, {sRT}, 10\ns_add_u32 s3, s3, {SCR_ST + ch*16}\nv_add_u32 {q}, s3, {q}\nds_write_b64 {q}, {R(STA,2)}")
            for e in self.posts.get(t, []): e(s)
            if F is not None: credit = fill(s, F, (budget(t) if callable(budget) else budget) + min(credit, CFG['CRED']))
        if CFG['PRIO'] and not self.xp: s.e("s_setprio 0")

def fill(s, F, budget, force=False):
    while budget > 0 and F:
        f = F[0]
        if isinstance(f, tuple) and f[0] == 'wait':
            if f[1] in s.marks: F.pop(0); continue
            return 0
        if isinstance(f, tuple) and f[0] == 'nextbar': f = F[0] = ('barge', s.nbar + 1)
        if isinstance(f, tuple) and f[0] == 'barge':
            if s.nbar >= f[1]: F.pop(0); continue
            return 0
        if isinstance(f, tuple) and f[0] == 'hold':
            if f[1] <= 0 or budget <= 1: F.pop(0); continue
            F[0] = ('hold', f[1] - 1); return 0
        if isinstance(f, tuple) and f[0] == 'gap':
            f = F[0] = ('until', s.n_issued + f[1])
        if isinstance(f, tuple) and f[0] == 'until':
            if s.n_issued >= f[1] or force: F.pop(0); continue
            return 0
        if callable(f):
            F.pop(0); n0 = s.n_issued; f(s); budget -= max(1, (s.n_issued - n0) * 0.5); continue
        txt, tag = (f if isinstance(f, tuple) else (f, None))
        need, age = s.cost(txt)
        if not force and (need > 1 or (age is not None and age < CFG['AGE'])): return budget
        F.pop(0); s.e(txt, tag)
        k = I(txt).kind
        budget -= 2 if k == 'trans' else (0.5 if k in ('salu', 'ds', 'vm') else 1)
    return 0
def until(s, ring, F, name, every=None):
    n = 0
    while name not in s.marks:
        assert F, name
        l = len(F); fill(s, F, 1, force=True)
        assert len(F) < l, ("stuck", F[0], name, s.name)
        n += 1
        ring.pace(s, 9)
    return n
def vrun(s, ring, F, slots, every=None, flush=True):
    every = every or CFG['VD']
    while slots > 0 and F:
        l = len(F); fill(s, F, min(every, slots), force=True); slots -= every
        ring.pace(s, 9 * every)
        if len(F) == l: break
    if flush: ring.pump(s, 99)

def vseg(s, ring, F, every=None, flush=True):
    every = every or CFG['VD']
    n = 0
    for f in F:
        if isinstance(f, tuple) and f[0] in ('after', 'skip', 'wait', 'gap', 'until'): continue
        drain(s, [f]); n += 1
        ring.pace(s, 10)
    if flush: ring.pump(s, 99)
def split(F, frac, item):
    k = int(len(F) * frac)
    return F[:k] + [item] + F[k:]

def pass0(s, ring, u, ch, bl, nextname, nextneed):
    ev = {}
    for c in range(4):
        def b0(s, c=c):
            if c == 3: s.wait_tag("phi")
            bar(s, ring, f"b0{c}", [f"{u['name']}{c}", f"XL{c}", f"XH{c}"], [f"{u['name']}{c-1}"] if c else [], lg0=True, upto=nextname)
            if c == 0:
                lab = label()
                s.e(f"s_cmp_ge_u32 {sBID}, 16\ns_cbranch_scc1 {lab}\ns_cmp_lg_u32 {sW}, 0\ns_cbranch_scc1 {lab}\ns_lshl_b32 s3, {sBID}, 2")
                s.raw(f"buffer_store_dword {vOne}, {vFO}, {sDbg}, s3 offen offset:64 sc1")
                s.e(f"{lab}:")
        def bx(s, c=c):
            s.wait_regs([f"v{r}" for r in range(XA + 32 * c, XA + 32 * c + 32)])
            bar(s, ring, f"bx{c}", nextneed if c == 3 else [], [f"XL{c}", f"XH{c}"], upto=(nextname if c < 3 else None))
        ev[8 * c] = [b0]; ev[8 * c + 4] = [bx]
    return MSeg(ring, u, ch, ev, {6: [late_loads(bl)], 24: [lambda s: poll_issue(s, sDbg, "0")], CFG['TBT']: [lambda s: touchB(s)]}, xpass=True, dma=1)

def stats_fin(T):
    F = [blk(f"s_lshl_b32 s4, {sRT}, 10\ns_add_u32 s4, s4, {SCR_ST}\nv_lshlrev_b32 {vT}, 3, {vP4}\nv_add_u32 {vT}, s4, {vT}"),
         f"ds_read_b128 {R(T,4)}, {vT}", f"ds_read_b128 {R(T+4,4)}, {vT} offset:16",
         blk(f"s_lshl_b32 s4, {sRT}, 7\ns_add_u32 s4, s4, {SCR_RS}\nv_add_u32 {vT}, s4, {vP4}\nv_cmp_gt_u32 s[94:95], 32, v0")]
    a, b = f"v{T}", f"v{T+1}"
    F += [f"v_add_f32 {a}, {a}, v{T+2}", f"v_add_f32 {b}, {b}, v{T+3}", f"v_add_f32 v{T+4}, v{T+4}, v{T+6}", f"v_add_f32 v{T+5}, v{T+5}, v{T+7}",
          f"v_add_f32 {a}, {a}, v{T+4}", f"v_add_f32 {b}, {b}, v{T+5}", f"v_mul_f32 {a}, 0xbb000000, {a}", f"v_mul_f32 {b}, 0x3b000000, {b}",
          f"v_fma_f32 {b}, -{a}, {a}, {b}", f"v_max_f32 {b}, 0, {b}", f"v_cvt_pk_bf16_f32 {b}, {b}, {b}", f"v_lshlrev_b32 {b}, 16, {b}",
          f"v_add_f32 {b}, 0x3727c5ac, {b}", f"v_cvt_pk_bf16_f32 {b}, {b}, {b}", f"v_lshlrev_b32 {b}, 16, {b}", f"v_sqrt_f32 {b}, {b}",
          f"v_cvt_pk_bf16_f32 {b}, {b}, {a}", f"v_lshlrev_b32 {vRS}, 16, {b}", f"v_rcp_f32 {vRS}, {vRS}",
          f"v_cndmask_b32 v{CF+2}, 0, {b}, s[94:95]", f"v_lshrrev_b32 v{CF+3}, 16, v{CF+2}",
          f"v_mul_f32 {vRSL}, 0x3fb8aa3b, {vRS}", f"v_mul_f32 {vM2}, -2.0, {vRS}", f"ds_write_b32 {vT}, {vRS}"]
    return F
def correct(u, ch, T, bias=None):
    F = [f"v_lshlrev_b32 v{T}, 2, {vP4}", f"v_add_u32 v{T}, {SCR_CS + u['csi']*2048 + ch*1024}, v{T}", f"ds_read_b128 {R(T,4)}, v{T}",
         f"v_add_f32 v{T}, v{T}, v{T+1}", f"v_add_f32 v{T+2}, v{T+2}, v{T+3}", f"v_add_f32 v{T}, v{T}, v{T+2}",
         f"v_cvt_pk_bf16_f32 v{T+1}, v{T}, v{T}", f"v_and_b32 v{CF}, 0xffff0000, v{T+1}", f"v_sub_f32 v{T}, v{T}, v{CF}", f"v_cvt_pk_bf16_f32 v{CF+1}, v{T}, v{T}"]
    if bias is not None: F.append(f"v_or_b32 v{CF}, v{CF}, v{bias}")
    a, b = (R(CF, 4), R(CF + 2, 4)) if u['trans'] else (R(CF + 2, 4), R(CF, 4))
    F.append(f"{MF} {R(u['acc'],16)}, {a}, {b}, {R(u['acc'],16)}")
    return F

def mark(name): return lambda s: s.marks.__setitem__(name, 1)
YA = [192, 208]; SA = [32, 48]
vB0, vB1 = "v5", "v24"
XW = ["v6", "v7", "v8"]; XRD = ["v11", "v12", "v13"]
LB = 128
NR = 8
def breg(t): return XA + 8 * t if t < NR else LB + 8 * (t % 2)
def bnm(ch, c): return f"B{'ab'[ch]}{c}"
def bread(ring, ch, t):
    def f(s):
        nm = bnm(ch, t // 4)
        assert ring.log[nm][1] is not None, f"{nm} read before certified"
        sl = ring.slot[nm]
        if ring.bsl != sl:
            d = ((sl - ring.bsl) * SLOT) & 0xffffffff
            s.e(f"v_add_u32 {vB0}, {d:#x}, {vB0}\nv_add_u32 {vB1}, {d:#x}, {vB1}")
            ring.bsl = sl
        for ct, r in enumerate((vB0, vB1)):
            for k in range(2):
                s.e(f"ds_read_b64_tr_b16 {R(breg(t) + 4*ct + 2*k, 2)}, {r} offset:{(t%4)*2048 + k*1024}")
    return f
def pull(ring, ch, c): return [bread(ring, ch, 4 * c + k) for k in range(4)]
def p2_setup(ring):
    def chk(s):
        assert not any(x[0][0] == 'F' for x in ring.items) and not any(x[0][0][0] == 'F' for x in ring.q)
        ring.bsl = 0
    return [chk, f"v_bfe_u32 {vB0}, v0, 2, 2", f"v_lshrrev_b32 {vB1}, 5, v0", f"v_lshl_add_u32 {vB0}, {vB1}, 2, {vB0}", f"v_lshlrev_b32 {vB0}, 7, {vB0}",
     f"v_bfe_u32 {vB1}, v0, 3, 1", f"v_lshl_add_u32 {vB0}, {vB1}, 6, {vB0}", f"v_bfe_u32 {vB1}, v0, 4, 1", f"v_lshl_add_u32 {vB0}, {vB1}, 5, {vB0}",
     f"v_and_b32 {vB1}, 3, v0", f"v_lshl_add_u32 {vB0}, {vB1}, 3, {vB0}", blk(f"s_and_b32 s3, {sKQ}, 1\ns_lshl_b32 s3, s3, 13\nv_add_u32 {vB0}, s3, {vB0}"), f"v_xor_b32 {vB1}, 64, {vB0}"]

def xwrite(s, acc2, slots, own, ch):
    l1, l2 = label(), label()
    s.e("s_nop 7")
    s.e(f"s_bitcmp1_b32 {sKQ}, 0\ns_cbranch_scc1 {l1}")
    for kq in (2 * ch, 2 * ch + 1):
        if kq & 1: s.raw(f"{l1}:")
        s.raw("s_nop 1")
        for d in range(4):
            src = acc2[d >> 1] + 8 * (d & 1)
            if d == kq: continue
            idx = (kq - d - 1) % 4
            for h in range(2):
                r, off = ldsaddr(XW, slots[idx] * SLOT + d * 4096 + h * 1024)
                s.raw(f"ds_write_b128 {r}, {R(src+4*h,4)} offset:{off}")
        src = acc2[kq >> 1] + 8 * (kq & 1)
        for j in range(8): s.raw(f"v_mov_b32 v{own+j}, v{src+j}")
        if not kq & 1: s.raw(f"s_branch {l2}")
    s.raw(f"{l2}:")
    for _ in range(6): s.lg.append((set(), None))
def xread(slots, own, tmp):
    F = []
    for i in range(3):
        for h in range(2):
            r, off = ldsaddr(XRD, slots[i] * SLOT + h * 1024)
            F.append(f"ds_read_b128 {R(tmp+8*i+4*h,4)}, {r} offset:{off}")
    G = []
    for i in range(3):
        for j in range(8): G.append(f"v_add_f32 v{own+j}, v{own+j}, v{tmp+8*i+j}")
    return F, G
def fin_setup():
    return [blk(f"s_lshl_b32 {sUC}, {sRB}, 16\ns_lshl_b32 s4, {sRT2}, 15\ns_add_u32 {sUC}, {sUC}, s4\ns_lshl_b32 s4, {sCB}, 7\ns_add_u32 {sUC}, {sUC}, s4\ns_lshl_b32 s4, {sKQ}, 5\ns_add_u32 {sUC}, {sUC}, s4"),
            f"v_lshlrev_b32 v20, 8, {vP4}", "v_lshrrev_b32 v21, 5, v0", "v_lshl_add_u32 v20, v21, 4, v20",
            f"buffer_load_dwordx4 v[16:19], v20, {sX}, {sUC} offen",
            blk(f"s_lshl_b32 s4, {sRT2}, 11\nv_add_u32 v6, s4, {vA16}"), "v_add_u32 v7, 0x10000, v6", "v_add_u32 v8, 0x20000, v6",
            blk(f"s_lshl_b32 s4, {sKQ}, 12\nv_add_u32 v11, s4, v6\nv_add_u32 v12, s4, v7\nv_add_u32 v13, s4, v8")]

def aphase(s, ring, ch, F, budget):
    groups = {0: (0x0f, ['f1'], -1), 8: (0xf0, ['f2'], CFG['G8']), 16: (0x5f00, ['f3'], CFG['G16']), 28: (0xf0000, ['fo'], CFG['G28'])}
    pr = lambda c: [bnm(0, c), bnm(1, c)]
    bars = {8: (pr(2) + pr(3), []), 12: ([], pr(2)), 16: (pr(4) + pr(5), pr(3)), 20: ([], pr(4)), 24: (pr(6) + pr(7), pr(5)), 30: (pr(8), pr(6))}
    pool = list(range(224, 256, 4)); areg = {}; issue = {}
    nxt = 0; AD = CFG['AD']
    for i in range(-1, 36):
        if i >= 0:
            pool.append(areg[i])
            if 2 <= i <= 7: pool += [XA + 8 * i, XA + 8 * i + 4]
        n = 0
        while nxt < 36 and pool and nxt - (i + 1) < AD and n < (CFG['A0'] if i < 0 else CFG['AN']):
            if nxt in groups and i < groups[nxt][2]: break
            areg[nxt] = pool.pop(0); issue[nxt] = i; nxt += 1; n += 1
    if ch == 0: print("   A issue:", [issue[t] for t in range(36)])
    posts = {}
    last = -1
    for t in range(36):
        at = issue[t]
        if t in groups:
            mask, req, _ = groups[t]
            def chk(s, mask=mask, req=req, t=t):
                for r in req:
                    n = until(s, ring, F, r)
                    if n: print("   forced", n, "fillers for", r, "in", s.name)
                poll_check(s, sWs, sFL2, mask)
            if t: posts.setdefault(max(at - CFG['PL'], last), []).append(lambda s: poll_issue(s, sWs, sFL2))
            posts.setdefault(at, []).append(chk); last = at
        base, off = (sA2y, ORDER[t] * 1024) if t < 28 else (sA2s, (t - 28) * 1024)
        posts.setdefault(at, []).append(blk(f"s_add_u32 {sSoW}, {base}, {off & ~4095}\nbuffer_load_dwordx4 {R(areg[t],4)}, {vA16}, {sWs}, {sSoW} offen offset:{off & 4095} sc1"))
    OWNY = 112; OWNS = 120; XT = 64
    V = []
    for t in range(-1, 36):
        if t >= 0:
            for ct in range(2):
                acc = (YA if t < 28 else SA)[ct]
                cin = "0" if t in (0, 28) else R(acc, 16)
                s.e(f"{MF} {R(acc,16)}, {R(breg(t)+4*ct,4)}, {R(areg[t],4)}, {cin}")
        if t + 1 in bars: bar(s, ring, f"a{t+1}", bars[t + 1][0], bars[t + 1][1], lg0=True)
        if NR <= t + 1 < 36: bread(ring, ch, t + 1)(s)
        for e in posts.get(t, []): e(s)
        ring.pump(s, CFG['BN'])
        fill(s, F, budget[0] if t < 0 else budget[1], force=True)
        if t == 26: assert not F, F
        if t == 27:
            stamp('yend')(s)
            ys = [ring.free.pop(0) for _ in range(3)]
            xwrite(s, YA, ys, OWNY, ch)
            drain(s, ["v_permlane32_swap_b32 v16, v18", "v_permlane32_swap_b32 v17, v19"])
            for j in range(4): drain(s, [f"v_lshlrev_b32 v{XT+24+2*j}, 16, v{16+j}", f"v_and_b32 v{XT+25+2*j}, 0xffff0000, v{16+j}"])
        if t == 29:
            rdl, V = xread(ys, OWNY, XT)
            drain(s, rdl)
            for j in range(8): V.append(f"v_mul_f32 v{XT+j}, 0xbfb8aa3b, v{OWNY+j}")
            for j in range(8): V.append(f"v_exp_f32 v{XT+j}, v{XT+j}")
            for j in range(8): V.append(f"v_add_f32 v{XT+j}, 1.0, v{XT+j}")
            for j in range(8): V.append(f"v_rcp_f32 v{XT+j}, v{XT+j}")
            for j in range(8): V.append(f"v_mul_f32 v{OWNY+j}, v{OWNY+j}, v{XT+j}")
        if 30 <= t < 35:
            drain(s, V[:CFG['TV']]); V = V[CFG['TV']:]
    stamp('send')(s)
    ss = [ring.free.pop(0) for _ in range(2)] + [9]
    xwrite(s, SA, ss, OWNS, ch)
    drain(s, V)
    s.wait(lg=0); s.e("s_barrier")
    rdl, V = xread(ss, OWNS, XT)
    drain(s, rdl + V)
    for j in range(8): s.e(f"v_fma_f32 v{OWNS+j}, v{OWNS+j}, v{OWNY+j}, v{XT+24+j}")
    for j in range(4): s.e(f"v_cvt_pk_bf16_f32 v{16+j}, v{OWNS+2*j}, v{OWNS+2*j+1}")
    s.e("v_permlane32_swap_b32 v16, v18\nv_permlane32_swap_b32 v17, v19")
    s.e(f"buffer_store_dwordx4 v[16:19], v20, {sOut}, {sUC} offen")
    stamp('st')(s)
    if PROFILE:
        s.raw("s_waitcnt vmcnt(0) lgkmcnt(0)")
        stamp("end")(s)
        s.raw("s_waitcnt lgkmcnt(0)")
        n = len(s.snames)
        for i in (n - 2, n - 1): s.raw(f"v_writelane_b32 v29, s{STAMP0+2*(i%4)}, {i}")
        s.e(f"v_subrev_u32 v29, s96, v29\nv_lshlrev_b32 v16, 2, v0")
        s.e(f"s_lshl_b32 s3, {sBID}, 11\ns_lshl_b32 s4, {sW}, 8\ns_add_u32 s3, s3, s4\ns_add_u32 s3, s3, {PROF_OFF}")
        s.e(f"buffer_store_dword v29, v16, {sWs}, s3 offen")
        if CFG.get('DBG') is not None:
            lab = label()
            s.e(f"s_cmp_lg_u32 {sBID}, {CFG['DBG']}\ns_cbranch_scc1 {lab}\ns_cmp_lg_u32 {sW}, 0\ns_cbranch_scc1 {lab}")
            idx = list(range(n - 1, -1, -3))[:16][::-1]
            for k, i in enumerate(idx):
                s.raw(f"v_readlane_b32 s4, v29, {i}\ns_nop 1\nv_mov_b32 v17, s4\nbuffer_store_dword v17, {vFO}, {sDbg}, 0 offen offset:{4*k}\ns_nop 1")
            s.e(f"{lab}:")
            if s.name in ('A0', 'B0'): print("DBG", s.name, [s.snames[i] for i in idx])
        open(f"snames_{s.name}.txt", "w").write(" ".join(s.snames))
    s.e("s_endpgm")
    s.slots = (dict(ring.slot), ys, ss)
    print("   ring", s.name, " ".join(f"{k}:{v[0]}>{v[1]}" for k, v in ring.log.items()))

SCR_DUM = SCR + 15360
def touchB(s):
    if not CFG['TB']: return
    s.e(f"s_lshl_b32 s4, {sBID}, 3\ns_add_u32 s4, s4, {sW}\ns_mul_i32 s5, s4, 896\ns_lshl_b32 s4, s4, 8\ns_mov_b32 m0, {SCR_DUM}")
    s.e(f"v_min_u32 {vT}, 6, v0\nv_lshlrev_b32 {vT}, 7, {vT}")
    s.e(f"buffer_load_dword {vT}, {sW2}, s5 offen lds")
    s.e(f"v_min_u32 {vT}, 1, v0\nv_lshlrev_b32 {vT}, 7, {vT}")
    s.e(f"buffer_load_dword {vT}, {sWo}, s4 offen lds")
def touchA(grp, mask, T):
    def f(s):
        if not CFG['TA']: return
        lab = label()
        if grp == 0: s.e(f"v_min_u32 {T}, 15, v0\nv_lshrrev_b32 v21, 3, {T}\nv_lshl_add_u32 {T}, v21, 2, {T}\nv_add_u32 {T}, 4, {T}")
        elif grp == 1: s.e(f"v_min_u32 {T}, 11, v0\nv_lshrrev_b32 v21, 2, {T}\nv_lshl_add_u32 {T}, v21, 3, {T}")
        else: s.e(f"v_min_u32 {T}, 7, v0")
        s.e(f"v_lshlrev_b32 {T}, 10, {T}\ns_lshl_b32 s4, {sCB}, 7\ns_add_u32 s4, s4, {sA2y if grp < 2 else sA2s}\ns_mov_b32 m0, {SCR_DUM}")
        s.e(f"v_cmp_ne_u32 vcc, 0, {vPoll}\ns_andn2_b32 {sT0}, {mask:#x}, vcc_lo\ns_cbranch_scc1 {lab}")
        s.raw(f"buffer_load_dword {T}, {sWs}, s4 offen sc1 lds")
        s.e(f"{lab}:")
    return f

def ilv(st, co):
    out = st[:3] + co[:3] + [st[3]]
    a, b = st[4:], co[3:-1]
    while a or b:
        if a: out.append(a.pop(0))
        if a and len(a) > 2 * len(b): out.append(a.pop(0))
        if b: out.append(b.pop(0))
    return out + co[-1:]
def p0_items(a, b):
    it = []
    for c in range(4): it += x_items(c) + [a[c]]
    return it + b
def packin(acc): return [f"v_cvt_pk_bf16_f32 v{acc+j}, v{acc+2*j}, v{acc+2*j+1}" for j in range(8)]
def N(n, lo, hi): return [f"{n}{c}" for c in range(lo, hi)]
initchk = lambda s: poll_check(s, sDbg, "0", 0xffff0000)
pollA = lambda s: poll_issue(s, sWs, sFL2)

def stream_A(s0, ch):
    s = s0.fork(f"A{ch}"); s.e(f"L_typeA{ch}:")
    bl = unit_bases(s, 'A')
    items = p0_items(w_items("K", sWq, vDq, sUA, 3072), w_items("V", sWq, vDq, sUB, 3072)) + w_items("H", sW1, vD1, sUC, 3584) + b_items(0)
    ring = Ring(items, range(9), ch); ring.hold = ('XL3', 'XH3'); ring.upto0 = "V3"
    start(s, ring, bl)
    s.e(f"s_lshl_b32 {sSCRW}, {sW}, 12\ns_add_u32 {sSCRW}, {sSCRW}, {2*SLOT}")
    s.marks.update(f1=1, f2=1, fo=1)
    uK = dict(name="K", acc=ACC_A, trans=True, kind='w', csi=0)
    uV = dict(name="V", acc=ACC_B, trans=False, kind='w', csi=1)
    uH = dict(name="H", acc=ACC_C, trans=True, kind='w', csi=0)
    F = [('wait', 'c1')] + ilv(stats_fin(PT), correct(uK, ch, PT + 8))
    F += [f"v_lshlrev_b32 v25, 4, {vP4}", "v_lshrrev_b32 v26, 5, v0", "v_lshl_add_u32 v25, v26, 5, v25", f"v_add_u32 v25, {sSCRW}, v25", initchk]
    F += packin(ACC_A)
    for h in range(2):
        F += [f"{MF} {R(PT,16)}, {R(PHI+4*h,4)}, {R(ACC_A+4*h,4)}, 0", ('gap', 16)]
        F += softmax(PT, ACC_A + 8, "v26", vT)
        F += [f"ds_write_b128 v25, {R(ACC_A+8,4)} offset:{2048*h}", f"ds_write_b128 v25, {R(ACC_A+12,4)} offset:{2048*h+16}"]
    F += [('wait', 'c2')] + correct(uV, ch, PT + 12)
    F += ["v_lshrrev_b32 v26, 5, v0", "v_lshlrev_b32 v26, 4, v26", blk(f"s_lshl_b32 s4, {sRT}, 7\ns_add_u32 s4, s4, {SCR_RS}\nv_add_u32 {vT}, s4, v26")]
    for q in range(4): F.append(f"ds_read_b128 {R(PT+4*q,4)}, {vT} offset:{32*q}")
    F += ["v_bfe_u32 v25, v0, 2, 2", "v_lshlrev_b32 v25, 6, v25", "v_lshl_add_u32 v25, v26, 4, v25", f"v_bfe_u32 {vT}, v0, 4, 1",
          f"v_lshl_add_u32 v25, {vT}, 5, v25", f"v_cmp_eq_u32 s[94:95], 1, {vT}", f"v_and_b32 {vT}, 3, v0", f"v_lshl_add_u32 v25, {vT}, 3, v25",
          f"v_add_u32 v25, {sSCRW}, v25", f"v_mov_b32 {vT}, {sC11}"]
    for t in range(2):
        for rd in range(2): F.append(f"ds_read_b64_tr_b16 {R(PHI+4*t+2*rd,2)}, v25 offset:{2048 + t*1024 + rd*512}")
    for r in range(16): F.append(f"v_mul_f32 v{ACC_B+r}, v{ACC_B+r}, v{PT+r}")
    F += packin(ACC_B)
    for t in range(2):
        for rd in range(2): F.append(f"ds_read_b64_tr_b16 {R(ACC_B+8+4*t+2*rd,2)}, v25 offset:{t*1024 + rd*512}")
    for j in range(8): F.append(f"v_cndmask_b32 v{ACC_A+8+j}, {vT}, v{ACC_B+j}, s[94:95]")
    for j in range(8): F.append(f"v_cndmask_b32 v{ACC_A+j}, v{ACC_B+j}, {vT}, s[94:95]")
    F += [f"{MF} {R(PT,16)}, {R(ACC_A,4)}, {R(ACC_B+8,4)}, 0", f"{MF} {R(PT,16)}, {R(ACC_A+4,4)}, {R(ACC_B+12,4)}, {R(PT,16)}",
          f"{MF} {R(ACC_B,16)}, {R(ACC_A+8,4)}, {R(PHI,4)}, 0", f"{MF} {R(ACC_B,16)}, {R(ACC_A+12,4)}, {R(PHI+4,4)}, {R(ACC_B,16)}"]
    F += [f"v_add_u32 v25, {sSCRW}, {vA16}", blk(f"s_lshl_b32 s4, {sW}, 9\ns_add_u32 s4, s4, {SCR_Z}\nv_lshlrev_b32 v26, 2, v0\nv_add_u32 v26, s4, v26")]
    F += [f"ds_write_b128 v25, {R(PT,4)}", f"ds_write_b128 v25, {R(PT+4,4)} offset:1024", f"ds_write_b32 v26, v{PT+8}",
          f"ds_write_b128 v25, {R(ACC_B+8,4)} offset:2048", f"ds_write_b128 v25, {R(ACC_B+12,4)} offset:3072", f"ds_write_b32 v26, v{ACC_B} offset:256"]
    F += [blk(f"s_lshl_b32 s4, {sRT}, 10\ns_add_u32 s4, s4, {2*SLOT + ch*SLOT}\nv_add_u32 v25, s4, {vA16}"),
          blk(f"s_lshr_b32 s4, {sRT}, 1\ns_lshl_b32 s4, s4, 8\ns_add_u32 s4, s4, {SCR_Z + ch*2048}\nv_add_u32 v26, s4, {vP4}"), mark('kvw')]
    ER = [f"ds_read_b128 {R(PT+4*r,4)}, v25 offset:{r*4096}" for r in range(4)] + [f"ds_read_b32 v{ACC_A+r}, v26 offset:{r*512}" for r in range(4)]
    ER += ["v_lshrrev_b32 v25, 5, v0", f"v_lshl_add_u32 v25, v25, 9, {vP4}", blk(f"s_lshl_b32 s5, {sRT2}, 10\nv_add_u32 v25, s5, v25"),
           f"v_lshrrev_b32 {vT}, 4, v0", f"v_cmp_eq_u32 s[94:95], {sRT2}, {vT}", f"v_mov_b32 {vT}, {BIG}",
           blk(f"s_and_b32 s5, {sG}, 1\ns_mul_i32 s5, s5, {10*1024}\ns_add_u32 s5, s5, {ch*2048}\ns_add_u32 {sUD}, {sKS}, s5\ns_lshl_b32 s4, {sI}, 2\ns_add_u32 {sKVF}, {sKVF}, s4"),
           f"v_cndmask_b32 v26, {vT}, {vP4}, s[94:95]"]
    for j in range(4): ER += [f"v_add_f32 v{PT+j}, v{PT+j}, v{PT+4+j}", f"v_add_f32 v{PT+8+j}, v{PT+8+j}, v{PT+12+j}"]
    for j in range(4): ER.append(f"v_add_f32 v{PT+j}, v{PT+j}, v{PT+8+j}")
    ER += [f"v_add_f32 v{ACC_A}, v{ACC_A}, v{ACC_A+1}", f"v_add_f32 v{ACC_A+2}, v{ACC_A+2}, v{ACC_A+3}", f"v_add_f32 v{ACC_A}, v{ACC_A}, v{ACC_A+2}"]
    for j in range(4): ER.append((f"buffer_atomic_add_f32 v{PT+j}, v25, {sWs}, {sKVs} offen offset:{j*128}", "kv"))
    ER += [(f"buffer_atomic_add_f32 v{ACC_A}, v26, {sWs}, {sKVs} offen offset:2048", "kv"), stamp('kvat')]
    EH = correct(uH, ch, PHI, BI0) + fin_setup() + mish(ACC_C, PT + 8, sUD, "actA")
    fkv = flag_store("kv", sKVF, 0, 'fkv'); f3 = flag_store("actA", sFL, 2 * 16, 'f3')
    pr = lambda c: [bnm(0, c), bnm(1, c)]
    m0 = pass0(s, ring, uK, ch, bl, "V3", N("V", 0, 2))
    mV = MSeg(ring, uV, ch, {4: [B(ring, "c1", N("V", 2, 4), ["K3"])], 20: [B(ring, "d1", N("H", 0, 2), N("V", 0, 2))]}, dma=CFG['ST'])
    F += [('wait', 'd2')] + ER + [mark('kvd'), ('gap', CFG['KVG']), fkv]
    def d2(s):
        print("   A forced before d2:", until(s, ring, F, 'kvw'))
        bar(s, ring, "d2", pr(0), N("H", 0, 2))
    mH = MSeg(ring, uH, ch, {4: [B(ring, "c2", N("H", 2, 4), N("V", 2, 4))], 20: [d2]},
              {22: [lambda s: drain(s, p2_setup(ring))], 24: pull(ring, ch, 0)[:2], 26: pull(ring, ch, 0)[2:] + [pollA]}, dma=CFG['ST'])
    m0.posts.setdefault(29, []).append(lambda s: drain(s, phi_frags()))
    m0.run(s, mV); mV.run(s, mH, F, CFG['KB']); mH.run(s, None, F, lambda t: CFG['VB'])
    print("   A forced kvd:", until(s, ring, F, 'kvd')); ring.pump(s, 99)
    bar(s, ring, "e1", pr(1), N("H", 2, 4) + pr(0), lg0=True, extra=[2, 3])
    drain(s, pull(ring, ch, 1))
    F = EH[:40] + F + [B(ring, "e2", [], pr(1), lg0=True)] + EH[40:] + [('hold', CFG['F3G']), f3]
    aphase(s, ring, ch, F, CFG['PB'][0])
    return s

def stream_B(s0, ch):
    s = s0.fork(f"B{ch}"); s.e(f"L_typeB{ch}:")
    bl = unit_bases(s, 'B')
    H5 = [(f"F{c}", sW1, vD5, sUD, 0, 16 * 3584, 0, 128 * 3584, lambda hf, c=c: 2 * c + hf) for c in range(2)]
    items = p0_items(w_items("U", sW1, vD1, sUA, 3584), w_items("Y", sW1, vD1, sUB, 3584)) + H5 + w_items("Q", sWq, vDq, sUC, 3072) + b_items(1)
    ring = Ring(items, range(9), ch); ring.upto0 = "Y3"
    start(s, ring, bl)
    s.e(f"s_and_b32 s5, {sG}, 1\ns_cmp_eq_u32 s5, 0\ns_cselect_b32 s5, 4, 2\ns_cselect_b32 s4, {12*1024}, 0\ns_lshl_b32 s5, s5, 10\n"
        f"s_add_u32 {sSCRW}, {sKS}, s4\ns_add_u32 s5, s5, {ch*2048}\ns_add_u32 {sKS}, {sKS}, s5")
    uU = dict(name="U", acc=ACC_A, trans=True, kind='w', csi=0)
    uY = dict(name="Y", acc=ACC_B, trans=True, kind='w', csi=1)
    uF = dict(name="F", acc=ACC_C, trans=True, kind='h5', csi=0)
    uQ = dict(name="Q", acc=ACC_A, trans=True, kind='w', csi=1)
    EU = ilv(stats_fin(PT), correct(uU, ch, PT + 8, BI0)) + [initchk, ('gap', 10)] + mish(ACC_A, PT, sKS, "act1") + [f"s_add_u32 {sKS}, {sKS}, 4096"]
    EY = correct(uY, ch, PT + 8, BI1) + [mark('b1dead'), ('gap', 16)] + mish(ACC_B, PT, sKS, "act2")
    EF = correct(uF, ch, PT + 8, BI2) + [('gap', 16)] + mish(ACC_C, PT, sSCRW, "act5")
    EQ = correct(uQ, ch, PT + 12) + phi_frags() + pack16(ACC_A, PK)
    EQ += [f"{MF} {R(PT,16)}, {R(PHI,4)}, {R(PK,4)}, 0", f"{MF} {R(ACC_B,16)}, {R(PHI+4,4)}, {R(PK+4,4)}, 0"] + fin_setup()
    EQ += softmax(PT, ACC_A, "v26", vT) + softmax(ACC_B, ACC_A + 8, "v26", vT)
    f1 = flag_store("act1", sFL, 0, 'f1'); f2 = flag_store("act2", sFL, 16, 'f2'); f3 = flag_store("act5", sFL, 3 * 16, 'f3')
    pr = lambda c: [bnm(0, c), bnm(1, c)]
    FG = ('gap', CFG['FG'])
    F = [('wait', 'c1')] + EU + [mark('m1'), ('wait', 'c2')] + split(EY, 0.6, f1) + [mark('m2')]
    if ch == 0: F += [('wait', 'c3')] + split(EF, 0.6, f2) + [mark('m3')]
    else: F += [FG, f2, mark('m3'), mark('f3')]
    m0 = pass0(s, ring, uU, ch, bl, "Y3", N("Y", 0, 2))
    mY = MSeg(ring, uY, ch, {4: [B(ring, "c1", N("Y", 2, 4), ["U3"])], 20: [B(ring, "d1", ["F0", "F1"], N("Y", 0, 2))]}, dma=CFG['ST'])
    c2 = B(ring, "c2", N("Q", 0, 2), N("Y", 2, 4), owner=1)
    mQ = MSeg(ring, uQ, ch, {4: [B(ring, "c3", N("Q", 2, 4) + pr(0), ["F0", "F1"])], 20: [B(ring, "d3", pr(1), N("Q", 0, 2) + pr(0))]},
              {7: [lambda s: (until(s, ring, F, 'b1dead'), drain(s, p2_setup(ring)))], 8: pull(ring, ch, 0)[:2], 10: pull(ring, ch, 0)[2:], 18: pull(ring, ch, 1)[:2], 20: pull(ring, ch, 1)[2:], 24: [pollA]}, dma=CFG['ST'])
    m0.run(s, mY)
    if ch == 0:
        mF = MSeg(ring, uF, ch, {4: [c2]}, dma=CFG['ST'] // 2)
        mY.run(s, mF, F, CFG['P1B']); mF.run(s, mQ, F, CFG['FB'])
    else:
        mY.run(s, None, F, CFG['P1B']); c2(s); vrun(s, ring, F, CFG['IB']); mQ.pre(s)
    print("   B forced m1:", until(s, ring, F, 'm1'))
    mQ.run(s, None, F, CFG['QB'][ch])
    KS, OD, OD2, OF, OP = WB, PT, ACC_B, PHI, PK
    def kvfetch(s):
        poll_check(s, sWs, sKVF, 0xffff, vPoll2)
        s.e(f"s_lshl_b32 s5, {sRT2}, 10\ns_add_u32 s5, s5, {sKVs}")
        s.e(f"buffer_load_dwordx4 {R(KS,4)}, {vA16}, {sWs}, s5 offen sc1")
        s.e(f"v_and_b32 v21, 3, v0\nv_lshlrev_b32 v21, 4, v21\ns_lshl_b32 s5, {sRT2}, 6\ns_add_u32 s5, s5, {sKVs}")
        s.e(f"buffer_load_dwordx4 {R(KS+4,4)}, v21, {sWs}, s5 offen offset:2048 sc1")
    IM = [f"v_cvt_pk_bf16_f32 v{KS}, v{KS}, v{KS+1}", f"v_cvt_pk_bf16_f32 v{KS+1}, v{KS+2}, v{KS+3}",
          f"v_cvt_pk_bf16_f32 v{KS+4}, v{KS+4}, v{KS+5}", f"v_cvt_pk_bf16_f32 v{KS+5}, v{KS+6}, v{KS+7}",
          blk(f"s_mul_i32 s5, {sKQ}, 1088\ns_add_u32 s5, s5, {SCR_KV}\ns_lshl_b32 s4, {sRT2}, 9\ns_add_u32 s4, s4, s5\nv_lshlrev_b32 v25, 3, v0\nv_add_u32 v25, s4, v25\n"
              f"ds_write_b64 v25, {R(KS,2)}\ns_lshl_b32 s4, {sRT2}, 5\ns_add_u32 s4, s4, s5\nv_lshrrev_b32 v21, 1, v21\nv_add_u32 v21, s4, v21\nds_write_b64 v21, {R(KS+4,2)} offset:1024"),
          f"v_min_u32 v25, 64, {vP4}", "v_lshlrev_b32 v25, 4, v25", "v_lshrrev_b32 v26, 5, v0", "v_lshl_add_u32 v25, v26, 5, v25",
          blk(f"v_add_u32 v25, {SCR_KV + ch*2176}, v25\ns_lshl_b32 s5, {sG}, 12\ns_add_u32 s5, s5, {sAF}\ns_add_u32 {sSCRW}, s5, {112*1024 + ch*2048}")]
    O = [f"ds_read_b128 {R(OF,4)}, v25", f"ds_read_b128 {R(OF+4,4)}, v25 offset:16", f"ds_read_b128 {R(OP,4)}, v25 offset:1088", f"ds_read_b128 {R(OP+4,4)}, v25 offset:1104"]
    O += [f"{MF} {R(OD,16)}, {R(OF,4)}, {R(ACC_A,4)}, 0", f"{MF} {R(OD,16)}, {R(OF+4,4)}, {R(ACC_A+4,4)}, {R(OD,16)}",
          f"{MF} {R(OD2,16)}, {R(OP,4)}, {R(ACC_A+8,4)}, 0", f"{MF} {R(OD2,16)}, {R(OP+4,4)}, {R(ACC_A+12,4)}, {R(OD2,16)}"]
    for h, D in enumerate((OD, OD2)):
        O += [f"v_add_f32 v26, 0x358637bd, v{D+8}", "v_rcp_f32 v26, v26"]
        for j in range(8): O.append(f"v_mul_f32 v{D+j}, v{D+j}, v26")
        for j in range(4): O.append(f"v_cvt_pk_bf16_f32 v{ACC_A+4*h+j}, v{D+2*j}, v{D+2*j+1}")
        O.append((f"buffer_store_dwordx4 {R(ACC_A+4*h,4)}, {vA16}, {sWs}, {sSCRW} offen offset:{h*1024} sc1", "o"))
    O.append(stamp('ost'))
    bar(s, ring, "e1", [], N("Q", 2, 4) + pr(1), lg0=True)
    def ins(L, back, item): return L[:len(L) - back] + [item] + L[len(L) - back:]
    F2 = F + EQ
    if ch == 0: F2 = ins(F2, 150, f3)
    F2 = ins(F2, CFG['KP'], lambda s: poll_issue(s, sWs, sKVF, vPoll2))
    F2 = ins(F2, CFG['KF'], kvfetch)
    F2 += IM + [('nextbar',)] + O + [('hold', CFG['OW']), flag_store("o", sFL, 4 * 16, 'fo')]
    aphase(s, ring, ch, F2, CFG['PB'][1 + ch])
    return s

def build(path, listform=True):
    s0 = Stream("P")
    if PROFILE: s0.e("s_memtime s[96:97]")
    prologue(s0)
    s0.e(f"s_lshl_b32 s5, {sTY}, 1\ns_add_u32 s5, s5, {sCH}\ns_cmp_eq_u32 s5, 0\ns_cbranch_scc1 L_typeA0\ns_cmp_eq_u32 s5, 1\ns_cbranch_scc1 L_typeA1\ns_cmp_eq_u32 s5, 3\ns_cbranch_scc1 L_typeB1")
    B0 = stream_B(s0, 0); B1 = stream_B(s0, 1); A0 = stream_A(s0, 0); A1 = stream_A(s0, 1)
    assert B0.nbar == B1.nbar and A0.nbar == A1.nbar
    assert B0.slots == B1.slots and A0.slots == A1.slots
    hdr = open("recurrent_scan__linear_kernel_hedgehog__dense_activation_mish__prompt.s.ref").read().split("; Override")[0]
    T = [hdr.rstrip(), f"; @launch {'kernel=' + KNAME + ' ' if listform else ''}grid=(256,1,1) block=(512,1,1) lds=163840",
         '.amdgcn_target "amdgcn-amd-amdhsa--gfx950"', ".text", f".globl {KNAME}", ".p2align 8", f".type {KNAME},@function", f"{KNAME}:"]
    S = [s0, B0, B1, A0, A1]
    for st in S:
        T.append(f"; ---- stream {st.name}  nops={st.stats['nop']} waits={st.stats['wait']} barriers={st.nbar}")
        T.append(st.text())
    for st in S: T += st.ool
    T.append("L_end:\n  s_endpgm")
    T.append(".fill 6144, 4, 0xbf800000")
    T.append(f'''.section .rodata,"a"
.p2align 6
.amdhsa_kernel {KNAME}
  .amdhsa_next_free_vgpr 256
  .amdhsa_next_free_sgpr 102
  .amdhsa_accum_offset 256
  .amdhsa_group_segment_fixed_size 0
  .amdhsa_kernarg_size 88
  .amdhsa_user_sgpr_count 2
  .amdhsa_user_sgpr_kernarg_segment_ptr 1
  .amdhsa_system_sgpr_workgroup_id_x 1
.end_amdhsa_kernel''')
    open(path, "w").write("\n".join(T) + "\n")
    for st in S: print(st.name, "instrs", len(st.out), st.stats, "barriers", st.nbar)

if __name__ == "__main__":
    for a in sys.argv[2:]:
        if a == "prof": PROFILE = True
        elif '=' in a:
            k, v = a.split('='); CFG[k] = eval(v)
    build(sys.argv[1], listform=("final" not in sys.argv))
```

```python
import sys
sys.path.insert(0, 'gen')
from ab import *

KNAME = "recurrent_scan__linear_kernel_hedgehog__dense_activation_mish__prompt_kernel"
PROFILE = False
SLOT = 16384
SCR = 9 * SLOT
SCR_PHI = SCR
SCR_RS = SCR + 2048
SCR_ST = SCR + 2560
SCR_CS = SCR + 6656
SCR_Z = SCR + 10752
SCR_KV = SCR + 10752
Z_OFF = 0x900000
KV_OFF = Z_OFF
KVFLAG_OFF = Z_OFF + 0x11000
ACTFLAG_OFF = Z_OFF + 0x16000
PROF_OFF = 0xA00000
BIG = 0x40000000
CFG = dict(AD=16, A0=8, AN=2, BN=1, G8=1, F3G=900, PB=[(200, 40), (80, 55), (80, 40)], SLP=8, TAP=8, TAT=20, TAD=2, CB=6, DB=22, TW=1, TWT=2, GT=[2000, 4000, 5500, 500], TOFF=-1000, LT=200, LT2=200, QD2=800, LAT=900, QD=800, PLT=1500, BL=6, VC=9, T2=0, T2AT=[30, 35, 40, 45, 50, 55, 60, 66, 72], PF=3, PL=4, S0=6, S1=4, PRIO=0, VD=10, KP=90, KF=30, OW=900, G16=8, G28=20, TV=12, TB=1, TBT=28, TA=0, TO=11, T0=0, T1=0, ROT=2, RATE=38, BURST=24576, ST=90,
    CRED=6, AGE=14, P1B=5, FB=5, QB=[10, 3], IB=200, KB=6, VB=15, KVG=60, EH0=60, FG=60, E1=[120, 100], E2=[100, 80])

sX, sWq, sW1, sW2, sWo, sPhi, sB1, sOut, sDbg, sWs = [f"s[{8+4*i}:{11+4*i}]" for i in range(10)]
sW, sRT, sCH, sI, sG, sTY, sRB, sCB, sKQ, sRT2 = [f"s{48+i}" for i in range(10)]
sT0 = "s3"
sC10, sC01, sC11 = "s58", "s59", "s60"
sM0W = "s61"; sSoW = "s62"
sUA, sUB, sUC, sUD = "s63", "s6", "s7", "s2"
sAF, sFL, sAF2, sFL2, sB2, sBo, sKVs, sKVF, sSCRW, sCNT, sKS, sBID = [f"s{64+i}" for i in range(12)]
sA2y, sA2s, sOo = "s0", "s1", "s5"
STAMP0 = 76

vA16 = "v1"; vDq = "v2"; vD1 = "v3"; vDB = "v4"; vD5 = "v5"
VW = 6
vRS, vRSL, vM2 = "v14", "v15", "v22"
CF = 16
BI0, BI1, BI2 = 23, 24, 25
vPoll = "v27"; vFO = "v28"; vOne = "v10"; vP4 = "v30"; vT = "v31"; vPoll2 = "v9"
ACC_A, ACC_B, ACC_C = 32, 48, 64
WB = 80; PT = 96; PHI = 112; PK = 120; XA = 128
XR = 64; XD = 72; HR = 112; STA = 96; CSB = 116; ASEL = 120; CSA = 124
sXb = "s86"; sRot = "s89"; ROT0 = 98

def R(b, n): return f"v[{b}:{b+n-1}]"
def ldsaddr(regs, byte): return regs[byte >> 16], byte & 0xffff
_nl = [0]
def label():
    _nl[0] += 1; return f"L{_nl[0]}"
def stamp(name):
    def f(s):
        if not PROFILE: return
        if not hasattr(s, 'snames'): s.snames = []
        idx = len(s.snames)
        if idx >= 63: return
        s.snames.append(str(name))
        s.e(f"s_memtime s[{STAMP0+2*(idx%4)}:{STAMP0+1+2*(idx%4)}]")
        if idx >= 2: s.raw(f"v_writelane_b32 v29, s{STAMP0+2*((idx-2)%4)}, {idx-2}")
    return f
def srd(s, dst, lo, hi, size):
    b = int(dst[2:dst.index(':')])
    s.e(f"s_mov_b32 s{b}, {lo}\ns_and_b32 s{b+1}, {hi}, 0xffff\ns_mov_b32 s{b+2}, {size}\ns_mov_b32 s{b+3}, 0x20000")
def poll_issue(s, srd_, soff, vp=vPoll, imm=0, vo=vP4):
    s.e(f"buffer_load_dword {vp}, {vo}, {srd_}, {soff} offen offset:{imm} sc1")
def poll_check(s, srd_, soff, mask, vp=vPoll, imm=0, vo=vP4):
    l1, l2, l3 = label(), label(), label()
    stamp(f"[p{imm//128}_{mask:x}")(s)
    s.e(f"v_cmp_ne_u32 vcc, 0, {vp}\ns_andn2_b32 {sT0}, {mask:#x}, vcc_lo\ns_cbranch_scc1 {l1}\n{l2}:")
    stamp(f"p]")(s)
    s.ool.append(f"""{l1}:
  s_mov_b32 {sCNT}, 0x10000
{l3}:
  s_sleep {CFG['SLP']}
  buffer_load_dword {vp}, {vo}, {srd_}, {soff} offen offset:{imm} sc1
  s_waitcnt vmcnt(0)
  v_cmp_ne_u32 vcc, 0, {vp}
  s_nop 1
  s_andn2_b32 {sT0}, {mask:#x}, vcc_lo
  s_cbranch_scc0 {l2}
  s_sub_u32 {sCNT}, {sCNT}, 1
  s_cmp_lg_u32 {sCNT}, 0
  s_cbranch_scc1 {l3}
  s_branch {l2}""")
def flag_store(tagwait, soff, imm, mark):
    def f(s):
        stamp("(" + mark)(s)
        s.wait_tag(tagwait)
        stamp(mark + ")")(s)
        s.e(f"buffer_store_dword {vOne}, {vFO}, {sWs}, {soff} offen offset:{imm} sc1")
        s.marks[mark] = 1
    return f
def blk(text): return lambda s: s.e(text)

class Ring:
    hold = ()
    def __init__(self, items, free, ch):
        self.items = list(items); self.free = list(free); self.slot = {}; self.q = []; self.log = {}; self.ch = ch
        self.order = {it[0]: k for k, it in enumerate(items)}; self.xres = True
    def release(self, name):
        if name not in self.hold: self.free.append(self.slot[name])
    def assign(self, s, owner='all', upto=None, maxn=99):
        k = 0
        while k < len(self.items) and maxn > 0:
            it = self.items[k]; nm = it[0]
            if upto is not None and self.order[nm] > self.order[upto]: break
            if nm[0] == 'X':
                want = 2 * (int(nm[2]) & 1) + (nm[1] == 'H')
                ok = [x for x in self.free if x == want]
                if not ok: k += 1; continue
            elif nm[0] in 'BF': ok = [x for x in self.free if not (self.xres and x < 4)]
            else: ok = [x for x in self.free if x != 0 and not (self.xres and x < 4)]
            if not ok:
                if nm[0] != 'B': k += 1; continue
                break
            if nm[0] in 'BF' and 0 in ok: ok = [0]
            self.items.pop(k); sl = ok[0]; self.free.remove(sl); self.slot[nm] = sl; maxn -= 1
            self.log[nm] = [s.nbar, None, owner]
            if owner == 'all': self.q += [(it, sl, h, 0) for h in range(2)]
            elif owner == self.ch: self.q += [(it, sl, h, o) for o in range(2) for h in range(2)]
            if nm == 'XH3': self.xres = False
        self.q.sort(key=lambda e: self.order[e[0][0]])
    def pump(self, s, n=1):
        while n > 0 and self.q:
            it, sl, h, other = self.q.pop(0)
            name, srd_, voff, sbase, o0, o1, dl = it[:7]
            sg = (1 if self.ch == 0 else -1) * other
            vo = voff[h] if isinstance(voff, tuple) else voff
            s.e(f"s_add_u32 m0, {sM0W}, {(sl*SLOT + h*1024 + sg*8192) & 0xffffffff:#x}")
            if len(it) > 7:
                mul, cidx = it[7], it[8](self.ch if not other else 1 - self.ch)
                key = (sbase, mul, cidx)
                if self.rkey != key:
                    s.e(f"s_mul_i32 {sRot}, s{ROT0+cidx}, {mul}\ns_add_u32 {sRot}, {sRot}, {sbase}")
                    self.rkey = key
                sbase = sRot
            s.e(f"s_add_u32 {sSoW}, {sbase}, {((o0, o1)[h] + sg*dl) & 0xffffffff:#x}")
            s.e(f"buffer_load_dwordx4 {vo}, {srd_}, {sSoW} offen lds", tag=name)
            n -= 1
    rkey = None
    cred = 0
    def pace(self, s, cycles):
        self.cred = min(self.cred + cycles * CFG['RATE'], CFG['BURST'])
        while self.q:
            e = self.q[0]
            cost = (8192 if self.log[e[0][0]][2] == 'all' else 4096) * (2 if e[0][0][0] == 'F' else 1)
            if self.cred < cost: break
            self.cred -= cost; self.pump(s, 1)
    def need(self, s, name):
        assert name in self.slot, f"{name} has no slot yet"
        while any(e[0][0] == name for e in self.q):
            print("  warning: forced DMA issue for", name, "in", s.name)
            self.pump(s)
        if self.log[name][1] is None: self.log[name][1] = s.nbar
        s.wait_tag(name)
def x_items(q):
    return [(f"XL{q}", sX, (f"v{XD}", f"v{XD+1}"), sXb, 0, 0, 0, 256, lambda c: q), (f"XH{q}", sX, (f"v{XD}", f"v{XD+1}"), sXb, 65536, 65536, 0, 256, lambda c: q)]
def w_items(name, srd_, voff, sbase, stride):
    return [(f"{name}{c}", srd_, voff, sbase, 0, 8 * stride, 64 * stride, 128 * stride, lambda ch, c=c: c) for c in range(4)]
ORDER = [4, 5, 6, 7, 16, 17, 18, 19, 8, 9, 10, 11, 20, 21, 22, 23, 12, 13, 14, 15, 0, 1, 2, 3, 24, 25, 26, 27]
def b_item(hf, c):
    nm = f"B{'ab'[hf]}{c}"
    if c < 7:
        o = hf * 896 * 1024 + ORDER[4 * c] * 16384
        return (nm, sW2, vDB, sB2, o, o + 8192, 448 * 1024)
    o = hf * 256 * 1024 + (c - 7) * 65536
    return (nm, sWo, vDB, sBo, o, o + 8192, 128 * 1024)
def b_items(first):
    it = []
    for c in range(9): it += [b_item(0, c), b_item(1, c)]
    return it

def mish(acc, tmp, so, tag):
    F = []
    for hb in range(2):
        a = acc + 8 * hb
        for j in range(8): F.append(f"v_mul_f32 v{tmp+j}, v{a+j}, {vRSL}")
        for j in range(8): F.append(f"v_exp_f32 v{tmp+j}, v{tmp+j}")
        for j in range(8): F.append(f"v_add_f32 v{tmp+j}, 1.0, v{tmp+j}")
        for j in range(8): F.append(f"v_fma_f32 v{tmp+j}, v{tmp+j}, v{tmp+j}, 1.0")
        for j in range(8): F.append(f"v_rcp_f32 v{tmp+j}, v{tmp+j}")
        for j in range(8): F.append(f"v_fma_f32 v{tmp+j}, v{tmp+j}, {vM2}, {vRS}")
        for j in range(8): F.append(f"v_mul_f32 v{tmp+j}, v{a+j}, v{tmp+j}")
        for j in range(4): F.append(f"v_cvt_pk_bf16_f32 v{a+j}, v{tmp+2*j}, v{tmp+2*j+1}")
        F.append((f"buffer_store_dwordx4 {R(a,4)}, {vA16}, {sWs}, {so} offen offset:{hb*1024} sc1", tag))
    return F
def softmax(P, out, t0, t1):
    F = [f"v_max3_f32 {t0}, v{P}, v{P+1}, v{P+2}", f"v_max3_f32 {t1}, v{P+3}, v{P+4}, v{P+5}",
         f"v_max3_f32 {t0}, {t0}, v{P+6}, v{P+7}", f"v_max3_f32 {t1}, {t1}, v{P+8}, v{P+9}",
         f"v_max3_f32 {t0}, {t0}, v{P+10}, v{P+11}", f"v_max3_f32 {t1}, {t1}, v{P+12}, v{P+13}",
         f"v_max3_f32 {t0}, {t0}, v{P+14}, v{P+15}", f"v_max_f32 {t0}, {t0}, {t1}", f"v_mul_f32_e64 {t0}, -{t0}, {vRSL}"]
    for j in range(16): F.append(f"v_fma_f32 v{P+j}, v{P+j}, {vRSL}, {t0}")
    for j in range(16): F.append(f"v_exp_f32 v{P+j}, v{P+j}")
    F += [f"v_add_f32 {t0}, v{P}, v{P+1}", f"v_add_f32 {t1}, v{P+2}, v{P+3}"]
    for j in range(4, 16, 2):
        F += [f"v_add_f32 {t0}, {t0}, v{P+j}", f"v_add_f32 {t1}, {t1}, v{P+j+1}"]
    F += [f"v_add_f32 {t0}, {t0}, {t1}", f"v_rcp_f32 {t0}, {t0}"]
    for j in range(16): F.append(f"v_mul_f32 v{P+j}, v{P+j}, {t0}")
    for j in range(8): F.append(f"v_cvt_pk_bf16_f32 v{out+j}, v{P+2*j}, v{P+2*j+1}")
    return F
def pack16(acc, out): return [f"v_cvt_pk_bf16_f32 v{out+j}, v{acc+2*j}, v{acc+2*j+1}" for j in range(8)]
def phi_frags():
    F = ["v_bfe_u32 v25, v0, 2, 2", "v_lshrrev_b32 v26, 5, v0", "v_lshl_add_u32 v25, v26, 2, v25", "v_lshlrev_b32 v25, 5, v25",
         "v_bfe_u32 v26, v0, 4, 1", "v_lshl_add_u32 v25, v26, 4, v25", "v_bfe_u32 v26, v0, 1, 1", "v_lshl_add_u32 v25, v26, 3, v25",
         blk(f"s_lshl_b32 s4, {sCH}, 10\ns_add_u32 s4, s4, {SCR_PHI}\nv_add_u32 v25, s4, v25")]
    for h in range(2):
        for rd in range(2): F.append(f"ds_read_b64_tr_b16 {R(PHI+4*h+2*rd,2)}, v25 offset:{h*512 + rd*256}")
    F += ["v_bfe_u32 v26, v0, 2, 1", "v_mul_u32_u24 v26, 0x8000, v26", "v_lshl_or_b32 v26, v26, 16, v26"]
    for j in range(8): F.append(f"v_xor_b32 v{PHI+j}, v26, v{PHI+j}")
    return F

def prologue(s):
    s.e("s_load_dwordx2 s[64:65], s[0:1], 0\ns_load_dwordx2 s[84:85], s[0:1], 80")
    s.e("s_load_dwordx8 s[68:75], s[0:1], 8\ns_load_dwordx8 s[76:83], s[0:1], 40\ns_load_dwordx2 s[66:67], s[0:1], 72")
    s.e("s_cmp_ge_u32 s2, 256\ns_cbranch_scc1 L_end")
    s.e("v_lshrrev_b32 v2, 6, v0\nv_and_b32 v0, 63, v0")
    s.e(f"v_readfirstlane_b32 {sW}, v2")
    s.e("s_and_b32 s3, s2, 7\ns_lshr_b32 s4, s2, 3" if not CFG.get('BADMAP') else "s_lshr_b32 s3, s2, 5\ns_and_b32 s4, s2, 31")
    s.e(f"s_and_b32 s5, s3, 1\ns_lshl_b32 s5, s5, 3\ns_and_b32 {sI}, s4, 7\ns_add_u32 {sI}, {sI}, s5")
    s.e(f"s_lshr_b32 {sKQ}, {sW}, 1\ns_and_b32 {sRT2}, {sW}, 1\ns_lshl_b32 {sM0W}, {sW}, 11")
    s.e(f"s_and_b32 {sRT}, {sW}, 3\ns_lshr_b32 {sCH}, {sW}, 2")
    s.e(f"s_lshr_b32 s5, s3, 1\ns_lshl_b32 s5, s5, 2\ns_lshr_b32 s6, s4, 3\ns_add_u32 s5, s5, s6")
    s.e(f"s_lshr_b32 {sG}, s5, 1\ns_and_b32 {sTY}, s5, 1")
    s.e({0: f"s_mov_b32 s{ROT0}, 0", 1: f"s_add_u32 s{ROT0}, s5, {sI}", 2: f"s_lshr_b32 s{ROT0}, s3, 1\ns_lshl_b32 s{ROT0+1}, s3, 1\ns_add_u32 s{ROT0}, s{ROT0}, s{ROT0+1}"}[CFG['ROT']])
    for c in range(1, 4): s.e(f"s_add_u32 s{ROT0+c}, s{ROT0}, {c}\ns_and_b32 s{ROT0+c}, s{ROT0+c}, 3")
    s.e(f"s_and_b32 s{ROT0}, s{ROT0}, 3")
    s.e(f"s_lshl_b32 {sRB}, s3, 2\ns_add_u32 {sRB}, {sRB}, s6\ns_and_b32 {sCB}, s4, 7\ns_mov_b32 s87, s4")
    s.e(f"v_lshrrev_b32 v33, 4, v0\nv_and_b32 v34, 15, v0\ns_lshl_b32 s5, {sRT2}, 3")
    for h in range(2):
        s.e(f"v_add_u32 v35, {4*h}, v33\nv_add_u32 v36, s5, v35\nv_xor_b32 v36, v34, v36\nv_lshlrev_b32 v36, 4, v36\nv_lshl_add_u32 v{XD+h}, v35, 10, v36")
    s.e(f"s_lshl_b32 {sXb}, {sI}, 17\ns_lshl_b32 s5, {sW}, 13\ns_add_u32 {sXb}, {sXb}, s5")
    s.e("v_lshrrev_b32 v36, 3, v0\nv_and_b32 v37, 7, v0\nv_lshlrev_b32 v38, 1, v36\nv_and_b32 v38, 4, v38\nv_xor_b32 v37, v37, v38\nv_lshlrev_b32 v37, 4, v37")
    s.e(f"v_mul_u32_u24 {vDq}, 3072, v36\nv_add_u32 {vDq}, {vDq}, v37\nv_mul_u32_u24 {vD1}, 3584, v36\nv_add_u32 {vD1}, {vD1}, v37")
    s.e(f"v_lshl_add_u32 {vDB}, v36, 10, v37\nv_lshlrev_b32 {vA16}, 4, v0")
    s.raw("s_waitcnt lgkmcnt(0)")
    srd(s, sX, "s64", "s65", 2048 * 512 * 2)
    srd(s, sWq, "s68", "s69", 512 * 1536 * 2)
    srd(s, sW1, "s76", "s77", 512 * 1792 * 2)
    srd(s, sWs, "s84", "s85", 0x10000000)
    s.e("s_cmp_ge_u32 s2, 32\ns_cbranch_scc1 L_noinit")
    s.e("v_mov_b32 v40, 0\nv_mov_b32 v41, 0\nv_mov_b32 v42, 0\nv_mov_b32 v43, 0")
    s.e(f"s_lshl_b32 s5, s2, 13\ns_lshl_b32 s6, {sW}, 10\ns_add_u32 s5, s5, s6\ns_add_u32 s5, s5, {Z_OFF}")
    s.raw(f"buffer_store_dwordx4 v[40:43], {vA16}, {sWs}, s5 offen sc1")
    s.e("L_noinit:")
    s.e("s_mov_b32 s88, s2")

def prologue2(s):
    lab = label()
    s.e(f"s_cmp_lg_u32 {sW}, 7\ns_cbranch_scc1 {lab}")
    s.e(f"s_getpc_b64 s[90:91]\n{lab}x:\ns_sub_u32 s90, s90, {lab}x-{KNAME}\ns_subb_u32 s91, s91, 0\ns_mul_i32 s5, s87, 2560\nv_min_u32 v35, 19, v0\nv_lshlrev_b32 v35, 7, v35\nv_add_u32 v35, s5, v35")
    s.raw("global_load_dword v26, v35, s[90:91]")
    s.e(f"{lab}:")
    srd(s, sPhi, "s70", "s71", 32 * 512)
    srd(s, sB1, "s78", "s79", 1792 * 2)
    srd(s, sW2, "s80", "s81", 1792 * 512 * 2)
    srd(s, sWo, "s72", "s73", 512 * 512 * 2)
    srd(s, sOut, "s82", "s83", 2048 * 512 * 2)
    srd(s, sDbg, "s66", "s67", 256)
    s.e(f"s_mov_b32 {sBID}, s88\ns_mov_b32 {sC11}, 0x3f803f80")
    s.e(f"v_lshrrev_b32 v36, 2, v0\nv_and_b32 v37, 3, v0\nv_lshlrev_b32 v37, 4, v37\nv_mul_u32_u24 {vD5}, 3584, v36\nv_add_u32 {vD5}, {vD5}, v37")
    s.e(f"v_and_b32 {vP4}, 31, v0\nv_lshlrev_b32 {vP4}, 2, {vP4}")
    s.e(f"v_mov_b32 v29, 0\nv_mov_b32 {vFO}, {BIG}\nv_cmp_eq_u32 vcc, 0, v0\nv_cndmask_b32 {vFO}, {vFO}, 0, vcc")
    s.e("v_bfe_u32 v36, v0, 2, 2\nv_and_b32 v37, 3, v0\nv_bfe_u32 v38, v0, 4, 1\nv_lshrrev_b32 v39, 5, v0")
    s.e("v_lshlrev_b32 v40, 3, v37\nv_lshl_add_u32 v40, v38, 5, v40\nv_lshl_add_u32 v41, v39, 3, v36")
    s.e(f"v_lshrrev_b32 v42, 1, v36\nv_xor_b32 v42, {sCH}, v42\nv_lshlrev_b32 v42, 6, v42")
    s.e(f"v_lshl_add_u32 v43, v41, 7, v40\nv_add_u32 v43, v43, v42")
    for j in range(4):
        s.e(f"s_xor_b32 s5, {sRT}, {j}\ns_lshl_b32 s5, s5, 12\ns_add_u32 s5, s5, {SLOT}\nv_add_u32 v{VW+j}, s5, v43\nv_add_u32 v{VW+4+j}, 0x10000, v{VW+j}")
    s.e(f"v_and_b32 v44, 31, v0\ns_lshl_b32 s5, {sRT}, 5\nv_add_u32 v45, s5, v44\nv_xor_b32 v46, v39, v34\nv_lshlrev_b32 v46, 4, v46\nv_lshl_add_u32 v{XR}, v45, 8, v46")
    s.e(f"s_lshl_b32 s5, {sRT}, 6\nv_xor_b32 v{XR}, s5, v{XR}")
    for t in range(1, 8): s.e(f"v_xor_b32 v{XR+t}, {t<<5}, v{XR}")
    s.e(f"v_lshlrev_b32 v44, 2, v38\nv_cmp_eq_u32 vcc, v44, v34\nv_mov_b32 v44, {sC11}\nv_cndmask_b32 v{ASEL}, 0, v44, vcc")
    for j in range(1, 4): s.e(f"v_mov_b32 v{ASEL+j}, v{ASEL}")
    s.e(f"v_mov_b32 v{CF+4}, 0\nv_mov_b32 v{CF+5}, 0")
    s.e(f"s_lshl_b32 s3, {sI}, 2\ns_add_u32 s3, s3, {sRT}\ns_mul_i32 {sAF}, s3, {144*1024}")
    s.e(f"s_mul_i32 {sKS}, {sG}, {14*1024}\ns_add_u32 {sKS}, {sKS}, {sAF}")
    s.e(f"s_lshl_b32 {sFL}, s3, 2\ns_lshr_b32 s4, {sG}, 1\ns_add_u32 {sFL}, {sFL}, s4\ns_mul_i32 {sFL}, {sFL}, 640")
    s.e(f"s_and_b32 s4, {sG}, 1\ns_lshl_b32 s4, s4, 3\ns_lshl_b32 s5, {sCH}, 2\ns_add_u32 s4, s4, s5\ns_add_u32 {sFL}, {sFL}, s4\ns_add_u32 {sFL}, {sFL}, {ACTFLAG_OFF}")
    s.e(f"s_lshl_b32 s3, {sRB}, 1\ns_add_u32 s3, s3, {sRT2}\ns_mul_i32 {sAF2}, s3, {144*1024}")
    s.e(f"s_lshl_b32 {sFL2}, s3, 2\ns_add_u32 {sFL2}, {sFL2}, {sKQ}\ns_mul_i32 {sFL2}, {sFL2}, 640\ns_add_u32 {sFL2}, {sFL2}, {ACTFLAG_OFF}")
    s.e(f"s_mul_i32 {sB2}, {sCH}, {448*1024}\ns_lshl_b32 s4, {sRT}, 14\ns_lshl_b32 s5, {sCB}, 7\ns_add_u32 s4, s4, s5\ns_add_u32 {sB2}, {sB2}, s4")
    s.e(f"s_lshl_b32 {sBo}, {sCH}, 17\ns_add_u32 {sBo}, {sBo}, s4")
    s.e(f"s_lshl_b32 s3, {sG}, 2\ns_add_u32 s3, s3, {sKQ}\ns_mul_i32 {sKVs}, s3, 2176\ns_add_u32 {sKVs}, {sKVs}, {KV_OFF}")
    s.e(f"s_lshl_b32 {sKVF}, {sG}, 11\ns_add_u32 {sKVF}, {sKVF}, {KVFLAG_OFF}")
    s.e(f"s_mul_i32 s3, {sKQ}, {28*1024}\ns_add_u32 {sA2y}, {sAF2}, s3")
    s.e(f"s_lshl_b32 s3, {sKQ}, 13\ns_add_u32 {sA2s}, {sAF2}, s3\ns_add_u32 {sA2s}, {sA2s}, {112*1024}")
    s.e(f"v_lshrrev_b32 {vT}, 1, {vP4}")

def unit_bases(s, typ):
    s.e(f"s_mul_i32 s3, {sW}, {16*3072}\ns_lshl_b32 s4, {sG}, 7\ns_add_u32 s3, s3, s4")
    s.e(f"s_mul_i32 s4, {sG}, 448\ns_and_b32 s5, {sG}, 1\ns_cmp_eq_u32 s5, 0")
    if typ == 'A':
        s.e(f"s_cselect_b32 s5, 0, 320\ns_add_u32 s4, s4, s5")
        s.e(f"s_add_u32 {sUA}, s3, 1024\ns_add_u32 {sUB}, s3, 2048")
        s.e(f"s_mul_i32 {sUC}, {sW}, {16*3584}\ns_add_u32 {sUC}, {sUC}, s4")
        s.e(f"s_lshl_b32 s5, {sCH}, 6\ns_add_u32 s92, s4, s5")
        return [f"buffer_load_ushort v{BI0}, {vT}, {sB1}, s92 offen"]
    s.e(f"s_cselect_b32 s5, 128, 64\ns_cselect_b32 {sUD}, 384, 0")
    s.e(f"s_add_u32 s5, s4, s5\ns_add_u32 s92, s4, {sUD}\ns_mov_b32 {sUC}, s3")
    s.e(f"s_mul_i32 {sUA}, {sW}, {16*3584}\ns_add_u32 {sUA}, {sUA}, s5\ns_add_u32 {sUB}, {sUA}, 128")
    s.e(f"s_mul_i32 {sUD}, {sRT}, {32*3584}\ns_add_u32 {sUD}, {sUD}, s92")
    s.e(f"s_lshl_b32 s3, {sCH}, 6\ns_add_u32 s93, s5, s3")
    return [f"buffer_load_ushort v{BI2}, {vT}, {sB1}, s92 offen", f"buffer_load_ushort v{BI0}, {vT}, {sB1}, s93 offen",
            f"buffer_load_ushort v{BI1}, {vT}, {sB1}, s93 offen offset:128"]

def start(s, ring, biasloads):
    ring.assign(s, upto=ring.upto0)
    if CFG['T0'] == 1: touch_all(s, ['x', 'q', 'w1'])
    ring.pump(s, CFG['S0'])
    if CFG['T0'] == 2: touch_all(s, ['x', 'q', 'w1'])
    prologue2(s)
    ring.pump(s, CFG['S1'])
    if CFG['T1']: touch_all(s, ['w2', 'wo'])
def touch_all(s, which):
    specs = dict(x=(sX, 64, 4), q=(sWq, 48, 5), w1=(sW1, 56, 6), w2=(sW2, 56, 4), wo=(sWo, 16, 5))
    for nm in which:
        srd_, nl, wv = specs[nm]
        lab = label()
        s.e(f"s_cmp_lg_u32 {sW}, {wv}\ns_cbranch_scc1 {lab}")
        s.e(f"v_min_u32 v47, {nl-1}, v0\nv_lshlrev_b32 v47, 7, v47\ns_mul_i32 s5, s88, {nl*128}\ns_mov_b32 m0, {SCR + 15360}\ns_nop 0")
        s.raw(f"buffer_load_dword v47, {srd_}, s5 offen lds")
        s.e(f"{lab}:")
def late_loads(biasloads):
    def f(s):
        s.e(f"v_lshrrev_b32 {vT}, 1, {vP4}")
        for x in biasloads: s.e(x)
        s.e(f"s_lshl_b32 s3, {sG}, 11\ns_lshl_b32 s4, {sRT2}, 10\ns_add_u32 s3, s3, s4\ns_add_u32 m0, s4, {SCR_PHI}")
        s.e(f"buffer_load_dwordx4 {vA16}, {sPhi}, s3 offen lds", tag="phi")
    return f

MF = "v_mfma_f32_32x32x16_bf16"
def bar(s, ring, name, needs=(), rel=(), owner='all', lg0=False, upto=None, extra=(), maxn=99):
    if CFG.get('SB'): stamp("<" + name)(s)
    for n in needs: ring.need(s, n)
    if lg0: s.wait(lg=0)
    s.wait_dswrites()
    s.e("s_barrier")
    stamp(name)(s)
    s.marks[name] = 1
    for n in rel: ring.release(n)
    ring.free += list(extra)
    ring.assign(s, owner, upto, maxn)
def B(ring, *a, **k): return lambda s: bar(s, ring, *a, **k)

class MSeg:
    def __init__(self, ring, u, ch, events=None, posts=None, xpass=False, dma=0):
        self.ring, self.u, self.ch, self.ev, self.posts, self.xp, self.dma = ring, u, ch, events or {}, posts or {}, xpass, dma
        self.nr = 0; self.hs = None
    def reads(self, s, t):
        u, ring = self.u, self.ring
        for e in self.ev.get(t, []): e(s)
        c, p = t // 8, t % 8
        if self.xp:
            for x in {0: (0, 1), 1: (2, 3, 4), 2: (5, 6, 7)}.get(p, ()):
                s.e(f"ds_read_b128 {R(XA+32*c+4*x,4)}, v{XR+x} offset:{(c&1)*32768}")
        it = f"{u['name']}{c}" if u['kind'] == 'w' else f"{u['name']}{c//2}"
        assert ring.log[it][1] is not None, f"{it} read before certified"
        sl = ring.slot[it]; buf = WB + 4 * (t % 4)
        if u['kind'] == 'h5' and self.hs != sl:
            if self.hs is None:
                s.e("v_bfe_u32 v116, v0, 2, 2\nv_lshrrev_b32 v117, 5, v0\nv_lshl_add_u32 v116, v117, 3, v116\nv_lshlrev_b32 v116, 6, v116\nv_bfe_u32 v117, v0, 4, 1\nv_lshl_add_u32 v116, v117, 5, v116\nv_and_b32 v117, 3, v0\nv_lshl_add_u32 v116, v117, 3, v116")
                for j in range(4): s.e(f"s_xor_b32 s3, {sRT}, {j}\ns_lshl_b32 s3, s3, 11\ns_add_u32 s3, s3, {sl*SLOT}\nv_add_u32 v{HR+j}, s3, v116")
            else:
                for j in range(4): s.e(f"v_add_u32 v{HR+j}, {((sl-self.hs)*SLOT) & 0xffffffff:#x}, v{HR+j}")
            self.hs = sl
        for k in range(2):
            if u['kind'] == 'w':
                w = 0 if sl <= 4 else 1
                r, off = f"v{VW+4*w+p//2}", (sl - 1 - 4 * w) * SLOT + (p & 1) * 2048 + k * 512
            else: r, off = f"v{HR+p//2}", (c % 2) * 8192 + (p & 1) * 1024 + k * 256
            s.e(f"ds_read_b64_tr_b16 {R(buf+2*k,2)}, {r} offset:{off}")
    def pre(self, s, n=None):
        n = CFG['PF'] if n is None else n
        while self.nr < n: self.reads(s, self.nr); self.nr += 1
    def run(self, s, nxt=None, F=None, budget=0):
        u = self.u; ch = self.ch
        credit = 0
        if CFG['PRIO'] and not self.xp: s.e("s_setprio 1")
        self.pre(s)
        for t in range(32):
            c, p = t // 8, t % 8
            buf = WB + 4 * (t % 4)
            cin = R(u['acc'], 16) if t > 0 else "0"
            a, b = (R(buf, 4), R(XA + 4 * t, 4)) if u['trans'] else (R(XA + 4 * t, 4), R(buf, 4))
            s.e(f"{MF} {R(u['acc'],16)}, {a}, {b}, {cin}")
            if p < 2 and not (CFG.get('NOCS') and t > 0): s.e(f"v_mfma_f32_16x16x32_bf16 {R(CSA,4)}, {R(ASEL,4)}, {R(buf,4)}, {R(CSA,4) if t > 0 else '0'}")
            if self.nr < 32: self.reads(s, self.nr); self.nr += 1
            elif nxt is not None: nxt.pre(s, t - 31 + CFG['PF'])
            if self.xp and t < 25: self.ring.pump(s, 1)
            elif self.xp: self.ring.pace(s, CFG['ST'])
            elif self.dma: self.ring.pace(s, self.dma)
            if t == 27:
                s.e(f"s_lshl_b32 s3, {sRT}, 2\ns_add_u32 s3, s3, {SCR_CS + u['csi']*2048 + ch*1024}\nv_add_u32 v{CSA+1}, s3, {vA16}\nds_write_b32 v{CSA+1}, v{CSA}")
            if self.xp and p in (1, 3):
                for x in ((ch, ch + 2) if p == 1 else (ch + 4, ch + 6)):
                    for j in range(4):
                        r = XA + 32 * c + 4 * x + j
                        first = (c == 0 and p == 1 and x == ch and j < 2)
                        s.e(f"v_dot2_f32_bf16 v{STA+(j&1)}, v{r}, {sC11}, {'0' if first else f'v{STA+(j&1)}'}")
                        s.e(f"v_dot2_f32_bf16 v{STA+2+(j&1)}, v{r}, v{r}, {'0' if first else f'v{STA+2+(j&1)}'}")
                if t == 27:
                    q = f"v{STA+2}"
                    s.e(f"v_add_f32 v{STA}, v{STA}, v{STA+1}\nv_add_f32 v{STA+1}, v{STA+2}, v{STA+3}\nv_lshrrev_b32 {q}, 5, v0\nv_lshlrev_b32 {q}, 3, {q}\n"
                        f"v_lshl_add_u32 {q}, {vP4}, 3, {q}\ns_lshl_b32 s3, {sRT}, 10\ns_add_u32 s3, s3, {SCR_ST + ch*16}\nv_add_u32 {q}, s3, {q}\nds_write_b64 {q}, {R(STA,2)}")
            for e in self.posts.get(t, []): e(s)
            if F is not None: credit = fill(s, F, (budget(t) if callable(budget) else budget) + min(credit, CFG['CRED']))
        if CFG['PRIO'] and not self.xp: s.e("s_setprio 0")

def fill(s, F, budget, force=False):
    while budget > 0 and F:
        f = F[0]
        if isinstance(f, tuple) and f[0] == 'wait':
            if f[1] in s.marks: F.pop(0); continue
            return 0
        if isinstance(f, tuple) and f[0] == 'nextbar': f = F[0] = ('barge', s.nbar + 1)
        if isinstance(f, tuple) and f[0] == 'barge':
            if s.nbar >= f[1]: F.pop(0); continue
            return 0
        if isinstance(f, tuple) and f[0] in ('hold', 'tilt'):
            if budget <= 1: F.pop(0); continue
            return 0
        if isinstance(f, tuple) and f[0] == 'gap':
            f = F[0] = ('until', s.n_issued + f[1])
        if isinstance(f, tuple) and f[0] == 'until':
            if s.n_issued >= f[1] or force: F.pop(0); continue
            return 0
        if callable(f):
            F.pop(0); n0 = s.n_issued; f(s); budget -= max(1, (s.n_issued - n0) * 0.5); continue
        txt, tag = (f if isinstance(f, tuple) else (f, None))
        need, age = s.cost(txt)
        if not force and (need > 1 or (age is not None and age < CFG['AGE'])): return budget
        F.pop(0); s.e(txt, tag)
        k = I(txt).kind
        budget -= 2 if k == 'trans' else (0.5 if k in ('salu', 'ds', 'vm') else 1)
    return 0
def until(s, ring, F, name, every=None):
    n = 0
    while name not in s.marks:
        assert F, name
        l = len(F); fill(s, F, 1, force=True)
        assert len(F) < l, ("stuck", F[0], name, s.name)
        n += 1
        ring.pace(s, 9)
    return n
def vrun(s, ring, F, slots, every=None, flush=True):
    every = every or CFG['VD']
    while slots > 0 and F:
        l = len(F); fill(s, F, min(every, slots), force=True); slots -= every
        ring.pace(s, 9 * every)
        if len(F) == l: break
    if flush: ring.pump(s, 99)

def vseg(s, ring, F, every=None, flush=True):
    every = every or CFG['VD']
    n = 0
    for f in F:
        if isinstance(f, tuple) and f[0] in ('after', 'skip', 'wait', 'gap', 'until'): continue
        drain(s, [f]); n += 1
        ring.pace(s, 10)
    if flush: ring.pump(s, 99)
def split(F, frac, item):
    k = int(len(F) * frac)
    return F[:k] + [item] + F[k:]

def pass0(s, ring, u, ch, bl, nextname, nextneed):
    ev = {}
    for c in range(4):
        def b0(s, c=c):
            if c == 3: s.wait_tag("phi")
            bar(s, ring, f"b0{c}", [f"{u['name']}{c}", f"XL{c}", f"XH{c}"], [f"{u['name']}{c-1}"] if c else [], lg0=True, upto=nextname)
            if c == 0:
                lab = label()
                s.e(f"s_cmp_ge_u32 {sBID}, 32\ns_cbranch_scc1 {lab}\ns_cmp_lg_u32 {sW}, 0\ns_cbranch_scc1 {lab}\ns_lshl_b32 s3, {sBID}, 2")
                s.raw(f"buffer_store_dword {vOne}, {vFO}, {sDbg}, s3 offen offset:128 sc1")
                s.e(f"{lab}:")
        def bx(s, c=c):
            s.wait_regs([f"v{r}" for r in range(XA + 32 * c, XA + 32 * c + 32)])
            bar(s, ring, f"bx{c}", nextneed if c == 3 else [], [f"XL{c}", f"XH{c}"], upto=(nextname if c < 3 else None))
        ev[8 * c] = [b0]; ev[8 * c + 4] = [bx]
    return MSeg(ring, u, ch, ev, {6: [late_loads(bl)], 24: [lambda s: poll_issue(s, sDbg, "0", imm=128)], CFG['TBT']: [lambda s: touchB(s)], CFG['TWT']: [lambda s: touchW(s)]}, xpass=True, dma=1)

def stats_fin(T):
    F = [blk(f"s_lshl_b32 s4, {sRT}, 10\ns_add_u32 s4, s4, {SCR_ST}\nv_lshlrev_b32 {vT}, 3, {vP4}\nv_add_u32 {vT}, s4, {vT}"),
         f"ds_read_b128 {R(T,4)}, {vT}", f"ds_read_b128 {R(T+4,4)}, {vT} offset:16",
         blk(f"s_lshl_b32 s4, {sRT}, 7\ns_add_u32 s4, s4, {SCR_RS}\nv_add_u32 {vT}, s4, {vP4}\nv_cmp_gt_u32 s[94:95], 32, v0")]
    a, b = f"v{T}", f"v{T+1}"
    F += [f"v_add_f32 {a}, {a}, v{T+2}", f"v_add_f32 {b}, {b}, v{T+3}", f"v_add_f32 v{T+4}, v{T+4}, v{T+6}", f"v_add_f32 v{T+5}, v{T+5}, v{T+7}",
          f"v_add_f32 {a}, {a}, v{T+4}", f"v_add_f32 {b}, {b}, v{T+5}", f"v_mul_f32 {a}, 0xbb000000, {a}", f"v_mul_f32 {b}, 0x3b000000, {b}",
          f"v_fma_f32 {b}, -{a}, {a}, {b}", f"v_max_f32 {b}, 0, {b}", f"v_cvt_pk_bf16_f32 {b}, {b}, {b}", f"v_lshlrev_b32 {b}, 16, {b}",
          f"v_add_f32 {b}, 0x3727c5ac, {b}", f"v_cvt_pk_bf16_f32 {b}, {b}, {b}", f"v_lshlrev_b32 {b}, 16, {b}", f"v_sqrt_f32 {b}, {b}",
          f"v_cvt_pk_bf16_f32 {b}, {b}, {a}", f"v_lshlrev_b32 {vRS}, 16, {b}", f"v_rcp_f32 {vRS}, {vRS}",
          f"v_cndmask_b32 v{CF+2}, 0, {b}, s[94:95]", f"v_lshrrev_b32 v{CF+3}, 16, v{CF+2}",
          f"v_mul_f32 {vRSL}, 0x3fb8aa3b, {vRS}", f"v_mul_f32 {vM2}, -2.0, {vRS}", f"ds_write_b32 {vT}, {vRS}"]
    return F
def correct(u, ch, T, bias=None):
    F = [f"v_lshlrev_b32 v{T}, 2, {vP4}", f"v_add_u32 v{T}, {SCR_CS + u['csi']*2048 + ch*1024}, v{T}", f"ds_read_b128 {R(T,4)}, v{T}",
         f"v_add_f32 v{T}, v{T}, v{T+1}", f"v_add_f32 v{T+2}, v{T+2}, v{T+3}", f"v_add_f32 v{T}, v{T}, v{T+2}",
         f"v_cvt_pk_bf16_f32 v{T+1}, v{T}, v{T}", f"v_and_b32 v{CF}, 0xffff0000, v{T+1}", f"v_sub_f32 v{T}, v{T}, v{CF}", f"v_cvt_pk_bf16_f32 v{CF+1}, v{T}, v{T}"]
    if bias is not None: F.append(f"v_or_b32 v{CF}, v{CF}, v{bias}")
    a, b = (R(CF, 4), R(CF + 2, 4)) if u['trans'] else (R(CF + 2, 4), R(CF, 4))
    F.append(f"{MF} {R(u['acc'],16)}, {a}, {b}, {R(u['acc'],16)}")
    return F

def mark(name): return lambda s: s.marks.__setitem__(name, 1)
YA = [192, 208]; SA = [32, 48]
vB0, vB1 = "v5", "v24"
XW = ["v6", "v7", "v8"]; XRD = ["v11", "v12", "v13"]
LB = 128
NR = 8
def breg(t): return XA + 8 * t if t < NR else LB + 8 * (t % 2)
def bnm(ch, c): return f"B{'ab'[ch]}{c}"
def bread(ring, ch, t):
    def f(s):
        nm = bnm(ch, t // 4)
        assert ring.log[nm][1] is not None, f"{nm} read before certified"
        sl = ring.slot[nm]
        if ring.bsl != sl:
            d = ((sl - ring.bsl) * SLOT) & 0xffffffff
            s.e(f"v_add_u32 {vB0}, {d:#x}, {vB0}\nv_add_u32 {vB1}, {d:#x}, {vB1}")
            ring.bsl = sl
        for ct, r in enumerate((vB0, vB1)):
            for k in range(2):
                s.e(f"ds_read_b64_tr_b16 {R(breg(t) + 4*ct + 2*k, 2)}, {r} offset:{(t%4)*2048 + k*1024}")
    return f
def pull(ring, ch, c): return [bread(ring, ch, 4 * c + k) for k in range(4)]
def p2_setup(ring):
    def chk(s):
        assert not any(x[0][0] == 'F' for x in ring.items) and not any(x[0][0][0] == 'F' for x in ring.q)
        ring.bsl = 0
    return [chk, f"v_bfe_u32 {vB0}, v0, 2, 2", f"v_lshrrev_b32 {vB1}, 5, v0", f"v_lshl_add_u32 {vB0}, {vB1}, 2, {vB0}", f"v_lshlrev_b32 {vB0}, 7, {vB0}",
     f"v_bfe_u32 {vB1}, v0, 3, 1", f"v_lshl_add_u32 {vB0}, {vB1}, 6, {vB0}", f"v_bfe_u32 {vB1}, v0, 4, 1", f"v_lshl_add_u32 {vB0}, {vB1}, 5, {vB0}",
     f"v_and_b32 {vB1}, 3, v0", f"v_lshl_add_u32 {vB0}, {vB1}, 3, {vB0}", blk(f"s_and_b32 s3, {sKQ}, 1\ns_lshl_b32 s3, s3, 13\nv_add_u32 {vB0}, s3, {vB0}"), f"v_xor_b32 {vB1}, 64, {vB0}"]

def xwrite(s, acc2, slots, own, ch):
    l1, l2 = label(), label()
    s.e("s_nop 7")
    s.e(f"s_bitcmp1_b32 {sKQ}, 0\ns_cbranch_scc1 {l1}")
    for kq in (2 * ch, 2 * ch + 1):
        if kq & 1: s.raw(f"{l1}:")
        s.raw("s_nop 1")
        for d in range(4):
            src = acc2[d >> 1] + 8 * (d & 1)
            if d == kq: continue
            idx = (kq - d - 1) % 4
            for h in range(2):
                r, off = ldsaddr(XW, slots[idx] * SLOT + d * 4096 + h * 1024)
                s.raw(f"ds_write_b128 {r}, {R(src+4*h,4)} offset:{off}")
        src = acc2[kq >> 1] + 8 * (kq & 1)
        for j in range(8): s.raw(f"v_mov_b32 v{own+j}, v{src+j}")
        if not kq & 1: s.raw(f"s_branch {l2}")
    s.raw(f"{l2}:")
    for _ in range(6): s.lg.append((set(), None))
def xread(slots, own, tmp):
    F = []
    for i in range(3):
        for h in range(2):
            r, off = ldsaddr(XRD, slots[i] * SLOT + h * 1024)
            F.append(f"ds_read_b128 {R(tmp+8*i+4*h,4)}, {r} offset:{off}")
    G = []
    for i in range(3):
        for j in range(8): G.append(f"v_add_f32 v{own+j}, v{own+j}, v{tmp+8*i+j}")
    return F, G
def fin_setup():
    return [blk(f"s_lshl_b32 {sUC}, {sRB}, 16\ns_lshl_b32 s4, {sRT2}, 15\ns_add_u32 {sUC}, {sUC}, s4\ns_lshl_b32 s4, {sCB}, 7\ns_add_u32 {sUC}, {sUC}, s4\ns_lshl_b32 s4, {sKQ}, 5\ns_add_u32 {sUC}, {sUC}, s4"),
            f"v_lshlrev_b32 v20, 8, {vP4}", "v_lshrrev_b32 v21, 5, v0", "v_lshl_add_u32 v20, v21, 4, v20",
            f"buffer_load_dwordx4 v[16:19], v20, {sX}, {sUC} offen",
            blk(f"s_lshl_b32 s4, {sRT2}, 11\nv_add_u32 v6, s4, {vA16}"), "v_add_u32 v7, 0x10000, v6", "v_add_u32 v8, 0x20000, v6",
            blk(f"s_lshl_b32 s4, {sKQ}, 12\nv_add_u32 v11, s4, v6\nv_add_u32 v12, s4, v7\nv_add_u32 v13, s4, v8")]

def aphase(s, ring, ch, F, early, late, toff):
    G = CFG['GT']
    groups = {0: (0xf, ['f1'], 0, 0), 8: (0xf, ['f2'], G[3], 128), 16: (0x5, ['f3'], G[0], 384), 20: (0xf, ['f3'], G[1], 256), 28: (0xf, ['fo'], G[2], 512)}
    pr = lambda c: [bnm(0, c), bnm(1, c)]
    bars = {8: (pr(2) + pr(3), ring.rel8), 12: ([], pr(2)), 16: (pr(4) + pr(5), pr(3)), 20: ([], pr(4)), 24: (pr(6) + pr(7), pr(5)), 30: (pr(8), pr(6))}
    cert = {n: k for k, v in bars.items() for n in v[0]}
    pool = list(range(224, 256, 4)) + list(early); restricted = set(early)
    late = dict(late)
    for v in late.values(): restricted |= set(v)
    areg = {}; arr = {}
    st = dict(clk=0, pipe=0, nxt=0, polled={0: 0}, checked=set(), tch=set())
    LT, LAT, QD = CFG['LT'], CFG['LAT'], CFG['QD']
    OWNY = 112; OWNS = 120; XT = 64
    def issue_cost():
        st['pipe'] = max(st['pipe'], st['clk']) + (LT if len(F) > 3 else CFG['LT2']); st['clk'] += 16
        return st['pipe'] + LAT
    def try_load(step, must=None):
        for m in list(late):
            if m in s.marks: pool.extend(late.pop(m))
        if must is None and st['pipe'] - st['clk'] > (QD if len(F) > 3 else CFG['QD2']): return False
        t = st['nxt']
        for g in sorted(groups):
            if g >= t and g not in st['polled']:
                prev = [x for x in groups if x < g]
                if all(x in st['checked'] for x in prev) and (st['clk'] >= groups[g][2] + toff - CFG['PLT'] or must == g):
                    poll_issue(s, sWs, sFL2, imm=groups[g][3]); st['polled'][g] = max(st['pipe'], st['clk']) + LAT; st['clk'] += 16
                    return True
                break
        for g in st['polled']:
            if g and g not in st['tch'] and g not in st['checked'] and st['clk'] >= st['polled'][g] and g - t >= CFG['TAD']:
                st['tch'].add(g); n = {8: 8, 16: 4, 20: 8, 28: 8}[g]
                touchA(g, n, groups[g][0], 'v2', 'v3')(s); log.append(f"tch{g}@{step}")
        bneed = cert.get(ring.q[0][0][0], 0) - CFG['BL'] if ring.q else 99
        aok = False
        if t < 36:
            ok = [r for r in pool if not (r in restricted and t > 26)]
            aok = bool(ok)
            if t in groups and t not in st['checked']:
                ready = t in st['polled'] and st['clk'] >= st['polled'][t] and st['clk'] >= groups[t][2] + toff and all(r in s.marks for r in groups[t][1])
                aok = aok and (ready or must == t)
        if aok and (t <= bneed or must is not None):
            if t in groups and t not in st['checked']:
                for r in groups[t][1]:
                    n = until(s, ring, F, r)
                    if n: print("   forced", n, "fillers for", r, "in", s.name)
                poll_check(s, sWs, sFL2, groups[t][0], imm=groups[t][3]); st['checked'].add(t); log.append(f"chk{t}@{step}/{st['clk']}")
            areg[t] = ok[0]; pool.remove(ok[0])
            base, off = (sA2y, ORDER[t] * 1024) if t < 28 else (sA2s, (t - 28) * 1024)
            s.e(f"s_add_u32 {sSoW}, {base}, {off & ~4095}\nbuffer_load_dwordx4 {R(areg[t],4)}, {vA16}, {sWs}, {sSoW} offen offset:{off & 4095} sc1")
            arr[t] = issue_cost(); st['nxt'] += 1; log.append(f"A{t}@{step}")
            return True
        if ring.q and must is None:
            ring.pump(s, 1); issue_cost(); return True
        return False
    log = []
    V = []
    for t in range(36):
        while True:
            if try_load(t): continue
            if F and isinstance(F[0], tuple) and F[0][0] == 'hold':
                F[0] = ('tilt', st['clk'] + F[0][1])
            if F and isinstance(F[0], tuple) and F[0][0] == 'tilt' and st['clk'] >= F[0][1]: F.pop(0)
            if F and not (t in arr and st['clk'] >= arr[t] and not pool and st['nxt'] < 36):
                l = len(F); n0 = s.n_issued
                fill(s, F, 6, force=True)
                st['clk'] += (s.n_issued - n0) * CFG['VC']
                if len(F) < l: continue
            if t not in arr:
                assert try_load(t, must=st['nxt']); continue
            if st['clk'] < arr[t] and (st['nxt'] < 36 or ring.q):
                nclk = min(arr[t], st['clk'] + 32)
                if nclk < arr[t]:
                    st['clk'] = nclk
                    if try_load(t): continue
                    continue
            break
        st['clk'] = max(st['clk'], arr[t])
        if t == 4: until(s, ring, F, 'p1')
        for ct in range(2):
            acc = (YA if t < 28 else SA)[ct]
            cin = "0" if t in (0, 28) else R(acc, 16)
            s.e(f"{MF} {R(acc,16)}, {R(breg(t)+4*ct,4)}, {R(areg[t],4)}, {cin}")
        st['clk'] += 128
        pool.append(areg[t])
        if 2 <= t <= 7: pool += [XA + 8 * t, XA + 8 * t + 4]
        if t + 1 in bars:
            if t + 1 == 8:
                n = until(s, ring, F, 'vbar')
                if n: print("   forced", n, "fillers before a8 in", s.name)
            bar(s, ring, f"a{t+1}", bars[t + 1][0], bars[t + 1][1], lg0=True); log.append(f"|a{t+1}/{st['clk']}")
        if NR <= t + 1 < 36: bread(ring, ch, t + 1)(s)
        if t == 26: assert not F, F
        if t == 27:
            stamp('yend')(s)
            ys = [ring.free.pop(0) for _ in range(3)]
            xwrite(s, YA, ys, OWNY, ch)
            drain(s, ["v_permlane32_swap_b32 v16, v18", "v_permlane32_swap_b32 v17, v19"])
            for j in range(4): drain(s, [f"v_lshlrev_b32 v{XT+24+2*j}, 16, v{16+j}", f"v_and_b32 v{XT+25+2*j}, 0xffff0000, v{16+j}"])
        if t == 29:
            rdl, V = xread(ys, OWNY, XT)
            drain(s, rdl)
            for j in range(8): V.append(f"v_mul_f32 v{XT+j}, 0xbfb8aa3b, v{OWNY+j}")
            for j in range(8): V.append(f"v_exp_f32 v{XT+j}, v{XT+j}")
            for j in range(8): V.append(f"v_add_f32 v{XT+j}, 1.0, v{XT+j}")
            for j in range(8): V.append(f"v_rcp_f32 v{XT+j}, v{XT+j}")
            for j in range(8): V.append(f"v_mul_f32 v{OWNY+j}, v{OWNY+j}, v{XT+j}")
        if 30 <= t < 35:
            drain(s, V[:CFG['TV']]); V = V[CFG['TV']:]
    print("   sched", s.name, " ".join(log), "end", st['clk'])
    stamp('send')(s)
    ss = [ring.free.pop(0) for _ in range(2)] + [9]
    xwrite(s, SA, ss, OWNS, ch)
    drain(s, V)
    s.wait(lg=0); s.e("s_barrier")
    rdl, V = xread(ss, OWNS, XT)
    drain(s, rdl + V)
    for j in range(8): s.e(f"v_fma_f32 v{OWNS+j}, v{OWNS+j}, v{OWNY+j}, v{XT+24+j}")
    for j in range(4): s.e(f"v_cvt_pk_bf16_f32 v{16+j}, v{OWNS+2*j}, v{OWNS+2*j+1}")
    s.e("v_permlane32_swap_b32 v16, v18\nv_permlane32_swap_b32 v17, v19")
    s.e(f"buffer_store_dwordx4 v[16:19], v20, {sOut}, {sUC} offen")
    stamp('st')(s)
    if PROFILE:
        s.raw("s_waitcnt vmcnt(0) lgkmcnt(0)")
        stamp("end")(s)
        s.raw("s_waitcnt lgkmcnt(0)")
        n = len(s.snames)
        for i in (n - 2, n - 1): s.raw(f"v_writelane_b32 v29, s{STAMP0+2*(i%4)}, {i}")
        s.e(f"v_subrev_u32 v29, s96, v29\nv_lshlrev_b32 v16, 2, v0")
        s.e(f"s_lshl_b32 s3, {sBID}, 11\ns_lshl_b32 s4, {sW}, 8\ns_add_u32 s3, s3, s4\ns_add_u32 s3, s3, {PROF_OFF}")
        s.e(f"buffer_store_dword v29, v16, {sWs}, s3 offen")
        if CFG.get('DBG') is not None:
            lab = label()
            s.e(f"s_cmp_lg_u32 {sBID}, {CFG['DBG']}\ns_cbranch_scc1 {lab}\ns_cmp_lg_u32 {sW}, 0\ns_cbranch_scc1 {lab}")
            idx = list(range(n - 1, -1, -3))[:16][::-1]
            for k, i in enumerate(idx):
                s.raw(f"v_readlane_b32 s4, v29, {i}\ns_nop 1\nv_mov_b32 v17, s4\nbuffer_store_dword v17, {vFO}, {sDbg}, 0 offen offset:{4*k}\ns_nop 1")
            s.e(f"{lab}:")
            if s.name in ('A0', 'B0'): print("DBG", s.name, [s.snames[i] for i in idx])
        open(f"snames_{s.name}.txt", "w").write(" ".join(s.snames))
    s.e("s_endpgm")
    s.slots = (dict(ring.slot), ys, ss)
    print("   ring", s.name, " ".join(f"{k}:{v[0]}>{v[1]}" for k, v in ring.log.items()))

SCR_DUM = SCR + 15360
def touchB(s):
    if not CFG['TB']: return
    s.e(f"s_lshl_b32 s4, {sBID}, 3\ns_add_u32 s4, s4, {sW}\ns_mul_i32 s5, s4, 896\ns_lshl_b32 s4, s4, 8\ns_mov_b32 m0, {SCR_DUM}")
    s.e(f"v_min_u32 {vT}, 6, v0\nv_lshlrev_b32 {vT}, 7, {vT}")
    s.e(f"buffer_load_dword {vT}, {sW2}, s5 offen lds")
    s.e(f"v_min_u32 {vT}, 1, v0\nv_lshlrev_b32 {vT}, 7, {vT}")
    s.e(f"buffer_load_dword {vT}, {sWo}, s4 offen lds")
def touchW(s):
    if not CFG['TW']: return
    s.e(f"s_lshl_b32 s4, {sBID}, 3\ns_add_u32 s4, s4, {sW}\ns_mul_i32 s5, s4, 896\ns_mul_i32 s4, s4, 768\ns_mov_b32 m0, {SCR_DUM}")
    s.e(f"v_min_u32 {vT}, 6, v0\nv_lshlrev_b32 {vT}, 7, {vT}")
    s.e(f"buffer_load_dword {vT}, {sW1}, s5 offen lds")
    s.e(f"v_min_u32 {vT}, 5, v0\nv_lshlrev_b32 {vT}, 7, {vT}")
    s.e(f"buffer_load_dword {vT}, {sWq}, s4 offen lds")
def touch2(c):
    def f(s):
        if not CFG['T2']: return
        if c == 0:
            s.e(f"s_lshl_b32 s4, s87, 3\ns_add_u32 s4, s4, {sW}\ns_lshr_b32 s5, s4, 6\ns_and_b32 s4, s4, 63\ns_lshl_b32 s4, s4, 10\n"
                f"s_mul_i32 s58, s5, {448*1024}\ns_add_u32 s58, s58, s4\ns_lshl_b32 s59, s5, 17\ns_add_u32 s59, s59, s4")
        s.e(f"s_mov_b32 m0, {SCR_DUM}")
        if c < 7: s.e(f"s_add_u32 {sSoW}, s58, {ORDER[4*c]*16384}\nbuffer_load_dwordx4 {vA16}, {sW2}, {sSoW} offen lds")
        else: s.e(f"s_add_u32 {sSoW}, s59, {(c-7)*65536}\nbuffer_load_dwordx4 {vA16}, {sWo}, {sSoW} offen lds")
    return f
def add_touch(segs):
    for c, at in enumerate(CFG['T2AT']):
        segs[at // 32].posts.setdefault(at % 32, []).append(touch2(c))

def touchA(t0, n, mask, T, T2, vp=vPoll):
    def f(s):
        if not CFG['TA']: return
        lab = label()
        s.e(f"v_min_u32 {T}, {n-1}, v0")
        if t0 < 28 and n > 4:
            d = ORDER[t0 + 4] - ORDER[t0] - 4
            s.e(f"v_lshrrev_b32 {T2}, 2, {T}\nv_mul_u32_u24 {T2}, {d}, {T2}\nv_add_u32 {T}, {T}, {T2}")
        off = ORDER[t0] * 1024 if t0 < 28 else 0
        s.e(f"v_lshlrev_b32 {T}, 10, {T}\ns_lshl_b32 {sSoW}, {sCB}, 7\ns_add_u32 {sSoW}, {sSoW}, {sA2y if t0 < 28 else sA2s}\ns_add_u32 {sSoW}, {sSoW}, {off}\ns_mov_b32 m0, {SCR_DUM}")
        s.e(f"v_cmp_ne_u32 vcc, 0, {vp}\ns_andn2_b32 {sT0}, {mask:#x}, vcc_lo\ns_cbranch_scc1 {lab}")
        s.raw(f"buffer_load_dword {T}, {sWs}, {sSoW} offen sc1 lds")
        s.e(f"{lab}:")
    return f

def ilv(st, co):
    out = st[:3] + co[:3] + [st[3]]
    a, b = st[4:], co[3:-1]
    while a or b:
        if a: out.append(a.pop(0))
        if a and len(a) > 2 * len(b): out.append(a.pop(0))
        if b: out.append(b.pop(0))
    return out + co[-1:]
def p0_items(a, b):
    it = []
    for c in range(4): it += x_items(c) + [a[c]]
    return it + b
def packin(acc): return [f"v_cvt_pk_bf16_f32 v{acc+j}, v{acc+2*j}, v{acc+2*j+1}" for j in range(8)]
def N(n, lo, hi): return [f"{n}{c}" for c in range(lo, hi)]
initchk = lambda s: poll_check(s, sDbg, "0", 0xffffffff, imm=128)
pollA = lambda s: poll_issue(s, sWs, sFL2)

def stream_A(s0, ch):
    CB, DB = CFG['CB'], CFG['DB']
    s = s0.fork(f"A{ch}"); s.e(f"L_typeA{ch}:")
    bl = unit_bases(s, 'A')
    items = p0_items(w_items("K", sWq, vDq, sUA, 3072), w_items("V", sWq, vDq, sUB, 3072)) + w_items("H", sW1, vD1, sUC, 3584) + b_items(0)
    ring = Ring(items, range(9), ch); ring.hold = ('XL3', 'XH3'); ring.upto0 = "V3"
    start(s, ring, bl)
    s.e(f"s_lshl_b32 {sSCRW}, {sW}, 12\ns_add_u32 {sSCRW}, {sSCRW}, {2*SLOT}")
    s.marks.update(f1=1, f2=1, fo=1)
    uK = dict(name="K", acc=ACC_A, trans=True, kind='w', csi=0)
    uV = dict(name="V", acc=ACC_B, trans=False, kind='w', csi=1)
    uH = dict(name="H", acc=ACC_C, trans=True, kind='w', csi=0)
    F = [('wait', 'c1')] + ilv(stats_fin(PT), correct(uK, ch, PT + 8))
    F += [f"v_lshlrev_b32 v25, 4, {vP4}", "v_lshrrev_b32 v26, 5, v0", "v_lshl_add_u32 v25, v26, 5, v25", f"v_add_u32 v25, {sSCRW}, v25", initchk]
    F += packin(ACC_A)
    for h in range(2):
        F += [f"{MF} {R(PT,16)}, {R(PHI+4*h,4)}, {R(ACC_A+4*h,4)}, 0", ('gap', 16)]
        F += softmax(PT, ACC_A + 8, "v26", vT)
        F += [f"ds_write_b128 v25, {R(ACC_A+8,4)} offset:{2048*h}", f"ds_write_b128 v25, {R(ACC_A+12,4)} offset:{2048*h+16}"]
    F += [('wait', 'c2')] + correct(uV, ch, PT + 12)
    F += ["v_lshrrev_b32 v26, 5, v0", "v_lshlrev_b32 v26, 4, v26", blk(f"s_lshl_b32 s4, {sRT}, 7\ns_add_u32 s4, s4, {SCR_RS}\nv_add_u32 {vT}, s4, v26")]
    for q in range(4): F.append(f"ds_read_b128 {R(PT+4*q,4)}, {vT} offset:{32*q}")
    F += ["v_bfe_u32 v25, v0, 2, 2", "v_lshlrev_b32 v25, 6, v25", "v_lshl_add_u32 v25, v26, 4, v25", f"v_bfe_u32 {vT}, v0, 4, 1",
          f"v_lshl_add_u32 v25, {vT}, 5, v25", f"v_cmp_eq_u32 s[94:95], 1, {vT}", f"v_and_b32 {vT}, 3, v0", f"v_lshl_add_u32 v25, {vT}, 3, v25",
          f"v_add_u32 v25, {sSCRW}, v25", f"v_mov_b32 {vT}, {sC11}"]
    for t in range(2):
        for rd in range(2): F.append(f"ds_read_b64_tr_b16 {R(PHI+4*t+2*rd,2)}, v25 offset:{2048 + t*1024 + rd*512}")
    for r in range(16): F.append(f"v_mul_f32 v{ACC_B+r}, v{ACC_B+r}, v{PT+r}")
    F += packin(ACC_B)
    for t in range(2):
        for rd in range(2): F.append(f"ds_read_b64_tr_b16 {R(ACC_B+8+4*t+2*rd,2)}, v25 offset:{t*1024 + rd*512}")
    for j in range(8): F.append(f"v_cndmask_b32 v{ACC_A+8+j}, {vT}, v{ACC_B+j}, s[94:95]")
    for j in range(8): F.append(f"v_cndmask_b32 v{ACC_A+j}, v{ACC_B+j}, {vT}, s[94:95]")
    F += [f"{MF} {R(PT,16)}, {R(ACC_A,4)}, {R(ACC_B+8,4)}, 0", f"{MF} {R(PT,16)}, {R(ACC_A+4,4)}, {R(ACC_B+12,4)}, {R(PT,16)}",
          f"{MF} {R(ACC_B,16)}, {R(ACC_A+8,4)}, {R(PHI,4)}, 0", f"{MF} {R(ACC_B,16)}, {R(ACC_A+12,4)}, {R(PHI+4,4)}, {R(ACC_B,16)}"]
    F += [f"v_add_u32 v25, {sSCRW}, {vA16}", blk(f"s_lshl_b32 s4, {sW}, 9\ns_add_u32 s4, s4, {SCR_Z}\nv_lshlrev_b32 v26, 2, v0\nv_add_u32 v26, s4, v26")]
    F += [f"ds_write_b128 v25, {R(PT,4)}", f"ds_write_b128 v25, {R(PT+4,4)} offset:1024", f"ds_write_b32 v26, v{PT+8}",
          f"ds_write_b128 v25, {R(ACC_B+8,4)} offset:2048", f"ds_write_b128 v25, {R(ACC_B+12,4)} offset:3072", f"ds_write_b32 v26, v{ACC_B} offset:256"]
    F += [blk(f"s_lshl_b32 s4, {sRT}, 10\ns_add_u32 s4, s4, {2*SLOT + ch*SLOT}\nv_add_u32 v25, s4, {vA16}"),
          blk(f"s_lshr_b32 s4, {sRT}, 1\ns_lshl_b32 s4, s4, 8\ns_add_u32 s4, s4, {SCR_Z + ch*2048}\nv_add_u32 v26, s4, {vP4}"), mark('kvw')]
    ER = [f"ds_read_b128 {R(PT+4*r,4)}, v25 offset:{r*4096}" for r in range(4)] + [f"ds_read_b32 v{ACC_A+r}, v26 offset:{r*512}" for r in range(4)]
    ER += ["v_lshrrev_b32 v25, 5, v0", f"v_lshl_add_u32 v25, v25, 9, {vP4}", blk(f"s_lshl_b32 s5, {sRT2}, 10\nv_add_u32 v25, s5, v25"),
           f"v_lshrrev_b32 {vT}, 4, v0", f"v_cmp_eq_u32 s[94:95], {sRT2}, {vT}", f"v_mov_b32 {vT}, {BIG}",
           blk(f"s_and_b32 s5, {sG}, 1\ns_mul_i32 s5, s5, {10*1024}\ns_add_u32 s5, s5, {ch*2048}\ns_add_u32 {sUD}, {sKS}, s5\ns_lshl_b32 s4, {sI}, 7\ns_add_u32 {sKVF}, {sKVF}, s4"),
           f"v_cndmask_b32 v26, {vT}, {vP4}, s[94:95]"]
    for j in range(4): ER += [f"v_add_f32 v{PT+j}, v{PT+j}, v{PT+4+j}", f"v_add_f32 v{PT+8+j}, v{PT+8+j}, v{PT+12+j}"]
    for j in range(4): ER.append(f"v_add_f32 v{PT+j}, v{PT+j}, v{PT+8+j}")
    ER += [f"v_add_f32 v{ACC_A}, v{ACC_A}, v{ACC_A+1}", f"v_add_f32 v{ACC_A+2}, v{ACC_A+2}, v{ACC_A+3}", f"v_add_f32 v{ACC_A}, v{ACC_A}, v{ACC_A+2}"]
    for j in range(4): ER.append((f"buffer_atomic_add_f32 v{PT+j}, v25, {sWs}, {sKVs} offen offset:{j*128}", "kv"))
    ER += [(f"buffer_atomic_add_f32 v{ACC_A}, v26, {sWs}, {sKVs} offen offset:2048", "kv"), stamp('kvat')]
    EH = correct(uH, ch, PHI, BI0) + fin_setup() + mish(ACC_C, PT + 8, sUD, "actA")
    fkv = flag_store("kv", sKVF, 0, 'fkv'); f3 = flag_store("actA", sFL, 2 * 128, 'f3')
    pr = lambda c: [bnm(0, c), bnm(1, c)]
    m0 = pass0(s, ring, uK, ch, bl, "V3", ["V0"])
    mV = MSeg(ring, uV, ch, {CB: [B(ring, "c1", ["V1", "V2"], ["K3"])], DB: [B(ring, "d1", ["V3", "H0"], N("V", 0, 2))]}, dma=CFG['ST'])
    F += [('wait', 'd2')] + ER + [mark('kvd')]
    def d2(s):
        print("   A forced before d2:", until(s, ring, F, 'kvw'))
        bar(s, ring, "d2", ["H3"], N("H", 0, 2))
    mH = MSeg(ring, uH, ch, {CB: [B(ring, "c2", ["H1", "H2"], N("V", 2, 4))], DB: [d2]},
              {30: [lambda s: drain(s, p2_setup(ring))], CFG['TAP']: [pollA], CFG['TAT']: [touchA(0, 8, 0xf, 'v160', 'v161')], 27: [pollA]}, dma=CFG['ST'])
    m0.posts.setdefault(29, []).append(lambda s: drain(s, phi_frags()))
    add_touch([m0, mV, mH])
    m0.run(s, mV); mV.run(s, mH, F, CFG['KB']); mH.run(s, None, F, lambda t: CFG['VB'])
    print("   A forced kvd:", until(s, ring, F, 'kvd')); ring.pump(s, 99)
    s.wait_tag("kv")
    bar(s, ring, "e1", pr(0), N("H", 2, 4), lg0=True, extra=[2, 3])
    if ch == 0:
        lab = label()
        s.e(f"s_cmp_lg_u32 {sW}, 0\ns_cbranch_scc1 {lab}")
        s.raw(f"buffer_store_dword {vOne}, {vFO}, {sWs}, {sKVF} offen sc1")
        s.e(f"{lab}:")
    drain(s, pull(ring, ch, 0))
    ring.rel8 = pr(1)
    F = EH[:80] + F + [B(ring, "e2", pr(1), pr(0), lg0=True), mark('vbar')] + pull(ring, ch, 1) + [mark('p1')] + EH[80:] + [mark('v1'), ('hold', CFG['F3G']), f3]
    aphase(s, ring, ch, F, list(range(36, 64, 4)) + list(range(80, 96, 4)) + [100, 120, 124], {'v1': [104, 108, 112, 116]}, CFG['TOFF'])
    return s

def stream_B(s0, ch):
    CB, DB = CFG['CB'], CFG['DB']
    s = s0.fork(f"B{ch}"); s.e(f"L_typeB{ch}:")
    bl = unit_bases(s, 'B')
    H5 = [(f"F{c}", sW1, vD5, sUD, 0, 16 * 3584, 0, 128 * 3584, lambda hf, c=c: 2 * c + hf) for c in range(2)]
    items = p0_items(w_items("U", sW1, vD1, sUA, 3584), w_items("Y", sW1, vD1, sUB, 3584)) + H5 + w_items("Q", sWq, vDq, sUC, 3072) + b_items(1)
    ring = Ring(items, range(9), ch); ring.upto0 = "Y3"
    start(s, ring, bl)
    s.e(f"s_and_b32 s5, {sG}, 1\ns_cmp_eq_u32 s5, 0\ns_cselect_b32 s5, 4, 2\ns_cselect_b32 s4, {12*1024}, 0\ns_lshl_b32 s5, s5, 10\n"
        f"s_add_u32 {sSCRW}, {sKS}, s4\ns_add_u32 s5, s5, {ch*2048}\ns_add_u32 {sKS}, {sKS}, s5")
    uU = dict(name="U", acc=ACC_A, trans=True, kind='w', csi=0)
    uY = dict(name="Y", acc=ACC_B, trans=True, kind='w', csi=1)
    uF = dict(name="F", acc=ACC_C, trans=True, kind='h5', csi=0)
    uQ = dict(name="Q", acc=ACC_A, trans=True, kind='w', csi=1)
    EU = ilv(stats_fin(PT), correct(uU, ch, PT + 8, BI0)) + [initchk, ('gap', 10)] + mish(ACC_A, PT, sKS, "act1") + [f"s_add_u32 {sKS}, {sKS}, 4096"]
    EY = correct(uY, ch, PT + 8, BI1) + [mark('b1dead'), ('gap', 16)] + mish(ACC_B, PT, sKS, "act2")
    EF = correct(uF, ch, PT + 8, BI2) + [('gap', 16)] + mish(ACC_C, PT, sSCRW, "act5")
    EQ = correct(uQ, ch, PT + 12) + phi_frags() + pack16(ACC_A, PK)
    EQ += [f"{MF} {R(PT,16)}, {R(PHI,4)}, {R(PK,4)}, 0", f"{MF} {R(ACC_B,16)}, {R(PHI+4,4)}, {R(PK+4,4)}, 0"] + fin_setup()
    EQ += softmax(PT, ACC_A, "v26", vT) + softmax(ACC_B, ACC_A + 8, "v26", vT)
    f1 = flag_store("act1", sFL, 0, 'f1'); f2 = flag_store("act2", sFL, 128, 'f2'); f3 = flag_store("act5", sFL, 3 * 128, 'f3')
    pr = lambda c: [bnm(0, c), bnm(1, c)]
    FG = ('gap', CFG['FG'])
    F = [('wait', 'c1')] + EU + [mark('m1'), ('wait', 'c2')] + split(EY, 0.6, f1) + [mark('m2')]
    if ch == 0: F += [('wait', 'c3')] + split(EF, 0.6, f2) + [mark('m3')]
    else: F += [FG, f2, mark('m3'), mark('f3')]
    m0 = pass0(s, ring, uU, ch, bl, "Y3", ["Y0"])
    mY = MSeg(ring, uY, ch, {CB: [B(ring, "c1", ["Y1", "Y2"], ["U3"])], DB: [B(ring, "d1", ["Y3", "F0"], N("Y", 0, 2))]}, dma=CFG['ST'])
    c2 = B(ring, "c2", ["F1", "Q0"], N("Y", 2, 4), owner=1)
    mQ = MSeg(ring, uQ, ch, {CB: [B(ring, "c3", ["Q1", "Q2"], ["F0", "F1"])], DB: [B(ring, "d3", ["Q3"] + pr(0), N("Q", 0, 2))]},
              {15: [lambda s: (until(s, ring, F, 'b1dead'), drain(s, p2_setup(ring)))], 22: pull(ring, ch, 0)[:2], 24: pull(ring, ch, 0)[2:], CFG['TAP']: [pollA], CFG['TAT']: [touchA(0, 8, 0xf, 'v160', 'v161')], 27: [pollA]}, dma=CFG['ST'])
    add_touch([m0, mY, mQ])
    m0.run(s, mY)
    if ch == 0:
        mF = MSeg(ring, uF, ch, {CB: [c2]}, dma=CFG['ST'] // 2)
        mY.run(s, mF, F, CFG['P1B']); mF.run(s, mQ, F, CFG['FB'])
    else:
        mY.run(s, None, F, CFG['P1B']); c2(s); vrun(s, ring, F, CFG['IB']); mQ.pre(s)
    print("   B forced m1:", until(s, ring, F, 'm1'))
    mQ.run(s, None, F, CFG['QB'][ch])
    KS, OD, OD2, OF, OP = WB, PT, ACC_B, PHI, PK
    def kvfetch(s):
        poll_check(s, sWs, sKVF, 0xffff, vPoll2, vo="v21")
        s.e(f"s_lshl_b32 s5, {sRT2}, 10\ns_add_u32 s5, s5, {sKVs}")
        s.e(f"buffer_load_dwordx4 {R(KS,4)}, {vA16}, {sWs}, s5 offen sc1")
        s.e(f"v_and_b32 v21, 3, v0\nv_lshlrev_b32 v21, 4, v21\ns_lshl_b32 s5, {sRT2}, 6\ns_add_u32 s5, s5, {sKVs}")
        s.e(f"buffer_load_dwordx4 {R(KS+4,4)}, v21, {sWs}, s5 offen offset:2048 sc1")
    IM = [f"v_cvt_pk_bf16_f32 v{KS}, v{KS}, v{KS+1}", f"v_cvt_pk_bf16_f32 v{KS+1}, v{KS+2}, v{KS+3}",
          f"v_cvt_pk_bf16_f32 v{KS+4}, v{KS+4}, v{KS+5}", f"v_cvt_pk_bf16_f32 v{KS+5}, v{KS+6}, v{KS+7}",
          blk(f"s_mul_i32 s5, {sKQ}, 1088\ns_add_u32 s5, s5, {SCR_KV}\ns_lshl_b32 s4, {sRT2}, 9\ns_add_u32 s4, s4, s5\nv_lshlrev_b32 v25, 3, v0\nv_add_u32 v25, s4, v25\n"
              f"ds_write_b64 v25, {R(KS,2)}\ns_lshl_b32 s4, {sRT2}, 5\ns_add_u32 s4, s4, s5\nv_lshrrev_b32 v21, 1, v21\nv_add_u32 v21, s4, v21\nds_write_b64 v21, {R(KS+4,2)} offset:1024"),
          f"v_min_u32 v25, 64, {vP4}", "v_lshlrev_b32 v25, 4, v25", "v_lshrrev_b32 v26, 5, v0", "v_lshl_add_u32 v25, v26, 5, v25",
          blk(f"v_add_u32 v25, {SCR_KV + ch*2176}, v25\ns_lshl_b32 s5, {sG}, 12\ns_add_u32 s5, s5, {sAF}\ns_add_u32 {sSCRW}, s5, {112*1024 + ch*2048}")]
    O = [f"ds_read_b128 {R(OF,4)}, v25", f"ds_read_b128 {R(OF+4,4)}, v25 offset:16", f"ds_read_b128 {R(OP,4)}, v25 offset:1088", f"ds_read_b128 {R(OP+4,4)}, v25 offset:1104"]
    O += [f"{MF} {R(OD,16)}, {R(OF,4)}, {R(ACC_A,4)}, 0", f"{MF} {R(OD,16)}, {R(OF+4,4)}, {R(ACC_A+4,4)}, {R(OD,16)}",
          f"{MF} {R(OD2,16)}, {R(OP,4)}, {R(ACC_A+8,4)}, 0", f"{MF} {R(OD2,16)}, {R(OP+4,4)}, {R(ACC_A+12,4)}, {R(OD2,16)}"]
    for h, D in enumerate((OD, OD2)):
        O += [f"v_add_f32 v26, 0x358637bd, v{D+8}", "v_rcp_f32 v26, v26"]
        for j in range(8): O.append(f"v_mul_f32 v{D+j}, v{D+j}, v26")
        for j in range(4): O.append(f"v_cvt_pk_bf16_f32 v{ACC_A+4*h+j}, v{D+2*j}, v{D+2*j+1}")
        O.append((f"buffer_store_dwordx4 {R(ACC_A+4*h,4)}, {vA16}, {sWs}, {sSCRW} offen offset:{h*1024} sc1", "o"))
    O.append(stamp('ost'))
    bar(s, ring, "e1", pr(1), N("Q", 2, 4) + pr(0), lg0=True)
    drain(s, pull(ring, ch, 1)); s.marks['p1'] = 1
    ring.rel8 = []
    def ins(L, back, item): return L[:len(L) - back] + [item] + L[len(L) - back:]
    F2 = F + EQ
    if ch == 0: F2 = ins(F2, 150, f3)
    F2 = ins(F2, CFG['KP'], lambda s: (s.e("v_min_u32 v21, 15, v0\nv_lshlrev_b32 v21, 7, v21"), poll_issue(s, sWs, sKVF, vPoll2, vo="v21")))
    F2 = ins(F2, CFG['KF'], kvfetch)
    F2 += IM + [B(ring, "e2", [], pr(1), lg0=True), mark('vbar')] + O + [mark('v1'), ('hold', CFG['OW']), flag_store("o", sFL, 4 * 128, 'fo')]
    aphase(s, ring, ch, F2, [88, 92], {'f3': [64, 68, 72, 76], 'v1': [80, 84] + list(range(40, 64, 4)) + list(range(96, 128, 4))}, 0)
    return s

def build(path, listform=True):
    s0 = Stream("P")
    if PROFILE: s0.e("s_memtime s[96:97]")
    prologue(s0)
    s0.e(f"s_lshl_b32 s5, {sTY}, 1\ns_add_u32 s5, s5, {sCH}\ns_cmp_eq_u32 s5, 0\ns_cbranch_scc1 L_typeA0\ns_cmp_eq_u32 s5, 1\ns_cbranch_scc1 L_typeA1\ns_cmp_eq_u32 s5, 3\ns_cbranch_scc1 L_typeB1")
    B0 = stream_B(s0, 0); B1 = stream_B(s0, 1); A0 = stream_A(s0, 0); A1 = stream_A(s0, 1)
    assert B0.nbar == B1.nbar and A0.nbar == A1.nbar
    assert B0.slots == B1.slots and A0.slots == A1.slots
    hdr = open("recurrent_scan__linear_kernel_hedgehog__dense_activation_mish__prompt.s.ref").read().split("; Override")[0]
    T = [hdr.rstrip(), f"; @launch {'kernel=' + KNAME + ' ' if listform else ''}grid=(256,1,1) block=(512,1,1) lds=163840",
         '.amdgcn_target "amdgcn-amd-amdhsa--gfx950"', ".text", f".globl {KNAME}", ".p2align 8", f".type {KNAME},@function", f"{KNAME}:"]
    S = [s0, B0, B1, A0, A1]
    for st in S:
        T.append(f"; ---- stream {st.name}  nops={st.stats['nop']} waits={st.stats['wait']} barriers={st.nbar}")
        T.append(st.text())
    for st in S: T += st.ool
    T.append("L_end:\n  s_endpgm")
    T.append(".fill 6144, 4, 0xbf800000")
    T.append(f'''.section .rodata,"a"
.p2align 6
.amdhsa_kernel {KNAME}
  .amdhsa_next_free_vgpr 256
  .amdhsa_next_free_sgpr 102
  .amdhsa_accum_offset 256
  .amdhsa_group_segment_fixed_size 0
  .amdhsa_kernarg_size 88
  .amdhsa_user_sgpr_count 2
  .amdhsa_user_sgpr_kernarg_segment_ptr 1
  .amdhsa_system_sgpr_workgroup_id_x 1
.end_amdhsa_kernel''')
    open(path, "w").write("\n".join(T) + "\n")
    for st in S: print(st.name, "instrs", len(st.out), st.stats, "barriers", st.nbar)

if __name__ == "__main__":
    for a in sys.argv[2:]:
        if a == "prof": PROFILE = True
        elif '=' in a:
            k, v = a.split('='); CFG[k] = eval(v)
    build(sys.argv[1], listform=("final" not in sys.argv))
```

```python
import sys
sys.path.insert(0, 'gen')
from ab import *

KNAME = "recurrent_scan__linear_kernel_hedgehog__dense_activation_mish__prompt_kernel"
PROFILE = False
SLOT = 16384
SCR = 9 * SLOT
SCR_PHI = SCR
SCR_RS = SCR + 2048
SCR_ST = SCR + 2560
SCR_CS = SCR + 6656
SCR_Z = SCR + 10752
SCR_KV = SCR + 10752
Z_OFF = 0x920000
KV_OFF = Z_OFF
KVFLAG_OFF = Z_OFF + 0x11000
ACTFLAG_OFF = Z_OFF + 0x16000
PROF_OFF = 0xA00000
BIG = 0x40000000
CFG = dict(AD=16, A0=8, AN=2, BN=1, G8=1, F3G=900, PB=[(200, 40), (80, 55), (80, 40)], SLP=8, PW0=0, PG=0, OSC='', TAP=8, TAT=20, TAD=2, CB=6, DB=22, TW=1, TWT=2, GT=[2000, 4000, 5500, 500], TOFF=-1000, LT=200, LT2=200, QD2=800, LAT=900, QD=800, PLT=1500, BL=6, VC=9, T2=0, T2AT=[30, 35, 40, 45, 50, 55, 60, 66, 72], PF=3, PL=4, S0=6, S1=4, PRIO=0, VD=10, KP=90, KF=30, OW=900, G16=8, G28=20, TV=12, TB=1, TBT=28, TA=0, TO=11, T0=0, T1=0, ROT=2, RATE=38, BURST=24576, ST=90,
    CRED=6, AGE=14, P1B=5, FB=5, QB=[10, 3], IB=200, KB=6, VB=15, KVG=60, EH0=60, FG=60, E1=[120, 100], E2=[100, 80])

sX, sWq, sW1, sW2, sWo, sPhi, sB1, sOut, sDbg, sWs = [f"s[{8+4*i}:{11+4*i}]" for i in range(10)]
sW, sRT, sCH, sI, sG, sTY, sRB, sCB, sKQ, sRT2 = [f"s{48+i}" for i in range(10)]
sT0 = "s3"
sC10, sC01, sC11 = "s58", "s59", "s60"
sM0W = "s61"; sSoW = "s62"
sUA, sUB, sUC, sUD = "s63", "s6", "s7", "s2"
sAF, sFL, sAF2, sFL2, sB2, sBo, sKVs, sKVF, sSCRW, sCNT, sKS, sBID = [f"s{64+i}" for i in range(12)]
sA2y, sA2s, sOo = "s0", "s1", "s5"
STAMP0 = 76

vA16 = "v1"; vDq = "v2"; vD1 = "v3"; vDB = "v4"; vD5 = "v5"
VW = 6
vRS, vRSL, vM2 = "v14", "v15", "v22"
CF = 16
BI0, BI1, BI2 = 23, 24, 25
vPoll = "v27"; vFO = "v28"; vOne = "v10"; vP4 = "v30"; vT = "v31"; vPoll2 = "v9"
ACC_A, ACC_B, ACC_C = 32, 48, 64
WB = 80; PT = 96; PHI = 112; PK = 120; XA = 128
XR = 64; XD = 72; HR = 112; STA = 96; CSB = 116; ASEL = 120; CSA = 124
sXb = "s86"; sRot = "s89"; ROT0 = 98

def R(b, n): return f"v[{b}:{b+n-1}]"
def ldsaddr(regs, byte): return regs[byte >> 16], byte & 0xffff
_nl = [0]
def label():
    _nl[0] += 1; return f"L{_nl[0]}"
def stamp(name):
    def f(s):
        if not PROFILE: return
        if not hasattr(s, 'snames'): s.snames = []
        idx = len(s.snames)
        if idx >= 63: return
        s.snames.append(str(name))
        s.e(f"s_memtime s[{STAMP0+2*(idx%4)}:{STAMP0+1+2*(idx%4)}]")
        if idx >= 2: s.raw(f"v_writelane_b32 v29, s{STAMP0+2*((idx-2)%4)}, {idx-2}")
    return f
def srd(s, dst, lo, hi, size):
    b = int(dst[2:dst.index(':')])
    s.e(f"s_mov_b32 s{b}, {lo}\ns_and_b32 s{b+1}, {hi}, 0xffff\ns_mov_b32 s{b+2}, {size}\ns_mov_b32 s{b+3}, 0x20000")
def poll_issue(s, srd_, soff, vp=vPoll, imm=0, vo=vP4):
    s.e(f"buffer_load_dword {vp}, {vo}, {srd_}, {soff} offen offset:{imm} sc1")
def poll_check(s, srd_, soff, mask, vp=vPoll, imm=0, vo=vP4):
    l1, l2, l3 = label(), label(), label()
    stamp(f"[p{imm//128}_{mask:x}")(s)
    s.e(f"v_cmp_ne_u32 vcc, 0, {vp}\ns_andn2_b32 {sT0}, {mask:#x}, vcc_lo\ns_cbranch_scc1 {l1}\n{l2}:")
    stamp(f"p]")(s)
    s.ool.append(f"""{l1}:
  s_mov_b32 {sCNT}, 0x10000
{l3}:
  s_sleep {CFG['SLP']}
  buffer_load_dword {vp}, {vo}, {srd_}, {soff} offen offset:{imm} sc1
  s_waitcnt vmcnt(0)
  v_cmp_ne_u32 vcc, 0, {vp}
  s_nop 1
  s_andn2_b32 {sT0}, {mask:#x}, vcc_lo
  s_cbranch_scc0 {l2}
  s_sub_u32 {sCNT}, {sCNT}, 1
  s_cmp_lg_u32 {sCNT}, 0
  s_cbranch_scc1 {l3}
  s_branch {l2}""")
def flag_store(tagwait, soff, imm, mark):
    def f(s):
        stamp("(" + mark)(s)
        s.wait_tag(tagwait)
        stamp(mark + ")")(s)
        s.e(f"buffer_store_dword {vOne}, {vFO}, {sWs}, {soff} offen offset:{imm} sc1")
        s.marks[mark] = 1
    return f
def blk(text): return lambda s: s.e(text)

class Ring:
    hold = ()
    def __init__(self, items, free, ch):
        self.items = list(items); self.free = list(free); self.slot = {}; self.q = []; self.log = {}; self.ch = ch
        self.order = {it[0]: k for k, it in enumerate(items)}; self.xres = True
    def release(self, name):
        if name not in self.hold: self.free.append(self.slot[name])
    def assign(self, s, owner='all', upto=None, maxn=99):
        k = 0
        while k < len(self.items) and maxn > 0:
            it = self.items[k]; nm = it[0]
            if upto is not None and self.order[nm] > self.order[upto]: break
            if nm[0] == 'X':
                want = 2 * (int(nm[2]) & 1) + (nm[1] == 'H')
                ok = [x for x in self.free if x == want]
                if not ok: k += 1; continue
            elif nm[0] in 'BF': ok = [x for x in self.free if not (self.xres and x < 4)]
            else: ok = [x for x in self.free if x != 0 and not (self.xres and x < 4)]
            if not ok:
                if nm[0] != 'B': k += 1; continue
                break
            if nm[0] in 'BF' and 0 in ok: ok = [0]
            self.items.pop(k); sl = ok[0]; self.free.remove(sl); self.slot[nm] = sl; maxn -= 1
            self.log[nm] = [s.nbar, None, owner]
            if owner == 'all': self.q += [(it, sl, h, 0) for h in range(2)]
            elif owner == self.ch: self.q += [(it, sl, h, o) for o in range(2) for h in range(2)]
            if nm == 'XH3': self.xres = False
        self.q.sort(key=lambda e: self.order[e[0][0]])
    def pump(self, s, n=1):
        while n > 0 and self.q:
            it, sl, h, other = self.q.pop(0)
            name, srd_, voff, sbase, o0, o1, dl = it[:7]
            sg = (1 if self.ch == 0 else -1) * other
            vo = voff[h] if isinstance(voff, tuple) else voff
            s.e(f"s_add_u32 m0, {sM0W}, {(sl*SLOT + h*1024 + sg*8192) & 0xffffffff:#x}")
            if len(it) > 7:
                mul, cidx = it[7], it[8](self.ch if not other else 1 - self.ch)
                key = (sbase, mul, cidx)
                if self.rkey != key:
                    s.e(f"s_mul_i32 {sRot}, s{ROT0+cidx}, {mul}\ns_add_u32 {sRot}, {sRot}, {sbase}")
                    self.rkey = key
                sbase = sRot
            s.e(f"s_add_u32 {sSoW}, {sbase}, {((o0, o1)[h] + sg*dl) & 0xffffffff:#x}")
            s.e(f"buffer_load_dwordx4 {vo}, {srd_}, {sSoW} offen lds", tag=name)
            n -= 1
    rkey = None
    cred = 0
    def pace(self, s, cycles):
        self.cred = min(self.cred + cycles * CFG['RATE'], CFG['BURST'])
        while self.q:
            e = self.q[0]
            cost = (8192 if self.log[e[0][0]][2] == 'all' else 4096) * (2 if e[0][0][0] == 'F' else 1)
            if self.cred < cost: break
            self.cred -= cost; self.pump(s, 1)
    def need(self, s, name):
        assert name in self.slot, f"{name} has no slot yet"
        while any(e[0][0] == name for e in self.q):
            print("  warning: forced DMA issue for", name, "in", s.name)
            self.pump(s)
        if self.log[name][1] is None: self.log[name][1] = s.nbar
        s.wait_tag(name)
def x_items(q):
    return [(f"XL{q}", sX, (f"v{XD}", f"v{XD+1}"), sXb, 0, 0, 0, 256, lambda c: q), (f"XH{q}", sX, (f"v{XD}", f"v{XD+1}"), sXb, 65536, 65536, 0, 256, lambda c: q)]
def w_items(name, srd_, voff, sbase, stride):
    return [(f"{name}{c}", srd_, voff, sbase, 0, 8 * stride, 64 * stride, 128 * stride, lambda ch, c=c: c) for c in range(4)]
ORDER = [4, 5, 6, 7, 16, 17, 18, 19, 8, 9, 10, 11, 20, 21, 22, 23, 12, 13, 14, 15, 0, 1, 2, 3, 24, 25, 26, 27]
def b_item(hf, c):
    nm = f"B{'ab'[hf]}{c}"
    if c < 7:
        o = hf * 896 * 1024 + ORDER[4 * c] * 16384
        return (nm, sW2, vDB, sB2, o, o + 8192, 448 * 1024)
    o = hf * 256 * 1024 + (c - 7) * 65536
    return (nm, sWo, vDB, sBo, o, o + 8192, 128 * 1024)
def b_items(first):
    it = []
    for c in range(9): it += [b_item(0, c), b_item(1, c)]
    return it

def mish(acc, tmp, so, tag):
    F = []
    for hb in range(2):
        a = acc + 8 * hb
        for j in range(8): F.append(f"v_mul_f32 v{tmp+j}, v{a+j}, {vRSL}")
        for j in range(8): F.append(f"v_exp_f32 v{tmp+j}, v{tmp+j}")
        for j in range(8): F.append(f"v_add_f32 v{tmp+j}, 1.0, v{tmp+j}")
        for j in range(8): F.append(f"v_fma_f32 v{tmp+j}, v{tmp+j}, v{tmp+j}, 1.0")
        for j in range(8): F.append(f"v_rcp_f32 v{tmp+j}, v{tmp+j}")
        for j in range(8): F.append(f"v_fma_f32 v{tmp+j}, v{tmp+j}, {vM2}, {vRS}")
        for j in range(8): F.append(f"v_mul_f32 v{tmp+j}, v{a+j}, v{tmp+j}")
        for j in range(4): F.append(f"v_cvt_pk_bf16_f32 v{a+j}, v{tmp+2*j}, v{tmp+2*j+1}")
        F.append((f"buffer_store_dwordx4 {R(a,4)}, {vA16}, {sWs}, {so} offen offset:{hb*1024} sc1", tag))
    return F
def softmax(P, out, t0, t1):
    F = [f"v_max3_f32 {t0}, v{P}, v{P+1}, v{P+2}", f"v_max3_f32 {t1}, v{P+3}, v{P+4}, v{P+5}",
         f"v_max3_f32 {t0}, {t0}, v{P+6}, v{P+7}", f"v_max3_f32 {t1}, {t1}, v{P+8}, v{P+9}",
         f"v_max3_f32 {t0}, {t0}, v{P+10}, v{P+11}", f"v_max3_f32 {t1}, {t1}, v{P+12}, v{P+13}",
         f"v_max3_f32 {t0}, {t0}, v{P+14}, v{P+15}", f"v_max_f32 {t0}, {t0}, {t1}", f"v_mul_f32_e64 {t0}, -{t0}, {vRSL}"]
    for j in range(16): F.append(f"v_fma_f32 v{P+j}, v{P+j}, {vRSL}, {t0}")
    for j in range(16): F.append(f"v_exp_f32 v{P+j}, v{P+j}")
    F += [f"v_add_f32 {t0}, v{P}, v{P+1}", f"v_add_f32 {t1}, v{P+2}, v{P+3}"]
    for j in range(4, 16, 2):
        F += [f"v_add_f32 {t0}, {t0}, v{P+j}", f"v_add_f32 {t1}, {t1}, v{P+j+1}"]
    F += [f"v_add_f32 {t0}, {t0}, {t1}", f"v_rcp_f32 {t0}, {t0}"]
    for j in range(16): F.append(f"v_mul_f32 v{P+j}, v{P+j}, {t0}")
    for j in range(8): F.append(f"v_cvt_pk_bf16_f32 v{out+j}, v{P+2*j}, v{P+2*j+1}")
    return F
def pack16(acc, out): return [f"v_cvt_pk_bf16_f32 v{out+j}, v{acc+2*j}, v{acc+2*j+1}" for j in range(8)]
def phi_frags():
    F = ["v_bfe_u32 v25, v0, 2, 2", "v_lshrrev_b32 v26, 5, v0", "v_lshl_add_u32 v25, v26, 2, v25", "v_lshlrev_b32 v25, 5, v25",
         "v_bfe_u32 v26, v0, 4, 1", "v_lshl_add_u32 v25, v26, 4, v25", "v_bfe_u32 v26, v0, 1, 1", "v_lshl_add_u32 v25, v26, 3, v25",
         blk(f"s_lshl_b32 s4, {sCH}, 10\ns_add_u32 s4, s4, {SCR_PHI}\nv_add_u32 v25, s4, v25")]
    for h in range(2):
        for rd in range(2): F.append(f"ds_read_b64_tr_b16 {R(PHI+4*h+2*rd,2)}, v25 offset:{h*512 + rd*256}")
    F += ["v_bfe_u32 v26, v0, 2, 1", "v_mul_u32_u24 v26, 0x8000, v26", "v_lshl_or_b32 v26, v26, 16, v26"]
    for j in range(8): F.append(f"v_xor_b32 v{PHI+j}, v26, v{PHI+j}")
    return F

def prologue(s):
    s.e("s_load_dwordx2 s[64:65], s[0:1], 0\ns_load_dwordx2 s[84:85], s[0:1], 80")
    s.e("s_load_dwordx8 s[68:75], s[0:1], 8\ns_load_dwordx8 s[76:83], s[0:1], 40\ns_load_dwordx2 s[66:67], s[0:1], 72")
    s.e("s_cmp_ge_u32 s2, 256\ns_cbranch_scc1 L_end")
    if CFG['PW0']:
        s.e(f"s_getpc_b64 s[90:91]\nL_pc0:\ns_sub_u32 s90, s90, L_pc0-{KNAME}\ns_subb_u32 s91, s91, 0\ns_lshr_b32 s5, s2, 3\ns_mul_i32 s5, s5, 2560")
        s.e("v_cmp_gt_u32 vcc, 20, v0\ns_and_saveexec_b64 s[92:93], vcc\ns_cbranch_execz L_pw0\nv_lshlrev_b32 v35, 7, v0\nv_add_u32 v35, s5, v35")
        s.raw("global_load_dword v26, v35, s[90:91]")
        s.e("L_pw0:\ns_mov_b64 exec, s[92:93]")
    s.e("v_lshrrev_b32 v2, 6, v0\nv_and_b32 v0, 63, v0")
    s.e(f"v_readfirstlane_b32 {sW}, v2")
    s.e("s_and_b32 s3, s2, 7\ns_lshr_b32 s4, s2, 3" if not CFG.get('BADMAP') else "s_lshr_b32 s3, s2, 5\ns_and_b32 s4, s2, 31")
    s.e(f"s_and_b32 s5, s3, 1\ns_lshl_b32 s5, s5, 3\ns_and_b32 {sI}, s4, 7\ns_add_u32 {sI}, {sI}, s5")
    s.e(f"s_lshr_b32 {sKQ}, {sW}, 1\ns_and_b32 {sRT2}, {sW}, 1\ns_lshl_b32 {sM0W}, {sW}, 11")
    s.e(f"s_and_b32 {sRT}, {sW}, 3\ns_lshr_b32 {sCH}, {sW}, 2")
    s.e(f"s_lshr_b32 s5, s3, 1\ns_lshl_b32 s5, s5, 2\ns_lshr_b32 s6, s4, 3\ns_add_u32 s5, s5, s6")
    s.e(f"s_lshr_b32 {sG}, s5, 1\ns_and_b32 {sTY}, s5, 1")
    s.e({0: f"s_mov_b32 s{ROT0}, 0", 1: f"s_add_u32 s{ROT0}, s5, {sI}", 2: f"s_lshr_b32 s{ROT0}, s3, 1\ns_lshl_b32 s{ROT0+1}, s3, 1\ns_add_u32 s{ROT0}, s{ROT0}, s{ROT0+1}"}[CFG['ROT']])
    for c in range(1, 4): s.e(f"s_add_u32 s{ROT0+c}, s{ROT0}, {c}\ns_and_b32 s{ROT0+c}, s{ROT0+c}, 3")
    s.e(f"s_and_b32 s{ROT0}, s{ROT0}, 3")
    s.e(f"s_lshl_b32 {sRB}, s3, 2\ns_add_u32 {sRB}, {sRB}, s6\ns_and_b32 {sCB}, s4, 7\ns_mov_b32 s87, s4")
    s.e(f"v_lshrrev_b32 v33, 4, v0\nv_and_b32 v34, 15, v0\ns_lshl_b32 s5, {sRT2}, 3")
    for h in range(2):
        s.e(f"v_add_u32 v35, {4*h}, v33\nv_add_u32 v36, s5, v35\nv_xor_b32 v36, v34, v36\nv_lshlrev_b32 v36, 4, v36\nv_lshl_add_u32 v{XD+h}, v35, 10, v36")
    s.e(f"s_lshl_b32 {sXb}, {sI}, 17\ns_lshl_b32 s5, {sW}, 13\ns_add_u32 {sXb}, {sXb}, s5")
    s.e("v_lshrrev_b32 v36, 3, v0\nv_and_b32 v37, 7, v0\nv_lshlrev_b32 v38, 1, v36\nv_and_b32 v38, 4, v38\nv_xor_b32 v37, v37, v38\nv_lshlrev_b32 v37, 4, v37")
    s.e(f"v_mul_u32_u24 {vDq}, 3072, v36\nv_add_u32 {vDq}, {vDq}, v37\nv_mul_u32_u24 {vD1}, 3584, v36\nv_add_u32 {vD1}, {vD1}, v37")
    s.e(f"v_lshl_add_u32 {vDB}, v36, 10, v37\nv_lshlrev_b32 {vA16}, 4, v0")
    s.raw("s_waitcnt lgkmcnt(0)")
    srd(s, sX, "s64", "s65", 2048 * 512 * 2)
    srd(s, sWq, "s68", "s69", 512 * 1536 * 2)
    srd(s, sW1, "s76", "s77", 512 * 1792 * 2)
    srd(s, sWs, "s84", "s85", 0x10000000)
    s.e("s_cmp_ge_u32 s2, 32\ns_cbranch_scc1 L_noinit")
    s.e("v_mov_b32 v40, 0\nv_mov_b32 v41, 0\nv_mov_b32 v42, 0\nv_mov_b32 v43, 0")
    s.e(f"s_lshl_b32 s5, s2, 13\ns_lshl_b32 s6, {sW}, 10\ns_add_u32 s5, s5, s6\ns_add_u32 s5, s5, {Z_OFF}")
    s.raw(f"buffer_store_dwordx4 v[40:43], {vA16}, {sWs}, s5 offen sc1")
    s.e("L_noinit:")
    s.e("s_mov_b32 s88, s2")

def prologue2(s):
    lab = label()
    s.e(f"s_cmp_lg_u32 {sW}, {99 if CFG['PW0'] else 7}\ns_cbranch_scc1 {lab}")
    s.e(f"s_getpc_b64 s[90:91]\n{lab}x:\ns_sub_u32 s90, s90, {lab}x-{KNAME}\ns_subb_u32 s91, s91, 0\ns_mul_i32 s5, s87, 2560\nv_min_u32 v35, 19, v0\nv_lshlrev_b32 v35, 7, v35\nv_add_u32 v35, s5, v35")
    s.raw("global_load_dword v26, v35, s[90:91]")
    s.e(f"{lab}:")
    srd(s, sPhi, "s70", "s71", 32 * 512)
    srd(s, sB1, "s78", "s79", 1792 * 2)
    srd(s, sW2, "s80", "s81", 1792 * 512 * 2)
    srd(s, sWo, "s72", "s73", 512 * 512 * 2)
    srd(s, sOut, "s82", "s83", 2048 * 512 * 2)
    srd(s, sDbg, "s66", "s67", 256)
    s.e(f"s_mov_b32 {sBID}, s88\ns_mov_b32 {sC11}, 0x3f803f80")
    s.e(f"v_lshrrev_b32 v36, 2, v0\nv_and_b32 v37, 3, v0\nv_lshlrev_b32 v37, 4, v37\nv_mul_u32_u24 {vD5}, 3584, v36\nv_add_u32 {vD5}, {vD5}, v37")
    s.e(f"v_and_b32 {vP4}, 31, v0\nv_lshlrev_b32 {vP4}, 2, {vP4}")
    s.e(f"v_mov_b32 v29, 0\nv_mov_b32 {vFO}, {BIG}\nv_cmp_eq_u32 vcc, 0, v0\nv_cndmask_b32 {vFO}, {vFO}, 0, vcc")
    s.e("v_bfe_u32 v36, v0, 2, 2\nv_and_b32 v37, 3, v0\nv_bfe_u32 v38, v0, 4, 1\nv_lshrrev_b32 v39, 5, v0")
    s.e("v_lshlrev_b32 v40, 3, v37\nv_lshl_add_u32 v40, v38, 5, v40\nv_lshl_add_u32 v41, v39, 3, v36")
    s.e(f"v_lshrrev_b32 v42, 1, v36\nv_xor_b32 v42, {sCH}, v42\nv_lshlrev_b32 v42, 6, v42")
    s.e(f"v_lshl_add_u32 v43, v41, 7, v40\nv_add_u32 v43, v43, v42")
    for j in range(4):
        s.e(f"s_xor_b32 s5, {sRT}, {j}\ns_lshl_b32 s5, s5, 12\ns_add_u32 s5, s5, {SLOT}\nv_add_u32 v{VW+j}, s5, v43\nv_add_u32 v{VW+4+j}, 0x10000, v{VW+j}")
    s.e(f"v_and_b32 v44, 31, v0\ns_lshl_b32 s5, {sRT}, 5\nv_add_u32 v45, s5, v44\nv_xor_b32 v46, v39, v34\nv_lshlrev_b32 v46, 4, v46\nv_lshl_add_u32 v{XR}, v45, 8, v46")
    s.e(f"s_lshl_b32 s5, {sRT}, 6\nv_xor_b32 v{XR}, s5, v{XR}")
    for t in range(1, 8): s.e(f"v_xor_b32 v{XR+t}, {t<<5}, v{XR}")
    s.e(f"v_lshlrev_b32 v44, 2, v38\nv_cmp_eq_u32 vcc, v44, v34\nv_mov_b32 v44, {sC11}\nv_cndmask_b32 v{ASEL}, 0, v44, vcc")
    for j in range(1, 4): s.e(f"v_mov_b32 v{ASEL+j}, v{ASEL}")
    s.e(f"v_mov_b32 v{CF+4}, 0\nv_mov_b32 v{CF+5}, 0")
    s.e(f"s_lshl_b32 s3, {sI}, 2\ns_add_u32 s3, s3, {sRT}\ns_mul_i32 {sAF}, s3, {145*1024}")
    s.e(f"s_mul_i32 {sKS}, {sG}, {14*1024}\ns_add_u32 {sKS}, {sKS}, {sAF}")
    s.e(f"s_lshl_b32 {sFL}, s3, 2\ns_lshr_b32 s4, {sG}, 1\ns_add_u32 {sFL}, {sFL}, s4\ns_mul_i32 {sFL}, {sFL}, 640")
    s.e(f"s_and_b32 s4, {sG}, 1\ns_lshl_b32 s4, s4, 3\ns_lshl_b32 s5, {sCH}, 2\ns_add_u32 s4, s4, s5\ns_add_u32 {sFL}, {sFL}, s4\ns_add_u32 {sFL}, {sFL}, {ACTFLAG_OFF}")
    s.e(f"s_lshl_b32 s3, {sRB}, 1\ns_add_u32 s3, s3, {sRT2}\ns_mul_i32 {sAF2}, s3, {145*1024}")
    s.e(f"s_lshl_b32 {sFL2}, s3, 2\ns_add_u32 {sFL2}, {sFL2}, {sKQ}\ns_mul_i32 {sFL2}, {sFL2}, 640\ns_add_u32 {sFL2}, {sFL2}, {ACTFLAG_OFF}")
    s.e(f"s_mul_i32 {sB2}, {sCH}, {448*1024}\ns_lshl_b32 s4, {sRT}, 14\ns_lshl_b32 s5, {sCB}, 7\ns_add_u32 s4, s4, s5\ns_add_u32 {sB2}, {sB2}, s4")
    s.e(f"s_lshl_b32 {sBo}, {sCH}, 17\ns_add_u32 {sBo}, {sBo}, s4")
    s.e(f"s_lshl_b32 s3, {sG}, 2\ns_add_u32 s3, s3, {sKQ}\ns_mul_i32 {sKVs}, s3, 2176\ns_add_u32 {sKVs}, {sKVs}, {KV_OFF}")
    s.e(f"s_lshl_b32 {sKVF}, {sG}, 11\ns_add_u32 {sKVF}, {sKVF}, {KVFLAG_OFF}")
    s.e(f"s_mul_i32 s3, {sKQ}, {28*1024}\ns_add_u32 {sA2y}, {sAF2}, s3")
    s.e(f"s_lshl_b32 s3, {sKQ}, 13\ns_add_u32 {sA2s}, {sAF2}, s3\ns_add_u32 {sA2s}, {sA2s}, {112*1024}")
    s.e(f"v_lshrrev_b32 {vT}, 1, {vP4}")

def unit_bases(s, typ):
    s.e(f"s_mul_i32 s3, {sW}, {16*3072}\ns_lshl_b32 s4, {sG}, 7\ns_add_u32 s3, s3, s4")
    s.e(f"s_mul_i32 s4, {sG}, 448\ns_and_b32 s5, {sG}, 1\ns_cmp_eq_u32 s5, 0")
    if typ == 'A':
        s.e(f"s_cselect_b32 s5, 0, 320\ns_add_u32 s4, s4, s5")
        s.e(f"s_add_u32 {sUA}, s3, 1024\ns_add_u32 {sUB}, s3, 2048")
        s.e(f"s_mul_i32 {sUC}, {sW}, {16*3584}\ns_add_u32 {sUC}, {sUC}, s4")
        s.e(f"s_lshl_b32 s5, {sCH}, 6\ns_add_u32 s92, s4, s5")
        return [f"buffer_load_ushort v{BI0}, {vT}, {sB1}, s92 offen"]
    s.e(f"s_cselect_b32 s5, 128, 64\ns_cselect_b32 {sUD}, 384, 0")
    s.e(f"s_add_u32 s5, s4, s5\ns_add_u32 s92, s4, {sUD}\ns_mov_b32 {sUC}, s3")
    s.e(f"s_mul_i32 {sUA}, {sW}, {16*3584}\ns_add_u32 {sUA}, {sUA}, s5\ns_add_u32 {sUB}, {sUA}, 128")
    s.e(f"s_mul_i32 {sUD}, {sRT}, {32*3584}\ns_add_u32 {sUD}, {sUD}, s92")
    s.e(f"s_lshl_b32 s3, {sCH}, 6\ns_add_u32 s93, s5, s3")
    return [f"buffer_load_ushort v{BI2}, {vT}, {sB1}, s92 offen", f"buffer_load_ushort v{BI0}, {vT}, {sB1}, s93 offen",
            f"buffer_load_ushort v{BI1}, {vT}, {sB1}, s93 offen offset:128"]

def start(s, ring, biasloads):
    ring.assign(s, upto=ring.upto0)
    if CFG['T0'] == 1: touch_all(s, ['x', 'q', 'w1'])
    ring.pump(s, CFG['S0'])
    if CFG['T0'] == 2: touch_all(s, ['x', 'q', 'w1'])
    prologue2(s)
    ring.pump(s, CFG['S1'])
    if CFG['PG']:
        s.e(f"s_mov_b32 m0, {SCR + 15360}\ns_add_u32 s3, {sAF}, {144*1024}\ns_add_u32 s4, {sAF2}, {144*1024}\ns_mov_b32 s5, {Z_OFF + 0x3f000}")
        for sr, so in ((sWs, "s3"), (sWs, "s4"), (sWs, "s5"), (sW2, "0"), (sWo, "0"), (sOut, "0")):
            s.e(f"buffer_load_dword {vFO}, {sr}, {so} offen lds")
def touch_all(s, which):
    specs = dict(x=(sX, 64, 4), q=(sWq, 48, 5), w1=(sW1, 56, 6), w2=(sW2, 56, 4), wo=(sWo, 16, 5))
    for nm in which:
        srd_, nl, wv = specs[nm]
        lab = label()
        s.e(f"s_cmp_lg_u32 {sW}, {wv}\ns_cbranch_scc1 {lab}")
        s.e(f"v_min_u32 v47, {nl-1}, v0\nv_lshlrev_b32 v47, 7, v47\ns_mul_i32 s5, s88, {nl*128}\ns_mov_b32 m0, {SCR + 15360}\ns_nop 0")
        s.raw(f"buffer_load_dword v47, {srd_}, s5 offen lds")
        s.e(f"{lab}:")
def late_loads(biasloads):
    def f(s):
        s.e(f"v_lshrrev_b32 {vT}, 1, {vP4}")
        for x in biasloads: s.e(x)
        s.e(f"s_lshl_b32 s3, {sG}, 11\ns_lshl_b32 s4, {sRT2}, 10\ns_add_u32 s3, s3, s4\ns_add_u32 m0, s4, {SCR_PHI}")
        s.e(f"buffer_load_dwordx4 {vA16}, {sPhi}, s3 offen lds", tag="phi")
    return f

MF = "v_mfma_f32_32x32x16_bf16"
def bar(s, ring, name, needs=(), rel=(), owner='all', lg0=False, upto=None, extra=(), maxn=99):
    if CFG.get('SB'): stamp("<" + name)(s)
    for n in needs: ring.need(s, n)
    if lg0: s.wait(lg=0)
    s.wait_dswrites()
    s.e("s_barrier")
    stamp(name)(s)
    s.marks[name] = 1
    for n in rel: ring.release(n)
    ring.free += list(extra)
    ring.assign(s, owner, upto, maxn)
def B(ring, *a, **k): return lambda s: bar(s, ring, *a, **k)

class MSeg:
    def __init__(self, ring, u, ch, events=None, posts=None, xpass=False, dma=0):
        self.ring, self.u, self.ch, self.ev, self.posts, self.xp, self.dma = ring, u, ch, events or {}, posts or {}, xpass, dma
        self.nr = 0; self.hs = None
    def reads(self, s, t):
        u, ring = self.u, self.ring
        for e in self.ev.get(t, []): e(s)
        c, p = t // 8, t % 8
        if self.xp:
            for x in {0: (0, 1), 1: (2, 3, 4), 2: (5, 6, 7)}.get(p, ()):
                s.e(f"ds_read_b128 {R(XA+32*c+4*x,4)}, v{XR+x} offset:{(c&1)*32768}")
        it = f"{u['name']}{c}" if u['kind'] == 'w' else f"{u['name']}{c//2}"
        assert ring.log[it][1] is not None, f"{it} read before certified"
        sl = ring.slot[it]; buf = WB + 4 * (t % 4)
        if u['kind'] == 'h5' and self.hs != sl:
            if self.hs is None:
                s.e("v_bfe_u32 v116, v0, 2, 2\nv_lshrrev_b32 v117, 5, v0\nv_lshl_add_u32 v116, v117, 3, v116\nv_lshlrev_b32 v116, 6, v116\nv_bfe_u32 v117, v0, 4, 1\nv_lshl_add_u32 v116, v117, 5, v116\nv_and_b32 v117, 3, v0\nv_lshl_add_u32 v116, v117, 3, v116")
                for j in range(4): s.e(f"s_xor_b32 s3, {sRT}, {j}\ns_lshl_b32 s3, s3, 11\ns_add_u32 s3, s3, {sl*SLOT}\nv_add_u32 v{HR+j}, s3, v116")
            else:
                for j in range(4): s.e(f"v_add_u32 v{HR+j}, {((sl-self.hs)*SLOT) & 0xffffffff:#x}, v{HR+j}")
            self.hs = sl
        for k in range(2):
            if u['kind'] == 'w':
                w = 0 if sl <= 4 else 1
                r, off = f"v{VW+4*w+p//2}", (sl - 1 - 4 * w) * SLOT + (p & 1) * 2048 + k * 512
            else: r, off = f"v{HR+p//2}", (c % 2) * 8192 + (p & 1) * 1024 + k * 256
            s.e(f"ds_read_b64_tr_b16 {R(buf+2*k,2)}, {r} offset:{off}")
    def pre(self, s, n=None):
        n = CFG['PF'] if n is None else n
        while self.nr < n: self.reads(s, self.nr); self.nr += 1
    def run(self, s, nxt=None, F=None, budget=0):
        u = self.u; ch = self.ch
        credit = 0
        if CFG['PRIO'] and not self.xp: s.e("s_setprio 1")
        self.pre(s)
        for t in range(32):
            c, p = t // 8, t % 8
            buf = WB + 4 * (t % 4)
            cin = R(u['acc'], 16) if t > 0 else "0"
            a, b = (R(buf, 4), R(XA + 4 * t, 4)) if u['trans'] else (R(XA + 4 * t, 4), R(buf, 4))
            s.e(f"{MF} {R(u['acc'],16)}, {a}, {b}, {cin}")
            if p < 2 and not (CFG.get('NOCS') and t > 0): s.e(f"v_mfma_f32_16x16x32_bf16 {R(CSA,4)}, {R(ASEL,4)}, {R(buf,4)}, {R(CSA,4) if t > 0 else '0'}")
            if self.nr < 32: self.reads(s, self.nr); self.nr += 1
            elif nxt is not None: nxt.pre(s, t - 31 + CFG['PF'])
            if self.xp and t < 25: self.ring.pump(s, 1)
            elif self.xp: self.ring.pace(s, CFG['ST'])
            elif self.dma: self.ring.pace(s, self.dma)
            if t == 27:
                s.e(f"s_lshl_b32 s3, {sRT}, 2\ns_add_u32 s3, s3, {SCR_CS + u['csi']*2048 + ch*1024}\nv_add_u32 v{CSA+1}, s3, {vA16}\nds_write_b32 v{CSA+1}, v{CSA}")
            if self.xp and p in (1, 3):
                for x in ((ch, ch + 2) if p == 1 else (ch + 4, ch + 6)):
                    for j in range(4):
                        r = XA + 32 * c + 4 * x + j
                        first = (c == 0 and p == 1 and x == ch and j < 2)
                        s.e(f"v_dot2_f32_bf16 v{STA+(j&1)}, v{r}, {sC11}, {'0' if first else f'v{STA+(j&1)}'}")
                        s.e(f"v_dot2_f32_bf16 v{STA+2+(j&1)}, v{r}, v{r}, {'0' if first else f'v{STA+2+(j&1)}'}")
                if t == 27:
                    q = f"v{STA+2}"
                    s.e(f"v_add_f32 v{STA}, v{STA}, v{STA+1}\nv_add_f32 v{STA+1}, v{STA+2}, v{STA+3}\nv_lshrrev_b32 {q}, 5, v0\nv_lshlrev_b32 {q}, 3, {q}\n"
                        f"v_lshl_add_u32 {q}, {vP4}, 3, {q}\ns_lshl_b32 s3, {sRT}, 10\ns_add_u32 s3, s3, {SCR_ST + ch*16}\nv_add_u32 {q}, s3, {q}\nds_write_b64 {q}, {R(STA,2)}")
            for e in self.posts.get(t, []): e(s)
            if F is not None: credit = fill(s, F, (budget(t) if callable(budget) else budget) + min(credit, CFG['CRED']))
        if CFG['PRIO'] and not self.xp: s.e("s_setprio 0")

def fill(s, F, budget, force=False):
    while budget > 0 and F:
        f = F[0]
        if isinstance(f, tuple) and f[0] == 'wait':
            if f[1] in s.marks: F.pop(0); continue
            return 0
        if isinstance(f, tuple) and f[0] == 'nextbar': f = F[0] = ('barge', s.nbar + 1)
        if isinstance(f, tuple) and f[0] == 'barge':
            if s.nbar >= f[1]: F.pop(0); continue
            return 0
        if isinstance(f, tuple) and f[0] in ('hold', 'tilt'):
            if budget <= 1: F.pop(0); continue
            return 0
        if isinstance(f, tuple) and f[0] == 'gap':
            f = F[0] = ('until', s.n_issued + f[1])
        if isinstance(f, tuple) and f[0] == 'until':
            if s.n_issued >= f[1] or force: F.pop(0); continue
            return 0
        if callable(f):
            F.pop(0); n0 = s.n_issued; f(s); budget -= max(1, (s.n_issued - n0) * 0.5); continue
        txt, tag = (f if isinstance(f, tuple) else (f, None))
        need, age = s.cost(txt)
        if not force and (need > 1 or (age is not None and age < CFG['AGE'])): return budget
        F.pop(0); s.e(txt, tag)
        k = I(txt).kind
        budget -= 2 if k == 'trans' else (0.5 if k in ('salu', 'ds', 'vm') else 1)
    return 0
def until(s, ring, F, name, every=None):
    n = 0
    while name not in s.marks:
        assert F, name
        l = len(F); fill(s, F, 1, force=True)
        assert len(F) < l, ("stuck", F[0], name, s.name)
        n += 1
        ring.pace(s, 9)
    return n
def vrun(s, ring, F, slots, every=None, flush=True):
    every = every or CFG['VD']
    while slots > 0 and F:
        l = len(F); fill(s, F, min(every, slots), force=True); slots -= every
        ring.pace(s, 9 * every)
        if len(F) == l: break
    if flush: ring.pump(s, 99)

def vseg(s, ring, F, every=None, flush=True):
    every = every or CFG['VD']
    n = 0
    for f in F:
        if isinstance(f, tuple) and f[0] in ('after', 'skip', 'wait', 'gap', 'until'): continue
        drain(s, [f]); n += 1
        ring.pace(s, 10)
    if flush: ring.pump(s, 99)
def split(F, frac, item):
    k = int(len(F) * frac)
    return F[:k] + [item] + F[k:]

def pass0(s, ring, u, ch, bl, nextname, nextneed):
    ev = {}
    for c in range(4):
        def b0(s, c=c):
            if c == 3: s.wait_tag("phi")
            bar(s, ring, f"b0{c}", [f"{u['name']}{c}", f"XL{c}", f"XH{c}"], [f"{u['name']}{c-1}"] if c else [], lg0=True, upto=nextname)
            if c == 0:
                lab = label()
                s.e(f"s_cmp_ge_u32 {sBID}, 32\ns_cbranch_scc1 {lab}\ns_cmp_lg_u32 {sW}, 0\ns_cbranch_scc1 {lab}\ns_lshl_b32 s3, {sBID}, 2")
                s.raw(f"buffer_store_dword {vOne}, {vFO}, {sDbg}, s3 offen offset:128 sc1")
                s.e(f"{lab}:")
        def bx(s, c=c):
            s.wait_regs([f"v{r}" for r in range(XA + 32 * c, XA + 32 * c + 32)])
            bar(s, ring, f"bx{c}", nextneed if c == 3 else [], [f"XL{c}", f"XH{c}"], upto=(nextname if c < 3 else None))
        ev[8 * c] = [b0]; ev[8 * c + 4] = [bx]
    return MSeg(ring, u, ch, ev, {6: [late_loads(bl)], 24: [lambda s: poll_issue(s, sDbg, "0", imm=128)], CFG['TBT']: [lambda s: touchB(s)], CFG['TWT']: [lambda s: touchW(s)]}, xpass=True, dma=1)

def stats_fin(T):
    F = [blk(f"s_lshl_b32 s4, {sRT}, 10\ns_add_u32 s4, s4, {SCR_ST}\nv_lshlrev_b32 {vT}, 3, {vP4}\nv_add_u32 {vT}, s4, {vT}"),
         f"ds_read_b128 {R(T,4)}, {vT}", f"ds_read_b128 {R(T+4,4)}, {vT} offset:16",
         blk(f"s_lshl_b32 s4, {sRT}, 7\ns_add_u32 s4, s4, {SCR_RS}\nv_add_u32 {vT}, s4, {vP4}\nv_cmp_gt_u32 s[94:95], 32, v0")]
    a, b = f"v{T}", f"v{T+1}"
    F += [f"v_add_f32 {a}, {a}, v{T+2}", f"v_add_f32 {b}, {b}, v{T+3}", f"v_add_f32 v{T+4}, v{T+4}, v{T+6}", f"v_add_f32 v{T+5}, v{T+5}, v{T+7}",
          f"v_add_f32 {a}, {a}, v{T+4}", f"v_add_f32 {b}, {b}, v{T+5}", f"v_mul_f32 {a}, 0xbb000000, {a}", f"v_mul_f32 {b}, 0x3b000000, {b}",
          f"v_fma_f32 {b}, -{a}, {a}, {b}", f"v_max_f32 {b}, 0, {b}", f"v_cvt_pk_bf16_f32 {b}, {b}, {b}", f"v_lshlrev_b32 {b}, 16, {b}",
          f"v_add_f32 {b}, 0x3727c5ac, {b}", f"v_cvt_pk_bf16_f32 {b}, {b}, {b}", f"v_lshlrev_b32 {b}, 16, {b}", f"v_sqrt_f32 {b}, {b}",
          f"v_cvt_pk_bf16_f32 {b}, {b}, {a}", f"v_lshlrev_b32 {vRS}, 16, {b}", f"v_rcp_f32 {vRS}, {vRS}",
          f"v_cndmask_b32 v{CF+2}, 0, {b}, s[94:95]", f"v_lshrrev_b32 v{CF+3}, 16, v{CF+2}",
          f"v_mul_f32 {vRSL}, 0x3fb8aa3b, {vRS}", f"v_mul_f32 {vM2}, -2.0, {vRS}", f"ds_write_b32 {vT}, {vRS}"]
    return F
def correct(u, ch, T, bias=None):
    F = [f"v_lshlrev_b32 v{T}, 2, {vP4}", f"v_add_u32 v{T}, {SCR_CS + u['csi']*2048 + ch*1024}, v{T}", f"ds_read_b128 {R(T,4)}, v{T}",
         f"v_add_f32 v{T}, v{T}, v{T+1}", f"v_add_f32 v{T+2}, v{T+2}, v{T+3}", f"v_add_f32 v{T}, v{T}, v{T+2}",
         f"v_cvt_pk_bf16_f32 v{T+1}, v{T}, v{T}", f"v_and_b32 v{CF}, 0xffff0000, v{T+1}", f"v_sub_f32 v{T}, v{T}, v{CF}", f"v_cvt_pk_bf16_f32 v{CF+1}, v{T}, v{T}"]
    if bias is not None: F.append(f"v_or_b32 v{CF}, v{CF}, v{bias}")
    a, b = (R(CF, 4), R(CF + 2, 4)) if u['trans'] else (R(CF + 2, 4), R(CF, 4))
    F.append(f"{MF} {R(u['acc'],16)}, {a}, {b}, {R(u['acc'],16)}")
    return F

def mark(name): return lambda s: s.marks.__setitem__(name, 1)
YA = [192, 208]; SA = [32, 48]
vB0, vB1 = "v5", "v24"
XW = ["v6", "v7", "v8"]; XRD = ["v11", "v12", "v13"]
LB = 128
NR = 8
def breg(t): return XA + 8 * t if t < NR else LB + 8 * (t % 2)
def bnm(ch, c): return f"B{'ab'[ch]}{c}"
def bread(ring, ch, t):
    def f(s):
        nm = bnm(ch, t // 4)
        assert ring.log[nm][1] is not None, f"{nm} read before certified"
        sl = ring.slot[nm]
        if ring.bsl != sl:
            d = ((sl - ring.bsl) * SLOT) & 0xffffffff
            s.e(f"v_add_u32 {vB0}, {d:#x}, {vB0}\nv_add_u32 {vB1}, {d:#x}, {vB1}")
            ring.bsl = sl
        for ct, r in enumerate((vB0, vB1)):
            for k in range(2):
                s.e(f"ds_read_b64_tr_b16 {R(breg(t) + 4*ct + 2*k, 2)}, {r} offset:{(t%4)*2048 + k*1024}")
    return f
def pull(ring, ch, c): return [bread(ring, ch, 4 * c + k) for k in range(4)]
def p2_setup(ring):
    def chk(s):
        assert not any(x[0][0] == 'F' for x in ring.items) and not any(x[0][0][0] == 'F' for x in ring.q)
        ring.bsl = 0
    return [chk, f"v_bfe_u32 {vB0}, v0, 2, 2", f"v_lshrrev_b32 {vB1}, 5, v0", f"v_lshl_add_u32 {vB0}, {vB1}, 2, {vB0}", f"v_lshlrev_b32 {vB0}, 7, {vB0}",
     f"v_bfe_u32 {vB1}, v0, 3, 1", f"v_lshl_add_u32 {vB0}, {vB1}, 6, {vB0}", f"v_bfe_u32 {vB1}, v0, 4, 1", f"v_lshl_add_u32 {vB0}, {vB1}, 5, {vB0}",
     f"v_and_b32 {vB1}, 3, v0", f"v_lshl_add_u32 {vB0}, {vB1}, 3, {vB0}", blk(f"s_and_b32 s3, {sKQ}, 1\ns_lshl_b32 s3, s3, 13\nv_add_u32 {vB0}, s3, {vB0}"), f"v_xor_b32 {vB1}, 64, {vB0}"]

def xwrite(s, acc2, slots, own, ch):
    l1, l2 = label(), label()
    s.e("s_nop 7")
    s.e(f"s_bitcmp1_b32 {sKQ}, 0\ns_cbranch_scc1 {l1}")
    for kq in (2 * ch, 2 * ch + 1):
        if kq & 1: s.raw(f"{l1}:")
        s.raw("s_nop 1")
        for d in range(4):
            src = acc2[d >> 1] + 8 * (d & 1)
            if d == kq: continue
            idx = (kq - d - 1) % 4
            for h in range(2):
                r, off = ldsaddr(XW, slots[idx] * SLOT + d * 4096 + h * 1024)
                s.raw(f"ds_write_b128 {r}, {R(src+4*h,4)} offset:{off}")
        src = acc2[kq >> 1] + 8 * (kq & 1)
        for j in range(8): s.raw(f"v_mov_b32 v{own+j}, v{src+j}")
        if not kq & 1: s.raw(f"s_branch {l2}")
    s.raw(f"{l2}:")
    for _ in range(6): s.lg.append((set(), None))
def xread(slots, own, tmp):
    F = []
    for i in range(3):
        for h in range(2):
            r, off = ldsaddr(XRD, slots[i] * SLOT + h * 1024)
            F.append(f"ds_read_b128 {R(tmp+8*i+4*h,4)}, {r} offset:{off}")
    G = []
    for i in range(3):
        for j in range(8): G.append(f"v_add_f32 v{own+j}, v{own+j}, v{tmp+8*i+j}")
    return F, G
def fin_setup():
    return [blk(f"s_lshl_b32 {sUC}, {sRB}, 16\ns_lshl_b32 s4, {sRT2}, 15\ns_add_u32 {sUC}, {sUC}, s4\ns_lshl_b32 s4, {sCB}, 7\ns_add_u32 {sUC}, {sUC}, s4\ns_lshl_b32 s4, {sKQ}, 5\ns_add_u32 {sUC}, {sUC}, s4"),
            f"v_lshlrev_b32 v20, 8, {vP4}", "v_lshrrev_b32 v21, 5, v0", "v_lshl_add_u32 v20, v21, 4, v20",
            f"buffer_load_dwordx4 v[16:19], v20, {sX}, {sUC} offen",
            blk(f"s_lshl_b32 s4, {sRT2}, 11\nv_add_u32 v6, s4, {vA16}"), "v_add_u32 v7, 0x10000, v6", "v_add_u32 v8, 0x20000, v6",
            blk(f"s_lshl_b32 s4, {sKQ}, 12\nv_add_u32 v11, s4, v6\nv_add_u32 v12, s4, v7\nv_add_u32 v13, s4, v8")]

def aphase(s, ring, ch, F, early, late, toff):
    G = CFG['GT']
    groups = {0: (0xf, ['f1'], 0, 0), 8: (0xf, ['f2'], G[3], 128), 16: (0x5, ['f3'], G[0], 384), 20: (0xf, ['f3'], G[1], 256), 28: (0xf, ['fo'], G[2], 512)}
    pr = lambda c: [bnm(0, c), bnm(1, c)]
    bars = {8: (pr(2) + pr(3), ring.rel8), 12: ([], pr(2)), 16: (pr(4) + pr(5), pr(3)), 20: ([], pr(4)), 24: (pr(6) + pr(7), pr(5)), 30: (pr(8), pr(6))}
    cert = {n: k for k, v in bars.items() for n in v[0]}
    pool = list(range(224, 256, 4)) + list(early); restricted = set(early)
    late = dict(late)
    for v in late.values(): restricted |= set(v)
    areg = {}; arr = {}
    st = dict(clk=0, pipe=0, nxt=0, polled={0: 0}, checked=set(), tch=set())
    LT, LAT, QD = CFG['LT'], CFG['LAT'], CFG['QD']
    OWNY = 112; OWNS = 120; XT = 64
    def issue_cost():
        st['pipe'] = max(st['pipe'], st['clk']) + (LT if len(F) > 3 else CFG['LT2']); st['clk'] += 16
        return st['pipe'] + LAT
    def try_load(step, must=None):
        for m in list(late):
            if m in s.marks: pool.extend(late.pop(m))
        if must is None and st['pipe'] - st['clk'] > (QD if len(F) > 3 else CFG['QD2']): return False
        t = st['nxt']
        for g in sorted(groups):
            if g >= t and g not in st['polled']:
                prev = [x for x in groups if x < g]
                if all(x in st['checked'] for x in prev) and (st['clk'] >= groups[g][2] + toff - CFG['PLT'] or must == g):
                    poll_issue(s, sWs, sFL2, imm=groups[g][3]); st['polled'][g] = max(st['pipe'], st['clk']) + LAT; st['clk'] += 16
                    return True
                break
        for g in st['polled']:
            if g and g not in st['tch'] and g not in st['checked'] and st['clk'] >= st['polled'][g] and g - t >= CFG['TAD']:
                st['tch'].add(g); n = {8: 8, 16: 4, 20: 8, 28: 8}[g]
                touchA(g, n, groups[g][0], 'v2', 'v3')(s); log.append(f"tch{g}@{step}")
        bneed = cert.get(ring.q[0][0][0], 0) - CFG['BL'] if ring.q else 99
        aok = False
        if t < 36:
            ok = [r for r in pool if not (r in restricted and t > 26)]
            aok = bool(ok)
            if t in groups and t not in st['checked']:
                ready = t in st['polled'] and st['clk'] >= st['polled'][t] and st['clk'] >= groups[t][2] + toff and all(r in s.marks for r in groups[t][1])
                aok = aok and (ready or must == t)
        if aok and (t <= bneed or must is not None):
            if t in groups and t not in st['checked']:
                for r in groups[t][1]:
                    n = until(s, ring, F, r)
                    if n: print("   forced", n, "fillers for", r, "in", s.name)
                poll_check(s, sWs, sFL2, groups[t][0], imm=groups[t][3]); st['checked'].add(t); log.append(f"chk{t}@{step}/{st['clk']}")
            areg[t] = ok[0]; pool.remove(ok[0])
            base, off = (sA2y, ORDER[t] * 1024) if t < 28 else (sA2s, (t - 28) * 1024)
            s.e(f"s_add_u32 {sSoW}, {base}, {off & ~4095}\nbuffer_load_dwordx4 {R(areg[t],4)}, {vA16}, {sWs}, {sSoW} offen offset:{off & 4095} sc1")
            arr[t] = issue_cost(); st['nxt'] += 1; log.append(f"A{t}@{step}")
            return True
        if ring.q and must is None:
            ring.pump(s, 1); issue_cost(); return True
        return False
    log = []
    V = []
    for t in range(36):
        while True:
            if try_load(t): continue
            if F and isinstance(F[0], tuple) and F[0][0] == 'hold':
                F[0] = ('tilt', st['clk'] + F[0][1])
            if F and isinstance(F[0], tuple) and F[0][0] == 'tilt' and st['clk'] >= F[0][1]: F.pop(0)
            if F and not (t in arr and st['clk'] >= arr[t] and not pool and st['nxt'] < 36):
                l = len(F); n0 = s.n_issued
                fill(s, F, 6, force=True)
                st['clk'] += (s.n_issued - n0) * CFG['VC']
                if len(F) < l: continue
            if t not in arr:
                assert try_load(t, must=st['nxt']); continue
            if st['clk'] < arr[t] and (st['nxt'] < 36 or ring.q):
                nclk = min(arr[t], st['clk'] + 32)
                if nclk < arr[t]:
                    st['clk'] = nclk
                    if try_load(t): continue
                    continue
            break
        st['clk'] = max(st['clk'], arr[t])
        if t == 4: until(s, ring, F, 'p1')
        for ct in range(2):
            acc = (YA if t < 28 else SA)[ct]
            cin = "0" if t in (0, 28) else R(acc, 16)
            s.e(f"{MF} {R(acc,16)}, {R(breg(t)+4*ct,4)}, {R(areg[t],4)}, {cin}")
        st['clk'] += 128
        pool.append(areg[t])
        if 2 <= t <= 7: pool += [XA + 8 * t, XA + 8 * t + 4]
        if t + 1 in bars:
            if t + 1 == 8:
                n = until(s, ring, F, 'vbar')
                if n: print("   forced", n, "fillers before a8 in", s.name)
            bar(s, ring, f"a{t+1}", bars[t + 1][0], bars[t + 1][1], lg0=True); log.append(f"|a{t+1}/{st['clk']}")
        if NR <= t + 1 < 36: bread(ring, ch, t + 1)(s)
        if t == 26: assert not F, F
        if t == 27:
            stamp('yend')(s)
            ys = [ring.free.pop(0) for _ in range(3)]
            xwrite(s, YA, ys, OWNY, ch)
            drain(s, ["v_permlane32_swap_b32 v16, v18", "v_permlane32_swap_b32 v17, v19"])
            for j in range(4): drain(s, [f"v_lshlrev_b32 v{XT+24+2*j}, 16, v{16+j}", f"v_and_b32 v{XT+25+2*j}, 0xffff0000, v{16+j}"])
        if t == 29:
            rdl, V = xread(ys, OWNY, XT)
            drain(s, rdl)
            for j in range(8): V.append(f"v_mul_f32 v{XT+j}, 0xbfb8aa3b, v{OWNY+j}")
            for j in range(8): V.append(f"v_exp_f32 v{XT+j}, v{XT+j}")
            for j in range(8): V.append(f"v_add_f32 v{XT+j}, 1.0, v{XT+j}")
            for j in range(8): V.append(f"v_rcp_f32 v{XT+j}, v{XT+j}")
            for j in range(8): V.append(f"v_mul_f32 v{OWNY+j}, v{OWNY+j}, v{XT+j}")
        if 30 <= t < 35:
            drain(s, V[:CFG['TV']]); V = V[CFG['TV']:]
    print("   sched", s.name, " ".join(log), "end", st['clk'])
    stamp('send')(s)
    ss = [ring.free.pop(0) for _ in range(2)] + [9]
    xwrite(s, SA, ss, OWNS, ch)
    drain(s, V)
    s.wait(lg=0); s.e("s_barrier")
    rdl, V = xread(ss, OWNS, XT)
    drain(s, rdl + V)
    for j in range(8): s.e(f"v_fma_f32 v{OWNS+j}, v{OWNS+j}, v{OWNY+j}, v{XT+24+j}")
    for j in range(4): s.e(f"v_cvt_pk_bf16_f32 v{16+j}, v{OWNS+2*j}, v{OWNS+2*j+1}")
    s.e("v_permlane32_swap_b32 v16, v18\nv_permlane32_swap_b32 v17, v19")
    s.e(f"buffer_store_dwordx4 v[16:19], v20, {sOut}, {sUC} offen {CFG['OSC']}")
    stamp('st')(s)
    if PROFILE:
        s.raw("s_waitcnt vmcnt(0) lgkmcnt(0)")
        stamp("end")(s)
        s.raw("s_waitcnt lgkmcnt(0)")
        n = len(s.snames)
        for i in (n - 2, n - 1): s.raw(f"v_writelane_b32 v29, s{STAMP0+2*(i%4)}, {i}")
        s.e(f"v_subrev_u32 v29, s96, v29\nv_lshlrev_b32 v16, 2, v0")
        s.e(f"s_lshl_b32 s3, {sBID}, 11\ns_lshl_b32 s4, {sW}, 8\ns_add_u32 s3, s3, s4\ns_add_u32 s3, s3, {PROF_OFF}")
        s.e(f"buffer_store_dword v29, v16, {sWs}, s3 offen")
        if CFG.get('DBG') is not None:
            lab = label()
            s.e(f"s_cmp_lg_u32 {sBID}, {CFG['DBG']}\ns_cbranch_scc1 {lab}\ns_cmp_lg_u32 {sW}, 0\ns_cbranch_scc1 {lab}")
            idx = list(range(n - 1, -1, -3))[:16][::-1]
            for k, i in enumerate(idx):
                s.raw(f"v_readlane_b32 s4, v29, {i}\ns_nop 1\nv_mov_b32 v17, s4\nbuffer_store_dword v17, {vFO}, {sDbg}, 0 offen offset:{4*k}\ns_nop 1")
            s.e(f"{lab}:")
            if s.name in ('A0', 'B0'): print("DBG", s.name, [s.snames[i] for i in idx])
        open(f"snames_{s.name}.txt", "w").write(" ".join(s.snames))
    s.e("s_endpgm")
    s.slots = (dict(ring.slot), ys, ss)
    print("   ring", s.name, " ".join(f"{k}:{v[0]}>{v[1]}" for k, v in ring.log.items()))

SCR_DUM = SCR + 15360
def touchB(s):
    if not CFG['TB']: return
    s.e(f"s_lshl_b32 s4, {sBID}, 3\ns_add_u32 s4, s4, {sW}\ns_mul_i32 s5, s4, 896\ns_lshl_b32 s4, s4, 8\ns_mov_b32 m0, {SCR_DUM}")
    s.e(f"v_min_u32 {vT}, 6, v0\nv_lshlrev_b32 {vT}, 7, {vT}")
    s.e(f"buffer_load_dword {vT}, {sW2}, s5 offen lds")
    s.e(f"v_min_u32 {vT}, 1, v0\nv_lshlrev_b32 {vT}, 7, {vT}")
    s.e(f"buffer_load_dword {vT}, {sWo}, s4 offen lds")
def touchW(s):
    if not CFG['TW']: return
    s.e(f"s_lshl_b32 s4, {sBID}, 3\ns_add_u32 s4, s4, {sW}\ns_mul_i32 s5, s4, 896\ns_mul_i32 s4, s4, 768\ns_mov_b32 m0, {SCR_DUM}")
    s.e(f"v_min_u32 {vT}, 6, v0\nv_lshlrev_b32 {vT}, 7, {vT}")
    s.e(f"buffer_load_dword {vT}, {sW1}, s5 offen lds")
    s.e(f"v_min_u32 {vT}, 5, v0\nv_lshlrev_b32 {vT}, 7, {vT}")
    s.e(f"buffer_load_dword {vT}, {sWq}, s4 offen lds")
def touch2(c):
    def f(s):
        if not CFG['T2']: return
        if c == 0:
            s.e(f"s_lshl_b32 s4, s87, 3\ns_add_u32 s4, s4, {sW}\ns_lshr_b32 s5, s4, 6\ns_and_b32 s4, s4, 63\ns_lshl_b32 s4, s4, 10\n"
                f"s_mul_i32 s58, s5, {448*1024}\ns_add_u32 s58, s58, s4\ns_lshl_b32 s59, s5, 17\ns_add_u32 s59, s59, s4")
        s.e(f"s_mov_b32 m0, {SCR_DUM}")
        if c < 7: s.e(f"s_add_u32 {sSoW}, s58, {ORDER[4*c]*16384}\nbuffer_load_dwordx4 {vA16}, {sW2}, {sSoW} offen lds")
        else: s.e(f"s_add_u32 {sSoW}, s59, {(c-7)*65536}\nbuffer_load_dwordx4 {vA16}, {sWo}, {sSoW} offen lds")
    return f
def add_touch(segs):
    for c, at in enumerate(CFG['T2AT']):
        segs[at // 32].posts.setdefault(at % 32, []).append(touch2(c))

def touchA(t0, n, mask, T, T2, vp=vPoll):
    def f(s):
        if not CFG['TA']: return
        lab = label()
        s.e(f"v_min_u32 {T}, {n-1}, v0")
        if t0 < 28 and n > 4:
            d = ORDER[t0 + 4] - ORDER[t0] - 4
            s.e(f"v_lshrrev_b32 {T2}, 2, {T}\nv_mul_u32_u24 {T2}, {d}, {T2}\nv_add_u32 {T}, {T}, {T2}")
        off = ORDER[t0] * 1024 if t0 < 28 else 0
        s.e(f"v_lshlrev_b32 {T}, 10, {T}\ns_lshl_b32 {sSoW}, {sCB}, 7\ns_add_u32 {sSoW}, {sSoW}, {sA2y if t0 < 28 else sA2s}\ns_add_u32 {sSoW}, {sSoW}, {off}\ns_mov_b32 m0, {SCR_DUM}")
        s.e(f"v_cmp_ne_u32 vcc, 0, {vp}\ns_andn2_b32 {sT0}, {mask:#x}, vcc_lo\ns_cbranch_scc1 {lab}")
        s.raw(f"buffer_load_dword {T}, {sWs}, {sSoW} offen sc1 lds")
        s.e(f"{lab}:")
    return f

def ilv(st, co):
    out = st[:3] + co[:3] + [st[3]]
    a, b = st[4:], co[3:-1]
    while a or b:
        if a: out.append(a.pop(0))
        if a and len(a) > 2 * len(b): out.append(a.pop(0))
        if b: out.append(b.pop(0))
    return out + co[-1:]
def p0_items(a, b):
    it = []
    for c in range(4): it += x_items(c) + [a[c]]
    return it + b
def packin(acc): return [f"v_cvt_pk_bf16_f32 v{acc+j}, v{acc+2*j}, v{acc+2*j+1}" for j in range(8)]
def N(n, lo, hi): return [f"{n}{c}" for c in range(lo, hi)]
initchk = lambda s: poll_check(s, sDbg, "0", 0xffffffff, imm=128)
pollA = lambda s: poll_issue(s, sWs, sFL2)

def stream_A(s0, ch):
    CB, DB = CFG['CB'], CFG['DB']
    s = s0.fork(f"A{ch}"); s.e(f"L_typeA{ch}:")
    bl = unit_bases(s, 'A')
    items = p0_items(w_items("K", sWq, vDq, sUA, 3072), w_items("V", sWq, vDq, sUB, 3072)) + w_items("H", sW1, vD1, sUC, 3584) + b_items(0)
    ring = Ring(items, range(9), ch); ring.hold = ('XL3', 'XH3'); ring.upto0 = "V3"
    start(s, ring, bl)
    s.e(f"s_lshl_b32 {sSCRW}, {sW}, 12\ns_add_u32 {sSCRW}, {sSCRW}, {2*SLOT}")
    s.marks.update(f1=1, f2=1, fo=1)
    uK = dict(name="K", acc=ACC_A, trans=True, kind='w', csi=0)
    uV = dict(name="V", acc=ACC_B, trans=False, kind='w', csi=1)
    uH = dict(name="H", acc=ACC_C, trans=True, kind='w', csi=0)
    F = [('wait', 'c1')] + ilv(stats_fin(PT), correct(uK, ch, PT + 8))
    F += [f"v_lshlrev_b32 v25, 4, {vP4}", "v_lshrrev_b32 v26, 5, v0", "v_lshl_add_u32 v25, v26, 5, v25", f"v_add_u32 v25, {sSCRW}, v25", initchk]
    F += packin(ACC_A)
    for h in range(2):
        F += [f"{MF} {R(PT,16)}, {R(PHI+4*h,4)}, {R(ACC_A+4*h,4)}, 0", ('gap', 16)]
        F += softmax(PT, ACC_A + 8, "v26", vT)
        F += [f"ds_write_b128 v25, {R(ACC_A+8,4)} offset:{2048*h}", f"ds_write_b128 v25, {R(ACC_A+12,4)} offset:{2048*h+16}"]
    F += [('wait', 'c2')] + correct(uV, ch, PT + 12)
    F += ["v_lshrrev_b32 v26, 5, v0", "v_lshlrev_b32 v26, 4, v26", blk(f"s_lshl_b32 s4, {sRT}, 7\ns_add_u32 s4, s4, {SCR_RS}\nv_add_u32 {vT}, s4, v26")]
    for q in range(4): F.append(f"ds_read_b128 {R(PT+4*q,4)}, {vT} offset:{32*q}")
    F += ["v_bfe_u32 v25, v0, 2, 2", "v_lshlrev_b32 v25, 6, v25", "v_lshl_add_u32 v25, v26, 4, v25", f"v_bfe_u32 {vT}, v0, 4, 1",
          f"v_lshl_add_u32 v25, {vT}, 5, v25", f"v_cmp_eq_u32 s[94:95], 1, {vT}", f"v_and_b32 {vT}, 3, v0", f"v_lshl_add_u32 v25, {vT}, 3, v25",
          f"v_add_u32 v25, {sSCRW}, v25", f"v_mov_b32 {vT}, {sC11}"]
    for t in range(2):
        for rd in range(2): F.append(f"ds_read_b64_tr_b16 {R(PHI+4*t+2*rd,2)}, v25 offset:{2048 + t*1024 + rd*512}")
    for r in range(16): F.append(f"v_mul_f32 v{ACC_B+r}, v{ACC_B+r}, v{PT+r}")
    F += packin(ACC_B)
    for t in range(2):
        for rd in range(2): F.append(f"ds_read_b64_tr_b16 {R(ACC_B+8+4*t+2*rd,2)}, v25 offset:{t*1024 + rd*512}")
    for j in range(8): F.append(f"v_cndmask_b32 v{ACC_A+8+j}, {vT}, v{ACC_B+j}, s[94:95]")
    for j in range(8): F.append(f"v_cndmask_b32 v{ACC_A+j}, v{ACC_B+j}, {vT}, s[94:95]")
    F += [f"{MF} {R(PT,16)}, {R(ACC_A,4)}, {R(ACC_B+8,4)}, 0", f"{MF} {R(PT,16)}, {R(ACC_A+4,4)}, {R(ACC_B+12,4)}, {R(PT,16)}",
          f"{MF} {R(ACC_B,16)}, {R(ACC_A+8,4)}, {R(PHI,4)}, 0", f"{MF} {R(ACC_B,16)}, {R(ACC_A+12,4)}, {R(PHI+4,4)}, {R(ACC_B,16)}"]
    F += [f"v_add_u32 v25, {sSCRW}, {vA16}", blk(f"s_lshl_b32 s4, {sW}, 9\ns_add_u32 s4, s4, {SCR_Z}\nv_lshlrev_b32 v26, 2, v0\nv_add_u32 v26, s4, v26")]
    F += [f"ds_write_b128 v25, {R(PT,4)}", f"ds_write_b128 v25, {R(PT+4,4)} offset:1024", f"ds_write_b32 v26, v{PT+8}",
          f"ds_write_b128 v25, {R(ACC_B+8,4)} offset:2048", f"ds_write_b128 v25, {R(ACC_B+12,4)} offset:3072", f"ds_write_b32 v26, v{ACC_B} offset:256"]
    F += [blk(f"s_lshl_b32 s4, {sRT}, 10\ns_add_u32 s4, s4, {2*SLOT + ch*SLOT}\nv_add_u32 v25, s4, {vA16}"),
          blk(f"s_lshr_b32 s4, {sRT}, 1\ns_lshl_b32 s4, s4, 8\ns_add_u32 s4, s4, {SCR_Z + ch*2048}\nv_add_u32 v26, s4, {vP4}"), mark('kvw')]
    ER = [f"ds_read_b128 {R(PT+4*r,4)}, v25 offset:{r*4096}" for r in range(4)] + [f"ds_read_b32 v{ACC_A+r}, v26 offset:{r*512}" for r in range(4)]
    ER += ["v_lshrrev_b32 v25, 5, v0", f"v_lshl_add_u32 v25, v25, 9, {vP4}", blk(f"s_lshl_b32 s5, {sRT2}, 10\nv_add_u32 v25, s5, v25"),
           f"v_lshrrev_b32 {vT}, 4, v0", f"v_cmp_eq_u32 s[94:95], {sRT2}, {vT}", f"v_mov_b32 {vT}, {BIG}",
           blk(f"s_and_b32 s5, {sG}, 1\ns_mul_i32 s5, s5, {10*1024}\ns_add_u32 s5, s5, {ch*2048}\ns_add_u32 {sUD}, {sKS}, s5\ns_lshl_b32 s4, {sI}, 7\ns_add_u32 {sKVF}, {sKVF}, s4"),
           f"v_cndmask_b32 v26, {vT}, {vP4}, s[94:95]"]
    for j in range(4): ER += [f"v_add_f32 v{PT+j}, v{PT+j}, v{PT+4+j}", f"v_add_f32 v{PT+8+j}, v{PT+8+j}, v{PT+12+j}"]
    for j in range(4): ER.append(f"v_add_f32 v{PT+j}, v{PT+j}, v{PT+8+j}")
    ER += [f"v_add_f32 v{ACC_A}, v{ACC_A}, v{ACC_A+1}", f"v_add_f32 v{ACC_A+2}, v{ACC_A+2}, v{ACC_A+3}", f"v_add_f32 v{ACC_A}, v{ACC_A}, v{ACC_A+2}"]
    for j in range(4): ER.append((f"buffer_atomic_add_f32 v{PT+j}, v25, {sWs}, {sKVs} offen offset:{j*128}", "kv"))
    ER += [(f"buffer_atomic_add_f32 v{ACC_A}, v26, {sWs}, {sKVs} offen offset:2048", "kv"), stamp('kvat')]
    EH = correct(uH, ch, PHI, BI0) + fin_setup() + mish(ACC_C, PT + 8, sUD, "actA")
    fkv = flag_store("kv", sKVF, 0, 'fkv'); f3 = flag_store("actA", sFL, 2 * 128, 'f3')
    pr = lambda c: [bnm(0, c), bnm(1, c)]
    m0 = pass0(s, ring, uK, ch, bl, "V3", ["V0"])
    mV = MSeg(ring, uV, ch, {CB: [B(ring, "c1", ["V1", "V2"], ["K3"])], DB: [B(ring, "d1", ["V3", "H0"], N("V", 0, 2))]}, dma=CFG['ST'])
    F += [('wait', 'd2')] + ER + [mark('kvd')]
    def d2(s):
        print("   A forced before d2:", until(s, ring, F, 'kvw'))
        bar(s, ring, "d2", ["H3"], N("H", 0, 2))
    mH = MSeg(ring, uH, ch, {CB: [B(ring, "c2", ["H1", "H2"], N("V", 2, 4))], DB: [d2]},
              {30: [lambda s: drain(s, p2_setup(ring))], CFG['TAP']: [pollA], CFG['TAT']: [touchA(0, 8, 0xf, 'v160', 'v161')], 27: [pollA]}, dma=CFG['ST'])
    m0.posts.setdefault(29, []).append(lambda s: drain(s, phi_frags()))
    add_touch([m0, mV, mH])
    m0.run(s, mV); mV.run(s, mH, F, CFG['KB']); mH.run(s, None, F, lambda t: CFG['VB'])
    print("   A forced kvd:", until(s, ring, F, 'kvd')); ring.pump(s, 99)
    s.wait_tag("kv")
    bar(s, ring, "e1", pr(0), N("H", 2, 4), lg0=True, extra=[2, 3])
    if ch == 0:
        lab = label()
        s.e(f"s_cmp_lg_u32 {sW}, 0\ns_cbranch_scc1 {lab}")
        s.raw(f"buffer_store_dword {vOne}, {vFO}, {sWs}, {sKVF} offen sc1")
        s.e(f"{lab}:")
    drain(s, pull(ring, ch, 0))
    ring.rel8 = pr(1)
    F = EH[:80] + F + [B(ring, "e2", pr(1), pr(0), lg0=True), mark('vbar')] + pull(ring, ch, 1) + [mark('p1')] + EH[80:] + [mark('v1'), ('hold', CFG['F3G']), f3]
    aphase(s, ring, ch, F, list(range(36, 64, 4)) + list(range(80, 96, 4)) + [100, 120, 124], {'v1': [104, 108, 112, 116]}, CFG['TOFF'])
    return s

def stream_B(s0, ch):
    CB, DB = CFG['CB'], CFG['DB']
    s = s0.fork(f"B{ch}"); s.e(f"L_typeB{ch}:")
    bl = unit_bases(s, 'B')
    H5 = [(f"F{c}", sW1, vD5, sUD, 0, 16 * 3584, 0, 128 * 3584, lambda hf, c=c: 2 * c + hf) for c in range(2)]
    items = p0_items(w_items("U", sW1, vD1, sUA, 3584), w_items("Y", sW1, vD1, sUB, 3584)) + H5 + w_items("Q", sWq, vDq, sUC, 3072) + b_items(1)
    ring = Ring(items, range(9), ch); ring.upto0 = "Y3"
    start(s, ring, bl)
    s.e(f"s_and_b32 s5, {sG}, 1\ns_cmp_eq_u32 s5, 0\ns_cselect_b32 s5, 4, 2\ns_cselect_b32 s4, {12*1024}, 0\ns_lshl_b32 s5, s5, 10\n"
        f"s_add_u32 {sSCRW}, {sKS}, s4\ns_add_u32 s5, s5, {ch*2048}\ns_add_u32 {sKS}, {sKS}, s5")
    uU = dict(name="U", acc=ACC_A, trans=True, kind='w', csi=0)
    uY = dict(name="Y", acc=ACC_B, trans=True, kind='w', csi=1)
    uF = dict(name="F", acc=ACC_C, trans=True, kind='h5', csi=0)
    uQ = dict(name="Q", acc=ACC_A, trans=True, kind='w', csi=1)
    EU = ilv(stats_fin(PT), correct(uU, ch, PT + 8, BI0)) + [initchk, ('gap', 10)] + mish(ACC_A, PT, sKS, "act1") + [f"s_add_u32 {sKS}, {sKS}, 4096"]
    EY = correct(uY, ch, PT + 8, BI1) + [mark('b1dead'), ('gap', 16)] + mish(ACC_B, PT, sKS, "act2")
    EF = correct(uF, ch, PT + 8, BI2) + [('gap', 16)] + mish(ACC_C, PT, sSCRW, "act5")
    EQ = correct(uQ, ch, PT + 12) + phi_frags() + pack16(ACC_A, PK)
    EQ += [f"{MF} {R(PT,16)}, {R(PHI,4)}, {R(PK,4)}, 0", f"{MF} {R(ACC_B,16)}, {R(PHI+4,4)}, {R(PK+4,4)}, 0"] + fin_setup()
    EQ += softmax(PT, ACC_A, "v26", vT) + softmax(ACC_B, ACC_A + 8, "v26", vT)
    f1 = flag_store("act1", sFL, 0, 'f1'); f2 = flag_store("act2", sFL, 128, 'f2'); f3 = flag_store("act5", sFL, 3 * 128, 'f3')
    pr = lambda c: [bnm(0, c), bnm(1, c)]
    FG = ('gap', CFG['FG'])
    F = [('wait', 'c1')] + EU + [mark('m1'), ('wait', 'c2')] + split(EY, 0.6, f1) + [mark('m2')]
    if ch == 0: F += [('wait', 'c3')] + split(EF, 0.6, f2) + [mark('m3')]
    else: F += [FG, f2, mark('m3'), mark('f3')]
    m0 = pass0(s, ring, uU, ch, bl, "Y3", ["Y0"])
    mY = MSeg(ring, uY, ch, {CB: [B(ring, "c1", ["Y1", "Y2"], ["U3"])], DB: [B(ring, "d1", ["Y3", "F0"], N("Y", 0, 2))]}, dma=CFG['ST'])
    c2 = B(ring, "c2", ["F1", "Q0"], N("Y", 2, 4), owner=1)
    mQ = MSeg(ring, uQ, ch, {CB: [B(ring, "c3", ["Q1", "Q2"], ["F0", "F1"])], DB: [B(ring, "d3", ["Q3"] + pr(0), N("Q", 0, 2))]},
              {15: [lambda s: (until(s, ring, F, 'b1dead'), drain(s, p2_setup(ring)))], 22: pull(ring, ch, 0)[:2], 24: pull(ring, ch, 0)[2:], CFG['TAP']: [pollA], CFG['TAT']: [touchA(0, 8, 0xf, 'v160', 'v161')], 27: [pollA]}, dma=CFG['ST'])
    add_touch([m0, mY, mQ])
    m0.run(s, mY)
    if ch == 0:
        mF = MSeg(ring, uF, ch, {CB: [c2]}, dma=CFG['ST'] // 2)
        mY.run(s, mF, F, CFG['P1B']); mF.run(s, mQ, F, CFG['FB'])
    else:
        mY.run(s, None, F, CFG['P1B']); c2(s); vrun(s, ring, F, CFG['IB']); mQ.pre(s)
    print("   B forced m1:", until(s, ring, F, 'm1'))
    mQ.run(s, None, F, CFG['QB'][ch])
    KS, OD, OD2, OF, OP = WB, PT, ACC_B, PHI, PK
    def kvfetch(s):
        poll_check(s, sWs, sKVF, 0xffff, vPoll2, vo="v21")
        s.e(f"s_lshl_b32 s5, {sRT2}, 10\ns_add_u32 s5, s5, {sKVs}")
        s.e(f"buffer_load_dwordx4 {R(KS,4)}, {vA16}, {sWs}, s5 offen sc1")
        s.e(f"v_and_b32 v21, 3, v0\nv_lshlrev_b32 v21, 4, v21\ns_lshl_b32 s5, {sRT2}, 6\ns_add_u32 s5, s5, {sKVs}")
        s.e(f"buffer_load_dwordx4 {R(KS+4,4)}, v21, {sWs}, s5 offen offset:2048 sc1")
    IM = [f"v_cvt_pk_bf16_f32 v{KS}, v{KS}, v{KS+1}", f"v_cvt_pk_bf16_f32 v{KS+1}, v{KS+2}, v{KS+3}",
          f"v_cvt_pk_bf16_f32 v{KS+4}, v{KS+4}, v{KS+5}", f"v_cvt_pk_bf16_f32 v{KS+5}, v{KS+6}, v{KS+7}",
          blk(f"s_mul_i32 s5, {sKQ}, 1088\ns_add_u32 s5, s5, {SCR_KV}\ns_lshl_b32 s4, {sRT2}, 9\ns_add_u32 s4, s4, s5\nv_lshlrev_b32 v25, 3, v0\nv_add_u32 v25, s4, v25\n"
              f"ds_write_b64 v25, {R(KS,2)}\ns_lshl_b32 s4, {sRT2}, 5\ns_add_u32 s4, s4, s5\nv_lshrrev_b32 v21, 1, v21\nv_add_u32 v21, s4, v21\nds_write_b64 v21, {R(KS+4,2)} offset:1024"),
          f"v_min_u32 v25, 64, {vP4}", "v_lshlrev_b32 v25, 4, v25", "v_lshrrev_b32 v26, 5, v0", "v_lshl_add_u32 v25, v26, 5, v25",
          blk(f"v_add_u32 v25, {SCR_KV + ch*2176}, v25\ns_lshl_b32 s5, {sG}, 12\ns_add_u32 s5, s5, {sAF}\ns_add_u32 {sSCRW}, s5, {112*1024 + ch*2048}")]
    O = [f"ds_read_b128 {R(OF,4)}, v25", f"ds_read_b128 {R(OF+4,4)}, v25 offset:16", f"ds_read_b128 {R(OP,4)}, v25 offset:1088", f"ds_read_b128 {R(OP+4,4)}, v25 offset:1104"]
    O += [f"{MF} {R(OD,16)}, {R(OF,4)}, {R(ACC_A,4)}, 0", f"{MF} {R(OD,16)}, {R(OF+4,4)}, {R(ACC_A+4,4)}, {R(OD,16)}",
          f"{MF} {R(OD2,16)}, {R(OP,4)}, {R(ACC_A+8,4)}, 0", f"{MF} {R(OD2,16)}, {R(OP+4,4)}, {R(ACC_A+12,4)}, {R(OD2,16)}"]
    for h, D in enumerate((OD, OD2)):
        O += [f"v_add_f32 v26, 0x358637bd, v{D+8}", "v_rcp_f32 v26, v26"]
        for j in range(8): O.append(f"v_mul_f32 v{D+j}, v{D+j}, v26")
        for j in range(4): O.append(f"v_cvt_pk_bf16_f32 v{ACC_A+4*h+j}, v{D+2*j}, v{D+2*j+1}")
        O.append((f"buffer_store_dwordx4 {R(ACC_A+4*h,4)}, {vA16}, {sWs}, {sSCRW} offen offset:{h*1024} sc1", "o"))
    O.append(stamp('ost'))
    bar(s, ring, "e1", pr(1), N("Q", 2, 4) + pr(0), lg0=True)
    drain(s, pull(ring, ch, 1)); s.marks['p1'] = 1
    ring.rel8 = []
    def ins(L, back, item): return L[:len(L) - back] + [item] + L[len(L) - back:]
    F2 = F + EQ
    if ch == 0: F2 = ins(F2, 150, f3)
    F2 = ins(F2, CFG['KP'], lambda s: (s.e("v_min_u32 v21, 15, v0\nv_lshlrev_b32 v21, 7, v21"), poll_issue(s, sWs, sKVF, vPoll2, vo="v21")))
    F2 = ins(F2, CFG['KF'], kvfetch)
    F2 += IM + [B(ring, "e2", [], pr(1), lg0=True), mark('vbar')] + O + [mark('v1'), ('hold', CFG['OW']), flag_store("o", sFL, 4 * 128, 'fo')]
    aphase(s, ring, ch, F2, [88, 92], {'f3': [64, 68, 72, 76], 'v1': [80, 84] + list(range(40, 64, 4)) + list(range(96, 128, 4))}, 0)
    return s

def build(path, listform=True):
    s0 = Stream("P")
    if PROFILE: s0.e("s_memtime s[96:97]")
    prologue(s0)
    s0.e(f"s_lshl_b32 s5, {sTY}, 1\ns_add_u32 s5, s5, {sCH}\ns_cmp_eq_u32 s5, 0\ns_cbranch_scc1 L_typeA0\ns_cmp_eq_u32 s5, 1\ns_cbranch_scc1 L_typeA1\ns_cmp_eq_u32 s5, 3\ns_cbranch_scc1 L_typeB1")
    B0 = stream_B(s0, 0); B1 = stream_B(s0, 1); A0 = stream_A(s0, 0); A1 = stream_A(s0, 1)
    assert B0.nbar == B1.nbar and A0.nbar == A1.nbar
    assert B0.slots == B1.slots and A0.slots == A1.slots
    hdr = open("recurrent_scan__linear_kernel_hedgehog__dense_activation_mish__prompt.s.ref").read().split("; Override")[0]
    T = [hdr.rstrip(), f"; @launch {'kernel=' + KNAME + ' ' if listform else ''}grid=(256,1,1) block=(512,1,1) lds=163840",
         '.amdgcn_target "amdgcn-amd-amdhsa--gfx950"', ".text", f".globl {KNAME}", ".p2align 8", f".type {KNAME},@function", f"{KNAME}:"]
    S = [s0, B0, B1, A0, A1]
    for st in S:
        T.append(f"; ---- stream {st.name}  nops={st.stats['nop']} waits={st.stats['wait']} barriers={st.nbar}")
        T.append(st.text())
    for st in S: T += st.ool
    T.append("L_end:\n  s_endpgm")
    T.append(".fill 6144, 4, 0xbf800000")
    T.append(f'''.section .rodata,"a"
.p2align 6
.amdhsa_kernel {KNAME}
  .amdhsa_next_free_vgpr 256
  .amdhsa_next_free_sgpr 102
  .amdhsa_accum_offset 256
  .amdhsa_group_segment_fixed_size 0
  .amdhsa_kernarg_size 88
  .amdhsa_user_sgpr_count 2
  .amdhsa_user_sgpr_kernarg_segment_ptr 1
  .amdhsa_system_sgpr_workgroup_id_x 1
.end_amdhsa_kernel''')
    open(path, "w").write("\n".join(T) + "\n")
    for st in S: print(st.name, "instrs", len(st.out), st.stats, "barriers", st.nbar)

if __name__ == "__main__":
    for a in sys.argv[2:]:
        if a == "prof": PROFILE = True
        elif '=' in a:
            k, v = a.split('='); CFG[k] = eval(v)
    build(sys.argv[1], listform=("final" not in sys.argv))
```

```python
import sys
sys.path.insert(0, 'gen')
from ab import *

KNAME = "recurrent_scan__linear_kernel_hedgehog__dense_activation_mish__prompt_kernel"
PROFILE = False
SLOT = 16384
SCR = 9 * SLOT
SCR_PHI = SCR
SCR_RS = SCR + 2048
SCR_ST = SCR + 2560
SCR_CS = SCR + 6656
SCR_Z = SCR + 10752
SCR_KV = SCR + 10752
Z_OFF = 0x900000
KV_OFF = Z_OFF
KVFLAG_OFF = Z_OFF + 0x40000
ACTFLAG_OFF = Z_OFF + 0x16000
PROF_OFF = 0xA00000
BIG = 0x40000000
CFG = dict(AD=16, A0=8, AN=2, BN=1, G8=1, F3G=4, PB=[(200, 40), (80, 55), (80, 40)], SLP=8, T3W=[0, 1, 2, 3, 0, 1, 2, 3, 0], OWN='', KD=0, PD=0, UP=[0, 0, 0, 0, 1, 2, 2], PAR=2, FB4=0, PKA=1, PK=0, KM=0, KVW=16, KS=(0, 5, 10), KVP=12, TAP=8, TAT=20, TAD=2, CB=6, DB=22, TW=1, TWT=2, GT=[2000, 4000, 5500, 500], TOFF=-1000, LT=200, LT2=200, QD2=800, LAT=900, QD=800, PLT=1500, BL=6, VC=9, T2=0, T2AT=[30, 35, 40, 45, 50, 55, 60, 66, 72], PF=4, PL=4, S0=6, S1=6, PRIO=0, VD=10, KP=160, KF=110, OW=4, G16=8, G28=20, TV=12, TB=1, TBT=28, TA=0, TO=11, T0=0, T1=0, ROT=2, RATE=38, BURST=24576, ST=90,
    CRED=6, AGE=14, P1B=5, FB=5, QB=[10, 3], IB=200, KB=6, VB=8, KVG=60, EH0=60, FG=60, E1=[120, 100], E2=[100, 80])

sX, sWq, sW1, sW2, sWo, sPhi, sB1, sOut, sDbg, sWs = [f"s[{8+4*i}:{11+4*i}]" for i in range(10)]
sW, sRT, sCH, sI, sG, sTY, sRB, sCB, sKQ, sRT2 = [f"s{48+i}" for i in range(10)]
sT0 = "s3"
sC10, sC01, sC11 = "s58", "s59", "s60"
sM0W = "s61"; sSoW = "s62"
sUA, sUB, sUC, sUD = "s63", "s6", "s7", "s2"
sAF, sFL, sAF2, sFL2, sB2, sBo, sKVs, sKVF, sSCRW, sCNT, sKS, sBID = [f"s{64+i}" for i in range(12)]
sA2y, sA2s, sOo = "s0", "s1", "s5"
STAMP0 = 76

vA16 = "v1"; vDq = "v2"; vD1 = "v3"; vDB = "v4"; vD5 = "v5"
VW = 6
vRS, vRSL, vM2 = "v14", "v15", "v22"
CF = 16
BI0, BI1, BI2 = 23, 24, 25
vPoll = "v27"; vFO = "v28"; vOne = "v10"; vP4 = "v30"; vT = "v31"; vPoll2 = "v9"
ACC_A, ACC_B, ACC_C = 32, 48, 64
WB = 80; PT = 96; PHI = 112; PK = 120; XA = 128
XR = 64; XD = 72; HR = 112; STA = 96; CSB = 116; ASEL = 120; CSA = 124
sXb = "s86"; sRot = "s89"; ROT0 = 98

def R(b, n): return f"v[{b}:{b+n-1}]"
def ldsaddr(regs, byte): return regs[byte >> 16], byte & 0xffff
_nl = [0]
def label():
    _nl[0] += 1; return f"L{_nl[0]}"
def stamp(name):
    def f(s):
        if not PROFILE: return
        if not hasattr(s, 'snames'): s.snames = []
        idx = len(s.snames)
        if idx >= 61: return
        s.snames.append(str(name))
        s.e(f"s_memtime s[{STAMP0+2*(idx%4)}:{STAMP0+1+2*(idx%4)}]")
        if idx >= 2: s.raw(f"v_writelane_b32 v29, s{STAMP0+2*((idx-2)%4)}, {idx-2}")
    return f
def srd(s, dst, lo, hi, size):
    b = int(dst[2:dst.index(':')])
    s.e(f"s_mov_b32 s{b}, {lo}\ns_and_b32 s{b+1}, {hi}, 0xffff\ns_mov_b32 s{b+2}, {size}\ns_mov_b32 s{b+3}, 0x20000")
def poll_issue(s, srd_, soff, vp=vPoll, imm=0, vo=vP4):
    s.e(f"buffer_load_dword {vp}, {vo}, {srd_}, {soff} offen offset:{imm} sc1")
def poll_check(s, srd_, soff, mask, vp=vPoll, imm=0, vo=vP4):
    l1, l2, l3 = label(), label(), label()
    stamp(f"[p{imm//128}_{mask:x}")(s)
    s.e(f"v_cmp_ne_u32 vcc, 0, {vp}\ns_andn2_b32 {sT0}, {mask:#x}, vcc_lo\ns_cbranch_scc1 {l1}\n{l2}:")
    stamp(f"p]")(s)
    s.ool.append(f"""{l1}:
  s_mov_b32 {sCNT}, 0x10000
{l3}:
  s_sleep {CFG['SLP']}
  buffer_load_dword {vp}, {vo}, {srd_}, {soff} offen offset:{imm} sc1
  s_waitcnt vmcnt(0)
  v_cmp_ne_u32 vcc, 0, {vp}
  s_nop 1
  s_andn2_b32 {sT0}, {mask:#x}, vcc_lo
  s_cbranch_scc0 {l2}
  s_sub_u32 {sCNT}, {sCNT}, 1
  s_cmp_lg_u32 {sCNT}, 0
  s_cbranch_scc1 {l3}
  s_branch {l2}""")
def flag_store(tagwait, soff, imm, mark):
    def f(s):
        stamp("(" + mark)(s)
        s.wait_tag(tagwait)
        stamp(mark + ")")(s)
        s.e(f"buffer_store_dword {vOne}, {vFO}, {sWs}, {soff} offen offset:{imm} sc1")
        s.marks[mark] = 1
    return f
def blk(text): return lambda s: s.e(text)

class Ring:
    hold = ()
    def __init__(self, items, free, ch):
        self.items = list(items); self.free = list(free); self.slot = {}; self.q = []; self.log = {}; self.ch = ch
        self.order = {it[0]: k for k, it in enumerate(items)}; self.xres = True
    def release(self, name):
        if name not in self.hold: self.free.append(self.slot[name])
    def assign(self, s, owner='all', upto=None, maxn=99):
        k = 0
        while k < len(self.items) and maxn > 0:
            it = self.items[k]; nm = it[0]
            if upto is not None and self.order[nm] > self.order[upto]: break
            if nm[0] == 'X':
                want = 2 * (int(nm[2]) & 1) + (nm[1] == 'H')
                ok = [x for x in self.free if x == want]
                if not ok: k += 1; continue
            elif nm[0] in 'BF': ok = [x for x in self.free if not (self.xres and x < 4)]
            else: ok = [x for x in self.free if x != 0 and not (self.xres and x < 4)]
            if not ok:
                if nm[0] != 'B': k += 1; continue
                break
            if nm[0] in 'BF' and 0 in ok: ok = [0]
            self.items.pop(k); sl = ok[0]; self.free.remove(sl); self.slot[nm] = sl; maxn -= 1
            self.log[nm] = [s.nbar, None, owner]
            if owner == 'all': self.q += [(it, sl, h, 0) for h in range(2)]
            elif owner == self.ch: self.q += [(it, sl, h, o) for o in range(2) for h in range(2)]
            if nm == 'XH3': self.xres = False
        self.q.sort(key=lambda e: self.order[e[0][0]])
    def pump(self, s, n=1):
        while n > 0 and self.q:
            it, sl, h, other = self.q.pop(0)
            name, srd_, voff, sbase, o0, o1, dl = it[:7]
            sg = (1 if self.ch == 0 else -1) * other
            vo = voff[h] if isinstance(voff, tuple) else voff
            s.e(f"s_add_u32 m0, {sM0W}, {(sl*SLOT + h*1024 + sg*8192) & 0xffffffff:#x}")
            if len(it) > 7:
                mul, cidx = it[7], it[8](self.ch if not other else 1 - self.ch)
                key = (sbase, mul, cidx)
                if self.rkey != key:
                    s.e(f"s_mul_i32 {sRot}, s{ROT0+cidx}, {mul}\ns_add_u32 {sRot}, {sRot}, {sbase}")
                    self.rkey = key
                sbase = sRot
            s.e(f"s_add_u32 {sSoW}, {sbase}, {((o0, o1)[h] + sg*dl) & 0xffffffff:#x}")
            s.e(f"buffer_load_dwordx4 {vo}, {srd_}, {sSoW} offen lds", tag=name)
            n -= 1
    rkey = None
    cred = 0
    def pace(self, s, cycles, mx=99):
        self.cred = min(self.cred + cycles * CFG['RATE'], CFG['BURST'])
        while self.q and mx > 0:
            mx -= 1
            e = self.q[0]
            cost = (8192 if self.log[e[0][0]][2] == 'all' else 4096) * (2 if e[0][0][0] == 'F' else 1)
            if self.cred < cost: break
            self.cred -= cost; self.pump(s, 1)
    def need(self, s, name):
        assert name in self.slot, f"{name} has no slot yet"
        while any(e[0][0] == name for e in self.q):
            print("  warning: forced DMA issue for", name, "in", s.name)
            self.pump(s)
        if self.log[name][1] is None: self.log[name][1] = s.nbar
        s.wait_tag(name)
def x_items(q):
    return [(f"XL{q}", sX, (f"v{XD}", f"v{XD+1}"), sXb, 0, 0, 32768, 256, lambda c: q), (f"XH{q}", sX, (f"v{XD}", f"v{XD+1}"), sXb, 65536, 65536, 32768, 256, lambda c: q)]
def w_items(name, srd_, voff, sbase, stride):
    return [(f"{name}{c}", srd_, voff, sbase, 0, 8 * stride, 64 * stride, 128 * stride, lambda ch, c=c: c) for c in range(4)]
ORDER = [4, 5, 6, 7, 16, 17, 18, 19, 8, 9, 10, 11, 20, 21, 22, 23, 12, 13, 14, 15, 0, 1, 2, 3, 24, 25, 26, 27]
def b_item(hf, c):
    nm = f"B{'ab'[hf]}{c}"
    if c < 7:
        o = hf * 896 * 1024 + ORDER[4 * c] * 16384
        return (nm, sW2, vDB, sB2, o, o + 8192, 448 * 1024)
    o = hf * 256 * 1024 + (c - 7) * 65536
    return (nm, sWo, vDB, sBo, o, o + 8192, 128 * 1024)
def b_items(first):
    it = []
    for c in range(9): it += [b_item(0, c), b_item(1, c)]
    return it

def mish(acc, tmp, so, tag):
    F = []
    for hb in range(2):
        a = acc + 8 * hb
        for j in range(8): F.append(f"v_mul_f32 v{tmp+j}, v{a+j}, {vRSL}")
        for j in range(8): F.append(f"v_exp_f32 v{tmp+j}, v{tmp+j}")
        for j in range(8): F.append(f"v_add_f32 v{tmp+j}, 1.0, v{tmp+j}")
        for j in range(8): F.append(f"v_fma_f32 v{tmp+j}, v{tmp+j}, v{tmp+j}, 1.0")
        for j in range(8): F.append(f"v_rcp_f32 v{tmp+j}, v{tmp+j}")
        for j in range(8): F.append(f"v_fma_f32 v{tmp+j}, v{tmp+j}, {vM2}, {vRS}")
        for j in range(8): F.append(f"v_mul_f32 v{tmp+j}, v{a+j}, v{tmp+j}")
        for j in range(4): F.append(f"v_cvt_pk_bf16_f32 v{a+j}, v{tmp+2*j}, v{tmp+2*j+1}")
        F.append((f"buffer_store_dwordx4 {R(a,4)}, {vA16}, {sWs}, {so} offen offset:{hb*1024} sc1", tag))
    return F
def bc(r):
    n = int(r[1:]); return R(n & ~1, 2), n & 1
def pk2(op, d, a, b, c=None):
    ops = [R(a, 2)]; lo = [0]; hi = [1]
    for x in (b, c):
        if x is None: continue
        if isinstance(x, int): ops.append(R(x, 2)); lo.append(0); hi.append(1)
        elif x[0] == 'v':
            p, o = bc(x); ops.append(p); lo.append(o); hi.append(o)
        else: ops.append(x); lo.append(0); hi.append(0)
    f = lambda L: "[" + ",".join(map(str, L)) + "]"
    return f"v_pk_{op}_f32 {R(d,2)}, " + ", ".join(ops) + f" op_sel:{f(lo)} op_sel_hi:{f(hi)}"
def mish_pk(acc, tmp, so, tag):
    F = []
    for hb in range(2):
        a = acc + 8 * hb; E = range(0, 8, 2)
        F += [pk2("mul", tmp + j, a + j, vRSL) for j in E] + [f"v_exp_f32 v{tmp+j}, v{tmp+j}" for j in range(8)]
        F += [pk2("add", tmp + j, tmp + j, "1.0") for j in E] + [pk2("fma", tmp + j, tmp + j, tmp + j, "1.0") for j in E]
        F += [f"v_rcp_f32 v{tmp+j}, v{tmp+j}" for j in range(8)]
        F += [pk2("fma", tmp + j, tmp + j, vM2, vRS) for j in E] + [pk2("mul", tmp + j, tmp + j, a + j) for j in E]
        F += [f"v_cvt_pk_bf16_f32 v{a+j}, v{tmp+2*j}, v{tmp+2*j+1}" for j in range(4)]
        F.append((f"buffer_store_dwordx4 {R(a,4)}, {vA16}, {sWs}, {so} offen offset:{hb*1024} sc1", tag))
    return F
def softmax_pk(P, out, t0, t1, tp):
    F = softmax(P, out, t0, t1)[:9]; E = range(0, 16, 2)
    F += [pk2("fma", P + j, P + j, vRSL, t0) for j in E] + [f"v_exp_f32 v{P+j}, v{P+j}" for j in range(16)]
    F += [pk2("add", tp, P, P + 2), pk2("add", tp + 2, P + 4, P + 6), pk2("add", tp, tp, P + 8), pk2("add", tp + 2, tp + 2, P + 10),
          pk2("add", tp, tp, P + 12), pk2("add", tp + 2, tp + 2, P + 14), pk2("add", tp, tp, tp + 2), f"v_add_f32 {t0}, v{tp}, v{tp+1}", f"v_rcp_f32 {t0}, {t0}"]
    F += [pk2("mul", P + j, P + j, t0) for j in E] + [f"v_cvt_pk_bf16_f32 v{out+j}, v{P+2*j}, v{P+2*j+1}" for j in range(8)]
    return F
def softmax(P, out, t0, t1):
    F = [f"v_max3_f32 {t0}, v{P}, v{P+1}, v{P+2}", f"v_max3_f32 {t1}, v{P+3}, v{P+4}, v{P+5}",
         f"v_max3_f32 {t0}, {t0}, v{P+6}, v{P+7}", f"v_max3_f32 {t1}, {t1}, v{P+8}, v{P+9}",
         f"v_max3_f32 {t0}, {t0}, v{P+10}, v{P+11}", f"v_max3_f32 {t1}, {t1}, v{P+12}, v{P+13}",
         f"v_max3_f32 {t0}, {t0}, v{P+14}, v{P+15}", f"v_max_f32 {t0}, {t0}, {t1}", f"v_mul_f32_e64 {t0}, -{t0}, {vRSL}"]
    for j in range(16): F.append(f"v_fma_f32 v{P+j}, v{P+j}, {vRSL}, {t0}")
    for j in range(16): F.append(f"v_exp_f32 v{P+j}, v{P+j}")
    F += [f"v_add_f32 {t0}, v{P}, v{P+1}", f"v_add_f32 {t1}, v{P+2}, v{P+3}"]
    for j in range(4, 16, 2):
        F += [f"v_add_f32 {t0}, {t0}, v{P+j}", f"v_add_f32 {t1}, {t1}, v{P+j+1}"]
    F += [f"v_add_f32 {t0}, {t0}, {t1}", f"v_rcp_f32 {t0}, {t0}"]
    for j in range(16): F.append(f"v_mul_f32 v{P+j}, v{P+j}, {t0}")
    for j in range(8): F.append(f"v_cvt_pk_bf16_f32 v{out+j}, v{P+2*j}, v{P+2*j+1}")
    return F
def pack16(acc, out): return [f"v_cvt_pk_bf16_f32 v{out+j}, v{acc+2*j}, v{acc+2*j+1}" for j in range(8)]
def phi_frags():
    F = ["v_bfe_u32 v25, v0, 2, 2", "v_lshrrev_b32 v26, 5, v0", "v_lshl_add_u32 v25, v26, 2, v25", "v_lshlrev_b32 v25, 5, v25",
         "v_bfe_u32 v26, v0, 4, 1", "v_lshl_add_u32 v25, v26, 4, v25", "v_bfe_u32 v26, v0, 1, 1", "v_lshl_add_u32 v25, v26, 3, v25",
         blk(f"s_lshl_b32 s4, {sCH}, 10\ns_add_u32 s4, s4, {SCR_PHI}\nv_add_u32 v25, s4, v25")]
    for h in range(2):
        for rd in range(2): F.append(f"ds_read_b64_tr_b16 {R(PHI+4*h+2*rd,2)}, v25 offset:{h*512 + rd*256}")
    F += ["v_bfe_u32 v26, v0, 2, 1", "v_mul_u32_u24 v26, 0x8000, v26", "v_lshl_or_b32 v26, v26, 16, v26"]
    for j in range(8): F.append(f"v_xor_b32 v{PHI+j}, v26, v{PHI+j}")
    return F

def prologue(s):
    s.e("s_load_dwordx2 s[64:65], s[0:1], 0\ns_load_dwordx2 s[84:85], s[0:1], 80")
    s.e("s_load_dwordx8 s[68:75], s[0:1], 8\ns_load_dwordx8 s[76:83], s[0:1], 40\ns_load_dwordx2 s[66:67], s[0:1], 72")
    s.e("s_cmp_ge_u32 s2, 256\ns_cbranch_scc1 L_end")
    s.e("v_lshrrev_b32 v2, 6, v0\nv_and_b32 v0, 63, v0")
    s.e(f"v_readfirstlane_b32 {sW}, v2")
    s.e("s_and_b32 s3, s2, 7\ns_lshr_b32 s4, s2, 3" if not CFG.get('BADMAP') else "s_lshr_b32 s3, s2, 5\ns_and_b32 s4, s2, 31")
    s.e(f"s_and_b32 s5, s3, 1\ns_lshl_b32 s5, s5, 3\ns_and_b32 {sI}, s4, 7\ns_add_u32 {sI}, {sI}, s5")
    s.e(f"s_lshr_b32 {sKQ}, {sW}, 1\ns_and_b32 {sRT2}, {sW}, 1\ns_lshl_b32 {sM0W}, {sW}, 11")
    s.e(f"s_and_b32 {sRT}, {sW}, 3\ns_lshr_b32 {sCH}, {sW}, 2")
    s.e(f"s_lshr_b32 s5, s3, 1\ns_lshl_b32 s5, s5, 2\ns_lshr_b32 s6, s4, 3\ns_add_u32 s5, s5, s6")
    s.e(f"s_lshr_b32 {sG}, s5, 1\ns_and_b32 {sTY}, s5, 1")
    s.e({0: f"s_mov_b32 s{ROT0}, 0", 1: f"s_add_u32 s{ROT0}, s5, {sI}", 2: f"s_lshr_b32 s{ROT0}, s3, 1\ns_lshl_b32 s{ROT0+1}, s3, 1\ns_add_u32 s{ROT0}, s{ROT0}, s{ROT0+1}"}[CFG['ROT']])
    for c in range(1, 4): s.e(f"s_add_u32 s{ROT0+c}, s{ROT0}, {c}\ns_and_b32 s{ROT0+c}, s{ROT0+c}, 3")
    s.e(f"s_and_b32 s{ROT0}, s{ROT0}, 3")
    s.e(f"s_lshl_b32 {sRB}, s3, 2\ns_add_u32 {sRB}, {sRB}, s6\ns_and_b32 {sCB}, s4, 7\ns_mov_b32 s87, s4")
    s.e(f"v_lshrrev_b32 v33, 4, v0\nv_and_b32 v34, 15, v0\ns_lshl_b32 s5, {sRT2}, 3")
    for h in range(2):
        s.e(f"v_add_u32 v35, {4*h}, v33\nv_add_u32 v36, s5, v35\nv_xor_b32 v36, v34, v36\nv_lshlrev_b32 v36, 4, v36\nv_lshl_add_u32 v{XD+h}, v35, 10, v36")
    s.e(f"s_lshl_b32 {sXb}, {sI}, 17\ns_lshl_b32 s5, {sW}, 13\ns_add_u32 {sXb}, {sXb}, s5")
    s.e("v_lshrrev_b32 v36, 3, v0\nv_and_b32 v37, 7, v0\nv_lshlrev_b32 v38, 1, v36\nv_and_b32 v38, 4, v38\nv_xor_b32 v37, v37, v38\nv_lshlrev_b32 v37, 4, v37")
    s.e(f"v_mul_u32_u24 {vDq}, 3072, v36\nv_add_u32 {vDq}, {vDq}, v37\nv_mul_u32_u24 {vD1}, 3584, v36\nv_add_u32 {vD1}, {vD1}, v37")
    s.e(f"v_lshl_add_u32 {vDB}, v36, 10, v37\nv_lshlrev_b32 {vA16}, 4, v0")
    s.raw("s_waitcnt lgkmcnt(0)")
    srd(s, sX, "s64", "s65", 2048 * 512 * 2)
    srd(s, sWq, "s68", "s69", 512 * 1536 * 2)
    srd(s, sW1, "s76", "s77", 512 * 1792 * 2)
    srd(s, sWs, "s84", "s85", 0x10000000)
    s.e("s_cmp_ge_u32 s2, 32\ns_cbranch_scc1 L_noinit")
    s.e("v_mov_b32 v40, 0\nv_mov_b32 v41, 0\nv_mov_b32 v42, 0\nv_mov_b32 v43, 0")
    s.e(f"s_lshl_b32 s5, s2, 13\ns_lshl_b32 s6, {sW}, 10\ns_add_u32 s5, s5, s6\ns_add_u32 s5, s5, {Z_OFF}")
    s.raw(f"buffer_store_dwordx4 v[40:43], {vA16}, {sWs}, s5 offen sc1")
    s.e("s_add_u32 s5, s5, 0x40000")
    s.raw(f"buffer_store_dwordx4 v[40:43], {vA16}, {sWs}, s5 offen sc1")
    s.e("L_noinit:")
    s.e("s_mov_b32 s88, s2")

def prologue2(s):
    lab = label()
    s.e(f"s_cmp_lg_u32 {sW}, 7\ns_cbranch_scc1 {lab}")
    s.e(f"s_getpc_b64 s[90:91]\n{lab}x:\ns_sub_u32 s90, s90, {lab}x-{KNAME}\ns_subb_u32 s91, s91, 0\ns_mul_i32 s5, s87, 2560\nv_min_u32 v35, 19, v0\nv_lshlrev_b32 v35, 7, v35\nv_add_u32 v35, s5, v35")
    s.raw("global_load_dword v26, v35, s[90:91]")
    s.e(f"{lab}:")
    srd(s, sPhi, "s70", "s71", 32 * 512)
    srd(s, sB1, "s78", "s79", 1792 * 2)
    srd(s, sW2, "s80", "s81", 1792 * 512 * 2)
    srd(s, sWo, "s72", "s73", 512 * 512 * 2)
    srd(s, sOut, "s82", "s83", 2048 * 512 * 2)
    srd(s, sDbg, "s66", "s67", 256)
    s.e(f"s_mov_b32 {sBID}, s88\ns_mov_b32 {sC11}, 0x3f803f80")
    s.e(f"v_lshrrev_b32 v36, 2, v0\nv_and_b32 v37, 3, v0\nv_lshlrev_b32 v37, 4, v37\nv_mul_u32_u24 {vD5}, 3584, v36\nv_add_u32 {vD5}, {vD5}, v37")
    s.e(f"v_and_b32 {vP4}, 31, v0\nv_lshlrev_b32 {vP4}, 2, {vP4}")
    s.e(f"v_mov_b32 v29, 0\nv_mov_b32 {vFO}, {BIG}\nv_cmp_eq_u32 vcc, 0, v0\nv_cndmask_b32 {vFO}, {vFO}, 0, vcc")
    s.e("v_bfe_u32 v36, v0, 2, 2\nv_and_b32 v37, 3, v0\nv_bfe_u32 v38, v0, 4, 1\nv_lshrrev_b32 v39, 5, v0")
    s.e("v_lshlrev_b32 v40, 3, v37\nv_lshl_add_u32 v40, v38, 5, v40\nv_lshl_add_u32 v41, v39, 3, v36")
    s.e(f"v_lshrrev_b32 v42, 1, v36\nv_xor_b32 v42, {sCH}, v42\nv_lshlrev_b32 v42, 6, v42")
    s.e(f"v_lshl_add_u32 v43, v41, 7, v40\nv_add_u32 v43, v43, v42")
    for j in range(4):
        s.e(f"s_xor_b32 s5, {sRT}, {j}\ns_lshl_b32 s5, s5, 12\ns_add_u32 s5, s5, {SLOT}\nv_add_u32 v{VW+j}, s5, v43\nv_add_u32 v{VW+4+j}, 0x10000, v{VW+j}")
    s.e(f"v_and_b32 v44, 31, v0\ns_lshl_b32 s5, {sRT}, 5\nv_add_u32 v45, s5, v44\nv_xor_b32 v46, v39, v34\nv_lshlrev_b32 v46, 4, v46\nv_lshl_add_u32 v{XR}, v45, 8, v46")
    s.e(f"s_lshl_b32 s5, {sRT}, 6\nv_xor_b32 v{XR}, s5, v{XR}")
    for t in range(1, 8): s.e(f"v_xor_b32 v{XR+t}, {t<<5}, v{XR}")
    s.e(f"v_lshlrev_b32 v44, 2, v38\nv_cmp_eq_u32 vcc, v44, v34\nv_mov_b32 v44, {sC11}\nv_cndmask_b32 v{ASEL}, 0, v44, vcc")
    for j in range(1, 4): s.e(f"v_mov_b32 v{ASEL+j}, v{ASEL}")
    s.e(f"v_mov_b32 v{CF+4}, 0\nv_mov_b32 v{CF+5}, 0")
    s.e(f"s_lshl_b32 s3, {sI}, 2\ns_add_u32 s3, s3, {sRT}\ns_mul_i32 {sAF}, s3, {144*1024}")
    s.e(f"s_mul_i32 {sKS}, {sG}, {14*1024}\ns_add_u32 {sKS}, {sKS}, {sAF}")
    s.e(f"s_lshl_b32 {sFL}, s3, 2\ns_lshr_b32 s4, {sG}, 1\ns_add_u32 {sFL}, {sFL}, s4\ns_mul_i32 {sFL}, {sFL}, 640")
    s.e(f"s_and_b32 s4, {sG}, 1\ns_lshl_b32 s4, s4, 3\ns_lshl_b32 s5, {sCH}, 2\ns_add_u32 s4, s4, s5\ns_add_u32 {sFL}, {sFL}, s4\ns_add_u32 {sFL}, {sFL}, {ACTFLAG_OFF}")
    s.e(f"s_lshl_b32 s3, {sRB}, 1\ns_add_u32 s3, s3, {sRT2}\ns_mul_i32 {sAF2}, s3, {144*1024}")
    s.e(f"s_lshl_b32 {sFL2}, s3, 2\ns_add_u32 {sFL2}, {sFL2}, {sKQ}\ns_mul_i32 {sFL2}, {sFL2}, 640\ns_add_u32 {sFL2}, {sFL2}, {ACTFLAG_OFF}")
    s.e(f"s_mul_i32 {sB2}, {sCH}, {448*1024}\ns_lshl_b32 s4, {sRT}, 14\ns_lshl_b32 s5, {sCB}, 7\ns_add_u32 s4, s4, s5\ns_add_u32 {sB2}, {sB2}, s4")
    s.e(f"s_lshl_b32 {sBo}, {sCH}, 17\ns_add_u32 {sBo}, {sBo}, s4")
    s.e(f"s_lshl_b32 s3, {sG}, 2\ns_add_u32 s3, s3, {sKQ}\ns_mul_i32 {sKVs}, s3, 2176\ns_add_u32 {sKVs}, {sKVs}, {KV_OFF}")
    s.e(f"s_lshl_b32 s3, {sG}, 3\ns_add_u32 s3, s3, {sW}\ns_lshl_b32 {sKVF}, s3, 11\ns_add_u32 {sKVF}, {sKVF}, {KVFLAG_OFF}")
    s.e(f"s_mul_i32 s3, {sKQ}, {28*1024}\ns_add_u32 {sA2y}, {sAF2}, s3")
    s.e(f"s_lshl_b32 s3, {sKQ}, 13\ns_add_u32 {sA2s}, {sAF2}, s3\ns_add_u32 {sA2s}, {sA2s}, {112*1024}")
    s.e(f"v_lshrrev_b32 {vT}, 1, {vP4}")

def unit_bases(s, typ):
    s.e(f"s_mul_i32 s3, {sW}, {16*3072}\ns_lshl_b32 s4, {sG}, 7\ns_add_u32 s3, s3, s4")
    s.e(f"s_mul_i32 s4, {sG}, 448\ns_and_b32 s5, {sG}, 1\ns_cmp_eq_u32 s5, 0")
    if typ == 'A':
        s.e(f"s_cselect_b32 s5, 0, 320\ns_add_u32 s4, s4, s5")
        s.e(f"s_add_u32 {sUA}, s3, 1024\ns_add_u32 {sUB}, s3, 2048")
        s.e(f"s_mul_i32 {sUC}, {sW}, {16*3584}\ns_add_u32 {sUC}, {sUC}, s4")
        s.e(f"s_lshl_b32 s5, {sCH}, 6\ns_add_u32 s92, s4, s5")
        return [f"buffer_load_ushort v{BI0}, {vT}, {sB1}, s92 offen"]
    s.e(f"s_cselect_b32 s5, 128, 64\ns_cselect_b32 {sUD}, 384, 0")
    s.e(f"s_add_u32 s5, s4, s5\ns_add_u32 s92, s4, {sUD}\ns_mov_b32 {sUC}, s3")
    s.e(f"s_mul_i32 {sUA}, {sW}, {16*3584}\ns_add_u32 {sUA}, {sUA}, s5\ns_add_u32 {sUB}, {sUA}, 128")
    s.e(f"s_mul_i32 {sUD}, {sRT}, {32*3584}\ns_add_u32 {sUD}, {sUD}, s92")
    s.e(f"s_lshl_b32 s3, {sCH}, 6\ns_add_u32 s93, s5, s3")
    return [f"buffer_load_ushort v{BI2}, {vT}, {sB1}, s92 offen", f"buffer_load_ushort v{BI0}, {vT}, {sB1}, s93 offen",
            f"buffer_load_ushort v{BI1}, {vT}, {sB1}, s93 offen offset:128"]

def start(s, ring, biasloads):
    ring.assign(s, upto=ring.upto0)
    if CFG['T0'] == 1: touch_all(s, ['x', 'q', 'w1'])
    ring.pump(s, CFG['S0'])
    if CFG['T0'] == 2: touch_all(s, ['x', 'q', 'w1'])
    prologue2(s)
    ring.pump(s, CFG['S1'])
    if CFG['T1']: touch_all(s, ['w2', 'wo'])
def touch_all(s, which):
    specs = dict(x=(sX, 64, 4), q=(sWq, 48, 5), w1=(sW1, 56, 6), w2=(sW2, 56, 4), wo=(sWo, 16, 5))
    for nm in which:
        srd_, nl, wv = specs[nm]
        lab = label()
        s.e(f"s_cmp_lg_u32 {sW}, {wv}\ns_cbranch_scc1 {lab}")
        s.e(f"v_min_u32 v47, {nl-1}, v0\nv_lshlrev_b32 v47, 7, v47\ns_mul_i32 s5, s88, {nl*128}\ns_mov_b32 m0, {SCR + 15360}\ns_nop 0")
        s.raw(f"buffer_load_dword v47, {srd_}, s5 offen lds")
        s.e(f"{lab}:")
def late_loads(biasloads):
    def f(s):
        s.e(f"v_lshrrev_b32 {vT}, 1, {vP4}")
        for x in biasloads: s.e(x)
        s.e(f"s_lshl_b32 s3, {sG}, 11\ns_lshl_b32 s4, {sRT2}, 10\ns_add_u32 s3, s3, s4\ns_add_u32 m0, s4, {SCR_PHI}")
        s.e(f"buffer_load_dwordx4 {vA16}, {sPhi}, s3 offen lds", tag="phi")
    return f

MF = "v_mfma_f32_32x32x16_bf16"
def bar(s, ring, name, needs=(), rel=(), owner='all', lg0=False, upto=None, extra=(), maxn=99):
    if CFG.get('SB'): stamp("<" + name)(s)
    for n in needs: ring.need(s, n)
    if lg0: s.wait(lg=0)
    s.wait_dswrites()
    s.e("s_barrier")
    stamp(name)(s)
    s.marks[name] = 1
    for n in rel: ring.release(n)
    ring.free += list(extra)
    if owner == 'all':
        k = 'x' if name[0] == 'b' else ('a' if name[0] in 'ae' else 'p')
        if k in CFG['OWN'] and not (s.name[0] == 'B' and name in ('c3', 'd3', 'e1')): owner = 0
    ring.assign(s, owner, upto, maxn)
def B(ring, *a, **k): return lambda s: bar(s, ring, *a, **k)

class MSeg:
    def __init__(self, ring, u, ch, events=None, posts=None, xpass=False, dma=0):
        self.ring, self.u, self.ch, self.ev, self.posts, self.xp, self.dma = ring, u, ch, events or {}, posts or {}, xpass, dma
        self.nr = 0; self.hs = None
    def reads(self, s, t):
        u, ring = self.u, self.ring
        for e in self.ev.get(t, []): e(s)
        c, p = t // 8, t % 8
        if self.xp:
            for x in {0: (0, 1), 1: (2, 3, 4), 2: (5, 6, 7)}.get(p, ()):
                s.e(f"ds_read_b128 {R(XA+32*c+4*x,4)}, v{XR+x} offset:{(c&1)*32768}")
        it = f"{u['name']}{c}" if u['kind'] == 'w' else f"{u['name']}{c//2}"
        assert ring.log[it][1] is not None, f"{it} read before certified"
        sl = ring.slot[it]; buf = WB + 4 * (t % 4)
        if u['kind'] == 'h5' and self.hs != sl:
            if self.hs is None:
                s.e("v_bfe_u32 v116, v0, 2, 2\nv_lshrrev_b32 v117, 5, v0\nv_lshl_add_u32 v116, v117, 3, v116\nv_lshlrev_b32 v116, 6, v116\nv_bfe_u32 v117, v0, 4, 1\nv_lshl_add_u32 v116, v117, 5, v116\nv_and_b32 v117, 3, v0\nv_lshl_add_u32 v116, v117, 3, v116")
                for j in range(4): s.e(f"s_xor_b32 s3, {sRT}, {j}\ns_lshl_b32 s3, s3, 11\ns_add_u32 s3, s3, {sl*SLOT}\nv_add_u32 v{HR+j}, s3, v116")
            else:
                for j in range(4): s.e(f"v_add_u32 v{HR+j}, {((sl-self.hs)*SLOT) & 0xffffffff:#x}, v{HR+j}")
            self.hs = sl
        for k in range(2):
            if u['kind'] == 'w':
                w = 0 if sl <= 4 else 1
                r, off = f"v{VW+4*w+p//2}", (sl - 1 - 4 * w) * SLOT + (p & 1) * 2048 + k * 512
            else: r, off = f"v{HR+p//2}", (c % 2) * 8192 + (p & 1) * 1024 + k * 256
            s.e(f"ds_read_b64_tr_b16 {R(buf+2*k,2)}, {r} offset:{off}")
    def pre(self, s, n=None):
        n = CFG['PF'] if n is None else n
        while self.nr < n: self.reads(s, self.nr); self.nr += 1
    def run(self, s, nxt=None, F=None, budget=0):
        u = self.u; ch = self.ch
        credit = 0
        if CFG['PRIO'] and not self.xp: s.e("s_setprio 1")
        self.pre(s)
        for t in range(32):
            c, p = t // 8, t % 8
            buf = WB + 4 * (t % 4)
            cin = R(u['acc'], 16) if t > 0 else "0"
            a, b = (R(buf, 4), R(XA + 4 * t, 4)) if u['trans'] else (R(XA + 4 * t, 4), R(buf, 4))
            s.e(f"{MF} {R(u['acc'],16)}, {a}, {b}, {cin}")
            if p < 2 and not (CFG.get('NOCS') and t > 0): s.e(f"v_mfma_f32_16x16x32_bf16 {R(CSA,4)}, {R(ASEL,4)}, {R(buf,4)}, {R(CSA,4) if t > 0 else '0'}")
            if self.nr < 32: self.reads(s, self.nr); self.nr += 1
            elif nxt is not None: nxt.pre(s, t - 31 + CFG['PF'])
            if self.xp and t < 25 and CFG['PAR'] == 2:
                if t % 2 == ch or ('x' in CFG['OWN'] and ch == 0): self.ring.pump(s, 2)
            elif self.xp and t < 25: self.ring.pump(s, 1)
            elif self.xp: self.ring.pace(s, CFG['ST'])
            elif self.dma and CFG['PAR']:
                if 'p' in CFG['OWN']: self.ring.pace(s, self.dma, 1)
                elif t % 2 == ch: self.ring.pace(s, 2 * self.dma, 1)
            elif self.dma: self.ring.pace(s, self.dma)
            if t == 27:
                s.e(f"s_lshl_b32 s3, {sRT}, 2\ns_add_u32 s3, s3, {SCR_CS + u['csi']*2048 + ch*1024}\nv_add_u32 v{CSA+1}, s3, {vA16}\nds_write_b32 v{CSA+1}, v{CSA}")
            if self.xp and p in (1, 3):
                for x in ((ch, ch + 2) if p == 1 else (ch + 4, ch + 6)):
                    for j in range(4):
                        r = XA + 32 * c + 4 * x + j
                        first = (c == 0 and p == 1 and x == ch and j < 2)
                        s.e(f"v_dot2_f32_bf16 v{STA+(j&1)}, v{r}, {sC11}, {'0' if first else f'v{STA+(j&1)}'}")
                        s.e(f"v_dot2_f32_bf16 v{STA+2+(j&1)}, v{r}, v{r}, {'0' if first else f'v{STA+2+(j&1)}'}")
                if t == 27:
                    q = f"v{STA+2}"
                    s.e(f"v_add_f32 v{STA}, v{STA}, v{STA+1}\nv_add_f32 v{STA+1}, v{STA+2}, v{STA+3}\nv_lshrrev_b32 {q}, 5, v0\nv_lshlrev_b32 {q}, 3, {q}\n"
                        f"v_lshl_add_u32 {q}, {vP4}, 3, {q}\ns_lshl_b32 s3, {sRT}, 10\ns_add_u32 s3, s3, {SCR_ST + ch*16}\nv_add_u32 {q}, s3, {q}\nds_write_b64 {q}, {R(STA,2)}")
            for e in self.posts.get(t, []): e(s)
            if F is not None: credit = fill(s, F, (budget(t) if callable(budget) else budget) + min(credit, CFG['CRED']))
        if CFG['PRIO'] and not self.xp: s.e("s_setprio 0")

def fill(s, F, budget, force=False):
    while budget > 0 and F:
        f = F[0]
        if isinstance(f, tuple) and f[0] == 'wait':
            if f[1] in s.marks: F.pop(0); continue
            return 0
        if isinstance(f, tuple) and f[0] == 'nextbar': f = F[0] = ('barge', s.nbar + 1)
        if isinstance(f, tuple) and f[0] == 'barge':
            if s.nbar >= f[1]: F.pop(0); continue
            return 0
        if isinstance(f, tuple) and f[0] in ('hold', 'tilt'):
            if budget <= 1: F.pop(0); continue
            return 0
        if isinstance(f, tuple) and f[0] == 'gap':
            f = F[0] = ('until', s.n_issued + f[1])
        if isinstance(f, tuple) and f[0] == 'until':
            if s.n_issued >= f[1] or force: F.pop(0); continue
            return 0
        if callable(f):
            F.pop(0); n0 = s.n_issued; f(s); budget -= max(1, (s.n_issued - n0) * 0.5); continue
        txt, tag = (f if isinstance(f, tuple) else (f, None))
        need, age = s.cost(txt)
        if not force and (need > 1 or (age is not None and age < CFG['AGE'])): return budget
        F.pop(0); s.e(txt, tag)
        k = I(txt).kind
        budget -= 2 if k == 'trans' else (0.5 if k in ('salu', 'ds', 'vm') else 1)
    return 0
def until(s, ring, F, name, every=None):
    n = 0
    while name not in s.marks:
        assert F, name
        l = len(F); fill(s, F, 1, force=True)
        assert len(F) < l, ("stuck", F[0], name, s.name)
        n += 1
        ring.pace(s, 9)
    return n
def vrun(s, ring, F, slots, every=None, flush=True):
    every = every or CFG['VD']
    while slots > 0 and F:
        l = len(F); fill(s, F, min(every, slots), force=True); slots -= every
        ring.pace(s, 9 * every)
        if len(F) == l: break
    if flush: ring.pump(s, 99)

def vseg(s, ring, F, every=None, flush=True):
    every = every or CFG['VD']
    n = 0
    for f in F:
        if isinstance(f, tuple) and f[0] in ('after', 'skip', 'wait', 'gap', 'until'): continue
        drain(s, [f]); n += 1
        ring.pace(s, 10)
    if flush: ring.pump(s, 99)
def split(F, frac, item):
    k = int(len(F) * frac)
    return F[:k] + [item] + F[k:]

def pass0(s, ring, u, ch, bl, nextname, nextneed):
    ev = {}
    for c in range(4):
        def b0(s, c=c):
            if c == 3: s.wait_tag("phi")
            bar(s, ring, f"b0{c}", [f"{u['name']}{c}", f"XL{c}", f"XH{c}"], [f"{u['name']}{c-1}"] if c else [], lg0=True, upto=nextname[0] + str(CFG['UP'][2 * c]))
            if c == 0:
                lab = label()
                s.e(f"s_cmp_ge_u32 {sBID}, 32\ns_cbranch_scc1 {lab}\ns_cmp_lg_u32 {sW}, 0\ns_cbranch_scc1 {lab}\ns_lshl_b32 s3, {sBID}, 2")
                s.raw(f"buffer_store_dword {vOne}, {vFO}, {sDbg}, s3 offen offset:128 sc1")
                s.e(f"{lab}:")
        def bx(s, c=c):
            s.wait_regs([f"v{r}" for r in range(XA + 32 * c, XA + 32 * c + 32)])
            bar(s, ring, f"bx{c}", nextneed if c == 3 else [], [f"XL{c}", f"XH{c}"], upto=(nextname[0] + str(CFG['UP'][2 * c + 1]) if c < 3 else None))
        ev[8 * c] = [b0]; ev[8 * c + 4] = [bx]
    return MSeg(ring, u, ch, ev, {6: [late_loads(bl)], 24: [lambda s: poll_issue(s, sDbg, "0", imm=128)], CFG['TBT']: [lambda s: touchB(s)], CFG['TWT']: [lambda s: touchW(s)]}, xpass=True, dma=1)

def stats_fin(T):
    F = [blk(f"s_lshl_b32 s4, {sRT}, 10\ns_add_u32 s4, s4, {SCR_ST}\nv_lshlrev_b32 {vT}, 3, {vP4}\nv_add_u32 {vT}, s4, {vT}"),
         f"ds_read_b128 {R(T,4)}, {vT}", f"ds_read_b128 {R(T+4,4)}, {vT} offset:16",
         blk(f"s_lshl_b32 s4, {sRT}, 7\ns_add_u32 s4, s4, {SCR_RS}\nv_add_u32 {vT}, s4, {vP4}\nv_cmp_gt_u32 s[94:95], 32, v0")]
    a, b = f"v{T}", f"v{T+1}"
    F += [f"v_add_f32 {a}, {a}, v{T+2}", f"v_add_f32 {b}, {b}, v{T+3}", f"v_add_f32 v{T+4}, v{T+4}, v{T+6}", f"v_add_f32 v{T+5}, v{T+5}, v{T+7}",
          f"v_add_f32 {a}, {a}, v{T+4}", f"v_add_f32 {b}, {b}, v{T+5}", f"v_mul_f32 {a}, 0xbb000000, {a}", f"v_mul_f32 {b}, 0x3b000000, {b}",
          f"v_fma_f32 {b}, -{a}, {a}, {b}", f"v_max_f32 {b}, 0, {b}", f"v_cvt_pk_bf16_f32 {b}, {b}, {b}", f"v_lshlrev_b32 {b}, 16, {b}",
          f"v_add_f32 {b}, 0x3727c5ac, {b}", f"v_cvt_pk_bf16_f32 {b}, {b}, {b}", f"v_lshlrev_b32 {b}, 16, {b}", f"v_sqrt_f32 {b}, {b}",
          f"v_cvt_pk_bf16_f32 {b}, {b}, {a}", f"v_lshlrev_b32 {vRS}, 16, {b}", f"v_rcp_f32 {vRS}, {vRS}",
          f"v_cndmask_b32 v{CF+2}, 0, {b}, s[94:95]", f"v_lshrrev_b32 v{CF+3}, 16, v{CF+2}",
          f"v_mul_f32 {vRSL}, 0x3fb8aa3b, {vRS}", f"v_mul_f32 {vM2}, -2.0, {vRS}", f"ds_write_b32 {vT}, {vRS}"]
    return F
def correct(u, ch, T, bias=None):
    F = [f"v_lshlrev_b32 v{T}, 2, {vP4}", f"v_add_u32 v{T}, {SCR_CS + u['csi']*2048 + ch*1024}, v{T}", f"ds_read_b128 {R(T,4)}, v{T}",
         f"v_add_f32 v{T}, v{T}, v{T+1}", f"v_add_f32 v{T+2}, v{T+2}, v{T+3}", f"v_add_f32 v{T}, v{T}, v{T+2}",
         f"v_cvt_pk_bf16_f32 v{T+1}, v{T}, v{T}", f"v_and_b32 v{CF}, 0xffff0000, v{T+1}", f"v_sub_f32 v{T}, v{T}, v{CF}", f"v_cvt_pk_bf16_f32 v{CF+1}, v{T}, v{T}"]
    if bias is not None: F.append(f"v_or_b32 v{CF}, v{CF}, v{bias}")
    a, b = (R(CF, 4), R(CF + 2, 4)) if u['trans'] else (R(CF + 2, 4), R(CF, 4))
    F.append(f"{MF} {R(u['acc'],16)}, {a}, {b}, {R(u['acc'],16)}")
    return F

def mark(name): return lambda s: s.marks.__setitem__(name, 1)
YA = [192, 208]; SA = [32, 48]
vB0, vB1 = "v5", "v24"
XW = ["v6", "v7", "v8"]; XRD = ["v11", "v12", "v13"]
LB = 128
NR = 8
def breg(t): return XA + 8 * t if t < NR else LB + 8 * (t % 2)
def bnm(ch, c): return f"B{'ab'[ch]}{c}"
def bread(ring, ch, t):
    def f(s):
        nm = bnm(ch, t // 4)
        assert ring.log[nm][1] is not None, f"{nm} read before certified"
        sl = ring.slot[nm]
        if ring.bsl != sl:
            d = ((sl - ring.bsl) * SLOT) & 0xffffffff
            s.e(f"v_add_u32 {vB0}, {d:#x}, {vB0}\nv_add_u32 {vB1}, {d:#x}, {vB1}")
            ring.bsl = sl
        for ct, r in enumerate((vB0, vB1)):
            for k in range(2):
                s.e(f"ds_read_b64_tr_b16 {R(breg(t) + 4*ct + 2*k, 2)}, {r} offset:{(t%4)*2048 + k*1024}")
    return f
def pull(ring, ch, c): return [bread(ring, ch, 4 * c + k) for k in range(4)]
def p2_setup(ring):
    def chk(s):
        assert not any(x[0][0] == 'F' for x in ring.items) and not any(x[0][0][0] == 'F' for x in ring.q)
        ring.bsl = 0
    return [chk, f"v_bfe_u32 {vB0}, v0, 2, 2", f"v_lshrrev_b32 {vB1}, 5, v0", f"v_lshl_add_u32 {vB0}, {vB1}, 2, {vB0}", f"v_lshlrev_b32 {vB0}, 7, {vB0}",
     f"v_bfe_u32 {vB1}, v0, 3, 1", f"v_lshl_add_u32 {vB0}, {vB1}, 6, {vB0}", f"v_bfe_u32 {vB1}, v0, 4, 1", f"v_lshl_add_u32 {vB0}, {vB1}, 5, {vB0}",
     f"v_and_b32 {vB1}, 3, v0", f"v_lshl_add_u32 {vB0}, {vB1}, 3, {vB0}", blk(f"s_and_b32 s3, {sKQ}, 1\ns_lshl_b32 s3, s3, 13\nv_add_u32 {vB0}, s3, {vB0}"), f"v_xor_b32 {vB1}, 64, {vB0}"]

def xwrite(s, acc2, slots, own, ch):
    l1, l2 = label(), label()
    s.e("s_nop 7")
    s.e(f"s_bitcmp1_b32 {sKQ}, 0\ns_cbranch_scc1 {l1}")
    for kq in (2 * ch, 2 * ch + 1):
        if kq & 1: s.raw(f"{l1}:")
        s.raw("s_nop 1")
        for d in range(4):
            src = acc2[d >> 1] + 8 * (d & 1)
            if d == kq: continue
            idx = (kq - d - 1) % 4
            for h in range(2):
                r, off = ldsaddr(XW, slots[idx] * SLOT + d * 4096 + h * 1024)
                s.raw(f"ds_write_b128 {r}, {R(src+4*h,4)} offset:{off}")
        src = acc2[kq >> 1] + 8 * (kq & 1)
        for j in range(8): s.raw(f"v_mov_b32 v{own+j}, v{src+j}")
        if not kq & 1: s.raw(f"s_branch {l2}")
    s.raw(f"{l2}:")
    for _ in range(6): s.lg.append((set(), None))
def xread(slots, own, tmp):
    F = []
    for i in range(3):
        for h in range(2):
            r, off = ldsaddr(XRD, slots[i] * SLOT + h * 1024)
            F.append(f"ds_read_b128 {R(tmp+8*i+4*h,4)}, {r} offset:{off}")
    G = []
    for i in range(3):
        for j in range(8): G.append(f"v_add_f32 v{own+j}, v{own+j}, v{tmp+8*i+j}")
    return F, G
def fin_setup():
    return [blk(f"s_lshl_b32 {sUC}, {sRB}, 16\ns_lshl_b32 s4, {sRT2}, 15\ns_add_u32 {sUC}, {sUC}, s4\ns_lshl_b32 s4, {sCB}, 7\ns_add_u32 {sUC}, {sUC}, s4\ns_lshl_b32 s4, {sKQ}, 5\ns_add_u32 {sUC}, {sUC}, s4"),
            f"v_lshlrev_b32 v20, 8, {vP4}", "v_lshrrev_b32 v21, 5, v0", "v_lshl_add_u32 v20, v21, 4, v20",
            f"buffer_load_dwordx4 v[16:19], v20, {sX}, {sUC} offen",
            blk(f"s_lshl_b32 s4, {sRT2}, 11\nv_add_u32 v6, s4, {vA16}"), "v_add_u32 v7, 0x10000, v6", "v_add_u32 v8, 0x20000, v6",
            blk(f"s_lshl_b32 s4, {sKQ}, 12\nv_add_u32 v11, s4, v6\nv_add_u32 v12, s4, v7\nv_add_u32 v13, s4, v8")]

def aphase(s, ring, ch, F, early, late, toff):
    G = CFG['GT']
    groups = {0: (0xf, ['f1'], 0, 0), 8: (0xf, ['f2'], G[3], 128), 16: (0x5, ['f3'], G[0], 384), 20: (0xf, ['f3'], G[1], 256), 28: (0xf, ['fo'], G[2], 512)}
    pr = lambda c: [bnm(0, c), bnm(1, c)]
    bars = {8: (pr(2) + pr(3), ring.rel8), 12: ([], pr(2)), 16: (pr(4) + pr(5), pr(3)), 20: ([], pr(4)), 24: (pr(6) + pr(7), pr(5)), 30: (pr(8), pr(6))}
    if CFG['FB4']: bars = {8: (pr(2) + pr(3), ring.rel8), 16: (pr(4) + pr(5), pr(2) + pr(3)), 24: (pr(6) + pr(7), pr(4) + pr(5)), 30: (pr(8), pr(6))}
    cert = {n: k for k, v in bars.items() for n in v[0]}
    pool = list(range(224, 256, 4)) + list(early); restricted = set(early)
    late = dict(late)
    for v in late.values(): restricted |= set(v)
    areg = {}; arr = {}
    st = dict(clk=0, pipe=0, nxt=0, polled={0: 0}, checked=set(), tch=set())
    LT, LAT, QD = CFG['LT'], CFG['LAT'], CFG['QD']
    OWNY = 112; OWNS = 120; XT = 64
    def issue_cost():
        st['pipe'] = max(st['pipe'], st['clk']) + (LT if 'v0' not in s.marks else CFG['LT2']); st['clk'] += 16
        return st['pipe'] + LAT
    def try_load(step, must=None):
        for m in list(late):
            if m in s.marks: pool.extend(late.pop(m))
        if must is None and st['pipe'] - st['clk'] > (QD if 'v0' not in s.marks else CFG['QD2']): return False
        t = st['nxt']
        for g in sorted(groups):
            if g >= t and g not in st['polled']:
                prev = [x for x in groups if x < g]
                if all(x in st['checked'] for x in prev) and (st['clk'] >= groups[g][2] + toff - CFG['PLT'] or must == g):
                    poll_issue(s, sWs, sFL2, imm=groups[g][3]); st['polled'][g] = max(st['pipe'], st['clk']) + LAT; st['clk'] += 16
                    return True
                break
        for g in st['polled']:
            if g and g not in st['tch'] and g not in st['checked'] and st['clk'] >= st['polled'][g] and g - t >= CFG['TAD']:
                st['tch'].add(g); n = {8: 8, 16: 4, 20: 8, 28: 8}[g]
                touchA(g, n, groups[g][0], 'v2', 'v3')(s); log.append(f"tch{g}@{step}")
        bneed = cert.get(ring.q[0][0][0], 0) - CFG['BL'] if ring.q else 99
        aok = False
        if t < 36:
            ok = [r for r in pool if not (r in restricted and t > 26)]
            aok = bool(ok)
            if t in groups and t not in st['checked']:
                ready = t in st['polled'] and st['clk'] >= st['polled'][t] and st['clk'] >= groups[t][2] + toff and all(r in s.marks for r in groups[t][1])
                aok = aok and (ready or must == t)
        if aok and (t <= bneed or must is not None):
            if t in groups and t not in st['checked']:
                for r in groups[t][1]:
                    n = until(s, ring, F, r)
                    if n: print("   forced", n, "fillers for", r, "in", s.name)
                poll_check(s, sWs, sFL2, groups[t][0], imm=groups[t][3]); st['checked'].add(t); log.append(f"chk{t}@{step}/{st['clk']}")
            areg[t] = ok[0]; pool.remove(ok[0])
            base, off = (sA2y, ORDER[t] * 1024) if t < 28 else (sA2s, (t - 28) * 1024)
            s.e(f"s_add_u32 {sSoW}, {base}, {off & ~4095}\nbuffer_load_dwordx4 {R(areg[t],4)}, {vA16}, {sWs}, {sSoW} offen offset:{off & 4095} sc1")
            arr[t] = issue_cost(); st['nxt'] += 1; log.append(f"A{t}@{step}")
            return True
        if ring.q and must is None:
            half = ring.log[ring.q[0][0][0]][2] != 'all'
            ring.pump(s, 1); issue_cost()
            if half: st['pipe'] -= CFG['LT2'] // 2
            return True
        return False
    log = []
    V = []
    for t in range(36):
        while True:
            if try_load(t): continue
            if F and isinstance(F[0], tuple) and F[0][0] == 'hold':
                F[0] = ('tilt', t + F[0][1])
            if F and isinstance(F[0], tuple) and F[0][0] == 'tilt' and t >= F[0][1]: F.pop(0)
            if F and not (t in arr and st['clk'] >= arr[t] and not pool and st['nxt'] < 36):
                l = len(F); n0 = s.n_issued
                fill(s, F, 6, force=True)
                st['clk'] += (s.n_issued - n0) * CFG['VC']
                if len(F) < l: continue
            if t not in arr:
                assert try_load(t, must=st['nxt']); continue
            if st['clk'] < arr[t] and (st['nxt'] < 36 or ring.q):
                nclk = min(arr[t], st['clk'] + 32)
                if nclk < arr[t]:
                    st['clk'] = nclk
                    if try_load(t): continue
                    continue
            break
        st['clk'] = max(st['clk'], arr[t])
        if t == 4: until(s, ring, F, 'p1')
        for ct in range(2):
            acc = (YA if t < 28 else SA)[ct]
            cin = "0" if t in (0, 28) else R(acc, 16)
            s.e(f"{MF} {R(acc,16)}, {R(breg(t)+4*ct,4)}, {R(areg[t],4)}, {cin}")
        st['clk'] += 128
        pool.append(areg[t])
        if 2 <= t <= 7: pool += [XA + 8 * t, XA + 8 * t + 4]
        if t + 1 in bars:
            if t + 1 == 8:
                n = until(s, ring, F, 'vbar')
                if n: print("   forced", n, "fillers before a8 in", s.name)
            bar(s, ring, f"a{t+1}", bars[t + 1][0], bars[t + 1][1], lg0=True); log.append(f"|a{t+1}/{st['clk']}")
        if NR <= t + 1 < 36: bread(ring, ch, t + 1)(s)
        if t == 26: assert not F, F
        if t == 27:
            stamp('yend')(s)
            ys = [ring.free.pop(0) for _ in range(3)]
            xwrite(s, YA, ys, OWNY, ch)
            drain(s, ["v_permlane32_swap_b32 v16, v18", "v_permlane32_swap_b32 v17, v19"])
            for j in range(4): drain(s, [f"v_lshlrev_b32 v{XT+24+2*j}, 16, v{16+j}", f"v_and_b32 v{XT+25+2*j}, 0xffff0000, v{16+j}"])
        if t == 29:
            rdl, V = xread(ys, OWNY, XT)
            drain(s, rdl)
            for j in range(8): V.append(f"v_mul_f32 v{XT+j}, 0xbfb8aa3b, v{OWNY+j}")
            for j in range(8): V.append(f"v_exp_f32 v{XT+j}, v{XT+j}")
            for j in range(8): V.append(f"v_add_f32 v{XT+j}, 1.0, v{XT+j}")
            for j in range(8): V.append(f"v_rcp_f32 v{XT+j}, v{XT+j}")
            for j in range(8): V.append(f"v_mul_f32 v{OWNY+j}, v{OWNY+j}, v{XT+j}")
        if 30 <= t < 35:
            drain(s, V[:CFG['TV']]); V = V[CFG['TV']:]
    print("   sched", s.name, " ".join(log), "end", st['clk'])
    stamp('send')(s)
    ss = [ring.free.pop(0) for _ in range(2)] + [9]
    xwrite(s, SA, ss, OWNS, ch)
    drain(s, V)
    s.wait(lg=0); s.e("s_barrier")
    rdl, V = xread(ss, OWNS, XT)
    drain(s, rdl + V)
    for j in range(8): s.e(f"v_fma_f32 v{OWNS+j}, v{OWNS+j}, v{OWNY+j}, v{XT+24+j}")
    for j in range(4): s.e(f"v_cvt_pk_bf16_f32 v{16+j}, v{OWNS+2*j}, v{OWNS+2*j+1}")
    s.e("v_permlane32_swap_b32 v16, v18\nv_permlane32_swap_b32 v17, v19")
    s.e(f"buffer_store_dwordx4 v[16:19], v20, {sOut}, {sUC} offen")
    stamp('st')(s)
    if PROFILE:
        s.raw("s_waitcnt vmcnt(0) lgkmcnt(0)")
        stamp("end")(s)
        s.raw("s_waitcnt lgkmcnt(0)")
        n = len(s.snames)
        for i in (n - 2, n - 1): s.raw(f"v_writelane_b32 v29, s{STAMP0+2*(i%4)}, {i}")
        s.e(f"v_subrev_u32 v29, s96, v29\nv_lshlrev_b32 v16, 2, v0")
        s.raw("s_memrealtime s[84:85]\ns_waitcnt lgkmcnt(0)\nv_writelane_b32 v29, s58, 62\nv_writelane_b32 v29, s84, 63")
        s.e(f"s_lshl_b32 s3, {sBID}, 11\ns_lshl_b32 s4, {sW}, 8\ns_add_u32 s3, s3, s4\ns_add_u32 s3, s3, {PROF_OFF}")
        s.e(f"buffer_store_dword v29, v16, {sWs}, s3 offen")
        if CFG.get('DBG') is not None:
            lab = label()
            s.e(f"s_cmp_lg_u32 {sBID}, {CFG['DBG']}\ns_cbranch_scc1 {lab}\ns_cmp_lg_u32 {sW}, 0\ns_cbranch_scc1 {lab}")
            idx = list(range(n - 1, -1, -3))[:16][::-1]
            for k, i in enumerate(idx):
                s.raw(f"v_readlane_b32 s4, v29, {i}\ns_nop 1\nv_mov_b32 v17, s4\nbuffer_store_dword v17, {vFO}, {sDbg}, 0 offen offset:{4*k}\ns_nop 1")
            s.e(f"{lab}:")
            if s.name in ('A0', 'B0'): print("DBG", s.name, [s.snames[i] for i in idx])
        open(f"snames_{s.name}.txt", "w").write(" ".join(s.snames))
    s.e("s_endpgm")
    s.slots = (dict(ring.slot), ys, ss)
    print("   ring", s.name, " ".join(f"{k}:{v[0]}>{v[1]}" for k, v in ring.log.items()))

SCR_DUM = SCR + 15360
def touchB(s):
    if not CFG['TB']: return
    s.e(f"s_lshl_b32 s4, {sBID}, 3\ns_add_u32 s4, s4, {sW}\ns_mul_i32 s5, s4, 896\ns_lshl_b32 s4, s4, 8\ns_mov_b32 m0, {SCR_DUM}")
    s.e(f"v_min_u32 {vT}, 6, v0\nv_lshlrev_b32 {vT}, 7, {vT}")
    s.e(f"buffer_load_dword {vT}, {sW2}, s5 offen lds")
    s.e(f"v_min_u32 {vT}, 1, v0\nv_lshlrev_b32 {vT}, 7, {vT}")
    s.e(f"buffer_load_dword {vT}, {sWo}, s4 offen lds")
def touchW(s):
    if not CFG['TW']: return
    s.e(f"s_lshl_b32 s4, {sBID}, 3\ns_add_u32 s4, s4, {sW}\ns_mul_i32 s5, s4, 896\ns_mul_i32 s4, s4, 768\ns_mov_b32 m0, {SCR_DUM}")
    s.e(f"v_min_u32 {vT}, 6, v0\nv_lshlrev_b32 {vT}, 7, {vT}")
    s.e(f"buffer_load_dword {vT}, {sW1}, s5 offen lds")
    s.e(f"v_min_u32 {vT}, 5, v0\nv_lshlrev_b32 {vT}, 7, {vT}")
    s.e(f"buffer_load_dword {vT}, {sWq}, s4 offen lds")
def touch2(c, hf=None):
    def f(s):
        if c == 0 and not hf:
            if hf is None: s.e(f"s_lshl_b32 s4, s87, 3")
            else: s.e(f"s_lshr_b32 s4, s87, 4\ns_lshl_b32 s4, s4, 3\ns_and_b32 s5, s87, 7\ns_add_u32 s4, s4, s5\ns_lshl_b32 s4, s4, 3")
            s.e(f"s_add_u32 s4, s4, {sW}\ns_lshr_b32 s5, s4, 6\ns_and_b32 s4, s4, 63\ns_lshl_b32 s4, s4, 10\n"
                f"s_mul_i32 s90, s5, {448*1024}\ns_add_u32 s90, s90, s4\ns_lshl_b32 s91, s5, 17\ns_add_u32 s91, s91, s4")
        s.e(f"s_mov_b32 m0, {SCR_DUM}")
        h = hf or 0
        if c < 7: s.e(f"s_add_u32 {sSoW}, s90, {ORDER[4*c]*16384 + h*896*1024}\nbuffer_load_dwordx4 {vA16}, {sW2}, {sSoW} offen lds")
        else: s.e(f"s_add_u32 {sSoW}, s91, {(c-7)*65536 + h*256*1024}\nbuffer_load_dwordx4 {vA16}, {sWo}, {sSoW} offen lds")
    return f
def touch3(c, ch):
    def f(s):
        wv = CFG['T3W'][c]
        if wv // 4 != ch: return
        lab = label()
        s.e(f"s_cmp_lg_u32 {sW}, {wv}\ns_cbranch_scc1 {lab}")
        mul = 448 * 1024 if c < 7 else 128 * 1024
        off = ORDER[4 * c] * 16384 if c < 7 else (c - 7) * 65536
        s.e(f"s_lshr_b32 s90, s87, 3\ns_mul_i32 s90, s90, {mul}\ns_and_b32 s91, s87, 7\ns_lshl_b32 s91, s91, 13\ns_add_u32 s90, s90, s91\ns_add_u32 s90, s90, {off}\ns_mov_b32 m0, {SCR_DUM}")
        s.e(f"v_lshlrev_b32 v{CSA+3}, 7, v0")
        s.raw(f"buffer_load_dword v{CSA+3}, {sW2 if c < 7 else sWo}, s90 offen lds")
        s.e(f"{lab}:")
    return f
def add_touch(segs, typ):
    if CFG['T2'] == 3:
        for c, at in enumerate(CFG['T2AT']): segs[at // 32].posts.setdefault(at % 32, []).append(touch3(c, segs[0].ch))
    for c, at in enumerate(CFG['T2AT']):
        if CFG['T2'] == 1: segs[at // 32].posts.setdefault(at % 32, []).append(touch2(c))
        if CFG['T2'] == 2 and typ == 'A':
            segs[at // 32].posts.setdefault(at % 32, []).append(touch2(c, 0))
            segs[(at + 2) // 32].posts.setdefault((at + 2) % 32, []).append(touch2(c, 1))

def touchA(t0, n, mask, T, T2, vp=vPoll):
    def f(s):
        if not CFG['TA']: return
        lab = label()
        s.e(f"v_min_u32 {T}, {n-1}, v0")
        if t0 < 28 and n > 4:
            d = ORDER[t0 + 4] - ORDER[t0] - 4
            s.e(f"v_lshrrev_b32 {T2}, 2, {T}\nv_mul_u32_u24 {T2}, {d}, {T2}\nv_add_u32 {T}, {T}, {T2}")
        off = ORDER[t0] * 1024 if t0 < 28 else 0
        s.e(f"v_lshlrev_b32 {T}, 10, {T}\ns_lshl_b32 {sSoW}, {sCB}, 7\ns_add_u32 {sSoW}, {sSoW}, {sA2y if t0 < 28 else sA2s}\ns_add_u32 {sSoW}, {sSoW}, {off}\ns_mov_b32 m0, {SCR_DUM}")
        s.e(f"v_cmp_ne_u32 vcc, 0, {vp}\ns_andn2_b32 {sT0}, {mask:#x}, vcc_lo\ns_cbranch_scc1 {lab}")
        s.raw(f"buffer_load_dword {T}, {sWs}, {sSoW} offen sc1 lds")
        s.e(f"{lab}:")
    return f

def ilv(st, co):
    out = st[:3] + co[:3] + [st[3]]
    a, b = st[4:], co[3:-1]
    while a or b:
        if a: out.append(a.pop(0))
        if a and len(a) > 2 * len(b): out.append(a.pop(0))
        if b: out.append(b.pop(0))
    return out + co[-1:]
def p0_items(a, b):
    it = []
    for c in range(4): it += x_items(c) + [a[c]]
    return it + b
def packin(acc): return [f"v_cvt_pk_bf16_f32 v{acc+j}, v{acc+2*j}, v{acc+2*j+1}" for j in range(8)]
def N(n, lo, hi): return [f"{n}{c}" for c in range(lo, hi)]
initchk = lambda s: poll_check(s, sDbg, "0", 0xffffffff, imm=128)
pollA = lambda s: poll_issue(s, sWs, sFL2)

def stream_A(s0, ch):
    CB, DB = CFG['CB'], CFG['DB']
    s = s0.fork(f"A{ch}"); s.e(f"L_typeA{ch}:")
    bl = unit_bases(s, 'A')
    items = p0_items(w_items("K", sWq, vDq, sUA, 3072), w_items("V", sWq, vDq, sUB, 3072)) + w_items("H", sW1, vD1, sUC, 3584) + b_items(0)
    ring = Ring(items, range(9), ch); ring.hold = ('XL3', 'XH3'); ring.upto0 = "V3"
    start(s, ring, bl)
    s.e(f"s_lshl_b32 {sSCRW}, {sW}, 12\ns_add_u32 {sSCRW}, {sSCRW}, {2*SLOT}")
    s.marks.update(f1=1, f2=1, fo=1)
    uK = dict(name="K", acc=ACC_A, trans=True, kind='w', csi=0)
    uV = dict(name="V", acc=ACC_B, trans=False, kind='w', csi=1)
    uH = dict(name="H", acc=ACC_C, trans=True, kind='w', csi=0)
    F = [('wait', 'c1')] + ilv(stats_fin(PT), correct(uK, ch, PT + 8))
    F += ["v_lshrrev_b32 v26, 5, v0", "v_lshlrev_b32 v26, 1, v26", "v_bfe_u32 v25, v0, 1, 2", "v_xor_b32 v26, v25, v26", f"v_lshlrev_b32 v25, 4, {vP4}", "v_lshl_add_u32 v25, v26, 4, v25",
          f"v_add_u32 v25, {sSCRW}, v25", "v_xor_b32 v24, 16, v25", initchk]
    F += packin(ACC_A)
    F += [f"{MF} {R(PT,16)}, {R(PHI,4)}, {R(ACC_A,4)}, 0", f"{MF} {R(ACC_C,16)}, {R(PHI+4,4)}, {R(ACC_A+4,4)}, 0", ('gap', 12)]
    for h, P in enumerate((PT, ACC_C)):
        if h == 1 and CFG['PKA']:
            sm = softmax_pk(P, ACC_A + 8, "v26", vT, PHI); F += sm[:9] + [('wait', 'c2')] + sm[9:]
        else: F += softmax(P, ACC_A + 8, "v26", vT)
        F += [f"ds_write_b128 v25, {R(ACC_A+8,4)} offset:{2048*h}", f"ds_write_b128 v24, {R(ACC_A+12,4)} offset:{2048*h}"]
    F += [('wait', 'c2')]
    F += ["v_lshrrev_b32 v26, 5, v0", "v_lshlrev_b32 v26, 4, v26", blk(f"s_lshl_b32 s4, {sRT}, 7\ns_add_u32 s4, s4, {SCR_RS}\nv_add_u32 {vT}, s4, v26")]
    for q in range(4): F.append(f"ds_read_b128 {R(PT+4*q,4)}, {vT} offset:{32*q}")
    F += ["v_bfe_u32 v25, v0, 2, 2", "v_lshlrev_b32 v25, 6, v25", "v_lshl_add_u32 v25, v26, 4, v25", f"v_bfe_u32 {vT}, v0, 4, 1", f"v_cmp_eq_u32 s[94:95], 1, {vT}",
          "v_lshrrev_b32 v24, 5, v0", f"v_xor_b32 {vT}, v24, {vT}", f"v_lshl_add_u32 v25, {vT}, 5, v25",
          "v_lshrrev_b32 v24, 2, v0", "v_xor_b32 v24, v24, v0", "v_bfe_u32 v24, v24, 1, 1", "v_lshl_add_u32 v25, v24, 4, v25",
          f"v_and_b32 {vT}, 1, v0", f"v_lshl_add_u32 v25, {vT}, 3, v25", f"v_add_u32 v25, {sSCRW}, v25", f"v_mov_b32 {vT}, {sC11}"]
    for t in range(2):
        for rd in range(2): F.append(f"ds_read_b64_tr_b16 {R(PHI+4*t+2*rd,2)}, v25 offset:{2048 + t*1024 + rd*512}")
    F += [pk2("mul", ACC_B + r, ACC_B + r, PT + r) for r in range(0, 16, 2)] if CFG['PKA'] else [f"v_mul_f32 v{ACC_B+r}, v{ACC_B+r}, v{PT+r}" for r in range(16)]
    F += packin(ACC_B)
    for t in range(2):
        for rd in range(2): F.append(f"ds_read_b64_tr_b16 {R(ACC_B+8+4*t+2*rd,2)}, v25 offset:{t*1024 + rd*512}")
    for j in range(8): F.append(f"v_cndmask_b32 v{ACC_A+8+j}, {vT}, v{ACC_B+j}, s[94:95]")
    for j in range(8): F.append(f"v_cndmask_b32 v{ACC_A+j}, v{ACC_B+j}, {vT}, s[94:95]")
    F += [f"{MF} {R(PT,16)}, {R(ACC_A,4)}, {R(ACC_B+8,4)}, 0", f"{MF} {R(PT,16)}, {R(ACC_A+4,4)}, {R(ACC_B+12,4)}, {R(PT,16)}",
          f"{MF} {R(ACC_B,16)}, {R(ACC_A+8,4)}, {R(PHI,4)}, 0", f"{MF} {R(ACC_B,16)}, {R(ACC_A+12,4)}, {R(PHI+4,4)}, {R(ACC_B,16)}"]
    F += [f"v_add_u32 v25, {sSCRW}, {vA16}", blk(f"s_lshl_b32 s4, {sW}, 9\ns_add_u32 s4, s4, {SCR_Z}\nv_lshlrev_b32 v26, 2, v0\nv_add_u32 v26, s4, v26")]
    F += [f"ds_write_b128 v25, {R(PT,4)}", f"ds_write_b128 v25, {R(PT+4,4)} offset:1024", f"ds_write_b32 v26, v{PT+8}",
          f"ds_write_b128 v25, {R(ACC_B+8,4)} offset:2048", f"ds_write_b128 v25, {R(ACC_B+12,4)} offset:3072", f"ds_write_b32 v26, v{ACC_B} offset:256"]
    F += [blk(f"s_lshl_b32 s4, {sRT}, 10\ns_add_u32 s4, s4, {2*SLOT + ch*SLOT}\nv_add_u32 v25, s4, {vA16}"),
          blk(f"s_lshr_b32 s4, {sRT}, 1\ns_lshl_b32 s4, s4, 8\ns_add_u32 s4, s4, {SCR_Z + ch*2048}\nv_add_u32 v26, s4, {vP4}"), mark('kvw')]
    ER = [f"ds_read_b128 {R(PT+4*r,4)}, v25 offset:{r*4096}" for r in range(4)] + [f"ds_read_b32 v{ACC_A+r}, v26 offset:{r*512}" for r in range(4)]
    ER += ["v_lshrrev_b32 v25, 5, v0", f"v_lshl_add_u32 v25, v25, 9, {vP4}", blk(f"s_lshl_b32 s5, {sRT2}, 10\nv_add_u32 v25, s5, v25"),
           f"v_lshrrev_b32 {vT}, 4, v0", f"v_cmp_eq_u32 s[94:95], {sRT2}, {vT}", f"v_mov_b32 {vT}, {BIG}",
           blk(f"s_and_b32 s5, {sG}, 1\ns_mul_i32 s5, s5, {10*1024}\ns_add_u32 s5, s5, {ch*2048}\ns_add_u32 {sUD}, {sKS}, s5\ns_lshl_b32 s4, {sI}, 7\ns_add_u32 {sKVF}, {sKVF}, s4"),
           f"v_cndmask_b32 v26, {vT}, {vP4}, s[94:95]"]
    for j in range(4): ER += [f"v_add_f32 v{PT+j}, v{PT+j}, v{PT+4+j}", f"v_add_f32 v{PT+8+j}, v{PT+8+j}, v{PT+12+j}"]
    for j in range(4): ER.append(f"v_add_f32 v{PT+j}, v{PT+j}, v{PT+8+j}")
    ER += [f"v_add_f32 v{ACC_A}, v{ACC_A}, v{ACC_A+1}", f"v_add_f32 v{ACC_A+2}, v{ACC_A+2}, v{ACC_A+3}", f"v_add_f32 v{ACC_A}, v{ACC_A}, v{ACC_A+2}"]
    for j in range(4): ER.append((f"buffer_atomic_add_f32 v{PT+j}, v25, {sWs}, {sKVs} offen offset:{j*128}", "kv"))
    ER += [(f"buffer_atomic_add_f32 v{ACC_A}, v26, {sWs}, {sKVs} offen offset:2048", "kv"), stamp('kvat')]
    EH = correct(uH, ch, PHI, BI0) + fin_setup() + (mish_pk if CFG['PK'] else mish)(ACC_C, PT + 8, sUD, "actA")
    fkv = flag_store("kv", sKVF, 0, 'fkv'); f3 = flag_store("actA", sFL, 2 * 128, 'f3')
    pr = lambda c: [bnm(0, c), bnm(1, c)]
    m0 = pass0(s, ring, uK, ch, bl, "V3", ["V0"])
    mV = MSeg(ring, uV, ch, {CB: [B(ring, "c1", ["V1", "V2"], ["K3"])], DB: [B(ring, "d1", ["V3", "H0"], N("V", 0, 2))]}, dma=CFG['ST'])
    mH = MSeg(ring, uH, ch, {DB: [B(ring, "h2", ["H3"] + pr(0), N("H", 0, 2), extra=[2, 3])]},
              {18: [lambda s: drain(s, p2_setup(ring))], 22: pull(ring, ch, 0)[:2], 24: pull(ring, ch, 0)[2:], 27: [pollA], CFG['KVW']: [fkv]}, dma=CFG['ST'])
    m0.posts.setdefault(29, []).append(lambda s: drain(s, phi_frags()))
    add_touch([m0, mV, mH], 'A')
    m0.run(s, mV); mV.run(s, None, F, CFG['KB'] + CFG['KD'] * (1 - 2 * ch))
    bar(s, ring, "c2", [], N("V", 2, 4), lg0=True)
    print("   A V-only block:", len(F))
    VB_ = correct(uV, ch, WB) + F + [mH.pre]
    if CFG.get('VST'):
        for k in range(len(VB_) // 12 * 12, 0, -12): VB_.insert(k, stamp(f"v{k}"))
    vseg(s, ring, VB_, flush=False)
    bar(s, ring, "d2", ["H1", "H2"])
    F = list(ER)
    mH.run(s, None, F, CFG['VB'])
    assert not F
    bar(s, ring, "e1", pr(1), N("H", 2, 4) + pr(0), lg0=True)
    drain(s, pull(ring, ch, 1))
    ring.rel8 = pr(1)
    s.marks.update(vbar=1, p1=1)
    F = EH + [mark('v1'), mark('v0'), ('hold', CFG['F3G']), f3]
    aphase(s, ring, ch, F, list(range(36, 64, 4)) + list(range(80, 96, 4)) + [100, 120, 124], {'v1': [104, 108, 112, 116]}, CFG['TOFF'])
    return s

def stream_B(s0, ch):
    CB, DB = CFG['CB'], CFG['DB']
    s = s0.fork(f"B{ch}"); s.e(f"L_typeB{ch}:")
    bl = unit_bases(s, 'B')
    H5 = [(f"F{c}", sW1, vD5, sUD, 0, 16 * 3584, 0, 128 * 3584, lambda hf, c=c: 2 * c + hf) for c in range(2)]
    items = p0_items(w_items("U", sW1, vD1, sUA, 3584), w_items("Y", sW1, vD1, sUB, 3584)) + H5 + w_items("Q", sWq, vDq, sUC, 3072) + b_items(1)
    ring = Ring(items, range(9), ch); ring.upto0 = "Y3"
    start(s, ring, bl)
    s.e(f"s_and_b32 s5, {sG}, 1\ns_cmp_eq_u32 s5, 0\ns_cselect_b32 s5, 4, 2\ns_cselect_b32 s4, {12*1024}, 0\ns_lshl_b32 s5, s5, 10\n"
        f"s_add_u32 {sSCRW}, {sKS}, s4\ns_add_u32 s5, s5, {ch*2048}\ns_add_u32 {sKS}, {sKS}, s5")
    uU = dict(name="U", acc=ACC_A, trans=True, kind='w', csi=0)
    uY = dict(name="Y", acc=ACC_B, trans=True, kind='w', csi=1)
    uF = dict(name="F", acc=ACC_C, trans=True, kind='h5', csi=0)
    uQ = dict(name="Q", acc=ACC_A, trans=True, kind='w', csi=1)
    EU = ilv(stats_fin(PT), correct(uU, ch, PT + 8, BI0)) + [initchk, ('gap', 10)] + mish(ACC_A, PT, sKS, "act1") + [f"s_add_u32 {sKS}, {sKS}, 4096"]
    EY = correct(uY, ch, PT + 8, BI1) + [mark('b1dead'), ('gap', 16)] + mish(ACC_B, PT, sKS, "act2")
    EF = correct(uF, ch, PT + 8, BI2) + [('gap', 16)] + mish(ACC_C, PT, sSCRW, "act5")
    EQ = correct(uQ, ch, PT + 12) + phi_frags() + pack16(ACC_A, PK)
    EQ += [f"{MF} {R(PT,16)}, {R(PHI,4)}, {R(PK,4)}, 0", f"{MF} {R(ACC_B,16)}, {R(PHI+4,4)}, {R(PK+4,4)}, 0"] + fin_setup()
    if CFG['PK']: EQ += softmax_pk(PT, ACC_A, "v26", vT, PHI) + softmax_pk(ACC_B, ACC_A + 8, "v26", vT, PHI)
    else: EQ += softmax(PT, ACC_A, "v26", vT) + softmax(ACC_B, ACC_A + 8, "v26", vT)
    f1 = flag_store("act1", sFL, 0, 'f1'); f2 = flag_store("act2", sFL, 128, 'f2'); f3 = flag_store("act5", sFL, 3 * 128, 'f3')
    pr = lambda c: [bnm(0, c), bnm(1, c)]
    FG = ('gap', CFG['FG'])
    F = [('wait', 'c1')] + EU + [mark('m1'), ('wait', 'c2')] + split(EY, 0.6, f1) + [mark('m2')]
    if ch == 0: F += [('wait', 'c3')] + split(EF, 0.6, f2) + [mark('m3')]
    else: F += [FG, f2, mark('m3'), mark('f3')]
    m0 = pass0(s, ring, uU, ch, bl, "Y3", ["Y0"])
    mY = MSeg(ring, uY, ch, {CB: [B(ring, "c1", ["Y1", "Y2"], ["U3"])], DB: [B(ring, "d1", ["Y3", "F0"], N("Y", 0, 2))]}, dma=CFG['ST'])
    c2 = B(ring, "c2", ["F1", "Q0"], N("Y", 2, 4), owner=1)
    mQ = MSeg(ring, uQ, ch, {CB: [B(ring, "c3", ["Q1", "Q2"], ["F0", "F1"])], DB: [B(ring, "d3", ["Q3"] + pr(0), N("Q", 0, 2))]},
              {15: [lambda s: (until(s, ring, F, 'b1dead'), drain(s, p2_setup(ring)))], 22: pull(ring, ch, 0)[:2], 24: pull(ring, ch, 0)[2:], CFG['TAP']: [pollA], CFG['TAT']: [touchA(0, 8, 0xf, 'v160', 'v161')], 27: [pollA]}, dma=CFG['ST'])
    add_touch([m0, mY, mQ], 'B')
    m0.run(s, mY)
    if ch == 0:
        mF = MSeg(ring, uF, ch, {CB: [c2]}, dma=CFG['ST'] // 2)
        mY.run(s, mF, F, CFG['P1B'] + CFG['PD']); mF.run(s, mQ, F, CFG['FB'])
    else:
        mY.run(s, None, F, CFG['P1B'] - CFG['PD']); c2(s); vrun(s, ring, F, CFG['IB']); mQ.pre(s)
    print("   B forced m1:", until(s, ring, F, 'm1'))
    mQ.run(s, None, F, CFG['QB'][ch])
    KS, OD, OD2, OF, OP = WB, PT, ACC_B, PHI, PK
    def kvfetch(s):
        poll_check(s, sWs, sKVF, 0xffff, vPoll2, vo="v21")
        s.e(f"s_lshl_b32 s5, {sRT2}, 10\ns_add_u32 s5, s5, {sKVs}")
        s.e(f"buffer_load_dwordx4 {R(KS,4)}, {vA16}, {sWs}, s5 offen sc1")
        s.e(f"v_and_b32 v21, 3, v0\nv_lshlrev_b32 v21, 4, v21\ns_lshl_b32 s5, {sRT2}, 6\ns_add_u32 s5, s5, {sKVs}")
        s.e(f"buffer_load_dwordx4 {R(KS+4,4)}, v21, {sWs}, s5 offen offset:2048 sc1")
    IM = [f"v_cvt_pk_bf16_f32 v{KS}, v{KS}, v{KS+1}", f"v_cvt_pk_bf16_f32 v{KS+1}, v{KS+2}, v{KS+3}",
          f"v_cvt_pk_bf16_f32 v{KS+4}, v{KS+4}, v{KS+5}", f"v_cvt_pk_bf16_f32 v{KS+5}, v{KS+6}, v{KS+7}",
          blk(f"s_mul_i32 s5, {sKQ}, 1088\ns_add_u32 s5, s5, {SCR_KV}\ns_lshl_b32 s4, {sRT2}, 9\ns_add_u32 s4, s4, s5\nv_lshlrev_b32 v25, 3, v0\nv_add_u32 v25, s4, v25\n"
              f"ds_write_b64 v25, {R(KS,2)}\ns_lshl_b32 s4, {sRT2}, 5\ns_add_u32 s4, s4, s5\nv_lshrrev_b32 v21, 1, v21\nv_add_u32 v21, s4, v21\nds_write_b64 v21, {R(KS+4,2)} offset:1024"),
          f"v_min_u32 v25, 64, {vP4}", "v_lshlrev_b32 v25, 4, v25", "v_lshrrev_b32 v26, 5, v0", "v_lshl_add_u32 v25, v26, 5, v25",
          blk(f"v_add_u32 v25, {SCR_KV + ch*2176}, v25\ns_lshl_b32 s5, {sG}, 12\ns_add_u32 s5, s5, {sAF}\ns_add_u32 {sSCRW}, s5, {112*1024 + ch*2048}")]
    O = [f"ds_read_b128 {R(OF,4)}, v25", f"ds_read_b128 {R(OF+4,4)}, v25 offset:16", f"ds_read_b128 {R(OP,4)}, v25 offset:1088", f"ds_read_b128 {R(OP+4,4)}, v25 offset:1104"]
    O += [f"{MF} {R(OD,16)}, {R(OF,4)}, {R(ACC_A,4)}, 0", f"{MF} {R(OD,16)}, {R(OF+4,4)}, {R(ACC_A+4,4)}, {R(OD,16)}",
          f"{MF} {R(OD2,16)}, {R(OP,4)}, {R(ACC_A+8,4)}, 0", f"{MF} {R(OD2,16)}, {R(OP+4,4)}, {R(ACC_A+12,4)}, {R(OD2,16)}"]
    for h, D in enumerate((OD, OD2)):
        O += [f"v_add_f32 v26, 0x358637bd, v{D+8}", "v_rcp_f32 v26, v26"]
        for j in range(8): O.append(f"v_mul_f32 v{D+j}, v{D+j}, v26")
        for j in range(4): O.append(f"v_cvt_pk_bf16_f32 v{ACC_A+4*h+j}, v{D+2*j}, v{D+2*j+1}")
        O.append((f"buffer_store_dwordx4 {R(ACC_A+4*h,4)}, {vA16}, {sWs}, {sSCRW} offen offset:{h*1024} sc1", "o"))
    O.append(stamp('ost'))
    bar(s, ring, "e1", pr(1), N("Q", 2, 4) + pr(0), lg0=True)
    drain(s, pull(ring, ch, 1)); s.marks['p1'] = 1
    ring.rel8 = []
    def ins(L, back, item): return L[:len(L) - back] + [item] + L[len(L) - back:]
    F2 = F + EQ
    if ch == 0: F2 = ins(F2, 110, f3)
    kp = lambda s: (s.e("v_min_u32 v21, 15, v0\nv_lshlrev_b32 v21, 7, v21"), poll_issue(s, sWs, sKVF, vPoll2, vo="v21"))
    K1, K2, K3 = CFG['KS']
    if CFG['KM'] == 0:
        F2 = ins(ins(F2, CFG['KP'], kp), CFG['KF'], kvfetch)
        F2 += IM + [B(ring, "e2", [], pr(1), lg0=True), mark('vbar')] + O + [mark('v1'), mark('v0'), ('hold', CFG['OW']), flag_store("o", sFL, 4 * 128, 'fo')]
    else: F2 += [mark('v0'), mark('vbar'), ('tilt', K1), kp, ('tilt', K2), kvfetch, ('tilt', K3)] + IM + [('nextbar',)] + O + [mark('v1'), ('hold', CFG['OW']), flag_store("o", sFL, 4 * 128, 'fo')]
    ring.rel8 = pr(1) if CFG['KM'] else []
    aphase(s, ring, ch, F2, [88, 92], {'f3': [64, 68, 72, 76], 'v1': [80, 84] + list(range(40, 64, 4)) + list(range(96, 128, 4))}, 0)
    return s

def build(path, listform=True):
    s0 = Stream("P")
    if PROFILE: s0.e("s_memtime s[96:97]\ns_memrealtime s[58:59]")
    prologue(s0)
    s0.e(f"s_lshl_b32 s5, {sTY}, 1\ns_add_u32 s5, s5, {sCH}\ns_cmp_eq_u32 s5, 0\ns_cbranch_scc1 L_typeA0\ns_cmp_eq_u32 s5, 1\ns_cbranch_scc1 L_typeA1\ns_cmp_eq_u32 s5, 3\ns_cbranch_scc1 L_typeB1")
    B0 = stream_B(s0, 0); B1 = stream_B(s0, 1); A0 = stream_A(s0, 0); A1 = stream_A(s0, 1)
    assert B0.nbar == B1.nbar and A0.nbar == A1.nbar
    assert B0.slots == B1.slots and A0.slots == A1.slots
    hdr = open("recurrent_scan__linear_kernel_hedgehog__dense_activation_mish__prompt.s.ref").read().split("; Override")[0]
    T = [hdr.rstrip(), f"; @launch {'kernel=' + KNAME + ' ' if listform else ''}grid=(256,1,1) block=(512,1,1) lds=163840",
         '.amdgcn_target "amdgcn-amd-amdhsa--gfx950"', ".text", f".globl {KNAME}", ".p2align 8", f".type {KNAME},@function", f"{KNAME}:"]
    S = [s0, B0, B1, A0, A1]
    for st in S:
        T.append(f"; ---- stream {st.name}  nops={st.stats['nop']} waits={st.stats['wait']} barriers={st.nbar}")
        T.append(st.text())
    for st in S: T += st.ool
    T.append("L_end:\n  s_endpgm")
    T.append(".fill 6144, 4, 0xbf800000")
    T.append(f'''.section .rodata,"a"
.p2align 6
.amdhsa_kernel {KNAME}
  .amdhsa_next_free_vgpr 256
  .amdhsa_next_free_sgpr 102
  .amdhsa_accum_offset 256
  .amdhsa_group_segment_fixed_size 0
  .amdhsa_kernarg_size 88
  .amdhsa_user_sgpr_count 2
  .amdhsa_user_sgpr_kernarg_segment_ptr 1
  .amdhsa_system_sgpr_workgroup_id_x 1
.end_amdhsa_kernel''')
    open(path, "w").write("\n".join(T) + "\n")
    for st in S: print(st.name, "instrs", len(st.out), st.stats, "barriers", st.nbar)

if __name__ == "__main__":
    for a in sys.argv[2:]:
        if a == "prof": PROFILE = True
        elif '=' in a:
            k, v = a.split('='); CFG[k] = eval(v)
    build(sys.argv[1], listform=("final" not in sys.argv))
```

```python
import sys
sys.path.insert(0, 'gen')
from ab import *

KNAME = "recurrent_scan__linear_kernel_hedgehog__dense_activation_mish__prompt_kernel"
PROFILE = False
SLOT = 16384
SCR = 9 * SLOT
SCR_PHI = SCR
SCR_RS = SCR + 2048
SCR_ST = SCR + 2560
SCR_CS = SCR + 6656
SCR_Z = SCR + 10752
SCR_KV = SCR + 10752
Z_OFF = 0x900000
KV_OFF = Z_OFF
KVFLAG_OFF = Z_OFF + 0x40000
ACTFLAG_OFF = Z_OFF + 0x16000
PROF_OFF = 0xA00000
BIG = 0x40000000
CFG = dict(AD=16, A0=8, AN=2, BN=1, G8=1, F3G=4, PB=[(200, 40), (80, 55), (80, 40)], SLP=8, T3W=[0, 1, 2, 3, 0, 1, 2, 3, 0], OWN='', KD=0, PD=0, UP=[0, 0, 0, 0, 1, 2, 2], PAR=2, FB4=0, PKA=1, PK=0, KM=0, KVW=16, KS=(0, 5, 10), KVP=12, TAP=8, TAT=20, TAD=2, CB=6, DB=22, TW=1, TWT=2, GT=[2000, 4000, 5500, 500], TOFF=-1000, LT=200, LT2=200, QD2=800, LAT=900, QD=800, PLT=1500, BL=6, VC=9, T2=0, T2AT=[30, 35, 40, 45, 50, 55, 60, 66, 72], PF=4, PL=4, S0=6, S1=6, PRIO=0, VD=10, KP=160, KF=110, OW=4, G16=8, G28=20, TV=12, TB=1, TBT=28, TA=0, TO=11, T0=0, T1=0, ROT=2, RATE=38, BURST=24576, ST=90,
    CRED=6, AGE=14, P1B=5, FB=5, QB=[10, 3], IB=200, KB=6, VB=8, KVG=60, EH0=60, FG=60, E1=[120, 100], E2=[100, 80])

sX, sWq, sW1, sW2, sWo, sPhi, sB1, sOut, sDbg, sWs = [f"s[{8+4*i}:{11+4*i}]" for i in range(10)]
sW, sRT, sCH, sI, sG, sTY, sRB, sCB, sKQ, sRT2 = [f"s{48+i}" for i in range(10)]
sT0 = "s3"
sC10, sC01, sC11 = "s58", "s59", "s60"
sM0W = "s61"; sSoW = "s62"
sUA, sUB, sUC, sUD = "s63", "s6", "s7", "s2"
sAF, sFL, sAF2, sFL2, sB2, sBo, sKVs, sKVF, sSCRW, sCNT, sKS, sBID = [f"s{64+i}" for i in range(12)]
sA2y, sA2s, sOo = "s0", "s1", "s5"
STAMP0 = 76

vA16 = "v1"; vDq = "v2"; vD1 = "v3"; vDB = "v4"; vD5 = "v5"
VW = 6
vRS, vRSL, vM2 = "v14", "v15", "v22"
CF = 16
BI0, BI1, BI2 = 23, 24, 25
vPoll = "v27"; vFO = "v28"; vOne = "v10"; vP4 = "v30"; vT = "v31"; vPoll2 = "v9"
ACC_A, ACC_B, ACC_C = 32, 48, 64
WB = 80; PT = 96; PHI = 112; PK = 120; XA = 128
XR = 64; XD = 72; HR = 112; STA = 96; CSB = 116; ASEL = 120; CSA = 124
sXb = "s86"; sRot = "s89"; ROT0 = 98

def R(b, n): return f"v[{b}:{b+n-1}]"
def ldsaddr(regs, byte): return regs[byte >> 16], byte & 0xffff
_nl = [0]
def label():
    _nl[0] += 1; return f"L{_nl[0]}"
def stamp(name):
    def f(s):
        if not PROFILE: return
        if not hasattr(s, 'snames'): s.snames = []
        idx = len(s.snames)
        if idx >= 61: return
        s.snames.append(str(name))
        s.e(f"s_memtime s[{STAMP0+2*(idx%4)}:{STAMP0+1+2*(idx%4)}]")
        if idx >= 2: s.raw(f"v_writelane_b32 v29, s{STAMP0+2*((idx-2)%4)}, {idx-2}")
    return f
def srd(s, dst, lo, hi, size):
    b = int(dst[2:dst.index(':')])
    s.e(f"s_mov_b32 s{b}, {lo}\ns_and_b32 s{b+1}, {hi}, 0xffff\ns_mov_b32 s{b+2}, {size}\ns_mov_b32 s{b+3}, 0x20000")
def poll_issue(s, srd_, soff, vp=vPoll, imm=0, vo=vP4):
    s.e(f"buffer_load_dword {vp}, {vo}, {srd_}, {soff} offen offset:{imm} sc1")
def poll_check(s, srd_, soff, mask, vp=vPoll, imm=0, vo=vP4):
    l1, l2, l3 = label(), label(), label()
    stamp(f"[p{imm//128}_{mask:x}")(s)
    s.e(f"v_cmp_ne_u32 vcc, 0, {vp}\ns_andn2_b32 {sT0}, {mask:#x}, vcc_lo\ns_cbranch_scc1 {l1}\n{l2}:")
    stamp(f"p]")(s)
    s.ool.append(f"""{l1}:
  s_mov_b32 {sCNT}, 0x10000
{l3}:
  s_sleep {CFG['SLP']}
  buffer_load_dword {vp}, {vo}, {srd_}, {soff} offen offset:{imm} sc1
  s_waitcnt vmcnt(0)
  v_cmp_ne_u32 vcc, 0, {vp}
  s_nop 1
  s_andn2_b32 {sT0}, {mask:#x}, vcc_lo
  s_cbranch_scc0 {l2}
  s_sub_u32 {sCNT}, {sCNT}, 1
  s_cmp_lg_u32 {sCNT}, 0
  s_cbranch_scc1 {l3}
  s_branch {l2}""")
def flag_store(tagwait, soff, imm, mark):
    def f(s):
        stamp("(" + mark)(s)
        s.wait_tag(tagwait)
        stamp(mark + ")")(s)
        s.e(f"buffer_store_dword {vOne}, {vFO}, {sWs}, {soff} offen offset:{imm} sc1")
        s.marks[mark] = 1
    return f
def blk(text): return lambda s: s.e(text)

class Ring:
    hold = ()
    def __init__(self, items, free, ch):
        self.items = list(items); self.free = list(free); self.slot = {}; self.q = []; self.log = {}; self.ch = ch
        self.order = {it[0]: k for k, it in enumerate(items)}; self.xres = True
    def release(self, name):
        if name not in self.hold: self.free.append(self.slot[name])
    def assign(self, s, owner='all', upto=None, maxn=99):
        k = 0
        while k < len(self.items) and maxn > 0:
            it = self.items[k]; nm = it[0]
            if upto is not None and self.order[nm] > self.order[upto]: break
            if nm[0] == 'X':
                want = 2 * (int(nm[2]) & 1) + (nm[1] == 'H')
                ok = [x for x in self.free if x == want]
                if not ok: k += 1; continue
            elif nm[0] in 'BF': ok = [x for x in self.free if not (self.xres and x < 4)]
            else: ok = [x for x in self.free if x != 0 and not (self.xres and x < 4)]
            if not ok:
                if nm[0] != 'B': k += 1; continue
                break
            if nm[0] in 'BF' and 0 in ok: ok = [0]
            self.items.pop(k); sl = ok[0]; self.free.remove(sl); self.slot[nm] = sl; maxn -= 1
            self.log[nm] = [s.nbar, None, owner]
            if owner == 'all': self.q += [(it, sl, h, 0) for h in range(2)]
            elif owner == self.ch: self.q += [(it, sl, h, o) for o in range(2) for h in range(2)]
            if nm == 'XH3': self.xres = False
        self.q.sort(key=lambda e: self.order[e[0][0]])
    def pump(self, s, n=1):
        while n > 0 and self.q:
            it, sl, h, other = self.q.pop(0)
            name, srd_, voff, sbase, o0, o1, dl = it[:7]
            sg = (1 if self.ch == 0 else -1) * other
            vo = voff[h] if isinstance(voff, tuple) else voff
            s.e(f"s_add_u32 m0, {sM0W}, {(sl*SLOT + h*1024 + sg*8192) & 0xffffffff:#x}")
            if len(it) > 7:
                mul, cidx = it[7], it[8](self.ch if not other else 1 - self.ch)
                key = (sbase, mul, cidx)
                if self.rkey != key:
                    s.e(f"s_mul_i32 {sRot}, s{ROT0+cidx}, {mul}\ns_add_u32 {sRot}, {sRot}, {sbase}")
                    self.rkey = key
                sbase = sRot
            s.e(f"s_add_u32 {sSoW}, {sbase}, {((o0, o1)[h] + sg*dl) & 0xffffffff:#x}")
            s.e(f"buffer_load_dwordx4 {vo}, {srd_}, {sSoW} offen lds", tag=name)
            n -= 1
    rkey = None
    cred = 0
    def pace(self, s, cycles, mx=99):
        self.cred = min(self.cred + cycles * CFG['RATE'], CFG['BURST'])
        while self.q and mx > 0:
            mx -= 1
            e = self.q[0]
            cost = (8192 if self.log[e[0][0]][2] == 'all' else 4096) * (2 if e[0][0][0] == 'F' else 1)
            if self.cred < cost: break
            self.cred -= cost; self.pump(s, 1)
    def need(self, s, name):
        assert name in self.slot, f"{name} has no slot yet"
        while any(e[0][0] == name for e in self.q):
            print("  warning: forced DMA issue for", name, "in", s.name)
            self.pump(s)
        if self.log[name][1] is None: self.log[name][1] = s.nbar
        s.wait_tag(name)
def x_items(q):
    return [(f"XL{q}", sX, (f"v{XD}", f"v{XD+1}"), sXb, 0, 0, 32768, 256, lambda c: q), (f"XH{q}", sX, (f"v{XD}", f"v{XD+1}"), sXb, 65536, 65536, 32768, 256, lambda c: q)]
def w_items(name, srd_, voff, sbase, stride):
    return [(f"{name}{c}", srd_, voff, sbase, 0, 8 * stride, 64 * stride, 128 * stride, lambda ch, c=c: c) for c in range(4)]
ORDER = [4, 5, 6, 7, 16, 17, 18, 19, 8, 9, 10, 11, 20, 21, 22, 23, 12, 13, 14, 15, 0, 1, 2, 3, 24, 25, 26, 27]
def b_item(hf, c):
    nm = f"B{'ab'[hf]}{c}"
    if c < 7:
        o = hf * 896 * 1024 + ORDER[4 * c] * 16384
        return (nm, sW2, vDB, sB2, o, o + 8192, 448 * 1024)
    o = hf * 256 * 1024 + (c - 7) * 65536
    return (nm, sWo, vDB, sBo, o, o + 8192, 128 * 1024)
def b_items(first):
    it = []
    for c in range(9): it += [b_item(0, c), b_item(1, c)]
    return it

def mish(acc, tmp, so, tag):
    F = []
    for hb in range(2):
        a = acc + 8 * hb
        for j in range(8): F.append(f"v_mul_f32 v{tmp+j}, v{a+j}, {vRSL}")
        for j in range(8): F.append(f"v_exp_f32 v{tmp+j}, v{tmp+j}")
        for j in range(8): F.append(f"v_add_f32 v{tmp+j}, 1.0, v{tmp+j}")
        for j in range(8): F.append(f"v_fma_f32 v{tmp+j}, v{tmp+j}, v{tmp+j}, 1.0")
        for j in range(8): F.append(f"v_rcp_f32 v{tmp+j}, v{tmp+j}")
        for j in range(8): F.append(f"v_fma_f32 v{tmp+j}, v{tmp+j}, {vM2}, {vRS}")
        for j in range(8): F.append(f"v_mul_f32 v{tmp+j}, v{a+j}, v{tmp+j}")
        for j in range(4): F.append(f"v_cvt_pk_bf16_f32 v{a+j}, v{tmp+2*j}, v{tmp+2*j+1}")
        F.append((f"buffer_store_dwordx4 {R(a,4)}, {vA16}, {sWs}, {so} offen offset:{hb*1024} sc1", tag))
    return F
def bc(r):
    n = int(r[1:]); return R(n & ~1, 2), n & 1
def pk2(op, d, a, b, c=None):
    ops = [R(a, 2)]; lo = [0]; hi = [1]
    for x in (b, c):
        if x is None: continue
        if isinstance(x, int): ops.append(R(x, 2)); lo.append(0); hi.append(1)
        elif x[0] == 'v':
            p, o = bc(x); ops.append(p); lo.append(o); hi.append(o)
        else: ops.append(x); lo.append(0); hi.append(0)
    f = lambda L: "[" + ",".join(map(str, L)) + "]"
    return f"v_pk_{op}_f32 {R(d,2)}, " + ", ".join(ops) + f" op_sel:{f(lo)} op_sel_hi:{f(hi)}"
def mish_pk(acc, tmp, so, tag):
    F = []
    for hb in range(2):
        a = acc + 8 * hb; E = range(0, 8, 2)
        F += [pk2("mul", tmp + j, a + j, vRSL) for j in E] + [f"v_exp_f32 v{tmp+j}, v{tmp+j}" for j in range(8)]
        F += [pk2("add", tmp + j, tmp + j, "1.0") for j in E] + [pk2("fma", tmp + j, tmp + j, tmp + j, "1.0") for j in E]
        F += [f"v_rcp_f32 v{tmp+j}, v{tmp+j}" for j in range(8)]
        F += [pk2("fma", tmp + j, tmp + j, vM2, vRS) for j in E] + [pk2("mul", tmp + j, tmp + j, a + j) for j in E]
        F += [f"v_cvt_pk_bf16_f32 v{a+j}, v{tmp+2*j}, v{tmp+2*j+1}" for j in range(4)]
        F.append((f"buffer_store_dwordx4 {R(a,4)}, {vA16}, {sWs}, {so} offen offset:{hb*1024} sc1", tag))
    return F
def softmax_pk(P, out, t0, t1, tp):
    F = softmax(P, out, t0, t1)[:9]; E = range(0, 16, 2)
    F += [pk2("fma", P + j, P + j, vRSL, t0) for j in E] + [f"v_exp_f32 v{P+j}, v{P+j}" for j in range(16)]
    F += [pk2("add", tp, P, P + 2), pk2("add", tp + 2, P + 4, P + 6), pk2("add", tp, tp, P + 8), pk2("add", tp + 2, tp + 2, P + 10),
          pk2("add", tp, tp, P + 12), pk2("add", tp + 2, tp + 2, P + 14), pk2("add", tp, tp, tp + 2), f"v_add_f32 {t0}, v{tp}, v{tp+1}", f"v_rcp_f32 {t0}, {t0}"]
    F += [pk2("mul", P + j, P + j, t0) for j in E] + [f"v_cvt_pk_bf16_f32 v{out+j}, v{P+2*j}, v{P+2*j+1}" for j in range(8)]
    return F
def softmax(P, out, t0, t1):
    F = [f"v_max3_f32 {t0}, v{P}, v{P+1}, v{P+2}", f"v_max3_f32 {t1}, v{P+3}, v{P+4}, v{P+5}",
         f"v_max3_f32 {t0}, {t0}, v{P+6}, v{P+7}", f"v_max3_f32 {t1}, {t1}, v{P+8}, v{P+9}",
         f"v_max3_f32 {t0}, {t0}, v{P+10}, v{P+11}", f"v_max3_f32 {t1}, {t1}, v{P+12}, v{P+13}",
         f"v_max3_f32 {t0}, {t0}, v{P+14}, v{P+15}", f"v_max_f32 {t0}, {t0}, {t1}", f"v_mul_f32_e64 {t0}, -{t0}, {vRSL}"]
    for j in range(16): F.append(f"v_fma_f32 v{P+j}, v{P+j}, {vRSL}, {t0}")
    for j in range(16): F.append(f"v_exp_f32 v{P+j}, v{P+j}")
    F += [f"v_add_f32 {t0}, v{P}, v{P+1}", f"v_add_f32 {t1}, v{P+2}, v{P+3}"]
    for j in range(4, 16, 2):
        F += [f"v_add_f32 {t0}, {t0}, v{P+j}", f"v_add_f32 {t1}, {t1}, v{P+j+1}"]
    F += [f"v_add_f32 {t0}, {t0}, {t1}", f"v_rcp_f32 {t0}, {t0}"]
    for j in range(16): F.append(f"v_mul_f32 v{P+j}, v{P+j}, {t0}")
    for j in range(8): F.append(f"v_cvt_pk_bf16_f32 v{out+j}, v{P+2*j}, v{P+2*j+1}")
    return F
def pack16(acc, out): return [f"v_cvt_pk_bf16_f32 v{out+j}, v{acc+2*j}, v{acc+2*j+1}" for j in range(8)]
def phi_frags():
    F = ["v_bfe_u32 v25, v0, 2, 2", "v_lshrrev_b32 v26, 5, v0", "v_lshl_add_u32 v25, v26, 2, v25", "v_lshlrev_b32 v25, 5, v25",
         "v_bfe_u32 v26, v0, 4, 1", "v_lshl_add_u32 v25, v26, 4, v25", "v_bfe_u32 v26, v0, 1, 1", "v_lshl_add_u32 v25, v26, 3, v25",
         blk(f"s_lshl_b32 s4, {sCH}, 10\ns_add_u32 s4, s4, {SCR_PHI}\nv_add_u32 v25, s4, v25")]
    for h in range(2):
        for rd in range(2): F.append(f"ds_read_b64_tr_b16 {R(PHI+4*h+2*rd,2)}, v25 offset:{h*512 + rd*256}")
    F += ["v_bfe_u32 v26, v0, 2, 1", "v_mul_u32_u24 v26, 0x8000, v26", "v_lshl_or_b32 v26, v26, 16, v26"]
    for j in range(8): F.append(f"v_xor_b32 v{PHI+j}, v26, v{PHI+j}")
    return F

def prologue(s):
    s.e("s_load_dwordx2 s[64:65], s[0:1], 0\ns_load_dwordx2 s[84:85], s[0:1], 80")
    s.e("s_load_dwordx8 s[68:75], s[0:1], 8\ns_load_dwordx8 s[76:83], s[0:1], 40\ns_load_dwordx2 s[66:67], s[0:1], 72")
    s.e("s_cmp_ge_u32 s2, 256\ns_cbranch_scc1 L_end")
    s.e("v_lshrrev_b32 v2, 6, v0\nv_and_b32 v0, 63, v0")
    s.e(f"v_readfirstlane_b32 {sW}, v2")
    s.e("s_and_b32 s3, s2, 7\ns_lshr_b32 s4, s2, 3" if not CFG.get('BADMAP') else "s_lshr_b32 s3, s2, 5\ns_and_b32 s4, s2, 31")
    s.e(f"s_and_b32 s5, s3, 1\ns_lshl_b32 s5, s5, 3\ns_and_b32 {sI}, s4, 7\ns_add_u32 {sI}, {sI}, s5")
    s.e(f"s_lshr_b32 {sKQ}, {sW}, 1\ns_and_b32 {sRT2}, {sW}, 1\ns_lshl_b32 {sM0W}, {sW}, 11")
    s.e(f"s_and_b32 {sRT}, {sW}, 3\ns_lshr_b32 {sCH}, {sW}, 2")
    s.e(f"s_lshr_b32 s5, s3, 1\ns_lshl_b32 s5, s5, 2\ns_lshr_b32 s6, s4, 3\ns_add_u32 s5, s5, s6")
    s.e(f"s_lshr_b32 {sG}, s5, 1\ns_and_b32 {sTY}, s5, 1")
    s.e({0: f"s_mov_b32 s{ROT0}, 0", 1: f"s_add_u32 s{ROT0}, s5, {sI}", 2: f"s_lshr_b32 s{ROT0}, s3, 1\ns_lshl_b32 s{ROT0+1}, s3, 1\ns_add_u32 s{ROT0}, s{ROT0}, s{ROT0+1}"}[CFG['ROT']])
    for c in range(1, 4): s.e(f"s_add_u32 s{ROT0+c}, s{ROT0}, {c}\ns_and_b32 s{ROT0+c}, s{ROT0+c}, 3")
    s.e(f"s_and_b32 s{ROT0}, s{ROT0}, 3")
    s.e(f"s_lshl_b32 {sRB}, s3, 2\ns_add_u32 {sRB}, {sRB}, s6\ns_and_b32 {sCB}, s4, 7\ns_mov_b32 s87, s4")
    s.e(f"v_lshrrev_b32 v33, 4, v0\nv_and_b32 v34, 15, v0\ns_lshl_b32 s5, {sRT2}, 3")
    for h in range(2):
        s.e(f"v_add_u32 v35, {4*h}, v33\nv_add_u32 v36, s5, v35\nv_xor_b32 v36, v34, v36\nv_lshlrev_b32 v36, 4, v36\nv_lshl_add_u32 v{XD+h}, v35, 10, v36")
    s.e(f"s_lshl_b32 {sXb}, {sI}, 17\ns_lshl_b32 s5, {sW}, 13\ns_add_u32 {sXb}, {sXb}, s5")
    s.e("v_lshrrev_b32 v36, 3, v0\nv_and_b32 v37, 7, v0\nv_lshlrev_b32 v38, 1, v36\nv_and_b32 v38, 4, v38\nv_xor_b32 v37, v37, v38\nv_lshlrev_b32 v37, 4, v37")
    s.e(f"v_mul_u32_u24 {vDq}, 3072, v36\nv_add_u32 {vDq}, {vDq}, v37\nv_mul_u32_u24 {vD1}, 3584, v36\nv_add_u32 {vD1}, {vD1}, v37")
    s.e(f"v_lshl_add_u32 {vDB}, v36, 10, v37\nv_lshlrev_b32 {vA16}, 4, v0")
    s.raw("s_waitcnt lgkmcnt(0)")
    srd(s, sX, "s64", "s65", 2048 * 512 * 2)
    srd(s, sWq, "s68", "s69", 512 * 1536 * 2)
    srd(s, sW1, "s76", "s77", 512 * 1792 * 2)
    srd(s, sWs, "s84", "s85", 0x10000000)
    s.e("s_cmp_ge_u32 s2, 32\ns_cbranch_scc1 L_noinit")
    s.e("v_mov_b32 v40, 0\nv_mov_b32 v41, 0\nv_mov_b32 v42, 0\nv_mov_b32 v43, 0")
    s.e(f"s_lshl_b32 s5, s2, 13\ns_lshl_b32 s6, {sW}, 10\ns_add_u32 s5, s5, s6\ns_add_u32 s5, s5, {Z_OFF}")
    s.raw(f"buffer_store_dwordx4 v[40:43], {vA16}, {sWs}, s5 offen sc1")
    s.e("s_add_u32 s5, s5, 0x40000")
    s.raw(f"buffer_store_dwordx4 v[40:43], {vA16}, {sWs}, s5 offen sc1")
    s.e("L_noinit:")
    s.e("s_mov_b32 s88, s2")

def prologue2(s):
    lab = label()
    s.e(f"s_cmp_lg_u32 {sW}, 7\ns_cbranch_scc1 {lab}")
    s.e(f"s_getpc_b64 s[90:91]\n{lab}x:\ns_sub_u32 s90, s90, {lab}x-{KNAME}\ns_subb_u32 s91, s91, 0\ns_mul_i32 s5, s87, 2560\nv_min_u32 v35, 19, v0\nv_lshlrev_b32 v35, 7, v35\nv_add_u32 v35, s5, v35")
    s.raw("global_load_dword v26, v35, s[90:91]")
    s.e(f"{lab}:")
    srd(s, sPhi, "s70", "s71", 32 * 512)
    srd(s, sB1, "s78", "s79", 1792 * 2)
    srd(s, sW2, "s80", "s81", 1792 * 512 * 2)
    srd(s, sWo, "s72", "s73", 512 * 512 * 2)
    srd(s, sOut, "s82", "s83", 2048 * 512 * 2)
    srd(s, sDbg, "s66", "s67", 256)
    s.e(f"s_mov_b32 {sBID}, s88\ns_mov_b32 {sC11}, 0x3f803f80")
    s.e(f"v_lshrrev_b32 v36, 2, v0\nv_and_b32 v37, 3, v0\nv_lshlrev_b32 v37, 4, v37\nv_mul_u32_u24 {vD5}, 3584, v36\nv_add_u32 {vD5}, {vD5}, v37")
    s.e(f"v_and_b32 {vP4}, 31, v0\nv_lshlrev_b32 {vP4}, 2, {vP4}")
    s.e(f"v_mov_b32 v29, 0\nv_mov_b32 {vFO}, {BIG}\nv_cmp_eq_u32 vcc, 0, v0\nv_cndmask_b32 {vFO}, {vFO}, 0, vcc")
    s.e("v_bfe_u32 v36, v0, 2, 2\nv_and_b32 v37, 3, v0\nv_bfe_u32 v38, v0, 4, 1\nv_lshrrev_b32 v39, 5, v0")
    s.e("v_lshlrev_b32 v40, 3, v37\nv_lshl_add_u32 v40, v38, 5, v40\nv_lshl_add_u32 v41, v39, 3, v36")
    s.e(f"v_lshrrev_b32 v42, 1, v36\nv_xor_b32 v42, {sCH}, v42\nv_lshlrev_b32 v42, 6, v42")
    s.e(f"v_lshl_add_u32 v43, v41, 7, v40\nv_add_u32 v43, v43, v42")
    for j in range(4):
        s.e(f"s_xor_b32 s5, {sRT}, {j}\ns_lshl_b32 s5, s5, 12\ns_add_u32 s5, s5, {SLOT}\nv_add_u32 v{VW+j}, s5, v43\nv_add_u32 v{VW+4+j}, 0x10000, v{VW+j}")
    s.e(f"v_and_b32 v44, 31, v0\ns_lshl_b32 s5, {sRT}, 5\nv_add_u32 v45, s5, v44\nv_xor_b32 v46, v39, v34\nv_lshlrev_b32 v46, 4, v46\nv_lshl_add_u32 v{XR}, v45, 8, v46")
    s.e(f"s_lshl_b32 s5, {sRT}, 6\nv_xor_b32 v{XR}, s5, v{XR}")
    for t in range(1, 8): s.e(f"v_xor_b32 v{XR+t}, {t<<5}, v{XR}")
    s.e(f"v_lshlrev_b32 v44, 2, v38\nv_cmp_eq_u32 vcc, v44, v34\nv_mov_b32 v44, {sC11}\nv_cndmask_b32 v{ASEL}, 0, v44, vcc")
    for j in range(1, 4): s.e(f"v_mov_b32 v{ASEL+j}, v{ASEL}")
    s.e(f"v_mov_b32 v{CF+4}, 0\nv_mov_b32 v{CF+5}, 0")
    s.e(f"s_lshl_b32 s3, {sI}, 2\ns_add_u32 s3, s3, {sRT}\ns_mul_i32 {sAF}, s3, {144*1024}")
    s.e(f"s_mul_i32 {sKS}, {sG}, {14*1024}\ns_add_u32 {sKS}, {sKS}, {sAF}")
    s.e(f"s_lshl_b32 {sFL}, s3, 2\ns_lshr_b32 s4, {sG}, 1\ns_add_u32 {sFL}, {sFL}, s4\ns_mul_i32 {sFL}, {sFL}, 640")
    s.e(f"s_and_b32 s4, {sG}, 1\ns_lshl_b32 s4, s4, 3\ns_lshl_b32 s5, {sCH}, 2\ns_add_u32 s4, s4, s5\ns_add_u32 {sFL}, {sFL}, s4\ns_add_u32 {sFL}, {sFL}, {ACTFLAG_OFF}")
    s.e(f"s_lshl_b32 s3, {sRB}, 1\ns_add_u32 s3, s3, {sRT2}\ns_mul_i32 {sAF2}, s3, {144*1024}")
    s.e(f"s_lshl_b32 {sFL2}, s3, 2\ns_add_u32 {sFL2}, {sFL2}, {sKQ}\ns_mul_i32 {sFL2}, {sFL2}, 640\ns_add_u32 {sFL2}, {sFL2}, {ACTFLAG_OFF}")
    s.e(f"s_mul_i32 {sB2}, {sCH}, {448*1024}\ns_lshl_b32 s4, {sRT}, 14\ns_lshl_b32 s5, {sCB}, 7\ns_add_u32 s4, s4, s5\ns_add_u32 {sB2}, {sB2}, s4")
    s.e(f"s_lshl_b32 {sBo}, {sCH}, 17\ns_add_u32 {sBo}, {sBo}, s4")
    s.e(f"s_lshl_b32 s3, {sG}, 2\ns_add_u32 s3, s3, {sKQ}\ns_mul_i32 {sKVs}, s3, 2176\ns_add_u32 {sKVs}, {sKVs}, {KV_OFF}")
    s.e(f"s_lshl_b32 s3, {sG}, 3\ns_add_u32 s3, s3, {sW}\ns_lshl_b32 {sKVF}, s3, 11\ns_add_u32 {sKVF}, {sKVF}, {KVFLAG_OFF}")
    s.e(f"s_mul_i32 s3, {sKQ}, {28*1024}\ns_add_u32 {sA2y}, {sAF2}, s3")
    s.e(f"s_lshl_b32 s3, {sKQ}, 13\ns_add_u32 {sA2s}, {sAF2}, s3\ns_add_u32 {sA2s}, {sA2s}, {112*1024}")
    s.e(f"v_lshrrev_b32 {vT}, 1, {vP4}")

def unit_bases(s, typ):
    s.e(f"s_mul_i32 s3, {sW}, {16*3072}\ns_lshl_b32 s4, {sG}, 7\ns_add_u32 s3, s3, s4")
    s.e(f"s_mul_i32 s4, {sG}, 448\ns_and_b32 s5, {sG}, 1\ns_cmp_eq_u32 s5, 0")
    if typ == 'A':
        s.e(f"s_cselect_b32 s5, 0, 320\ns_add_u32 s4, s4, s5")
        s.e(f"s_add_u32 {sUA}, s3, 1024\ns_add_u32 {sUB}, s3, 2048")
        s.e(f"s_mul_i32 {sUC}, {sW}, {16*3584}\ns_add_u32 {sUC}, {sUC}, s4")
        s.e(f"s_lshl_b32 s5, {sCH}, 6\ns_add_u32 s92, s4, s5")
        return [f"buffer_load_ushort v{BI0}, {vT}, {sB1}, s92 offen"]
    s.e(f"s_cselect_b32 s5, 128, 64\ns_cselect_b32 {sUD}, 384, 0")
    s.e(f"s_add_u32 s5, s4, s5\ns_add_u32 s92, s4, {sUD}\ns_mov_b32 {sUC}, s3")
    s.e(f"s_mul_i32 {sUA}, {sW}, {16*3584}\ns_add_u32 {sUA}, {sUA}, s5\ns_add_u32 {sUB}, {sUA}, 128")
    s.e(f"s_mul_i32 {sUD}, {sRT}, {32*3584}\ns_add_u32 {sUD}, {sUD}, s92")
    s.e(f"s_lshl_b32 s3, {sCH}, 6\ns_add_u32 s93, s5, s3")
    return [f"buffer_load_ushort v{BI2}, {vT}, {sB1}, s92 offen", f"buffer_load_ushort v{BI0}, {vT}, {sB1}, s93 offen",
            f"buffer_load_ushort v{BI1}, {vT}, {sB1}, s93 offen offset:128"]

def start(s, ring, biasloads):
    ring.assign(s, upto=ring.upto0)
    if CFG['T0'] == 1: touch_all(s, ['x', 'q', 'w1'])
    ring.pump(s, CFG['S0'])
    if CFG['T0'] == 2: touch_all(s, ['x', 'q', 'w1'])
    prologue2(s)
    ring.pump(s, CFG['S1'])
    if CFG['T1']: touch_all(s, ['w2', 'wo'])
def touch_all(s, which):
    specs = dict(x=(sX, 64, 4), q=(sWq, 48, 5), w1=(sW1, 56, 6), w2=(sW2, 56, 4), wo=(sWo, 16, 5))
    for nm in which:
        srd_, nl, wv = specs[nm]
        lab = label()
        s.e(f"s_cmp_lg_u32 {sW}, {wv}\ns_cbranch_scc1 {lab}")
        s.e(f"v_min_u32 v47, {nl-1}, v0\nv_lshlrev_b32 v47, 7, v47\ns_mul_i32 s5, s88, {nl*128}\ns_mov_b32 m0, {SCR + 15360}\ns_nop 0")
        s.raw(f"buffer_load_dword v47, {srd_}, s5 offen lds")
        s.e(f"{lab}:")
def late_loads(biasloads):
    def f(s):
        s.e(f"v_lshrrev_b32 {vT}, 1, {vP4}")
        for x in biasloads: s.e(x)
        s.e(f"s_lshl_b32 s3, {sG}, 11\ns_lshl_b32 s4, {sRT2}, 10\ns_add_u32 s3, s3, s4\ns_add_u32 m0, s4, {SCR_PHI}")
        s.e(f"buffer_load_dwordx4 {vA16}, {sPhi}, s3 offen lds", tag="phi")
    return f

MF = "v_mfma_f32_32x32x16_bf16"
def bar(s, ring, name, needs=(), rel=(), owner='all', lg0=False, upto=None, extra=(), maxn=99):
    if CFG.get('SB'): stamp("<" + name)(s)
    for n in needs: ring.need(s, n)
    if lg0: s.wait(lg=0)
    s.wait_dswrites()
    s.e("s_barrier")
    stamp(name)(s)
    if CFG.get('PADAT') == name: pad(s, CFG['PADUS'])
    s.marks[name] = 1
    for n in rel: ring.release(n)
    ring.free += list(extra)
    if owner == 'all':
        k = 'x' if name[0] == 'b' else ('a' if name[0] in 'ae' else 'p')
        if k in CFG['OWN'] and not (s.name[0] == 'B' and name in ('c3', 'd3', 'e1')): owner = 0
    ring.assign(s, owner, upto, maxn)
def pad(s, us):
    l = label()
    s.raw("s_waitcnt lgkmcnt(0)"); s.lg = []
    s.raw(f"{l}:\ns_sleep 2\ns_memrealtime s[84:85]\ns_waitcnt lgkmcnt(0)\ns_sub_u32 s84, s84, s58\ns_cmp_lt_u32 s84, {us*100}\ns_cbranch_scc1 {l}")
def B(ring, *a, **k): return lambda s: bar(s, ring, *a, **k)

class MSeg:
    def __init__(self, ring, u, ch, events=None, posts=None, xpass=False, dma=0):
        self.ring, self.u, self.ch, self.ev, self.posts, self.xp, self.dma = ring, u, ch, events or {}, posts or {}, xpass, dma
        self.nr = 0; self.hs = None
    def reads(self, s, t):
        u, ring = self.u, self.ring
        for e in self.ev.get(t, []): e(s)
        c, p = t // 8, t % 8
        if self.xp:
            for x in {0: (0, 1), 1: (2, 3, 4), 2: (5, 6, 7)}.get(p, ()):
                s.e(f"ds_read_b128 {R(XA+32*c+4*x,4)}, v{XR+x} offset:{(c&1)*32768}")
        it = f"{u['name']}{c}" if u['kind'] == 'w' else f"{u['name']}{c//2}"
        assert ring.log[it][1] is not None, f"{it} read before certified"
        sl = ring.slot[it]; buf = WB + 4 * (t % 4)
        if u['kind'] == 'h5' and self.hs != sl:
            if self.hs is None:
                s.e("v_bfe_u32 v116, v0, 2, 2\nv_lshrrev_b32 v117, 5, v0\nv_lshl_add_u32 v116, v117, 3, v116\nv_lshlrev_b32 v116, 6, v116\nv_bfe_u32 v117, v0, 4, 1\nv_lshl_add_u32 v116, v117, 5, v116\nv_and_b32 v117, 3, v0\nv_lshl_add_u32 v116, v117, 3, v116")
                for j in range(4): s.e(f"s_xor_b32 s3, {sRT}, {j}\ns_lshl_b32 s3, s3, 11\ns_add_u32 s3, s3, {sl*SLOT}\nv_add_u32 v{HR+j}, s3, v116")
            else:
                for j in range(4): s.e(f"v_add_u32 v{HR+j}, {((sl-self.hs)*SLOT) & 0xffffffff:#x}, v{HR+j}")
            self.hs = sl
        for k in range(2):
            if u['kind'] == 'w':
                w = 0 if sl <= 4 else 1
                r, off = f"v{VW+4*w+p//2}", (sl - 1 - 4 * w) * SLOT + (p & 1) * 2048 + k * 512
            else: r, off = f"v{HR+p//2}", (c % 2) * 8192 + (p & 1) * 1024 + k * 256
            s.e(f"ds_read_b64_tr_b16 {R(buf+2*k,2)}, {r} offset:{off}")
    def pre(self, s, n=None):
        n = CFG['PF'] if n is None else n
        while self.nr < n: self.reads(s, self.nr); self.nr += 1
    def run(self, s, nxt=None, F=None, budget=0):
        u = self.u; ch = self.ch
        credit = 0
        if CFG['PRIO'] and not self.xp: s.e("s_setprio 1")
        self.pre(s)
        for t in range(32):
            c, p = t // 8, t % 8
            buf = WB + 4 * (t % 4)
            cin = R(u['acc'], 16) if t > 0 else "0"
            a, b = (R(buf, 4), R(XA + 4 * t, 4)) if u['trans'] else (R(XA + 4 * t, 4), R(buf, 4))
            s.e(f"{MF} {R(u['acc'],16)}, {a}, {b}, {cin}")
            if p < 2 and not (CFG.get('NOCS') and t > 0): s.e(f"v_mfma_f32_16x16x32_bf16 {R(CSA,4)}, {R(ASEL,4)}, {R(buf,4)}, {R(CSA,4) if t > 0 else '0'}")
            if self.nr < 32: self.reads(s, self.nr); self.nr += 1
            elif nxt is not None: nxt.pre(s, t - 31 + CFG['PF'])
            if self.xp and t < 25 and CFG['PAR'] == 2:
                if t % 2 == ch or ('x' in CFG['OWN'] and ch == 0): self.ring.pump(s, 2)
            elif self.xp and t < 25: self.ring.pump(s, 1)
            elif self.xp: self.ring.pace(s, CFG['ST'])
            elif self.dma and CFG['PAR']:
                if 'p' in CFG['OWN']: self.ring.pace(s, self.dma, 1)
                elif t % 2 == ch: self.ring.pace(s, 2 * self.dma, 1)
            elif self.dma: self.ring.pace(s, self.dma)
            if t == 27:
                s.e(f"s_lshl_b32 s3, {sRT}, 2\ns_add_u32 s3, s3, {SCR_CS + u['csi']*2048 + ch*1024}\nv_add_u32 v{CSA+1}, s3, {vA16}\nds_write_b32 v{CSA+1}, v{CSA}")
            if self.xp and p in (1, 3):
                for x in ((ch, ch + 2) if p == 1 else (ch + 4, ch + 6)):
                    for j in range(4):
                        r = XA + 32 * c + 4 * x + j
                        first = (c == 0 and p == 1 and x == ch and j < 2)
                        s.e(f"v_dot2_f32_bf16 v{STA+(j&1)}, v{r}, {sC11}, {'0' if first else f'v{STA+(j&1)}'}")
                        s.e(f"v_dot2_f32_bf16 v{STA+2+(j&1)}, v{r}, v{r}, {'0' if first else f'v{STA+2+(j&1)}'}")
                if t == 27:
                    q = f"v{STA+2}"
                    s.e(f"v_add_f32 v{STA}, v{STA}, v{STA+1}\nv_add_f32 v{STA+1}, v{STA+2}, v{STA+3}\nv_lshrrev_b32 {q}, 5, v0\nv_lshlrev_b32 {q}, 3, {q}\n"
                        f"v_lshl_add_u32 {q}, {vP4}, 3, {q}\ns_lshl_b32 s3, {sRT}, 10\ns_add_u32 s3, s3, {SCR_ST + ch*16}\nv_add_u32 {q}, s3, {q}\nds_write_b64 {q}, {R(STA,2)}")
            for e in self.posts.get(t, []): e(s)
            if F is not None: credit = fill(s, F, (budget(t) if callable(budget) else budget) + min(credit, CFG['CRED']))
        if CFG['PRIO'] and not self.xp: s.e("s_setprio 0")

def fill(s, F, budget, force=False):
    while budget > 0 and F:
        f = F[0]
        if isinstance(f, tuple) and f[0] == 'wait':
            if f[1] in s.marks: F.pop(0); continue
            return 0
        if isinstance(f, tuple) and f[0] == 'nextbar': f = F[0] = ('barge', s.nbar + 1)
        if isinstance(f, tuple) and f[0] == 'barge':
            if s.nbar >= f[1]: F.pop(0); continue
            return 0
        if isinstance(f, tuple) and f[0] in ('hold', 'tilt'):
            if budget <= 1: F.pop(0); continue
            return 0
        if isinstance(f, tuple) and f[0] == 'gap':
            f = F[0] = ('until', s.n_issued + f[1])
        if isinstance(f, tuple) and f[0] == 'until':
            if s.n_issued >= f[1] or force: F.pop(0); continue
            return 0
        if callable(f):
            F.pop(0); n0 = s.n_issued; f(s); budget -= max(1, (s.n_issued - n0) * 0.5); continue
        txt, tag = (f if isinstance(f, tuple) else (f, None))
        need, age = s.cost(txt)
        if not force and (need > 1 or (age is not None and age < CFG['AGE'])): return budget
        F.pop(0); s.e(txt, tag)
        k = I(txt).kind
        budget -= 2 if k == 'trans' else (0.5 if k in ('salu', 'ds', 'vm') else 1)
    return 0
def until(s, ring, F, name, every=None):
    n = 0
    while name not in s.marks:
        assert F, name
        l = len(F); fill(s, F, 1, force=True)
        assert len(F) < l, ("stuck", F[0], name, s.name)
        n += 1
        ring.pace(s, 9)
    return n
def vrun(s, ring, F, slots, every=None, flush=True):
    every = every or CFG['VD']
    while slots > 0 and F:
        l = len(F); fill(s, F, min(every, slots), force=True); slots -= every
        ring.pace(s, 9 * every)
        if len(F) == l: break
    if flush: ring.pump(s, 99)

def vseg(s, ring, F, every=None, flush=True):
    every = every or CFG['VD']
    n = 0
    for f in F:
        if isinstance(f, tuple) and f[0] in ('after', 'skip', 'wait', 'gap', 'until'): continue
        drain(s, [f]); n += 1
        ring.pace(s, 10)
    if flush: ring.pump(s, 99)
def split(F, frac, item):
    k = int(len(F) * frac)
    return F[:k] + [item] + F[k:]

def pass0(s, ring, u, ch, bl, nextname, nextneed):
    ev = {}
    for c in range(4):
        def b0(s, c=c):
            if c == 3: s.wait_tag("phi")
            bar(s, ring, f"b0{c}", [f"{u['name']}{c}", f"XL{c}", f"XH{c}"], [f"{u['name']}{c-1}"] if c else [], lg0=True, upto=nextname[0] + str(CFG['UP'][2 * c]))
            if c == 0:
                lab = label()
                s.e(f"s_cmp_ge_u32 {sBID}, 32\ns_cbranch_scc1 {lab}\ns_cmp_lg_u32 {sW}, 0\ns_cbranch_scc1 {lab}\ns_lshl_b32 s3, {sBID}, 2")
                s.raw(f"buffer_store_dword {vOne}, {vFO}, {sDbg}, s3 offen offset:128 sc1")
                s.e(f"{lab}:")
        def bx(s, c=c):
            s.wait_regs([f"v{r}" for r in range(XA + 32 * c, XA + 32 * c + 32)])
            bar(s, ring, f"bx{c}", nextneed if c == 3 else [], [f"XL{c}", f"XH{c}"], upto=(nextname[0] + str(CFG['UP'][2 * c + 1]) if c < 3 else None))
        ev[8 * c] = [b0]; ev[8 * c + 4] = [bx]
    return MSeg(ring, u, ch, ev, {6: [late_loads(bl)], 24: [lambda s: poll_issue(s, sDbg, "0", imm=128)], CFG['TBT']: [lambda s: touchB(s)], CFG['TWT']: [lambda s: touchW(s)]}, xpass=True, dma=1)

def stats_fin(T):
    F = [blk(f"s_lshl_b32 s4, {sRT}, 10\ns_add_u32 s4, s4, {SCR_ST}\nv_lshlrev_b32 {vT}, 3, {vP4}\nv_add_u32 {vT}, s4, {vT}"),
         f"ds_read_b128 {R(T,4)}, {vT}", f"ds_read_b128 {R(T+4,4)}, {vT} offset:16",
         blk(f"s_lshl_b32 s4, {sRT}, 7\ns_add_u32 s4, s4, {SCR_RS}\nv_add_u32 {vT}, s4, {vP4}\nv_cmp_gt_u32 s[94:95], 32, v0")]
    a, b = f"v{T}", f"v{T+1}"
    F += [f"v_add_f32 {a}, {a}, v{T+2}", f"v_add_f32 {b}, {b}, v{T+3}", f"v_add_f32 v{T+4}, v{T+4}, v{T+6}", f"v_add_f32 v{T+5}, v{T+5}, v{T+7}",
          f"v_add_f32 {a}, {a}, v{T+4}", f"v_add_f32 {b}, {b}, v{T+5}", f"v_mul_f32 {a}, 0xbb000000, {a}", f"v_mul_f32 {b}, 0x3b000000, {b}",
          f"v_fma_f32 {b}, -{a}, {a}, {b}", f"v_max_f32 {b}, 0, {b}", f"v_cvt_pk_bf16_f32 {b}, {b}, {b}", f"v_lshlrev_b32 {b}, 16, {b}",
          f"v_add_f32 {b}, 0x3727c5ac, {b}", f"v_cvt_pk_bf16_f32 {b}, {b}, {b}", f"v_lshlrev_b32 {b}, 16, {b}", f"v_sqrt_f32 {b}, {b}",
          f"v_cvt_pk_bf16_f32 {b}, {b}, {a}", f"v_lshlrev_b32 {vRS}, 16, {b}", f"v_rcp_f32 {vRS}, {vRS}",
          f"v_cndmask_b32 v{CF+2}, 0, {b}, s[94:95]", f"v_lshrrev_b32 v{CF+3}, 16, v{CF+2}",
          f"v_mul_f32 {vRSL}, 0x3fb8aa3b, {vRS}", f"v_mul_f32 {vM2}, -2.0, {vRS}", f"ds_write_b32 {vT}, {vRS}"]
    return F
def correct(u, ch, T, bias=None):
    F = [f"v_lshlrev_b32 v{T}, 2, {vP4}", f"v_add_u32 v{T}, {SCR_CS + u['csi']*2048 + ch*1024}, v{T}", f"ds_read_b128 {R(T,4)}, v{T}",
         f"v_add_f32 v{T}, v{T}, v{T+1}", f"v_add_f32 v{T+2}, v{T+2}, v{T+3}", f"v_add_f32 v{T}, v{T}, v{T+2}",
         f"v_cvt_pk_bf16_f32 v{T+1}, v{T}, v{T}", f"v_and_b32 v{CF}, 0xffff0000, v{T+1}", f"v_sub_f32 v{T}, v{T}, v{CF}", f"v_cvt_pk_bf16_f32 v{CF+1}, v{T}, v{T}"]
    if bias is not None: F.append(f"v_or_b32 v{CF}, v{CF}, v{bias}")
    a, b = (R(CF, 4), R(CF + 2, 4)) if u['trans'] else (R(CF + 2, 4), R(CF, 4))
    F.append(f"{MF} {R(u['acc'],16)}, {a}, {b}, {R(u['acc'],16)}")
    return F

def mark(name): return lambda s: s.marks.__setitem__(name, 1)
YA = [192, 208]; SA = [32, 48]
vB0, vB1 = "v5", "v24"
XW = ["v6", "v7", "v8"]; XRD = ["v11", "v12", "v13"]
LB = 128
NR = 8
def breg(t): return XA + 8 * t if t < NR else LB + 8 * (t % 2)
def bnm(ch, c): return f"B{'ab'[ch]}{c}"
def bread(ring, ch, t):
    def f(s):
        nm = bnm(ch, t // 4)
        assert ring.log[nm][1] is not None, f"{nm} read before certified"
        sl = ring.slot[nm]
        if ring.bsl != sl:
            d = ((sl - ring.bsl) * SLOT) & 0xffffffff
            s.e(f"v_add_u32 {vB0}, {d:#x}, {vB0}\nv_add_u32 {vB1}, {d:#x}, {vB1}")
            ring.bsl = sl
        for ct, r in enumerate((vB0, vB1)):
            for k in range(2):
                s.e(f"ds_read_b64_tr_b16 {R(breg(t) + 4*ct + 2*k, 2)}, {r} offset:{(t%4)*2048 + k*1024}")
    return f
def pull(ring, ch, c): return [bread(ring, ch, 4 * c + k) for k in range(4)]
def p2_setup(ring):
    def chk(s):
        assert not any(x[0][0] == 'F' for x in ring.items) and not any(x[0][0][0] == 'F' for x in ring.q)
        ring.bsl = 0
    return [chk, f"v_bfe_u32 {vB0}, v0, 2, 2", f"v_lshrrev_b32 {vB1}, 5, v0", f"v_lshl_add_u32 {vB0}, {vB1}, 2, {vB0}", f"v_lshlrev_b32 {vB0}, 7, {vB0}",
     f"v_bfe_u32 {vB1}, v0, 3, 1", f"v_lshl_add_u32 {vB0}, {vB1}, 6, {vB0}", f"v_bfe_u32 {vB1}, v0, 4, 1", f"v_lshl_add_u32 {vB0}, {vB1}, 5, {vB0}",
     f"v_and_b32 {vB1}, 3, v0", f"v_lshl_add_u32 {vB0}, {vB1}, 3, {vB0}", blk(f"s_and_b32 s3, {sKQ}, 1\ns_lshl_b32 s3, s3, 13\nv_add_u32 {vB0}, s3, {vB0}"), f"v_xor_b32 {vB1}, 64, {vB0}"]

def xwrite(s, acc2, slots, own, ch):
    l1, l2 = label(), label()
    s.e("s_nop 7")
    s.e(f"s_bitcmp1_b32 {sKQ}, 0\ns_cbranch_scc1 {l1}")
    for kq in (2 * ch, 2 * ch + 1):
        if kq & 1: s.raw(f"{l1}:")
        s.raw("s_nop 1")
        for d in range(4):
            src = acc2[d >> 1] + 8 * (d & 1)
            if d == kq: continue
            idx = (kq - d - 1) % 4
            for h in range(2):
                r, off = ldsaddr(XW, slots[idx] * SLOT + d * 4096 + h * 1024)
                s.raw(f"ds_write_b128 {r}, {R(src+4*h,4)} offset:{off}")
        src = acc2[kq >> 1] + 8 * (kq & 1)
        for j in range(8): s.raw(f"v_mov_b32 v{own+j}, v{src+j}")
        if not kq & 1: s.raw(f"s_branch {l2}")
    s.raw(f"{l2}:")
    for _ in range(6): s.lg.append((set(), None))
def xread(slots, own, tmp):
    F = []
    for i in range(3):
        for h in range(2):
            r, off = ldsaddr(XRD, slots[i] * SLOT + h * 1024)
            F.append(f"ds_read_b128 {R(tmp+8*i+4*h,4)}, {r} offset:{off}")
    G = []
    for i in range(3):
        for j in range(8): G.append(f"v_add_f32 v{own+j}, v{own+j}, v{tmp+8*i+j}")
    return F, G
def fin_setup():
    return [blk(f"s_lshl_b32 {sUC}, {sRB}, 16\ns_lshl_b32 s4, {sRT2}, 15\ns_add_u32 {sUC}, {sUC}, s4\ns_lshl_b32 s4, {sCB}, 7\ns_add_u32 {sUC}, {sUC}, s4\ns_lshl_b32 s4, {sKQ}, 5\ns_add_u32 {sUC}, {sUC}, s4"),
            f"v_lshlrev_b32 v20, 8, {vP4}", "v_lshrrev_b32 v21, 5, v0", "v_lshl_add_u32 v20, v21, 4, v20",
            f"buffer_load_dwordx4 v[16:19], v20, {sX}, {sUC} offen",
            blk(f"s_lshl_b32 s4, {sRT2}, 11\nv_add_u32 v6, s4, {vA16}"), "v_add_u32 v7, 0x10000, v6", "v_add_u32 v8, 0x20000, v6",
            blk(f"s_lshl_b32 s4, {sKQ}, 12\nv_add_u32 v11, s4, v6\nv_add_u32 v12, s4, v7\nv_add_u32 v13, s4, v8")]

def aphase(s, ring, ch, F, early, late, toff):
    G = CFG['GT']
    groups = {0: (0xf, ['f1'], 0, 0), 8: (0xf, ['f2'], G[3], 128), 16: (0x5, ['f3'], G[0], 384), 20: (0xf, ['f3'], G[1], 256), 28: (0xf, ['fo'], G[2], 512)}
    pr = lambda c: [bnm(0, c), bnm(1, c)]
    bars = {8: (pr(2) + pr(3), ring.rel8), 12: ([], pr(2)), 16: (pr(4) + pr(5), pr(3)), 20: ([], pr(4)), 24: (pr(6) + pr(7), pr(5)), 30: (pr(8), pr(6))}
    if CFG['FB4']: bars = {8: (pr(2) + pr(3), ring.rel8), 16: (pr(4) + pr(5), pr(2) + pr(3)), 24: (pr(6) + pr(7), pr(4) + pr(5)), 30: (pr(8), pr(6))}
    cert = {n: k for k, v in bars.items() for n in v[0]}
    pool = list(range(224, 256, 4)) + list(early); restricted = set(early)
    late = dict(late)
    for v in late.values(): restricted |= set(v)
    areg = {}; arr = {}
    st = dict(clk=0, pipe=0, nxt=0, polled={0: 0}, checked=set(), tch=set())
    LT, LAT, QD = CFG['LT'], CFG['LAT'], CFG['QD']
    OWNY = 112; OWNS = 120; XT = 64
    def issue_cost():
        st['pipe'] = max(st['pipe'], st['clk']) + (LT if 'v0' not in s.marks else CFG['LT2']); st['clk'] += 16
        return st['pipe'] + LAT
    def try_load(step, must=None):
        for m in list(late):
            if m in s.marks: pool.extend(late.pop(m))
        if must is None and st['pipe'] - st['clk'] > (QD if 'v0' not in s.marks else CFG['QD2']): return False
        t = st['nxt']
        for g in sorted(groups):
            if g >= t and g not in st['polled']:
                prev = [x for x in groups if x < g]
                if all(x in st['checked'] for x in prev) and (st['clk'] >= groups[g][2] + toff - CFG['PLT'] or must == g):
                    poll_issue(s, sWs, sFL2, imm=groups[g][3]); st['polled'][g] = max(st['pipe'], st['clk']) + LAT; st['clk'] += 16
                    return True
                break
        for g in st['polled']:
            if g and g not in st['tch'] and g not in st['checked'] and st['clk'] >= st['polled'][g] and g - t >= CFG['TAD']:
                st['tch'].add(g); n = {8: 8, 16: 4, 20: 8, 28: 8}[g]
                touchA(g, n, groups[g][0], 'v2', 'v3')(s); log.append(f"tch{g}@{step}")
        bneed = cert.get(ring.q[0][0][0], 0) - CFG['BL'] if ring.q else 99
        aok = False
        if t < 36:
            ok = [r for r in pool if not (r in restricted and t > 26)]
            aok = bool(ok)
            if t in groups and t not in st['checked']:
                ready = t in st['polled'] and st['clk'] >= st['polled'][t] and st['clk'] >= groups[t][2] + toff and all(r in s.marks for r in groups[t][1])
                aok = aok and (ready or must == t)
        if aok and (t <= bneed or must is not None):
            if t in groups and t not in st['checked']:
                for r in groups[t][1]:
                    n = until(s, ring, F, r)
                    if n: print("   forced", n, "fillers for", r, "in", s.name)
                poll_check(s, sWs, sFL2, groups[t][0], imm=groups[t][3]); st['checked'].add(t); log.append(f"chk{t}@{step}/{st['clk']}")
            areg[t] = ok[0]; pool.remove(ok[0])
            base, off = (sA2y, ORDER[t] * 1024) if t < 28 else (sA2s, (t - 28) * 1024)
            s.e(f"s_add_u32 {sSoW}, {base}, {off & ~4095}\nbuffer_load_dwordx4 {R(areg[t],4)}, {vA16}, {sWs}, {sSoW} offen offset:{off & 4095} sc1")
            arr[t] = issue_cost(); st['nxt'] += 1; log.append(f"A{t}@{step}")
            return True
        if ring.q and must is None:
            half = ring.log[ring.q[0][0][0]][2] != 'all'
            ring.pump(s, 1); issue_cost()
            if half: st['pipe'] -= CFG['LT2'] // 2
            return True
        return False
    log = []
    V = []
    for t in range(36):
        while True:
            if try_load(t): continue
            if F and isinstance(F[0], tuple) and F[0][0] == 'hold':
                F[0] = ('tilt', t + F[0][1])
            if F and isinstance(F[0], tuple) and F[0][0] == 'tilt' and t >= F[0][1]: F.pop(0)
            if F and not (t in arr and st['clk'] >= arr[t] and not pool and st['nxt'] < 36):
                l = len(F); n0 = s.n_issued
                fill(s, F, 6, force=True)
                st['clk'] += (s.n_issued - n0) * CFG['VC']
                if len(F) < l: continue
            if t not in arr:
                assert try_load(t, must=st['nxt']); continue
            if st['clk'] < arr[t] and (st['nxt'] < 36 or ring.q):
                nclk = min(arr[t], st['clk'] + 32)
                if nclk < arr[t]:
                    st['clk'] = nclk
                    if try_load(t): continue
                    continue
            break
        st['clk'] = max(st['clk'], arr[t])
        if t == 4: until(s, ring, F, 'p1')
        for ct in range(2):
            acc = (YA if t < 28 else SA)[ct]
            cin = "0" if t in (0, 28) else R(acc, 16)
            s.e(f"{MF} {R(acc,16)}, {R(breg(t)+4*ct,4)}, {R(areg[t],4)}, {cin}")
        st['clk'] += 128
        pool.append(areg[t])
        if 2 <= t <= 7: pool += [XA + 8 * t, XA + 8 * t + 4]
        if t + 1 in bars:
            if t + 1 == 8:
                n = until(s, ring, F, 'vbar')
                if n: print("   forced", n, "fillers before a8 in", s.name)
            bar(s, ring, f"a{t+1}", bars[t + 1][0], bars[t + 1][1], lg0=True); log.append(f"|a{t+1}/{st['clk']}")
        if NR <= t + 1 < 36: bread(ring, ch, t + 1)(s)
        if t == 26: assert not F, F
        if t == 27:
            stamp('yend')(s)
            ys = [ring.free.pop(0) for _ in range(3)]
            xwrite(s, YA, ys, OWNY, ch)
            drain(s, ["v_permlane32_swap_b32 v16, v18", "v_permlane32_swap_b32 v17, v19"])
            for j in range(4): drain(s, [f"v_lshlrev_b32 v{XT+24+2*j}, 16, v{16+j}", f"v_and_b32 v{XT+25+2*j}, 0xffff0000, v{16+j}"])
        if t == 29:
            rdl, V = xread(ys, OWNY, XT)
            drain(s, rdl)
            for j in range(8): V.append(f"v_mul_f32 v{XT+j}, 0xbfb8aa3b, v{OWNY+j}")
            for j in range(8): V.append(f"v_exp_f32 v{XT+j}, v{XT+j}")
            for j in range(8): V.append(f"v_add_f32 v{XT+j}, 1.0, v{XT+j}")
            for j in range(8): V.append(f"v_rcp_f32 v{XT+j}, v{XT+j}")
            for j in range(8): V.append(f"v_mul_f32 v{OWNY+j}, v{OWNY+j}, v{XT+j}")
        if 30 <= t < 35:
            drain(s, V[:CFG['TV']]); V = V[CFG['TV']:]
    print("   sched", s.name, " ".join(log), "end", st['clk'])
    stamp('send')(s)
    ss = [ring.free.pop(0) for _ in range(2)] + [9]
    xwrite(s, SA, ss, OWNS, ch)
    drain(s, V)
    s.wait(lg=0); s.e("s_barrier")
    rdl, V = xread(ss, OWNS, XT)
    drain(s, rdl + V)
    for j in range(8): s.e(f"v_fma_f32 v{OWNS+j}, v{OWNS+j}, v{OWNY+j}, v{XT+24+j}")
    for j in range(4): s.e(f"v_cvt_pk_bf16_f32 v{16+j}, v{OWNS+2*j}, v{OWNS+2*j+1}")
    s.e("v_permlane32_swap_b32 v16, v18\nv_permlane32_swap_b32 v17, v19")
    s.e(f"buffer_store_dwordx4 v[16:19], v20, {sOut}, {sUC} offen")
    stamp('st')(s)
    if PROFILE:
        s.raw("s_waitcnt vmcnt(0) lgkmcnt(0)")
        stamp("end")(s)
        s.raw("s_waitcnt lgkmcnt(0)")
        n = len(s.snames)
        for i in (n - 2, n - 1): s.raw(f"v_writelane_b32 v29, s{STAMP0+2*(i%4)}, {i}")
        s.e(f"v_subrev_u32 v29, s96, v29\nv_lshlrev_b32 v16, 2, v0")
        s.raw("s_memrealtime s[84:85]\ns_waitcnt lgkmcnt(0)\nv_writelane_b32 v29, s58, 62\nv_writelane_b32 v29, s84, 63")
        s.e(f"s_lshl_b32 s3, {sBID}, 11\ns_lshl_b32 s4, {sW}, 8\ns_add_u32 s3, s3, s4\ns_add_u32 s3, s3, {PROF_OFF}")
        s.e(f"buffer_store_dword v29, v16, {sWs}, s3 offen")
        if CFG.get('DBG') is not None:
            lab = label()
            s.e(f"s_cmp_lg_u32 {sBID}, {CFG['DBG']}\ns_cbranch_scc1 {lab}\ns_cmp_lg_u32 {sW}, 0\ns_cbranch_scc1 {lab}")
            idx = list(range(n - 1, -1, -3))[:16][::-1]
            for k, i in enumerate(idx):
                s.raw(f"v_readlane_b32 s4, v29, {i}\ns_nop 1\nv_mov_b32 v17, s4\nbuffer_store_dword v17, {vFO}, {sDbg}, 0 offen offset:{4*k}\ns_nop 1")
            s.e(f"{lab}:")
            if s.name in ('A0', 'B0'): print("DBG", s.name, [s.snames[i] for i in idx])
        open(f"snames_{s.name}.txt", "w").write(" ".join(s.snames))
    if CFG.get('PADAT') == 'end': pad(s, CFG['PADUS'])
    s.e("s_endpgm")
    s.slots = (dict(ring.slot), ys, ss)
    print("   ring", s.name, " ".join(f"{k}:{v[0]}>{v[1]}" for k, v in ring.log.items()))

SCR_DUM = SCR + 15360
def touchB(s):
    if not CFG['TB']: return
    s.e(f"s_lshl_b32 s4, {sBID}, 3\ns_add_u32 s4, s4, {sW}\ns_mul_i32 s5, s4, 896\ns_lshl_b32 s4, s4, 8\ns_mov_b32 m0, {SCR_DUM}")
    s.e(f"v_min_u32 {vT}, 6, v0\nv_lshlrev_b32 {vT}, 7, {vT}")
    s.e(f"buffer_load_dword {vT}, {sW2}, s5 offen lds")
    s.e(f"v_min_u32 {vT}, 1, v0\nv_lshlrev_b32 {vT}, 7, {vT}")
    s.e(f"buffer_load_dword {vT}, {sWo}, s4 offen lds")
def touchW(s):
    if not CFG['TW']: return
    s.e(f"s_lshl_b32 s4, {sBID}, 3\ns_add_u32 s4, s4, {sW}\ns_mul_i32 s5, s4, 896\ns_mul_i32 s4, s4, 768\ns_mov_b32 m0, {SCR_DUM}")
    s.e(f"v_min_u32 {vT}, 6, v0\nv_lshlrev_b32 {vT}, 7, {vT}")
    s.e(f"buffer_load_dword {vT}, {sW1}, s5 offen lds")
    s.e(f"v_min_u32 {vT}, 5, v0\nv_lshlrev_b32 {vT}, 7, {vT}")
    s.e(f"buffer_load_dword {vT}, {sWq}, s4 offen lds")
def touch2(c, hf=None):
    def f(s):
        if c == 0 and not hf:
            if hf is None: s.e(f"s_lshl_b32 s4, s87, 3")
            else: s.e(f"s_lshr_b32 s4, s87, 4\ns_lshl_b32 s4, s4, 3\ns_and_b32 s5, s87, 7\ns_add_u32 s4, s4, s5\ns_lshl_b32 s4, s4, 3")
            s.e(f"s_add_u32 s4, s4, {sW}\ns_lshr_b32 s5, s4, 6\ns_and_b32 s4, s4, 63\ns_lshl_b32 s4, s4, 10\n"
                f"s_mul_i32 s90, s5, {448*1024}\ns_add_u32 s90, s90, s4\ns_lshl_b32 s91, s5, 17\ns_add_u32 s91, s91, s4")
        s.e(f"s_mov_b32 m0, {SCR_DUM}")
        h = hf or 0
        if c < 7: s.e(f"s_add_u32 {sSoW}, s90, {ORDER[4*c]*16384 + h*896*1024}\nbuffer_load_dwordx4 {vA16}, {sW2}, {sSoW} offen lds")
        else: s.e(f"s_add_u32 {sSoW}, s91, {(c-7)*65536 + h*256*1024}\nbuffer_load_dwordx4 {vA16}, {sWo}, {sSoW} offen lds")
    return f
def touch3(c, ch):
    def f(s):
        wv = CFG['T3W'][c]
        if wv // 4 != ch: return
        lab = label()
        s.e(f"s_cmp_lg_u32 {sW}, {wv}\ns_cbranch_scc1 {lab}")
        mul = 448 * 1024 if c < 7 else 128 * 1024
        off = ORDER[4 * c] * 16384 if c < 7 else (c - 7) * 65536
        s.e(f"s_lshr_b32 s90, s87, 3\ns_mul_i32 s90, s90, {mul}\ns_and_b32 s91, s87, 7\ns_lshl_b32 s91, s91, 13\ns_add_u32 s90, s90, s91\ns_add_u32 s90, s90, {off}\ns_mov_b32 m0, {SCR_DUM}")
        s.e(f"v_lshlrev_b32 v{CSA+3}, 7, v0")
        s.raw(f"buffer_load_dword v{CSA+3}, {sW2 if c < 7 else sWo}, s90 offen lds")
        s.e(f"{lab}:")
    return f
def add_touch(segs, typ):
    if CFG['T2'] == 3:
        for c, at in enumerate(CFG['T2AT']): segs[at // 32].posts.setdefault(at % 32, []).append(touch3(c, segs[0].ch))
    for c, at in enumerate(CFG['T2AT']):
        if CFG['T2'] == 1: segs[at // 32].posts.setdefault(at % 32, []).append(touch2(c))
        if CFG['T2'] == 2 and typ == 'A':
            segs[at // 32].posts.setdefault(at % 32, []).append(touch2(c, 0))
            segs[(at + 2) // 32].posts.setdefault((at + 2) % 32, []).append(touch2(c, 1))

def touchA(t0, n, mask, T, T2, vp=vPoll):
    def f(s):
        if not CFG['TA']: return
        lab = label()
        s.e(f"v_min_u32 {T}, {n-1}, v0")
        if t0 < 28 and n > 4:
            d = ORDER[t0 + 4] - ORDER[t0] - 4
            s.e(f"v_lshrrev_b32 {T2}, 2, {T}\nv_mul_u32_u24 {T2}, {d}, {T2}\nv_add_u32 {T}, {T}, {T2}")
        off = ORDER[t0] * 1024 if t0 < 28 else 0
        s.e(f"v_lshlrev_b32 {T}, 10, {T}\ns_lshl_b32 {sSoW}, {sCB}, 7\ns_add_u32 {sSoW}, {sSoW}, {sA2y if t0 < 28 else sA2s}\ns_add_u32 {sSoW}, {sSoW}, {off}\ns_mov_b32 m0, {SCR_DUM}")
        s.e(f"v_cmp_ne_u32 vcc, 0, {vp}\ns_andn2_b32 {sT0}, {mask:#x}, vcc_lo\ns_cbranch_scc1 {lab}")
        s.raw(f"buffer_load_dword {T}, {sWs}, {sSoW} offen sc1 lds")
        s.e(f"{lab}:")
    return f

def ilv(st, co):
    out = st[:3] + co[:3] + [st[3]]
    a, b = st[4:], co[3:-1]
    while a or b:
        if a: out.append(a.pop(0))
        if a and len(a) > 2 * len(b): out.append(a.pop(0))
        if b: out.append(b.pop(0))
    return out + co[-1:]
def p0_items(a, b):
    it = []
    for c in range(4): it += x_items(c) + [a[c]]
    return it + b
def packin(acc): return [f"v_cvt_pk_bf16_f32 v{acc+j}, v{acc+2*j}, v{acc+2*j+1}" for j in range(8)]
def N(n, lo, hi): return [f"{n}{c}" for c in range(lo, hi)]
initchk = lambda s: poll_check(s, sDbg, "0", 0xffffffff, imm=128)
pollA = lambda s: poll_issue(s, sWs, sFL2)

def stream_A(s0, ch):
    CB, DB = CFG['CB'], CFG['DB']
    s = s0.fork(f"A{ch}"); s.e(f"L_typeA{ch}:")
    bl = unit_bases(s, 'A')
    items = p0_items(w_items("K", sWq, vDq, sUA, 3072), w_items("V", sWq, vDq, sUB, 3072)) + w_items("H", sW1, vD1, sUC, 3584) + b_items(0)
    ring = Ring(items, range(9), ch); ring.hold = ('XL3', 'XH3'); ring.upto0 = "V3"
    start(s, ring, bl)
    s.e(f"s_lshl_b32 {sSCRW}, {sW}, 12\ns_add_u32 {sSCRW}, {sSCRW}, {2*SLOT}")
    s.marks.update(f1=1, f2=1, fo=1)
    uK = dict(name="K", acc=ACC_A, trans=True, kind='w', csi=0)
    uV = dict(name="V", acc=ACC_B, trans=False, kind='w', csi=1)
    uH = dict(name="H", acc=ACC_C, trans=True, kind='w', csi=0)
    F = [('wait', 'c1')] + ilv(stats_fin(PT), correct(uK, ch, PT + 8))
    F += ["v_lshrrev_b32 v26, 5, v0", "v_lshlrev_b32 v26, 1, v26", "v_bfe_u32 v25, v0, 1, 2", "v_xor_b32 v26, v25, v26", f"v_lshlrev_b32 v25, 4, {vP4}", "v_lshl_add_u32 v25, v26, 4, v25",
          f"v_add_u32 v25, {sSCRW}, v25", "v_xor_b32 v24, 16, v25", initchk]
    F += packin(ACC_A)
    F += [f"{MF} {R(PT,16)}, {R(PHI,4)}, {R(ACC_A,4)}, 0", f"{MF} {R(ACC_C,16)}, {R(PHI+4,4)}, {R(ACC_A+4,4)}, 0", ('gap', 12)]
    for h, P in enumerate((PT, ACC_C)):
        if h == 1 and CFG['PKA']:
            sm = softmax_pk(P, ACC_A + 8, "v26", vT, PHI); F += sm[:9] + [('wait', 'c2')] + sm[9:]
        else: F += softmax(P, ACC_A + 8, "v26", vT)
        F += [f"ds_write_b128 v25, {R(ACC_A+8,4)} offset:{2048*h}", f"ds_write_b128 v24, {R(ACC_A+12,4)} offset:{2048*h}"]
    F += [('wait', 'c2')]
    F += ["v_lshrrev_b32 v26, 5, v0", "v_lshlrev_b32 v26, 4, v26", blk(f"s_lshl_b32 s4, {sRT}, 7\ns_add_u32 s4, s4, {SCR_RS}\nv_add_u32 {vT}, s4, v26")]
    for q in range(4): F.append(f"ds_read_b128 {R(PT+4*q,4)}, {vT} offset:{32*q}")
    F += ["v_bfe_u32 v25, v0, 2, 2", "v_lshlrev_b32 v25, 6, v25", "v_lshl_add_u32 v25, v26, 4, v25", f"v_bfe_u32 {vT}, v0, 4, 1", f"v_cmp_eq_u32 s[94:95], 1, {vT}",
          "v_lshrrev_b32 v24, 5, v0", f"v_xor_b32 {vT}, v24, {vT}", f"v_lshl_add_u32 v25, {vT}, 5, v25",
          "v_lshrrev_b32 v24, 2, v0", "v_xor_b32 v24, v24, v0", "v_bfe_u32 v24, v24, 1, 1", "v_lshl_add_u32 v25, v24, 4, v25",
          f"v_and_b32 {vT}, 1, v0", f"v_lshl_add_u32 v25, {vT}, 3, v25", f"v_add_u32 v25, {sSCRW}, v25", f"v_mov_b32 {vT}, {sC11}"]
    for t in range(2):
        for rd in range(2): F.append(f"ds_read_b64_tr_b16 {R(PHI+4*t+2*rd,2)}, v25 offset:{2048 + t*1024 + rd*512}")
    F += [pk2("mul", ACC_B + r, ACC_B + r, PT + r) for r in range(0, 16, 2)] if CFG['PKA'] else [f"v_mul_f32 v{ACC_B+r}, v{ACC_B+r}, v{PT+r}" for r in range(16)]
    F += packin(ACC_B)
    for t in range(2):
        for rd in range(2): F.append(f"ds_read_b64_tr_b16 {R(ACC_B+8+4*t+2*rd,2)}, v25 offset:{t*1024 + rd*512}")
    for j in range(8): F.append(f"v_cndmask_b32 v{ACC_A+8+j}, {vT}, v{ACC_B+j}, s[94:95]")
    for j in range(8): F.append(f"v_cndmask_b32 v{ACC_A+j}, v{ACC_B+j}, {vT}, s[94:95]")
    F += [f"{MF} {R(PT,16)}, {R(ACC_A,4)}, {R(ACC_B+8,4)}, 0", f"{MF} {R(PT,16)}, {R(ACC_A+4,4)}, {R(ACC_B+12,4)}, {R(PT,16)}",
          f"{MF} {R(ACC_B,16)}, {R(ACC_A+8,4)}, {R(PHI,4)}, 0", f"{MF} {R(ACC_B,16)}, {R(ACC_A+12,4)}, {R(PHI+4,4)}, {R(ACC_B,16)}"]
    F += [f"v_add_u32 v25, {sSCRW}, {vA16}", blk(f"s_lshl_b32 s4, {sW}, 9\ns_add_u32 s4, s4, {SCR_Z}\nv_lshlrev_b32 v26, 2, v0\nv_add_u32 v26, s4, v26")]
    F += [f"ds_write_b128 v25, {R(PT,4)}", f"ds_write_b128 v25, {R(PT+4,4)} offset:1024", f"ds_write_b32 v26, v{PT+8}",
          f"ds_write_b128 v25, {R(ACC_B+8,4)} offset:2048", f"ds_write_b128 v25, {R(ACC_B+12,4)} offset:3072", f"ds_write_b32 v26, v{ACC_B} offset:256"]
    F += [blk(f"s_lshl_b32 s4, {sRT}, 10\ns_add_u32 s4, s4, {2*SLOT + ch*SLOT}\nv_add_u32 v25, s4, {vA16}"),
          blk(f"s_lshr_b32 s4, {sRT}, 1\ns_lshl_b32 s4, s4, 8\ns_add_u32 s4, s4, {SCR_Z + ch*2048}\nv_add_u32 v26, s4, {vP4}"), mark('kvw')]
    ER = [f"ds_read_b128 {R(PT+4*r,4)}, v25 offset:{r*4096}" for r in range(4)] + [f"ds_read_b32 v{ACC_A+r}, v26 offset:{r*512}" for r in range(4)]
    ER += ["v_lshrrev_b32 v25, 5, v0", f"v_lshl_add_u32 v25, v25, 9, {vP4}", blk(f"s_lshl_b32 s5, {sRT2}, 10\nv_add_u32 v25, s5, v25"),
           f"v_lshrrev_b32 {vT}, 4, v0", f"v_cmp_eq_u32 s[94:95], {sRT2}, {vT}", f"v_mov_b32 {vT}, {BIG}",
           blk(f"s_and_b32 s5, {sG}, 1\ns_mul_i32 s5, s5, {10*1024}\ns_add_u32 s5, s5, {ch*2048}\ns_add_u32 {sUD}, {sKS}, s5\ns_lshl_b32 s4, {sI}, 7\ns_add_u32 {sKVF}, {sKVF}, s4"),
           f"v_cndmask_b32 v26, {vT}, {vP4}, s[94:95]"]
    for j in range(4): ER += [f"v_add_f32 v{PT+j}, v{PT+j}, v{PT+4+j}", f"v_add_f32 v{PT+8+j}, v{PT+8+j}, v{PT+12+j}"]
    for j in range(4): ER.append(f"v_add_f32 v{PT+j}, v{PT+j}, v{PT+8+j}")
    ER += [f"v_add_f32 v{ACC_A}, v{ACC_A}, v{ACC_A+1}", f"v_add_f32 v{ACC_A+2}, v{ACC_A+2}, v{ACC_A+3}", f"v_add_f32 v{ACC_A}, v{ACC_A}, v{ACC_A+2}"]
    for j in range(4): ER.append((f"buffer_atomic_add_f32 v{PT+j}, v25, {sWs}, {sKVs} offen offset:{j*128}", "kv"))
    ER += [(f"buffer_atomic_add_f32 v{ACC_A}, v26, {sWs}, {sKVs} offen offset:2048", "kv"), stamp('kvat')]
    EH = correct(uH, ch, PHI, BI0) + fin_setup() + (mish_pk if CFG['PK'] else mish)(ACC_C, PT + 8, sUD, "actA")
    fkv = flag_store("kv", sKVF, 0, 'fkv'); f3 = flag_store("actA", sFL, 2 * 128, 'f3')
    pr = lambda c: [bnm(0, c), bnm(1, c)]
    m0 = pass0(s, ring, uK, ch, bl, "V3", ["V0"])
    mV = MSeg(ring, uV, ch, {CB: [B(ring, "c1", ["V1", "V2"], ["K3"])], DB: [B(ring, "d1", ["V3", "H0"], N("V", 0, 2))]}, dma=CFG['ST'])
    mH = MSeg(ring, uH, ch, {DB: [B(ring, "h2", ["H3"] + pr(0), N("H", 0, 2), extra=[2, 3])]},
              {18: [lambda s: drain(s, p2_setup(ring))], 22: pull(ring, ch, 0)[:2], 24: pull(ring, ch, 0)[2:], 27: [pollA], CFG['KVW']: [fkv]}, dma=CFG['ST'])
    m0.posts.setdefault(29, []).append(lambda s: drain(s, phi_frags()))
    add_touch([m0, mV, mH], 'A')
    m0.run(s, mV); mV.run(s, None, F, CFG['KB'] + CFG['KD'] * (1 - 2 * ch))
    bar(s, ring, "c2", [], N("V", 2, 4), lg0=True)
    print("   A V-only block:", len(F))
    VB_ = correct(uV, ch, WB) + F + [mH.pre]
    if CFG.get('VST'):
        for k in range(len(VB_) // 12 * 12, 0, -12): VB_.insert(k, stamp(f"v{k}"))
    vseg(s, ring, VB_, flush=False)
    bar(s, ring, "d2", ["H1", "H2"])
    F = list(ER)
    mH.run(s, None, F, CFG['VB'])
    assert not F
    bar(s, ring, "e1", pr(1), N("H", 2, 4) + pr(0), lg0=True)
    drain(s, pull(ring, ch, 1))
    ring.rel8 = pr(1)
    s.marks.update(vbar=1, p1=1)
    F = EH + [mark('v1'), mark('v0'), ('hold', CFG['F3G']), f3]
    aphase(s, ring, ch, F, list(range(36, 64, 4)) + list(range(80, 96, 4)) + [100, 120, 124], {'v1': [104, 108, 112, 116]}, CFG['TOFF'])
    return s

def stream_B(s0, ch):
    CB, DB = CFG['CB'], CFG['DB']
    s = s0.fork(f"B{ch}"); s.e(f"L_typeB{ch}:")
    bl = unit_bases(s, 'B')
    H5 = [(f"F{c}", sW1, vD5, sUD, 0, 16 * 3584, 0, 128 * 3584, lambda hf, c=c: 2 * c + hf) for c in range(2)]
    items = p0_items(w_items("U", sW1, vD1, sUA, 3584), w_items("Y", sW1, vD1, sUB, 3584)) + H5 + w_items("Q", sWq, vDq, sUC, 3072) + b_items(1)
    ring = Ring(items, range(9), ch); ring.upto0 = "Y3"
    start(s, ring, bl)
    s.e(f"s_and_b32 s5, {sG}, 1\ns_cmp_eq_u32 s5, 0\ns_cselect_b32 s5, 4, 2\ns_cselect_b32 s4, {12*1024}, 0\ns_lshl_b32 s5, s5, 10\n"
        f"s_add_u32 {sSCRW}, {sKS}, s4\ns_add_u32 s5, s5, {ch*2048}\ns_add_u32 {sKS}, {sKS}, s5")
    uU = dict(name="U", acc=ACC_A, trans=True, kind='w', csi=0)
    uY = dict(name="Y", acc=ACC_B, trans=True, kind='w', csi=1)
    uF = dict(name="F", acc=ACC_C, trans=True, kind='h5', csi=0)
    uQ = dict(name="Q", acc=ACC_A, trans=True, kind='w', csi=1)
    EU = ilv(stats_fin(PT), correct(uU, ch, PT + 8, BI0)) + [initchk, ('gap', 10)] + mish(ACC_A, PT, sKS, "act1") + [f"s_add_u32 {sKS}, {sKS}, 4096"]
    EY = correct(uY, ch, PT + 8, BI1) + [mark('b1dead'), ('gap', 16)] + mish(ACC_B, PT, sKS, "act2")
    EF = correct(uF, ch, PT + 8, BI2) + [('gap', 16)] + mish(ACC_C, PT, sSCRW, "act5")
    EQ = correct(uQ, ch, PT + 12) + phi_frags() + pack16(ACC_A, PK)
    EQ += [f"{MF} {R(PT,16)}, {R(PHI,4)}, {R(PK,4)}, 0", f"{MF} {R(ACC_B,16)}, {R(PHI+4,4)}, {R(PK+4,4)}, 0"] + fin_setup()
    if CFG['PK']: EQ += softmax_pk(PT, ACC_A, "v26", vT, PHI) + softmax_pk(ACC_B, ACC_A + 8, "v26", vT, PHI)
    else: EQ += softmax(PT, ACC_A, "v26", vT) + softmax(ACC_B, ACC_A + 8, "v26", vT)
    f1 = flag_store("act1", sFL, 0, 'f1'); f2 = flag_store("act2", sFL, 128, 'f2'); f3 = flag_store("act5", sFL, 3 * 128, 'f3')
    pr = lambda c: [bnm(0, c), bnm(1, c)]
    FG = ('gap', CFG['FG'])
    F = [('wait', 'c1')] + EU + [mark('m1'), ('wait', 'c2')] + split(EY, 0.6, f1) + [mark('m2')]
    if ch == 0: F += [('wait', 'c3')] + split(EF, 0.6, f2) + [mark('m3')]
    else: F += [FG, f2, mark('m3'), mark('f3')]
    m0 = pass0(s, ring, uU, ch, bl, "Y3", ["Y0"])
    mY = MSeg(ring, uY, ch, {CB: [B(ring, "c1", ["Y1", "Y2"], ["U3"])], DB: [B(ring, "d1", ["Y3", "F0"], N("Y", 0, 2))]}, dma=CFG['ST'])
    c2 = B(ring, "c2", ["F1", "Q0"], N("Y", 2, 4), owner=1)
    mQ = MSeg(ring, uQ, ch, {CB: [B(ring, "c3", ["Q1", "Q2"], ["F0", "F1"])], DB: [B(ring, "d3", ["Q3"] + pr(0), N("Q", 0, 2))]},
              {15: [lambda s: (until(s, ring, F, 'b1dead'), drain(s, p2_setup(ring)))], 22: pull(ring, ch, 0)[:2], 24: pull(ring, ch, 0)[2:], CFG['TAP']: [pollA], CFG['TAT']: [touchA(0, 8, 0xf, 'v160', 'v161')], 27: [pollA]}, dma=CFG['ST'])
    add_touch([m0, mY, mQ], 'B')
    m0.run(s, mY)
    if ch == 0:
        mF = MSeg(ring, uF, ch, {CB: [c2]}, dma=CFG['ST'] // 2)
        mY.run(s, mF, F, CFG['P1B'] + CFG['PD']); mF.run(s, mQ, F, CFG['FB'])
    else:
        mY.run(s, None, F, CFG['P1B'] - CFG['PD']); c2(s); vrun(s, ring, F, CFG['IB']); mQ.pre(s)
    print("   B forced m1:", until(s, ring, F, 'm1'))
    mQ.run(s, None, F, CFG['QB'][ch])
    KS, OD, OD2, OF, OP = WB, PT, ACC_B, PHI, PK
    def kvfetch(s):
        poll_check(s, sWs, sKVF, 0xffff, vPoll2, vo="v21")
        s.e(f"s_lshl_b32 s5, {sRT2}, 10\ns_add_u32 s5, s5, {sKVs}")
        s.e(f"buffer_load_dwordx4 {R(KS,4)}, {vA16}, {sWs}, s5 offen sc1")
        s.e(f"v_and_b32 v21, 3, v0\nv_lshlrev_b32 v21, 4, v21\ns_lshl_b32 s5, {sRT2}, 6\ns_add_u32 s5, s5, {sKVs}")
        s.e(f"buffer_load_dwordx4 {R(KS+4,4)}, v21, {sWs}, s5 offen offset:2048 sc1")
    IM = [f"v_cvt_pk_bf16_f32 v{KS}, v{KS}, v{KS+1}", f"v_cvt_pk_bf16_f32 v{KS+1}, v{KS+2}, v{KS+3}",
          f"v_cvt_pk_bf16_f32 v{KS+4}, v{KS+4}, v{KS+5}", f"v_cvt_pk_bf16_f32 v{KS+5}, v{KS+6}, v{KS+7}",
          blk(f"s_mul_i32 s5, {sKQ}, 1088\ns_add_u32 s5, s5, {SCR_KV}\ns_lshl_b32 s4, {sRT2}, 9\ns_add_u32 s4, s4, s5\nv_lshlrev_b32 v25, 3, v0\nv_add_u32 v25, s4, v25\n"
              f"ds_write_b64 v25, {R(KS,2)}\ns_lshl_b32 s4, {sRT2}, 5\ns_add_u32 s4, s4, s5\nv_lshrrev_b32 v21, 1, v21\nv_add_u32 v21, s4, v21\nds_write_b64 v21, {R(KS+4,2)} offset:1024"),
          f"v_min_u32 v25, 64, {vP4}", "v_lshlrev_b32 v25, 4, v25", "v_lshrrev_b32 v26, 5, v0", "v_lshl_add_u32 v25, v26, 5, v25",
          blk(f"v_add_u32 v25, {SCR_KV + ch*2176}, v25\ns_lshl_b32 s5, {sG}, 12\ns_add_u32 s5, s5, {sAF}\ns_add_u32 {sSCRW}, s5, {112*1024 + ch*2048}")]
    O = [f"ds_read_b128 {R(OF,4)}, v25", f"ds_read_b128 {R(OF+4,4)}, v25 offset:16", f"ds_read_b128 {R(OP,4)}, v25 offset:1088", f"ds_read_b128 {R(OP+4,4)}, v25 offset:1104"]
    O += [f"{MF} {R(OD,16)}, {R(OF,4)}, {R(ACC_A,4)}, 0", f"{MF} {R(OD,16)}, {R(OF+4,4)}, {R(ACC_A+4,4)}, {R(OD,16)}",
          f"{MF} {R(OD2,16)}, {R(OP,4)}, {R(ACC_A+8,4)}, 0", f"{MF} {R(OD2,16)}, {R(OP+4,4)}, {R(ACC_A+12,4)}, {R(OD2,16)}"]
    for h, D in enumerate((OD, OD2)):
        O += [f"v_add_f32 v26, 0x358637bd, v{D+8}", "v_rcp_f32 v26, v26"]
        for j in range(8): O.append(f"v_mul_f32 v{D+j}, v{D+j}, v26")
        for j in range(4): O.append(f"v_cvt_pk_bf16_f32 v{ACC_A+4*h+j}, v{D+2*j}, v{D+2*j+1}")
        O.append((f"buffer_store_dwordx4 {R(ACC_A+4*h,4)}, {vA16}, {sWs}, {sSCRW} offen offset:{h*1024} sc1", "o"))
    O.append(stamp('ost'))
    bar(s, ring, "e1", pr(1), N("Q", 2, 4) + pr(0), lg0=True)
    drain(s, pull(ring, ch, 1)); s.marks['p1'] = 1
    ring.rel8 = []
    def ins(L, back, item): return L[:len(L) - back] + [item] + L[len(L) - back:]
    F2 = F + EQ
    if ch == 0: F2 = ins(F2, 110, f3)
    kp = lambda s: (s.e("v_min_u32 v21, 15, v0\nv_lshlrev_b32 v21, 7, v21"), poll_issue(s, sWs, sKVF, vPoll2, vo="v21"))
    K1, K2, K3 = CFG['KS']
    if CFG['KM'] == 0:
        F2 = ins(ins(F2, CFG['KP'], kp), CFG['KF'], kvfetch)
        F2 += IM + [B(ring, "e2", [], pr(1), lg0=True), mark('vbar')] + O + [mark('v1'), mark('v0'), ('hold', CFG['OW']), flag_store("o", sFL, 4 * 128, 'fo')]
    else: F2 += [mark('v0'), mark('vbar'), ('tilt', K1), kp, ('tilt', K2), kvfetch, ('tilt', K3)] + IM + [('nextbar',)] + O + [mark('v1'), ('hold', CFG['OW']), flag_store("o", sFL, 4 * 128, 'fo')]
    ring.rel8 = pr(1) if CFG['KM'] else []
    aphase(s, ring, ch, F2, [88, 92], {'f3': [64, 68, 72, 76], 'v1': [80, 84] + list(range(40, 64, 4)) + list(range(96, 128, 4))}, 0)
    return s

def build(path, listform=True):
    s0 = Stream("P")
    if PROFILE: s0.e("s_memtime s[96:97]\ns_memrealtime s[58:59]")
    s0.e("s_memrealtime s[58:59]")
    prologue(s0)
    s0.e(f"s_lshl_b32 s5, {sTY}, 1\ns_add_u32 s5, s5, {sCH}\ns_cmp_eq_u32 s5, 0\ns_cbranch_scc1 L_typeA0\ns_cmp_eq_u32 s5, 1\ns_cbranch_scc1 L_typeA1\ns_cmp_eq_u32 s5, 3\ns_cbranch_scc1 L_typeB1")
    B0 = stream_B(s0, 0); B1 = stream_B(s0, 1); A0 = stream_A(s0, 0); A1 = stream_A(s0, 1)
    assert B0.nbar == B1.nbar and A0.nbar == A1.nbar
    assert B0.slots == B1.slots and A0.slots == A1.slots
    hdr = open("recurrent_scan__linear_kernel_hedgehog__dense_activation_mish__prompt.s.ref").read().split("; Override")[0]
    T = [hdr.rstrip(), f"; @launch {'kernel=' + KNAME + ' ' if listform else ''}grid=(256,1,1) block=(512,1,1) lds=163840",
         '.amdgcn_target "amdgcn-amd-amdhsa--gfx950"', ".text", f".globl {KNAME}", ".p2align 8", f".type {KNAME},@function", f"{KNAME}:"]
    S = [s0, B0, B1, A0, A1]
    for st in S:
        T.append(f"; ---- stream {st.name}  nops={st.stats['nop']} waits={st.stats['wait']} barriers={st.nbar}")
        T.append(st.text())
    for st in S: T += st.ool
    T.append("L_end:\n  s_endpgm")
    T.append(".fill 6144, 4, 0xbf800000")
    T.append(f'''.section .rodata,"a"
.p2align 6
.amdhsa_kernel {KNAME}
  .amdhsa_next_free_vgpr 256
  .amdhsa_next_free_sgpr 102
  .amdhsa_accum_offset 256
  .amdhsa_group_segment_fixed_size 0
  .amdhsa_kernarg_size 88
  .amdhsa_user_sgpr_count 2
  .amdhsa_user_sgpr_kernarg_segment_ptr 1
  .amdhsa_system_sgpr_workgroup_id_x 1
.end_amdhsa_kernel''')
    open(path, "w").write("\n".join(T) + "\n")
    for st in S: print(st.name, "instrs", len(st.out), st.stats, "barriers", st.nbar)

if __name__ == "__main__":
    for a in sys.argv[2:]:
        if a == "prof": PROFILE = True
        elif '=' in a:
            k, v = a.split('='); CFG[k] = eval(v)
    build(sys.argv[1], listform=("final" not in sys.argv))
```

```python
import sys
sys.path.insert(0, 'gen')
from ab import *

KNAME = "recurrent_scan__linear_kernel_hedgehog__dense_activation_mish__prompt_kernel"
PROFILE = False
SLOT = 16384
SCR = 9 * SLOT
SCR_PHI = SCR
SCR_RS = SCR + 2048
SCR_ST = SCR + 2560
SCR_CS = SCR + 6656
SCR_Z = SCR + 10752
SCR_KV = SCR + 10752
Z_OFF = 0x900000
KV_OFF = Z_OFF
KVFLAG_OFF = Z_OFF + 0x40000
ACTFLAG_OFF = Z_OFF + 0x16000
PROF_OFF = 0xA00000
BIG = 0x40000000
CFG = dict(AD=16, A0=8, AN=2, BN=1, G8=1, F3G=4, PB=[(200, 40), (80, 55), (80, 40)], SLP=8, PVL=60, PSA=[(3, 7), (11, 14), (18, 21)], PSB=[(0, 1), (5, 8), (11, 15)], PB2=3, YB=31, PKT=1, MIX=0, MG=300, EB=0, EA=1, PKH=1, T3W=[0, 1, 2, 3, 0, 1, 2, 3, 0], OWN='', KD=0, PD=0, UP=[0, 0, 0, 0, 1, 2, 2], PAR=2, FB4=0, PKA=1, PK=0, KM=0, KVW=16, KS=(0, 5, 10), KVP=12, TAP=8, TAT=20, TAD=2, CB=6, DB=22, TW=1, TWT=2, GT=[2000, 4000, 5500, 500], TOFF=-1000, LT=200, LT2=200, QD2=800, LAT=900, QD=800, PLT=1500, BL=6, VC=9, T2=0, T2AT=[30, 35, 40, 45, 50, 55, 60, 66, 72], PF=4, PL=4, S0=6, S1=6, PRIO=0, VD=10, KP=160, KF=110, OW=4, G16=8, G28=20, TV=10, TB=1, TBT=28, TA=0, TO=11, T0=0, T1=0, ROT=2, RATE=38, BURST=24576, ST=90,
    CRED=6, AGE=14, P1B=5, FB=5, QB=[10, 3], IB=200, KB=6, VB=8, KVG=60, EH0=60, FG=60, E1=[120, 100], E2=[100, 80])

sX, sWq, sW1, sW2, sWo, sPhi, sB1, sOut, sDbg, sWs = [f"s[{8+4*i}:{11+4*i}]" for i in range(10)]
sW, sRT, sCH, sI, sG, sTY, sRB, sCB, sKQ, sRT2 = [f"s{48+i}" for i in range(10)]
sT0 = "s3"
sC10, sC01, sC11 = "s58", "s59", "s60"
sM0W = "s61"; sSoW = "s62"
sUA, sUB, sUC, sUD = "s63", "s6", "s7", "s2"
sAF, sFL, sAF2, sFL2, sB2, sBo, sKVs, sKVF, sSCRW, sCNT, sKS, sBID = [f"s{64+i}" for i in range(12)]
sA2y, sA2s, sOo = "s0", "s1", "s5"
STAMP0 = 76

vA16 = "v1"; vDq = "v2"; vD1 = "v3"; vDB = "v4"; vD5 = "v5"
VW = 6
vRS, vRSL, vM2 = "v14", "v15", "v22"
CF = 16
BI0, BI1, BI2 = 23, 24, 25
vPoll = "v27"; vFO = "v28"; vOne = "v10"; vP4 = "v30"; vT = "v31"; vPoll2 = "v9"
ACC_A, ACC_B, ACC_C = 32, 48, 64
WB = 80; PT = 96; PHI = 112; PK = 120; XA = 128
XR = 64; XD = 72; HR = 112; STA = 96; CSB = 116; ASEL = 120; CSA = 124
sXb = "s86"; sRot = "s89"; ROT0 = 98

def R(b, n): return f"v[{b}:{b+n-1}]"
def ldsaddr(regs, byte): return regs[byte >> 16], byte & 0xffff
_nl = [0]
def label():
    _nl[0] += 1; return f"L{_nl[0]}"
def stamp(name):
    def f(s):
        if not PROFILE: return
        if not hasattr(s, 'snames'): s.snames = []
        idx = len(s.snames)
        if idx >= 61: return
        s.snames.append(str(name))
        s.e(f"s_memtime s[{STAMP0+2*(idx%4)}:{STAMP0+1+2*(idx%4)}]")
        if idx >= 2: s.raw(f"v_writelane_b32 v29, s{STAMP0+2*((idx-2)%4)}, {idx-2}")
    return f
def srd(s, dst, lo, hi, size):
    b = int(dst[2:dst.index(':')])
    s.e(f"s_mov_b32 s{b}, {lo}\ns_and_b32 s{b+1}, {hi}, 0xffff\ns_mov_b32 s{b+2}, {size}\ns_mov_b32 s{b+3}, 0x20000")
def poll_issue(s, srd_, soff, vp=vPoll, imm=0, vo=vP4):
    s.e(f"buffer_load_dword {vp}, {vo}, {srd_}, {soff} offen offset:{imm} sc1")
def poll_check(s, srd_, soff, mask, vp=vPoll, imm=0, vo=vP4):
    l1, l2, l3 = label(), label(), label()
    stamp(f"[p{imm//128}_{mask:x}")(s)
    s.e(f"v_cmp_ne_u32 vcc, 0, {vp}\ns_andn2_b32 {sT0}, {mask:#x}, vcc_lo\ns_cbranch_scc1 {l1}\n{l2}:")
    stamp(f"p]")(s)
    s.ool.append(f"""{l1}:
  s_mov_b32 {sCNT}, 0x10000
{l3}:
  s_sleep {CFG['SLP']}
  buffer_load_dword {vp}, {vo}, {srd_}, {soff} offen offset:{imm} sc1
  s_waitcnt vmcnt(0)
  v_cmp_ne_u32 vcc, 0, {vp}
  s_nop 1
  s_andn2_b32 {sT0}, {mask:#x}, vcc_lo
  s_cbranch_scc0 {l2}
  s_sub_u32 {sCNT}, {sCNT}, 1
  s_cmp_lg_u32 {sCNT}, 0
  s_cbranch_scc1 {l3}
  s_branch {l2}""")
def flag_store(tagwait, soff, imm, mark):
    def f(s):
        stamp("(" + mark)(s)
        s.wait_tag(tagwait)
        stamp(mark + ")")(s)
        s.e(f"buffer_store_dword {vOne}, {vFO}, {sWs}, {soff} offen offset:{imm} sc1")
        s.marks[mark] = 1
    return f
def blk(text): return lambda s: s.e(text)

class Ring:
    hold = ()
    def __init__(self, items, free, ch):
        self.items = list(items); self.free = list(free); self.slot = {}; self.q = []; self.log = {}; self.ch = ch
        self.order = {it[0]: k for k, it in enumerate(items)}; self.xres = True
    def release(self, name):
        if name not in self.hold: self.free.append(self.slot[name])
    def assign(self, s, owner='all', upto=None, maxn=99):
        k = 0
        while k < len(self.items) and maxn > 0:
            it = self.items[k]; nm = it[0]
            if upto is not None and self.order[nm] > self.order[upto]: break
            if nm[0] == 'X':
                want = 2 * (int(nm[2]) & 1) + (nm[1] == 'H')
                ok = [x for x in self.free if x == want]
                if not ok: k += 1; continue
            elif nm[0] in 'BF': ok = [x for x in self.free if not (self.xres and x < 4)]
            else: ok = [x for x in self.free if x != 0 and not (self.xres and x < 4)]
            if not ok:
                if nm[0] != 'B' and not self.strict: k += 1; continue
                break
            if nm[0] in 'BF' and 0 in ok: ok = [0]
            self.items.pop(k); sl = ok[0]; self.free.remove(sl); self.slot[nm] = sl; maxn -= 1
            self.log[nm] = [s.nbar, None, owner]
            if owner == 'all': self.q += [(it, sl, h, 0) for h in range(2)]
            elif owner == self.ch: self.q += [(it, sl, h, o) for o in range(2) for h in range(2)]
            if nm == 'XH3': self.xres = False
        self.q.sort(key=lambda e: self.order[e[0][0]])
    def pump(self, s, n=1):
        while n > 0 and self.q:
            it, sl, h, other = self.q.pop(0)
            name, srd_, voff, sbase, o0, o1, dl = it[:7]
            sg = (1 if self.ch == 0 else -1) * other
            vo = voff[h] if isinstance(voff, tuple) else voff
            s.e(f"s_add_u32 m0, {sM0W}, {(sl*SLOT + h*1024 + sg*8192) & 0xffffffff:#x}")
            if len(it) > 7:
                mul, cidx = it[7], it[8](self.ch if not other else 1 - self.ch)
                key = (sbase, mul, cidx)
                if self.rkey != key:
                    s.e(f"s_mul_i32 {sRot}, s{ROT0+cidx}, {mul}\ns_add_u32 {sRot}, {sRot}, {sbase}")
                    self.rkey = key
                sbase = sRot
            s.e(f"s_add_u32 {sSoW}, {sbase}, {((o0, o1)[h] + sg*dl) & 0xffffffff:#x}")
            s.e(f"buffer_load_dwordx4 {vo}, {srd_}, {sSoW} offen lds", tag=name)
            n -= 1
    rkey = None
    strict = False
    cred = 0
    def pace(self, s, cycles, mx=99):
        self.cred = min(self.cred + cycles * CFG['RATE'], CFG['BURST'])
        while self.q and mx > 0:
            mx -= 1
            e = self.q[0]
            cost = (8192 if self.log[e[0][0]][2] == 'all' else 4096) * (2 if e[0][0][0] == 'F' else 1)
            if self.cred < cost: break
            self.cred -= cost; self.pump(s, 1)
    def need(self, s, name):
        assert name in self.slot, f"{name} has no slot yet"
        while any(e[0][0] == name for e in self.q):
            print("  warning: forced DMA issue for", name, "in", s.name)
            self.pump(s)
        if self.log[name][1] is None: self.log[name][1] = s.nbar
        s.wait_tag(name)
def x_items(q):
    return [(f"XL{q}", sX, (f"v{XD}", f"v{XD+1}"), sXb, 0, 0, 32768, 256, lambda c: q), (f"XH{q}", sX, (f"v{XD}", f"v{XD+1}"), sXb, 65536, 65536, 32768, 256, lambda c: q)]
def w_items(name, srd_, voff, sbase, stride):
    return [(f"{name}{c}", srd_, voff, sbase, 0, 8 * stride, 64 * stride, 128 * stride, lambda ch, c=c: c) for c in range(4)]
ORDER = [4, 5, 6, 7, 16, 17, 18, 19, 8, 9, 10, 11, 20, 21, 22, 23, 12, 13, 14, 15, 0, 1, 2, 3, 24, 25, 26, 27]
def b_item(hf, c):
    nm = f"B{'ab'[hf]}{c}"
    if c < 7:
        o = hf * 896 * 1024 + ORDER[4 * c] * 16384
        return (nm, sW2, vDB, sB2, o, o + 8192, 448 * 1024)
    o = hf * 256 * 1024 + (c - 7) * 65536
    return (nm, sWo, vDB, sBo, o, o + 8192, 128 * 1024)
def b_items(first):
    it = []
    for c in range(9): it += [b_item(0, c), b_item(1, c)]
    return it

def mish(acc, tmp, so, tag):
    F = []
    for hb in range(2):
        a = acc + 8 * hb
        for j in range(8): F.append(f"v_mul_f32 v{tmp+j}, v{a+j}, {vRSL}")
        for j in range(8): F.append(f"v_exp_f32 v{tmp+j}, v{tmp+j}")
        for j in range(8): F.append(f"v_add_f32 v{tmp+j}, 1.0, v{tmp+j}")
        for j in range(8): F.append(f"v_fma_f32 v{tmp+j}, v{tmp+j}, v{tmp+j}, 1.0")
        for j in range(8): F.append(f"v_rcp_f32 v{tmp+j}, v{tmp+j}")
        for j in range(8): F.append(f"v_fma_f32 v{tmp+j}, v{tmp+j}, {vM2}, {vRS}")
        for j in range(8): F.append(f"v_mul_f32 v{tmp+j}, v{a+j}, v{tmp+j}")
        for j in range(4): F.append(f"v_cvt_pk_bf16_f32 v{a+j}, v{tmp+2*j}, v{tmp+2*j+1}")
        F.append((f"buffer_store_dwordx4 {R(a,4)}, {vA16}, {sWs}, {so} offen offset:{hb*1024} sc1", tag))
    return F
def bc(r):
    n = int(r[1:]); return R(n & ~1, 2), n & 1
def pk2(op, d, a, b, c=None):
    ops = [R(a, 2)]; lo = [0]; hi = [1]
    for x in (b, c):
        if x is None: continue
        if isinstance(x, int): ops.append(R(x, 2)); lo.append(0); hi.append(1)
        elif x[0] == 'v':
            p, o = bc(x); ops.append(p); lo.append(o); hi.append(o)
        else: ops.append(x); lo.append(0); hi.append(0)
    f = lambda L: "[" + ",".join(map(str, L)) + "]"
    return f"v_pk_{op}_f32 {R(d,2)}, " + ", ".join(ops) + f" op_sel:{f(lo)} op_sel_hi:{f(hi)}"
def mish_pk(acc, tmp, so, tag):
    F = []
    for hb in range(2):
        a = acc + 8 * hb; E = range(0, 8, 2)
        F += [pk2("mul", tmp + j, a + j, vRSL) for j in E] + [f"v_exp_f32 v{tmp+j}, v{tmp+j}" for j in range(8)]
        F += [pk2("add", tmp + j, tmp + j, "1.0") for j in E] + [pk2("fma", tmp + j, tmp + j, tmp + j, "1.0") for j in E]
        F += [f"v_rcp_f32 v{tmp+j}, v{tmp+j}" for j in range(8)]
        F += [pk2("fma", tmp + j, tmp + j, vM2, vRS) for j in E] + [pk2("mul", tmp + j, tmp + j, a + j) for j in E]
        F += [f"v_cvt_pk_bf16_f32 v{a+j}, v{tmp+2*j}, v{tmp+2*j+1}" for j in range(4)]
        F.append((f"buffer_store_dwordx4 {R(a,4)}, {vA16}, {sWs}, {so} offen offset:{hb*1024} sc1", tag))
    return F
def softmax_pk(P, out, t0, t1, tp):
    F = softmax(P, out, t0, t1)[:9]; E = range(0, 16, 2)
    F += [pk2("fma", P + j, P + j, vRSL, t0) for j in E] + [f"v_exp_f32 v{P+j}, v{P+j}" for j in range(16)]
    F += [pk2("add", tp, P, P + 2), pk2("add", tp + 2, P + 4, P + 6), pk2("add", tp, tp, P + 8), pk2("add", tp + 2, tp + 2, P + 10),
          pk2("add", tp, tp, P + 12), pk2("add", tp + 2, tp + 2, P + 14), pk2("add", tp, tp, tp + 2), f"v_add_f32 {t0}, v{tp}, v{tp+1}", f"v_rcp_f32 {t0}, {t0}"]
    F += [pk2("mul", P + j, P + j, t0) for j in E] + [f"v_cvt_pk_bf16_f32 v{out+j}, v{P+2*j}, v{P+2*j+1}" for j in range(8)]
    return F
def softmax(P, out, t0, t1):
    F = [f"v_max3_f32 {t0}, v{P}, v{P+1}, v{P+2}", f"v_max3_f32 {t1}, v{P+3}, v{P+4}, v{P+5}",
         f"v_max3_f32 {t0}, {t0}, v{P+6}, v{P+7}", f"v_max3_f32 {t1}, {t1}, v{P+8}, v{P+9}",
         f"v_max3_f32 {t0}, {t0}, v{P+10}, v{P+11}", f"v_max3_f32 {t1}, {t1}, v{P+12}, v{P+13}",
         f"v_max3_f32 {t0}, {t0}, v{P+14}, v{P+15}", f"v_max_f32 {t0}, {t0}, {t1}", f"v_mul_f32_e64 {t0}, -{t0}, {vRSL}"]
    for j in range(16): F.append(f"v_fma_f32 v{P+j}, v{P+j}, {vRSL}, {t0}")
    for j in range(16): F.append(f"v_exp_f32 v{P+j}, v{P+j}")
    F += [f"v_add_f32 {t0}, v{P}, v{P+1}", f"v_add_f32 {t1}, v{P+2}, v{P+3}"]
    for j in range(4, 16, 2):
        F += [f"v_add_f32 {t0}, {t0}, v{P+j}", f"v_add_f32 {t1}, {t1}, v{P+j+1}"]
    F += [f"v_add_f32 {t0}, {t0}, {t1}", f"v_rcp_f32 {t0}, {t0}"]
    for j in range(16): F.append(f"v_mul_f32 v{P+j}, v{P+j}, {t0}")
    for j in range(8): F.append(f"v_cvt_pk_bf16_f32 v{out+j}, v{P+2*j}, v{P+2*j+1}")
    return F
def pack16(acc, out): return [f"v_cvt_pk_bf16_f32 v{out+j}, v{acc+2*j}, v{acc+2*j+1}" for j in range(8)]
def phi_frags():
    F = ["v_bfe_u32 v25, v0, 2, 2", "v_lshrrev_b32 v26, 5, v0", "v_lshl_add_u32 v25, v26, 2, v25", "v_lshlrev_b32 v25, 5, v25",
         "v_bfe_u32 v26, v0, 4, 1", "v_lshl_add_u32 v25, v26, 4, v25", "v_bfe_u32 v26, v0, 1, 1", "v_lshl_add_u32 v25, v26, 3, v25",
         blk(f"s_lshl_b32 s4, {sCH}, 10\ns_add_u32 s4, s4, {SCR_PHI}\nv_add_u32 v25, s4, v25")]
    for h in range(2):
        for rd in range(2): F.append(f"ds_read_b64_tr_b16 {R(PHI+4*h+2*rd,2)}, v25 offset:{h*512 + rd*256}")
    F += ["v_bfe_u32 v26, v0, 2, 1", "v_mul_u32_u24 v26, 0x8000, v26", "v_lshl_or_b32 v26, v26, 16, v26"]
    for j in range(8): F.append(f"v_xor_b32 v{PHI+j}, v26, v{PHI+j}")
    return F

def prologue(s):
    s.e("s_load_dwordx2 s[64:65], s[0:1], 0\ns_load_dwordx2 s[84:85], s[0:1], 80")
    s.e("s_load_dwordx8 s[68:75], s[0:1], 8\ns_load_dwordx8 s[76:83], s[0:1], 40\ns_load_dwordx2 s[66:67], s[0:1], 72")
    s.e("s_cmp_ge_u32 s2, 256\ns_cbranch_scc1 L_end")
    s.e("v_lshrrev_b32 v2, 6, v0\nv_and_b32 v0, 63, v0")
    s.e(f"v_readfirstlane_b32 {sW}, v2")
    s.e("s_and_b32 s3, s2, 7\ns_lshr_b32 s4, s2, 3" if not CFG.get('BADMAP') else "s_lshr_b32 s3, s2, 5\ns_and_b32 s4, s2, 31")
    s.e(f"s_and_b32 s5, s3, 1\ns_lshl_b32 s5, s5, 3\ns_and_b32 {sI}, s4, 7\ns_add_u32 {sI}, {sI}, s5")
    s.e(f"s_lshr_b32 {sKQ}, {sW}, 1\ns_and_b32 {sRT2}, {sW}, 1\ns_lshl_b32 {sM0W}, {sW}, 11")
    s.e(f"s_and_b32 {sRT}, {sW}, 3\ns_lshr_b32 {sCH}, {sW}, 2")
    s.e(f"s_lshr_b32 s5, s3, 1\ns_lshl_b32 s5, s5, 2\ns_lshr_b32 s6, s4, 3\ns_add_u32 s5, s5, s6")
    s.e(f"s_lshr_b32 {sG}, s5, 1\ns_and_b32 {sTY}, s5, 1")
    s.e({0: f"s_mov_b32 s{ROT0}, 0", 1: f"s_add_u32 s{ROT0}, s5, {sI}", 2: f"s_lshr_b32 s{ROT0}, s3, 1\ns_lshl_b32 s{ROT0+1}, s3, 1\ns_add_u32 s{ROT0}, s{ROT0}, s{ROT0+1}"}[CFG['ROT']])
    for c in range(1, 4): s.e(f"s_add_u32 s{ROT0+c}, s{ROT0}, {c}\ns_and_b32 s{ROT0+c}, s{ROT0+c}, 3")
    s.e(f"s_and_b32 s{ROT0}, s{ROT0}, 3")
    s.e(f"s_lshl_b32 {sRB}, s3, 2\ns_add_u32 {sRB}, {sRB}, s6\ns_and_b32 {sCB}, s4, 7\ns_mov_b32 s87, s4")
    s.e(f"v_lshrrev_b32 v33, 4, v0\nv_and_b32 v34, 15, v0\ns_lshl_b32 s5, {sRT2}, 3")
    for h in range(2):
        s.e(f"v_add_u32 v35, {4*h}, v33\nv_add_u32 v36, s5, v35\nv_xor_b32 v36, v34, v36\nv_lshlrev_b32 v36, 4, v36\nv_lshl_add_u32 v{XD+h}, v35, 10, v36")
    s.e(f"s_lshl_b32 {sXb}, {sI}, 17\ns_lshl_b32 s5, {sW}, 13\ns_add_u32 {sXb}, {sXb}, s5")
    s.e("v_lshrrev_b32 v36, 3, v0\nv_and_b32 v37, 7, v0\nv_lshlrev_b32 v38, 1, v36\nv_and_b32 v38, 4, v38\nv_xor_b32 v37, v37, v38\nv_lshlrev_b32 v37, 4, v37")
    s.e(f"v_mul_u32_u24 {vDq}, 3072, v36\nv_add_u32 {vDq}, {vDq}, v37\nv_mul_u32_u24 {vD1}, 3584, v36\nv_add_u32 {vD1}, {vD1}, v37")
    s.e(f"v_lshl_add_u32 {vDB}, v36, 10, v37\nv_lshlrev_b32 {vA16}, 4, v0")
    s.raw("s_waitcnt lgkmcnt(0)")
    srd(s, sX, "s64", "s65", 2048 * 512 * 2)
    srd(s, sWq, "s68", "s69", 512 * 1536 * 2)
    srd(s, sW1, "s76", "s77", 512 * 1792 * 2)
    srd(s, sWs, "s84", "s85", 0x10000000)
    s.e("s_cmp_ge_u32 s2, 32\ns_cbranch_scc1 L_noinit")
    s.e("v_mov_b32 v40, 0\nv_mov_b32 v41, 0\nv_mov_b32 v42, 0\nv_mov_b32 v43, 0")
    s.e(f"s_lshl_b32 s5, s2, 13\ns_lshl_b32 s6, {sW}, 10\ns_add_u32 s5, s5, s6\ns_add_u32 s5, s5, {Z_OFF}")
    s.raw(f"buffer_store_dwordx4 v[40:43], {vA16}, {sWs}, s5 offen sc1")
    s.e("s_add_u32 s5, s5, 0x40000")
    s.raw(f"buffer_store_dwordx4 v[40:43], {vA16}, {sWs}, s5 offen sc1")
    s.e("L_noinit:")
    s.e("s_mov_b32 s88, s2")

def prologue2(s):
    lab = label()
    s.e(f"s_cmp_lg_u32 {sW}, 7\ns_cbranch_scc1 {lab}")
    s.e(f"s_getpc_b64 s[90:91]\n{lab}x:\ns_sub_u32 s90, s90, {lab}x-{KNAME}\ns_subb_u32 s91, s91, 0\ns_mul_i32 s5, s87, 2560\nv_min_u32 v35, 19, v0\nv_lshlrev_b32 v35, 7, v35\nv_add_u32 v35, s5, v35")
    s.raw("global_load_dword v26, v35, s[90:91]")
    s.e(f"{lab}:")
    srd(s, sPhi, "s70", "s71", 32 * 512)
    srd(s, sB1, "s78", "s79", 1792 * 2)
    srd(s, sW2, "s80", "s81", 1792 * 512 * 2)
    srd(s, sWo, "s72", "s73", 512 * 512 * 2)
    srd(s, sOut, "s82", "s83", 2048 * 512 * 2)
    srd(s, sDbg, "s66", "s67", 256)
    s.e(f"s_mov_b32 {sBID}, s88\ns_mov_b32 {sC11}, 0x3f803f80")
    s.e(f"v_lshrrev_b32 v36, 2, v0\nv_and_b32 v37, 3, v0\nv_lshlrev_b32 v37, 4, v37\nv_mul_u32_u24 {vD5}, 3584, v36\nv_add_u32 {vD5}, {vD5}, v37")
    s.e(f"v_and_b32 {vP4}, 31, v0\nv_lshlrev_b32 {vP4}, 2, {vP4}")
    s.e(f"v_mov_b32 v29, 0\nv_mov_b32 {vFO}, {BIG}\nv_cmp_eq_u32 vcc, 0, v0\nv_cndmask_b32 {vFO}, {vFO}, 0, vcc")
    s.e("v_bfe_u32 v36, v0, 2, 2\nv_and_b32 v37, 3, v0\nv_bfe_u32 v38, v0, 4, 1\nv_lshrrev_b32 v39, 5, v0")
    s.e("v_lshlrev_b32 v40, 3, v37\nv_lshl_add_u32 v40, v38, 5, v40\nv_lshl_add_u32 v41, v39, 3, v36")
    s.e(f"v_lshrrev_b32 v42, 1, v36\nv_xor_b32 v42, {sCH}, v42\nv_lshlrev_b32 v42, 6, v42")
    s.e(f"v_lshl_add_u32 v43, v41, 7, v40\nv_add_u32 v43, v43, v42")
    for j in range(4):
        s.e(f"s_xor_b32 s5, {sRT}, {j}\ns_lshl_b32 s5, s5, 12\ns_add_u32 s5, s5, {SLOT}\nv_add_u32 v{VW+j}, s5, v43\nv_add_u32 v{VW+4+j}, 0x10000, v{VW+j}")
    s.e(f"v_and_b32 v44, 31, v0\ns_lshl_b32 s5, {sRT}, 5\nv_add_u32 v45, s5, v44\nv_xor_b32 v46, v39, v34\nv_lshlrev_b32 v46, 4, v46\nv_lshl_add_u32 v{XR}, v45, 8, v46")
    s.e(f"s_lshl_b32 s5, {sRT}, 6\nv_xor_b32 v{XR}, s5, v{XR}")
    for t in range(1, 8): s.e(f"v_xor_b32 v{XR+t}, {t<<5}, v{XR}")
    s.e(f"v_lshlrev_b32 v44, 2, v38\nv_cmp_eq_u32 vcc, v44, v34\nv_mov_b32 v44, {sC11}\nv_cndmask_b32 v{ASEL}, 0, v44, vcc")
    for j in range(1, 4): s.e(f"v_mov_b32 v{ASEL+j}, v{ASEL}")
    s.e(f"v_mov_b32 v{CF+4}, 0\nv_mov_b32 v{CF+5}, 0")
    s.e(f"s_lshl_b32 s3, {sI}, 2\ns_add_u32 s3, s3, {sRT}\ns_mul_i32 {sAF}, s3, {144*1024}")
    s.e(f"s_mul_i32 {sKS}, {sG}, {14*1024}\ns_add_u32 {sKS}, {sKS}, {sAF}")
    s.e(f"s_lshl_b32 {sFL}, s3, 2\ns_lshr_b32 s4, {sG}, 1\ns_add_u32 {sFL}, {sFL}, s4\ns_mul_i32 {sFL}, {sFL}, 640")
    s.e(f"s_and_b32 s4, {sG}, 1\ns_lshl_b32 s4, s4, 3\ns_lshl_b32 s5, {sCH}, 2\ns_add_u32 s4, s4, s5\ns_add_u32 {sFL}, {sFL}, s4\ns_add_u32 {sFL}, {sFL}, {ACTFLAG_OFF}")
    s.e(f"s_lshl_b32 s3, {sRB}, 1\ns_add_u32 s3, s3, {sRT2}\ns_mul_i32 {sAF2}, s3, {144*1024}")
    s.e(f"s_lshl_b32 {sFL2}, s3, 2\ns_add_u32 {sFL2}, {sFL2}, {sKQ}\ns_mul_i32 {sFL2}, {sFL2}, 640\ns_add_u32 {sFL2}, {sFL2}, {ACTFLAG_OFF}")
    s.e(f"s_mul_i32 {sB2}, {sCH}, {448*1024}\ns_lshl_b32 s4, {sRT}, 14\ns_lshl_b32 s5, {sCB}, 7\ns_add_u32 s4, s4, s5\ns_add_u32 {sB2}, {sB2}, s4")
    s.e(f"s_lshl_b32 {sBo}, {sCH}, 17\ns_add_u32 {sBo}, {sBo}, s4")
    s.e(f"s_lshl_b32 s3, {sG}, 2\ns_add_u32 s3, s3, {sKQ}\ns_mul_i32 {sKVs}, s3, 2176\ns_add_u32 {sKVs}, {sKVs}, {KV_OFF}")
    s.e(f"s_lshl_b32 s3, {sG}, 3\ns_add_u32 s3, s3, {sW}\ns_lshl_b32 {sKVF}, s3, 11\ns_add_u32 {sKVF}, {sKVF}, {KVFLAG_OFF}")
    s.e(f"s_mul_i32 s3, {sKQ}, {28*1024}\ns_add_u32 {sA2y}, {sAF2}, s3")
    s.e(f"s_lshl_b32 s3, {sKQ}, 13\ns_add_u32 {sA2s}, {sAF2}, s3\ns_add_u32 {sA2s}, {sA2s}, {112*1024}")
    s.e(f"v_lshrrev_b32 {vT}, 1, {vP4}")

def unit_bases(s, typ):
    s.e(f"s_mul_i32 s3, {sW}, {16*3072}\ns_lshl_b32 s4, {sG}, 7\ns_add_u32 s3, s3, s4")
    s.e(f"s_mul_i32 s4, {sG}, 448\ns_and_b32 s5, {sG}, 1\ns_cmp_eq_u32 s5, 0")
    if typ == 'A':
        s.e(f"s_cselect_b32 s5, 0, 320\ns_add_u32 s4, s4, s5")
        s.e(f"s_add_u32 {sUA}, s3, 1024\ns_add_u32 {sUB}, s3, 2048")
        s.e(f"s_mul_i32 {sUC}, {sW}, {16*3584}\ns_add_u32 {sUC}, {sUC}, s4")
        s.e(f"s_lshl_b32 s5, {sCH}, 6\ns_add_u32 s92, s4, s5")
        return [f"buffer_load_ushort v{BI0}, {vT}, {sB1}, s92 offen"]
    s.e(f"s_cselect_b32 s5, 128, 64\ns_cselect_b32 {sUD}, 384, 0")
    s.e(f"s_add_u32 s5, s4, s5\ns_add_u32 s92, s4, {sUD}\ns_mov_b32 {sUC}, s3")
    s.e(f"s_mul_i32 {sUA}, {sW}, {16*3584}\ns_add_u32 {sUA}, {sUA}, s5\ns_add_u32 {sUB}, {sUA}, 128")
    s.e(f"s_mul_i32 {sUD}, {sRT}, {32*3584}\ns_add_u32 {sUD}, {sUD}, s92")
    s.e(f"s_lshl_b32 s3, {sCH}, 6\ns_add_u32 s93, s5, s3")
    return [f"buffer_load_ushort v{BI2}, {vT}, {sB1}, s92 offen", f"buffer_load_ushort v{BI0}, {vT}, {sB1}, s93 offen",
            f"buffer_load_ushort v{BI1}, {vT}, {sB1}, s93 offen offset:128"]

def start(s, ring, biasloads):
    ring.assign(s, upto=ring.upto0)
    if CFG['T0'] == 1: touch_all(s, ['x', 'q', 'w1'])
    ring.pump(s, CFG['S0'])
    if CFG['T0'] == 2: touch_all(s, ['x', 'q', 'w1'])
    prologue2(s)
    ring.pump(s, CFG['S1'])
    if CFG['T1']: touch_all(s, ['w2', 'wo'])
def touch_all(s, which):
    specs = dict(x=(sX, 64, 4), q=(sWq, 48, 5), w1=(sW1, 56, 6), w2=(sW2, 56, 4), wo=(sWo, 16, 5))
    for nm in which:
        srd_, nl, wv = specs[nm]
        lab = label()
        s.e(f"s_cmp_lg_u32 {sW}, {wv}\ns_cbranch_scc1 {lab}")
        s.e(f"v_min_u32 v47, {nl-1}, v0\nv_lshlrev_b32 v47, 7, v47\ns_mul_i32 s5, s88, {nl*128}\ns_mov_b32 m0, {SCR + 15360}\ns_nop 0")
        s.raw(f"buffer_load_dword v47, {srd_}, s5 offen lds")
        s.e(f"{lab}:")
def late_loads(biasloads):
    def f(s):
        s.e(f"v_lshrrev_b32 {vT}, 1, {vP4}")
        for x in biasloads: s.e(x)
        s.e(f"s_lshl_b32 s3, {sG}, 11\ns_lshl_b32 s4, {sRT2}, 10\ns_add_u32 s3, s3, s4\ns_add_u32 m0, s4, {SCR_PHI}")
        s.e(f"buffer_load_dwordx4 {vA16}, {sPhi}, s3 offen lds", tag="phi")
    return f

MF = "v_mfma_f32_32x32x16_bf16"
def bar(s, ring, name, needs=(), rel=(), owner='all', lg0=False, upto=None, extra=(), maxn=99):
    if CFG.get('SB'): stamp("<" + name)(s)
    for n in needs: ring.need(s, n)
    if lg0: s.wait(lg=0)
    s.wait_dswrites()
    s.e("s_barrier")
    stamp(name)(s)
    s.marks[name] = 1
    for n in rel: ring.release(n)
    ring.free += list(extra)
    if owner == 'all':
        k = 'x' if name[0] == 'b' else ('a' if name[0] in 'ae' else 'p')
        if k in CFG['OWN'] and not (s.name[0] == 'B' and name in ('c3', 'd3', 'e1')): owner = 0
    ring.assign(s, owner, upto, maxn)
def B(ring, *a, **k): return lambda s: bar(s, ring, *a, **k)

class MSeg:
    def __init__(self, ring, u, ch, events=None, posts=None, xpass=False, dma=0):
        self.ring, self.u, self.ch, self.ev, self.posts, self.xp, self.dma = ring, u, ch, events or {}, posts or {}, xpass, dma
        self.nr = 0; self.hs = None
    def reads(self, s, t):
        u, ring = self.u, self.ring
        for e in self.ev.get(t, []): e(s)
        c, p = t // 8, t % 8
        if self.xp:
            for x in {0: (0, 1), 1: (2, 3, 4), 2: (5, 6, 7)}.get(p, ()):
                s.e(f"ds_read_b128 {R(XA+32*c+4*x,4)}, v{XR+x} offset:{(c&1)*32768}")
        it = f"{u['name']}{c}" if u['kind'] == 'w' else f"{u['name']}{c//2}"
        assert ring.log[it][1] is not None, f"{it} read before certified"
        sl = ring.slot[it]; buf = WB + 4 * (t % 4)
        if u['kind'] == 'h5' and self.hs != sl:
            if self.hs is None:
                s.e("v_bfe_u32 v116, v0, 2, 2\nv_lshrrev_b32 v117, 5, v0\nv_lshl_add_u32 v116, v117, 3, v116\nv_lshlrev_b32 v116, 6, v116\nv_bfe_u32 v117, v0, 4, 1\nv_lshl_add_u32 v116, v117, 5, v116\nv_and_b32 v117, 3, v0\nv_lshl_add_u32 v116, v117, 3, v116")
                for j in range(4): s.e(f"s_xor_b32 s3, {sRT}, {j}\ns_lshl_b32 s3, s3, 11\ns_add_u32 s3, s3, {sl*SLOT}\nv_add_u32 v{HR+j}, s3, v116")
            else:
                for j in range(4): s.e(f"v_add_u32 v{HR+j}, {((sl-self.hs)*SLOT) & 0xffffffff:#x}, v{HR+j}")
            self.hs = sl
        for k in range(2):
            if u['kind'] == 'w':
                w = 0 if sl <= 4 else 1
                r, off = f"v{VW+4*w+p//2}", (sl - 1 - 4 * w) * SLOT + (p & 1) * 2048 + k * 512
            else: r, off = f"v{HR+p//2}", (c % 2) * 8192 + (p & 1) * 1024 + k * 256
            s.e(f"ds_read_b64_tr_b16 {R(buf+2*k,2)}, {r} offset:{off}")
    def pre(self, s, n=None):
        n = CFG['PF'] if n is None else n
        while self.nr < n: self.reads(s, self.nr); self.nr += 1
    def run(self, s, nxt=None, F=None, budget=0):
        u = self.u; ch = self.ch
        credit = 0
        if CFG['PRIO'] and not self.xp: s.e("s_setprio 1")
        self.pre(s)
        for t in range(32):
            c, p = t // 8, t % 8
            buf = WB + 4 * (t % 4)
            cin = R(u['acc'], 16) if t > 0 else "0"
            a, b = (R(buf, 4), R(XA + 4 * t, 4)) if u['trans'] else (R(XA + 4 * t, 4), R(buf, 4))
            s.e(f"{MF} {R(u['acc'],16)}, {a}, {b}, {cin}")
            if p < 2 and not (CFG.get('NOCS') and t > 0): s.e(f"v_mfma_f32_16x16x32_bf16 {R(CSA,4)}, {R(ASEL,4)}, {R(buf,4)}, {R(CSA,4) if t > 0 else '0'}")
            if self.nr < 32: self.reads(s, self.nr); self.nr += 1
            elif nxt is not None: nxt.pre(s, t - 31 + CFG['PF'])
            if self.xp and t < 25 and CFG['PAR'] == 2:
                if t % 2 == ch or ('x' in CFG['OWN'] and ch == 0): self.ring.pump(s, 2)
            elif self.xp and t < 25: self.ring.pump(s, 1)
            elif self.xp: self.ring.pace(s, CFG['ST'])
            elif self.dma and CFG['PAR']:
                if 'p' in CFG['OWN']: self.ring.pace(s, self.dma, 1)
                elif t % 2 == ch: self.ring.pace(s, 2 * self.dma, 1)
            elif self.dma: self.ring.pace(s, self.dma)
            if t == 27:
                s.e(f"s_lshl_b32 s3, {sRT}, 2\ns_add_u32 s3, s3, {SCR_CS + u['csi']*2048 + ch*1024}\nv_add_u32 v{CSA+1}, s3, {vA16}\nds_write_b32 v{CSA+1}, v{CSA}")
            if self.xp and p in (1, 3):
                for x in ((ch, ch + 2) if p == 1 else (ch + 4, ch + 6)):
                    for j in range(4):
                        r = XA + 32 * c + 4 * x + j
                        first = (c == 0 and p == 1 and x == ch and j < 2)
                        s.e(f"v_dot2_f32_bf16 v{STA+(j&1)}, v{r}, {sC11}, {'0' if first else f'v{STA+(j&1)}'}")
                        s.e(f"v_dot2_f32_bf16 v{STA+2+(j&1)}, v{r}, v{r}, {'0' if first else f'v{STA+2+(j&1)}'}")
                if t == 27:
                    q = f"v{STA+2}"
                    s.e(f"v_add_f32 v{STA}, v{STA}, v{STA+1}\nv_add_f32 v{STA+1}, v{STA+2}, v{STA+3}\nv_lshrrev_b32 {q}, 5, v0\nv_lshlrev_b32 {q}, 3, {q}\n"
                        f"v_lshl_add_u32 {q}, {vP4}, 3, {q}\ns_lshl_b32 s3, {sRT}, 10\ns_add_u32 s3, s3, {SCR_ST + ch*16}\nv_add_u32 {q}, s3, {q}\nds_write_b64 {q}, {R(STA,2)}")
            for e in self.posts.get(t, []): e(s)
            if F is not None: credit = fill(s, F, (budget(t) if callable(budget) else budget) + min(credit, CFG['CRED']))
        if CFG['PRIO'] and not self.xp: s.e("s_setprio 0")

def fill(s, F, budget, force=False):
    while budget > 0 and F:
        f = F[0]
        if isinstance(f, tuple) and f[0] == 'wait':
            if f[1] in s.marks: F.pop(0); continue
            return 0
        if isinstance(f, tuple) and f[0] == 'nextbar': f = F[0] = ('barge', s.nbar + 1)
        if isinstance(f, tuple) and f[0] == 'barge':
            if s.nbar >= f[1]: F.pop(0); continue
            return 0
        if isinstance(f, tuple) and f[0] in ('hold', 'tilt'):
            if budget <= 1: F.pop(0); continue
            return 0
        if isinstance(f, tuple) and f[0] == 'gap':
            f = F[0] = ('until', s.n_issued + f[1])
        if isinstance(f, tuple) and f[0] == 'until':
            if s.n_issued >= f[1] or force: F.pop(0); continue
            return 0
        if callable(f):
            F.pop(0); n0 = s.n_issued; f(s); budget -= max(1, (s.n_issued - n0) * 0.5); continue
        txt, tag = (f if isinstance(f, tuple) else (f, None))
        need, age = s.cost(txt)
        if not force and (need > 1 or (age is not None and age < CFG['AGE'])): return budget
        F.pop(0); s.e(txt, tag)
        k = I(txt).kind
        budget -= 2 if k == 'trans' else (0.5 if k in ('salu', 'ds', 'vm') else 1)
    return 0
def until(s, ring, F, name, every=None):
    n = 0
    while name not in s.marks:
        assert F, name
        l = len(F); fill(s, F, 1, force=True)
        assert len(F) < l, ("stuck", F[0], name, s.name)
        n += 1
        ring.pace(s, 9)
    return n
def vrun(s, ring, F, slots, every=None, flush=True):
    every = every or CFG['VD']
    while slots > 0 and F:
        l = len(F); fill(s, F, min(every, slots), force=True); slots -= every
        ring.pace(s, 9 * every)
        if len(F) == l: break
    if flush: ring.pump(s, 99)

def vseg(s, ring, F, every=None, flush=True):
    every = every or CFG['VD']
    n = 0
    for f in F:
        if isinstance(f, tuple) and f[0] in ('after', 'skip', 'wait', 'gap', 'until'): continue
        drain(s, [f]); n += 1
        ring.pace(s, 10)
    if flush: ring.pump(s, 99)
def split(F, frac, item):
    k = int(len(F) * frac)
    return F[:k] + [item] + F[k:]

def pass0(s, ring, u, ch, bl, nextname, nextneed):
    ev = {}
    for c in range(4):
        def b0(s, c=c):
            if c == 3: s.wait_tag("phi")
            bar(s, ring, f"b0{c}", [f"{u['name']}{c}", f"XL{c}", f"XH{c}"], [f"{u['name']}{c-1}"] if c else [], lg0=True, upto=nextname[0] + str(CFG['UP'][2 * c]))
            if c == 0:
                lab = label()
                s.e(f"s_cmp_ge_u32 {sBID}, 32\ns_cbranch_scc1 {lab}\ns_cmp_lg_u32 {sW}, 0\ns_cbranch_scc1 {lab}\ns_lshl_b32 s3, {sBID}, 2")
                s.raw(f"buffer_store_dword {vOne}, {vFO}, {sDbg}, s3 offen offset:128 sc1")
                s.e(f"{lab}:")
        def bx(s, c=c):
            s.wait_regs([f"v{r}" for r in range(XA + 32 * c, XA + 32 * c + 32)])
            bar(s, ring, f"bx{c}", nextneed if c == 3 else [], [f"XL{c}", f"XH{c}"], upto=(nextname[0] + str(CFG['UP'][2 * c + 1]) if c < 3 else None))
        ev[8 * c] = [b0]; ev[8 * c + 4] = [bx]
    return MSeg(ring, u, ch, ev, {6: [late_loads(bl)], 24: [lambda s: poll_issue(s, sDbg, "0", imm=128)], CFG['TBT']: [lambda s: touchB(s)], CFG['TWT']: [lambda s: touchW(s)]}, xpass=True, dma=1)

def stats_fin(T):
    F = [blk(f"s_lshl_b32 s4, {sRT}, 10\ns_add_u32 s4, s4, {SCR_ST}\nv_lshlrev_b32 {vT}, 3, {vP4}\nv_add_u32 {vT}, s4, {vT}"),
         f"ds_read_b128 {R(T,4)}, {vT}", f"ds_read_b128 {R(T+4,4)}, {vT} offset:16",
         blk(f"s_lshl_b32 s4, {sRT}, 7\ns_add_u32 s4, s4, {SCR_RS}\nv_add_u32 {vT}, s4, {vP4}\nv_cmp_gt_u32 s[94:95], 32, v0")]
    a, b = f"v{T}", f"v{T+1}"
    F += [f"v_add_f32 {a}, {a}, v{T+2}", f"v_add_f32 {b}, {b}, v{T+3}", f"v_add_f32 v{T+4}, v{T+4}, v{T+6}", f"v_add_f32 v{T+5}, v{T+5}, v{T+7}",
          f"v_add_f32 {a}, {a}, v{T+4}", f"v_add_f32 {b}, {b}, v{T+5}", f"v_mul_f32 {a}, 0xbb000000, {a}", f"v_mul_f32 {b}, 0x3b000000, {b}",
          f"v_fma_f32 {b}, -{a}, {a}, {b}", f"v_max_f32 {b}, 0, {b}", f"v_cvt_pk_bf16_f32 {b}, {b}, {b}", f"v_lshlrev_b32 {b}, 16, {b}",
          f"v_add_f32 {b}, 0x3727c5ac, {b}", f"v_cvt_pk_bf16_f32 {b}, {b}, {b}", f"v_lshlrev_b32 {b}, 16, {b}", f"v_sqrt_f32 {b}, {b}",
          f"v_cvt_pk_bf16_f32 {b}, {b}, {a}", f"v_lshlrev_b32 {vRS}, 16, {b}", f"v_rcp_f32 {vRS}, {vRS}",
          f"v_cndmask_b32 v{CF+2}, 0, {b}, s[94:95]", f"v_lshrrev_b32 v{CF+3}, 16, v{CF+2}",
          f"v_mul_f32 {vRSL}, 0x3fb8aa3b, {vRS}", f"v_mul_f32 {vM2}, -2.0, {vRS}", f"ds_write_b32 {vT}, {vRS}"]
    return F
def correct(u, ch, T, bias=None):
    F = [f"v_lshlrev_b32 v{T}, 2, {vP4}", f"v_add_u32 v{T}, {SCR_CS + u['csi']*2048 + ch*1024}, v{T}", f"ds_read_b128 {R(T,4)}, v{T}",
         f"v_add_f32 v{T}, v{T}, v{T+1}", f"v_add_f32 v{T+2}, v{T+2}, v{T+3}", f"v_add_f32 v{T}, v{T}, v{T+2}",
         f"v_cvt_pk_bf16_f32 v{T+1}, v{T}, v{T}", f"v_and_b32 v{CF}, 0xffff0000, v{T+1}", f"v_sub_f32 v{T}, v{T}, v{CF}", f"v_cvt_pk_bf16_f32 v{CF+1}, v{T}, v{T}"]
    if bias is not None: F.append(f"v_or_b32 v{CF}, v{CF}, v{bias}")
    a, b = (R(CF, 4), R(CF + 2, 4)) if u['trans'] else (R(CF + 2, 4), R(CF, 4))
    F.append(f"{MF} {R(u['acc'],16)}, {a}, {b}, {R(u['acc'],16)}")
    return F

def mark(name): return lambda s: s.marks.__setitem__(name, 1)
YA = [192, 208]; SA = [32, 48]
vB0, vB1 = "v5", "v24"
XW = ["v6", "v7", "v8"]; XRD = ["v11", "v12", "v13"]
LB = 128
NR = 8
def breg(t): return XA + 8 * t if t < NR else LB + 8 * (t % 4)
def bnm(ch, c): return f"B{'ab'[ch]}{c}"
def bread(ring, ch, t):
    def f(s):
        nm = bnm(ch, t // 4)
        assert ring.log[nm][1] is not None, f"{nm} read before certified"
        sl = ring.slot[nm]
        if ring.bsl != sl:
            d = ((sl - ring.bsl) * SLOT) & 0xffffffff
            s.e(f"v_add_u32 {vB0}, {d:#x}, {vB0}\nv_add_u32 {vB1}, {d:#x}, {vB1}")
            ring.bsl = sl
        for ct, r in enumerate((vB0, vB1)):
            for k in range(2):
                s.e(f"ds_read_b64_tr_b16 {R(breg(t) + 4*ct + 2*k, 2)}, {r} offset:{(t%4)*2048 + k*1024}")
    return f
def pull(ring, ch, c): return [bread(ring, ch, 4 * c + k) for k in range(4)]
def p2_setup(ring):
    def chk(s):
        assert not any(x[0][0] == 'F' for x in ring.items) and not any(x[0][0][0] == 'F' for x in ring.q)
        ring.bsl = 0
    return [chk, f"v_bfe_u32 {vB0}, v0, 2, 2", f"v_lshrrev_b32 {vB1}, 5, v0", f"v_lshl_add_u32 {vB0}, {vB1}, 2, {vB0}", f"v_lshlrev_b32 {vB0}, 7, {vB0}",
     f"v_bfe_u32 {vB1}, v0, 3, 1", f"v_lshl_add_u32 {vB0}, {vB1}, 6, {vB0}", f"v_bfe_u32 {vB1}, v0, 4, 1", f"v_lshl_add_u32 {vB0}, {vB1}, 5, {vB0}",
     f"v_and_b32 {vB1}, 3, v0", f"v_lshl_add_u32 {vB0}, {vB1}, 3, {vB0}", blk(f"s_lshl_b32 s3, {sKQ}, 5\nv_xor_b32 {vB0}, s3, {vB0}\ns_and_b32 s3, {sKQ}, 1\ns_lshl_b32 s3, s3, 13\nv_add_u32 {vB0}, s3, {vB0}"), f"v_xor_b32 {vB1}, 64, {vB0}"]

def xaddr(slots):
    F = []
    for j in range(1, 4):
        F.append(blk(f"s_xor_b32 s4, {sKQ}, {j}\ns_lshl_b32 s4, s4, 12\ns_add_u32 s4, s4, {slots[j-1]*SLOT}\nv_add_u32 {XW[j-1]}, s4, v9"))
    return F
def xwrite(acc2):
    F = []
    for j in (2, 3, 1):
        src = acc2[j >> 1] + 8 * (j & 1)
        F += [f"ds_write_b128 {XW[j-1]}, {R(src+4*h,4)} offset:{h*1024}" for h in range(2)]
    return F
def xread(slots, own, tmp):
    F = []
    for i in range(3):
        for h in range(2):
            r, off = ldsaddr(XRD, slots[i] * SLOT + h * 1024)
            F.append(f"ds_read_b128 {R(tmp+8*i+4*h,4)}, {r} offset:{off}")
    G = []
    for i in range(3):
        for j in range(8): G.append(f"v_add_f32 v{own+j}, v{own+j}, v{tmp+8*i+j}")
    return F, G
def fin_setup():
    return [blk(f"s_lshl_b32 {sUC}, {sRB}, 16\ns_lshl_b32 s4, {sRT2}, 15\ns_add_u32 {sUC}, {sUC}, s4\ns_lshl_b32 s4, {sCB}, 7\ns_add_u32 {sUC}, {sUC}, s4\ns_lshl_b32 s4, {sKQ}, 5\ns_add_u32 {sUC}, {sUC}, s4"),
            f"v_lshlrev_b32 v20, 8, {vP4}", "v_lshrrev_b32 v21, 5, v0", "v_lshl_add_u32 v20, v21, 4, v20",
            f"buffer_load_dwordx4 v[16:19], v20, {sX}, {sUC} offen",
            blk(f"s_lshl_b32 s4, {sW}, 11\nv_add_u32 v11, s4, {vA16}"), "v_add_u32 v12, 0x10000, v11", "v_add_u32 v13, 0x20000, v11"]

def aphase(s, ring, ch, F, early, late, toff):
    G = CFG['GT']
    groups = {0: (0xf, ['f1'], 0, 0), 8: (0xf, ['f2'], G[3], 128), 16: (0x5, ['f3'], G[0], 384), 20: (0xf, ['f3'], G[1], 256), 28: (0xf, ['fo'], G[2], 512)}
    pr = lambda c: [bnm(0, c), bnm(1, c)]
    bars = {8: (pr(2) + pr(3), ring.rel8), 12: ([], pr(2)), 16: (pr(4) + pr(5), pr(3)), 20: ([], pr(4)), 24: (pr(6) + pr(7), pr(5)), 30: (pr(8), pr(6))}
    if CFG['FB4']: bars = {8: (pr(2) + pr(3), ring.rel8), 16: (pr(4) + pr(5), pr(2) + pr(3)), 24: (pr(6) + pr(7), pr(4) + pr(5)), 30: (pr(8), pr(6))}
    cert = {n: k for k, v in bars.items() for n in v[0]}
    pool = list(range(224, 256, 4)) + list(early); restricted = set(early)
    late = dict(late)
    for v in late.values(): restricted |= set(v)
    areg = {}; arr = {}
    st = dict(clk=0, pipe=0, nxt=0, polled={0: 0}, checked=set(), tch=set())
    LT, LAT, QD = CFG['LT'], CFG['LAT'], CFG['QD']
    OWNY = YA[0]; OWNS = SA[0]; XT = 64
    PB = CFG['PB2']
    bars[32] = bars.pop(30)
    YB = 33 - PB
    cert = {n: k for k, v in bars.items() for n in v[0]}
    W = []
    PR = {0: vPoll, 8: vPoll, 16: 'v2', 20: 'v3', 28: 'v23'}
    PS = dict(zip((16, 20, 28), CFG['PS' + s.name[0]]))
    def issue_cost():
        st['pipe'] = max(st['pipe'], st['clk']) + (LT if 'v0' not in s.marks else CFG['LT2']); st['clk'] += 16
        return st['pipe'] + LAT
    def try_load(step, must=None):
        for m in list(late):
            if m in s.marks: pool.extend(late.pop(m))
        t = st['nxt']
        for g in sorted(groups):
            if g >= t and g not in st['polled']:
                if (g != 8 or 0 in st['checked']) and ((st['clk'] >= groups[g][2] + toff - CFG['PLT'] if g == 8 else (step >= PS[g][0] and (PS[g][0] > 0 or len(F) < CFG['PVL']))) or must == g):
                    poll_issue(s, sWs, sFL2, PR[g], imm=groups[g][3]); st['polled'][g] = max(st['pipe'], st['clk']) + LAT; st['clk'] += 16
                    log.append(f"pl{g}@{step}")
                    return True
        if must is None and st['pipe'] - st['clk'] > (QD if 'v0' not in s.marks else CFG['QD2']): return False
        bneed = cert.get(ring.q[0][0][0], 0) - CFG['BL'] if ring.q else 99
        aok = False
        if t < 36:
            ok = [r for r in pool if not (r in restricted and t > 26)]
            aok = bool(ok)
            if t in groups and t not in st['checked']:
                ready = t in st['polled'] and ((st['clk'] >= st['polled'][t] and st['clk'] >= groups[t][2] + toff) if t <= 8 else step >= PS[t][1]) and all(r in s.marks for r in groups[t][1]) and (t <= 8 or 'v0' in s.marks)
                aok = aok and (ready or must == t)
        if aok and (t <= bneed or must is not None):
            if t in groups and t not in st['checked']:
                for r in groups[t][1]:
                    n = until(s, ring, F, r)
                    if n: print("   forced", n, "fillers for", r, "in", s.name)
                poll_check(s, sWs, sFL2, groups[t][0], PR[t], imm=groups[t][3]); st['checked'].add(t); log.append(f"chk{t}@{step}/{st['clk']}")
            areg[t] = ok[0]; pool.remove(ok[0])
            base, off = (sA2y, ORDER[t] * 1024) if t < 28 else (sA2s, (t - 28) * 1024)
            s.e(f"s_add_u32 {sSoW}, {base}, {off & ~4095}\nbuffer_load_dwordx4 {R(areg[t],4)}, {vA16}, {sWs}, {sSoW} offen offset:{off & 4095} sc1")
            arr[t] = issue_cost(); st['nxt'] += 1; log.append(f"A{t}@{step}")
            return True
        if ring.q and must is None:
            half = ring.log[ring.q[0][0][0]][2] != 'all'
            ring.pump(s, 1); issue_cost()
            if half: st['pipe'] -= CFG['LT2'] // 2
            return True
        return False
    log = []
    V = []
    for t in range(36):
        vdone = 0
        while True:
            if try_load(t): continue
            if CFG['MIX'] and t in arr and st['clk'] >= arr[t] + CFG['MG'] and vdone >= CFG['MIX'] and (t < 4 or 'p1' in s.marks) and (t < 7 or 'vbar' in s.marks): break
            if F and isinstance(F[0], tuple) and F[0][0] == 'hold':
                F[0] = ('tilt', t + F[0][1])
            if F and isinstance(F[0], tuple) and F[0][0] == 'tilt' and t >= F[0][1]: F.pop(0)
            if F and not (t in arr and st['clk'] >= arr[t] and not pool and st['nxt'] < 36):
                l = len(F); n0 = s.n_issued
                fill(s, F, 6, force=True)
                st['clk'] += (s.n_issued - n0) * CFG['VC']; vdone += s.n_issued - n0
                if len(F) < l: continue
            if t not in arr:
                assert try_load(t, must=st['nxt']); continue
            if st['clk'] < arr[t] and (st['nxt'] < 36 or ring.q):
                nclk = min(arr[t], st['clk'] + 32)
                if nclk < arr[t]:
                    st['clk'] = nclk
                    if try_load(t): continue
                    continue
            break
        st['clk'] = max(st['clk'], arr[t])
        if t == 4: until(s, ring, F, 'p1')
        for ct in ((1, 0) if t in (27, 35) else (0, 1)):
            acc = (YA if t < 28 else SA)[ct]
            cin = "0" if t in (0, 28) else R(acc, 16)
            s.e(f"{MF} {R(acc,16)}, {R(breg(t)+4*ct,4)}, {R(areg[t],4)}, {cin}")
        st['clk'] += 128 if not (F and CFG['MIX']) else 48
        pool.append(areg[t])
        if 4 <= t <= 7: pool += [XA + 8 * t, XA + 8 * t + 4]
        rs_ = t + PB
        if rs_ in bars:
            if rs_ == 8:
                n = until(s, ring, F, 'vbar')
                if n: print("   forced", n, "fillers before a8 in", s.name)
            bar(s, ring, f"a{rs_}", bars[rs_][0], bars[rs_][1], lg0=True); log.append(f"|a{rs_}/{st['clk']}")
        if NR <= rs_ < 36: bread(ring, ch, rs_)(s)
        if t == 26: assert not F, F
        if t == 25:
            ys = [ring.free.pop(0) for _ in range(3)]
            drain(s, [blk(f"s_lshl_b32 s4, {sRT2}, 11\nv_add_u32 v9, s4, {vA16}")] + xaddr(ys))
        if t == 27:
            stamp('yend')(s)
            drain(s, ["v_permlane32_swap_b32 v16, v18", "v_permlane32_swap_b32 v17, v19"])
            for j in range(4): drain(s, [f"v_lshlrev_b32 v{XT+24+2*j}, 16, v{16+j}", f"v_and_b32 v{XT+25+2*j}, 0xffff0000, v{16+j}"])
            W = xwrite(YA)
        if 27 <= t < YB - 1:
            k = -(-len(W) // (YB - 1 - t))
            drain(s, W[:k]); W = W[k:]
        if t == YB - 1:
            ss = [ring.free.pop(0) for _ in range(2)] + [9]
            rdl, V = xread(ys, OWNY, XT)
            drain(s, rdl + xaddr(ss))
            for j in range(8): V.append(f"v_mul_f32 v{XT+j}, 0xbfb8aa3b, v{OWNY+j}")
            for j in range(8): V.append(f"v_exp_f32 v{XT+j}, v{XT+j}")
            for j in range(8): V.append(f"v_add_f32 v{XT+j}, 1.0, v{XT+j}")
            for j in range(8): V.append(f"v_rcp_f32 v{XT+j}, v{XT+j}")
            for j in range(8): V.append(f"v_mul_f32 v{OWNY+j}, v{OWNY+j}, v{XT+j}")
        if YB <= t < 35:
            drain(s, V[:CFG['TV']]); V = V[CFG['TV']:]
    print("   sched", s.name, " ".join(log), "end", st['clk'])
    stamp('send')(s)
    W = xwrite(SA)
    drain(s, V[:10]); V = V[10:]
    for w in W:
        drain(s, [w] + V[:6]); V = V[6:]
    drain(s, V)
    s.wait(lg=0); s.e("s_barrier")
    rdl, V = xread(ss, OWNS, XT)
    if CFG['PKT']:
        V = [pk2("add", XT + j, XT + j, XT + 8 + j) for j in range(0, 8, 2)] + [pk2("add", OWNS + j, OWNS + j, XT + 16 + j) for j in range(0, 8, 2)] + [pk2("add", OWNS + j, OWNS + j, XT + j) for j in range(0, 8, 2)]
    drain(s, rdl + V)
    for j in range(8): s.e(f"v_fma_f32 v{OWNS+j}, v{OWNS+j}, v{OWNY+j}, v{XT+24+j}")
    for j in range(4): s.e(f"v_cvt_pk_bf16_f32 v{16+j}, v{OWNS+2*j}, v{OWNS+2*j+1}")
    s.e("v_permlane32_swap_b32 v16, v18\nv_permlane32_swap_b32 v17, v19")
    s.e(f"buffer_store_dwordx4 v[16:19], v20, {sOut}, {sUC} offen")
    stamp('st')(s)
    if PROFILE:
        s.raw("s_waitcnt vmcnt(0) lgkmcnt(0)")
        stamp("end")(s)
        s.raw("s_waitcnt lgkmcnt(0)")
        n = len(s.snames)
        for i in (n - 2, n - 1): s.raw(f"v_writelane_b32 v29, s{STAMP0+2*(i%4)}, {i}")
        s.e(f"v_subrev_u32 v29, s96, v29\nv_lshlrev_b32 v16, 2, v0")
        s.raw("s_memrealtime s[84:85]\ns_waitcnt lgkmcnt(0)\nv_writelane_b32 v29, s58, 62\nv_writelane_b32 v29, s84, 63")
        s.e(f"s_lshl_b32 s3, {sBID}, 11\ns_lshl_b32 s4, {sW}, 8\ns_add_u32 s3, s3, s4\ns_add_u32 s3, s3, {PROF_OFF}")
        s.e(f"buffer_store_dword v29, v16, {sWs}, s3 offen")
        if CFG.get('DBG') is not None:
            lab = label()
            s.e(f"s_cmp_lg_u32 {sBID}, {CFG['DBG']}\ns_cbranch_scc1 {lab}\ns_cmp_lg_u32 {sW}, 0\ns_cbranch_scc1 {lab}")
            idx = list(range(n - 1, -1, -3))[:16][::-1]
            for k, i in enumerate(idx):
                s.raw(f"v_readlane_b32 s4, v29, {i}\ns_nop 1\nv_mov_b32 v17, s4\nbuffer_store_dword v17, {vFO}, {sDbg}, 0 offen offset:{4*k}\ns_nop 1")
            s.e(f"{lab}:")
            if s.name in ('A0', 'B0'): print("DBG", s.name, [s.snames[i] for i in idx])
        open(f"snames_{s.name}.txt", "w").write(" ".join(s.snames))
    s.e("s_endpgm")
    s.slots = (dict(ring.slot), ys, ss)
    print("   ring", s.name, " ".join(f"{k}:{v[0]}>{v[1]}" for k, v in ring.log.items()))

SCR_DUM = SCR + 15360
def touchB(s):
    if not CFG['TB']: return
    s.e(f"s_lshl_b32 s4, {sBID}, 3\ns_add_u32 s4, s4, {sW}\ns_mul_i32 s5, s4, 896\ns_lshl_b32 s4, s4, 8\ns_mov_b32 m0, {SCR_DUM}")
    s.e(f"v_min_u32 {vT}, 6, v0\nv_lshlrev_b32 {vT}, 7, {vT}")
    s.e(f"buffer_load_dword {vT}, {sW2}, s5 offen lds")
    s.e(f"v_min_u32 {vT}, 1, v0\nv_lshlrev_b32 {vT}, 7, {vT}")
    s.e(f"buffer_load_dword {vT}, {sWo}, s4 offen lds")
def touchW(s):
    if not CFG['TW']: return
    s.e(f"s_lshl_b32 s4, {sBID}, 3\ns_add_u32 s4, s4, {sW}\ns_mul_i32 s5, s4, 896\ns_mul_i32 s4, s4, 768\ns_mov_b32 m0, {SCR_DUM}")
    s.e(f"v_min_u32 {vT}, 6, v0\nv_lshlrev_b32 {vT}, 7, {vT}")
    s.e(f"buffer_load_dword {vT}, {sW1}, s5 offen lds")
    s.e(f"v_min_u32 {vT}, 5, v0\nv_lshlrev_b32 {vT}, 7, {vT}")
    s.e(f"buffer_load_dword {vT}, {sWq}, s4 offen lds")
def touch2(c, hf=None):
    def f(s):
        if c == 0 and not hf:
            if hf is None: s.e(f"s_lshl_b32 s4, s87, 3")
            else: s.e(f"s_lshr_b32 s4, s87, 4\ns_lshl_b32 s4, s4, 3\ns_and_b32 s5, s87, 7\ns_add_u32 s4, s4, s5\ns_lshl_b32 s4, s4, 3")
            s.e(f"s_add_u32 s4, s4, {sW}\ns_lshr_b32 s5, s4, 6\ns_and_b32 s4, s4, 63\ns_lshl_b32 s4, s4, 10\n"
                f"s_mul_i32 s90, s5, {448*1024}\ns_add_u32 s90, s90, s4\ns_lshl_b32 s91, s5, 17\ns_add_u32 s91, s91, s4")
        s.e(f"s_mov_b32 m0, {SCR_DUM}")
        h = hf or 0
        if c < 7: s.e(f"s_add_u32 {sSoW}, s90, {ORDER[4*c]*16384 + h*896*1024}\nbuffer_load_dwordx4 {vA16}, {sW2}, {sSoW} offen lds")
        else: s.e(f"s_add_u32 {sSoW}, s91, {(c-7)*65536 + h*256*1024}\nbuffer_load_dwordx4 {vA16}, {sWo}, {sSoW} offen lds")
    return f
def touch3(c, ch):
    def f(s):
        wv = CFG['T3W'][c]
        if wv // 4 != ch: return
        lab = label()
        s.e(f"s_cmp_lg_u32 {sW}, {wv}\ns_cbranch_scc1 {lab}")
        mul = 448 * 1024 if c < 7 else 128 * 1024
        off = ORDER[4 * c] * 16384 if c < 7 else (c - 7) * 65536
        s.e(f"s_lshr_b32 s90, s87, 3\ns_mul_i32 s90, s90, {mul}\ns_and_b32 s91, s87, 7\ns_lshl_b32 s91, s91, 13\ns_add_u32 s90, s90, s91\ns_add_u32 s90, s90, {off}\ns_mov_b32 m0, {SCR_DUM}")
        s.e(f"v_lshlrev_b32 v{CSA+3}, 7, v0")
        s.raw(f"buffer_load_dword v{CSA+3}, {sW2 if c < 7 else sWo}, s90 offen lds")
        s.e(f"{lab}:")
    return f
def add_touch(segs, typ):
    if CFG['T2'] == 3:
        for c, at in enumerate(CFG['T2AT']): segs[at // 32].posts.setdefault(at % 32, []).append(touch3(c, segs[0].ch))
    for c, at in enumerate(CFG['T2AT']):
        if CFG['T2'] == 1: segs[at // 32].posts.setdefault(at % 32, []).append(touch2(c))
        if CFG['T2'] == 2 and typ == 'A':
            segs[at // 32].posts.setdefault(at % 32, []).append(touch2(c, 0))
            segs[(at + 2) // 32].posts.setdefault((at + 2) % 32, []).append(touch2(c, 1))

def touchA(t0, n, mask, T, T2, vp=vPoll):
    def f(s):
        if not CFG['TA']: return
        lab = label()
        s.e(f"v_min_u32 {T}, {n-1}, v0")
        if t0 < 28 and n > 4:
            d = ORDER[t0 + 4] - ORDER[t0] - 4
            s.e(f"v_lshrrev_b32 {T2}, 2, {T}\nv_mul_u32_u24 {T2}, {d}, {T2}\nv_add_u32 {T}, {T}, {T2}")
        off = ORDER[t0] * 1024 if t0 < 28 else 0
        s.e(f"v_lshlrev_b32 {T}, 10, {T}\ns_lshl_b32 {sSoW}, {sCB}, 7\ns_add_u32 {sSoW}, {sSoW}, {sA2y if t0 < 28 else sA2s}\ns_add_u32 {sSoW}, {sSoW}, {off}\ns_mov_b32 m0, {SCR_DUM}")
        s.e(f"v_cmp_ne_u32 vcc, 0, {vp}\ns_andn2_b32 {sT0}, {mask:#x}, vcc_lo\ns_cbranch_scc1 {lab}")
        s.raw(f"buffer_load_dword {T}, {sWs}, {sSoW} offen sc1 lds")
        s.e(f"{lab}:")
    return f

def ilv(st, co):
    out = st[:3] + co[:3] + [st[3]]
    a, b = st[4:], co[3:-1]
    while a or b:
        if a: out.append(a.pop(0))
        if a and len(a) > 2 * len(b): out.append(a.pop(0))
        if b: out.append(b.pop(0))
    return out + co[-1:]
def p0_items(a, b):
    it = []
    for c in range(4): it += x_items(c) + [a[c]]
    return it + b
def packin(acc): return [f"v_cvt_pk_bf16_f32 v{acc+j}, v{acc+2*j}, v{acc+2*j+1}" for j in range(8)]
def N(n, lo, hi): return [f"{n}{c}" for c in range(lo, hi)]
initchk = lambda s: poll_check(s, sDbg, "0", 0xffffffff, imm=128)
pollA = lambda s: poll_issue(s, sWs, sFL2)

def stream_A(s0, ch):
    CB, DB = CFG['CB'], CFG['DB']
    s = s0.fork(f"A{ch}"); s.e(f"L_typeA{ch}:")
    bl = unit_bases(s, 'A')
    items = p0_items(w_items("K", sWq, vDq, sUA, 3072), w_items("V", sWq, vDq, sUB, 3072)) + w_items("H", sW1, vD1, sUC, 3584) + b_items(0)
    ring = Ring(items, range(9), ch); ring.hold = ('XL3', 'XH3'); ring.upto0 = "V3"
    start(s, ring, bl)
    s.e(f"s_lshl_b32 {sSCRW}, {sW}, 12\ns_add_u32 {sSCRW}, {sSCRW}, {2*SLOT}")
    s.marks.update(f1=1, f2=1, fo=1)
    uK = dict(name="K", acc=ACC_A, trans=True, kind='w', csi=0)
    uV = dict(name="V", acc=ACC_B, trans=False, kind='w', csi=1)
    uH = dict(name="H", acc=ACC_C, trans=True, kind='w', csi=0)
    F = [('wait', 'c1')] + ilv(stats_fin(PT), correct(uK, ch, PT + 8))
    F += ["v_lshrrev_b32 v26, 5, v0", "v_lshlrev_b32 v26, 1, v26", "v_bfe_u32 v25, v0, 1, 2", "v_xor_b32 v26, v25, v26", f"v_lshlrev_b32 v25, 4, {vP4}", "v_lshl_add_u32 v25, v26, 4, v25",
          f"v_add_u32 v25, {sSCRW}, v25", "v_xor_b32 v24, 16, v25", initchk]
    F += packin(ACC_A)
    F += [f"{MF} {R(PT,16)}, {R(PHI,4)}, {R(ACC_A,4)}, 0", f"{MF} {R(ACC_C,16)}, {R(PHI+4,4)}, {R(ACC_A+4,4)}, 0", ('gap', 12)]
    for h, P in enumerate((PT, ACC_C)):
        if h == 1 and CFG['PKA']:
            sm = softmax_pk(P, ACC_A + 8, "v26", vT, PHI); F += sm[:9] + [('wait', 'c2')] + sm[9:]
        else: F += softmax(P, ACC_A + 8, "v26", vT)
        F += [f"ds_write_b128 v25, {R(ACC_A+8,4)} offset:{2048*h}", f"ds_write_b128 v24, {R(ACC_A+12,4)} offset:{2048*h}"]
    F += [('wait', 'c2')]
    F += ["v_lshrrev_b32 v26, 5, v0", "v_lshlrev_b32 v26, 4, v26", blk(f"s_lshl_b32 s4, {sRT}, 7\ns_add_u32 s4, s4, {SCR_RS}\nv_add_u32 {vT}, s4, v26")]
    for q in range(4): F.append(f"ds_read_b128 {R(PT+4*q,4)}, {vT} offset:{32*q}")
    F += ["v_bfe_u32 v25, v0, 2, 2", "v_lshlrev_b32 v25, 6, v25", "v_lshl_add_u32 v25, v26, 4, v25", f"v_bfe_u32 {vT}, v0, 4, 1", f"v_cmp_eq_u32 s[94:95], 1, {vT}",
          "v_lshrrev_b32 v24, 5, v0", f"v_xor_b32 {vT}, v24, {vT}", f"v_lshl_add_u32 v25, {vT}, 5, v25",
          "v_lshrrev_b32 v24, 2, v0", "v_xor_b32 v24, v24, v0", "v_bfe_u32 v24, v24, 1, 1", "v_lshl_add_u32 v25, v24, 4, v25",
          f"v_and_b32 {vT}, 1, v0", f"v_lshl_add_u32 v25, {vT}, 3, v25", f"v_add_u32 v25, {sSCRW}, v25", f"v_mov_b32 {vT}, {sC11}"]
    for t in range(2):
        for rd in range(2): F.append(f"ds_read_b64_tr_b16 {R(PHI+4*t+2*rd,2)}, v25 offset:{2048 + t*1024 + rd*512}")
    F += [pk2("mul", ACC_B + r, ACC_B + r, PT + r) for r in range(0, 16, 2)] if CFG['PKA'] else [f"v_mul_f32 v{ACC_B+r}, v{ACC_B+r}, v{PT+r}" for r in range(16)]
    F += packin(ACC_B)
    for t in range(2):
        for rd in range(2): F.append(f"ds_read_b64_tr_b16 {R(ACC_B+8+4*t+2*rd,2)}, v25 offset:{t*1024 + rd*512}")
    for j in range(8): F.append(f"v_cndmask_b32 v{ACC_A+8+j}, {vT}, v{ACC_B+j}, s[94:95]")
    for j in range(8): F.append(f"v_cndmask_b32 v{ACC_A+j}, v{ACC_B+j}, {vT}, s[94:95]")
    F += [f"{MF} {R(PT,16)}, {R(ACC_A,4)}, {R(ACC_B+8,4)}, 0", f"{MF} {R(PT,16)}, {R(ACC_A+4,4)}, {R(ACC_B+12,4)}, {R(PT,16)}",
          f"{MF} {R(ACC_B,16)}, {R(ACC_A+8,4)}, {R(PHI,4)}, 0", f"{MF} {R(ACC_B,16)}, {R(ACC_A+12,4)}, {R(PHI+4,4)}, {R(ACC_B,16)}"]
    F += [f"v_add_u32 v25, {sSCRW}, {vA16}", blk(f"s_lshl_b32 s4, {sW}, 9\ns_add_u32 s4, s4, {SCR_Z}\nv_lshlrev_b32 v26, 2, v0\nv_add_u32 v26, s4, v26")]
    F += [f"ds_write_b128 v25, {R(PT,4)}", f"ds_write_b128 v25, {R(PT+4,4)} offset:1024", f"ds_write_b32 v26, v{PT+8}",
          f"ds_write_b128 v25, {R(ACC_B+8,4)} offset:2048", f"ds_write_b128 v25, {R(ACC_B+12,4)} offset:3072", f"ds_write_b32 v26, v{ACC_B} offset:256"]
    F += [blk(f"s_lshl_b32 s4, {sRT}, 10\ns_add_u32 s4, s4, {2*SLOT + ch*SLOT}\nv_add_u32 v25, s4, {vA16}"),
          blk(f"s_lshr_b32 s4, {sRT}, 1\ns_lshl_b32 s4, s4, 8\ns_add_u32 s4, s4, {SCR_Z + ch*2048}\nv_add_u32 v26, s4, {vP4}"), mark('kvw')]
    ER = [f"ds_read_b128 {R(PT+4*r,4)}, v25 offset:{r*4096}" for r in range(4)] + [f"ds_read_b32 v{ACC_A+r}, v26 offset:{r*512}" for r in range(4)]
    ER += ["v_lshrrev_b32 v25, 5, v0", f"v_lshl_add_u32 v25, v25, 9, {vP4}", blk(f"s_lshl_b32 s5, {sRT2}, 10\nv_add_u32 v25, s5, v25"),
           f"v_lshrrev_b32 {vT}, 4, v0", f"v_cmp_eq_u32 s[94:95], {sRT2}, {vT}", f"v_mov_b32 {vT}, {BIG}",
           blk(f"s_and_b32 s5, {sG}, 1\ns_mul_i32 s5, s5, {10*1024}\ns_add_u32 s5, s5, {ch*2048}\ns_add_u32 {sUD}, {sKS}, s5\ns_lshl_b32 s4, {sI}, 7\ns_add_u32 {sKVF}, {sKVF}, s4"),
           f"v_cndmask_b32 v26, {vT}, {vP4}, s[94:95]"]
    for j in range(4): ER += [f"v_add_f32 v{PT+j}, v{PT+j}, v{PT+4+j}", f"v_add_f32 v{PT+8+j}, v{PT+8+j}, v{PT+12+j}"]
    for j in range(4): ER.append(f"v_add_f32 v{PT+j}, v{PT+j}, v{PT+8+j}")
    ER += [f"v_add_f32 v{ACC_A}, v{ACC_A}, v{ACC_A+1}", f"v_add_f32 v{ACC_A+2}, v{ACC_A+2}, v{ACC_A+3}", f"v_add_f32 v{ACC_A}, v{ACC_A}, v{ACC_A+2}"]
    for j in range(4): ER.append((f"buffer_atomic_add_f32 v{PT+j}, v25, {sWs}, {sKVs} offen offset:{j*128}", "kv"))
    ER += [(f"buffer_atomic_add_f32 v{ACC_A}, v26, {sWs}, {sKVs} offen offset:2048", "kv"), stamp('kvat')]
    EH = correct(uH, ch, PHI, BI0) + fin_setup() + (mish_pk if CFG['PKH'] else mish)(ACC_C, PT + 8, sUD, "actA")
    fkv = flag_store("kv", sKVF, 0, 'fkv'); f3 = flag_store("actA", sFL, 2 * 128, 'f3')
    pr = lambda c: [bnm(0, c), bnm(1, c)]
    m0 = pass0(s, ring, uK, ch, bl, "V3", ["V0"])
    mV = MSeg(ring, uV, ch, {CB: [B(ring, "c1", ["V1", "V2"], ["K3"])], DB: [B(ring, "d1", ["V3", "H0"], N("V", 0, 2))]}, dma=CFG['ST'])
    if CFG['EA']:
        def h1(s):
            until(s, ring, FH, 'erd')
            bar(s, ring, "h1", [], ["H0"] + pr(0), extra=[2, 3])
        mH = MSeg(ring, uH, ch, {15: [h1], DB + 2: [B(ring, "h2", ["H3"] + pr(1), ["H1"])]},
              {6: [lambda s: drain(s, p2_setup(ring))], 7: pull(ring, ch, 0)[:2], 8: pull(ring, ch, 0)[2:], 22: pull(ring, ch, 1)[:2], 24: pull(ring, ch, 1)[2:], 27: [pollA], CFG['KVW']: [fkv]}, dma=CFG['ST'])
    else:
        mH = MSeg(ring, uH, ch, {DB: [B(ring, "h2", ["H3"] + pr(0), N("H", 0, 2), extra=[2, 3])]},
                  {18: [lambda s: drain(s, p2_setup(ring))], 22: pull(ring, ch, 0)[:2], 24: pull(ring, ch, 0)[2:], 27: [pollA], CFG['KVW']: [fkv]}, dma=CFG['ST'])
    m0.posts.setdefault(29, []).append(lambda s: drain(s, phi_frags()))
    add_touch([m0, mV, mH], 'A')
    m0.run(s, mV); mV.run(s, None, F, CFG['KB'] + CFG['KD'] * (1 - 2 * ch))
    bar(s, ring, "c2", [], N("V", 2, 4), lg0=True)
    print("   A V-only block:", len(F))
    VB_ = correct(uV, ch, WB) + F + [mH.pre]
    if CFG.get('VST'):
        for k in range(len(VB_) // 12 * 12, 0, -12): VB_.insert(k, stamp(f"v{k}"))
    vseg(s, ring, VB_, flush=False)
    bar(s, ring, "d2", ["H1", "H2"] + (pr(0) if CFG['EA'] else []))
    FH = list(ER) + [mark('erd')]
    mH.run(s, None, FH, CFG['VB'])
    assert not FH
    if CFG['EA']:
        bar(s, ring, "e1", [], N("H", 2, 4) + pr(1), lg0=True); ring.rel8 = []
    else:
        bar(s, ring, "e1", pr(1), N("H", 2, 4) + pr(0), lg0=True)
        drain(s, pull(ring, ch, 1))
        ring.rel8 = pr(1)
    s.marks.update(vbar=1, p1=1)
    F = EH + [mark('v1'), mark('v0'), ('hold', CFG['F3G']), f3]
    aphase(s, ring, ch, F, list(range(36, 64, 4)) + list(range(80, 96, 4)) + [100, 120, 124], {'v1': [104, 108, 112, 116]}, CFG['TOFF'])
    return s

def stream_B(s0, ch):
    CB, DB = CFG['CB'], CFG['DB']
    s = s0.fork(f"B{ch}"); s.e(f"L_typeB{ch}:")
    bl = unit_bases(s, 'B')
    H5 = [(f"F{c}", sW1, vD5, sUD, 0, 16 * 3584, 0, 128 * 3584, lambda hf, c=c: 2 * c + hf) for c in range(2)]
    items = p0_items(w_items("U", sW1, vD1, sUA, 3584), w_items("Y", sW1, vD1, sUB, 3584))
    Qi = w_items("Q", sWq, vDq, sUC, 3072); bi = b_items(1)
    items += H5 + [Qi[0]] + bi[:2] + [Qi[1], Qi[2]] + bi[2:4] + [Qi[3]] + bi[4:] if CFG['EB'] else H5 + Qi + bi
    ring = Ring(items, range(9), ch); ring.upto0 = "Y3"; ring.strict = bool(CFG['EB'])
    start(s, ring, bl)
    s.e(f"s_and_b32 s5, {sG}, 1\ns_cmp_eq_u32 s5, 0\ns_cselect_b32 s5, 4, 2\ns_cselect_b32 s4, {12*1024}, 0\ns_lshl_b32 s5, s5, 10\n"
        f"s_add_u32 {sSCRW}, {sKS}, s4\ns_add_u32 s5, s5, {ch*2048}\ns_add_u32 {sKS}, {sKS}, s5")
    uU = dict(name="U", acc=ACC_A, trans=True, kind='w', csi=0)
    uY = dict(name="Y", acc=ACC_B, trans=True, kind='w', csi=1)
    uF = dict(name="F", acc=ACC_C, trans=True, kind='h5', csi=0)
    uQ = dict(name="Q", acc=ACC_A, trans=True, kind='w', csi=1)
    EU = ilv(stats_fin(PT), correct(uU, ch, PT + 8, BI0)) + [initchk, ('gap', 10)] + mish(ACC_A, PT, sKS, "act1") + [f"s_add_u32 {sKS}, {sKS}, 4096"]
    EY = correct(uY, ch, PT + 8, BI1) + [mark('b1dead'), ('gap', 16)] + mish(ACC_B, PT, sKS, "act2")
    EF = correct(uF, ch, PT + 8, BI2) + [('gap', 16)] + mish(ACC_C, PT, sSCRW, "act5")
    EQ = correct(uQ, ch, PT + 12) + phi_frags() + pack16(ACC_A, PK)
    EQ += [f"{MF} {R(PT,16)}, {R(PHI,4)}, {R(PK,4)}, 0", f"{MF} {R(ACC_B,16)}, {R(PHI+4,4)}, {R(PK+4,4)}, 0"] + fin_setup()
    if CFG['PK']: EQ += softmax_pk(PT, ACC_A, "v26", vT, PHI) + softmax_pk(ACC_B, ACC_A + 8, "v26", vT, PHI)
    else: EQ += softmax(PT, ACC_A, "v26", vT) + softmax(ACC_B, ACC_A + 8, "v26", vT)
    f1 = flag_store("act1", sFL, 0, 'f1'); f2 = flag_store("act2", sFL, 128, 'f2'); f3 = flag_store("act5", sFL, 3 * 128, 'f3')
    pr = lambda c: [bnm(0, c), bnm(1, c)]
    FG = ('gap', CFG['FG'])
    F = [('wait', 'c1')] + EU + [mark('m1'), ('wait', 'c2')] + split(EY, 0.6, f1) + [mark('m2')]
    if ch == 0: F += [('wait', 'c3')] + split(EF, 0.6, f2) + [mark('m3')]
    else: F += [FG, f2, mark('m3'), mark('f3')]
    m0 = pass0(s, ring, uU, ch, bl, "Y3", ["Y0"])
    mY = MSeg(ring, uY, ch, {CB: [B(ring, "c1", ["Y1", "Y2"], ["U3"])], DB: [B(ring, "d1", ["Y3", "F0"], N("Y", 0, 2))]}, dma=CFG['ST'])
    c2 = B(ring, "c2", ["F1", "Q0"], N("Y", 2, 4), owner=1)
    if CFG['EB']:
        mQ = MSeg(ring, uQ, ch, {CB: [B(ring, "c3", ["Q1", "Q2"] + pr(0), ["F0", "F1"])], 15: [B(ring, "q1", pr(1), pr(0) + ["Q0"])], DB + 2: [B(ring, "d3", ["Q3"], ["Q1"] + pr(1))]},
              {5: [lambda s: (until(s, ring, F, 'b1dead'), drain(s, p2_setup(ring)))], 7: pull(ring, ch, 0)[:2], 8: pull(ring, ch, 0)[2:], 15: pull(ring, ch, 1)[:2], 16: pull(ring, ch, 1)[2:], 27: [pollA]}, dma=CFG['ST'])
    else:
        mQ = MSeg(ring, uQ, ch, {CB: [B(ring, "c3", ["Q1", "Q2"], ["F0", "F1"])], DB: [B(ring, "d3", ["Q3"] + pr(0), N("Q", 0, 2))]},
                  {15: [lambda s: (until(s, ring, F, 'b1dead'), drain(s, p2_setup(ring)))], 22: pull(ring, ch, 0)[:2], 24: pull(ring, ch, 0)[2:], CFG['TAP']: [pollA], CFG['TAT']: [touchA(0, 8, 0xf, 'v160', 'v161')], 27: [pollA]}, dma=CFG['ST'])
    add_touch([m0, mY, mQ], 'B')
    m0.run(s, mY)
    if ch == 0:
        mF = MSeg(ring, uF, ch, {CB: [c2]}, dma=CFG['ST'] // 2)
        mY.run(s, mF, F, CFG['P1B'] + CFG['PD']); mF.run(s, mQ, F, CFG['FB'])
    else:
        mY.run(s, None, F, CFG['P1B'] - CFG['PD']); c2(s); vrun(s, ring, F, CFG['IB']); mQ.pre(s)
    print("   B forced m1:", until(s, ring, F, 'm1'))
    mQ.run(s, None, F, CFG['QB'][ch])
    KS, OD, OD2, OF, OP = WB, PT, ACC_B, PHI, PK
    def kvfetch(s):
        poll_check(s, sWs, sKVF, 0xffff, vPoll2, vo="v21")
        s.e(f"s_lshl_b32 s5, {sRT2}, 10\ns_add_u32 s5, s5, {sKVs}")
        s.e(f"buffer_load_dwordx4 {R(KS,4)}, {vA16}, {sWs}, s5 offen sc1")
        s.e(f"v_and_b32 v21, 3, v0\nv_lshlrev_b32 v21, 4, v21\ns_lshl_b32 s5, {sRT2}, 6\ns_add_u32 s5, s5, {sKVs}")
        s.e(f"buffer_load_dwordx4 {R(KS+4,4)}, v21, {sWs}, s5 offen offset:2048 sc1")
    IM = [f"v_cvt_pk_bf16_f32 v{KS}, v{KS}, v{KS+1}", f"v_cvt_pk_bf16_f32 v{KS+1}, v{KS+2}, v{KS+3}",
          f"v_cvt_pk_bf16_f32 v{KS+4}, v{KS+4}, v{KS+5}", f"v_cvt_pk_bf16_f32 v{KS+5}, v{KS+6}, v{KS+7}",
          blk(f"s_mul_i32 s5, {sKQ}, 1088\ns_add_u32 s5, s5, {SCR_KV}\ns_lshl_b32 s4, {sRT2}, 9\ns_add_u32 s4, s4, s5\nv_lshlrev_b32 v25, 3, v0\nv_add_u32 v25, s4, v25\n"
              f"ds_write_b64 v25, {R(KS,2)}\ns_lshl_b32 s4, {sRT2}, 5\ns_add_u32 s4, s4, s5\nv_lshrrev_b32 v21, 1, v21\nv_add_u32 v21, s4, v21\nds_write_b64 v21, {R(KS+4,2)} offset:1024"),
          f"v_min_u32 v25, 64, {vP4}", "v_lshlrev_b32 v25, 4, v25", "v_lshrrev_b32 v26, 5, v0", "v_lshl_add_u32 v25, v26, 5, v25",
          blk(f"v_add_u32 v25, {SCR_KV + ch*2176}, v25\ns_lshl_b32 s5, {sG}, 12\ns_add_u32 s5, s5, {sAF}\ns_add_u32 {sSCRW}, s5, {112*1024 + ch*2048}")]
    O = [f"ds_read_b128 {R(OF,4)}, v25", f"ds_read_b128 {R(OF+4,4)}, v25 offset:16", f"ds_read_b128 {R(OP,4)}, v25 offset:1088", f"ds_read_b128 {R(OP+4,4)}, v25 offset:1104"]
    O += [f"{MF} {R(OD,16)}, {R(OF,4)}, {R(ACC_A,4)}, 0", f"{MF} {R(OD,16)}, {R(OF+4,4)}, {R(ACC_A+4,4)}, {R(OD,16)}",
          f"{MF} {R(OD2,16)}, {R(OP,4)}, {R(ACC_A+8,4)}, 0", f"{MF} {R(OD2,16)}, {R(OP+4,4)}, {R(ACC_A+12,4)}, {R(OD2,16)}"]
    for h, D in enumerate((OD, OD2)):
        O += [f"v_add_f32 v26, 0x358637bd, v{D+8}", "v_rcp_f32 v26, v26"]
        for j in range(8): O.append(f"v_mul_f32 v{D+j}, v{D+j}, v26")
        for j in range(4): O.append(f"v_cvt_pk_bf16_f32 v{ACC_A+4*h+j}, v{D+2*j}, v{D+2*j+1}")
        O.append((f"buffer_store_dwordx4 {R(ACC_A+4*h,4)}, {vA16}, {sWs}, {sSCRW} offen offset:{h*1024} sc1", "o"))
    O.append(stamp('ost'))
    if CFG['EB']: bar(s, ring, "e1", [], N("Q", 2, 4), lg0=True)
    else:
        bar(s, ring, "e1", pr(1), N("Q", 2, 4) + pr(0), lg0=True)
        drain(s, pull(ring, ch, 1))
    s.marks['p1'] = 1
    ring.rel8 = []
    def ins(L, back, item): return L[:len(L) - back] + [item] + L[len(L) - back:]
    F2 = F + EQ
    if ch == 0: F2 = ins(F2, 110, f3)
    kp = lambda s: (s.e("v_min_u32 v21, 15, v0\nv_lshlrev_b32 v21, 7, v21"), poll_issue(s, sWs, sKVF, vPoll2, vo="v21"))
    K1, K2, K3 = CFG['KS']
    if CFG['KM'] == 0:
        F2 = ins(ins(F2, CFG['KP'], kp), CFG['KF'], kvfetch)
        F2 += IM + [B(ring, "e2", [], [] if CFG['EB'] else pr(1), lg0=True), mark('vbar')] + O + [mark('v1'), mark('v0'), ('hold', CFG['OW']), flag_store("o", sFL, 4 * 128, 'fo')]
    elif CFG['KM'] == 2:
        s.marks['vbar'] = 1
        F2 = ins(ins(F2, CFG['KP'], kp), CFG['KF'], kvfetch)
        F2 += [mark('v0')] + IM + [('nextbar',)] + O + [mark('v1'), ('hold', CFG['OW']), flag_store("o", sFL, 4 * 128, 'fo')]
    else: F2 += [mark('v0'), mark('vbar'), ('tilt', K1), kp, ('tilt', K2), kvfetch, ('tilt', K3)] + IM + [('nextbar',)] + O + [mark('v1'), ('hold', CFG['OW']), flag_store("o", sFL, 4 * 128, 'fo')]
    ring.rel8 = pr(1) if (CFG['KM'] and not CFG['EB']) else []
    aphase(s, ring, ch, F2, [88, 92], {'f3': [64, 68, 72, 76], 'v1': [80, 84] + list(range(40, 64, 4)) + list(range(96, 128, 4))}, 0)
    return s

def build(path, listform=True):
    s0 = Stream("P")
    if PROFILE: s0.e("s_memtime s[96:97]\ns_memrealtime s[58:59]")
    prologue(s0)
    s0.e(f"s_lshl_b32 s5, {sTY}, 1\ns_add_u32 s5, s5, {sCH}\ns_cmp_eq_u32 s5, 0\ns_cbranch_scc1 L_typeA0\ns_cmp_eq_u32 s5, 1\ns_cbranch_scc1 L_typeA1\ns_cmp_eq_u32 s5, 3\ns_cbranch_scc1 L_typeB1")
    B0 = stream_B(s0, 0); B1 = stream_B(s0, 1); A0 = stream_A(s0, 0); A1 = stream_A(s0, 1)
    assert B0.nbar == B1.nbar and A0.nbar == A1.nbar
    assert B0.slots == B1.slots and A0.slots == A1.slots
    hdr = open("recurrent_scan__linear_kernel_hedgehog__dense_activation_mish__prompt.s.ref").read().split("; Override")[0]
    T = [hdr.rstrip(), f"; @launch {'kernel=' + KNAME + ' ' if listform else ''}grid=(256,1,1) block=(512,1,1) lds=163840",
         '.amdgcn_target "amdgcn-amd-amdhsa--gfx950"', ".text", f".globl {KNAME}", ".p2align 8", f".type {KNAME},@function", f"{KNAME}:"]
    S = [s0, B0, B1, A0, A1]
    for st in S:
        T.append(f"; ---- stream {st.name}  nops={st.stats['nop']} waits={st.stats['wait']} barriers={st.nbar}")
        T.append(st.text())
    for st in S: T += st.ool
    T.append("L_end:\n  s_endpgm")
    T.append(".fill 6144, 4, 0xbf800000")
    T.append(f'''.section .rodata,"a"
.p2align 6
.amdhsa_kernel {KNAME}
  .amdhsa_next_free_vgpr 256
  .amdhsa_next_free_sgpr 102
  .amdhsa_accum_offset 256
  .amdhsa_group_segment_fixed_size 0
  .amdhsa_kernarg_size 88
  .amdhsa_user_sgpr_count 2
  .amdhsa_user_sgpr_kernarg_segment_ptr 1
  .amdhsa_system_sgpr_workgroup_id_x 1
.end_amdhsa_kernel''')
    open(path, "w").write("\n".join(T) + "\n")
    for st in S: print(st.name, "instrs", len(st.out), st.stats, "barriers", st.nbar)

if __name__ == "__main__":
    for a in sys.argv[2:]:
        if a == "prof": PROFILE = True
        elif '=' in a:
            k, v = a.split('='); CFG[k] = eval(v)
    build(sys.argv[1], listform=("final" not in sys.argv))
```

```python
import sys
sys.path.insert(0, 'gen')
from ab import *

KNAME = "recurrent_scan__linear_kernel_hedgehog__dense_activation_mish__prompt_kernel"
PROFILE = False
SLOT = 16384
SCR = 9 * SLOT
SCR_PHI = SCR
SCR_RS = SCR + 2048
SCR_ST = SCR + 2560
SCR_CS = SCR + 6656
SCR_Z = SCR + 10752
SCR_KV = SCR + 10752
Z_OFF = 0x900000
KV_OFF = Z_OFF
KVFLAG_OFF = Z_OFF + 0x40000
ACTFLAG_OFF = Z_OFF + 0x16000
PROF_OFF = 0xA00000
BIG = 0x40000000
CFG = dict(AD=16, A0=8, AN=2, BN=1, G8=1, F3G=4, PB=[(200, 40), (80, 55), (80, 40)], SLP=8, T3W=[0, 1, 2, 3, 0, 1, 2, 3, 0], OWN='', KD=0, PD=0, UP=[0, 0, 0, 0, 1, 2, 2], PAR=2, FB4=0, PKA=1, PK=0, KM=0, KVW=16, KS=(0, 5, 10), KVP=12, TAP=8, TAT=20, TAD=2, CB=6, DB=22, TW=1, TWT=2, GT=[2000, 4000, 5500, 500], TOFF=-1000, LT=200, LT2=200, QD2=800, LAT=900, QD=800, PLT=1500, BL=6, VC=9, T2=0, T2AT=[30, 35, 40, 45, 50, 55, 60, 66, 72], PF=4, PL=4, S0=6, S1=6, PRIO=0, VD=10, KP=160, KF=110, OW=4, G16=8, G28=20, TV=12, TB=1, TBT=28, TA=0, TO=11, T0=0, T1=0, ROT=2, RATE=38, BURST=24576, ST=90,
    CRED=6, AGE=14, P1B=5, FB=5, QB=[10, 3], IB=200, KB=6, VB=8, KVG=60, EH0=60, FG=60, E1=[120, 100], E2=[100, 80])

sX, sWq, sW1, sW2, sWo, sPhi, sB1, sOut, sDbg, sWs = [f"s[{8+4*i}:{11+4*i}]" for i in range(10)]
sW, sRT, sCH, sI, sG, sTY, sRB, sCB, sKQ, sRT2 = [f"s{48+i}" for i in range(10)]
sT0 = "s3"
sC10, sC01, sC11 = "s58", "s59", "s60"
sM0W = "s61"; sSoW = "s62"
sUA, sUB, sUC, sUD = "s63", "s6", "s7", "s2"
sAF, sFL, sAF2, sFL2, sB2, sBo, sKVs, sKVF, sSCRW, sCNT, sKS, sBID = [f"s{64+i}" for i in range(12)]
sA2y, sA2s, sOo = "s0", "s1", "s5"
STAMP0 = 76

vA16 = "v1"; vDq = "v2"; vD1 = "v3"; vDB = "v4"; vD5 = "v5"
VW = 6
vRS, vRSL, vM2 = "v14", "v15", "v22"
CF = 16
BI0, BI1, BI2 = 23, 24, 25
vPoll = "v27"; vFO = "v28"; vOne = "v10"; vP4 = "v30"; vT = "v31"; vPoll2 = "v9"
ACC_A, ACC_B, ACC_C = 32, 48, 64
WB = 80; PT = 96; PHI = 112; PK = 120; XA = 128
XR = 64; XD = 72; HR = 112; STA = 96; CSB = 116; ASEL = 120; CSA = 124
sXb = "s86"; sRot = "s89"; ROT0 = 98

def R(b, n): return f"v[{b}:{b+n-1}]"
def ldsaddr(regs, byte): return regs[byte >> 16], byte & 0xffff
_nl = [0]
def label():
    _nl[0] += 1; return f"L{_nl[0]}"
def stamp(name):
    def f(s):
        if not PROFILE: return
        if not hasattr(s, 'snames'): s.snames = []
        idx = len(s.snames)
        if idx >= 61: return
        s.snames.append(str(name))
        s.e(f"s_memtime s[{STAMP0+2*(idx%4)}:{STAMP0+1+2*(idx%4)}]")
        if idx >= 2: s.raw(f"v_writelane_b32 v29, s{STAMP0+2*((idx-2)%4)}, {idx-2}")
    return f
def srd(s, dst, lo, hi, size):
    b = int(dst[2:dst.index(':')])
    s.e(f"s_mov_b32 s{b}, {lo}\ns_and_b32 s{b+1}, {hi}, 0xffff\ns_mov_b32 s{b+2}, {size}\ns_mov_b32 s{b+3}, 0x20000")
def poll_issue(s, srd_, soff, vp=vPoll, imm=0, vo=vP4):
    s.e(f"buffer_load_dword {vp}, {vo}, {srd_}, {soff} offen offset:{imm} sc1")
def poll_check(s, srd_, soff, mask, vp=vPoll, imm=0, vo=vP4):
    l1, l2, l3 = label(), label(), label()
    stamp(f"[p{imm//128}_{mask:x}")(s)
    s.e(f"v_cmp_ne_u32 vcc, 0, {vp}\ns_andn2_b32 {sT0}, {mask:#x}, vcc_lo\ns_cbranch_scc1 {l1}\n{l2}:")
    stamp(f"p]")(s)
    s.ool.append(f"""{l1}:
  s_mov_b32 {sCNT}, 0x10000
{l3}:
  s_sleep {CFG['SLP']}
  buffer_load_dword {vp}, {vo}, {srd_}, {soff} offen offset:{imm} sc1
  s_waitcnt vmcnt(0)
  v_cmp_ne_u32 vcc, 0, {vp}
  s_nop 1
  s_andn2_b32 {sT0}, {mask:#x}, vcc_lo
  s_cbranch_scc0 {l2}
  s_sub_u32 {sCNT}, {sCNT}, 1
  s_cmp_lg_u32 {sCNT}, 0
  s_cbranch_scc1 {l3}
  s_branch {l2}""")
def flag_store(tagwait, soff, imm, mark):
    def f(s):
        stamp("(" + mark)(s)
        s.wait_tag(tagwait)
        stamp(mark + ")")(s)
        s.e(f"buffer_store_dword {vOne}, {vFO}, {sWs}, {soff} offen offset:{imm} sc1")
        s.marks[mark] = 1
    return f
def blk(text): return lambda s: s.e(text)

class Ring:
    hold = ()
    def __init__(self, items, free, ch):
        self.items = list(items); self.free = list(free); self.slot = {}; self.q = []; self.log = {}; self.ch = ch
        self.order = {it[0]: k for k, it in enumerate(items)}; self.xres = True
    def release(self, name):
        if name not in self.hold: self.free.append(self.slot[name])
    def assign(self, s, owner='all', upto=None, maxn=99):
        k = 0
        while k < len(self.items) and maxn > 0:
            it = self.items[k]; nm = it[0]
            if upto is not None and self.order[nm] > self.order[upto]: break
            if nm[0] == 'X':
                want = 2 * (int(nm[2]) & 1) + (nm[1] == 'H')
                ok = [x for x in self.free if x == want]
                if not ok: k += 1; continue
            elif nm[0] in 'BF': ok = [x for x in self.free if not (self.xres and x < 4)]
            else: ok = [x for x in self.free if x != 0 and not (self.xres and x < 4)]
            if not ok:
                if nm[0] != 'B': k += 1; continue
                break
            if nm[0] in 'BF' and 0 in ok: ok = [0]
            self.items.pop(k); sl = ok[0]; self.free.remove(sl); self.slot[nm] = sl; maxn -= 1
            self.log[nm] = [s.nbar, None, owner]
            if owner == 'all': self.q += [(it, sl, h, 0) for h in range(2)]
            elif owner == self.ch: self.q += [(it, sl, h, o) for o in range(2) for h in range(2)]
            if nm == 'XH3': self.xres = False
        self.q.sort(key=lambda e: self.order[e[0][0]])
    def pump(self, s, n=1):
        while n > 0 and self.q:
            it, sl, h, other = self.q.pop(0)
            name, srd_, voff, sbase, o0, o1, dl = it[:7]
            sg = (1 if self.ch == 0 else -1) * other
            vo = voff[h] if isinstance(voff, tuple) else voff
            s.e(f"s_add_u32 m0, {sM0W}, {(sl*SLOT + h*1024 + sg*8192) & 0xffffffff:#x}")
            if len(it) > 7:
                mul, cidx = it[7], it[8](self.ch if not other else 1 - self.ch)
                key = (sbase, mul, cidx)
                if self.rkey != key:
                    s.e(f"s_mul_i32 {sRot}, s{ROT0+cidx}, {mul}\ns_add_u32 {sRot}, {sRot}, {sbase}")
                    self.rkey = key
                sbase = sRot
            s.e(f"s_add_u32 {sSoW}, {sbase}, {((o0, o1)[h] + sg*dl) & 0xffffffff:#x}")
            s.e(f"buffer_load_dwordx4 {vo}, {srd_}, {sSoW} offen lds", tag=name)
            n -= 1
    rkey = None
    cred = 0
    def pace(self, s, cycles, mx=99):
        self.cred = min(self.cred + cycles * CFG['RATE'], CFG['BURST'])
        while self.q and mx > 0:
            mx -= 1
            e = self.q[0]
            cost = (8192 if self.log[e[0][0]][2] == 'all' else 4096) * (2 if e[0][0][0] == 'F' else 1)
            if self.cred < cost: break
            self.cred -= cost; self.pump(s, 1)
    def need(self, s, name):
        assert name in self.slot, f"{name} has no slot yet"
        while any(e[0][0] == name for e in self.q):
            print("  warning: forced DMA issue for", name, "in", s.name)
            self.pump(s)
        if self.log[name][1] is None: self.log[name][1] = s.nbar
        s.wait_tag(name)
def x_items(q):
    return [(f"XL{q}", sX, (f"v{XD}", f"v{XD+1}"), sXb, 0, 0, 32768, 256, lambda c: q), (f"XH{q}", sX, (f"v{XD}", f"v{XD+1}"), sXb, 65536, 65536, 32768, 256, lambda c: q)]
def w_items(name, srd_, voff, sbase, stride):
    return [(f"{name}{c}", srd_, voff, sbase, 0, 8 * stride, 64 * stride, 128 * stride, lambda ch, c=c: c) for c in range(4)]
ORDER = [4, 5, 6, 7, 16, 17, 18, 19, 8, 9, 10, 11, 20, 21, 22, 23, 12, 13, 14, 15, 0, 1, 2, 3, 24, 25, 26, 27]
def b_item(hf, c):
    nm = f"B{'ab'[hf]}{c}"
    if c < 7:
        o = hf * 896 * 1024 + ORDER[4 * c] * 16384
        return (nm, sW2, vDB, sB2, o, o + 8192, 448 * 1024)
    o = hf * 256 * 1024 + (c - 7) * 65536
    return (nm, sWo, vDB, sBo, o, o + 8192, 128 * 1024)
def b_items(first):
    it = []
    for c in range(9): it += [b_item(0, c), b_item(1, c)]
    return it

def mish(acc, tmp, so, tag):
    F = []
    for hb in range(2):
        a = acc + 8 * hb
        for j in range(8): F.append(f"v_mul_f32 v{tmp+j}, v{a+j}, {vRSL}")
        for j in range(8): F.append(f"v_exp_f32 v{tmp+j}, v{tmp+j}")
        for j in range(8): F.append(f"v_add_f32 v{tmp+j}, 1.0, v{tmp+j}")
        for j in range(8): F.append(f"v_fma_f32 v{tmp+j}, v{tmp+j}, v{tmp+j}, 1.0")
        for j in range(8): F.append(f"v_rcp_f32 v{tmp+j}, v{tmp+j}")
        for j in range(8): F.append(f"v_fma_f32 v{tmp+j}, v{tmp+j}, {vM2}, {vRS}")
        for j in range(8): F.append(f"v_mul_f32 v{tmp+j}, v{a+j}, v{tmp+j}")
        for j in range(4): F.append(f"v_cvt_pk_bf16_f32 v{a+j}, v{tmp+2*j}, v{tmp+2*j+1}")
        F.append((f"buffer_store_dwordx4 {R(a,4)}, {vA16}, {sWs}, {so} offen offset:{hb*1024} sc1", tag))
    return F
def bc(r):
    n = int(r[1:]); return R(n & ~1, 2), n & 1
def pk2(op, d, a, b, c=None):
    ops = [R(a, 2)]; lo = [0]; hi = [1]
    for x in (b, c):
        if x is None: continue
        if isinstance(x, int): ops.append(R(x, 2)); lo.append(0); hi.append(1)
        elif x[0] == 'v':
            p, o = bc(x); ops.append(p); lo.append(o); hi.append(o)
        else: ops.append(x); lo.append(0); hi.append(0)
    f = lambda L: "[" + ",".join(map(str, L)) + "]"
    return f"v_pk_{op}_f32 {R(d,2)}, " + ", ".join(ops) + f" op_sel:{f(lo)} op_sel_hi:{f(hi)}"
def mish_pk(acc, tmp, so, tag):
    F = []
    for hb in range(2):
        a = acc + 8 * hb; E = range(0, 8, 2)
        F += [pk2("mul", tmp + j, a + j, vRSL) for j in E] + [f"v_exp_f32 v{tmp+j}, v{tmp+j}" for j in range(8)]
        F += [pk2("add", tmp + j, tmp + j, "1.0") for j in E] + [pk2("fma", tmp + j, tmp + j, tmp + j, "1.0") for j in E]
        F += [f"v_rcp_f32 v{tmp+j}, v{tmp+j}" for j in range(8)]
        F += [pk2("fma", tmp + j, tmp + j, vM2, vRS) for j in E] + [pk2("mul", tmp + j, tmp + j, a + j) for j in E]
        F += [f"v_cvt_pk_bf16_f32 v{a+j}, v{tmp+2*j}, v{tmp+2*j+1}" for j in range(4)]
        F.append((f"buffer_store_dwordx4 {R(a,4)}, {vA16}, {sWs}, {so} offen offset:{hb*1024} sc1", tag))
    return F
def softmax_pk(P, out, t0, t1, tp):
    F = softmax(P, out, t0, t1)[:9]; E = range(0, 16, 2)
    F += [pk2("fma", P + j, P + j, vRSL, t0) for j in E] + [f"v_exp_f32 v{P+j}, v{P+j}" for j in range(16)]
    F += [pk2("add", tp, P, P + 2), pk2("add", tp + 2, P + 4, P + 6), pk2("add", tp, tp, P + 8), pk2("add", tp + 2, tp + 2, P + 10),
          pk2("add", tp, tp, P + 12), pk2("add", tp + 2, tp + 2, P + 14), pk2("add", tp, tp, tp + 2), f"v_add_f32 {t0}, v{tp}, v{tp+1}", f"v_rcp_f32 {t0}, {t0}"]
    F += [pk2("mul", P + j, P + j, t0) for j in E] + [f"v_cvt_pk_bf16_f32 v{out+j}, v{P+2*j}, v{P+2*j+1}" for j in range(8)]
    return F
def softmax(P, out, t0, t1):
    F = [f"v_max3_f32 {t0}, v{P}, v{P+1}, v{P+2}", f"v_max3_f32 {t1}, v{P+3}, v{P+4}, v{P+5}",
         f"v_max3_f32 {t0}, {t0}, v{P+6}, v{P+7}", f"v_max3_f32 {t1}, {t1}, v{P+8}, v{P+9}",
         f"v_max3_f32 {t0}, {t0}, v{P+10}, v{P+11}", f"v_max3_f32 {t1}, {t1}, v{P+12}, v{P+13}",
         f"v_max3_f32 {t0}, {t0}, v{P+14}, v{P+15}", f"v_max_f32 {t0}, {t0}, {t1}", f"v_mul_f32_e64 {t0}, -{t0}, {vRSL}"]
    for j in range(16): F.append(f"v_fma_f32 v{P+j}, v{P+j}, {vRSL}, {t0}")
    for j in range(16): F.append(f"v_exp_f32 v{P+j}, v{P+j}")
    F += [f"v_add_f32 {t0}, v{P}, v{P+1}", f"v_add_f32 {t1}, v{P+2}, v{P+3}"]
    for j in range(4, 16, 2):
        F += [f"v_add_f32 {t0}, {t0}, v{P+j}", f"v_add_f32 {t1}, {t1}, v{P+j+1}"]
    F += [f"v_add_f32 {t0}, {t0}, {t1}", f"v_rcp_f32 {t0}, {t0}"]
    for j in range(16): F.append(f"v_mul_f32 v{P+j}, v{P+j}, {t0}")
    for j in range(8): F.append(f"v_cvt_pk_bf16_f32 v{out+j}, v{P+2*j}, v{P+2*j+1}")
    return F
def pack16(acc, out): return [f"v_cvt_pk_bf16_f32 v{out+j}, v{acc+2*j}, v{acc+2*j+1}" for j in range(8)]
def phi_frags():
    F = ["v_bfe_u32 v25, v0, 2, 2", "v_lshrrev_b32 v26, 5, v0", "v_lshl_add_u32 v25, v26, 2, v25", "v_lshlrev_b32 v25, 5, v25",
         "v_bfe_u32 v26, v0, 4, 1", "v_lshl_add_u32 v25, v26, 4, v25", "v_bfe_u32 v26, v0, 1, 1", "v_lshl_add_u32 v25, v26, 3, v25",
         blk(f"s_lshl_b32 s4, {sCH}, 10\ns_add_u32 s4, s4, {SCR_PHI}\nv_add_u32 v25, s4, v25")]
    for h in range(2):
        for rd in range(2): F.append(f"ds_read_b64_tr_b16 {R(PHI+4*h+2*rd,2)}, v25 offset:{h*512 + rd*256}")
    F += ["v_bfe_u32 v26, v0, 2, 1", "v_mul_u32_u24 v26, 0x8000, v26", "v_lshl_or_b32 v26, v26, 16, v26"]
    for j in range(8): F.append(f"v_xor_b32 v{PHI+j}, v26, v{PHI+j}")
    return F

def prologue(s):
    s.e("s_load_dwordx2 s[64:65], s[0:1], 0\ns_load_dwordx2 s[84:85], s[0:1], 80")
    s.e("s_load_dwordx8 s[68:75], s[0:1], 8\ns_load_dwordx8 s[76:83], s[0:1], 40\ns_load_dwordx2 s[66:67], s[0:1], 72")
    s.e("s_cmp_ge_u32 s2, 256\ns_cbranch_scc1 L_end")
    s.e("v_lshrrev_b32 v2, 6, v0\nv_and_b32 v0, 63, v0")
    s.e(f"v_readfirstlane_b32 {sW}, v2")
    s.e("s_and_b32 s3, s2, 7\ns_lshr_b32 s4, s2, 3" if not CFG.get('BADMAP') else "s_lshr_b32 s3, s2, 5\ns_and_b32 s4, s2, 31")
    s.e(f"s_and_b32 s5, s3, 1\ns_lshl_b32 s5, s5, 3\ns_and_b32 {sI}, s4, 7\ns_add_u32 {sI}, {sI}, s5")
    s.e(f"s_lshr_b32 {sKQ}, {sW}, 1\ns_and_b32 {sRT2}, {sW}, 1\ns_lshl_b32 {sM0W}, {sW}, 11")
    s.e(f"s_and_b32 {sRT}, {sW}, 3\ns_lshr_b32 {sCH}, {sW}, 2")
    s.e(f"s_lshr_b32 s5, s3, 1\ns_lshl_b32 s5, s5, 2\ns_lshr_b32 s6, s4, 3\ns_add_u32 s5, s5, s6")
    s.e(f"s_lshr_b32 {sG}, s5, 1\ns_and_b32 {sTY}, s5, 1")
    s.e({0: f"s_mov_b32 s{ROT0}, 0", 1: f"s_add_u32 s{ROT0}, s5, {sI}", 2: f"s_lshr_b32 s{ROT0}, s3, 1\ns_lshl_b32 s{ROT0+1}, s3, 1\ns_add_u32 s{ROT0}, s{ROT0}, s{ROT0+1}"}[CFG['ROT']])
    for c in range(1, 4): s.e(f"s_add_u32 s{ROT0+c}, s{ROT0}, {c}\ns_and_b32 s{ROT0+c}, s{ROT0+c}, 3")
    s.e(f"s_and_b32 s{ROT0}, s{ROT0}, 3")
    s.e(f"s_lshl_b32 {sRB}, s3, 2\ns_add_u32 {sRB}, {sRB}, s6\ns_and_b32 {sCB}, s4, 7\ns_mov_b32 s87, s4")
    s.e(f"v_lshrrev_b32 v33, 4, v0\nv_and_b32 v34, 15, v0\ns_lshl_b32 s5, {sRT2}, 3")
    for h in range(2):
        s.e(f"v_add_u32 v35, {4*h}, v33\nv_add_u32 v36, s5, v35\nv_xor_b32 v36, v34, v36\nv_lshlrev_b32 v36, 4, v36\nv_lshl_add_u32 v{XD+h}, v35, 10, v36")
    s.e(f"s_lshl_b32 {sXb}, {sI}, 17\ns_lshl_b32 s5, {sW}, 13\ns_add_u32 {sXb}, {sXb}, s5")
    s.e("v_lshrrev_b32 v36, 3, v0\nv_and_b32 v37, 7, v0\nv_lshlrev_b32 v38, 1, v36\nv_and_b32 v38, 4, v38\nv_xor_b32 v37, v37, v38\nv_lshlrev_b32 v37, 4, v37")
    s.e(f"v_mul_u32_u24 {vDq}, 3072, v36\nv_add_u32 {vDq}, {vDq}, v37\nv_mul_u32_u24 {vD1}, 3584, v36\nv_add_u32 {vD1}, {vD1}, v37")
    s.e(f"v_lshl_add_u32 {vDB}, v36, 10, v37\nv_lshlrev_b32 {vA16}, 4, v0")
    s.raw("s_waitcnt lgkmcnt(0)")
    srd(s, sX, "s64", "s65", 2048 * 512 * 2)
    srd(s, sWq, "s68", "s69", 512 * 1536 * 2)
    srd(s, sW1, "s76", "s77", 512 * 1792 * 2)
    srd(s, sWs, "s84", "s85", 0x10000000)
    s.e("s_cmp_ge_u32 s2, 32\ns_cbranch_scc1 L_noinit")
    s.e("v_mov_b32 v40, 0\nv_mov_b32 v41, 0\nv_mov_b32 v42, 0\nv_mov_b32 v43, 0")
    s.e(f"s_lshl_b32 s5, s2, 13\ns_lshl_b32 s6, {sW}, 10\ns_add_u32 s5, s5, s6\ns_add_u32 s5, s5, {Z_OFF}")
    s.raw(f"buffer_store_dwordx4 v[40:43], {vA16}, {sWs}, s5 offen sc1")
    s.e("s_add_u32 s5, s5, 0x40000")
    s.raw(f"buffer_store_dwordx4 v[40:43], {vA16}, {sWs}, s5 offen sc1")
    s.e("L_noinit:")
    s.e("s_mov_b32 s88, s2")

def prologue2(s):
    lab = label()
    s.e(f"s_cmp_lg_u32 {sW}, 7\ns_cbranch_scc1 {lab}")
    s.e(f"s_getpc_b64 s[90:91]\n{lab}x:\ns_sub_u32 s90, s90, {lab}x-{KNAME}\ns_subb_u32 s91, s91, 0\ns_mul_i32 s5, s87, 2560\nv_min_u32 v35, 19, v0\nv_lshlrev_b32 v35, 7, v35\nv_add_u32 v35, s5, v35")
    s.raw("global_load_dword v26, v35, s[90:91]")
    s.e(f"{lab}:")
    srd(s, sPhi, "s70", "s71", 32 * 512)
    srd(s, sB1, "s78", "s79", 1792 * 2)
    srd(s, sW2, "s80", "s81", 1792 * 512 * 2)
    srd(s, sWo, "s72", "s73", 512 * 512 * 2)
    srd(s, sOut, "s82", "s83", 2048 * 512 * 2)
    srd(s, sDbg, "s66", "s67", 256)
    s.e(f"s_mov_b32 {sBID}, s88\ns_mov_b32 {sC11}, 0x3f803f80")
    s.e(f"v_lshrrev_b32 v36, 2, v0\nv_and_b32 v37, 3, v0\nv_lshlrev_b32 v37, 4, v37\nv_mul_u32_u24 {vD5}, 3584, v36\nv_add_u32 {vD5}, {vD5}, v37")
    s.e(f"v_and_b32 {vP4}, 31, v0\nv_lshlrev_b32 {vP4}, 2, {vP4}")
    s.e(f"v_mov_b32 v29, 0\nv_mov_b32 {vFO}, {BIG}\nv_cmp_eq_u32 vcc, 0, v0\nv_cndmask_b32 {vFO}, {vFO}, 0, vcc")
    s.e("v_bfe_u32 v36, v0, 2, 2\nv_and_b32 v37, 3, v0\nv_bfe_u32 v38, v0, 4, 1\nv_lshrrev_b32 v39, 5, v0")
    s.e("v_lshlrev_b32 v40, 3, v37\nv_lshl_add_u32 v40, v38, 5, v40\nv_lshl_add_u32 v41, v39, 3, v36")
    s.e(f"v_lshrrev_b32 v42, 1, v36\nv_xor_b32 v42, {sCH}, v42\nv_lshlrev_b32 v42, 6, v42")
    s.e(f"v_lshl_add_u32 v43, v41, 7, v40\nv_add_u32 v43, v43, v42")
    for j in range(4):
        s.e(f"s_xor_b32 s5, {sRT}, {j}\ns_lshl_b32 s5, s5, 12\ns_add_u32 s5, s5, {SLOT}\nv_add_u32 v{VW+j}, s5, v43\nv_add_u32 v{VW+4+j}, 0x10000, v{VW+j}")
    s.e(f"v_and_b32 v44, 31, v0\ns_lshl_b32 s5, {sRT}, 5\nv_add_u32 v45, s5, v44\nv_xor_b32 v46, v39, v34\nv_lshlrev_b32 v46, 4, v46\nv_lshl_add_u32 v{XR}, v45, 8, v46")
    s.e(f"s_lshl_b32 s5, {sRT}, 6\nv_xor_b32 v{XR}, s5, v{XR}")
    for t in range(1, 8): s.e(f"v_xor_b32 v{XR+t}, {t<<5}, v{XR}")
    s.e(f"v_lshlrev_b32 v44, 2, v38\nv_cmp_eq_u32 vcc, v44, v34\nv_mov_b32 v44, {sC11}\nv_cndmask_b32 v{ASEL}, 0, v44, vcc")
    for j in range(1, 4): s.e(f"v_mov_b32 v{ASEL+j}, v{ASEL}")
    s.e(f"v_mov_b32 v{CF+4}, 0\nv_mov_b32 v{CF+5}, 0")
    s.e(f"s_lshl_b32 s3, {sI}, 2\ns_add_u32 s3, s3, {sRT}\ns_mul_i32 {sAF}, s3, {144*1024}")
    s.e(f"s_mul_i32 {sKS}, {sG}, {14*1024}\ns_add_u32 {sKS}, {sKS}, {sAF}")
    s.e(f"s_lshl_b32 {sFL}, s3, 2\ns_lshr_b32 s4, {sG}, 1\ns_add_u32 {sFL}, {sFL}, s4\ns_mul_i32 {sFL}, {sFL}, 640")
    s.e(f"s_and_b32 s4, {sG}, 1\ns_lshl_b32 s4, s4, 3\ns_lshl_b32 s5, {sCH}, 2\ns_add_u32 s4, s4, s5\ns_add_u32 {sFL}, {sFL}, s4\ns_add_u32 {sFL}, {sFL}, {ACTFLAG_OFF}")
    s.e(f"s_lshl_b32 s3, {sRB}, 1\ns_add_u32 s3, s3, {sRT2}\ns_mul_i32 {sAF2}, s3, {144*1024}")
    s.e(f"s_lshl_b32 {sFL2}, s3, 2\ns_add_u32 {sFL2}, {sFL2}, {sKQ}\ns_mul_i32 {sFL2}, {sFL2}, 640\ns_add_u32 {sFL2}, {sFL2}, {ACTFLAG_OFF}")
    s.e(f"s_mul_i32 {sB2}, {sCH}, {448*1024}\ns_lshl_b32 s4, {sRT}, 14\ns_lshl_b32 s5, {sCB}, 7\ns_add_u32 s4, s4, s5\ns_add_u32 {sB2}, {sB2}, s4")
    s.e(f"s_lshl_b32 {sBo}, {sCH}, 17\ns_add_u32 {sBo}, {sBo}, s4")
    s.e(f"s_lshl_b32 s3, {sG}, 2\ns_add_u32 s3, s3, {sKQ}\ns_mul_i32 {sKVs}, s3, 2176\ns_add_u32 {sKVs}, {sKVs}, {KV_OFF}")
    s.e(f"s_lshl_b32 s3, {sG}, 3\ns_add_u32 s3, s3, {sW}\ns_lshl_b32 {sKVF}, s3, 11\ns_add_u32 {sKVF}, {sKVF}, {KVFLAG_OFF}")
    s.e(f"s_mul_i32 s3, {sKQ}, {28*1024}\ns_add_u32 {sA2y}, {sAF2}, s3")
    s.e(f"s_lshl_b32 s3, {sKQ}, 13\ns_add_u32 {sA2s}, {sAF2}, s3\ns_add_u32 {sA2s}, {sA2s}, {112*1024}")
    s.e(f"v_lshrrev_b32 {vT}, 1, {vP4}")

def unit_bases(s, typ):
    s.e(f"s_mul_i32 s3, {sW}, {16*3072}\ns_lshl_b32 s4, {sG}, 7\ns_add_u32 s3, s3, s4")
    s.e(f"s_mul_i32 s4, {sG}, 448\ns_and_b32 s5, {sG}, 1\ns_cmp_eq_u32 s5, 0")
    if typ == 'A':
        s.e(f"s_cselect_b32 s5, 0, 320\ns_add_u32 s4, s4, s5")
        s.e(f"s_add_u32 {sUA}, s3, 1024\ns_add_u32 {sUB}, s3, 2048")
        s.e(f"s_mul_i32 {sUC}, {sW}, {16*3584}\ns_add_u32 {sUC}, {sUC}, s4")
        s.e(f"s_lshl_b32 s5, {sCH}, 6\ns_add_u32 s92, s4, s5")
        return [f"buffer_load_ushort v{BI0}, {vT}, {sB1}, s92 offen"]
    s.e(f"s_cselect_b32 s5, 128, 64\ns_cselect_b32 {sUD}, 384, 0")
    s.e(f"s_add_u32 s5, s4, s5\ns_add_u32 s92, s4, {sUD}\ns_mov_b32 {sUC}, s3")
    s.e(f"s_mul_i32 {sUA}, {sW}, {16*3584}\ns_add_u32 {sUA}, {sUA}, s5\ns_add_u32 {sUB}, {sUA}, 128")
    s.e(f"s_mul_i32 {sUD}, {sRT}, {32*3584}\ns_add_u32 {sUD}, {sUD}, s92")
    s.e(f"s_lshl_b32 s3, {sCH}, 6\ns_add_u32 s93, s5, s3")
    return [f"buffer_load_ushort v{BI2}, {vT}, {sB1}, s92 offen", f"buffer_load_ushort v{BI0}, {vT}, {sB1}, s93 offen",
            f"buffer_load_ushort v{BI1}, {vT}, {sB1}, s93 offen offset:128"]

def start(s, ring, biasloads):
    ring.assign(s, upto=ring.upto0)
    if CFG['T0'] == 1: touch_all(s, ['x', 'q', 'w1'])
    ring.pump(s, CFG['S0'])
    if CFG['T0'] == 2: touch_all(s, ['x', 'q', 'w1'])
    prologue2(s)
    ring.pump(s, CFG['S1'])
    if CFG['T1']: touch_all(s, ['w2', 'wo'])
def touch_all(s, which):
    specs = dict(x=(sX, 64, 4), q=(sWq, 48, 5), w1=(sW1, 56, 6), w2=(sW2, 56, 4), wo=(sWo, 16, 5))
    for nm in which:
        srd_, nl, wv = specs[nm]
        lab = label()
        s.e(f"s_cmp_lg_u32 {sW}, {wv}\ns_cbranch_scc1 {lab}")
        s.e(f"v_min_u32 v47, {nl-1}, v0\nv_lshlrev_b32 v47, 7, v47\ns_mul_i32 s5, s88, {nl*128}\ns_mov_b32 m0, {SCR + 15360}\ns_nop 0")
        s.raw(f"buffer_load_dword v47, {srd_}, s5 offen lds")
        s.e(f"{lab}:")
def late_loads(biasloads):
    def f(s):
        if CFG.get('GMIN'):
            s.e(f"s_not_b32 s3, s58\nv_mov_b32 {vT}, s3\nbuffer_atomic_umax {vT}, {vFO}, {sDbg}, 0 offen\nv_mov_b32 {vT}, s58\nbuffer_atomic_umax {vT}, {vFO}, {sDbg}, 0 offen offset:4")
        s.e(f"v_lshrrev_b32 {vT}, 1, {vP4}")
        for x in biasloads: s.e(x)
        s.e(f"s_lshl_b32 s3, {sG}, 11\ns_lshl_b32 s4, {sRT2}, 10\ns_add_u32 s3, s3, s4\ns_add_u32 m0, s4, {SCR_PHI}")
        s.e(f"buffer_load_dwordx4 {vA16}, {sPhi}, s3 offen lds", tag="phi")
    return f

MF = "v_mfma_f32_32x32x16_bf16"
def bar(s, ring, name, needs=(), rel=(), owner='all', lg0=False, upto=None, extra=(), maxn=99):
    if CFG.get('SB'): stamp("<" + name)(s)
    for n in needs: ring.need(s, n)
    if lg0: s.wait(lg=0)
    s.wait_dswrites()
    s.e("s_barrier")
    stamp(name)(s)
    if CFG.get('PADAT') == name: pad(s, CFG['PADUS'])
    s.marks[name] = 1
    for n in rel: ring.release(n)
    ring.free += list(extra)
    if owner == 'all':
        k = 'x' if name[0] == 'b' else ('a' if name[0] in 'ae' else 'p')
        if k in CFG['OWN'] and not (s.name[0] == 'B' and name in ('c3', 'd3', 'e1')): owner = 0
    ring.assign(s, owner, upto, maxn)
def pad(s, us):
    l = label()
    s.raw("s_waitcnt lgkmcnt(0)"); s.lg = []
    s.raw(f"{l}:\ns_sleep 2\ns_memrealtime s[84:85]\ns_waitcnt lgkmcnt(0)\ns_sub_u32 s84, s84, s58\ns_cmp_lt_u32 s84, {us*100}\ns_cbranch_scc1 {l}")
def B(ring, *a, **k): return lambda s: bar(s, ring, *a, **k)

class MSeg:
    def __init__(self, ring, u, ch, events=None, posts=None, xpass=False, dma=0):
        self.ring, self.u, self.ch, self.ev, self.posts, self.xp, self.dma = ring, u, ch, events or {}, posts or {}, xpass, dma
        self.nr = 0; self.hs = None
    def reads(self, s, t):
        u, ring = self.u, self.ring
        for e in self.ev.get(t, []): e(s)
        c, p = t // 8, t % 8
        if self.xp:
            for x in {0: (0, 1), 1: (2, 3, 4), 2: (5, 6, 7)}.get(p, ()):
                s.e(f"ds_read_b128 {R(XA+32*c+4*x,4)}, v{XR+x} offset:{(c&1)*32768}")
        it = f"{u['name']}{c}" if u['kind'] == 'w' else f"{u['name']}{c//2}"
        assert ring.log[it][1] is not None, f"{it} read before certified"
        sl = ring.slot[it]; buf = WB + 4 * (t % 4)
        if u['kind'] == 'h5' and self.hs != sl:
            if self.hs is None:
                s.e("v_bfe_u32 v116, v0, 2, 2\nv_lshrrev_b32 v117, 5, v0\nv_lshl_add_u32 v116, v117, 3, v116\nv_lshlrev_b32 v116, 6, v116\nv_bfe_u32 v117, v0, 4, 1\nv_lshl_add_u32 v116, v117, 5, v116\nv_and_b32 v117, 3, v0\nv_lshl_add_u32 v116, v117, 3, v116")
                for j in range(4): s.e(f"s_xor_b32 s3, {sRT}, {j}\ns_lshl_b32 s3, s3, 11\ns_add_u32 s3, s3, {sl*SLOT}\nv_add_u32 v{HR+j}, s3, v116")
            else:
                for j in range(4): s.e(f"v_add_u32 v{HR+j}, {((sl-self.hs)*SLOT) & 0xffffffff:#x}, v{HR+j}")
            self.hs = sl
        for k in range(2):
            if u['kind'] == 'w':
                w = 0 if sl <= 4 else 1
                r, off = f"v{VW+4*w+p//2}", (sl - 1 - 4 * w) * SLOT + (p & 1) * 2048 + k * 512
            else: r, off = f"v{HR+p//2}", (c % 2) * 8192 + (p & 1) * 1024 + k * 256
            s.e(f"ds_read_b64_tr_b16 {R(buf+2*k,2)}, {r} offset:{off}")
    def pre(self, s, n=None):
        n = CFG['PF'] if n is None else n
        while self.nr < n: self.reads(s, self.nr); self.nr += 1
    def run(self, s, nxt=None, F=None, budget=0):
        u = self.u; ch = self.ch
        credit = 0
        if CFG['PRIO'] and not self.xp: s.e("s_setprio 1")
        self.pre(s)
        for t in range(32):
            c, p = t // 8, t % 8
            buf = WB + 4 * (t % 4)
            cin = R(u['acc'], 16) if t > 0 else "0"
            a, b = (R(buf, 4), R(XA + 4 * t, 4)) if u['trans'] else (R(XA + 4 * t, 4), R(buf, 4))
            s.e(f"{MF} {R(u['acc'],16)}, {a}, {b}, {cin}")
            if p < 2 and not (CFG.get('NOCS') and t > 0): s.e(f"v_mfma_f32_16x16x32_bf16 {R(CSA,4)}, {R(ASEL,4)}, {R(buf,4)}, {R(CSA,4) if t > 0 else '0'}")
            if self.nr < 32: self.reads(s, self.nr); self.nr += 1
            elif nxt is not None: nxt.pre(s, t - 31 + CFG['PF'])
            if self.xp and t < 25 and CFG['PAR'] == 2:
                if t % 2 == ch or ('x' in CFG['OWN'] and ch == 0): self.ring.pump(s, 2)
            elif self.xp and t < 25: self.ring.pump(s, 1)
            elif self.xp: self.ring.pace(s, CFG['ST'])
            elif self.dma and CFG['PAR']:
                if 'p' in CFG['OWN']: self.ring.pace(s, self.dma, 1)
                elif t % 2 == ch: self.ring.pace(s, 2 * self.dma, 1)
            elif self.dma: self.ring.pace(s, self.dma)
            if t == 27:
                s.e(f"s_lshl_b32 s3, {sRT}, 2\ns_add_u32 s3, s3, {SCR_CS + u['csi']*2048 + ch*1024}\nv_add_u32 v{CSA+1}, s3, {vA16}\nds_write_b32 v{CSA+1}, v{CSA}")
            if self.xp and p in (1, 3):
                for x in ((ch, ch + 2) if p == 1 else (ch + 4, ch + 6)):
                    for j in range(4):
                        r = XA + 32 * c + 4 * x + j
                        first = (c == 0 and p == 1 and x == ch and j < 2)
                        s.e(f"v_dot2_f32_bf16 v{STA+(j&1)}, v{r}, {sC11}, {'0' if first else f'v{STA+(j&1)}'}")
                        s.e(f"v_dot2_f32_bf16 v{STA+2+(j&1)}, v{r}, v{r}, {'0' if first else f'v{STA+2+(j&1)}'}")
                if t == 27:
                    q = f"v{STA+2}"
                    s.e(f"v_add_f32 v{STA}, v{STA}, v{STA+1}\nv_add_f32 v{STA+1}, v{STA+2}, v{STA+3}\nv_lshrrev_b32 {q}, 5, v0\nv_lshlrev_b32 {q}, 3, {q}\n"
                        f"v_lshl_add_u32 {q}, {vP4}, 3, {q}\ns_lshl_b32 s3, {sRT}, 10\ns_add_u32 s3, s3, {SCR_ST + ch*16}\nv_add_u32 {q}, s3, {q}\nds_write_b64 {q}, {R(STA,2)}")
            for e in self.posts.get(t, []): e(s)
            if F is not None: credit = fill(s, F, (budget(t) if callable(budget) else budget) + min(credit, CFG['CRED']))
        if CFG['PRIO'] and not self.xp: s.e("s_setprio 0")

def fill(s, F, budget, force=False):
    while budget > 0 and F:
        f = F[0]
        if isinstance(f, tuple) and f[0] == 'wait':
            if f[1] in s.marks: F.pop(0); continue
            return 0
        if isinstance(f, tuple) and f[0] == 'nextbar': f = F[0] = ('barge', s.nbar + 1)
        if isinstance(f, tuple) and f[0] == 'barge':
            if s.nbar >= f[1]: F.pop(0); continue
            return 0
        if isinstance(f, tuple) and f[0] in ('hold', 'tilt'):
            if budget <= 1: F.pop(0); continue
            return 0
        if isinstance(f, tuple) and f[0] == 'gap':
            f = F[0] = ('until', s.n_issued + f[1])
        if isinstance(f, tuple) and f[0] == 'until':
            if s.n_issued >= f[1] or force: F.pop(0); continue
            return 0
        if callable(f):
            F.pop(0); n0 = s.n_issued; f(s); budget -= max(1, (s.n_issued - n0) * 0.5); continue
        txt, tag = (f if isinstance(f, tuple) else (f, None))
        need, age = s.cost(txt)
        if not force and (need > 1 or (age is not None and age < CFG['AGE'])): return budget
        F.pop(0); s.e(txt, tag)
        k = I(txt).kind
        budget -= 2 if k == 'trans' else (0.5 if k in ('salu', 'ds', 'vm') else 1)
    return 0
def until(s, ring, F, name, every=None):
    n = 0
    while name not in s.marks:
        assert F, name
        l = len(F); fill(s, F, 1, force=True)
        assert len(F) < l, ("stuck", F[0], name, s.name)
        n += 1
        ring.pace(s, 9)
    return n
def vrun(s, ring, F, slots, every=None, flush=True):
    every = every or CFG['VD']
    while slots > 0 and F:
        l = len(F); fill(s, F, min(every, slots), force=True); slots -= every
        ring.pace(s, 9 * every)
        if len(F) == l: break
    if flush: ring.pump(s, 99)

def vseg(s, ring, F, every=None, flush=True):
    every = every or CFG['VD']
    n = 0
    for f in F:
        if isinstance(f, tuple) and f[0] in ('after', 'skip', 'wait', 'gap', 'until'): continue
        drain(s, [f]); n += 1
        ring.pace(s, 10)
    if flush: ring.pump(s, 99)
def split(F, frac, item):
    k = int(len(F) * frac)
    return F[:k] + [item] + F[k:]

def pass0(s, ring, u, ch, bl, nextname, nextneed):
    ev = {}
    for c in range(4):
        def b0(s, c=c):
            if c == 3: s.wait_tag("phi")
            bar(s, ring, f"b0{c}", [f"{u['name']}{c}", f"XL{c}", f"XH{c}"], [f"{u['name']}{c-1}"] if c else [], lg0=True, upto=nextname[0] + str(CFG['UP'][2 * c]))
            if c == 0:
                lab = label()
                s.e(f"s_cmp_ge_u32 {sBID}, 32\ns_cbranch_scc1 {lab}\ns_cmp_lg_u32 {sW}, 0\ns_cbranch_scc1 {lab}\ns_lshl_b32 s3, {sBID}, 2")
                s.raw(f"buffer_store_dword {vOne}, {vFO}, {sDbg}, s3 offen offset:128 sc1")
                s.e(f"{lab}:")
        def bx(s, c=c):
            s.wait_regs([f"v{r}" for r in range(XA + 32 * c, XA + 32 * c + 32)])
            bar(s, ring, f"bx{c}", nextneed if c == 3 else [], [f"XL{c}", f"XH{c}"], upto=(nextname[0] + str(CFG['UP'][2 * c + 1]) if c < 3 else None))
        ev[8 * c] = [b0]; ev[8 * c + 4] = [bx]
    return MSeg(ring, u, ch, ev, {6: [late_loads(bl)], 24: [lambda s: poll_issue(s, sDbg, "0", imm=128)], CFG['TBT']: [lambda s: touchB(s)], CFG['TWT']: [lambda s: touchW(s)]}, xpass=True, dma=1)

def stats_fin(T):
    F = [blk(f"s_lshl_b32 s4, {sRT}, 10\ns_add_u32 s4, s4, {SCR_ST}\nv_lshlrev_b32 {vT}, 3, {vP4}\nv_add_u32 {vT}, s4, {vT}"),
         f"ds_read_b128 {R(T,4)}, {vT}", f"ds_read_b128 {R(T+4,4)}, {vT} offset:16",
         blk(f"s_lshl_b32 s4, {sRT}, 7\ns_add_u32 s4, s4, {SCR_RS}\nv_add_u32 {vT}, s4, {vP4}\nv_cmp_gt_u32 s[94:95], 32, v0")]
    a, b = f"v{T}", f"v{T+1}"
    F += [f"v_add_f32 {a}, {a}, v{T+2}", f"v_add_f32 {b}, {b}, v{T+3}", f"v_add_f32 v{T+4}, v{T+4}, v{T+6}", f"v_add_f32 v{T+5}, v{T+5}, v{T+7}",
          f"v_add_f32 {a}, {a}, v{T+4}", f"v_add_f32 {b}, {b}, v{T+5}", f"v_mul_f32 {a}, 0xbb000000, {a}", f"v_mul_f32 {b}, 0x3b000000, {b}",
          f"v_fma_f32 {b}, -{a}, {a}, {b}", f"v_max_f32 {b}, 0, {b}", f"v_cvt_pk_bf16_f32 {b}, {b}, {b}", f"v_lshlrev_b32 {b}, 16, {b}",
          f"v_add_f32 {b}, 0x3727c5ac, {b}", f"v_cvt_pk_bf16_f32 {b}, {b}, {b}", f"v_lshlrev_b32 {b}, 16, {b}", f"v_sqrt_f32 {b}, {b}",
          f"v_cvt_pk_bf16_f32 {b}, {b}, {a}", f"v_lshlrev_b32 {vRS}, 16, {b}", f"v_rcp_f32 {vRS}, {vRS}",
          f"v_cndmask_b32 v{CF+2}, 0, {b}, s[94:95]", f"v_lshrrev_b32 v{CF+3}, 16, v{CF+2}",
          f"v_mul_f32 {vRSL}, 0x3fb8aa3b, {vRS}", f"v_mul_f32 {vM2}, -2.0, {vRS}", f"ds_write_b32 {vT}, {vRS}"]
    return F
def correct(u, ch, T, bias=None):
    F = [f"v_lshlrev_b32 v{T}, 2, {vP4}", f"v_add_u32 v{T}, {SCR_CS + u['csi']*2048 + ch*1024}, v{T}", f"ds_read_b128 {R(T,4)}, v{T}",
         f"v_add_f32 v{T}, v{T}, v{T+1}", f"v_add_f32 v{T+2}, v{T+2}, v{T+3}", f"v_add_f32 v{T}, v{T}, v{T+2}",
         f"v_cvt_pk_bf16_f32 v{T+1}, v{T}, v{T}", f"v_and_b32 v{CF}, 0xffff0000, v{T+1}", f"v_sub_f32 v{T}, v{T}, v{CF}", f"v_cvt_pk_bf16_f32 v{CF+1}, v{T}, v{T}"]
    if bias is not None: F.append(f"v_or_b32 v{CF}, v{CF}, v{bias}")
    a, b = (R(CF, 4), R(CF + 2, 4)) if u['trans'] else (R(CF + 2, 4), R(CF, 4))
    F.append(f"{MF} {R(u['acc'],16)}, {a}, {b}, {R(u['acc'],16)}")
    return F

def mark(name): return lambda s: s.marks.__setitem__(name, 1)
YA = [192, 208]; SA = [32, 48]
vB0, vB1 = "v5", "v24"
XW = ["v6", "v7", "v8"]; XRD = ["v11", "v12", "v13"]
LB = 128
NR = 8
def breg(t): return XA + 8 * t if t < NR else LB + 8 * (t % 2)
def bnm(ch, c): return f"B{'ab'[ch]}{c}"
def bread(ring, ch, t):
    def f(s):
        nm = bnm(ch, t // 4)
        assert ring.log[nm][1] is not None, f"{nm} read before certified"
        sl = ring.slot[nm]
        if ring.bsl != sl:
            d = ((sl - ring.bsl) * SLOT) & 0xffffffff
            s.e(f"v_add_u32 {vB0}, {d:#x}, {vB0}\nv_add_u32 {vB1}, {d:#x}, {vB1}")
            ring.bsl = sl
        for ct, r in enumerate((vB0, vB1)):
            for k in range(2):
                s.e(f"ds_read_b64_tr_b16 {R(breg(t) + 4*ct + 2*k, 2)}, {r} offset:{(t%4)*2048 + k*1024}")
    return f
def pull(ring, ch, c): return [bread(ring, ch, 4 * c + k) for k in range(4)]
def p2_setup(ring):
    def chk(s):
        assert not any(x[0][0] == 'F' for x in ring.items) and not any(x[0][0][0] == 'F' for x in ring.q)
        ring.bsl = 0
    return [chk, f"v_bfe_u32 {vB0}, v0, 2, 2", f"v_lshrrev_b32 {vB1}, 5, v0", f"v_lshl_add_u32 {vB0}, {vB1}, 2, {vB0}", f"v_lshlrev_b32 {vB0}, 7, {vB0}",
     f"v_bfe_u32 {vB1}, v0, 3, 1", f"v_lshl_add_u32 {vB0}, {vB1}, 6, {vB0}", f"v_bfe_u32 {vB1}, v0, 4, 1", f"v_lshl_add_u32 {vB0}, {vB1}, 5, {vB0}",
     f"v_and_b32 {vB1}, 3, v0", f"v_lshl_add_u32 {vB0}, {vB1}, 3, {vB0}", blk(f"s_and_b32 s3, {sKQ}, 1\ns_lshl_b32 s3, s3, 13\nv_add_u32 {vB0}, s3, {vB0}"), f"v_xor_b32 {vB1}, 64, {vB0}"]

def xwrite(s, acc2, slots, own, ch):
    l1, l2 = label(), label()
    s.e("s_nop 7")
    s.e(f"s_bitcmp1_b32 {sKQ}, 0\ns_cbranch_scc1 {l1}")
    for kq in (2 * ch, 2 * ch + 1):
        if kq & 1: s.raw(f"{l1}:")
        s.raw("s_nop 1")
        for d in range(4):
            src = acc2[d >> 1] + 8 * (d & 1)
            if d == kq: continue
            idx = (kq - d - 1) % 4
            for h in range(2):
                r, off = ldsaddr(XW, slots[idx] * SLOT + d * 4096 + h * 1024)
                s.raw(f"ds_write_b128 {r}, {R(src+4*h,4)} offset:{off}")
        src = acc2[kq >> 1] + 8 * (kq & 1)
        for j in range(8): s.raw(f"v_mov_b32 v{own+j}, v{src+j}")
        if not kq & 1: s.raw(f"s_branch {l2}")
    s.raw(f"{l2}:")
    for _ in range(6): s.lg.append((set(), None))
def xread(slots, own, tmp):
    F = []
    for i in range(3):
        for h in range(2):
            r, off = ldsaddr(XRD, slots[i] * SLOT + h * 1024)
            F.append(f"ds_read_b128 {R(tmp+8*i+4*h,4)}, {r} offset:{off}")
    G = []
    for i in range(3):
        for j in range(8): G.append(f"v_add_f32 v{own+j}, v{own+j}, v{tmp+8*i+j}")
    return F, G
def fin_setup():
    return [blk(f"s_lshl_b32 {sUC}, {sRB}, 16\ns_lshl_b32 s4, {sRT2}, 15\ns_add_u32 {sUC}, {sUC}, s4\ns_lshl_b32 s4, {sCB}, 7\ns_add_u32 {sUC}, {sUC}, s4\ns_lshl_b32 s4, {sKQ}, 5\ns_add_u32 {sUC}, {sUC}, s4"),
            f"v_lshlrev_b32 v20, 8, {vP4}", "v_lshrrev_b32 v21, 5, v0", "v_lshl_add_u32 v20, v21, 4, v20",
            f"buffer_load_dwordx4 v[16:19], v20, {sX}, {sUC} offen",
            blk(f"s_lshl_b32 s4, {sRT2}, 11\nv_add_u32 v6, s4, {vA16}"), "v_add_u32 v7, 0x10000, v6", "v_add_u32 v8, 0x20000, v6",
            blk(f"s_lshl_b32 s4, {sKQ}, 12\nv_add_u32 v11, s4, v6\nv_add_u32 v12, s4, v7\nv_add_u32 v13, s4, v8")]

def aphase(s, ring, ch, F, early, late, toff):
    G = CFG['GT']
    groups = {0: (0xf, ['f1'], 0, 0), 8: (0xf, ['f2'], G[3], 128), 16: (0x5, ['f3'], G[0], 384), 20: (0xf, ['f3'], G[1], 256), 28: (0xf, ['fo'], G[2], 512)}
    pr = lambda c: [bnm(0, c), bnm(1, c)]
    bars = {8: (pr(2) + pr(3), ring.rel8), 12: ([], pr(2)), 16: (pr(4) + pr(5), pr(3)), 20: ([], pr(4)), 24: (pr(6) + pr(7), pr(5)), 30: (pr(8), pr(6))}
    if CFG['FB4']: bars = {8: (pr(2) + pr(3), ring.rel8), 16: (pr(4) + pr(5), pr(2) + pr(3)), 24: (pr(6) + pr(7), pr(4) + pr(5)), 30: (pr(8), pr(6))}
    cert = {n: k for k, v in bars.items() for n in v[0]}
    pool = list(range(224, 256, 4)) + list(early); restricted = set(early)
    late = dict(late)
    for v in late.values(): restricted |= set(v)
    areg = {}; arr = {}
    st = dict(clk=0, pipe=0, nxt=0, polled={0: 0}, checked=set(), tch=set())
    LT, LAT, QD = CFG['LT'], CFG['LAT'], CFG['QD']
    OWNY = 112; OWNS = 120; XT = 64
    def issue_cost():
        st['pipe'] = max(st['pipe'], st['clk']) + (LT if 'v0' not in s.marks else CFG['LT2']); st['clk'] += 16
        return st['pipe'] + LAT
    def try_load(step, must=None):
        for m in list(late):
            if m in s.marks: pool.extend(late.pop(m))
        if must is None and st['pipe'] - st['clk'] > (QD if 'v0' not in s.marks else CFG['QD2']): return False
        t = st['nxt']
        for g in sorted(groups):
            if g >= t and g not in st['polled']:
                prev = [x for x in groups if x < g]
                if all(x in st['checked'] for x in prev) and (st['clk'] >= groups[g][2] + toff - CFG['PLT'] or must == g):
                    poll_issue(s, sWs, sFL2, imm=groups[g][3]); st['polled'][g] = max(st['pipe'], st['clk']) + LAT; st['clk'] += 16
                    return True
                break
        for g in st['polled']:
            if g and g not in st['tch'] and g not in st['checked'] and st['clk'] >= st['polled'][g] and g - t >= CFG['TAD']:
                st['tch'].add(g); n = {8: 8, 16: 4, 20: 8, 28: 8}[g]
                touchA(g, n, groups[g][0], 'v2', 'v3')(s); log.append(f"tch{g}@{step}")
        bneed = cert.get(ring.q[0][0][0], 0) - CFG['BL'] if ring.q else 99
        aok = False
        if t < 36:
            ok = [r for r in pool if not (r in restricted and t > 26)]
            aok = bool(ok)
            if t in groups and t not in st['checked']:
                ready = t in st['polled'] and st['clk'] >= st['polled'][t] and st['clk'] >= groups[t][2] + toff and all(r in s.marks for r in groups[t][1])
                aok = aok and (ready or must == t)
        if aok and (t <= bneed or must is not None):
            if t in groups and t not in st['checked']:
                for r in groups[t][1]:
                    n = until(s, ring, F, r)
                    if n: print("   forced", n, "fillers for", r, "in", s.name)
                poll_check(s, sWs, sFL2, groups[t][0], imm=groups[t][3]); st['checked'].add(t); log.append(f"chk{t}@{step}/{st['clk']}")
            areg[t] = ok[0]; pool.remove(ok[0])
            base, off = (sA2y, ORDER[t] * 1024) if t < 28 else (sA2s, (t - 28) * 1024)
            s.e(f"s_add_u32 {sSoW}, {base}, {off & ~4095}\nbuffer_load_dwordx4 {R(areg[t],4)}, {vA16}, {sWs}, {sSoW} offen offset:{off & 4095} sc1")
            arr[t] = issue_cost(); st['nxt'] += 1; log.append(f"A{t}@{step}")
            return True
        if ring.q and must is None:
            half = ring.log[ring.q[0][0][0]][2] != 'all'
            ring.pump(s, 1); issue_cost()
            if half: st['pipe'] -= CFG['LT2'] // 2
            return True
        return False
    log = []
    V = []
    for t in range(36):
        while True:
            if try_load(t): continue
            if F and isinstance(F[0], tuple) and F[0][0] == 'hold':
                F[0] = ('tilt', t + F[0][1])
            if F and isinstance(F[0], tuple) and F[0][0] == 'tilt' and t >= F[0][1]: F.pop(0)
            if F and not (t in arr and st['clk'] >= arr[t] and not pool and st['nxt'] < 36):
                l = len(F); n0 = s.n_issued
                fill(s, F, 6, force=True)
                st['clk'] += (s.n_issued - n0) * CFG['VC']
                if len(F) < l: continue
            if t not in arr:
                assert try_load(t, must=st['nxt']); continue
            if st['clk'] < arr[t] and (st['nxt'] < 36 or ring.q):
                nclk = min(arr[t], st['clk'] + 32)
                if nclk < arr[t]:
                    st['clk'] = nclk
                    if try_load(t): continue
                    continue
            break
        st['clk'] = max(st['clk'], arr[t])
        if t == 4: until(s, ring, F, 'p1')
        for ct in range(2):
            acc = (YA if t < 28 else SA)[ct]
            cin = "0" if t in (0, 28) else R(acc, 16)
            s.e(f"{MF} {R(acc,16)}, {R(breg(t)+4*ct,4)}, {R(areg[t],4)}, {cin}")
        st['clk'] += 128
        pool.append(areg[t])
        if 2 <= t <= 7: pool += [XA + 8 * t, XA + 8 * t + 4]
        if t + 1 in bars:
            if t + 1 == 8:
                n = until(s, ring, F, 'vbar')
                if n: print("   forced", n, "fillers before a8 in", s.name)
            bar(s, ring, f"a{t+1}", bars[t + 1][0], bars[t + 1][1], lg0=True); log.append(f"|a{t+1}/{st['clk']}")
        if NR <= t + 1 < 36: bread(ring, ch, t + 1)(s)
        if t == 26: assert not F, F
        if t == 27:
            stamp('yend')(s)
            ys = [ring.free.pop(0) for _ in range(3)]
            xwrite(s, YA, ys, OWNY, ch)
            drain(s, ["v_permlane32_swap_b32 v16, v18", "v_permlane32_swap_b32 v17, v19"])
            for j in range(4): drain(s, [f"v_lshlrev_b32 v{XT+24+2*j}, 16, v{16+j}", f"v_and_b32 v{XT+25+2*j}, 0xffff0000, v{16+j}"])
        if t == 29:
            rdl, V = xread(ys, OWNY, XT)
            drain(s, rdl)
            for j in range(8): V.append(f"v_mul_f32 v{XT+j}, 0xbfb8aa3b, v{OWNY+j}")
            for j in range(8): V.append(f"v_exp_f32 v{XT+j}, v{XT+j}")
            for j in range(8): V.append(f"v_add_f32 v{XT+j}, 1.0, v{XT+j}")
            for j in range(8): V.append(f"v_rcp_f32 v{XT+j}, v{XT+j}")
            for j in range(8): V.append(f"v_mul_f32 v{OWNY+j}, v{OWNY+j}, v{XT+j}")
        if 30 <= t < 35:
            drain(s, V[:CFG['TV']]); V = V[CFG['TV']:]
    print("   sched", s.name, " ".join(log), "end", st['clk'])
    stamp('send')(s)
    ss = [ring.free.pop(0) for _ in range(2)] + [9]
    xwrite(s, SA, ss, OWNS, ch)
    drain(s, V)
    s.wait(lg=0); s.e("s_barrier")
    rdl, V = xread(ss, OWNS, XT)
    drain(s, rdl + V)
    for j in range(8): s.e(f"v_fma_f32 v{OWNS+j}, v{OWNS+j}, v{OWNY+j}, v{XT+24+j}")
    for j in range(4): s.e(f"v_cvt_pk_bf16_f32 v{16+j}, v{OWNS+2*j}, v{OWNS+2*j+1}")
    s.e("v_permlane32_swap_b32 v16, v18\nv_permlane32_swap_b32 v17, v19")
    s.e(f"buffer_store_dwordx4 v[16:19], v20, {sOut}, {sUC} offen")
    stamp('st')(s)
    if PROFILE:
        s.raw("s_waitcnt vmcnt(0) lgkmcnt(0)")
        stamp("end")(s)
        s.raw("s_waitcnt lgkmcnt(0)")
        n = len(s.snames)
        for i in (n - 2, n - 1): s.raw(f"v_writelane_b32 v29, s{STAMP0+2*(i%4)}, {i}")
        s.e(f"v_subrev_u32 v29, s96, v29\nv_lshlrev_b32 v16, 2, v0")
        s.raw("s_memrealtime s[84:85]\ns_waitcnt lgkmcnt(0)\nv_writelane_b32 v29, s58, 62\nv_writelane_b32 v29, s84, 63")
        s.e(f"s_lshl_b32 s3, {sBID}, 11\ns_lshl_b32 s4, {sW}, 8\ns_add_u32 s3, s3, s4\ns_add_u32 s3, s3, {PROF_OFF}")
        s.e(f"buffer_store_dword v29, v16, {sWs}, s3 offen")
        if CFG.get('DBG') is not None:
            lab = label()
            s.e(f"s_cmp_lg_u32 {sBID}, {CFG['DBG']}\ns_cbranch_scc1 {lab}\ns_cmp_lg_u32 {sW}, 0\ns_cbranch_scc1 {lab}")
            idx = list(range(n - 1, -1, -3))[:16][::-1]
            for k, i in enumerate(idx):
                s.raw(f"v_readlane_b32 s4, v29, {i}\ns_nop 1\nv_mov_b32 v17, s4\nbuffer_store_dword v17, {vFO}, {sDbg}, 0 offen offset:{4*k}\ns_nop 1")
            s.e(f"{lab}:")
            if s.name in ('A0', 'B0'): print("DBG", s.name, [s.snames[i] for i in idx])
        open(f"snames_{s.name}.txt", "w").write(" ".join(s.snames))
    if CFG.get('GMIN'):
        s.raw(f"v_mov_b32 v40, 0\nbuffer_load_dwordx2 v[42:43], v40, {sDbg}, 0 offen sc1\ns_waitcnt vmcnt(0)\nv_readfirstlane_b32 s58, v{42 if CFG['GMIN'] == 1 else 43}\ns_nop 3")
        if CFG['GMIN'] == 1: s.raw("s_not_b32 s58, s58")
    if CFG.get('PADAT') == 'end': pad(s, CFG['PADUS'])
    s.e("s_endpgm")
    s.slots = (dict(ring.slot), ys, ss)
    print("   ring", s.name, " ".join(f"{k}:{v[0]}>{v[1]}" for k, v in ring.log.items()))

SCR_DUM = SCR + 15360
def touchB(s):
    if not CFG['TB']: return
    s.e(f"s_lshl_b32 s4, {sBID}, 3\ns_add_u32 s4, s4, {sW}\ns_mul_i32 s5, s4, 896\ns_lshl_b32 s4, s4, 8\ns_mov_b32 m0, {SCR_DUM}")
    s.e(f"v_min_u32 {vT}, 6, v0\nv_lshlrev_b32 {vT}, 7, {vT}")
    s.e(f"buffer_load_dword {vT}, {sW2}, s5 offen lds")
    s.e(f"v_min_u32 {vT}, 1, v0\nv_lshlrev_b32 {vT}, 7, {vT}")
    s.e(f"buffer_load_dword {vT}, {sWo}, s4 offen lds")
def touchW(s):
    if not CFG['TW']: return
    s.e(f"s_lshl_b32 s4, {sBID}, 3\ns_add_u32 s4, s4, {sW}\ns_mul_i32 s5, s4, 896\ns_mul_i32 s4, s4, 768\ns_mov_b32 m0, {SCR_DUM}")
    s.e(f"v_min_u32 {vT}, 6, v0\nv_lshlrev_b32 {vT}, 7, {vT}")
    s.e(f"buffer_load_dword {vT}, {sW1}, s5 offen lds")
    s.e(f"v_min_u32 {vT}, 5, v0\nv_lshlrev_b32 {vT}, 7, {vT}")
    s.e(f"buffer_load_dword {vT}, {sWq}, s4 offen lds")
def touch2(c, hf=None):
    def f(s):
        if c == 0 and not hf:
            if hf is None: s.e(f"s_lshl_b32 s4, s87, 3")
            else: s.e(f"s_lshr_b32 s4, s87, 4\ns_lshl_b32 s4, s4, 3\ns_and_b32 s5, s87, 7\ns_add_u32 s4, s4, s5\ns_lshl_b32 s4, s4, 3")
            s.e(f"s_add_u32 s4, s4, {sW}\ns_lshr_b32 s5, s4, 6\ns_and_b32 s4, s4, 63\ns_lshl_b32 s4, s4, 10\n"
                f"s_mul_i32 s90, s5, {448*1024}\ns_add_u32 s90, s90, s4\ns_lshl_b32 s91, s5, 17\ns_add_u32 s91, s91, s4")
        s.e(f"s_mov_b32 m0, {SCR_DUM}")
        h = hf or 0
        if c < 7: s.e(f"s_add_u32 {sSoW}, s90, {ORDER[4*c]*16384 + h*896*1024}\nbuffer_load_dwordx4 {vA16}, {sW2}, {sSoW} offen lds")
        else: s.e(f"s_add_u32 {sSoW}, s91, {(c-7)*65536 + h*256*1024}\nbuffer_load_dwordx4 {vA16}, {sWo}, {sSoW} offen lds")
    return f
def touch3(c, ch):
    def f(s):
        wv = CFG['T3W'][c]
        if wv // 4 != ch: return
        lab = label()
        s.e(f"s_cmp_lg_u32 {sW}, {wv}\ns_cbranch_scc1 {lab}")
        mul = 448 * 1024 if c < 7 else 128 * 1024
        off = ORDER[4 * c] * 16384 if c < 7 else (c - 7) * 65536
        s.e(f"s_lshr_b32 s90, s87, 3\ns_mul_i32 s90, s90, {mul}\ns_and_b32 s91, s87, 7\ns_lshl_b32 s91, s91, 13\ns_add_u32 s90, s90, s91\ns_add_u32 s90, s90, {off}\ns_mov_b32 m0, {SCR_DUM}")
        s.e(f"v_lshlrev_b32 v{CSA+3}, 7, v0")
        s.raw(f"buffer_load_dword v{CSA+3}, {sW2 if c < 7 else sWo}, s90 offen lds")
        s.e(f"{lab}:")
    return f
def add_touch(segs, typ):
    if CFG['T2'] == 3:
        for c, at in enumerate(CFG['T2AT']): segs[at // 32].posts.setdefault(at % 32, []).append(touch3(c, segs[0].ch))
    for c, at in enumerate(CFG['T2AT']):
        if CFG['T2'] == 1: segs[at // 32].posts.setdefault(at % 32, []).append(touch2(c))
        if CFG['T2'] == 2 and typ == 'A':
            segs[at // 32].posts.setdefault(at % 32, []).append(touch2(c, 0))
            segs[(at + 2) // 32].posts.setdefault((at + 2) % 32, []).append(touch2(c, 1))

def touchA(t0, n, mask, T, T2, vp=vPoll):
    def f(s):
        if not CFG['TA']: return
        lab = label()
        s.e(f"v_min_u32 {T}, {n-1}, v0")
        if t0 < 28 and n > 4:
            d = ORDER[t0 + 4] - ORDER[t0] - 4
            s.e(f"v_lshrrev_b32 {T2}, 2, {T}\nv_mul_u32_u24 {T2}, {d}, {T2}\nv_add_u32 {T}, {T}, {T2}")
        off = ORDER[t0] * 1024 if t0 < 28 else 0
        s.e(f"v_lshlrev_b32 {T}, 10, {T}\ns_lshl_b32 {sSoW}, {sCB}, 7\ns_add_u32 {sSoW}, {sSoW}, {sA2y if t0 < 28 else sA2s}\ns_add_u32 {sSoW}, {sSoW}, {off}\ns_mov_b32 m0, {SCR_DUM}")
        s.e(f"v_cmp_ne_u32 vcc, 0, {vp}\ns_andn2_b32 {sT0}, {mask:#x}, vcc_lo\ns_cbranch_scc1 {lab}")
        s.raw(f"buffer_load_dword {T}, {sWs}, {sSoW} offen sc1 lds")
        s.e(f"{lab}:")
    return f

def ilv(st, co):
    out = st[:3] + co[:3] + [st[3]]
    a, b = st[4:], co[3:-1]
    while a or b:
        if a: out.append(a.pop(0))
        if a and len(a) > 2 * len(b): out.append(a.pop(0))
        if b: out.append(b.pop(0))
    return out + co[-1:]
def p0_items(a, b):
    it = []
    for c in range(4): it += x_items(c) + [a[c]]
    return it + b
def packin(acc): return [f"v_cvt_pk_bf16_f32 v{acc+j}, v{acc+2*j}, v{acc+2*j+1}" for j in range(8)]
def N(n, lo, hi): return [f"{n}{c}" for c in range(lo, hi)]
initchk = lambda s: poll_check(s, sDbg, "0", 0xffffffff, imm=128)
pollA = lambda s: poll_issue(s, sWs, sFL2)

def stream_A(s0, ch):
    CB, DB = CFG['CB'], CFG['DB']
    s = s0.fork(f"A{ch}"); s.e(f"L_typeA{ch}:")
    bl = unit_bases(s, 'A')
    items = p0_items(w_items("K", sWq, vDq, sUA, 3072), w_items("V", sWq, vDq, sUB, 3072)) + w_items("H", sW1, vD1, sUC, 3584) + b_items(0)
    ring = Ring(items, range(9), ch); ring.hold = ('XL3', 'XH3'); ring.upto0 = "V3"
    start(s, ring, bl)
    s.e(f"s_lshl_b32 {sSCRW}, {sW}, 12\ns_add_u32 {sSCRW}, {sSCRW}, {2*SLOT}")
    s.marks.update(f1=1, f2=1, fo=1)
    uK = dict(name="K", acc=ACC_A, trans=True, kind='w', csi=0)
    uV = dict(name="V", acc=ACC_B, trans=False, kind='w', csi=1)
    uH = dict(name="H", acc=ACC_C, trans=True, kind='w', csi=0)
    F = [('wait', 'c1')] + ilv(stats_fin(PT), correct(uK, ch, PT + 8))
    F += ["v_lshrrev_b32 v26, 5, v0", "v_lshlrev_b32 v26, 1, v26", "v_bfe_u32 v25, v0, 1, 2", "v_xor_b32 v26, v25, v26", f"v_lshlrev_b32 v25, 4, {vP4}", "v_lshl_add_u32 v25, v26, 4, v25",
          f"v_add_u32 v25, {sSCRW}, v25", "v_xor_b32 v24, 16, v25", initchk]
    F += packin(ACC_A)
    F += [f"{MF} {R(PT,16)}, {R(PHI,4)}, {R(ACC_A,4)}, 0", f"{MF} {R(ACC_C,16)}, {R(PHI+4,4)}, {R(ACC_A+4,4)}, 0", ('gap', 12)]
    for h, P in enumerate((PT, ACC_C)):
        if h == 1 and CFG['PKA']:
            sm = softmax_pk(P, ACC_A + 8, "v26", vT, PHI); F += sm[:9] + [('wait', 'c2')] + sm[9:]
        else: F += softmax(P, ACC_A + 8, "v26", vT)
        F += [f"ds_write_b128 v25, {R(ACC_A+8,4)} offset:{2048*h}", f"ds_write_b128 v24, {R(ACC_A+12,4)} offset:{2048*h}"]
    F += [('wait', 'c2')]
    F += ["v_lshrrev_b32 v26, 5, v0", "v_lshlrev_b32 v26, 4, v26", blk(f"s_lshl_b32 s4, {sRT}, 7\ns_add_u32 s4, s4, {SCR_RS}\nv_add_u32 {vT}, s4, v26")]
    for q in range(4): F.append(f"ds_read_b128 {R(PT+4*q,4)}, {vT} offset:{32*q}")
    F += ["v_bfe_u32 v25, v0, 2, 2", "v_lshlrev_b32 v25, 6, v25", "v_lshl_add_u32 v25, v26, 4, v25", f"v_bfe_u32 {vT}, v0, 4, 1", f"v_cmp_eq_u32 s[94:95], 1, {vT}",
          "v_lshrrev_b32 v24, 5, v0", f"v_xor_b32 {vT}, v24, {vT}", f"v_lshl_add_u32 v25, {vT}, 5, v25",
          "v_lshrrev_b32 v24, 2, v0", "v_xor_b32 v24, v24, v0", "v_bfe_u32 v24, v24, 1, 1", "v_lshl_add_u32 v25, v24, 4, v25",
          f"v_and_b32 {vT}, 1, v0", f"v_lshl_add_u32 v25, {vT}, 3, v25", f"v_add_u32 v25, {sSCRW}, v25", f"v_mov_b32 {vT}, {sC11}"]
    for t in range(2):
        for rd in range(2): F.append(f"ds_read_b64_tr_b16 {R(PHI+4*t+2*rd,2)}, v25 offset:{2048 + t*1024 + rd*512}")
    F += [pk2("mul", ACC_B + r, ACC_B + r, PT + r) for r in range(0, 16, 2)] if CFG['PKA'] else [f"v_mul_f32 v{ACC_B+r}, v{ACC_B+r}, v{PT+r}" for r in range(16)]
    F += packin(ACC_B)
    for t in range(2):
        for rd in range(2): F.append(f"ds_read_b64_tr_b16 {R(ACC_B+8+4*t+2*rd,2)}, v25 offset:{t*1024 + rd*512}")
    for j in range(8): F.append(f"v_cndmask_b32 v{ACC_A+8+j}, {vT}, v{ACC_B+j}, s[94:95]")
    for j in range(8): F.append(f"v_cndmask_b32 v{ACC_A+j}, v{ACC_B+j}, {vT}, s[94:95]")
    F += [f"{MF} {R(PT,16)}, {R(ACC_A,4)}, {R(ACC_B+8,4)}, 0", f"{MF} {R(PT,16)}, {R(ACC_A+4,4)}, {R(ACC_B+12,4)}, {R(PT,16)}",
          f"{MF} {R(ACC_B,16)}, {R(ACC_A+8,4)}, {R(PHI,4)}, 0", f"{MF} {R(ACC_B,16)}, {R(ACC_A+12,4)}, {R(PHI+4,4)}, {R(ACC_B,16)}"]
    F += [f"v_add_u32 v25, {sSCRW}, {vA16}", blk(f"s_lshl_b32 s4, {sW}, 9\ns_add_u32 s4, s4, {SCR_Z}\nv_lshlrev_b32 v26, 2, v0\nv_add_u32 v26, s4, v26")]
    F += [f"ds_write_b128 v25, {R(PT,4)}", f"ds_write_b128 v25, {R(PT+4,4)} offset:1024", f"ds_write_b32 v26, v{PT+8}",
          f"ds_write_b128 v25, {R(ACC_B+8,4)} offset:2048", f"ds_write_b128 v25, {R(ACC_B+12,4)} offset:3072", f"ds_write_b32 v26, v{ACC_B} offset:256"]
    F += [blk(f"s_lshl_b32 s4, {sRT}, 10\ns_add_u32 s4, s4, {2*SLOT + ch*SLOT}\nv_add_u32 v25, s4, {vA16}"),
          blk(f"s_lshr_b32 s4, {sRT}, 1\ns_lshl_b32 s4, s4, 8\ns_add_u32 s4, s4, {SCR_Z + ch*2048}\nv_add_u32 v26, s4, {vP4}"), mark('kvw')]
    ER = [f"ds_read_b128 {R(PT+4*r,4)}, v25 offset:{r*4096}" for r in range(4)] + [f"ds_read_b32 v{ACC_A+r}, v26 offset:{r*512}" for r in range(4)]
    ER += ["v_lshrrev_b32 v25, 5, v0", f"v_lshl_add_u32 v25, v25, 9, {vP4}", blk(f"s_lshl_b32 s5, {sRT2}, 10\nv_add_u32 v25, s5, v25"),
           f"v_lshrrev_b32 {vT}, 4, v0", f"v_cmp_eq_u32 s[94:95], {sRT2}, {vT}", f"v_mov_b32 {vT}, {BIG}",
           blk(f"s_and_b32 s5, {sG}, 1\ns_mul_i32 s5, s5, {10*1024}\ns_add_u32 s5, s5, {ch*2048}\ns_add_u32 {sUD}, {sKS}, s5\ns_lshl_b32 s4, {sI}, 7\ns_add_u32 {sKVF}, {sKVF}, s4"),
           f"v_cndmask_b32 v26, {vT}, {vP4}, s[94:95]"]
    for j in range(4): ER += [f"v_add_f32 v{PT+j}, v{PT+j}, v{PT+4+j}", f"v_add_f32 v{PT+8+j}, v{PT+8+j}, v{PT+12+j}"]
    for j in range(4): ER.append(f"v_add_f32 v{PT+j}, v{PT+j}, v{PT+8+j}")
    ER += [f"v_add_f32 v{ACC_A}, v{ACC_A}, v{ACC_A+1}", f"v_add_f32 v{ACC_A+2}, v{ACC_A+2}, v{ACC_A+3}", f"v_add_f32 v{ACC_A}, v{ACC_A}, v{ACC_A+2}"]
    for j in range(4): ER.append((f"buffer_atomic_add_f32 v{PT+j}, v25, {sWs}, {sKVs} offen offset:{j*128}", "kv"))
    ER += [(f"buffer_atomic_add_f32 v{ACC_A}, v26, {sWs}, {sKVs} offen offset:2048", "kv"), stamp('kvat')]
    EH = correct(uH, ch, PHI, BI0) + fin_setup() + (mish_pk if CFG['PK'] else mish)(ACC_C, PT + 8, sUD, "actA")
    fkv = flag_store("kv", sKVF, 0, 'fkv'); f3 = flag_store("actA", sFL, 2 * 128, 'f3')
    pr = lambda c: [bnm(0, c), bnm(1, c)]
    m0 = pass0(s, ring, uK, ch, bl, "V3", ["V0"])
    mV = MSeg(ring, uV, ch, {CB: [B(ring, "c1", ["V1", "V2"], ["K3"])], DB: [B(ring, "d1", ["V3", "H0"], N("V", 0, 2))]}, dma=CFG['ST'])
    mH = MSeg(ring, uH, ch, {DB: [B(ring, "h2", ["H3"] + pr(0), N("H", 0, 2), extra=[2, 3])]},
              {18: [lambda s: drain(s, p2_setup(ring))], 22: pull(ring, ch, 0)[:2], 24: pull(ring, ch, 0)[2:], 27: [pollA], CFG['KVW']: [fkv]}, dma=CFG['ST'])
    m0.posts.setdefault(29, []).append(lambda s: drain(s, phi_frags()))
    add_touch([m0, mV, mH], 'A')
    m0.run(s, mV); mV.run(s, None, F, CFG['KB'] + CFG['KD'] * (1 - 2 * ch))
    bar(s, ring, "c2", [], N("V", 2, 4), lg0=True)
    print("   A V-only block:", len(F))
    VB_ = correct(uV, ch, WB) + F + [mH.pre]
    if CFG.get('VST'):
        for k in range(len(VB_) // 12 * 12, 0, -12): VB_.insert(k, stamp(f"v{k}"))
    vseg(s, ring, VB_, flush=False)
    bar(s, ring, "d2", ["H1", "H2"])
    F = list(ER)
    mH.run(s, None, F, CFG['VB'])
    assert not F
    bar(s, ring, "e1", pr(1), N("H", 2, 4) + pr(0), lg0=True)
    drain(s, pull(ring, ch, 1))
    ring.rel8 = pr(1)
    s.marks.update(vbar=1, p1=1)
    F = EH + [mark('v1'), mark('v0'), ('hold', CFG['F3G']), f3]
    aphase(s, ring, ch, F, list(range(36, 64, 4)) + list(range(80, 96, 4)) + [100, 120, 124], {'v1': [104, 108, 112, 116]}, CFG['TOFF'])
    return s

def stream_B(s0, ch):
    CB, DB = CFG['CB'], CFG['DB']
    s = s0.fork(f"B{ch}"); s.e(f"L_typeB{ch}:")
    bl = unit_bases(s, 'B')
    H5 = [(f"F{c}", sW1, vD5, sUD, 0, 16 * 3584, 0, 128 * 3584, lambda hf, c=c: 2 * c + hf) for c in range(2)]
    items = p0_items(w_items("U", sW1, vD1, sUA, 3584), w_items("Y", sW1, vD1, sUB, 3584)) + H5 + w_items("Q", sWq, vDq, sUC, 3072) + b_items(1)
    ring = Ring(items, range(9), ch); ring.upto0 = "Y3"
    start(s, ring, bl)
    s.e(f"s_and_b32 s5, {sG}, 1\ns_cmp_eq_u32 s5, 0\ns_cselect_b32 s5, 4, 2\ns_cselect_b32 s4, {12*1024}, 0\ns_lshl_b32 s5, s5, 10\n"
        f"s_add_u32 {sSCRW}, {sKS}, s4\ns_add_u32 s5, s5, {ch*2048}\ns_add_u32 {sKS}, {sKS}, s5")
    uU = dict(name="U", acc=ACC_A, trans=True, kind='w', csi=0)
    uY = dict(name="Y", acc=ACC_B, trans=True, kind='w', csi=1)
    uF = dict(name="F", acc=ACC_C, trans=True, kind='h5', csi=0)
    uQ = dict(name="Q", acc=ACC_A, trans=True, kind='w', csi=1)
    EU = ilv(stats_fin(PT), correct(uU, ch, PT + 8, BI0)) + [initchk, ('gap', 10)] + mish(ACC_A, PT, sKS, "act1") + [f"s_add_u32 {sKS}, {sKS}, 4096"]
    EY = correct(uY, ch, PT + 8, BI1) + [mark('b1dead'), ('gap', 16)] + mish(ACC_B, PT, sKS, "act2")
    EF = correct(uF, ch, PT + 8, BI2) + [('gap', 16)] + mish(ACC_C, PT, sSCRW, "act5")
    EQ = correct(uQ, ch, PT + 12) + phi_frags() + pack16(ACC_A, PK)
    EQ += [f"{MF} {R(PT,16)}, {R(PHI,4)}, {R(PK,4)}, 0", f"{MF} {R(ACC_B,16)}, {R(PHI+4,4)}, {R(PK+4,4)}, 0"] + fin_setup()
    if CFG['PK']: EQ += softmax_pk(PT, ACC_A, "v26", vT, PHI) + softmax_pk(ACC_B, ACC_A + 8, "v26", vT, PHI)
    else: EQ += softmax(PT, ACC_A, "v26", vT) + softmax(ACC_B, ACC_A + 8, "v26", vT)
    f1 = flag_store("act1", sFL, 0, 'f1'); f2 = flag_store("act2", sFL, 128, 'f2'); f3 = flag_store("act5", sFL, 3 * 128, 'f3')
    pr = lambda c: [bnm(0, c), bnm(1, c)]
    FG = ('gap', CFG['FG'])
    F = [('wait', 'c1')] + EU + [mark('m1'), ('wait', 'c2')] + split(EY, 0.6, f1) + [mark('m2')]
    if ch == 0: F += [('wait', 'c3')] + split(EF, 0.6, f2) + [mark('m3')]
    else: F += [FG, f2, mark('m3'), mark('f3')]
    m0 = pass0(s, ring, uU, ch, bl, "Y3", ["Y0"])
    mY = MSeg(ring, uY, ch, {CB: [B(ring, "c1", ["Y1", "Y2"], ["U3"])], DB: [B(ring, "d1", ["Y3", "F0"], N("Y", 0, 2))]}, dma=CFG['ST'])
    c2 = B(ring, "c2", ["F1", "Q0"], N("Y", 2, 4), owner=1)
    mQ = MSeg(ring, uQ, ch, {CB: [B(ring, "c3", ["Q1", "Q2"], ["F0", "F1"])], DB: [B(ring, "d3", ["Q3"] + pr(0), N("Q", 0, 2))]},
              {15: [lambda s: (until(s, ring, F, 'b1dead'), drain(s, p2_setup(ring)))], 22: pull(ring, ch, 0)[:2], 24: pull(ring, ch, 0)[2:], CFG['TAP']: [pollA], CFG['TAT']: [touchA(0, 8, 0xf, 'v160', 'v161')], 27: [pollA]}, dma=CFG['ST'])
    add_touch([m0, mY, mQ], 'B')
    m0.run(s, mY)
    if ch == 0:
        mF = MSeg(ring, uF, ch, {CB: [c2]}, dma=CFG['ST'] // 2)
        mY.run(s, mF, F, CFG['P1B'] + CFG['PD']); mF.run(s, mQ, F, CFG['FB'])
    else:
        mY.run(s, None, F, CFG['P1B'] - CFG['PD']); c2(s); vrun(s, ring, F, CFG['IB']); mQ.pre(s)
    print("   B forced m1:", until(s, ring, F, 'm1'))
    mQ.run(s, None, F, CFG['QB'][ch])
    KS, OD, OD2, OF, OP = WB, PT, ACC_B, PHI, PK
    def kvfetch(s):
        poll_check(s, sWs, sKVF, 0xffff, vPoll2, vo="v21")
        s.e(f"s_lshl_b32 s5, {sRT2}, 10\ns_add_u32 s5, s5, {sKVs}")
        s.e(f"buffer_load_dwordx4 {R(KS,4)}, {vA16}, {sWs}, s5 offen sc1")
        s.e(f"v_and_b32 v21, 3, v0\nv_lshlrev_b32 v21, 4, v21\ns_lshl_b32 s5, {sRT2}, 6\ns_add_u32 s5, s5, {sKVs}")
        s.e(f"buffer_load_dwordx4 {R(KS+4,4)}, v21, {sWs}, s5 offen offset:2048 sc1")
    IM = [f"v_cvt_pk_bf16_f32 v{KS}, v{KS}, v{KS+1}", f"v_cvt_pk_bf16_f32 v{KS+1}, v{KS+2}, v{KS+3}",
          f"v_cvt_pk_bf16_f32 v{KS+4}, v{KS+4}, v{KS+5}", f"v_cvt_pk_bf16_f32 v{KS+5}, v{KS+6}, v{KS+7}",
          blk(f"s_mul_i32 s5, {sKQ}, 1088\ns_add_u32 s5, s5, {SCR_KV}\ns_lshl_b32 s4, {sRT2}, 9\ns_add_u32 s4, s4, s5\nv_lshlrev_b32 v25, 3, v0\nv_add_u32 v25, s4, v25\n"
              f"ds_write_b64 v25, {R(KS,2)}\ns_lshl_b32 s4, {sRT2}, 5\ns_add_u32 s4, s4, s5\nv_lshrrev_b32 v21, 1, v21\nv_add_u32 v21, s4, v21\nds_write_b64 v21, {R(KS+4,2)} offset:1024"),
          f"v_min_u32 v25, 64, {vP4}", "v_lshlrev_b32 v25, 4, v25", "v_lshrrev_b32 v26, 5, v0", "v_lshl_add_u32 v25, v26, 5, v25",
          blk(f"v_add_u32 v25, {SCR_KV + ch*2176}, v25\ns_lshl_b32 s5, {sG}, 12\ns_add_u32 s5, s5, {sAF}\ns_add_u32 {sSCRW}, s5, {112*1024 + ch*2048}")]
    O = [f"ds_read_b128 {R(OF,4)}, v25", f"ds_read_b128 {R(OF+4,4)}, v25 offset:16", f"ds_read_b128 {R(OP,4)}, v25 offset:1088", f"ds_read_b128 {R(OP+4,4)}, v25 offset:1104"]
    O += [f"{MF} {R(OD,16)}, {R(OF,4)}, {R(ACC_A,4)}, 0", f"{MF} {R(OD,16)}, {R(OF+4,4)}, {R(ACC_A+4,4)}, {R(OD,16)}",
          f"{MF} {R(OD2,16)}, {R(OP,4)}, {R(ACC_A+8,4)}, 0", f"{MF} {R(OD2,16)}, {R(OP+4,4)}, {R(ACC_A+12,4)}, {R(OD2,16)}"]
    for h, D in enumerate((OD, OD2)):
        O += [f"v_add_f32 v26, 0x358637bd, v{D+8}", "v_rcp_f32 v26, v26"]
        for j in range(8): O.append(f"v_mul_f32 v{D+j}, v{D+j}, v26")
        for j in range(4): O.append(f"v_cvt_pk_bf16_f32 v{ACC_A+4*h+j}, v{D+2*j}, v{D+2*j+1}")
        O.append((f"buffer_store_dwordx4 {R(ACC_A+4*h,4)}, {vA16}, {sWs}, {sSCRW} offen offset:{h*1024} sc1", "o"))
    O.append(stamp('ost'))
    bar(s, ring, "e1", pr(1), N("Q", 2, 4) + pr(0), lg0=True)
    drain(s, pull(ring, ch, 1)); s.marks['p1'] = 1
    ring.rel8 = []
    def ins(L, back, item): return L[:len(L) - back] + [item] + L[len(L) - back:]
    F2 = F + EQ
    if ch == 0: F2 = ins(F2, 110, f3)
    kp = lambda s: (s.e("v_min_u32 v21, 15, v0\nv_lshlrev_b32 v21, 7, v21"), poll_issue(s, sWs, sKVF, vPoll2, vo="v21"))
    K1, K2, K3 = CFG['KS']
    if CFG['KM'] == 0:
        F2 = ins(ins(F2, CFG['KP'], kp), CFG['KF'], kvfetch)
        F2 += IM + [B(ring, "e2", [], pr(1), lg0=True), mark('vbar')] + O + [mark('v1'), mark('v0'), ('hold', CFG['OW']), flag_store("o", sFL, 4 * 128, 'fo')]
    else: F2 += [mark('v0'), mark('vbar'), ('tilt', K1), kp, ('tilt', K2), kvfetch, ('tilt', K3)] + IM + [('nextbar',)] + O + [mark('v1'), ('hold', CFG['OW']), flag_store("o", sFL, 4 * 128, 'fo')]
    ring.rel8 = pr(1) if CFG['KM'] else []
    aphase(s, ring, ch, F2, [88, 92], {'f3': [64, 68, 72, 76], 'v1': [80, 84] + list(range(40, 64, 4)) + list(range(96, 128, 4))}, 0)
    return s

def build(path, listform=True):
    s0 = Stream("P")
    if PROFILE: s0.e("s_memtime s[96:97]\ns_memrealtime s[58:59]")
    s0.e("s_memrealtime s[58:59]")
    prologue(s0)
    s0.e(f"s_lshl_b32 s5, {sTY}, 1\ns_add_u32 s5, s5, {sCH}\ns_cmp_eq_u32 s5, 0\ns_cbranch_scc1 L_typeA0\ns_cmp_eq_u32 s5, 1\ns_cbranch_scc1 L_typeA1\ns_cmp_eq_u32 s5, 3\ns_cbranch_scc1 L_typeB1")
    B0 = stream_B(s0, 0); B1 = stream_B(s0, 1); A0 = stream_A(s0, 0); A1 = stream_A(s0, 1)
    assert B0.nbar == B1.nbar and A0.nbar == A1.nbar
    assert B0.slots == B1.slots and A0.slots == A1.slots
    hdr = open("recurrent_scan__linear_kernel_hedgehog__dense_activation_mish__prompt.s.ref").read().split("; Override")[0]
    T = [hdr.rstrip(), f"; @launch {'kernel=' + KNAME + ' ' if listform else ''}grid=(256,1,1) block=(512,1,1) lds=163840",
         '.amdgcn_target "amdgcn-amd-amdhsa--gfx950"', ".text", f".globl {KNAME}", ".p2align 8", f".type {KNAME},@function", f"{KNAME}:"]
    S = [s0, B0, B1, A0, A1]
    for st in S:
        T.append(f"; ---- stream {st.name}  nops={st.stats['nop']} waits={st.stats['wait']} barriers={st.nbar}")
        T.append(st.text())
    for st in S: T += st.ool
    T.append("L_end:\n  s_endpgm")
    T.append(".fill 6144, 4, 0xbf800000")
    T.append(f'''.section .rodata,"a"
.p2align 6
.amdhsa_kernel {KNAME}
  .amdhsa_next_free_vgpr 256
  .amdhsa_next_free_sgpr 102
  .amdhsa_accum_offset 256
  .amdhsa_group_segment_fixed_size 0
  .amdhsa_kernarg_size 88
  .amdhsa_user_sgpr_count 2
  .amdhsa_user_sgpr_kernarg_segment_ptr 1
  .amdhsa_system_sgpr_workgroup_id_x 1
.end_amdhsa_kernel''')
    open(path, "w").write("\n".join(T) + "\n")
    for st in S: print(st.name, "instrs", len(st.out), st.stats, "barriers", st.nbar)

if __name__ == "__main__":
    for a in sys.argv[2:]:
        if a == "prof": PROFILE = True
        elif '=' in a:
            k, v = a.split('='); CFG[k] = eval(v)
    build(sys.argv[1], listform=("final" not in sys.argv))
```

```python
import sys
sys.path.insert(0, 'gen')
from ab import *

KNAME = "recurrent_scan__linear_kernel_hedgehog__dense_activation_mish__prompt_kernel"
PROFILE = False
SLOT = 16384
SCR = 9 * SLOT
SCR_PHI = SCR
SCR_RS = SCR + 2048
SCR_ST = SCR + 2560
SCR_CS = SCR + 6656
SCR_Z = SCR + 10752
SCR_KV = SCR + 10752
Z_OFF = 0x900000
KV_OFF = Z_OFF
KVFLAG_OFF = Z_OFF + 0x40000
ACTFLAG_OFF = Z_OFF + 0x16000
PROF_OFF = 0xA00000
BIG = 0x40000000
CFG = dict(AD=16, A0=8, AN=2, BN=1, G8=1, F3G=4, PB=[(200, 40), (80, 55), (80, 40)], SLP=8, PWW=0, PVL=60, PSA=[(3, 7), (11, 14), (18, 21)], PSB=[(0, 1), (5, 8), (11, 15)], PB2=3, YB=31, PKT=1, MIX=0, MG=300, EB=0, EA=1, PKH=1, T3W=[0, 1, 2, 3, 0, 1, 2, 3, 0], OWN='', KD=0, PD=0, UP=[0, 0, 0, 0, 1, 2, 2], PAR=2, FB4=0, PKA=1, PK=0, KM=0, KVW=16, KS=(0, 5, 10), KVP=12, TAP=8, TAT=20, TAD=2, CB=6, DB=22, TW=1, TWT=2, GT=[2000, 4000, 5500, 500], TOFF=-1000, LT=200, LT2=200, QD2=800, LAT=900, QD=800, PLT=1500, BL=6, VC=9, T2=0, T2AT=[30, 35, 40, 45, 50, 55, 60, 66, 72], PF=4, PL=4, S0=6, S1=6, PRIO=0, VD=10, KP=160, KF=110, OW=4, G16=8, G28=20, TV=10, TB=1, TBT=28, TA=0, TO=11, T0=0, T1=0, ROT=2, RATE=38, BURST=24576, ST=90,
    CRED=6, AGE=14, P1B=5, FB=5, QB=[10, 3], IB=200, KB=6, VB=8, KVG=60, EH0=60, FG=60, E1=[120, 100], E2=[100, 80])

sX, sWq, sW1, sW2, sWo, sPhi, sB1, sOut, sDbg, sWs = [f"s[{8+4*i}:{11+4*i}]" for i in range(10)]
sW, sRT, sCH, sI, sG, sTY, sRB, sCB, sKQ, sRT2 = [f"s{48+i}" for i in range(10)]
sT0 = "s3"
sC10, sC01, sC11 = "s58", "s59", "s60"
sM0W = "s61"; sSoW = "s62"
sUA, sUB, sUC, sUD = "s63", "s6", "s7", "s2"
sAF, sFL, sAF2, sFL2, sB2, sBo, sKVs, sKVF, sSCRW, sCNT, sKS, sBID = [f"s{64+i}" for i in range(12)]
sA2y, sA2s, sOo = "s0", "s1", "s5"
STAMP0 = 76

vA16 = "v1"; vDq = "v2"; vD1 = "v3"; vDB = "v4"; vD5 = "v5"
VW = 6
vRS, vRSL, vM2 = "v14", "v15", "v22"
CF = 16
BI0, BI1, BI2 = 23, 24, 25
vPoll = "v27"; vFO = "v28"; vOne = "v10"; vP4 = "v30"; vT = "v31"; vPoll2 = "v9"
ACC_A, ACC_B, ACC_C = 32, 48, 64
WB = 80; PT = 96; PHI = 112; PK = 120; XA = 128
XR = 64; XD = 72; HR = 112; STA = 96; CSB = 116; ASEL = 120; CSA = 124
sXb = "s86"; sRot = "s89"; ROT0 = 98

def R(b, n): return f"v[{b}:{b+n-1}]"
def ldsaddr(regs, byte): return regs[byte >> 16], byte & 0xffff
_nl = [0]
def label():
    _nl[0] += 1; return f"L{_nl[0]}"
def stamp(name):
    def f(s):
        if not PROFILE: return
        if not hasattr(s, 'snames'): s.snames = []
        idx = len(s.snames)
        if idx >= 61: return
        s.snames.append(str(name))
        s.e(f"s_memtime s[{STAMP0+2*(idx%4)}:{STAMP0+1+2*(idx%4)}]")
        if idx >= 2: s.raw(f"v_writelane_b32 v29, s{STAMP0+2*((idx-2)%4)}, {idx-2}")
    return f
def srd(s, dst, lo, hi, size):
    b = int(dst[2:dst.index(':')])
    s.e(f"s_mov_b32 s{b}, {lo}\ns_and_b32 s{b+1}, {hi}, 0xffff\ns_mov_b32 s{b+2}, {size}\ns_mov_b32 s{b+3}, 0x20000")
def poll_issue(s, srd_, soff, vp=vPoll, imm=0, vo=vP4):
    s.e(f"buffer_load_dword {vp}, {vo}, {srd_}, {soff} offen offset:{imm} sc1")
def poll_check(s, srd_, soff, mask, vp=vPoll, imm=0, vo=vP4):
    l1, l2, l3 = label(), label(), label()
    stamp(f"[p{imm//128}_{mask:x}")(s)
    s.e(f"v_cmp_ne_u32 vcc, 0, {vp}\ns_andn2_b32 {sT0}, {mask:#x}, vcc_lo\ns_cbranch_scc1 {l1}\n{l2}:")
    stamp(f"p]")(s)
    s.ool.append(f"""{l1}:
  s_mov_b32 {sCNT}, 0x10000
{l3}:
  s_sleep {CFG['SLP']}
  buffer_load_dword {vp}, {vo}, {srd_}, {soff} offen offset:{imm} sc1
  s_waitcnt vmcnt(0)
  v_cmp_ne_u32 vcc, 0, {vp}
  s_nop 1
  s_andn2_b32 {sT0}, {mask:#x}, vcc_lo
  s_cbranch_scc0 {l2}
  s_sub_u32 {sCNT}, {sCNT}, 1
  s_cmp_lg_u32 {sCNT}, 0
  s_cbranch_scc1 {l3}
  s_branch {l2}""")
def flag_store(tagwait, soff, imm, mark):
    def f(s):
        stamp("(" + mark)(s)
        s.wait_tag(tagwait)
        stamp(mark + ")")(s)
        s.e(f"buffer_store_dword {vOne}, {vFO}, {sWs}, {soff} offen offset:{imm} sc1")
        s.marks[mark] = 1
    return f
def blk(text): return lambda s: s.e(text)

class Ring:
    hold = ()
    def __init__(self, items, free, ch):
        self.items = list(items); self.free = list(free); self.slot = {}; self.q = []; self.log = {}; self.ch = ch
        self.order = {it[0]: k for k, it in enumerate(items)}; self.xres = True
    def release(self, name):
        if name not in self.hold: self.free.append(self.slot[name])
    def assign(self, s, owner='all', upto=None, maxn=99):
        k = 0
        while k < len(self.items) and maxn > 0:
            it = self.items[k]; nm = it[0]
            if upto is not None and self.order[nm] > self.order[upto]: break
            if nm[0] == 'X':
                want = 2 * (int(nm[2]) & 1) + (nm[1] == 'H')
                ok = [x for x in self.free if x == want]
                if not ok: k += 1; continue
            elif nm[0] in 'BF': ok = [x for x in self.free if not (self.xres and x < 4)]
            else: ok = [x for x in self.free if x != 0 and not (self.xres and x < 4)]
            if not ok:
                if nm[0] != 'B' and not self.strict: k += 1; continue
                break
            if nm[0] in 'BF' and 0 in ok: ok = [0]
            self.items.pop(k); sl = ok[0]; self.free.remove(sl); self.slot[nm] = sl; maxn -= 1
            self.log[nm] = [s.nbar, None, owner]
            if owner == 'all': self.q += [(it, sl, h, 0) for h in range(2)]
            elif owner == self.ch: self.q += [(it, sl, h, o) for o in range(2) for h in range(2)]
            if nm == 'XH3': self.xres = False
        self.q.sort(key=lambda e: self.order[e[0][0]])
    def pump(self, s, n=1):
        while n > 0 and self.q:
            it, sl, h, other = self.q.pop(0)
            name, srd_, voff, sbase, o0, o1, dl = it[:7]
            sg = (1 if self.ch == 0 else -1) * other
            vo = voff[h] if isinstance(voff, tuple) else voff
            s.e(f"s_add_u32 m0, {sM0W}, {(sl*SLOT + h*1024 + sg*8192) & 0xffffffff:#x}")
            if len(it) > 7:
                mul, cidx = it[7], it[8](self.ch if not other else 1 - self.ch)
                key = (sbase, mul, cidx)
                if self.rkey != key:
                    s.e(f"s_mul_i32 {sRot}, s{ROT0+cidx}, {mul}\ns_add_u32 {sRot}, {sRot}, {sbase}")
                    self.rkey = key
                sbase = sRot
            s.e(f"s_add_u32 {sSoW}, {sbase}, {((o0, o1)[h] + sg*dl) & 0xffffffff:#x}")
            s.e(f"buffer_load_dwordx4 {vo}, {srd_}, {sSoW} offen lds", tag=name)
            n -= 1
    rkey = None
    strict = False
    cred = 0
    def pace(self, s, cycles, mx=99):
        self.cred = min(self.cred + cycles * CFG['RATE'], CFG['BURST'])
        while self.q and mx > 0:
            mx -= 1
            e = self.q[0]
            cost = (8192 if self.log[e[0][0]][2] == 'all' else 4096) * (2 if e[0][0][0] == 'F' else 1)
            if self.cred < cost: break
            self.cred -= cost; self.pump(s, 1)
    def need(self, s, name):
        assert name in self.slot, f"{name} has no slot yet"
        while any(e[0][0] == name for e in self.q):
            print("  warning: forced DMA issue for", name, "in", s.name)
            self.pump(s)
        if self.log[name][1] is None: self.log[name][1] = s.nbar
        s.wait_tag(name)
def x_items(q):
    return [(f"XL{q}", sX, (f"v{XD}", f"v{XD+1}"), sXb, 0, 0, 32768, 256, lambda c: q), (f"XH{q}", sX, (f"v{XD}", f"v{XD+1}"), sXb, 65536, 65536, 32768, 256, lambda c: q)]
def w_items(name, srd_, voff, sbase, stride):
    return [(f"{name}{c}", srd_, voff, sbase, 0, 8 * stride, 64 * stride, 128 * stride, lambda ch, c=c: c) for c in range(4)]
ORDER = [4, 5, 6, 7, 16, 17, 18, 19, 8, 9, 10, 11, 20, 21, 22, 23, 12, 13, 14, 15, 0, 1, 2, 3, 24, 25, 26, 27]
def b_item(hf, c):
    nm = f"B{'ab'[hf]}{c}"
    if c < 7:
        o = hf * 896 * 1024 + ORDER[4 * c] * 16384
        return (nm, sW2, vDB, sB2, o, o + 8192, 448 * 1024)
    o = hf * 256 * 1024 + (c - 7) * 65536
    return (nm, sWo, vDB, sBo, o, o + 8192, 128 * 1024)
def b_items(first):
    it = []
    for c in range(9): it += [b_item(0, c), b_item(1, c)]
    return it

def mish(acc, tmp, so, tag):
    F = []
    for hb in range(2):
        a = acc + 8 * hb
        for j in range(8): F.append(f"v_mul_f32 v{tmp+j}, v{a+j}, {vRSL}")
        for j in range(8): F.append(f"v_exp_f32 v{tmp+j}, v{tmp+j}")
        for j in range(8): F.append(f"v_add_f32 v{tmp+j}, 1.0, v{tmp+j}")
        for j in range(8): F.append(f"v_fma_f32 v{tmp+j}, v{tmp+j}, v{tmp+j}, 1.0")
        for j in range(8): F.append(f"v_rcp_f32 v{tmp+j}, v{tmp+j}")
        for j in range(8): F.append(f"v_fma_f32 v{tmp+j}, v{tmp+j}, {vM2}, {vRS}")
        for j in range(8): F.append(f"v_mul_f32 v{tmp+j}, v{a+j}, v{tmp+j}")
        for j in range(4): F.append(f"v_cvt_pk_bf16_f32 v{a+j}, v{tmp+2*j}, v{tmp+2*j+1}")
        F.append((f"buffer_store_dwordx4 {R(a,4)}, {vA16}, {sWs}, {so} offen offset:{hb*1024} sc1", tag))
    return F
def bc(r):
    n = int(r[1:]); return R(n & ~1, 2), n & 1
def pk2(op, d, a, b, c=None):
    ops = [R(a, 2)]; lo = [0]; hi = [1]
    for x in (b, c):
        if x is None: continue
        if isinstance(x, int): ops.append(R(x, 2)); lo.append(0); hi.append(1)
        elif x[0] == 'v':
            p, o = bc(x); ops.append(p); lo.append(o); hi.append(o)
        else: ops.append(x); lo.append(0); hi.append(0)
    f = lambda L: "[" + ",".join(map(str, L)) + "]"
    return f"v_pk_{op}_f32 {R(d,2)}, " + ", ".join(ops) + f" op_sel:{f(lo)} op_sel_hi:{f(hi)}"
def mish_pk(acc, tmp, so, tag):
    F = []
    for hb in range(2):
        a = acc + 8 * hb; E = range(0, 8, 2)
        F += [pk2("mul", tmp + j, a + j, vRSL) for j in E] + [f"v_exp_f32 v{tmp+j}, v{tmp+j}" for j in range(8)]
        F += [pk2("add", tmp + j, tmp + j, "1.0") for j in E] + [pk2("fma", tmp + j, tmp + j, tmp + j, "1.0") for j in E]
        F += [f"v_rcp_f32 v{tmp+j}, v{tmp+j}" for j in range(8)]
        F += [pk2("fma", tmp + j, tmp + j, vM2, vRS) for j in E] + [pk2("mul", tmp + j, tmp + j, a + j) for j in E]
        F += [f"v_cvt_pk_bf16_f32 v{a+j}, v{tmp+2*j}, v{tmp+2*j+1}" for j in range(4)]
        F.append((f"buffer_store_dwordx4 {R(a,4)}, {vA16}, {sWs}, {so} offen offset:{hb*1024} sc1", tag))
    return F
def softmax_pk(P, out, t0, t1, tp):
    F = softmax(P, out, t0, t1)[:9]; E = range(0, 16, 2)
    F += [pk2("fma", P + j, P + j, vRSL, t0) for j in E] + [f"v_exp_f32 v{P+j}, v{P+j}" for j in range(16)]
    F += [pk2("add", tp, P, P + 2), pk2("add", tp + 2, P + 4, P + 6), pk2("add", tp, tp, P + 8), pk2("add", tp + 2, tp + 2, P + 10),
          pk2("add", tp, tp, P + 12), pk2("add", tp + 2, tp + 2, P + 14), pk2("add", tp, tp, tp + 2), f"v_add_f32 {t0}, v{tp}, v{tp+1}", f"v_rcp_f32 {t0}, {t0}"]
    F += [pk2("mul", P + j, P + j, t0) for j in E] + [f"v_cvt_pk_bf16_f32 v{out+j}, v{P+2*j}, v{P+2*j+1}" for j in range(8)]
    return F
def softmax(P, out, t0, t1):
    F = [f"v_max3_f32 {t0}, v{P}, v{P+1}, v{P+2}", f"v_max3_f32 {t1}, v{P+3}, v{P+4}, v{P+5}",
         f"v_max3_f32 {t0}, {t0}, v{P+6}, v{P+7}", f"v_max3_f32 {t1}, {t1}, v{P+8}, v{P+9}",
         f"v_max3_f32 {t0}, {t0}, v{P+10}, v{P+11}", f"v_max3_f32 {t1}, {t1}, v{P+12}, v{P+13}",
         f"v_max3_f32 {t0}, {t0}, v{P+14}, v{P+15}", f"v_max_f32 {t0}, {t0}, {t1}", f"v_mul_f32_e64 {t0}, -{t0}, {vRSL}"]
    for j in range(16): F.append(f"v_fma_f32 v{P+j}, v{P+j}, {vRSL}, {t0}")
    for j in range(16): F.append(f"v_exp_f32 v{P+j}, v{P+j}")
    F += [f"v_add_f32 {t0}, v{P}, v{P+1}", f"v_add_f32 {t1}, v{P+2}, v{P+3}"]
    for j in range(4, 16, 2):
        F += [f"v_add_f32 {t0}, {t0}, v{P+j}", f"v_add_f32 {t1}, {t1}, v{P+j+1}"]
    F += [f"v_add_f32 {t0}, {t0}, {t1}", f"v_rcp_f32 {t0}, {t0}"]
    for j in range(16): F.append(f"v_mul_f32 v{P+j}, v{P+j}, {t0}")
    for j in range(8): F.append(f"v_cvt_pk_bf16_f32 v{out+j}, v{P+2*j}, v{P+2*j+1}")
    return F
def pack16(acc, out): return [f"v_cvt_pk_bf16_f32 v{out+j}, v{acc+2*j}, v{acc+2*j+1}" for j in range(8)]
def phi_frags():
    F = ["v_bfe_u32 v25, v0, 2, 2", "v_lshrrev_b32 v26, 5, v0", "v_lshl_add_u32 v25, v26, 2, v25", "v_lshlrev_b32 v25, 5, v25",
         "v_bfe_u32 v26, v0, 4, 1", "v_lshl_add_u32 v25, v26, 4, v25", "v_bfe_u32 v26, v0, 1, 1", "v_lshl_add_u32 v25, v26, 3, v25",
         blk(f"s_lshl_b32 s4, {sCH}, 10\ns_add_u32 s4, s4, {SCR_PHI}\nv_add_u32 v25, s4, v25")]
    for h in range(2):
        for rd in range(2): F.append(f"ds_read_b64_tr_b16 {R(PHI+4*h+2*rd,2)}, v25 offset:{h*512 + rd*256}")
    F += ["v_bfe_u32 v26, v0, 2, 1", "v_mul_u32_u24 v26, 0x8000, v26", "v_lshl_or_b32 v26, v26, 16, v26"]
    for j in range(8): F.append(f"v_xor_b32 v{PHI+j}, v26, v{PHI+j}")
    return F

BIASL = {}
def prologue(s):
    s.e("s_load_dwordx2 s[64:65], s[0:1], 0\ns_load_dwordx8 s[68:75], s[0:1], 8\ns_load_dwordx8 s[76:83], s[0:1], 40")
    s.e("s_load_dwordx2 s[84:85], s[0:1], 80\ns_load_dwordx2 s[66:67], s[0:1], 72")
    s.e("s_cmp_ge_u32 s2, 256\ns_cbranch_scc1 L_end")
    s.e("v_lshrrev_b32 v2, 6, v0\nv_and_b32 v0, 63, v0\ns_and_b32 s3, s2, 7\ns_lshr_b32 s87, s2, 3")
    s.e(f"v_readfirstlane_b32 {sW}, v2")
    s.e(f"v_lshrrev_b32 v33, 4, v0\nv_and_b32 v34, 15, v0")
    s.e(f"s_cmp_lg_u32 {sW}, {CFG['PWW']}\ns_cbranch_scc1 L_nopw")
    s.e(f"s_getpc_b64 s[90:91]\nL_pc0:\ns_sub_u32 s90, s90, L_pc0-{KNAME}\ns_subb_u32 s91, s91, 0\ns_lshl_b32 s5, s87, 11\nv_lshlrev_b32 v35, 7, v34\nv_add_u32 v35, s5, v35")
    s.raw("global_load_dword v26, v35, s[90:91]")
    s.e("L_nopw:")
    s.e(f"s_and_b32 s5, s3, 1\ns_lshl_b32 s5, s5, 3\ns_and_b32 {sI}, s87, 7\ns_add_u32 {sI}, {sI}, s5")
    s.e(f"s_and_b32 {sRT2}, {sW}, 1\ns_lshl_b32 {sM0W}, {sW}, 11\ns_lshl_b32 s5, {sRT2}, 3")
    for h in range(2):
        s.e(f"v_add_u32 v35, {4*h}, v33\nv_add_u32 v36, s5, v35\nv_xor_b32 v36, v34, v36\nv_lshlrev_b32 v36, 4, v36\nv_lshl_add_u32 v{XD+h}, v35, 10, v36")
    s.e(f"s_lshr_b32 s{ROT0}, s3, 1\ns_lshl_b32 s{ROT0+1}, s3, 1\ns_add_u32 s{ROT0}, s{ROT0}, s{ROT0+1}")
    for c in range(1, 4): s.e(f"s_add_u32 s{ROT0+c}, s{ROT0}, {c}\ns_and_b32 s{ROT0+c}, s{ROT0+c}, 3")
    s.e(f"s_and_b32 s{ROT0}, s{ROT0}, 3")
    s.e(f"s_lshl_b32 {sXb}, {sI}, 17\ns_lshl_b32 s5, {sW}, 13\ns_add_u32 {sXb}, {sXb}, s5\ns_mov_b32 s10, {2048*512*2}\ns_mov_b32 s11, 0x20000")
    s.e("v_lshrrev_b32 v36, 3, v0\nv_and_b32 v37, 7, v0\nv_lshlrev_b32 v38, 1, v36\nv_and_b32 v38, 4, v38\nv_xor_b32 v37, v37, v38\nv_lshlrev_b32 v37, 4, v37")
    s.raw("s_waitcnt lgkmcnt(0)")
    s.e("s_mov_b32 s8, s64\ns_and_b32 s9, s65, 0xffff")
    r0 = Ring(x_items(0) + x_items(1), range(9), 0); r0.assign(s)
    r0.pump(s, 4)
    s.e(f"v_mul_u32_u24 {vDq}, 3072, v36\nv_add_u32 {vDq}, {vDq}, v37\nv_mul_u32_u24 {vD1}, 3584, v36\nv_add_u32 {vD1}, {vD1}, v37")
    s.e(f"s_lshr_b32 s5, s3, 1\ns_lshl_b32 s5, s5, 2\ns_lshr_b32 s6, s87, 3\ns_add_u32 s5, s5, s6")
    s.e(f"s_lshr_b32 {sG}, s5, 1\ns_and_b32 {sTY}, s5, 1\ns_lshl_b32 {sRB}, s3, 2\ns_add_u32 {sRB}, {sRB}, s6\ns_and_b32 {sCB}, s87, 7")
    s.e(f"s_lshr_b32 {sKQ}, {sW}, 1\ns_and_b32 {sRT}, {sW}, 3\ns_lshr_b32 {sCH}, {sW}, 2\ns_mov_b32 s88, s2")
    srd(s, sWq, "s68", "s69", 512 * 1536 * 2)
    srd(s, sW1, "s76", "s77", 512 * 1792 * 2)
    def wpair(c, first):
        l1, l2 = label(), label()
        s.e(f"s_cmp_eq_u32 {sTY}, 0\ns_cbranch_scc1 {l1}")
        vm0 = list(s.vm)
        for typ, it in (('B', w_items("W", sW1, vD1, sUA, 3584)), ('A', w_items("W", sWq, vDq, sUA, 3072))):
            s.vm = list(vm0)
            if typ == 'A': s.e(f"{l1}:")
            if first: BIASL[typ] = unit_bases(s, typ)
            r = Ring([it[c]], [4 + c], 0); r.assign(s); r.pump(s, 2)
            if typ == 'B': s.e(f"s_branch {l2}")
        s.e(f"{l2}:")
    wpair(0, True)
    s.e(f"v_lshl_add_u32 {vDB}, v36, 10, v37\nv_lshlrev_b32 {vA16}, 4, v0")
    srd(s, sWs, "s84", "s85", 0x10000000)
    s.e("s_cmp_ge_u32 s88, 32\ns_cbranch_scc1 L_noinit")
    s.e("v_mov_b32 v40, 0\nv_mov_b32 v41, 0\nv_mov_b32 v42, 0\nv_mov_b32 v43, 0")
    s.e(f"s_lshl_b32 s5, s88, 13\ns_lshl_b32 s4, {sW}, 10\ns_add_u32 s5, s5, s4\ns_add_u32 s5, s5, {Z_OFF}")
    s.raw(f"buffer_store_dwordx4 v[40:43], {vA16}, {sWs}, s5 offen sc1")
    s.e("s_add_u32 s5, s5, 0x40000")
    s.raw(f"buffer_store_dwordx4 v[40:43], {vA16}, {sWs}, s5 offen sc1")
    s.e("L_noinit:")
    prologue2(s)
    r0.rkey = None
    r0.pump(s, 4)
    wpair(1, False)

def prologue2(s):
    srd(s, sPhi, "s70", "s71", 32 * 512)
    srd(s, sB1, "s78", "s79", 1792 * 2)
    srd(s, sW2, "s80", "s81", 1792 * 512 * 2)
    srd(s, sWo, "s72", "s73", 512 * 512 * 2)
    srd(s, sOut, "s82", "s83", 2048 * 512 * 2)
    srd(s, sDbg, "s66", "s67", 256)
    s.e(f"s_mov_b32 {sBID}, s88\ns_mov_b32 {sC11}, 0x3f803f80")
    s.e(f"v_lshrrev_b32 v36, 2, v0\nv_and_b32 v37, 3, v0\nv_lshlrev_b32 v37, 4, v37\nv_mul_u32_u24 {vD5}, 3584, v36\nv_add_u32 {vD5}, {vD5}, v37")
    s.e(f"v_and_b32 {vP4}, 31, v0\nv_lshlrev_b32 {vP4}, 2, {vP4}")
    s.e(f"v_mov_b32 v29, 0\nv_mov_b32 {vFO}, {BIG}\nv_cmp_eq_u32 vcc, 0, v0\nv_cndmask_b32 {vFO}, {vFO}, 0, vcc")
    s.e("v_bfe_u32 v36, v0, 2, 2\nv_and_b32 v37, 3, v0\nv_bfe_u32 v38, v0, 4, 1\nv_lshrrev_b32 v39, 5, v0")
    s.e("v_lshlrev_b32 v40, 3, v37\nv_lshl_add_u32 v40, v38, 5, v40\nv_lshl_add_u32 v41, v39, 3, v36")
    s.e(f"v_lshrrev_b32 v42, 1, v36\nv_xor_b32 v42, {sCH}, v42\nv_lshlrev_b32 v42, 6, v42")
    s.e(f"v_lshl_add_u32 v43, v41, 7, v40\nv_add_u32 v43, v43, v42")
    for j in range(4):
        s.e(f"s_xor_b32 s5, {sRT}, {j}\ns_lshl_b32 s5, s5, 12\ns_add_u32 s5, s5, {SLOT}\nv_add_u32 v{VW+j}, s5, v43\nv_add_u32 v{VW+4+j}, 0x10000, v{VW+j}")
    s.e(f"v_and_b32 v44, 31, v0\ns_lshl_b32 s5, {sRT}, 5\nv_add_u32 v45, s5, v44\nv_xor_b32 v46, v39, v34\nv_lshlrev_b32 v46, 4, v46\nv_lshl_add_u32 v{XR}, v45, 8, v46")
    s.e(f"s_lshl_b32 s5, {sRT}, 6\nv_xor_b32 v{XR}, s5, v{XR}")
    for t in range(1, 8): s.e(f"v_xor_b32 v{XR+t}, {t<<5}, v{XR}")
    s.e(f"v_lshlrev_b32 v44, 2, v38\nv_cmp_eq_u32 vcc, v44, v34\nv_mov_b32 v44, {sC11}\nv_cndmask_b32 v{ASEL}, 0, v44, vcc")
    for j in range(1, 4): s.e(f"v_mov_b32 v{ASEL+j}, v{ASEL}")
    s.e(f"v_mov_b32 v{CF+4}, 0\nv_mov_b32 v{CF+5}, 0")
    s.e(f"s_lshl_b32 s3, {sI}, 2\ns_add_u32 s3, s3, {sRT}\ns_mul_i32 {sAF}, s3, {144*1024}")
    s.e(f"s_mul_i32 {sKS}, {sG}, {14*1024}\ns_add_u32 {sKS}, {sKS}, {sAF}")
    s.e(f"s_lshl_b32 {sFL}, s3, 2\ns_lshr_b32 s4, {sG}, 1\ns_add_u32 {sFL}, {sFL}, s4\ns_mul_i32 {sFL}, {sFL}, 640")
    s.e(f"s_and_b32 s4, {sG}, 1\ns_lshl_b32 s4, s4, 3\ns_lshl_b32 s5, {sCH}, 2\ns_add_u32 s4, s4, s5\ns_add_u32 {sFL}, {sFL}, s4\ns_add_u32 {sFL}, {sFL}, {ACTFLAG_OFF}")
    s.e(f"s_lshl_b32 s3, {sRB}, 1\ns_add_u32 s3, s3, {sRT2}\ns_mul_i32 {sAF2}, s3, {144*1024}")
    s.e(f"s_lshl_b32 {sFL2}, s3, 2\ns_add_u32 {sFL2}, {sFL2}, {sKQ}\ns_mul_i32 {sFL2}, {sFL2}, 640\ns_add_u32 {sFL2}, {sFL2}, {ACTFLAG_OFF}")
    s.e(f"s_mul_i32 {sB2}, {sCH}, {448*1024}\ns_lshl_b32 s4, {sRT}, 14\ns_lshl_b32 s5, {sCB}, 7\ns_add_u32 s4, s4, s5\ns_add_u32 {sB2}, {sB2}, s4")
    s.e(f"s_lshl_b32 {sBo}, {sCH}, 17\ns_add_u32 {sBo}, {sBo}, s4")
    s.e(f"s_lshl_b32 s3, {sG}, 2\ns_add_u32 s3, s3, {sKQ}\ns_mul_i32 {sKVs}, s3, 2176\ns_add_u32 {sKVs}, {sKVs}, {KV_OFF}")
    s.e(f"s_lshl_b32 s3, {sG}, 3\ns_add_u32 s3, s3, {sW}\ns_lshl_b32 {sKVF}, s3, 11\ns_add_u32 {sKVF}, {sKVF}, {KVFLAG_OFF}")
    s.e(f"s_mul_i32 s3, {sKQ}, {28*1024}\ns_add_u32 {sA2y}, {sAF2}, s3")
    s.e(f"s_lshl_b32 s3, {sKQ}, 13\ns_add_u32 {sA2s}, {sAF2}, s3\ns_add_u32 {sA2s}, {sA2s}, {112*1024}")
    s.e(f"v_lshrrev_b32 {vT}, 1, {vP4}")

def unit_bases(s, typ):
    s.e(f"s_mul_i32 s3, {sW}, {16*3072}\ns_lshl_b32 s4, {sG}, 7\ns_add_u32 s3, s3, s4")
    s.e(f"s_mul_i32 s4, {sG}, 448\ns_and_b32 s5, {sG}, 1\ns_cmp_eq_u32 s5, 0")
    if typ == 'A':
        s.e(f"s_cselect_b32 s5, 0, 320\ns_add_u32 s4, s4, s5")
        s.e(f"s_add_u32 {sUA}, s3, 1024\ns_add_u32 {sUB}, s3, 2048")
        s.e(f"s_mul_i32 {sUC}, {sW}, {16*3584}\ns_add_u32 {sUC}, {sUC}, s4")
        s.e(f"s_lshl_b32 s5, {sCH}, 6\ns_add_u32 s92, s4, s5")
        return [f"buffer_load_ushort v{BI0}, {vT}, {sB1}, s92 offen"]
    s.e(f"s_cselect_b32 s5, 128, 64\ns_cselect_b32 {sUD}, 384, 0")
    s.e(f"s_add_u32 s5, s4, s5\ns_add_u32 s92, s4, {sUD}\ns_mov_b32 {sUC}, s3")
    s.e(f"s_mul_i32 {sUA}, {sW}, {16*3584}\ns_add_u32 {sUA}, {sUA}, s5\ns_add_u32 {sUB}, {sUA}, 128")
    s.e(f"s_mul_i32 {sUD}, {sRT}, {32*3584}\ns_add_u32 {sUD}, {sUD}, s92")
    s.e(f"s_lshl_b32 s3, {sCH}, 6\ns_add_u32 s93, s5, s3")
    return [f"buffer_load_ushort v{BI2}, {vT}, {sB1}, s92 offen", f"buffer_load_ushort v{BI0}, {vT}, {sB1}, s93 offen",
            f"buffer_load_ushort v{BI1}, {vT}, {sB1}, s93 offen offset:128"]

def start(s, ring, n0):
    ring.assign(s, upto=ring.upto0)
    pre = ["XL0", "XH0", n0 + "0", "XL1", "XH1", n0 + "1"]
    assert [ring.slot[x] for x in pre] == [0, 1, 4, 2, 3, 5]
    ring.q = [e for e in ring.q if e[0][0] not in pre]
    s.vm = [(d, (n0 + tg[1] if tg in ("W0", "W1") else tg)) for d, tg in s.vm]
def touch_all(s, which):
    specs = dict(x=(sX, 64, 4), q=(sWq, 48, 5), w1=(sW1, 56, 6), w2=(sW2, 56, 4), wo=(sWo, 16, 5))
    for nm in which:
        srd_, nl, wv = specs[nm]
        lab = label()
        s.e(f"s_cmp_lg_u32 {sW}, {wv}\ns_cbranch_scc1 {lab}")
        s.e(f"v_min_u32 v47, {nl-1}, v0\nv_lshlrev_b32 v47, 7, v47\ns_mul_i32 s5, s88, {nl*128}\ns_mov_b32 m0, {SCR + 15360}\ns_nop 0")
        s.raw(f"buffer_load_dword v47, {srd_}, s5 offen lds")
        s.e(f"{lab}:")
def late_loads(biasloads):
    def f(s):
        s.e(f"v_lshrrev_b32 {vT}, 1, {vP4}")
        for x in biasloads: s.e(x)
        s.e(f"s_lshl_b32 s3, {sG}, 11\ns_lshl_b32 s4, {sRT2}, 10\ns_add_u32 s3, s3, s4\ns_add_u32 m0, s4, {SCR_PHI}")
        s.e(f"buffer_load_dwordx4 {vA16}, {sPhi}, s3 offen lds", tag="phi")
    return f

MF = "v_mfma_f32_32x32x16_bf16"
def bar(s, ring, name, needs=(), rel=(), owner='all', lg0=False, upto=None, extra=(), maxn=99):
    if CFG.get('SB'): stamp("<" + name)(s)
    for n in needs: ring.need(s, n)
    if lg0: s.wait(lg=0)
    s.wait_dswrites()
    s.e("s_barrier")
    stamp(name)(s)
    s.marks[name] = 1
    for n in rel: ring.release(n)
    ring.free += list(extra)
    if owner == 'all':
        k = 'x' if name[0] == 'b' else ('a' if name[0] in 'ae' else 'p')
        if k in CFG['OWN'] and not (s.name[0] == 'B' and name in ('c3', 'd3', 'e1')): owner = 0
    ring.assign(s, owner, upto, maxn)
def B(ring, *a, **k): return lambda s: bar(s, ring, *a, **k)

class MSeg:
    def __init__(self, ring, u, ch, events=None, posts=None, xpass=False, dma=0):
        self.ring, self.u, self.ch, self.ev, self.posts, self.xp, self.dma = ring, u, ch, events or {}, posts or {}, xpass, dma
        self.nr = 0; self.hs = None
    def reads(self, s, t):
        u, ring = self.u, self.ring
        for e in self.ev.get(t, []): e(s)
        c, p = t // 8, t % 8
        if self.xp:
            for x in {0: (0, 1), 1: (2, 3, 4), 2: (5, 6, 7)}.get(p, ()):
                s.e(f"ds_read_b128 {R(XA+32*c+4*x,4)}, v{XR+x} offset:{(c&1)*32768}")
        it = f"{u['name']}{c}" if u['kind'] == 'w' else f"{u['name']}{c//2}"
        assert ring.log[it][1] is not None, f"{it} read before certified"
        sl = ring.slot[it]; buf = WB + 4 * (t % 4)
        if u['kind'] == 'h5' and self.hs != sl:
            if self.hs is None:
                s.e("v_bfe_u32 v116, v0, 2, 2\nv_lshrrev_b32 v117, 5, v0\nv_lshl_add_u32 v116, v117, 3, v116\nv_lshlrev_b32 v116, 6, v116\nv_bfe_u32 v117, v0, 4, 1\nv_lshl_add_u32 v116, v117, 5, v116\nv_and_b32 v117, 3, v0\nv_lshl_add_u32 v116, v117, 3, v116")
                for j in range(4): s.e(f"s_xor_b32 s3, {sRT}, {j}\ns_lshl_b32 s3, s3, 11\ns_add_u32 s3, s3, {sl*SLOT}\nv_add_u32 v{HR+j}, s3, v116")
            else:
                for j in range(4): s.e(f"v_add_u32 v{HR+j}, {((sl-self.hs)*SLOT) & 0xffffffff:#x}, v{HR+j}")
            self.hs = sl
        for k in range(2):
            if u['kind'] == 'w':
                w = 0 if sl <= 4 else 1
                r, off = f"v{VW+4*w+p//2}", (sl - 1 - 4 * w) * SLOT + (p & 1) * 2048 + k * 512
            else: r, off = f"v{HR+p//2}", (c % 2) * 8192 + (p & 1) * 1024 + k * 256
            s.e(f"ds_read_b64_tr_b16 {R(buf+2*k,2)}, {r} offset:{off}")
    def pre(self, s, n=None):
        n = CFG['PF'] if n is None else n
        while self.nr < n: self.reads(s, self.nr); self.nr += 1
    def run(self, s, nxt=None, F=None, budget=0):
        u = self.u; ch = self.ch
        credit = 0
        if CFG['PRIO'] and not self.xp: s.e("s_setprio 1")
        self.pre(s)
        for t in range(32):
            c, p = t // 8, t % 8
            buf = WB + 4 * (t % 4)
            cin = R(u['acc'], 16) if t > 0 else "0"
            a, b = (R(buf, 4), R(XA + 4 * t, 4)) if u['trans'] else (R(XA + 4 * t, 4), R(buf, 4))
            s.e(f"{MF} {R(u['acc'],16)}, {a}, {b}, {cin}")
            if p < 2 and not (CFG.get('NOCS') and t > 0): s.e(f"v_mfma_f32_16x16x32_bf16 {R(CSA,4)}, {R(ASEL,4)}, {R(buf,4)}, {R(CSA,4) if t > 0 else '0'}")
            if self.nr < 32: self.reads(s, self.nr); self.nr += 1
            elif nxt is not None: nxt.pre(s, t - 31 + CFG['PF'])
            if self.xp and t < 25 and CFG['PAR'] == 2:
                if t % 2 == ch or ('x' in CFG['OWN'] and ch == 0): self.ring.pump(s, 2)
            elif self.xp and t < 25: self.ring.pump(s, 1)
            elif self.xp: self.ring.pace(s, CFG['ST'])
            elif self.dma and CFG['PAR']:
                if 'p' in CFG['OWN']: self.ring.pace(s, self.dma, 1)
                elif t % 2 == ch: self.ring.pace(s, 2 * self.dma, 1)
            elif self.dma: self.ring.pace(s, self.dma)
            if t == 27:
                s.e(f"s_lshl_b32 s3, {sRT}, 2\ns_add_u32 s3, s3, {SCR_CS + u['csi']*2048 + ch*1024}\nv_add_u32 v{CSA+1}, s3, {vA16}\nds_write_b32 v{CSA+1}, v{CSA}")
            if self.xp and p in (1, 3):
                for x in ((ch, ch + 2) if p == 1 else (ch + 4, ch + 6)):
                    for j in range(4):
                        r = XA + 32 * c + 4 * x + j
                        first = (c == 0 and p == 1 and x == ch and j < 2)
                        s.e(f"v_dot2_f32_bf16 v{STA+(j&1)}, v{r}, {sC11}, {'0' if first else f'v{STA+(j&1)}'}")
                        s.e(f"v_dot2_f32_bf16 v{STA+2+(j&1)}, v{r}, v{r}, {'0' if first else f'v{STA+2+(j&1)}'}")
                if t == 27:
                    q = f"v{STA+2}"
                    s.e(f"v_add_f32 v{STA}, v{STA}, v{STA+1}\nv_add_f32 v{STA+1}, v{STA+2}, v{STA+3}\nv_lshrrev_b32 {q}, 5, v0\nv_lshlrev_b32 {q}, 3, {q}\n"
                        f"v_lshl_add_u32 {q}, {vP4}, 3, {q}\ns_lshl_b32 s3, {sRT}, 10\ns_add_u32 s3, s3, {SCR_ST + ch*16}\nv_add_u32 {q}, s3, {q}\nds_write_b64 {q}, {R(STA,2)}")
            for e in self.posts.get(t, []): e(s)
            if F is not None: credit = fill(s, F, (budget(t) if callable(budget) else budget) + min(credit, CFG['CRED']))
        if CFG['PRIO'] and not self.xp: s.e("s_setprio 0")

def fill(s, F, budget, force=False):
    while budget > 0 and F:
        f = F[0]
        if isinstance(f, tuple) and f[0] == 'wait':
            if f[1] in s.marks: F.pop(0); continue
            return 0
        if isinstance(f, tuple) and f[0] == 'nextbar': f = F[0] = ('barge', s.nbar + 1)
        if isinstance(f, tuple) and f[0] == 'barge':
            if s.nbar >= f[1]: F.pop(0); continue
            return 0
        if isinstance(f, tuple) and f[0] in ('hold', 'tilt'):
            if budget <= 1: F.pop(0); continue
            return 0
        if isinstance(f, tuple) and f[0] == 'gap':
            f = F[0] = ('until', s.n_issued + f[1])
        if isinstance(f, tuple) and f[0] == 'until':
            if s.n_issued >= f[1] or force: F.pop(0); continue
            return 0
        if callable(f):
            F.pop(0); n0 = s.n_issued; f(s); budget -= max(1, (s.n_issued - n0) * 0.5); continue
        txt, tag = (f if isinstance(f, tuple) else (f, None))
        need, age = s.cost(txt)
        if not force and (need > 1 or (age is not None and age < CFG['AGE'])): return budget
        F.pop(0); s.e(txt, tag)
        k = I(txt).kind
        budget -= 2 if k == 'trans' else (0.5 if k in ('salu', 'ds', 'vm') else 1)
    return 0
def until(s, ring, F, name, every=None):
    n = 0
    while name not in s.marks:
        assert F, name
        l = len(F); fill(s, F, 1, force=True)
        assert len(F) < l, ("stuck", F[0], name, s.name)
        n += 1
        ring.pace(s, 9)
    return n
def vrun(s, ring, F, slots, every=None, flush=True):
    every = every or CFG['VD']
    while slots > 0 and F:
        l = len(F); fill(s, F, min(every, slots), force=True); slots -= every
        ring.pace(s, 9 * every)
        if len(F) == l: break
    if flush: ring.pump(s, 99)

def vseg(s, ring, F, every=None, flush=True):
    every = every or CFG['VD']
    n = 0
    for f in F:
        if isinstance(f, tuple) and f[0] in ('after', 'skip', 'wait', 'gap', 'until'): continue
        drain(s, [f]); n += 1
        ring.pace(s, 10)
    if flush: ring.pump(s, 99)
def split(F, frac, item):
    k = int(len(F) * frac)
    return F[:k] + [item] + F[k:]

def pass0(s, ring, u, ch, bl, nextname, nextneed):
    ev = {}
    for c in range(4):
        def b0(s, c=c):
            if c == 3: s.wait_tag("phi")
            bar(s, ring, f"b0{c}", [f"{u['name']}{c}", f"XL{c}", f"XH{c}"], [f"{u['name']}{c-1}"] if c else [], lg0=True, upto=nextname[0] + str(CFG['UP'][2 * c]))
            if c == 1:
                lab = label()
                s.e(f"s_cmp_ge_u32 {sBID}, 32\ns_cbranch_scc1 {lab}\ns_cmp_lg_u32 {sW}, 0\ns_cbranch_scc1 {lab}\ns_lshl_b32 s3, {sBID}, 2")
                s.raw(f"buffer_store_dword {vOne}, {vFO}, {sDbg}, s3 offen offset:128 sc1")
                s.e(f"{lab}:")
        def bx(s, c=c):
            s.wait_regs([f"v{r}" for r in range(XA + 32 * c, XA + 32 * c + 32)])
            bar(s, ring, f"bx{c}", nextneed if c == 3 else [], [f"XL{c}", f"XH{c}"], upto=(nextname[0] + str(CFG['UP'][2 * c + 1]) if c < 3 else None))
        ev[8 * c] = [b0]; ev[8 * c + 4] = [bx]
    return MSeg(ring, u, ch, ev, {6: [late_loads(bl)], 31: [lambda s: poll_issue(s, sDbg, "0", imm=128)], CFG['TBT']: [lambda s: touchB(s)], CFG['TWT']: [lambda s: touchW(s)]}, xpass=True, dma=1)

def stats_fin(T):
    F = [blk(f"s_lshl_b32 s4, {sRT}, 10\ns_add_u32 s4, s4, {SCR_ST}\nv_lshlrev_b32 {vT}, 3, {vP4}\nv_add_u32 {vT}, s4, {vT}"),
         f"ds_read_b128 {R(T,4)}, {vT}", f"ds_read_b128 {R(T+4,4)}, {vT} offset:16",
         blk(f"s_lshl_b32 s4, {sRT}, 7\ns_add_u32 s4, s4, {SCR_RS}\nv_add_u32 {vT}, s4, {vP4}\nv_cmp_gt_u32 s[94:95], 32, v0")]
    a, b = f"v{T}", f"v{T+1}"
    F += [f"v_add_f32 {a}, {a}, v{T+2}", f"v_add_f32 {b}, {b}, v{T+3}", f"v_add_f32 v{T+4}, v{T+4}, v{T+6}", f"v_add_f32 v{T+5}, v{T+5}, v{T+7}",
          f"v_add_f32 {a}, {a}, v{T+4}", f"v_add_f32 {b}, {b}, v{T+5}", f"v_mul_f32 {a}, 0xbb000000, {a}", f"v_mul_f32 {b}, 0x3b000000, {b}",
          f"v_fma_f32 {b}, -{a}, {a}, {b}", f"v_max_f32 {b}, 0, {b}", f"v_cvt_pk_bf16_f32 {b}, {b}, {b}", f"v_lshlrev_b32 {b}, 16, {b}",
          f"v_add_f32 {b}, 0x3727c5ac, {b}", f"v_cvt_pk_bf16_f32 {b}, {b}, {b}", f"v_lshlrev_b32 {b}, 16, {b}", f"v_sqrt_f32 {b}, {b}",
          f"v_cvt_pk_bf16_f32 {b}, {b}, {a}", f"v_lshlrev_b32 {vRS}, 16, {b}", f"v_rcp_f32 {vRS}, {vRS}",
          f"v_cndmask_b32 v{CF+2}, 0, {b}, s[94:95]", f"v_lshrrev_b32 v{CF+3}, 16, v{CF+2}",
          f"v_mul_f32 {vRSL}, 0x3fb8aa3b, {vRS}", f"v_mul_f32 {vM2}, -2.0, {vRS}", f"ds_write_b32 {vT}, {vRS}"]
    return F
def correct(u, ch, T, bias=None):
    F = [f"v_lshlrev_b32 v{T}, 2, {vP4}", f"v_add_u32 v{T}, {SCR_CS + u['csi']*2048 + ch*1024}, v{T}", f"ds_read_b128 {R(T,4)}, v{T}",
         f"v_add_f32 v{T}, v{T}, v{T+1}", f"v_add_f32 v{T+2}, v{T+2}, v{T+3}", f"v_add_f32 v{T}, v{T}, v{T+2}",
         f"v_cvt_pk_bf16_f32 v{T+1}, v{T}, v{T}", f"v_and_b32 v{CF}, 0xffff0000, v{T+1}", f"v_sub_f32 v{T}, v{T}, v{CF}", f"v_cvt_pk_bf16_f32 v{CF+1}, v{T}, v{T}"]
    if bias is not None: F.append(f"v_or_b32 v{CF}, v{CF}, v{bias}")
    a, b = (R(CF, 4), R(CF + 2, 4)) if u['trans'] else (R(CF + 2, 4), R(CF, 4))
    F.append(f"{MF} {R(u['acc'],16)}, {a}, {b}, {R(u['acc'],16)}")
    return F

def mark(name): return lambda s: s.marks.__setitem__(name, 1)
YA = [192, 208]; SA = [32, 48]
vB0, vB1 = "v5", "v24"
XW = ["v6", "v7", "v8"]; XRD = ["v11", "v12", "v13"]
LB = 128
NR = 8
def breg(t): return XA + 8 * t if t < NR else LB + 8 * (t % 4)
def bnm(ch, c): return f"B{'ab'[ch]}{c}"
def bread(ring, ch, t):
    def f(s):
        nm = bnm(ch, t // 4)
        assert ring.log[nm][1] is not None, f"{nm} read before certified"
        sl = ring.slot[nm]
        if ring.bsl != sl:
            d = ((sl - ring.bsl) * SLOT) & 0xffffffff
            s.e(f"v_add_u32 {vB0}, {d:#x}, {vB0}\nv_add_u32 {vB1}, {d:#x}, {vB1}")
            ring.bsl = sl
        for ct, r in enumerate((vB0, vB1)):
            for k in range(2):
                s.e(f"ds_read_b64_tr_b16 {R(breg(t) + 4*ct + 2*k, 2)}, {r} offset:{(t%4)*2048 + k*1024}")
    return f
def pull(ring, ch, c): return [bread(ring, ch, 4 * c + k) for k in range(4)]
def p2_setup(ring):
    def chk(s):
        assert not any(x[0][0] == 'F' for x in ring.items) and not any(x[0][0][0] == 'F' for x in ring.q)
        ring.bsl = 0
    return [chk, f"v_bfe_u32 {vB0}, v0, 2, 2", f"v_lshrrev_b32 {vB1}, 5, v0", f"v_lshl_add_u32 {vB0}, {vB1}, 2, {vB0}", f"v_lshlrev_b32 {vB0}, 7, {vB0}",
     f"v_bfe_u32 {vB1}, v0, 3, 1", f"v_lshl_add_u32 {vB0}, {vB1}, 6, {vB0}", f"v_bfe_u32 {vB1}, v0, 4, 1", f"v_lshl_add_u32 {vB0}, {vB1}, 5, {vB0}",
     f"v_and_b32 {vB1}, 3, v0", f"v_lshl_add_u32 {vB0}, {vB1}, 3, {vB0}", blk(f"s_lshl_b32 s3, {sKQ}, 5\nv_xor_b32 {vB0}, s3, {vB0}\ns_and_b32 s3, {sKQ}, 1\ns_lshl_b32 s3, s3, 13\nv_add_u32 {vB0}, s3, {vB0}"), f"v_xor_b32 {vB1}, 64, {vB0}"]

def xaddr(slots):
    F = []
    for j in range(1, 4):
        F.append(blk(f"s_xor_b32 s4, {sKQ}, {j}\ns_lshl_b32 s4, s4, 12\ns_add_u32 s4, s4, {slots[j-1]*SLOT}\nv_add_u32 {XW[j-1]}, s4, v9"))
    return F
def xwrite(acc2):
    F = []
    for j in (2, 3, 1):
        src = acc2[j >> 1] + 8 * (j & 1)
        F += [f"ds_write_b128 {XW[j-1]}, {R(src+4*h,4)} offset:{h*1024}" for h in range(2)]
    return F
def xread(slots, own, tmp):
    F = []
    for i in range(3):
        for h in range(2):
            r, off = ldsaddr(XRD, slots[i] * SLOT + h * 1024)
            F.append(f"ds_read_b128 {R(tmp+8*i+4*h,4)}, {r} offset:{off}")
    G = []
    for i in range(3):
        for j in range(8): G.append(f"v_add_f32 v{own+j}, v{own+j}, v{tmp+8*i+j}")
    return F, G
def fin_setup():
    return [blk(f"s_lshl_b32 {sUC}, {sRB}, 16\ns_lshl_b32 s4, {sRT2}, 15\ns_add_u32 {sUC}, {sUC}, s4\ns_lshl_b32 s4, {sCB}, 7\ns_add_u32 {sUC}, {sUC}, s4\ns_lshl_b32 s4, {sKQ}, 5\ns_add_u32 {sUC}, {sUC}, s4"),
            f"v_lshlrev_b32 v20, 8, {vP4}", "v_lshrrev_b32 v21, 5, v0", "v_lshl_add_u32 v20, v21, 4, v20",
            f"buffer_load_dwordx4 v[16:19], v20, {sX}, {sUC} offen",
            blk(f"s_lshl_b32 s4, {sW}, 11\nv_add_u32 v11, s4, {vA16}"), "v_add_u32 v12, 0x10000, v11", "v_add_u32 v13, 0x20000, v11"]

def aphase(s, ring, ch, F, early, late, toff):
    G = CFG['GT']
    groups = {0: (0xf, ['f1'], 0, 0), 8: (0xf, ['f2'], G[3], 128), 16: (0x5, ['f3'], G[0], 384), 20: (0xf, ['f3'], G[1], 256), 28: (0xf, ['fo'], G[2], 512)}
    pr = lambda c: [bnm(0, c), bnm(1, c)]
    bars = {8: (pr(2) + pr(3), ring.rel8), 12: ([], pr(2)), 16: (pr(4) + pr(5), pr(3)), 20: ([], pr(4)), 24: (pr(6) + pr(7), pr(5)), 30: (pr(8), pr(6))}
    if CFG['FB4']: bars = {8: (pr(2) + pr(3), ring.rel8), 16: (pr(4) + pr(5), pr(2) + pr(3)), 24: (pr(6) + pr(7), pr(4) + pr(5)), 30: (pr(8), pr(6))}
    cert = {n: k for k, v in bars.items() for n in v[0]}
    pool = list(range(224, 256, 4)) + list(early); restricted = set(early)
    late = dict(late)
    for v in late.values(): restricted |= set(v)
    areg = {}; arr = {}
    st = dict(clk=0, pipe=0, nxt=0, polled={0: 0}, checked=set(), tch=set())
    LT, LAT, QD = CFG['LT'], CFG['LAT'], CFG['QD']
    OWNY = YA[0]; OWNS = SA[0]; XT = 64
    PB = CFG['PB2']
    bars[32] = bars.pop(30)
    YB = 33 - PB
    cert = {n: k for k, v in bars.items() for n in v[0]}
    W = []
    PR = {0: vPoll, 8: vPoll, 16: 'v2', 20: 'v3', 28: 'v23'}
    PS = dict(zip((16, 20, 28), CFG['PS' + s.name[0]]))
    def issue_cost():
        st['pipe'] = max(st['pipe'], st['clk']) + (LT if 'v0' not in s.marks else CFG['LT2']); st['clk'] += 16
        return st['pipe'] + LAT
    def try_load(step, must=None):
        for m in list(late):
            if m in s.marks: pool.extend(late.pop(m))
        t = st['nxt']
        for g in sorted(groups):
            if g >= t and g not in st['polled']:
                if (g != 8 or 0 in st['checked']) and ((st['clk'] >= groups[g][2] + toff - CFG['PLT'] if g == 8 else (step >= PS[g][0] and (PS[g][0] > 0 or len(F) < CFG['PVL']))) or must == g):
                    poll_issue(s, sWs, sFL2, PR[g], imm=groups[g][3]); st['polled'][g] = max(st['pipe'], st['clk']) + LAT; st['clk'] += 16
                    log.append(f"pl{g}@{step}")
                    return True
        if must is None and st['pipe'] - st['clk'] > (QD if 'v0' not in s.marks else CFG['QD2']): return False
        bneed = cert.get(ring.q[0][0][0], 0) - CFG['BL'] if ring.q else 99
        aok = False
        if t < 36:
            ok = [r for r in pool if not (r in restricted and t > 26)]
            aok = bool(ok)
            if t in groups and t not in st['checked']:
                ready = t in st['polled'] and ((st['clk'] >= st['polled'][t] and st['clk'] >= groups[t][2] + toff) if t <= 8 else step >= PS[t][1]) and all(r in s.marks for r in groups[t][1]) and (t <= 8 or 'v0' in s.marks)
                aok = aok and (ready or must == t)
        if aok and (t <= bneed or must is not None):
            if t in groups and t not in st['checked']:
                for r in groups[t][1]:
                    n = until(s, ring, F, r)
                    if n: print("   forced", n, "fillers for", r, "in", s.name)
                poll_check(s, sWs, sFL2, groups[t][0], PR[t], imm=groups[t][3]); st['checked'].add(t); log.append(f"chk{t}@{step}/{st['clk']}")
            areg[t] = ok[0]; pool.remove(ok[0])
            base, off = (sA2y, ORDER[t] * 1024) if t < 28 else (sA2s, (t - 28) * 1024)
            s.e(f"s_add_u32 {sSoW}, {base}, {off & ~4095}\nbuffer_load_dwordx4 {R(areg[t],4)}, {vA16}, {sWs}, {sSoW} offen offset:{off & 4095} sc1")
            arr[t] = issue_cost(); st['nxt'] += 1; log.append(f"A{t}@{step}")
            return True
        if ring.q and must is None:
            half = ring.log[ring.q[0][0][0]][2] != 'all'
            ring.pump(s, 1); issue_cost()
            if half: st['pipe'] -= CFG['LT2'] // 2
            return True
        return False
    log = []
    V = []
    for t in range(36):
        vdone = 0
        while True:
            if try_load(t): continue
            if CFG['MIX'] and t in arr and st['clk'] >= arr[t] + CFG['MG'] and vdone >= CFG['MIX'] and (t < 4 or 'p1' in s.marks) and (t < 7 or 'vbar' in s.marks): break
            if F and isinstance(F[0], tuple) and F[0][0] == 'hold':
                F[0] = ('tilt', t + F[0][1])
            if F and isinstance(F[0], tuple) and F[0][0] == 'tilt' and t >= F[0][1]: F.pop(0)
            if F and not (t in arr and st['clk'] >= arr[t] and not pool and st['nxt'] < 36):
                l = len(F); n0 = s.n_issued
                fill(s, F, 6, force=True)
                st['clk'] += (s.n_issued - n0) * CFG['VC']; vdone += s.n_issued - n0
                if len(F) < l: continue
            if t not in arr:
                assert try_load(t, must=st['nxt']); continue
            if st['clk'] < arr[t] and (st['nxt'] < 36 or ring.q):
                nclk = min(arr[t], st['clk'] + 32)
                if nclk < arr[t]:
                    st['clk'] = nclk
                    if try_load(t): continue
                    continue
            break
        st['clk'] = max(st['clk'], arr[t])
        if t == 4: until(s, ring, F, 'p1')
        for ct in ((1, 0) if t in (27, 35) else (0, 1)):
            acc = (YA if t < 28 else SA)[ct]
            cin = "0" if t in (0, 28) else R(acc, 16)
            s.e(f"{MF} {R(acc,16)}, {R(breg(t)+4*ct,4)}, {R(areg[t],4)}, {cin}")
        st['clk'] += 128 if not (F and CFG['MIX']) else 48
        pool.append(areg[t])
        if 4 <= t <= 7: pool += [XA + 8 * t, XA + 8 * t + 4]
        rs_ = t + PB
        if rs_ in bars:
            if rs_ == 8:
                n = until(s, ring, F, 'vbar')
                if n: print("   forced", n, "fillers before a8 in", s.name)
            bar(s, ring, f"a{rs_}", bars[rs_][0], bars[rs_][1], lg0=True); log.append(f"|a{rs_}/{st['clk']}")
        if NR <= rs_ < 36: bread(ring, ch, rs_)(s)
        if t == 26: assert not F, F
        if t == 25:
            ys = [ring.free.pop(0) for _ in range(3)]
            drain(s, [blk(f"s_lshl_b32 s4, {sRT2}, 11\nv_add_u32 v9, s4, {vA16}")] + xaddr(ys))
        if t == 27:
            stamp('yend')(s)
            drain(s, ["v_permlane32_swap_b32 v16, v18", "v_permlane32_swap_b32 v17, v19"])
            for j in range(4): drain(s, [f"v_lshlrev_b32 v{XT+24+2*j}, 16, v{16+j}", f"v_and_b32 v{XT+25+2*j}, 0xffff0000, v{16+j}"])
            W = xwrite(YA)
        if 27 <= t < YB - 1:
            k = -(-len(W) // (YB - 1 - t))
            drain(s, W[:k]); W = W[k:]
        if t == YB - 1:
            ss = [ring.free.pop(0) for _ in range(2)] + [9]
            rdl, V = xread(ys, OWNY, XT)
            drain(s, rdl + xaddr(ss))
            for j in range(8): V.append(f"v_mul_f32 v{XT+j}, 0xbfb8aa3b, v{OWNY+j}")
            for j in range(8): V.append(f"v_exp_f32 v{XT+j}, v{XT+j}")
            for j in range(8): V.append(f"v_add_f32 v{XT+j}, 1.0, v{XT+j}")
            for j in range(8): V.append(f"v_rcp_f32 v{XT+j}, v{XT+j}")
            for j in range(8): V.append(f"v_mul_f32 v{OWNY+j}, v{OWNY+j}, v{XT+j}")
        if YB <= t < 35:
            drain(s, V[:CFG['TV']]); V = V[CFG['TV']:]
    print("   sched", s.name, " ".join(log), "end", st['clk'])
    stamp('send')(s)
    W = xwrite(SA)
    drain(s, V[:10]); V = V[10:]
    for w in W:
        drain(s, [w] + V[:6]); V = V[6:]
    drain(s, V)
    s.wait(lg=0); s.e("s_barrier")
    rdl, V = xread(ss, OWNS, XT)
    if CFG['PKT']:
        V = [pk2("add", XT + j, XT + j, XT + 8 + j) for j in range(0, 8, 2)] + [pk2("add", OWNS + j, OWNS + j, XT + 16 + j) for j in range(0, 8, 2)] + [pk2("add", OWNS + j, OWNS + j, XT + j) for j in range(0, 8, 2)]
    drain(s, rdl + V)
    for j in range(8): s.e(f"v_fma_f32 v{OWNS+j}, v{OWNS+j}, v{OWNY+j}, v{XT+24+j}")
    for j in range(4): s.e(f"v_cvt_pk_bf16_f32 v{16+j}, v{OWNS+2*j}, v{OWNS+2*j+1}")
    s.e("v_permlane32_swap_b32 v16, v18\nv_permlane32_swap_b32 v17, v19")
    s.e(f"buffer_store_dwordx4 v[16:19], v20, {sOut}, {sUC} offen")
    stamp('st')(s)
    if PROFILE:
        s.raw("s_waitcnt vmcnt(0) lgkmcnt(0)")
        stamp("end")(s)
        s.raw("s_waitcnt lgkmcnt(0)")
        n = len(s.snames)
        for i in (n - 2, n - 1): s.raw(f"v_writelane_b32 v29, s{STAMP0+2*(i%4)}, {i}")
        s.e(f"v_subrev_u32 v29, s96, v29\nv_lshlrev_b32 v16, 2, v0")
        s.raw("s_memrealtime s[84:85]\ns_waitcnt lgkmcnt(0)\nv_writelane_b32 v29, s58, 62\nv_writelane_b32 v29, s84, 63")
        s.e(f"s_lshl_b32 s3, {sBID}, 11\ns_lshl_b32 s4, {sW}, 8\ns_add_u32 s3, s3, s4\ns_add_u32 s3, s3, {PROF_OFF}")
        s.e(f"buffer_store_dword v29, v16, {sWs}, s3 offen")
        if CFG.get('DBG') is not None:
            lab = label()
            s.e(f"s_cmp_lg_u32 {sBID}, {CFG['DBG']}\ns_cbranch_scc1 {lab}\ns_cmp_lg_u32 {sW}, 0\ns_cbranch_scc1 {lab}")
            idx = list(range(n - 1, -1, -3))[:16][::-1]
            for k, i in enumerate(idx):
                s.raw(f"v_readlane_b32 s4, v29, {i}\ns_nop 1\nv_mov_b32 v17, s4\nbuffer_store_dword v17, {vFO}, {sDbg}, 0 offen offset:{4*k}\ns_nop 1")
            s.e(f"{lab}:")
            if s.name in ('A0', 'B0'): print("DBG", s.name, [s.snames[i] for i in idx])
        open(f"snames_{s.name}.txt", "w").write(" ".join(s.snames))
    s.e("s_endpgm")
    s.slots = (dict(ring.slot), ys, ss)
    print("   ring", s.name, " ".join(f"{k}:{v[0]}>{v[1]}" for k, v in ring.log.items()))

SCR_DUM = SCR + 15360
def touchB(s):
    if not CFG['TB']: return
    s.e(f"s_lshl_b32 s4, {sBID}, 3\ns_add_u32 s4, s4, {sW}\ns_mul_i32 s5, s4, 896\ns_lshl_b32 s4, s4, 8\ns_mov_b32 m0, {SCR_DUM}")
    s.e(f"v_min_u32 {vT}, 6, v0\nv_lshlrev_b32 {vT}, 7, {vT}")
    s.e(f"buffer_load_dword {vT}, {sW2}, s5 offen lds")
    s.e(f"v_min_u32 {vT}, 1, v0\nv_lshlrev_b32 {vT}, 7, {vT}")
    s.e(f"buffer_load_dword {vT}, {sWo}, s4 offen lds")
def touchW(s):
    if not CFG['TW']: return
    s.e(f"s_lshl_b32 s4, {sBID}, 3\ns_add_u32 s4, s4, {sW}\ns_mul_i32 s5, s4, 896\ns_mul_i32 s4, s4, 768\ns_mov_b32 m0, {SCR_DUM}")
    s.e(f"v_min_u32 {vT}, 6, v0\nv_lshlrev_b32 {vT}, 7, {vT}")
    s.e(f"buffer_load_dword {vT}, {sW1}, s5 offen lds")
    s.e(f"v_min_u32 {vT}, 5, v0\nv_lshlrev_b32 {vT}, 7, {vT}")
    s.e(f"buffer_load_dword {vT}, {sWq}, s4 offen lds")
def touch2(c, hf=None):
    def f(s):
        if c == 0 and not hf:
            if hf is None: s.e(f"s_lshl_b32 s4, s87, 3")
            else: s.e(f"s_lshr_b32 s4, s87, 4\ns_lshl_b32 s4, s4, 3\ns_and_b32 s5, s87, 7\ns_add_u32 s4, s4, s5\ns_lshl_b32 s4, s4, 3")
            s.e(f"s_add_u32 s4, s4, {sW}\ns_lshr_b32 s5, s4, 6\ns_and_b32 s4, s4, 63\ns_lshl_b32 s4, s4, 10\n"
                f"s_mul_i32 s90, s5, {448*1024}\ns_add_u32 s90, s90, s4\ns_lshl_b32 s91, s5, 17\ns_add_u32 s91, s91, s4")
        s.e(f"s_mov_b32 m0, {SCR_DUM}")
        h = hf or 0
        if c < 7: s.e(f"s_add_u32 {sSoW}, s90, {ORDER[4*c]*16384 + h*896*1024}\nbuffer_load_dwordx4 {vA16}, {sW2}, {sSoW} offen lds")
        else: s.e(f"s_add_u32 {sSoW}, s91, {(c-7)*65536 + h*256*1024}\nbuffer_load_dwordx4 {vA16}, {sWo}, {sSoW} offen lds")
    return f
def touch3(c, ch):
    def f(s):
        wv = CFG['T3W'][c]
        if wv // 4 != ch: return
        lab = label()
        s.e(f"s_cmp_lg_u32 {sW}, {wv}\ns_cbranch_scc1 {lab}")
        mul = 448 * 1024 if c < 7 else 128 * 1024
        off = ORDER[4 * c] * 16384 if c < 7 else (c - 7) * 65536
        s.e(f"s_lshr_b32 s90, s87, 3\ns_mul_i32 s90, s90, {mul}\ns_and_b32 s91, s87, 7\ns_lshl_b32 s91, s91, 13\ns_add_u32 s90, s90, s91\ns_add_u32 s90, s90, {off}\ns_mov_b32 m0, {SCR_DUM}")
        s.e(f"v_lshlrev_b32 v{CSA+3}, 7, v0")
        s.raw(f"buffer_load_dword v{CSA+3}, {sW2 if c < 7 else sWo}, s90 offen lds")
        s.e(f"{lab}:")
    return f
def add_touch(segs, typ):
    if CFG['T2'] == 3:
        for c, at in enumerate(CFG['T2AT']): segs[at // 32].posts.setdefault(at % 32, []).append(touch3(c, segs[0].ch))
    for c, at in enumerate(CFG['T2AT']):
        if CFG['T2'] == 1: segs[at // 32].posts.setdefault(at % 32, []).append(touch2(c))
        if CFG['T2'] == 2 and typ == 'A':
            segs[at // 32].posts.setdefault(at % 32, []).append(touch2(c, 0))
            segs[(at + 2) // 32].posts.setdefault((at + 2) % 32, []).append(touch2(c, 1))

def touchA(t0, n, mask, T, T2, vp=vPoll):
    def f(s):
        if not CFG['TA']: return
        lab = label()
        s.e(f"v_min_u32 {T}, {n-1}, v0")
        if t0 < 28 and n > 4:
            d = ORDER[t0 + 4] - ORDER[t0] - 4
            s.e(f"v_lshrrev_b32 {T2}, 2, {T}\nv_mul_u32_u24 {T2}, {d}, {T2}\nv_add_u32 {T}, {T}, {T2}")
        off = ORDER[t0] * 1024 if t0 < 28 else 0
        s.e(f"v_lshlrev_b32 {T}, 10, {T}\ns_lshl_b32 {sSoW}, {sCB}, 7\ns_add_u32 {sSoW}, {sSoW}, {sA2y if t0 < 28 else sA2s}\ns_add_u32 {sSoW}, {sSoW}, {off}\ns_mov_b32 m0, {SCR_DUM}")
        s.e(f"v_cmp_ne_u32 vcc, 0, {vp}\ns_andn2_b32 {sT0}, {mask:#x}, vcc_lo\ns_cbranch_scc1 {lab}")
        s.raw(f"buffer_load_dword {T}, {sWs}, {sSoW} offen sc1 lds")
        s.e(f"{lab}:")
    return f

def ilv(st, co):
    out = st[:3] + co[:3] + [st[3]]
    a, b = st[4:], co[3:-1]
    while a or b:
        if a: out.append(a.pop(0))
        if a and len(a) > 2 * len(b): out.append(a.pop(0))
        if b: out.append(b.pop(0))
    return out + co[-1:]
def p0_items(a, b):
    it = []
    for c in range(4): it += x_items(c) + [a[c]]
    return it + b
def packin(acc): return [f"v_cvt_pk_bf16_f32 v{acc+j}, v{acc+2*j}, v{acc+2*j+1}" for j in range(8)]
def N(n, lo, hi): return [f"{n}{c}" for c in range(lo, hi)]
initchk = lambda s: poll_check(s, sDbg, "0", 0xffffffff, imm=128)
pollA = lambda s: poll_issue(s, sWs, sFL2)

def stream_A(s0, ch):
    CB, DB = CFG['CB'], CFG['DB']
    s = s0.fork(f"A{ch}"); s.e(f"L_typeA{ch}:")
    bl = BIASL['A']
    items = p0_items(w_items("K", sWq, vDq, sUA, 3072), w_items("V", sWq, vDq, sUB, 3072)) + w_items("H", sW1, vD1, sUC, 3584) + b_items(0)
    ring = Ring(items, range(9), ch); ring.hold = ('XL3', 'XH3'); ring.upto0 = "V3"
    start(s, ring, 'K')
    s.e(f"s_lshl_b32 {sSCRW}, {sW}, 12\ns_add_u32 {sSCRW}, {sSCRW}, {2*SLOT}")
    s.marks.update(f1=1, f2=1, fo=1)
    uK = dict(name="K", acc=ACC_A, trans=True, kind='w', csi=0)
    uV = dict(name="V", acc=ACC_B, trans=False, kind='w', csi=1)
    uH = dict(name="H", acc=ACC_C, trans=True, kind='w', csi=0)
    F = [('wait', 'c1')] + ilv(stats_fin(PT), correct(uK, ch, PT + 8))
    F += ["v_lshrrev_b32 v26, 5, v0", "v_lshlrev_b32 v26, 1, v26", "v_bfe_u32 v25, v0, 1, 2", "v_xor_b32 v26, v25, v26", f"v_lshlrev_b32 v25, 4, {vP4}", "v_lshl_add_u32 v25, v26, 4, v25",
          f"v_add_u32 v25, {sSCRW}, v25", "v_xor_b32 v24, 16, v25", initchk]
    F += packin(ACC_A)
    F += [f"{MF} {R(PT,16)}, {R(PHI,4)}, {R(ACC_A,4)}, 0", f"{MF} {R(ACC_C,16)}, {R(PHI+4,4)}, {R(ACC_A+4,4)}, 0", ('gap', 12)]
    for h, P in enumerate((PT, ACC_C)):
        if h == 1 and CFG['PKA']:
            sm = softmax_pk(P, ACC_A + 8, "v26", vT, PHI); F += sm[:9] + [('wait', 'c2')] + sm[9:]
        else: F += softmax(P, ACC_A + 8, "v26", vT)
        F += [f"ds_write_b128 v25, {R(ACC_A+8,4)} offset:{2048*h}", f"ds_write_b128 v24, {R(ACC_A+12,4)} offset:{2048*h}"]
    F += [('wait', 'c2')]
    F += ["v_lshrrev_b32 v26, 5, v0", "v_lshlrev_b32 v26, 4, v26", blk(f"s_lshl_b32 s4, {sRT}, 7\ns_add_u32 s4, s4, {SCR_RS}\nv_add_u32 {vT}, s4, v26")]
    for q in range(4): F.append(f"ds_read_b128 {R(PT+4*q,4)}, {vT} offset:{32*q}")
    F += ["v_bfe_u32 v25, v0, 2, 2", "v_lshlrev_b32 v25, 6, v25", "v_lshl_add_u32 v25, v26, 4, v25", f"v_bfe_u32 {vT}, v0, 4, 1", f"v_cmp_eq_u32 s[94:95], 1, {vT}",
          "v_lshrrev_b32 v24, 5, v0", f"v_xor_b32 {vT}, v24, {vT}", f"v_lshl_add_u32 v25, {vT}, 5, v25",
          "v_lshrrev_b32 v24, 2, v0", "v_xor_b32 v24, v24, v0", "v_bfe_u32 v24, v24, 1, 1", "v_lshl_add_u32 v25, v24, 4, v25",
          f"v_and_b32 {vT}, 1, v0", f"v_lshl_add_u32 v25, {vT}, 3, v25", f"v_add_u32 v25, {sSCRW}, v25", f"v_mov_b32 {vT}, {sC11}"]
    for t in range(2):
        for rd in range(2): F.append(f"ds_read_b64_tr_b16 {R(PHI+4*t+2*rd,2)}, v25 offset:{2048 + t*1024 + rd*512}")
    F += [pk2("mul", ACC_B + r, ACC_B + r, PT + r) for r in range(0, 16, 2)] if CFG['PKA'] else [f"v_mul_f32 v{ACC_B+r}, v{ACC_B+r}, v{PT+r}" for r in range(16)]
    F += packin(ACC_B)
    for t in range(2):
        for rd in range(2): F.append(f"ds_read_b64_tr_b16 {R(ACC_B+8+4*t+2*rd,2)}, v25 offset:{t*1024 + rd*512}")
    for j in range(8): F.append(f"v_cndmask_b32 v{ACC_A+8+j}, {vT}, v{ACC_B+j}, s[94:95]")
    for j in range(8): F.append(f"v_cndmask_b32 v{ACC_A+j}, v{ACC_B+j}, {vT}, s[94:95]")
    F += [f"{MF} {R(PT,16)}, {R(ACC_A,4)}, {R(ACC_B+8,4)}, 0", f"{MF} {R(PT,16)}, {R(ACC_A+4,4)}, {R(ACC_B+12,4)}, {R(PT,16)}",
          f"{MF} {R(ACC_B,16)}, {R(ACC_A+8,4)}, {R(PHI,4)}, 0", f"{MF} {R(ACC_B,16)}, {R(ACC_A+12,4)}, {R(PHI+4,4)}, {R(ACC_B,16)}"]
    F += [f"v_add_u32 v25, {sSCRW}, {vA16}", blk(f"s_lshl_b32 s4, {sW}, 9\ns_add_u32 s4, s4, {SCR_Z}\nv_lshlrev_b32 v26, 2, v0\nv_add_u32 v26, s4, v26")]
    F += [f"ds_write_b128 v25, {R(PT,4)}", f"ds_write_b128 v25, {R(PT+4,4)} offset:1024", f"ds_write_b32 v26, v{PT+8}",
          f"ds_write_b128 v25, {R(ACC_B+8,4)} offset:2048", f"ds_write_b128 v25, {R(ACC_B+12,4)} offset:3072", f"ds_write_b32 v26, v{ACC_B} offset:256"]
    F += [blk(f"s_lshl_b32 s4, {sRT}, 10\ns_add_u32 s4, s4, {2*SLOT + ch*SLOT}\nv_add_u32 v25, s4, {vA16}"),
          blk(f"s_lshr_b32 s4, {sRT}, 1\ns_lshl_b32 s4, s4, 8\ns_add_u32 s4, s4, {SCR_Z + ch*2048}\nv_add_u32 v26, s4, {vP4}"), mark('kvw')]
    ER = [f"ds_read_b128 {R(PT+4*r,4)}, v25 offset:{r*4096}" for r in range(4)] + [f"ds_read_b32 v{ACC_A+r}, v26 offset:{r*512}" for r in range(4)]
    ER += ["v_lshrrev_b32 v25, 5, v0", f"v_lshl_add_u32 v25, v25, 9, {vP4}", blk(f"s_lshl_b32 s5, {sRT2}, 10\nv_add_u32 v25, s5, v25"),
           f"v_lshrrev_b32 {vT}, 4, v0", f"v_cmp_eq_u32 s[94:95], {sRT2}, {vT}", f"v_mov_b32 {vT}, {BIG}",
           blk(f"s_and_b32 s5, {sG}, 1\ns_mul_i32 s5, s5, {10*1024}\ns_add_u32 s5, s5, {ch*2048}\ns_add_u32 {sUD}, {sKS}, s5\ns_lshl_b32 s4, {sI}, 7\ns_add_u32 {sKVF}, {sKVF}, s4"),
           f"v_cndmask_b32 v26, {vT}, {vP4}, s[94:95]"]
    for j in range(4): ER += [f"v_add_f32 v{PT+j}, v{PT+j}, v{PT+4+j}", f"v_add_f32 v{PT+8+j}, v{PT+8+j}, v{PT+12+j}"]
    for j in range(4): ER.append(f"v_add_f32 v{PT+j}, v{PT+j}, v{PT+8+j}")
    ER += [f"v_add_f32 v{ACC_A}, v{ACC_A}, v{ACC_A+1}", f"v_add_f32 v{ACC_A+2}, v{ACC_A+2}, v{ACC_A+3}", f"v_add_f32 v{ACC_A}, v{ACC_A}, v{ACC_A+2}"]
    for j in range(4): ER.append((f"buffer_atomic_add_f32 v{PT+j}, v25, {sWs}, {sKVs} offen offset:{j*128}", "kv"))
    ER += [(f"buffer_atomic_add_f32 v{ACC_A}, v26, {sWs}, {sKVs} offen offset:2048", "kv"), stamp('kvat')]
    EH = correct(uH, ch, PHI, BI0) + fin_setup() + (mish_pk if CFG['PKH'] else mish)(ACC_C, PT + 8, sUD, "actA")
    fkv = flag_store("kv", sKVF, 0, 'fkv'); f3 = flag_store("actA", sFL, 2 * 128, 'f3')
    pr = lambda c: [bnm(0, c), bnm(1, c)]
    m0 = pass0(s, ring, uK, ch, bl, "V3", ["V0"])
    mV = MSeg(ring, uV, ch, {CB: [B(ring, "c1", ["V1", "V2"], ["K3"])], DB: [B(ring, "d1", ["V3", "H0"], N("V", 0, 2))]}, dma=CFG['ST'])
    if CFG['EA']:
        def h1(s):
            until(s, ring, FH, 'erd')
            bar(s, ring, "h1", [], ["H0"] + pr(0), extra=[2, 3])
        mH = MSeg(ring, uH, ch, {15: [h1], DB + 2: [B(ring, "h2", ["H3"] + pr(1), ["H1"])]},
              {6: [lambda s: drain(s, p2_setup(ring))], 7: pull(ring, ch, 0)[:2], 8: pull(ring, ch, 0)[2:], 22: pull(ring, ch, 1)[:2], 24: pull(ring, ch, 1)[2:], 27: [pollA], CFG['KVW']: [fkv]}, dma=CFG['ST'])
    else:
        mH = MSeg(ring, uH, ch, {DB: [B(ring, "h2", ["H3"] + pr(0), N("H", 0, 2), extra=[2, 3])]},
                  {18: [lambda s: drain(s, p2_setup(ring))], 22: pull(ring, ch, 0)[:2], 24: pull(ring, ch, 0)[2:], 27: [pollA], CFG['KVW']: [fkv]}, dma=CFG['ST'])
    m0.posts.setdefault(29, []).append(lambda s: drain(s, phi_frags()))
    add_touch([m0, mV, mH], 'A')
    m0.run(s, mV); mV.run(s, None, F, CFG['KB'] + CFG['KD'] * (1 - 2 * ch))
    bar(s, ring, "c2", [], N("V", 2, 4), lg0=True)
    print("   A V-only block:", len(F))
    VB_ = correct(uV, ch, WB) + F + [mH.pre]
    if CFG.get('VST'):
        for k in range(len(VB_) // 12 * 12, 0, -12): VB_.insert(k, stamp(f"v{k}"))
    vseg(s, ring, VB_, flush=False)
    bar(s, ring, "d2", ["H1", "H2"] + (pr(0) if CFG['EA'] else []))
    FH = list(ER) + [mark('erd')]
    mH.run(s, None, FH, CFG['VB'])
    assert not FH
    if CFG['EA']:
        bar(s, ring, "e1", [], N("H", 2, 4) + pr(1), lg0=True); ring.rel8 = []
    else:
        bar(s, ring, "e1", pr(1), N("H", 2, 4) + pr(0), lg0=True)
        drain(s, pull(ring, ch, 1))
        ring.rel8 = pr(1)
    s.marks.update(vbar=1, p1=1)
    F = EH + [mark('v1'), mark('v0'), ('hold', CFG['F3G']), f3]
    aphase(s, ring, ch, F, list(range(36, 64, 4)) + list(range(80, 96, 4)) + [100, 120, 124], {'v1': [104, 108, 112, 116]}, CFG['TOFF'])
    return s

def stream_B(s0, ch):
    CB, DB = CFG['CB'], CFG['DB']
    s = s0.fork(f"B{ch}"); s.e(f"L_typeB{ch}:")
    bl = BIASL['B']
    H5 = [(f"F{c}", sW1, vD5, sUD, 0, 16 * 3584, 0, 128 * 3584, lambda hf, c=c: 2 * c + hf) for c in range(2)]
    items = p0_items(w_items("U", sW1, vD1, sUA, 3584), w_items("Y", sW1, vD1, sUB, 3584))
    Qi = w_items("Q", sWq, vDq, sUC, 3072); bi = b_items(1)
    items += H5 + [Qi[0]] + bi[:2] + [Qi[1], Qi[2]] + bi[2:4] + [Qi[3]] + bi[4:] if CFG['EB'] else H5 + Qi + bi
    ring = Ring(items, range(9), ch); ring.upto0 = "Y3"; ring.strict = bool(CFG['EB'])
    start(s, ring, 'U')
    s.e(f"s_and_b32 s5, {sG}, 1\ns_cmp_eq_u32 s5, 0\ns_cselect_b32 s5, 4, 2\ns_cselect_b32 s4, {12*1024}, 0\ns_lshl_b32 s5, s5, 10\n"
        f"s_add_u32 {sSCRW}, {sKS}, s4\ns_add_u32 s5, s5, {ch*2048}\ns_add_u32 {sKS}, {sKS}, s5")
    uU = dict(name="U", acc=ACC_A, trans=True, kind='w', csi=0)
    uY = dict(name="Y", acc=ACC_B, trans=True, kind='w', csi=1)
    uF = dict(name="F", acc=ACC_C, trans=True, kind='h5', csi=0)
    uQ = dict(name="Q", acc=ACC_A, trans=True, kind='w', csi=1)
    EU = ilv(stats_fin(PT), correct(uU, ch, PT + 8, BI0)) + [initchk, ('gap', 10)] + mish(ACC_A, PT, sKS, "act1") + [f"s_add_u32 {sKS}, {sKS}, 4096"]
    EY = correct(uY, ch, PT + 8, BI1) + [mark('b1dead'), ('gap', 16)] + mish(ACC_B, PT, sKS, "act2")
    EF = correct(uF, ch, PT + 8, BI2) + [('gap', 16)] + mish(ACC_C, PT, sSCRW, "act5")
    EQ = correct(uQ, ch, PT + 12) + phi_frags() + pack16(ACC_A, PK)
    EQ += [f"{MF} {R(PT,16)}, {R(PHI,4)}, {R(PK,4)}, 0", f"{MF} {R(ACC_B,16)}, {R(PHI+4,4)}, {R(PK+4,4)}, 0"] + fin_setup()
    if CFG['PK']: EQ += softmax_pk(PT, ACC_A, "v26", vT, PHI) + softmax_pk(ACC_B, ACC_A + 8, "v26", vT, PHI)
    else: EQ += softmax(PT, ACC_A, "v26", vT) + softmax(ACC_B, ACC_A + 8, "v26", vT)
    f1 = flag_store("act1", sFL, 0, 'f1'); f2 = flag_store("act2", sFL, 128, 'f2'); f3 = flag_store("act5", sFL, 3 * 128, 'f3')
    pr = lambda c: [bnm(0, c), bnm(1, c)]
    FG = ('gap', CFG['FG'])
    F = [('wait', 'c1')] + EU + [mark('m1'), ('wait', 'c2')] + split(EY, 0.6, f1) + [mark('m2')]
    if ch == 0: F += [('wait', 'c3')] + split(EF, 0.6, f2) + [mark('m3')]
    else: F += [FG, f2, mark('m3'), mark('f3')]
    m0 = pass0(s, ring, uU, ch, bl, "Y3", ["Y0"])
    mY = MSeg(ring, uY, ch, {CB: [B(ring, "c1", ["Y1", "Y2"], ["U3"])], DB: [B(ring, "d1", ["Y3", "F0"], N("Y", 0, 2))]}, dma=CFG['ST'])
    c2 = B(ring, "c2", ["F1", "Q0"], N("Y", 2, 4), owner=1)
    if CFG['EB']:
        mQ = MSeg(ring, uQ, ch, {CB: [B(ring, "c3", ["Q1", "Q2"] + pr(0), ["F0", "F1"])], 15: [B(ring, "q1", pr(1), pr(0) + ["Q0"])], DB + 2: [B(ring, "d3", ["Q3"], ["Q1"] + pr(1))]},
              {5: [lambda s: (until(s, ring, F, 'b1dead'), drain(s, p2_setup(ring)))], 7: pull(ring, ch, 0)[:2], 8: pull(ring, ch, 0)[2:], 15: pull(ring, ch, 1)[:2], 16: pull(ring, ch, 1)[2:], 27: [pollA]}, dma=CFG['ST'])
    else:
        mQ = MSeg(ring, uQ, ch, {CB: [B(ring, "c3", ["Q1", "Q2"], ["F0", "F1"])], DB: [B(ring, "d3", ["Q3"] + pr(0), N("Q", 0, 2))]},
                  {15: [lambda s: (until(s, ring, F, 'b1dead'), drain(s, p2_setup(ring)))], 22: pull(ring, ch, 0)[:2], 24: pull(ring, ch, 0)[2:], CFG['TAP']: [pollA], CFG['TAT']: [touchA(0, 8, 0xf, 'v160', 'v161')], 27: [pollA]}, dma=CFG['ST'])
    add_touch([m0, mY, mQ], 'B')
    m0.run(s, mY)
    if ch == 0:
        mF = MSeg(ring, uF, ch, {CB: [c2]}, dma=CFG['ST'] // 2)
        mY.run(s, mF, F, CFG['P1B'] + CFG['PD']); mF.run(s, mQ, F, CFG['FB'])
    else:
        mY.run(s, None, F, CFG['P1B'] - CFG['PD']); c2(s); vrun(s, ring, F, CFG['IB']); mQ.pre(s)
    print("   B forced m1:", until(s, ring, F, 'm1'))
    mQ.run(s, None, F, CFG['QB'][ch])
    KS, OD, OD2, OF, OP = WB, PT, ACC_B, PHI, PK
    def kvfetch(s):
        poll_check(s, sWs, sKVF, 0xffff, vPoll2, vo="v21")
        s.e(f"s_lshl_b32 s5, {sRT2}, 10\ns_add_u32 s5, s5, {sKVs}")
        s.e(f"buffer_load_dwordx4 {R(KS,4)}, {vA16}, {sWs}, s5 offen sc1")
        s.e(f"v_and_b32 v21, 3, v0\nv_lshlrev_b32 v21, 4, v21\ns_lshl_b32 s5, {sRT2}, 6\ns_add_u32 s5, s5, {sKVs}")
        s.e(f"buffer_load_dwordx4 {R(KS+4,4)}, v21, {sWs}, s5 offen offset:2048 sc1")
    IM = [f"v_cvt_pk_bf16_f32 v{KS}, v{KS}, v{KS+1}", f"v_cvt_pk_bf16_f32 v{KS+1}, v{KS+2}, v{KS+3}",
          f"v_cvt_pk_bf16_f32 v{KS+4}, v{KS+4}, v{KS+5}", f"v_cvt_pk_bf16_f32 v{KS+5}, v{KS+6}, v{KS+7}",
          blk(f"s_mul_i32 s5, {sKQ}, 1088\ns_add_u32 s5, s5, {SCR_KV}\ns_lshl_b32 s4, {sRT2}, 9\ns_add_u32 s4, s4, s5\nv_lshlrev_b32 v25, 3, v0\nv_add_u32 v25, s4, v25\n"
              f"ds_write_b64 v25, {R(KS,2)}\ns_lshl_b32 s4, {sRT2}, 5\ns_add_u32 s4, s4, s5\nv_lshrrev_b32 v21, 1, v21\nv_add_u32 v21, s4, v21\nds_write_b64 v21, {R(KS+4,2)} offset:1024"),
          f"v_min_u32 v25, 64, {vP4}", "v_lshlrev_b32 v25, 4, v25", "v_lshrrev_b32 v26, 5, v0", "v_lshl_add_u32 v25, v26, 5, v25",
          blk(f"v_add_u32 v25, {SCR_KV + ch*2176}, v25\ns_lshl_b32 s5, {sG}, 12\ns_add_u32 s5, s5, {sAF}\ns_add_u32 {sSCRW}, s5, {112*1024 + ch*2048}")]
    O = [f"ds_read_b128 {R(OF,4)}, v25", f"ds_read_b128 {R(OF+4,4)}, v25 offset:16", f"ds_read_b128 {R(OP,4)}, v25 offset:1088", f"ds_read_b128 {R(OP+4,4)}, v25 offset:1104"]
    O += [f"{MF} {R(OD,16)}, {R(OF,4)}, {R(ACC_A,4)}, 0", f"{MF} {R(OD,16)}, {R(OF+4,4)}, {R(ACC_A+4,4)}, {R(OD,16)}",
          f"{MF} {R(OD2,16)}, {R(OP,4)}, {R(ACC_A+8,4)}, 0", f"{MF} {R(OD2,16)}, {R(OP+4,4)}, {R(ACC_A+12,4)}, {R(OD2,16)}"]
    for h, D in enumerate((OD, OD2)):
        O += [f"v_add_f32 v26, 0x358637bd, v{D+8}", "v_rcp_f32 v26, v26"]
        for j in range(8): O.append(f"v_mul_f32 v{D+j}, v{D+j}, v26")
        for j in range(4): O.append(f"v_cvt_pk_bf16_f32 v{ACC_A+4*h+j}, v{D+2*j}, v{D+2*j+1}")
        O.append((f"buffer_store_dwordx4 {R(ACC_A+4*h,4)}, {vA16}, {sWs}, {sSCRW} offen offset:{h*1024} sc1", "o"))
    O.append(stamp('ost'))
    if CFG['EB']: bar(s, ring, "e1", [], N("Q", 2, 4), lg0=True)
    else:
        bar(s, ring, "e1", pr(1), N("Q", 2, 4) + pr(0), lg0=True)
        drain(s, pull(ring, ch, 1))
    s.marks['p1'] = 1
    ring.rel8 = []
    def ins(L, back, item): return L[:len(L) - back] + [item] + L[len(L) - back:]
    F2 = F + EQ
    if ch == 0: F2 = ins(F2, 110, f3)
    kp = lambda s: (s.e("v_min_u32 v21, 15, v0\nv_lshlrev_b32 v21, 7, v21"), poll_issue(s, sWs, sKVF, vPoll2, vo="v21"))
    K1, K2, K3 = CFG['KS']
    if CFG['KM'] == 0:
        F2 = ins(ins(F2, CFG['KP'], kp), CFG['KF'], kvfetch)
        F2 += IM + [B(ring, "e2", [], [] if CFG['EB'] else pr(1), lg0=True), mark('vbar')] + O + [mark('v1'), mark('v0'), ('hold', CFG['OW']), flag_store("o", sFL, 4 * 128, 'fo')]
    elif CFG['KM'] == 2:
        s.marks['vbar'] = 1
        F2 = ins(ins(F2, CFG['KP'], kp), CFG['KF'], kvfetch)
        F2 += [mark('v0')] + IM + [('nextbar',)] + O + [mark('v1'), ('hold', CFG['OW']), flag_store("o", sFL, 4 * 128, 'fo')]
    else: F2 += [mark('v0'), mark('vbar'), ('tilt', K1), kp, ('tilt', K2), kvfetch, ('tilt', K3)] + IM + [('nextbar',)] + O + [mark('v1'), ('hold', CFG['OW']), flag_store("o", sFL, 4 * 128, 'fo')]
    ring.rel8 = pr(1) if (CFG['KM'] and not CFG['EB']) else []
    aphase(s, ring, ch, F2, [88, 92], {'f3': [64, 68, 72, 76], 'v1': [80, 84] + list(range(40, 64, 4)) + list(range(96, 128, 4))}, 0)
    return s

def build(path, listform=True):
    s0 = Stream("P")
    if PROFILE: s0.e("s_memtime s[96:97]\ns_memrealtime s[58:59]")
    prologue(s0)
    s0.e(f"s_lshl_b32 s5, {sTY}, 1\ns_add_u32 s5, s5, {sCH}\ns_cmp_eq_u32 s5, 0\ns_cbranch_scc1 L_typeA0\ns_cmp_eq_u32 s5, 1\ns_cbranch_scc1 L_typeA1\ns_cmp_eq_u32 s5, 3\ns_cbranch_scc1 L_typeB1")
    B0 = stream_B(s0, 0); B1 = stream_B(s0, 1); A0 = stream_A(s0, 0); A1 = stream_A(s0, 1)
    assert B0.nbar == B1.nbar and A0.nbar == A1.nbar
    assert B0.slots == B1.slots and A0.slots == A1.slots
    hdr = open("recurrent_scan__linear_kernel_hedgehog__dense_activation_mish__prompt.s.ref").read().split("; Override")[0]
    T = [hdr.rstrip(), f"; @launch {'kernel=' + KNAME + ' ' if listform else ''}grid=(256,1,1) block=(512,1,1) lds=163840",
         '.amdgcn_target "amdgcn-amd-amdhsa--gfx950"', ".text", f".globl {KNAME}", ".p2align 8", f".type {KNAME},@function", f"{KNAME}:"]
    S = [s0, B0, B1, A0, A1]
    for st in S:
        T.append(f"; ---- stream {st.name}  nops={st.stats['nop']} waits={st.stats['wait']} barriers={st.nbar}")
        T.append(st.text())
    for st in S: T += st.ool
    T.append("L_end:\n  s_endpgm")
    T.append(".fill 6144, 4, 0xbf800000")
    T.append(f'''.section .rodata,"a"
.p2align 6
.amdhsa_kernel {KNAME}
  .amdhsa_next_free_vgpr 256
  .amdhsa_next_free_sgpr 102
  .amdhsa_accum_offset 256
  .amdhsa_group_segment_fixed_size 0
  .amdhsa_kernarg_size 88
  .amdhsa_user_sgpr_count 2
  .amdhsa_user_sgpr_kernarg_segment_ptr 1
  .amdhsa_system_sgpr_workgroup_id_x 1
.end_amdhsa_kernel''')
    open(path, "w").write("\n".join(T) + "\n")
    for st in S: print(st.name, "instrs", len(st.out), st.stats, "barriers", st.nbar)

if __name__ == "__main__":
    for a in sys.argv[2:]:
        if a == "prof": PROFILE = True
        elif '=' in a:
            k, v = a.split('='); CFG[k] = eval(v)
    build(sys.argv[1], listform=("final" not in sys.argv))
```

```python
import sys
sys.path.insert(0, 'gen')
from ab import *

KNAME = "recurrent_scan__linear_kernel_hedgehog__dense_activation_mish__prompt_kernel"
PROFILE = False
SLOT = 16384
SCR = 9 * SLOT
SCR_PHI = SCR
SCR_RS = SCR + 2048
SCR_ST = SCR + 2560
SCR_CS = SCR + 6656
SCR_Z = SCR + 10752
SCR_KV = SCR + 10752
Z_OFF = 0x900000
KV_OFF = Z_OFF
KVFLAG_OFF = Z_OFF + 0x40000
ACTFLAG_OFF = Z_OFF + 0x16000
PROF_OFF = 0xA00000
BIG = 0x40000000
CFG = dict(AD=16, A0=8, AN=2, BN=1, G8=1, F3G=4, PB=[(200, 40), (80, 55), (80, 40)], SLP=8, PWW=0, PVL=60, PSA=[(3, 7), (11, 14), (18, 21)], PSB=[(0, 1), (5, 8), (11, 15)], PB2=3, YB=31, PKT=1, MIX=0, MG=300, EB=0, EA=1, PKH=1, T3W=[0, 1, 2, 3, 0, 1, 2, 3, 0], OWN='', KD=0, PD=0, UP=[0, 0, 0, 0, 1, 2, 2], PAR=2, FB4=0, PKA=1, PK=0, KM=0, KVW=16, KS=(0, 5, 10), KVP=12, TAP=8, TAT=20, TAD=2, CB=6, DB=22, TW=1, TWT=2, GT=[2000, 4000, 5500, 500], TOFF=-1000, LT=200, LT2=200, QD2=800, LAT=900, QD=800, PLT=1500, BL=6, VC=9, T2=0, T2AT=[30, 35, 40, 45, 50, 55, 60, 66, 72], PF=4, PL=4, S0=6, S1=6, PRIO=0, VD=10, KP=160, KF=110, OW=4, G16=8, G28=20, TV=10, TB=1, TBT=28, TA=0, TO=11, T0=0, T1=0, ROT=2, RATE=38, BURST=24576, ST=90,
    CRED=6, AGE=14, P1B=5, FB=5, QB=[10, 3], IB=200, KB=6, VB=8, KVG=60, EH0=60, FG=60, E1=[120, 100], E2=[100, 80])

sX, sWq, sW1, sW2, sWo, sPhi, sB1, sOut, sDbg, sWs = [f"s[{8+4*i}:{11+4*i}]" for i in range(10)]
sW, sRT, sCH, sI, sG, sTY, sRB, sCB, sKQ, sRT2 = [f"s{48+i}" for i in range(10)]
sT0 = "s3"
sC10, sC01, sC11 = "s58", "s59", "s60"
sM0W = "s61"; sSoW = "s62"
sUA, sUB, sUC, sUD = "s63", "s6", "s7", "s2"
sAF, sFL, sAF2, sFL2, sB2, sBo, sKVs, sKVF, sSCRW, sCNT, sKS, sBID = [f"s{64+i}" for i in range(12)]
sA2y, sA2s, sOo = "s0", "s1", "s5"
STAMP0 = 76

vA16 = "v1"; vDq = "v2"; vD1 = "v3"; vDB = "v4"; vD5 = "v5"
VW = 6
vRS, vRSL, vM2 = "v14", "v15", "v22"
CF = 16
BI0, BI1, BI2 = 23, 24, 25
vPoll = "v27"; vFO = "v28"; vOne = "v10"; vP4 = "v30"; vT = "v31"; vPoll2 = "v9"
ACC_A, ACC_B, ACC_C = 32, 48, 64
WB = 80; PT = 96; PHI = 112; PK = 120; XA = 128
XR = 64; XD = 72; HR = 112; STA = 96; CSB = 116; ASEL = 120; CSA = 124
sXb = "s86"; sRot = "s89"; ROT0 = 98

def R(b, n): return f"v[{b}:{b+n-1}]"
def ldsaddr(regs, byte): return regs[byte >> 16], byte & 0xffff
_nl = [0]
def label():
    _nl[0] += 1; return f"L{_nl[0]}"
def stamp(name):
    def f(s):
        if not PROFILE: return
        if not hasattr(s, 'snames'): s.snames = []
        idx = len(s.snames)
        if idx >= 61: return
        s.snames.append(str(name))
        s.e(f"s_memtime s[{STAMP0+2*(idx%4)}:{STAMP0+1+2*(idx%4)}]")
        if idx >= 2: s.raw(f"v_writelane_b32 v29, s{STAMP0+2*((idx-2)%4)}, {idx-2}")
    return f
def srd(s, dst, lo, hi, size):
    b = int(dst[2:dst.index(':')])
    s.e(f"s_mov_b32 s{b}, {lo}\ns_and_b32 s{b+1}, {hi}, 0xffff\ns_mov_b32 s{b+2}, {size}\ns_mov_b32 s{b+3}, 0x20000")
def poll_issue(s, srd_, soff, vp=vPoll, imm=0, vo=vP4):
    assert srd_ == sDbg or 'init' in s.marks
    s.e(f"buffer_load_dword {vp}, {vo}, {srd_}, {soff} offen offset:{imm} sc1")
def poll_check(s, srd_, soff, mask, vp=vPoll, imm=0, vo=vP4):
    l1, l2, l3 = label(), label(), label()
    stamp(f"[p{imm//128}_{mask:x}")(s)
    s.e(f"v_cmp_ne_u32 vcc, 0, {vp}\ns_andn2_b32 {sT0}, {mask:#x}, vcc_lo\ns_cbranch_scc1 {l1}\n{l2}:")
    stamp(f"p]")(s)
    s.ool.append(f"""{l1}:
  s_mov_b32 {sCNT}, 0x10000
{l3}:
  s_sleep {CFG['SLP']}
  buffer_load_dword {vp}, {vo}, {srd_}, {soff} offen offset:{imm} sc1
  s_waitcnt vmcnt(0)
  v_cmp_ne_u32 vcc, 0, {vp}
  s_nop 1
  s_andn2_b32 {sT0}, {mask:#x}, vcc_lo
  s_cbranch_scc0 {l2}
  s_sub_u32 {sCNT}, {sCNT}, 1
  s_cmp_lg_u32 {sCNT}, 0
  s_cbranch_scc1 {l3}
  s_branch {l2}""")
def flag_store(tagwait, soff, imm, mark):
    def f(s):
        assert 'init' in s.marks
        stamp("(" + mark)(s)
        s.wait_tag(tagwait)
        stamp(mark + ")")(s)
        s.e(f"buffer_store_dword {vOne}, {vFO}, {sWs}, {soff} offen offset:{imm} sc1")
        s.marks[mark] = 1
    return f
def blk(text): return lambda s: s.e(text)

class Ring:
    hold = ()
    def __init__(self, items, free, ch):
        self.items = list(items); self.free = list(free); self.slot = {}; self.q = []; self.log = {}; self.ch = ch
        self.order = {it[0]: k for k, it in enumerate(items)}; self.xres = True
    def release(self, name):
        if name not in self.hold: self.free.append(self.slot[name])
    def assign(self, s, owner='all', upto=None, maxn=99):
        k = 0
        while k < len(self.items) and maxn > 0:
            it = self.items[k]; nm = it[0]
            if upto is not None and self.order[nm] > self.order[upto]: break
            if nm[0] == 'X':
                want = 2 * (int(nm[2]) & 1) + (nm[1] == 'H')
                ok = [x for x in self.free if x == want]
                if not ok: k += 1; continue
            elif nm[0] in 'BF': ok = [x for x in self.free if not (self.xres and x < 4)]
            else: ok = [x for x in self.free if x != 0 and not (self.xres and x < 4)]
            if not ok:
                if nm[0] != 'B' and not self.strict: k += 1; continue
                break
            if nm[0] in 'BF' and 0 in ok: ok = [0]
            self.items.pop(k); sl = ok[0]; self.free.remove(sl); self.slot[nm] = sl; maxn -= 1
            self.log[nm] = [s.nbar, None, owner]
            if owner == 'all': self.q += [(it, sl, h, 0) for h in range(2)]
            elif owner == self.ch: self.q += [(it, sl, h, o) for o in range(2) for h in range(2)]
            if nm == 'XH3': self.xres = False
        self.q.sort(key=lambda e: self.order[e[0][0]])
    def pump(self, s, n=1):
        while n > 0 and self.q:
            it, sl, h, other = self.q.pop(0)
            name, srd_, voff, sbase, o0, o1, dl = it[:7]
            sg = (1 if self.ch == 0 else -1) * other
            vo = voff[h] if isinstance(voff, tuple) else voff
            s.e(f"s_add_u32 m0, {sM0W}, {(sl*SLOT + h*1024 + sg*8192) & 0xffffffff:#x}")
            if len(it) > 7:
                mul, cidx = it[7], it[8](self.ch if not other else 1 - self.ch)
                key = (sbase, mul, cidx)
                if self.rkey != key:
                    s.e(f"s_mul_i32 {sRot}, s{ROT0+cidx}, {mul}\ns_add_u32 {sRot}, {sRot}, {sbase}")
                    self.rkey = key
                sbase = sRot
            s.e(f"s_add_u32 {sSoW}, {sbase}, {((o0, o1)[h] + sg*dl) & 0xffffffff:#x}")
            s.e(f"buffer_load_dwordx4 {vo}, {srd_}, {sSoW} offen lds", tag=name)
            n -= 1
    rkey = None
    strict = False
    cred = 0
    def pace(self, s, cycles, mx=99):
        self.cred = min(self.cred + cycles * CFG['RATE'], CFG['BURST'])
        while self.q and mx > 0:
            mx -= 1
            e = self.q[0]
            cost = (8192 if self.log[e[0][0]][2] == 'all' else 4096) * (2 if e[0][0][0] == 'F' else 1)
            if self.cred < cost: break
            self.cred -= cost; self.pump(s, 1)
    def need(self, s, name):
        assert name in self.slot, f"{name} has no slot yet"
        while any(e[0][0] == name for e in self.q):
            print("  warning: forced DMA issue for", name, "in", s.name)
            self.pump(s)
        if self.log[name][1] is None: self.log[name][1] = s.nbar
        s.wait_tag(name)
def x_items(q):
    return [(f"XL{q}", sX, (f"v{XD}", f"v{XD+1}"), sXb, 0, 0, 32768, 256, lambda c: q), (f"XH{q}", sX, (f"v{XD}", f"v{XD+1}"), sXb, 65536, 65536, 32768, 256, lambda c: q)]
def w_items(name, srd_, voff, sbase, stride):
    return [(f"{name}{c}", srd_, voff, sbase, 0, 8 * stride, 64 * stride, 128 * stride, lambda ch, c=c: c) for c in range(4)]
ORDER = [4, 5, 6, 7, 16, 17, 18, 19, 8, 9, 10, 11, 20, 21, 22, 23, 12, 13, 14, 15, 0, 1, 2, 3, 24, 25, 26, 27]
def b_item(hf, c):
    nm = f"B{'ab'[hf]}{c}"
    if c < 7:
        o = hf * 896 * 1024 + ORDER[4 * c] * 16384
        return (nm, sW2, vDB, sB2, o, o + 8192, 448 * 1024)
    o = hf * 256 * 1024 + (c - 7) * 65536
    return (nm, sWo, vDB, sBo, o, o + 8192, 128 * 1024)
def b_items(first):
    it = []
    for c in range(9): it += [b_item(0, c), b_item(1, c)]
    return it

def mish(acc, tmp, so, tag):
    F = []
    for hb in range(2):
        a = acc + 8 * hb
        for j in range(8): F.append(f"v_mul_f32 v{tmp+j}, v{a+j}, {vRSL}")
        for j in range(8): F.append(f"v_exp_f32 v{tmp+j}, v{tmp+j}")
        for j in range(8): F.append(f"v_add_f32 v{tmp+j}, 1.0, v{tmp+j}")
        for j in range(8): F.append(f"v_fma_f32 v{tmp+j}, v{tmp+j}, v{tmp+j}, 1.0")
        for j in range(8): F.append(f"v_rcp_f32 v{tmp+j}, v{tmp+j}")
        for j in range(8): F.append(f"v_fma_f32 v{tmp+j}, v{tmp+j}, {vM2}, {vRS}")
        for j in range(8): F.append(f"v_mul_f32 v{tmp+j}, v{a+j}, v{tmp+j}")
        for j in range(4): F.append(f"v_cvt_pk_bf16_f32 v{a+j}, v{tmp+2*j}, v{tmp+2*j+1}")
        F.append((f"buffer_store_dwordx4 {R(a,4)}, {vA16}, {sWs}, {so} offen offset:{hb*1024} sc1", tag))
    return F
def bc(r):
    n = int(r[1:]); return R(n & ~1, 2), n & 1
def pk2(op, d, a, b, c=None):
    ops = [R(a, 2)]; lo = [0]; hi = [1]
    for x in (b, c):
        if x is None: continue
        if isinstance(x, int): ops.append(R(x, 2)); lo.append(0); hi.append(1)
        elif x[0] == 'v':
            p, o = bc(x); ops.append(p); lo.append(o); hi.append(o)
        else: ops.append(x); lo.append(0); hi.append(0)
    f = lambda L: "[" + ",".join(map(str, L)) + "]"
    return f"v_pk_{op}_f32 {R(d,2)}, " + ", ".join(ops) + f" op_sel:{f(lo)} op_sel_hi:{f(hi)}"
def mish_pk(acc, tmp, so, tag):
    F = []
    for hb in range(2):
        a = acc + 8 * hb; E = range(0, 8, 2)
        F += [pk2("mul", tmp + j, a + j, vRSL) for j in E] + [f"v_exp_f32 v{tmp+j}, v{tmp+j}" for j in range(8)]
        F += [pk2("add", tmp + j, tmp + j, "1.0") for j in E] + [pk2("fma", tmp + j, tmp + j, tmp + j, "1.0") for j in E]
        F += [f"v_rcp_f32 v{tmp+j}, v{tmp+j}" for j in range(8)]
        F += [pk2("fma", tmp + j, tmp + j, vM2, vRS) for j in E] + [pk2("mul", tmp + j, tmp + j, a + j) for j in E]
        F += [f"v_cvt_pk_bf16_f32 v{a+j}, v{tmp+2*j}, v{tmp+2*j+1}" for j in range(4)]
        F.append((f"buffer_store_dwordx4 {R(a,4)}, {vA16}, {sWs}, {so} offen offset:{hb*1024} sc1", tag))
    return F
def softmax_pk(P, out, t0, t1, tp):
    F = softmax(P, out, t0, t1)[:9]; E = range(0, 16, 2)
    F += [pk2("fma", P + j, P + j, vRSL, t0) for j in E] + [f"v_exp_f32 v{P+j}, v{P+j}" for j in range(16)]
    F += [pk2("add", tp, P, P + 2), pk2("add", tp + 2, P + 4, P + 6), pk2("add", tp, tp, P + 8), pk2("add", tp + 2, tp + 2, P + 10),
          pk2("add", tp, tp, P + 12), pk2("add", tp + 2, tp + 2, P + 14), pk2("add", tp, tp, tp + 2), f"v_add_f32 {t0}, v{tp}, v{tp+1}", f"v_rcp_f32 {t0}, {t0}"]
    F += [pk2("mul", P + j, P + j, t0) for j in E] + [f"v_cvt_pk_bf16_f32 v{out+j}, v{P+2*j}, v{P+2*j+1}" for j in range(8)]
    return F
def softmax(P, out, t0, t1):
    F = [f"v_max3_f32 {t0}, v{P}, v{P+1}, v{P+2}", f"v_max3_f32 {t1}, v{P+3}, v{P+4}, v{P+5}",
         f"v_max3_f32 {t0}, {t0}, v{P+6}, v{P+7}", f"v_max3_f32 {t1}, {t1}, v{P+8}, v{P+9}",
         f"v_max3_f32 {t0}, {t0}, v{P+10}, v{P+11}", f"v_max3_f32 {t1}, {t1}, v{P+12}, v{P+13}",
         f"v_max3_f32 {t0}, {t0}, v{P+14}, v{P+15}", f"v_max_f32 {t0}, {t0}, {t1}", f"v_mul_f32_e64 {t0}, -{t0}, {vRSL}"]
    for j in range(16): F.append(f"v_fma_f32 v{P+j}, v{P+j}, {vRSL}, {t0}")
    for j in range(16): F.append(f"v_exp_f32 v{P+j}, v{P+j}")
    F += [f"v_add_f32 {t0}, v{P}, v{P+1}", f"v_add_f32 {t1}, v{P+2}, v{P+3}"]
    for j in range(4, 16, 2):
        F += [f"v_add_f32 {t0}, {t0}, v{P+j}", f"v_add_f32 {t1}, {t1}, v{P+j+1}"]
    F += [f"v_add_f32 {t0}, {t0}, {t1}", f"v_rcp_f32 {t0}, {t0}"]
    for j in range(16): F.append(f"v_mul_f32 v{P+j}, v{P+j}, {t0}")
    for j in range(8): F.append(f"v_cvt_pk_bf16_f32 v{out+j}, v{P+2*j}, v{P+2*j+1}")
    return F
def pack16(acc, out): return [f"v_cvt_pk_bf16_f32 v{out+j}, v{acc+2*j}, v{acc+2*j+1}" for j in range(8)]
def phi_frags():
    F = ["v_bfe_u32 v25, v0, 2, 2", "v_lshrrev_b32 v26, 5, v0", "v_lshl_add_u32 v25, v26, 2, v25", "v_lshlrev_b32 v25, 5, v25",
         "v_bfe_u32 v26, v0, 4, 1", "v_lshl_add_u32 v25, v26, 4, v25", "v_bfe_u32 v26, v0, 1, 1", "v_lshl_add_u32 v25, v26, 3, v25",
         blk(f"s_lshl_b32 s4, {sCH}, 10\ns_add_u32 s4, s4, {SCR_PHI}\nv_add_u32 v25, s4, v25")]
    for h in range(2):
        for rd in range(2): F.append(f"ds_read_b64_tr_b16 {R(PHI+4*h+2*rd,2)}, v25 offset:{h*512 + rd*256}")
    F += ["v_bfe_u32 v26, v0, 2, 1", "v_mul_u32_u24 v26, 0x8000, v26", "v_lshl_or_b32 v26, v26, 16, v26"]
    for j in range(8): F.append(f"v_xor_b32 v{PHI+j}, v26, v{PHI+j}")
    return F

BIASL = {}
def prologue(s):
    s.e("s_load_dwordx2 s[64:65], s[0:1], 0\ns_load_dwordx8 s[68:75], s[0:1], 8\ns_load_dwordx8 s[76:83], s[0:1], 40")
    s.e("s_load_dwordx2 s[84:85], s[0:1], 80\ns_load_dwordx2 s[66:67], s[0:1], 72")
    s.e("s_cmp_ge_u32 s2, 256\ns_cbranch_scc1 L_end")
    s.e("v_lshrrev_b32 v2, 6, v0\nv_and_b32 v0, 63, v0\ns_and_b32 s3, s2, 7\ns_lshr_b32 s87, s2, 3")
    s.e(f"v_readfirstlane_b32 {sW}, v2")
    s.e(f"v_lshrrev_b32 v33, 4, v0\nv_and_b32 v34, 15, v0")
    s.e(f"s_cmp_lg_u32 {sW}, {CFG['PWW']}\ns_cbranch_scc1 L_nopw")
    s.e(f"s_getpc_b64 s[90:91]\nL_pc0:\ns_sub_u32 s90, s90, L_pc0-{KNAME}\ns_subb_u32 s91, s91, 0\ns_lshl_b32 s5, s87, 11\nv_lshlrev_b32 v35, 7, v34\nv_add_u32 v35, s5, v35")
    s.raw("global_load_dword v26, v35, s[90:91]")
    s.e("L_nopw:")
    s.e(f"s_and_b32 s5, s3, 1\ns_lshl_b32 s5, s5, 3\ns_and_b32 {sI}, s87, 7\ns_add_u32 {sI}, {sI}, s5")
    s.e(f"s_and_b32 {sRT2}, {sW}, 1\ns_lshl_b32 {sM0W}, {sW}, 11\ns_lshl_b32 s5, {sRT2}, 3")
    for h in range(2):
        s.e(f"v_add_u32 v35, {4*h}, v33\nv_add_u32 v36, s5, v35\nv_xor_b32 v36, v34, v36\nv_lshlrev_b32 v36, 4, v36\nv_lshl_add_u32 v{XD+h}, v35, 10, v36")
    s.e(f"s_lshr_b32 s{ROT0}, s3, 1\ns_lshl_b32 s{ROT0+1}, s3, 1\ns_add_u32 s{ROT0}, s{ROT0}, s{ROT0+1}")
    for c in range(1, 4): s.e(f"s_add_u32 s{ROT0+c}, s{ROT0}, {c}\ns_and_b32 s{ROT0+c}, s{ROT0+c}, 3")
    s.e(f"s_and_b32 s{ROT0}, s{ROT0}, 3")
    s.e(f"s_lshl_b32 {sXb}, {sI}, 17\ns_lshl_b32 s5, {sW}, 13\ns_add_u32 {sXb}, {sXb}, s5\ns_mov_b32 s10, {2048*512*2}\ns_mov_b32 s11, 0x20000")
    s.e("v_lshrrev_b32 v36, 3, v0\nv_and_b32 v37, 7, v0\nv_lshlrev_b32 v38, 1, v36\nv_and_b32 v38, 4, v38\nv_xor_b32 v37, v37, v38\nv_lshlrev_b32 v37, 4, v37")
    s.raw("s_waitcnt lgkmcnt(0)")
    s.e("s_mov_b32 s8, s64\ns_and_b32 s9, s65, 0xffff")
    srd(s, sWs, "s84", "s85", 0x10000000)
    s.e(f"v_lshlrev_b32 {vA16}, 4, v0\ns_cmp_lg_u32 s3, 1\ns_cbranch_scc1 L_noinit")
    s.e("v_mov_b32 v40, 0\nv_mov_b32 v41, 0\nv_mov_b32 v42, 0\nv_mov_b32 v43, 0")
    s.e(f"s_lshl_b32 s5, s87, 13\ns_lshl_b32 s4, {sW}, 10\ns_add_u32 s5, s5, s4\ns_add_u32 s5, s5, {Z_OFF}")
    s.raw(f"buffer_store_dwordx4 v[40:43], {vA16}, {sWs}, s5 offen sc1")
    s.e("s_add_u32 s5, s5, 0x40000")
    s.raw(f"buffer_store_dwordx4 v[40:43], {vA16}, {sWs}, s5 offen sc1")
    s.e("L_noinit:")
    r0 = Ring(x_items(0) + x_items(1), range(9), 0); r0.assign(s)
    r0.pump(s, 4)
    s.e(f"v_mul_u32_u24 {vDq}, 3072, v36\nv_add_u32 {vDq}, {vDq}, v37\nv_mul_u32_u24 {vD1}, 3584, v36\nv_add_u32 {vD1}, {vD1}, v37")
    s.e(f"s_lshr_b32 s5, s3, 1\ns_lshl_b32 s5, s5, 2\ns_lshr_b32 s6, s87, 3\ns_add_u32 s5, s5, s6")
    s.e(f"s_lshr_b32 {sG}, s5, 1\ns_and_b32 {sTY}, s5, 1\ns_lshl_b32 {sRB}, s3, 2\ns_add_u32 {sRB}, {sRB}, s6\ns_and_b32 {sCB}, s87, 7")
    s.e(f"s_lshr_b32 {sKQ}, {sW}, 1\ns_and_b32 {sRT}, {sW}, 3\ns_lshr_b32 {sCH}, {sW}, 2\ns_mov_b32 s88, s2")
    srd(s, sWq, "s68", "s69", 512 * 1536 * 2)
    srd(s, sW1, "s76", "s77", 512 * 1792 * 2)
    def wpair(c, first):
        l1, l2 = label(), label()
        s.e(f"s_cmp_eq_u32 {sTY}, 0\ns_cbranch_scc1 {l1}")
        vm0 = list(s.vm)
        for typ, it in (('B', w_items("W", sW1, vD1, sUA, 3584)), ('A', w_items("W", sWq, vDq, sUA, 3072))):
            s.vm = list(vm0)
            if typ == 'A': s.e(f"{l1}:")
            if first: BIASL[typ] = unit_bases(s, typ)
            r = Ring([it[c]], [4 + c], 0); r.assign(s); r.pump(s, 2)
            if typ == 'B': s.e(f"s_branch {l2}")
        s.e(f"{l2}:")
    wpair(0, True)
    s.e(f"v_lshl_add_u32 {vDB}, v36, 10, v37")
    prologue2(s)
    r0.rkey = None
    r0.pump(s, 4)
    wpair(1, False)

def prologue2(s):
    srd(s, sPhi, "s70", "s71", 32 * 512)
    srd(s, sB1, "s78", "s79", 1792 * 2)
    srd(s, sW2, "s80", "s81", 1792 * 512 * 2)
    srd(s, sWo, "s72", "s73", 512 * 512 * 2)
    srd(s, sOut, "s82", "s83", 2048 * 512 * 2)
    srd(s, sDbg, "s66", "s67", 256)
    s.e(f"s_mov_b32 {sBID}, s88\ns_mov_b32 {sC11}, 0x3f803f80")
    s.e(f"v_lshrrev_b32 v36, 2, v0\nv_and_b32 v37, 3, v0\nv_lshlrev_b32 v37, 4, v37\nv_mul_u32_u24 {vD5}, 3584, v36\nv_add_u32 {vD5}, {vD5}, v37")
    s.e(f"v_and_b32 {vP4}, 31, v0\nv_lshlrev_b32 {vP4}, 2, {vP4}")
    s.e(f"v_mov_b32 v29, 0\nv_mov_b32 {vFO}, {BIG}\nv_cmp_eq_u32 vcc, 0, v0\nv_cndmask_b32 {vFO}, {vFO}, 0, vcc")
    s.e("v_bfe_u32 v36, v0, 2, 2\nv_and_b32 v37, 3, v0\nv_bfe_u32 v38, v0, 4, 1\nv_lshrrev_b32 v39, 5, v0")
    s.e("v_lshlrev_b32 v40, 3, v37\nv_lshl_add_u32 v40, v38, 5, v40\nv_lshl_add_u32 v41, v39, 3, v36")
    s.e(f"v_lshrrev_b32 v42, 1, v36\nv_xor_b32 v42, {sCH}, v42\nv_lshlrev_b32 v42, 6, v42")
    s.e(f"v_lshl_add_u32 v43, v41, 7, v40\nv_add_u32 v43, v43, v42")
    for j in range(4):
        s.e(f"s_xor_b32 s5, {sRT}, {j}\ns_lshl_b32 s5, s5, 12\ns_add_u32 s5, s5, {SLOT}\nv_add_u32 v{VW+j}, s5, v43\nv_add_u32 v{VW+4+j}, 0x10000, v{VW+j}")
    s.e(f"v_and_b32 v44, 31, v0\ns_lshl_b32 s5, {sRT}, 5\nv_add_u32 v45, s5, v44\nv_xor_b32 v46, v39, v34\nv_lshlrev_b32 v46, 4, v46\nv_lshl_add_u32 v{XR}, v45, 8, v46")
    s.e(f"s_lshl_b32 s5, {sRT}, 6\nv_xor_b32 v{XR}, s5, v{XR}")
    for t in range(1, 8): s.e(f"v_xor_b32 v{XR+t}, {t<<5}, v{XR}")
    s.e(f"v_lshlrev_b32 v44, 2, v38\nv_cmp_eq_u32 vcc, v44, v34\nv_mov_b32 v44, {sC11}\nv_cndmask_b32 v{ASEL}, 0, v44, vcc")
    for j in range(1, 4): s.e(f"v_mov_b32 v{ASEL+j}, v{ASEL}")
    s.e(f"v_mov_b32 v{CF+4}, 0\nv_mov_b32 v{CF+5}, 0")
    s.e(f"s_lshl_b32 s3, {sI}, 2\ns_add_u32 s3, s3, {sRT}\ns_mul_i32 {sAF}, s3, {144*1024}")
    s.e(f"s_mul_i32 {sKS}, {sG}, {14*1024}\ns_add_u32 {sKS}, {sKS}, {sAF}")
    s.e(f"s_lshl_b32 {sFL}, s3, 2\ns_lshr_b32 s4, {sG}, 1\ns_add_u32 {sFL}, {sFL}, s4\ns_mul_i32 {sFL}, {sFL}, 640")
    s.e(f"s_and_b32 s4, {sG}, 1\ns_lshl_b32 s4, s4, 3\ns_lshl_b32 s5, {sCH}, 2\ns_add_u32 s4, s4, s5\ns_add_u32 {sFL}, {sFL}, s4\ns_add_u32 {sFL}, {sFL}, {ACTFLAG_OFF}")
    s.e(f"s_lshl_b32 s3, {sRB}, 1\ns_add_u32 s3, s3, {sRT2}\ns_mul_i32 {sAF2}, s3, {144*1024}")
    s.e(f"s_lshl_b32 {sFL2}, s3, 2\ns_add_u32 {sFL2}, {sFL2}, {sKQ}\ns_mul_i32 {sFL2}, {sFL2}, 640\ns_add_u32 {sFL2}, {sFL2}, {ACTFLAG_OFF}")
    s.e(f"s_mul_i32 {sB2}, {sCH}, {448*1024}\ns_lshl_b32 s4, {sRT}, 14\ns_lshl_b32 s5, {sCB}, 7\ns_add_u32 s4, s4, s5\ns_add_u32 {sB2}, {sB2}, s4")
    s.e(f"s_lshl_b32 {sBo}, {sCH}, 17\ns_add_u32 {sBo}, {sBo}, s4")
    s.e(f"s_lshl_b32 s3, {sG}, 2\ns_add_u32 s3, s3, {sKQ}\ns_mul_i32 {sKVs}, s3, 2176\ns_add_u32 {sKVs}, {sKVs}, {KV_OFF}")
    s.e(f"s_lshl_b32 s3, {sG}, 3\ns_add_u32 s3, s3, {sW}\ns_lshl_b32 {sKVF}, s3, 11\ns_add_u32 {sKVF}, {sKVF}, {KVFLAG_OFF}")
    s.e(f"s_mul_i32 s3, {sKQ}, {28*1024}\ns_add_u32 {sA2y}, {sAF2}, s3")
    s.e(f"s_lshl_b32 s3, {sKQ}, 13\ns_add_u32 {sA2s}, {sAF2}, s3\ns_add_u32 {sA2s}, {sA2s}, {112*1024}")
    s.e(f"v_lshrrev_b32 {vT}, 1, {vP4}")

def unit_bases(s, typ):
    s.e(f"s_mul_i32 s3, {sW}, {16*3072}\ns_lshl_b32 s4, {sG}, 7\ns_add_u32 s3, s3, s4")
    s.e(f"s_mul_i32 s4, {sG}, 448\ns_and_b32 s5, {sG}, 1\ns_cmp_eq_u32 s5, 0")
    if typ == 'A':
        s.e(f"s_cselect_b32 s5, 0, 320\ns_add_u32 s4, s4, s5")
        s.e(f"s_add_u32 {sUA}, s3, 1024\ns_add_u32 {sUB}, s3, 2048")
        s.e(f"s_mul_i32 {sUC}, {sW}, {16*3584}\ns_add_u32 {sUC}, {sUC}, s4")
        s.e(f"s_lshl_b32 s5, {sCH}, 6\ns_add_u32 s92, s4, s5")
        return [f"buffer_load_ushort v{BI0}, {vT}, {sB1}, s92 offen"]
    s.e(f"s_cselect_b32 s5, 128, 64\ns_cselect_b32 {sUD}, 384, 0")
    s.e(f"s_add_u32 s5, s4, s5\ns_add_u32 s92, s4, {sUD}\ns_mov_b32 {sUC}, s3")
    s.e(f"s_mul_i32 {sUA}, {sW}, {16*3584}\ns_add_u32 {sUA}, {sUA}, s5\ns_add_u32 {sUB}, {sUA}, 128")
    s.e(f"s_mul_i32 {sUD}, {sRT}, {32*3584}\ns_add_u32 {sUD}, {sUD}, s92")
    s.e(f"s_lshl_b32 s3, {sCH}, 6\ns_add_u32 s93, s5, s3")
    return [f"buffer_load_ushort v{BI2}, {vT}, {sB1}, s92 offen", f"buffer_load_ushort v{BI0}, {vT}, {sB1}, s93 offen",
            f"buffer_load_ushort v{BI1}, {vT}, {sB1}, s93 offen offset:128"]

def start(s, ring, n0):
    ring.assign(s, upto=ring.upto0)
    pre = ["XL0", "XH0", n0 + "0", "XL1", "XH1", n0 + "1"]
    assert [ring.slot[x] for x in pre] == [0, 1, 4, 2, 3, 5]
    ring.q = [e for e in ring.q if e[0][0] not in pre]
    s.vm = [(d, (n0 + tg[1] if tg in ("W0", "W1") else tg)) for d, tg in s.vm]
def touch_all(s, which):
    specs = dict(x=(sX, 64, 4), q=(sWq, 48, 5), w1=(sW1, 56, 6), w2=(sW2, 56, 4), wo=(sWo, 16, 5))
    for nm in which:
        srd_, nl, wv = specs[nm]
        lab = label()
        s.e(f"s_cmp_lg_u32 {sW}, {wv}\ns_cbranch_scc1 {lab}")
        s.e(f"v_min_u32 v47, {nl-1}, v0\nv_lshlrev_b32 v47, 7, v47\ns_mul_i32 s5, s88, {nl*128}\ns_mov_b32 m0, {SCR + 15360}\ns_nop 0")
        s.raw(f"buffer_load_dword v47, {srd_}, s5 offen lds")
        s.e(f"{lab}:")
def late_loads(biasloads):
    def f(s):
        s.e(f"v_lshrrev_b32 {vT}, 1, {vP4}")
        for x in biasloads: s.e(x)
        s.e(f"s_lshl_b32 s3, {sG}, 11\ns_lshl_b32 s4, {sRT2}, 10\ns_add_u32 s3, s3, s4\ns_add_u32 m0, s4, {SCR_PHI}")
        s.e(f"buffer_load_dwordx4 {vA16}, {sPhi}, s3 offen lds", tag="phi")
    return f

MF = "v_mfma_f32_32x32x16_bf16"
def bar(s, ring, name, needs=(), rel=(), owner='all', lg0=False, upto=None, extra=(), maxn=99):
    if CFG.get('SB'): stamp("<" + name)(s)
    for n in needs: ring.need(s, n)
    if lg0: s.wait(lg=0)
    s.wait_dswrites()
    s.e("s_barrier")
    stamp(name)(s)
    s.marks[name] = 1
    for n in rel: ring.release(n)
    ring.free += list(extra)
    if owner == 'all':
        k = 'x' if name[0] == 'b' else ('a' if name[0] in 'ae' else 'p')
        if k in CFG['OWN'] and not (s.name[0] == 'B' and name in ('c3', 'd3', 'e1')): owner = 0
    ring.assign(s, owner, upto, maxn)
def B(ring, *a, **k): return lambda s: bar(s, ring, *a, **k)

class MSeg:
    def __init__(self, ring, u, ch, events=None, posts=None, xpass=False, dma=0):
        self.ring, self.u, self.ch, self.ev, self.posts, self.xp, self.dma = ring, u, ch, events or {}, posts or {}, xpass, dma
        self.nr = 0; self.hs = None
    def reads(self, s, t):
        u, ring = self.u, self.ring
        for e in self.ev.get(t, []): e(s)
        c, p = t // 8, t % 8
        if self.xp:
            for x in {0: (0, 1), 1: (2, 3, 4), 2: (5, 6, 7)}.get(p, ()):
                s.e(f"ds_read_b128 {R(XA+32*c+4*x,4)}, v{XR+x} offset:{(c&1)*32768}")
        it = f"{u['name']}{c}" if u['kind'] == 'w' else f"{u['name']}{c//2}"
        assert ring.log[it][1] is not None, f"{it} read before certified"
        sl = ring.slot[it]; buf = WB + 4 * (t % 4)
        if u['kind'] == 'h5' and self.hs != sl:
            if self.hs is None:
                s.e("v_bfe_u32 v116, v0, 2, 2\nv_lshrrev_b32 v117, 5, v0\nv_lshl_add_u32 v116, v117, 3, v116\nv_lshlrev_b32 v116, 6, v116\nv_bfe_u32 v117, v0, 4, 1\nv_lshl_add_u32 v116, v117, 5, v116\nv_and_b32 v117, 3, v0\nv_lshl_add_u32 v116, v117, 3, v116")
                for j in range(4): s.e(f"s_xor_b32 s3, {sRT}, {j}\ns_lshl_b32 s3, s3, 11\ns_add_u32 s3, s3, {sl*SLOT}\nv_add_u32 v{HR+j}, s3, v116")
            else:
                for j in range(4): s.e(f"v_add_u32 v{HR+j}, {((sl-self.hs)*SLOT) & 0xffffffff:#x}, v{HR+j}")
            self.hs = sl
        for k in range(2):
            if u['kind'] == 'w':
                w = 0 if sl <= 4 else 1
                r, off = f"v{VW+4*w+p//2}", (sl - 1 - 4 * w) * SLOT + (p & 1) * 2048 + k * 512
            else: r, off = f"v{HR+p//2}", (c % 2) * 8192 + (p & 1) * 1024 + k * 256
            s.e(f"ds_read_b64_tr_b16 {R(buf+2*k,2)}, {r} offset:{off}")
    def pre(self, s, n=None):
        n = CFG['PF'] if n is None else n
        while self.nr < n: self.reads(s, self.nr); self.nr += 1
    def run(self, s, nxt=None, F=None, budget=0):
        u = self.u; ch = self.ch
        credit = 0
        if CFG['PRIO'] and not self.xp: s.e("s_setprio 1")
        self.pre(s)
        for t in range(32):
            c, p = t // 8, t % 8
            buf = WB + 4 * (t % 4)
            cin = R(u['acc'], 16) if t > 0 else "0"
            a, b = (R(buf, 4), R(XA + 4 * t, 4)) if u['trans'] else (R(XA + 4 * t, 4), R(buf, 4))
            s.e(f"{MF} {R(u['acc'],16)}, {a}, {b}, {cin}")
            if p < 2 and not (CFG.get('NOCS') and t > 0): s.e(f"v_mfma_f32_16x16x32_bf16 {R(CSA,4)}, {R(ASEL,4)}, {R(buf,4)}, {R(CSA,4) if t > 0 else '0'}")
            if self.nr < 32: self.reads(s, self.nr); self.nr += 1
            elif nxt is not None: nxt.pre(s, t - 31 + CFG['PF'])
            if self.xp and t < 25 and CFG['PAR'] == 2:
                if t % 2 == ch or ('x' in CFG['OWN'] and ch == 0): self.ring.pump(s, 2)
            elif self.xp and t < 25: self.ring.pump(s, 1)
            elif self.xp: self.ring.pace(s, CFG['ST'])
            elif self.dma and CFG['PAR']:
                if 'p' in CFG['OWN']: self.ring.pace(s, self.dma, 1)
                elif t % 2 == ch: self.ring.pace(s, 2 * self.dma, 1)
            elif self.dma: self.ring.pace(s, self.dma)
            if t == 27:
                s.e(f"s_lshl_b32 s3, {sRT}, 2\ns_add_u32 s3, s3, {SCR_CS + u['csi']*2048 + ch*1024}\nv_add_u32 v{CSA+1}, s3, {vA16}\nds_write_b32 v{CSA+1}, v{CSA}")
            if self.xp and p in (1, 3):
                for x in ((ch, ch + 2) if p == 1 else (ch + 4, ch + 6)):
                    for j in range(4):
                        r = XA + 32 * c + 4 * x + j
                        first = (c == 0 and p == 1 and x == ch and j < 2)
                        s.e(f"v_dot2_f32_bf16 v{STA+(j&1)}, v{r}, {sC11}, {'0' if first else f'v{STA+(j&1)}'}")
                        s.e(f"v_dot2_f32_bf16 v{STA+2+(j&1)}, v{r}, v{r}, {'0' if first else f'v{STA+2+(j&1)}'}")
                if t == 27:
                    q = f"v{STA+2}"
                    s.e(f"v_add_f32 v{STA}, v{STA}, v{STA+1}\nv_add_f32 v{STA+1}, v{STA+2}, v{STA+3}\nv_lshrrev_b32 {q}, 5, v0\nv_lshlrev_b32 {q}, 3, {q}\n"
                        f"v_lshl_add_u32 {q}, {vP4}, 3, {q}\ns_lshl_b32 s3, {sRT}, 10\ns_add_u32 s3, s3, {SCR_ST + ch*16}\nv_add_u32 {q}, s3, {q}\nds_write_b64 {q}, {R(STA,2)}")
            for e in self.posts.get(t, []): e(s)
            if F is not None: credit = fill(s, F, (budget(t) if callable(budget) else budget) + min(credit, CFG['CRED']))
        if CFG['PRIO'] and not self.xp: s.e("s_setprio 0")

def fill(s, F, budget, force=False):
    while budget > 0 and F:
        f = F[0]
        if isinstance(f, tuple) and f[0] == 'wait':
            if f[1] in s.marks: F.pop(0); continue
            return 0
        if isinstance(f, tuple) and f[0] == 'nextbar': f = F[0] = ('barge', s.nbar + 1)
        if isinstance(f, tuple) and f[0] == 'barge':
            if s.nbar >= f[1]: F.pop(0); continue
            return 0
        if isinstance(f, tuple) and f[0] in ('hold', 'tilt'):
            if budget <= 1: F.pop(0); continue
            return 0
        if isinstance(f, tuple) and f[0] == 'gap':
            f = F[0] = ('until', s.n_issued + f[1])
        if isinstance(f, tuple) and f[0] == 'until':
            if s.n_issued >= f[1] or force: F.pop(0); continue
            return 0
        if callable(f):
            F.pop(0); n0 = s.n_issued; f(s); budget -= max(1, (s.n_issued - n0) * 0.5); continue
        txt, tag = (f if isinstance(f, tuple) else (f, None))
        need, age = s.cost(txt)
        if not force and (need > 1 or (age is not None and age < CFG['AGE'])): return budget
        F.pop(0); s.e(txt, tag)
        k = I(txt).kind
        budget -= 2 if k == 'trans' else (0.5 if k in ('salu', 'ds', 'vm') else 1)
    return 0
def until(s, ring, F, name, every=None):
    n = 0
    while name not in s.marks:
        assert F, name
        l = len(F); fill(s, F, 1, force=True)
        assert len(F) < l, ("stuck", F[0], name, s.name)
        n += 1
        ring.pace(s, 9)
    return n
def vrun(s, ring, F, slots, every=None, flush=True):
    every = every or CFG['VD']
    while slots > 0 and F:
        l = len(F); fill(s, F, min(every, slots), force=True); slots -= every
        ring.pace(s, 9 * every)
        if len(F) == l: break
    if flush: ring.pump(s, 99)

def vseg(s, ring, F, every=None, flush=True):
    every = every or CFG['VD']
    n = 0
    for f in F:
        if isinstance(f, tuple) and f[0] in ('after', 'skip', 'wait', 'gap', 'until'): continue
        drain(s, [f]); n += 1
        ring.pace(s, 10)
    if flush: ring.pump(s, 99)
def split(F, frac, item):
    k = int(len(F) * frac)
    return F[:k] + [item] + F[k:]

def pass0(s, ring, u, ch, bl, nextname, nextneed):
    ev = {}
    for c in range(4):
        def b0(s, c=c):
            if c == 3: s.wait_tag("phi")
            bar(s, ring, f"b0{c}", [f"{u['name']}{c}", f"XL{c}", f"XH{c}"], [f"{u['name']}{c-1}"] if c else [], lg0=True, upto=nextname[0] + str(CFG['UP'][2 * c]))
            if c == 0 and ch == 0:
                lab = label()
                s.e(f"s_and_b32 s3, {sBID}, 7\ns_cmp_lg_u32 s3, 1\ns_cbranch_scc1 {lab}\ns_cmp_lg_u32 {sW}, 0\ns_cbranch_scc1 {lab}\ns_lshl_b32 s3, s87, 2")
                s.raw(f"buffer_store_dword {vOne}, {vFO}, {sDbg}, s3 offen offset:128 sc1")
                s.e(f"{lab}:")
        def bx(s, c=c):
            s.wait_regs([f"v{r}" for r in range(XA + 32 * c, XA + 32 * c + 32)])
            bar(s, ring, f"bx{c}", nextneed if c == 3 else [], [f"XL{c}", f"XH{c}"], upto=(nextname[0] + str(CFG['UP'][2 * c + 1]) if c < 3 else None))
        ev[8 * c] = [b0]; ev[8 * c + 4] = [bx]
    return MSeg(ring, u, ch, ev, {6: [late_loads(bl)], CFG['TBT']: [lambda s: touchB(s)], CFG['TWT']: [lambda s: touchW(s)]}, xpass=True, dma=1)

def stats_fin(T):
    F = [blk(f"s_lshl_b32 s4, {sRT}, 10\ns_add_u32 s4, s4, {SCR_ST}\nv_lshlrev_b32 {vT}, 3, {vP4}\nv_add_u32 {vT}, s4, {vT}"),
         f"ds_read_b128 {R(T,4)}, {vT}", f"ds_read_b128 {R(T+4,4)}, {vT} offset:16",
         blk(f"s_lshl_b32 s4, {sRT}, 7\ns_add_u32 s4, s4, {SCR_RS}\nv_add_u32 {vT}, s4, {vP4}\nv_cmp_gt_u32 s[94:95], 32, v0")]
    a, b = f"v{T}", f"v{T+1}"
    F += [f"v_add_f32 {a}, {a}, v{T+2}", f"v_add_f32 {b}, {b}, v{T+3}", f"v_add_f32 v{T+4}, v{T+4}, v{T+6}", f"v_add_f32 v{T+5}, v{T+5}, v{T+7}",
          f"v_add_f32 {a}, {a}, v{T+4}", f"v_add_f32 {b}, {b}, v{T+5}", f"v_mul_f32 {a}, 0xbb000000, {a}", f"v_mul_f32 {b}, 0x3b000000, {b}",
          f"v_fma_f32 {b}, -{a}, {a}, {b}", f"v_max_f32 {b}, 0, {b}", f"v_cvt_pk_bf16_f32 {b}, {b}, {b}", f"v_lshlrev_b32 {b}, 16, {b}",
          f"v_add_f32 {b}, 0x3727c5ac, {b}", f"v_cvt_pk_bf16_f32 {b}, {b}, {b}", f"v_lshlrev_b32 {b}, 16, {b}", f"v_sqrt_f32 {b}, {b}",
          f"v_cvt_pk_bf16_f32 {b}, {b}, {a}", f"v_lshlrev_b32 {vRS}, 16, {b}", f"v_rcp_f32 {vRS}, {vRS}",
          f"v_cndmask_b32 v{CF+2}, 0, {b}, s[94:95]", f"v_lshrrev_b32 v{CF+3}, 16, v{CF+2}",
          f"v_mul_f32 {vRSL}, 0x3fb8aa3b, {vRS}", f"v_mul_f32 {vM2}, -2.0, {vRS}", f"ds_write_b32 {vT}, {vRS}"]
    return F
def correct(u, ch, T, bias=None):
    F = [f"v_lshlrev_b32 v{T}, 2, {vP4}", f"v_add_u32 v{T}, {SCR_CS + u['csi']*2048 + ch*1024}, v{T}", f"ds_read_b128 {R(T,4)}, v{T}",
         f"v_add_f32 v{T}, v{T}, v{T+1}", f"v_add_f32 v{T+2}, v{T+2}, v{T+3}", f"v_add_f32 v{T}, v{T}, v{T+2}",
         f"v_cvt_pk_bf16_f32 v{T+1}, v{T}, v{T}", f"v_and_b32 v{CF}, 0xffff0000, v{T+1}", f"v_sub_f32 v{T}, v{T}, v{CF}", f"v_cvt_pk_bf16_f32 v{CF+1}, v{T}, v{T}"]
    if bias is not None: F.append(f"v_or_b32 v{CF}, v{CF}, v{bias}")
    a, b = (R(CF, 4), R(CF + 2, 4)) if u['trans'] else (R(CF + 2, 4), R(CF, 4))
    F.append(f"{MF} {R(u['acc'],16)}, {a}, {b}, {R(u['acc'],16)}")
    return F

def mark(name): return lambda s: s.marks.__setitem__(name, 1)
YA = [192, 208]; SA = [32, 48]
vB0, vB1 = "v5", "v24"
XW = ["v6", "v7", "v8"]; XRD = ["v11", "v12", "v13"]
LB = 128
NR = 8
def breg(t): return XA + 8 * t if t < NR else LB + 8 * (t % 4)
def bnm(ch, c): return f"B{'ab'[ch]}{c}"
def bread(ring, ch, t):
    def f(s):
        nm = bnm(ch, t // 4)
        assert ring.log[nm][1] is not None, f"{nm} read before certified"
        sl = ring.slot[nm]
        if ring.bsl != sl:
            d = ((sl - ring.bsl) * SLOT) & 0xffffffff
            s.e(f"v_add_u32 {vB0}, {d:#x}, {vB0}\nv_add_u32 {vB1}, {d:#x}, {vB1}")
            ring.bsl = sl
        for ct, r in enumerate((vB0, vB1)):
            for k in range(2):
                s.e(f"ds_read_b64_tr_b16 {R(breg(t) + 4*ct + 2*k, 2)}, {r} offset:{(t%4)*2048 + k*1024}")
    return f
def pull(ring, ch, c): return [bread(ring, ch, 4 * c + k) for k in range(4)]
def p2_setup(ring):
    def chk(s):
        assert not any(x[0][0] == 'F' for x in ring.items) and not any(x[0][0][0] == 'F' for x in ring.q)
        ring.bsl = 0
    return [chk, f"v_bfe_u32 {vB0}, v0, 2, 2", f"v_lshrrev_b32 {vB1}, 5, v0", f"v_lshl_add_u32 {vB0}, {vB1}, 2, {vB0}", f"v_lshlrev_b32 {vB0}, 7, {vB0}",
     f"v_bfe_u32 {vB1}, v0, 3, 1", f"v_lshl_add_u32 {vB0}, {vB1}, 6, {vB0}", f"v_bfe_u32 {vB1}, v0, 4, 1", f"v_lshl_add_u32 {vB0}, {vB1}, 5, {vB0}",
     f"v_and_b32 {vB1}, 3, v0", f"v_lshl_add_u32 {vB0}, {vB1}, 3, {vB0}", blk(f"s_lshl_b32 s3, {sKQ}, 5\nv_xor_b32 {vB0}, s3, {vB0}\ns_and_b32 s3, {sKQ}, 1\ns_lshl_b32 s3, s3, 13\nv_add_u32 {vB0}, s3, {vB0}"), f"v_xor_b32 {vB1}, 64, {vB0}"]

def xaddr(slots):
    F = []
    for j in range(1, 4):
        F.append(blk(f"s_xor_b32 s4, {sKQ}, {j}\ns_lshl_b32 s4, s4, 12\ns_add_u32 s4, s4, {slots[j-1]*SLOT}\nv_add_u32 {XW[j-1]}, s4, v9"))
    return F
def xwrite(acc2):
    F = []
    for j in (2, 3, 1):
        src = acc2[j >> 1] + 8 * (j & 1)
        F += [f"ds_write_b128 {XW[j-1]}, {R(src+4*h,4)} offset:{h*1024}" for h in range(2)]
    return F
def xread(slots, own, tmp):
    F = []
    for i in range(3):
        for h in range(2):
            r, off = ldsaddr(XRD, slots[i] * SLOT + h * 1024)
            F.append(f"ds_read_b128 {R(tmp+8*i+4*h,4)}, {r} offset:{off}")
    G = []
    for i in range(3):
        for j in range(8): G.append(f"v_add_f32 v{own+j}, v{own+j}, v{tmp+8*i+j}")
    return F, G
def fin_setup():
    return [blk(f"s_lshl_b32 {sUC}, {sRB}, 16\ns_lshl_b32 s4, {sRT2}, 15\ns_add_u32 {sUC}, {sUC}, s4\ns_lshl_b32 s4, {sCB}, 7\ns_add_u32 {sUC}, {sUC}, s4\ns_lshl_b32 s4, {sKQ}, 5\ns_add_u32 {sUC}, {sUC}, s4"),
            f"v_lshlrev_b32 v20, 8, {vP4}", "v_lshrrev_b32 v21, 5, v0", "v_lshl_add_u32 v20, v21, 4, v20",
            f"buffer_load_dwordx4 v[16:19], v20, {sX}, {sUC} offen",
            blk(f"s_lshl_b32 s4, {sW}, 11\nv_add_u32 v11, s4, {vA16}"), "v_add_u32 v12, 0x10000, v11", "v_add_u32 v13, 0x20000, v11"]

def aphase(s, ring, ch, F, early, late, toff):
    G = CFG['GT']
    groups = {0: (0xf, ['f1'], 0, 0), 8: (0xf, ['f2'], G[3], 128), 16: (0x5, ['f3'], G[0], 384), 20: (0xf, ['f3'], G[1], 256), 28: (0xf, ['fo'], G[2], 512)}
    pr = lambda c: [bnm(0, c), bnm(1, c)]
    bars = {8: (pr(2) + pr(3), ring.rel8), 12: ([], pr(2)), 16: (pr(4) + pr(5), pr(3)), 20: ([], pr(4)), 24: (pr(6) + pr(7), pr(5)), 30: (pr(8), pr(6))}
    if CFG['FB4']: bars = {8: (pr(2) + pr(3), ring.rel8), 16: (pr(4) + pr(5), pr(2) + pr(3)), 24: (pr(6) + pr(7), pr(4) + pr(5)), 30: (pr(8), pr(6))}
    cert = {n: k for k, v in bars.items() for n in v[0]}
    pool = list(range(224, 256, 4)) + list(early); restricted = set(early)
    late = dict(late)
    for v in late.values(): restricted |= set(v)
    areg = {}; arr = {}
    st = dict(clk=0, pipe=0, nxt=0, polled={0: 0}, checked=set(), tch=set())
    LT, LAT, QD = CFG['LT'], CFG['LAT'], CFG['QD']
    OWNY = YA[0]; OWNS = SA[0]; XT = 64
    PB = CFG['PB2']
    bars[32] = bars.pop(30)
    YB = 33 - PB
    cert = {n: k for k, v in bars.items() for n in v[0]}
    W = []
    PR = {0: vPoll, 8: vPoll, 16: 'v2', 20: 'v3', 28: 'v23'}
    PS = dict(zip((16, 20, 28), CFG['PS' + s.name[0]]))
    def issue_cost():
        st['pipe'] = max(st['pipe'], st['clk']) + (LT if 'v0' not in s.marks else CFG['LT2']); st['clk'] += 16
        return st['pipe'] + LAT
    def try_load(step, must=None):
        for m in list(late):
            if m in s.marks: pool.extend(late.pop(m))
        t = st['nxt']
        for g in sorted(groups):
            if g >= t and g not in st['polled']:
                if (g != 8 or 0 in st['checked']) and ((st['clk'] >= groups[g][2] + toff - CFG['PLT'] if g == 8 else (step >= PS[g][0] and (PS[g][0] > 0 or len(F) < CFG['PVL']))) or must == g):
                    poll_issue(s, sWs, sFL2, PR[g], imm=groups[g][3]); st['polled'][g] = max(st['pipe'], st['clk']) + LAT; st['clk'] += 16
                    log.append(f"pl{g}@{step}")
                    return True
        if must is None and st['pipe'] - st['clk'] > (QD if 'v0' not in s.marks else CFG['QD2']): return False
        bneed = cert.get(ring.q[0][0][0], 0) - CFG['BL'] if ring.q else 99
        aok = False
        if t < 36:
            ok = [r for r in pool if not (r in restricted and t > 26)]
            aok = bool(ok)
            if t in groups and t not in st['checked']:
                ready = t in st['polled'] and ((st['clk'] >= st['polled'][t] and st['clk'] >= groups[t][2] + toff) if t <= 8 else step >= PS[t][1]) and all(r in s.marks for r in groups[t][1]) and (t <= 8 or 'v0' in s.marks)
                aok = aok and (ready or must == t)
        if aok and (t <= bneed or must is not None):
            if t in groups and t not in st['checked']:
                for r in groups[t][1]:
                    n = until(s, ring, F, r)
                    if n: print("   forced", n, "fillers for", r, "in", s.name)
                poll_check(s, sWs, sFL2, groups[t][0], PR[t], imm=groups[t][3]); st['checked'].add(t); log.append(f"chk{t}@{step}/{st['clk']}")
            areg[t] = ok[0]; pool.remove(ok[0])
            base, off = (sA2y, ORDER[t] * 1024) if t < 28 else (sA2s, (t - 28) * 1024)
            s.e(f"s_add_u32 {sSoW}, {base}, {off & ~4095}\nbuffer_load_dwordx4 {R(areg[t],4)}, {vA16}, {sWs}, {sSoW} offen offset:{off & 4095} sc1")
            arr[t] = issue_cost(); st['nxt'] += 1; log.append(f"A{t}@{step}")
            return True
        if ring.q and must is None:
            half = ring.log[ring.q[0][0][0]][2] != 'all'
            ring.pump(s, 1); issue_cost()
            if half: st['pipe'] -= CFG['LT2'] // 2
            return True
        return False
    log = []
    V = []
    for t in range(36):
        vdone = 0
        while True:
            if try_load(t): continue
            if CFG['MIX'] and t in arr and st['clk'] >= arr[t] + CFG['MG'] and vdone >= CFG['MIX'] and (t < 4 or 'p1' in s.marks) and (t < 7 or 'vbar' in s.marks): break
            if F and isinstance(F[0], tuple) and F[0][0] == 'hold':
                F[0] = ('tilt', t + F[0][1])
            if F and isinstance(F[0], tuple) and F[0][0] == 'tilt' and t >= F[0][1]: F.pop(0)
            if F and not (t in arr and st['clk'] >= arr[t] and not pool and st['nxt'] < 36):
                l = len(F); n0 = s.n_issued
                fill(s, F, 6, force=True)
                st['clk'] += (s.n_issued - n0) * CFG['VC']; vdone += s.n_issued - n0
                if len(F) < l: continue
            if t not in arr:
                assert try_load(t, must=st['nxt']); continue
            if st['clk'] < arr[t] and (st['nxt'] < 36 or ring.q):
                nclk = min(arr[t], st['clk'] + 32)
                if nclk < arr[t]:
                    st['clk'] = nclk
                    if try_load(t): continue
                    continue
            break
        st['clk'] = max(st['clk'], arr[t])
        if t == 4: until(s, ring, F, 'p1')
        for ct in ((1, 0) if t in (27, 35) else (0, 1)):
            acc = (YA if t < 28 else SA)[ct]
            cin = "0" if t in (0, 28) else R(acc, 16)
            s.e(f"{MF} {R(acc,16)}, {R(breg(t)+4*ct,4)}, {R(areg[t],4)}, {cin}")
        st['clk'] += 128 if not (F and CFG['MIX']) else 48
        pool.append(areg[t])
        if 4 <= t <= 7: pool += [XA + 8 * t, XA + 8 * t + 4]
        rs_ = t + PB
        if rs_ in bars:
            if rs_ == 8:
                n = until(s, ring, F, 'vbar')
                if n: print("   forced", n, "fillers before a8 in", s.name)
            bar(s, ring, f"a{rs_}", bars[rs_][0], bars[rs_][1], lg0=True); log.append(f"|a{rs_}/{st['clk']}")
        if NR <= rs_ < 36: bread(ring, ch, rs_)(s)
        if t == 26: assert not F, F
        if t == 25:
            ys = [ring.free.pop(0) for _ in range(3)]
            drain(s, [blk(f"s_lshl_b32 s4, {sRT2}, 11\nv_add_u32 v9, s4, {vA16}")] + xaddr(ys))
        if t == 27:
            stamp('yend')(s)
            drain(s, ["v_permlane32_swap_b32 v16, v18", "v_permlane32_swap_b32 v17, v19"])
            for j in range(4): drain(s, [f"v_lshlrev_b32 v{XT+24+2*j}, 16, v{16+j}", f"v_and_b32 v{XT+25+2*j}, 0xffff0000, v{16+j}"])
            W = xwrite(YA)
        if 27 <= t < YB - 1:
            k = -(-len(W) // (YB - 1 - t))
            drain(s, W[:k]); W = W[k:]
        if t == YB - 1:
            ss = [ring.free.pop(0) for _ in range(2)] + [9]
            rdl, V = xread(ys, OWNY, XT)
            drain(s, rdl + xaddr(ss))
            for j in range(8): V.append(f"v_mul_f32 v{XT+j}, 0xbfb8aa3b, v{OWNY+j}")
            for j in range(8): V.append(f"v_exp_f32 v{XT+j}, v{XT+j}")
            for j in range(8): V.append(f"v_add_f32 v{XT+j}, 1.0, v{XT+j}")
            for j in range(8): V.append(f"v_rcp_f32 v{XT+j}, v{XT+j}")
            for j in range(8): V.append(f"v_mul_f32 v{OWNY+j}, v{OWNY+j}, v{XT+j}")
        if YB <= t < 35:
            drain(s, V[:CFG['TV']]); V = V[CFG['TV']:]
    print("   sched", s.name, " ".join(log), "end", st['clk'])
    stamp('send')(s)
    W = xwrite(SA)
    drain(s, V[:10]); V = V[10:]
    for w in W:
        drain(s, [w] + V[:6]); V = V[6:]
    drain(s, V)
    s.wait(lg=0); s.e("s_barrier")
    rdl, V = xread(ss, OWNS, XT)
    if CFG['PKT']:
        V = [pk2("add", XT + j, XT + j, XT + 8 + j) for j in range(0, 8, 2)] + [pk2("add", OWNS + j, OWNS + j, XT + 16 + j) for j in range(0, 8, 2)] + [pk2("add", OWNS + j, OWNS + j, XT + j) for j in range(0, 8, 2)]
    drain(s, rdl + V)
    for j in range(8): s.e(f"v_fma_f32 v{OWNS+j}, v{OWNS+j}, v{OWNY+j}, v{XT+24+j}")
    for j in range(4): s.e(f"v_cvt_pk_bf16_f32 v{16+j}, v{OWNS+2*j}, v{OWNS+2*j+1}")
    s.e("v_permlane32_swap_b32 v16, v18\nv_permlane32_swap_b32 v17, v19")
    s.e(f"buffer_store_dwordx4 v[16:19], v20, {sOut}, {sUC} offen")
    stamp('st')(s)
    if PROFILE:
        s.raw("s_waitcnt vmcnt(0) lgkmcnt(0)")
        stamp("end")(s)
        s.raw("s_waitcnt lgkmcnt(0)")
        n = len(s.snames)
        for i in (n - 2, n - 1): s.raw(f"v_writelane_b32 v29, s{STAMP0+2*(i%4)}, {i}")
        s.e(f"v_subrev_u32 v29, s96, v29\nv_lshlrev_b32 v16, 2, v0")
        s.raw("s_memrealtime s[84:85]\ns_waitcnt lgkmcnt(0)\nv_writelane_b32 v29, s58, 62\nv_writelane_b32 v29, s84, 63")
        s.e(f"s_lshl_b32 s3, {sBID}, 11\ns_lshl_b32 s4, {sW}, 8\ns_add_u32 s3, s3, s4\ns_add_u32 s3, s3, {PROF_OFF}")
        s.e(f"buffer_store_dword v29, v16, {sWs}, s3 offen")
        if CFG.get('DBG') is not None:
            lab = label()
            s.e(f"s_cmp_lg_u32 {sBID}, {CFG['DBG']}\ns_cbranch_scc1 {lab}\ns_cmp_lg_u32 {sW}, 0\ns_cbranch_scc1 {lab}")
            idx = list(range(n - 1, -1, -3))[:16][::-1]
            for k, i in enumerate(idx):
                s.raw(f"v_readlane_b32 s4, v29, {i}\ns_nop 1\nv_mov_b32 v17, s4\nbuffer_store_dword v17, {vFO}, {sDbg}, 0 offen offset:{4*k}\ns_nop 1")
            s.e(f"{lab}:")
            if s.name in ('A0', 'B0'): print("DBG", s.name, [s.snames[i] for i in idx])
        open(f"snames_{s.name}.txt", "w").write(" ".join(s.snames))
    s.e("s_endpgm")
    s.slots = (dict(ring.slot), ys, ss)
    print("   ring", s.name, " ".join(f"{k}:{v[0]}>{v[1]}" for k, v in ring.log.items()))

SCR_DUM = SCR + 15360
def touchB(s):
    if not CFG['TB']: return
    s.e(f"s_lshl_b32 s4, {sBID}, 3\ns_add_u32 s4, s4, {sW}\ns_mul_i32 s5, s4, 896\ns_lshl_b32 s4, s4, 8\ns_mov_b32 m0, {SCR_DUM}")
    s.e(f"v_min_u32 {vT}, 6, v0\nv_lshlrev_b32 {vT}, 7, {vT}")
    s.e(f"buffer_load_dword {vT}, {sW2}, s5 offen lds")
    s.e(f"v_min_u32 {vT}, 1, v0\nv_lshlrev_b32 {vT}, 7, {vT}")
    s.e(f"buffer_load_dword {vT}, {sWo}, s4 offen lds")
def touchW(s):
    if not CFG['TW']: return
    s.e(f"s_lshl_b32 s4, {sBID}, 3\ns_add_u32 s4, s4, {sW}\ns_mul_i32 s5, s4, 896\ns_mul_i32 s4, s4, 768\ns_mov_b32 m0, {SCR_DUM}")
    s.e(f"v_min_u32 {vT}, 6, v0\nv_lshlrev_b32 {vT}, 7, {vT}")
    s.e(f"buffer_load_dword {vT}, {sW1}, s5 offen lds")
    s.e(f"v_min_u32 {vT}, 5, v0\nv_lshlrev_b32 {vT}, 7, {vT}")
    s.e(f"buffer_load_dword {vT}, {sWq}, s4 offen lds")
def touch2(c, hf=None):
    def f(s):
        if c == 0 and not hf:
            if hf is None: s.e(f"s_lshl_b32 s4, s87, 3")
            else: s.e(f"s_lshr_b32 s4, s87, 4\ns_lshl_b32 s4, s4, 3\ns_and_b32 s5, s87, 7\ns_add_u32 s4, s4, s5\ns_lshl_b32 s4, s4, 3")
            s.e(f"s_add_u32 s4, s4, {sW}\ns_lshr_b32 s5, s4, 6\ns_and_b32 s4, s4, 63\ns_lshl_b32 s4, s4, 10\n"
                f"s_mul_i32 s90, s5, {448*1024}\ns_add_u32 s90, s90, s4\ns_lshl_b32 s91, s5, 17\ns_add_u32 s91, s91, s4")
        s.e(f"s_mov_b32 m0, {SCR_DUM}")
        h = hf or 0
        if c < 7: s.e(f"s_add_u32 {sSoW}, s90, {ORDER[4*c]*16384 + h*896*1024}\nbuffer_load_dwordx4 {vA16}, {sW2}, {sSoW} offen lds")
        else: s.e(f"s_add_u32 {sSoW}, s91, {(c-7)*65536 + h*256*1024}\nbuffer_load_dwordx4 {vA16}, {sWo}, {sSoW} offen lds")
    return f
def touch3(c, ch):
    def f(s):
        wv = CFG['T3W'][c]
        if wv // 4 != ch: return
        lab = label()
        s.e(f"s_cmp_lg_u32 {sW}, {wv}\ns_cbranch_scc1 {lab}")
        mul = 448 * 1024 if c < 7 else 128 * 1024
        off = ORDER[4 * c] * 16384 if c < 7 else (c - 7) * 65536
        s.e(f"s_lshr_b32 s90, s87, 3\ns_mul_i32 s90, s90, {mul}\ns_and_b32 s91, s87, 7\ns_lshl_b32 s91, s91, 13\ns_add_u32 s90, s90, s91\ns_add_u32 s90, s90, {off}\ns_mov_b32 m0, {SCR_DUM}")
        s.e(f"v_lshlrev_b32 v{CSA+3}, 7, v0")
        s.raw(f"buffer_load_dword v{CSA+3}, {sW2 if c < 7 else sWo}, s90 offen lds")
        s.e(f"{lab}:")
    return f
def add_touch(segs, typ):
    if CFG['T2'] == 3:
        for c, at in enumerate(CFG['T2AT']): segs[at // 32].posts.setdefault(at % 32, []).append(touch3(c, segs[0].ch))
    for c, at in enumerate(CFG['T2AT']):
        if CFG['T2'] == 1: segs[at // 32].posts.setdefault(at % 32, []).append(touch2(c))
        if CFG['T2'] == 2 and typ == 'A':
            segs[at // 32].posts.setdefault(at % 32, []).append(touch2(c, 0))
            segs[(at + 2) // 32].posts.setdefault((at + 2) % 32, []).append(touch2(c, 1))

def touchA(t0, n, mask, T, T2, vp=vPoll):
    def f(s):
        if not CFG['TA']: return
        lab = label()
        s.e(f"v_min_u32 {T}, {n-1}, v0")
        if t0 < 28 and n > 4:
            d = ORDER[t0 + 4] - ORDER[t0] - 4
            s.e(f"v_lshrrev_b32 {T2}, 2, {T}\nv_mul_u32_u24 {T2}, {d}, {T2}\nv_add_u32 {T}, {T}, {T2}")
        off = ORDER[t0] * 1024 if t0 < 28 else 0
        s.e(f"v_lshlrev_b32 {T}, 10, {T}\ns_lshl_b32 {sSoW}, {sCB}, 7\ns_add_u32 {sSoW}, {sSoW}, {sA2y if t0 < 28 else sA2s}\ns_add_u32 {sSoW}, {sSoW}, {off}\ns_mov_b32 m0, {SCR_DUM}")
        s.e(f"v_cmp_ne_u32 vcc, 0, {vp}\ns_andn2_b32 {sT0}, {mask:#x}, vcc_lo\ns_cbranch_scc1 {lab}")
        s.raw(f"buffer_load_dword {T}, {sWs}, {sSoW} offen sc1 lds")
        s.e(f"{lab}:")
    return f

def ilv(st, co):
    out = st[:3] + co[:3] + [st[3]]
    a, b = st[4:], co[3:-1]
    while a or b:
        if a: out.append(a.pop(0))
        if a and len(a) > 2 * len(b): out.append(a.pop(0))
        if b: out.append(b.pop(0))
    return out + co[-1:]
def p0_items(a, b):
    it = []
    for c in range(4): it += x_items(c) + [a[c]]
    return it + b
def packin(acc): return [f"v_cvt_pk_bf16_f32 v{acc+j}, v{acc+2*j}, v{acc+2*j+1}" for j in range(8)]
def N(n, lo, hi): return [f"{n}{c}" for c in range(lo, hi)]
def initchk(s):
    poll_check(s, sDbg, "0", 0xffffffff, imm=128); s.marks["init"] = 1
initpoll = lambda s: poll_issue(s, sDbg, "0", imm=128)
pollA = lambda s: poll_issue(s, sWs, sFL2)

def stream_A(s0, ch):
    CB, DB = CFG['CB'], CFG['DB']
    s = s0.fork(f"A{ch}"); s.e(f"L_typeA{ch}:")
    bl = BIASL['A']
    items = p0_items(w_items("K", sWq, vDq, sUA, 3072), w_items("V", sWq, vDq, sUB, 3072)) + w_items("H", sW1, vD1, sUC, 3584) + b_items(0)
    ring = Ring(items, range(9), ch); ring.hold = ('XL3', 'XH3'); ring.upto0 = "V3"
    start(s, ring, 'K')
    s.e(f"s_lshl_b32 {sSCRW}, {sW}, 12\ns_add_u32 {sSCRW}, {sSCRW}, {2*SLOT}")
    s.marks.update(f1=1, f2=1, fo=1)
    uK = dict(name="K", acc=ACC_A, trans=True, kind='w', csi=0)
    uV = dict(name="V", acc=ACC_B, trans=False, kind='w', csi=1)
    uH = dict(name="H", acc=ACC_C, trans=True, kind='w', csi=0)
    F = [('wait', 'c1')] + ilv(stats_fin(PT), correct(uK, ch, PT + 8))
    F += ["v_lshrrev_b32 v26, 5, v0", "v_lshlrev_b32 v26, 1, v26", "v_bfe_u32 v25, v0, 1, 2", "v_xor_b32 v26, v25, v26", f"v_lshlrev_b32 v25, 4, {vP4}", "v_lshl_add_u32 v25, v26, 4, v25",
          f"v_add_u32 v25, {sSCRW}, v25", "v_xor_b32 v24, 16, v25"]
    F += packin(ACC_A)
    F += [f"{MF} {R(PT,16)}, {R(PHI,4)}, {R(ACC_A,4)}, 0", f"{MF} {R(ACC_C,16)}, {R(PHI+4,4)}, {R(ACC_A+4,4)}, 0", ('gap', 12)]
    for h, P in enumerate((PT, ACC_C)):
        if h == 1 and CFG['PKA']:
            sm = softmax_pk(P, ACC_A + 8, "v26", vT, PHI); F += sm[:9] + [('wait', 'c2')] + sm[9:]
        else: F += softmax(P, ACC_A + 8, "v26", vT)
        F += [f"ds_write_b128 v25, {R(ACC_A+8,4)} offset:{2048*h}", f"ds_write_b128 v24, {R(ACC_A+12,4)} offset:{2048*h}"]
    F += [('wait', 'c2')]
    F += ["v_lshrrev_b32 v26, 5, v0", "v_lshlrev_b32 v26, 4, v26", blk(f"s_lshl_b32 s4, {sRT}, 7\ns_add_u32 s4, s4, {SCR_RS}\nv_add_u32 {vT}, s4, v26")]
    for q in range(4): F.append(f"ds_read_b128 {R(PT+4*q,4)}, {vT} offset:{32*q}")
    F += ["v_bfe_u32 v25, v0, 2, 2", "v_lshlrev_b32 v25, 6, v25", "v_lshl_add_u32 v25, v26, 4, v25", f"v_bfe_u32 {vT}, v0, 4, 1", f"v_cmp_eq_u32 s[94:95], 1, {vT}",
          "v_lshrrev_b32 v24, 5, v0", f"v_xor_b32 {vT}, v24, {vT}", f"v_lshl_add_u32 v25, {vT}, 5, v25",
          "v_lshrrev_b32 v24, 2, v0", "v_xor_b32 v24, v24, v0", "v_bfe_u32 v24, v24, 1, 1", "v_lshl_add_u32 v25, v24, 4, v25",
          f"v_and_b32 {vT}, 1, v0", f"v_lshl_add_u32 v25, {vT}, 3, v25", f"v_add_u32 v25, {sSCRW}, v25", f"v_mov_b32 {vT}, {sC11}"]
    for t in range(2):
        for rd in range(2): F.append(f"ds_read_b64_tr_b16 {R(PHI+4*t+2*rd,2)}, v25 offset:{2048 + t*1024 + rd*512}")
    F += [pk2("mul", ACC_B + r, ACC_B + r, PT + r) for r in range(0, 16, 2)] if CFG['PKA'] else [f"v_mul_f32 v{ACC_B+r}, v{ACC_B+r}, v{PT+r}" for r in range(16)]
    F += packin(ACC_B)
    for t in range(2):
        for rd in range(2): F.append(f"ds_read_b64_tr_b16 {R(ACC_B+8+4*t+2*rd,2)}, v25 offset:{t*1024 + rd*512}")
    for j in range(8): F.append(f"v_cndmask_b32 v{ACC_A+8+j}, {vT}, v{ACC_B+j}, s[94:95]")
    for j in range(8): F.append(f"v_cndmask_b32 v{ACC_A+j}, v{ACC_B+j}, {vT}, s[94:95]")
    F += [f"{MF} {R(PT,16)}, {R(ACC_A,4)}, {R(ACC_B+8,4)}, 0", f"{MF} {R(PT,16)}, {R(ACC_A+4,4)}, {R(ACC_B+12,4)}, {R(PT,16)}",
          f"{MF} {R(ACC_B,16)}, {R(ACC_A+8,4)}, {R(PHI,4)}, 0", f"{MF} {R(ACC_B,16)}, {R(ACC_A+12,4)}, {R(PHI+4,4)}, {R(ACC_B,16)}"]
    F += [f"v_add_u32 v25, {sSCRW}, {vA16}", blk(f"s_lshl_b32 s4, {sW}, 9\ns_add_u32 s4, s4, {SCR_Z}\nv_lshlrev_b32 v26, 2, v0\nv_add_u32 v26, s4, v26")]
    F += [f"ds_write_b128 v25, {R(PT,4)}", f"ds_write_b128 v25, {R(PT+4,4)} offset:1024", f"ds_write_b32 v26, v{PT+8}",
          f"ds_write_b128 v25, {R(ACC_B+8,4)} offset:2048", f"ds_write_b128 v25, {R(ACC_B+12,4)} offset:3072", f"ds_write_b32 v26, v{ACC_B} offset:256"]
    F += [blk(f"s_lshl_b32 s4, {sRT}, 10\ns_add_u32 s4, s4, {2*SLOT + ch*SLOT}\nv_add_u32 v25, s4, {vA16}"),
          blk(f"s_lshr_b32 s4, {sRT}, 1\ns_lshl_b32 s4, s4, 8\ns_add_u32 s4, s4, {SCR_Z + ch*2048}\nv_add_u32 v26, s4, {vP4}"), mark('kvw')]
    ER = [f"ds_read_b128 {R(PT+4*r,4)}, v25 offset:{r*4096}" for r in range(4)] + [f"ds_read_b32 v{ACC_A+r}, v26 offset:{r*512}" for r in range(4)]
    ER += ["v_lshrrev_b32 v25, 5, v0", f"v_lshl_add_u32 v25, v25, 9, {vP4}", blk(f"s_lshl_b32 s5, {sRT2}, 10\nv_add_u32 v25, s5, v25"),
           f"v_lshrrev_b32 {vT}, 4, v0", f"v_cmp_eq_u32 s[94:95], {sRT2}, {vT}", f"v_mov_b32 {vT}, {BIG}",
           blk(f"s_and_b32 s5, {sG}, 1\ns_mul_i32 s5, s5, {10*1024}\ns_add_u32 s5, s5, {ch*2048}\ns_add_u32 {sUD}, {sKS}, s5\ns_lshl_b32 s4, {sI}, 7\ns_add_u32 {sKVF}, {sKVF}, s4"),
           f"v_cndmask_b32 v26, {vT}, {vP4}, s[94:95]"]
    for j in range(4): ER += [f"v_add_f32 v{PT+j}, v{PT+j}, v{PT+4+j}", f"v_add_f32 v{PT+8+j}, v{PT+8+j}, v{PT+12+j}"]
    for j in range(4): ER.append(f"v_add_f32 v{PT+j}, v{PT+j}, v{PT+8+j}")
    ER += [f"v_add_f32 v{ACC_A}, v{ACC_A}, v{ACC_A+1}", f"v_add_f32 v{ACC_A+2}, v{ACC_A+2}, v{ACC_A+3}", f"v_add_f32 v{ACC_A}, v{ACC_A}, v{ACC_A+2}"]
    for j in range(4): ER.append((f"buffer_atomic_add_f32 v{PT+j}, v25, {sWs}, {sKVs} offen offset:{j*128}", "kv"))
    ER += [(f"buffer_atomic_add_f32 v{ACC_A}, v26, {sWs}, {sKVs} offen offset:2048", "kv"), stamp('kvat')]
    EH = correct(uH, ch, PHI, BI0) + fin_setup() + (mish_pk if CFG['PKH'] else mish)(ACC_C, PT + 8, sUD, "actA")
    fkv = flag_store("kv", sKVF, 0, 'fkv'); f3 = flag_store("actA", sFL, 2 * 128, 'f3')
    pr = lambda c: [bnm(0, c), bnm(1, c)]
    m0 = pass0(s, ring, uK, ch, bl, "V3", ["V0"])
    mV = MSeg(ring, uV, ch, {CB: [B(ring, "c1", ["V1", "V2"], ["K3"])], DB: [B(ring, "d1", ["V3", "H0"], N("V", 0, 2))]}, dma=CFG['ST'])
    if CFG['EA']:
        def h1(s):
            until(s, ring, FH, 'erd')
            bar(s, ring, "h1", [], ["H0"] + pr(0), extra=[2, 3])
        mH = MSeg(ring, uH, ch, {15: [h1], DB + 2: [B(ring, "h2", ["H3"] + pr(1), ["H1"])]},
              {6: [lambda s: drain(s, p2_setup(ring))], 7: pull(ring, ch, 0)[:2], 8: pull(ring, ch, 0)[2:], 22: pull(ring, ch, 1)[:2], 24: pull(ring, ch, 1)[2:], 27: [pollA], CFG['KVW']: [fkv]}, dma=CFG['ST'])
    else:
        mH = MSeg(ring, uH, ch, {DB: [B(ring, "h2", ["H3"] + pr(0), N("H", 0, 2), extra=[2, 3])]},
                  {18: [lambda s: drain(s, p2_setup(ring))], 22: pull(ring, ch, 0)[:2], 24: pull(ring, ch, 0)[2:], 27: [pollA], CFG['KVW']: [fkv]}, dma=CFG['ST'])
    m0.posts.setdefault(29, []).append(lambda s: drain(s, phi_frags()))
    add_touch([m0, mV, mH], 'A')
    mV.posts.setdefault(30, []).append(initpoll)
    m0.run(s, mV); mV.run(s, None, F, CFG['KB'] + CFG['KD'] * (1 - 2 * ch))
    bar(s, ring, "c2", [], N("V", 2, 4), lg0=True)
    print("   A V-only block:", len(F))
    VB_ = correct(uV, ch, WB) + F + [initchk, mH.pre]
    if CFG.get('VST'):
        for k in range(len(VB_) // 12 * 12, 0, -12): VB_.insert(k, stamp(f"v{k}"))
    vseg(s, ring, VB_, flush=False)
    bar(s, ring, "d2", ["H1", "H2"] + (pr(0) if CFG['EA'] else []))
    FH = list(ER) + [mark('erd')]
    mH.run(s, None, FH, CFG['VB'])
    assert not FH
    if CFG['EA']:
        bar(s, ring, "e1", [], N("H", 2, 4) + pr(1), lg0=True); ring.rel8 = []
    else:
        bar(s, ring, "e1", pr(1), N("H", 2, 4) + pr(0), lg0=True)
        drain(s, pull(ring, ch, 1))
        ring.rel8 = pr(1)
    s.marks.update(vbar=1, p1=1)
    F = EH + [mark('v1'), mark('v0'), ('hold', CFG['F3G']), f3]
    aphase(s, ring, ch, F, list(range(36, 64, 4)) + list(range(80, 96, 4)) + [100, 120, 124], {'v1': [104, 108, 112, 116]}, CFG['TOFF'])
    return s

def stream_B(s0, ch):
    CB, DB = CFG['CB'], CFG['DB']
    s = s0.fork(f"B{ch}"); s.e(f"L_typeB{ch}:")
    bl = BIASL['B']
    H5 = [(f"F{c}", sW1, vD5, sUD, 0, 16 * 3584, 0, 128 * 3584, lambda hf, c=c: 2 * c + hf) for c in range(2)]
    items = p0_items(w_items("U", sW1, vD1, sUA, 3584), w_items("Y", sW1, vD1, sUB, 3584))
    Qi = w_items("Q", sWq, vDq, sUC, 3072); bi = b_items(1)
    items += H5 + [Qi[0]] + bi[:2] + [Qi[1], Qi[2]] + bi[2:4] + [Qi[3]] + bi[4:] if CFG['EB'] else H5 + Qi + bi
    ring = Ring(items, range(9), ch); ring.upto0 = "Y3"; ring.strict = bool(CFG['EB'])
    start(s, ring, 'U')
    s.e(f"s_and_b32 s5, {sG}, 1\ns_cmp_eq_u32 s5, 0\ns_cselect_b32 s5, 4, 2\ns_cselect_b32 s4, {12*1024}, 0\ns_lshl_b32 s5, s5, 10\n"
        f"s_add_u32 {sSCRW}, {sKS}, s4\ns_add_u32 s5, s5, {ch*2048}\ns_add_u32 {sKS}, {sKS}, s5")
    uU = dict(name="U", acc=ACC_A, trans=True, kind='w', csi=0)
    uY = dict(name="Y", acc=ACC_B, trans=True, kind='w', csi=1)
    uF = dict(name="F", acc=ACC_C, trans=True, kind='h5', csi=0)
    uQ = dict(name="Q", acc=ACC_A, trans=True, kind='w', csi=1)
    EU = ilv(stats_fin(PT), correct(uU, ch, PT + 8, BI0)) + [('gap', 14)] + mish(ACC_A, PT, sKS, "act1") + [f"s_add_u32 {sKS}, {sKS}, 4096"]
    EY = correct(uY, ch, PT + 8, BI1) + [mark('b1dead'), ('gap', 16)] + mish(ACC_B, PT, sKS, "act2")
    EF = correct(uF, ch, PT + 8, BI2) + [('gap', 16)] + mish(ACC_C, PT, sSCRW, "act5")
    EQ = correct(uQ, ch, PT + 12) + phi_frags() + pack16(ACC_A, PK)
    EQ += [f"{MF} {R(PT,16)}, {R(PHI,4)}, {R(PK,4)}, 0", f"{MF} {R(ACC_B,16)}, {R(PHI+4,4)}, {R(PK+4,4)}, 0"] + fin_setup()
    if CFG['PK']: EQ += softmax_pk(PT, ACC_A, "v26", vT, PHI) + softmax_pk(ACC_B, ACC_A + 8, "v26", vT, PHI)
    else: EQ += softmax(PT, ACC_A, "v26", vT) + softmax(ACC_B, ACC_A + 8, "v26", vT)
    f1 = flag_store("act1", sFL, 0, 'f1'); f2 = flag_store("act2", sFL, 128, 'f2'); f3 = flag_store("act5", sFL, 3 * 128, 'f3')
    pr = lambda c: [bnm(0, c), bnm(1, c)]
    FG = ('gap', CFG['FG'])
    F = [('wait', 'c1')] + EU + [mark('m1'), ('wait', 'c2')] + split(EY, 0.6, lambda s: (initchk(s), f1(s))) + [mark('m2')]
    if ch == 0: F += [('wait', 'c3')] + split(EF, 0.6, f2) + [mark('m3')]
    else: F += [FG, f2, mark('m3'), mark('f3')]
    m0 = pass0(s, ring, uU, ch, bl, "Y3", ["Y0"])
    mY = MSeg(ring, uY, ch, {CB: [B(ring, "c1", ["Y1", "Y2"], ["U3"])], DB: [B(ring, "d1", ["Y3", "F0"], N("Y", 0, 2))]}, dma=CFG['ST'])
    c2 = B(ring, "c2", ["F1", "Q0"], N("Y", 2, 4), owner=1)
    if CFG['EB']:
        mQ = MSeg(ring, uQ, ch, {CB: [B(ring, "c3", ["Q1", "Q2"] + pr(0), ["F0", "F1"])], 15: [B(ring, "q1", pr(1), pr(0) + ["Q0"])], DB + 2: [B(ring, "d3", ["Q3"], ["Q1"] + pr(1))]},
              {5: [lambda s: (until(s, ring, F, 'b1dead'), drain(s, p2_setup(ring)))], 7: pull(ring, ch, 0)[:2], 8: pull(ring, ch, 0)[2:], 15: pull(ring, ch, 1)[:2], 16: pull(ring, ch, 1)[2:], 27: [pollA]}, dma=CFG['ST'])
    else:
        mQ = MSeg(ring, uQ, ch, {CB: [B(ring, "c3", ["Q1", "Q2"], ["F0", "F1"])], DB: [B(ring, "d3", ["Q3"] + pr(0), N("Q", 0, 2))]},
                  {15: [lambda s: (until(s, ring, F, 'b1dead'), drain(s, p2_setup(ring)))], 22: pull(ring, ch, 0)[:2], 24: pull(ring, ch, 0)[2:], CFG['TAP']: [pollA], CFG['TAT']: [touchA(0, 8, 0xf, 'v160', 'v161')], 27: [pollA]}, dma=CFG['ST'])
    add_touch([m0, mY, mQ], 'B')
    mY.posts.setdefault(28, []).append(initpoll)
    m0.run(s, mY)
    if ch == 0:
        mF = MSeg(ring, uF, ch, {CB: [c2]}, dma=CFG['ST'] // 2)
        mY.run(s, mF, F, CFG['P1B'] + CFG['PD']); mF.run(s, mQ, F, CFG['FB'])
    else:
        mY.run(s, None, F, CFG['P1B'] - CFG['PD']); c2(s); vrun(s, ring, F, CFG['IB']); mQ.pre(s)
    print("   B forced m1:", until(s, ring, F, 'm1'))
    mQ.run(s, None, F, CFG['QB'][ch])
    KS, OD, OD2, OF, OP = WB, PT, ACC_B, PHI, PK
    def kvfetch(s):
        poll_check(s, sWs, sKVF, 0xffff, vPoll2, vo="v21")
        s.e(f"s_lshl_b32 s5, {sRT2}, 10\ns_add_u32 s5, s5, {sKVs}")
        s.e(f"buffer_load_dwordx4 {R(KS,4)}, {vA16}, {sWs}, s5 offen sc1")
        s.e(f"v_and_b32 v21, 3, v0\nv_lshlrev_b32 v21, 4, v21\ns_lshl_b32 s5, {sRT2}, 6\ns_add_u32 s5, s5, {sKVs}")
        s.e(f"buffer_load_dwordx4 {R(KS+4,4)}, v21, {sWs}, s5 offen offset:2048 sc1")
    IM = [f"v_cvt_pk_bf16_f32 v{KS}, v{KS}, v{KS+1}", f"v_cvt_pk_bf16_f32 v{KS+1}, v{KS+2}, v{KS+3}",
          f"v_cvt_pk_bf16_f32 v{KS+4}, v{KS+4}, v{KS+5}", f"v_cvt_pk_bf16_f32 v{KS+5}, v{KS+6}, v{KS+7}",
          blk(f"s_mul_i32 s5, {sKQ}, 1088\ns_add_u32 s5, s5, {SCR_KV}\ns_lshl_b32 s4, {sRT2}, 9\ns_add_u32 s4, s4, s5\nv_lshlrev_b32 v25, 3, v0\nv_add_u32 v25, s4, v25\n"
              f"ds_write_b64 v25, {R(KS,2)}\ns_lshl_b32 s4, {sRT2}, 5\ns_add_u32 s4, s4, s5\nv_lshrrev_b32 v21, 1, v21\nv_add_u32 v21, s4, v21\nds_write_b64 v21, {R(KS+4,2)} offset:1024"),
          f"v_min_u32 v25, 64, {vP4}", "v_lshlrev_b32 v25, 4, v25", "v_lshrrev_b32 v26, 5, v0", "v_lshl_add_u32 v25, v26, 5, v25",
          blk(f"v_add_u32 v25, {SCR_KV + ch*2176}, v25\ns_lshl_b32 s5, {sG}, 12\ns_add_u32 s5, s5, {sAF}\ns_add_u32 {sSCRW}, s5, {112*1024 + ch*2048}")]
    O = [f"ds_read_b128 {R(OF,4)}, v25", f"ds_read_b128 {R(OF+4,4)}, v25 offset:16", f"ds_read_b128 {R(OP,4)}, v25 offset:1088", f"ds_read_b128 {R(OP+4,4)}, v25 offset:1104"]
    O += [f"{MF} {R(OD,16)}, {R(OF,4)}, {R(ACC_A,4)}, 0", f"{MF} {R(OD,16)}, {R(OF+4,4)}, {R(ACC_A+4,4)}, {R(OD,16)}",
          f"{MF} {R(OD2,16)}, {R(OP,4)}, {R(ACC_A+8,4)}, 0", f"{MF} {R(OD2,16)}, {R(OP+4,4)}, {R(ACC_A+12,4)}, {R(OD2,16)}"]
    for h, D in enumerate((OD, OD2)):
        O += [f"v_add_f32 v26, 0x358637bd, v{D+8}", "v_rcp_f32 v26, v26"]
        for j in range(8): O.append(f"v_mul_f32 v{D+j}, v{D+j}, v26")
        for j in range(4): O.append(f"v_cvt_pk_bf16_f32 v{ACC_A+4*h+j}, v{D+2*j}, v{D+2*j+1}")
        O.append((f"buffer_store_dwordx4 {R(ACC_A+4*h,4)}, {vA16}, {sWs}, {sSCRW} offen offset:{h*1024} sc1", "o"))
    O.append(stamp('ost'))
    if CFG['EB']: bar(s, ring, "e1", [], N("Q", 2, 4), lg0=True)
    else:
        bar(s, ring, "e1", pr(1), N("Q", 2, 4) + pr(0), lg0=True)
        drain(s, pull(ring, ch, 1))
    s.marks['p1'] = 1
    ring.rel8 = []
    def ins(L, back, item): return L[:len(L) - back] + [item] + L[len(L) - back:]
    F2 = F + EQ
    if ch == 0: F2 = ins(F2, 110, f3)
    kp = lambda s: (s.e("v_min_u32 v21, 15, v0\nv_lshlrev_b32 v21, 7, v21"), poll_issue(s, sWs, sKVF, vPoll2, vo="v21"))
    K1, K2, K3 = CFG['KS']
    if CFG['KM'] == 0:
        F2 = ins(ins(F2, CFG['KP'], kp), CFG['KF'], kvfetch)
        F2 += IM + [B(ring, "e2", [], [] if CFG['EB'] else pr(1), lg0=True), mark('vbar')] + O + [mark('v1'), mark('v0'), ('hold', CFG['OW']), flag_store("o", sFL, 4 * 128, 'fo')]
    elif CFG['KM'] == 2:
        s.marks['vbar'] = 1
        F2 = ins(ins(F2, CFG['KP'], kp), CFG['KF'], kvfetch)
        F2 += [mark('v0')] + IM + [('nextbar',)] + O + [mark('v1'), ('hold', CFG['OW']), flag_store("o", sFL, 4 * 128, 'fo')]
    else: F2 += [mark('v0'), mark('vbar'), ('tilt', K1), kp, ('tilt', K2), kvfetch, ('tilt', K3)] + IM + [('nextbar',)] + O + [mark('v1'), ('hold', CFG['OW']), flag_store("o", sFL, 4 * 128, 'fo')]
    ring.rel8 = pr(1) if (CFG['KM'] and not CFG['EB']) else []
    aphase(s, ring, ch, F2, [88, 92], {'f3': [64, 68, 72, 76], 'v1': [80, 84] + list(range(40, 64, 4)) + list(range(96, 128, 4))}, 0)
    return s

def build(path, listform=True):
    s0 = Stream("P")
    if PROFILE: s0.e("s_memtime s[96:97]\ns_memrealtime s[58:59]")
    prologue(s0)
    s0.e(f"s_lshl_b32 s5, {sTY}, 1\ns_add_u32 s5, s5, {sCH}\ns_cmp_eq_u32 s5, 0\ns_cbranch_scc1 L_typeA0\ns_cmp_eq_u32 s5, 1\ns_cbranch_scc1 L_typeA1\ns_cmp_eq_u32 s5, 3\ns_cbranch_scc1 L_typeB1")
    B0 = stream_B(s0, 0); B1 = stream_B(s0, 1); A0 = stream_A(s0, 0); A1 = stream_A(s0, 1)
    assert B0.nbar == B1.nbar and A0.nbar == A1.nbar
    assert B0.slots == B1.slots and A0.slots == A1.slots
    hdr = open("recurrent_scan__linear_kernel_hedgehog__dense_activation_mish__prompt.s.ref").read().split("; Override")[0]
    T = [hdr.rstrip(), f"; @launch {'kernel=' + KNAME + ' ' if listform else ''}grid=(256,1,1) block=(512,1,1) lds=163840",
         '.amdgcn_target "amdgcn-amd-amdhsa--gfx950"', ".text", f".globl {KNAME}", ".p2align 8", f".type {KNAME},@function", f"{KNAME}:"]
    S = [s0, B0, B1, A0, A1]
    for st in S:
        T.append(f"; ---- stream {st.name}  nops={st.stats['nop']} waits={st.stats['wait']} barriers={st.nbar}")
        T.append(st.text())
    for st in S: T += st.ool
    T.append("L_end:\n  s_endpgm")
    T.append(".fill 6144, 4, 0xbf800000")
    T.append(f'''.section .rodata,"a"
.p2align 6
.amdhsa_kernel {KNAME}
  .amdhsa_next_free_vgpr 256
  .amdhsa_next_free_sgpr 102
  .amdhsa_accum_offset 256
  .amdhsa_group_segment_fixed_size 0
  .amdhsa_kernarg_size 88
  .amdhsa_user_sgpr_count 2
  .amdhsa_user_sgpr_kernarg_segment_ptr 1
  .amdhsa_system_sgpr_workgroup_id_x 1
.end_amdhsa_kernel''')
    open(path, "w").write("\n".join(T) + "\n")
    for st in S: print(st.name, "instrs", len(st.out), st.stats, "barriers", st.nbar)

if __name__ == "__main__":
    for a in sys.argv[2:]:
        if a == "prof": PROFILE = True
        elif '=' in a:
            k, v = a.split('='); CFG[k] = eval(v)
    build(sys.argv[1], listform=("final" not in sys.argv))
```

```python
import sys
sys.path.insert(0, 'gen')
from ab import *

KNAME = "recurrent_scan__linear_kernel_hedgehog__dense_activation_mish__prompt_kernel"
PROFILE = False
SLOT = 16384
SCR = 9 * SLOT
SCR_PHI = SCR
SCR_RS = SCR + 2048
SCR_ST = SCR + 2560
SCR_CS = SCR + 6656
SCR_Z = SCR + 10752
SCR_KV = SCR + 10752
Z_OFF = 0x900000
KV_OFF = Z_OFF
KVFLAG_OFF = Z_OFF + 0x40000
ACTFLAG_OFF = Z_OFF + 0x16000
PROF_OFF = 0xA00000
BIG = 0x40000000
CFG = dict(AD=16, A0=8, AN=2, BN=1, G8=1, F3G=4, PB=[(200, 40), (80, 55), (80, 40)], SLP=8, SC=3, T4AT=[30, 36, 38], NBX=2, LG0=0, PWW=0, PVL=60, PSA=[(3, 7), (11, 14), (18, 21)], PSB=[(0, 1), (5, 8), (11, 15)], PB2=3, YB=31, PKT=1, MIX=0, MG=300, EB=0, EA=1, PKH=1, T3W=[0, 1, 2, 3, 0, 1, 2, 3, 0], OWN='', KD=0, PD=0, UP=[0, 0, 0, 1, 2, 2, 4], PAR=2, FB4=0, PKA=1, PK=0, KM=0, KVW=16, KS=(0, 5, 10), KVP=12, TAP=8, TAT=20, TAD=2, CB=6, DB=22, TW=1, TWT=2, GT=[2000, 4000, 5500, 500], TOFF=-1000, LT=200, LT2=200, QD2=800, LAT=900, QD=800, PLT=1500, BL=6, VC=9, T2=4, T2AT=[30, 35, 40, 45, 50, 55, 60, 66, 72], PF=4, PL=4, S0=6, S1=6, PRIO=0, VD=10, KP=160, KF=110, OW=4, G16=8, G28=20, TV=10, TB=1, TBT=28, TA=0, TO=11, T0=0, T1=0, ROT=2, RATE=38, BURST=24576, ST=90,
    CRED=6, AGE=14, P1B=6, FB=5, QB=[9, 3], IB=150, KB=6, VB=8, KVG=60, EH0=60, FG=60, E1=[120, 100], E2=[100, 80])

sX, sWq, sW1, sW2, sWo, sPhi, sB1, sOut, sDbg, sWs = [f"s[{8+4*i}:{11+4*i}]" for i in range(10)]
sW, sRT, sCH, sI, sG, sTY, sRB, sCB, sKQ, sRT2 = [f"s{48+i}" for i in range(10)]
sT0 = "s3"
sC10, sC01, sC11 = "s58", "s59", "s60"
sM0W = "s61"; sSoW = "s62"
sUA, sUB, sUC, sUD = "s63", "s6", "s7", "s2"
sAF, sFL, sAF2, sFL2, sB2, sBo, sKVs, sKVF, sSCRW, sCNT, sKS, sBID = [f"s{64+i}" for i in range(12)]
sA2y, sA2s, sOo = "s0", "s1", "s5"
STAMP0 = 76

vA16 = "v1"; vDq = "v2"; vD1 = "v3"; vDB = "v4"; vD5 = "v5"
VW = 6
vRS, vRSL, vM2 = "v14", "v15", "v22"
CF = 16
BI0, BI1, BI2 = 23, 24, 25
vPoll = "v27"; vFO = "v28"; vOne = "v10"; vP4 = "v30"; vT = "v31"; vPoll2 = "v9"
ACC_A, ACC_B, ACC_C = 32, 48, 64
WB = 80; PT = 96; PHI = 112; PK = 120; XA = 128
XR = 64; XD = 72; HR = 112; STA = 96; CSB = 116; ASEL = 120; CSA = 124
sXb = "s86"; sRot = "s89"; ROT0 = 98

def R(b, n): return f"v[{b}:{b+n-1}]"
def ldsaddr(regs, byte): return regs[byte >> 16], byte & 0xffff
_nl = [0]
def label():
    _nl[0] += 1; return f"L{_nl[0]}"
def stamp(name):
    def f(s):
        if not PROFILE: return
        if not hasattr(s, 'snames'): s.snames = []
        idx = len(s.snames)
        if idx >= 61: return
        s.snames.append(str(name))
        s.e(f"s_memtime s[{STAMP0+2*(idx%4)}:{STAMP0+1+2*(idx%4)}]")
        if idx >= 2: s.raw(f"v_writelane_b32 v29, s{STAMP0+2*((idx-2)%4)}, {idx-2}")
    return f
def srd(s, dst, lo, hi, size):
    b = int(dst[2:dst.index(':')])
    s.e(f"s_mov_b32 s{b}, {lo}\ns_and_b32 s{b+1}, {hi}, 0xffff\ns_mov_b32 s{b+2}, {size}\ns_mov_b32 s{b+3}, 0x20000")
def poll_issue(s, srd_, soff, vp=vPoll, imm=0, vo=vP4):
    assert srd_ == sDbg or 'init' in s.marks
    s.e(f"buffer_load_dword {vp}, {vo}, {srd_}, {soff} offen offset:{imm} sc1")
def poll_check(s, srd_, soff, mask, vp=vPoll, imm=0, vo=vP4):
    l1, l2, l3 = label(), label(), label()
    stamp(f"[p{imm//128}_{mask:x}")(s)
    s.e(f"v_cmp_ne_u32 vcc, 0, {vp}\ns_andn2_b32 {sT0}, {mask:#x}, vcc_lo\ns_cbranch_scc1 {l1}\n{l2}:")
    stamp(f"p]")(s)
    s.ool.append(f"""{l1}:
  s_mov_b32 {sCNT}, 0x10000
{l3}:
  s_sleep {CFG['SLP']}
  buffer_load_dword {vp}, {vo}, {srd_}, {soff} offen offset:{imm} sc1
  s_waitcnt vmcnt(0)
  v_cmp_ne_u32 vcc, 0, {vp}
  s_nop 1
  s_andn2_b32 {sT0}, {mask:#x}, vcc_lo
  s_cbranch_scc0 {l2}
  s_sub_u32 {sCNT}, {sCNT}, 1
  s_cmp_lg_u32 {sCNT}, 0
  s_cbranch_scc1 {l3}
  s_branch {l2}""")
def flag_store(tagwait, soff, imm, mark):
    def f(s):
        assert 'init' in s.marks
        stamp("(" + mark)(s)
        s.wait_tag(tagwait)
        stamp(mark + ")")(s)
        s.e(f"buffer_store_dword {vOne}, {vFO}, {sWs}, {soff} offen offset:{imm} sc1")
        s.marks[mark] = 1
    return f
def blk(text): return lambda s: s.e(text)

class Ring:
    hold = ()
    def __init__(self, items, free, ch):
        self.items = list(items); self.free = list(free); self.slot = {}; self.q = []; self.log = {}; self.ch = ch
        self.order = {it[0]: k for k, it in enumerate(items)}; self.xres = True
    def release(self, name):
        if name not in self.hold: self.free.append(self.slot[name])
    def assign(self, s, owner='all', upto=None, maxn=99):
        k = 0
        while k < len(self.items) and maxn > 0:
            it = self.items[k]; nm = it[0]
            if upto is not None and self.order[nm] > self.order[upto]: break
            if nm[0] == 'X':
                want = 2 * (int(nm[2]) & 1) + (nm[1] == 'H')
                ok = [x for x in self.free if x == want]
                if not ok: k += 1; continue
            elif nm[0] in 'BF': ok = [x for x in self.free if not (self.xres and x < 4)]
            else: ok = [x for x in self.free if x != 0 and not (self.xres and x < 4)]
            if not ok:
                if nm[0] != 'B' and not self.strict: k += 1; continue
                break
            if nm[0] in 'BF' and 0 in ok: ok = [0]
            self.items.pop(k); sl = ok[0]; self.free.remove(sl); self.slot[nm] = sl; maxn -= 1
            self.log[nm] = [s.nbar, None, owner]
            if owner == 'all': self.q += [(it, sl, h, 0) for h in range(2)]
            elif owner == self.ch: self.q += [(it, sl, h, o) for o in range(2) for h in range(2)]
            if nm == 'XH3': self.xres = False
        self.q.sort(key=lambda e: self.order[e[0][0]])
    def pump(self, s, n=1):
        while n > 0 and self.q:
            it, sl, h, other = self.q.pop(0)
            name, srd_, voff, sbase, o0, o1, dl = it[:7]
            sg = (1 if self.ch == 0 else -1) * other
            vo = voff[h] if isinstance(voff, tuple) else voff
            s.e(f"s_add_u32 m0, {sM0W}, {(sl*SLOT + h*1024 + sg*8192) & 0xffffffff:#x}")
            if len(it) > 7:
                mul, cidx = it[7], it[8](self.ch if not other else 1 - self.ch)
                key = (sbase, mul, cidx)
                if self.rkey != key:
                    s.e(f"s_mul_i32 {sRot}, s{ROT0+cidx}, {mul}\ns_add_u32 {sRot}, {sRot}, {sbase}")
                    self.rkey = key
                sbase = sRot
            s.e(f"s_add_u32 {sSoW}, {sbase}, {((o0, o1)[h] + sg*dl) & 0xffffffff:#x}")
            s.e(f"buffer_load_dwordx4 {vo}, {srd_}, {sSoW} offen lds", tag=name)
            n -= 1
    rkey = None
    strict = False
    cred = 0
    def pace(self, s, cycles, mx=99):
        self.cred = min(self.cred + cycles * CFG['RATE'], CFG['BURST'])
        while self.q and mx > 0:
            mx -= 1
            e = self.q[0]
            cost = (8192 if self.log[e[0][0]][2] == 'all' else 4096) * (2 if e[0][0][0] == 'F' else 1)
            if self.cred < cost: break
            self.cred -= cost; self.pump(s, 1)
    def need(self, s, name):
        assert name in self.slot, f"{name} has no slot yet"
        while any(e[0][0] == name for e in self.q):
            print("  warning: forced DMA issue for", name, "in", s.name)
            self.pump(s)
        if self.log[name][1] is None: self.log[name][1] = s.nbar
        s.wait_tag(name)
def x_items(q):
    return [(f"XL{q}", sX, (f"v{XD}", f"v{XD+1}"), sXb, 0, 0, 32768, 256, lambda c: q), (f"XH{q}", sX, (f"v{XD}", f"v{XD+1}"), sXb, 65536, 65536, 32768, 256, lambda c: q)]
def w_items(name, srd_, voff, sbase, stride):
    return [(f"{name}{c}", srd_, voff, sbase, 0, 8 * stride, 64 * stride, 128 * stride, lambda ch, c=c: c) for c in range(4)]
ORDER = [4, 5, 6, 7, 16, 17, 18, 19, 8, 9, 10, 11, 20, 21, 22, 23, 12, 13, 14, 15, 0, 1, 2, 3, 24, 25, 26, 27]
def b_item(hf, c):
    nm = f"B{'ab'[hf]}{c}"
    if c < 7:
        o = hf * 896 * 1024 + ORDER[4 * c] * 16384
        return (nm, sW2, vDB, sB2, o, o + 8192, 448 * 1024)
    o = hf * 256 * 1024 + (c - 7) * 65536
    return (nm, sWo, vDB, sBo, o, o + 8192, 128 * 1024)
def b_items(first):
    it = []
    for c in range(9): it += [b_item(0, c), b_item(1, c)]
    return it

def mish(acc, tmp, so, tag):
    F = []
    for hb in range(2):
        a = acc + 8 * hb
        for j in range(8): F.append(f"v_mul_f32 v{tmp+j}, v{a+j}, {vRSL}")
        for j in range(8): F.append(f"v_exp_f32 v{tmp+j}, v{tmp+j}")
        for j in range(8): F.append(f"v_add_f32 v{tmp+j}, 1.0, v{tmp+j}")
        for j in range(8): F.append(f"v_fma_f32 v{tmp+j}, v{tmp+j}, v{tmp+j}, 1.0")
        for j in range(8): F.append(f"v_rcp_f32 v{tmp+j}, v{tmp+j}")
        for j in range(8): F.append(f"v_fma_f32 v{tmp+j}, v{tmp+j}, {vM2}, {vRS}")
        for j in range(8): F.append(f"v_mul_f32 v{tmp+j}, v{a+j}, v{tmp+j}")
        for j in range(4): F.append(f"v_cvt_pk_bf16_f32 v{a+j}, v{tmp+2*j}, v{tmp+2*j+1}")
        F.append((f"buffer_store_dwordx4 {R(a,4)}, {vA16}, {sWs}, {so} offen offset:{hb*1024} sc1", tag))
    return F
def bc(r):
    n = int(r[1:]); return R(n & ~1, 2), n & 1
def pk2(op, d, a, b, c=None):
    ops = [R(a, 2)]; lo = [0]; hi = [1]
    for x in (b, c):
        if x is None: continue
        if isinstance(x, int): ops.append(R(x, 2)); lo.append(0); hi.append(1)
        elif x[0] == 'v':
            p, o = bc(x); ops.append(p); lo.append(o); hi.append(o)
        else: ops.append(x); lo.append(0); hi.append(0)
    f = lambda L: "[" + ",".join(map(str, L)) + "]"
    return f"v_pk_{op}_f32 {R(d,2)}, " + ", ".join(ops) + f" op_sel:{f(lo)} op_sel_hi:{f(hi)}"
def mish_pk(acc, tmp, so, tag):
    F = []
    for hb in range(2):
        a = acc + 8 * hb; E = range(0, 8, 2)
        F += [pk2("mul", tmp + j, a + j, vRSL) for j in E] + [f"v_exp_f32 v{tmp+j}, v{tmp+j}" for j in range(8)]
        F += [pk2("add", tmp + j, tmp + j, "1.0") for j in E] + [pk2("fma", tmp + j, tmp + j, tmp + j, "1.0") for j in E]
        F += [f"v_rcp_f32 v{tmp+j}, v{tmp+j}" for j in range(8)]
        F += [pk2("fma", tmp + j, tmp + j, vM2, vRS) for j in E] + [pk2("mul", tmp + j, tmp + j, a + j) for j in E]
        F += [f"v_cvt_pk_bf16_f32 v{a+j}, v{tmp+2*j}, v{tmp+2*j+1}" for j in range(4)]
        F.append((f"buffer_store_dwordx4 {R(a,4)}, {vA16}, {sWs}, {so} offen offset:{hb*1024} sc1", tag))
    return F
def softmax_pk(P, out, t0, t1, tp):
    F = softmax(P, out, t0, t1)[:9]; E = range(0, 16, 2)
    F += [pk2("fma", P + j, P + j, vRSL, t0) for j in E] + [f"v_exp_f32 v{P+j}, v{P+j}" for j in range(16)]
    F += [pk2("add", tp, P, P + 2), pk2("add", tp + 2, P + 4, P + 6), pk2("add", tp, tp, P + 8), pk2("add", tp + 2, tp + 2, P + 10),
          pk2("add", tp, tp, P + 12), pk2("add", tp + 2, tp + 2, P + 14), pk2("add", tp, tp, tp + 2), f"v_add_f32 {t0}, v{tp}, v{tp+1}", f"v_rcp_f32 {t0}, {t0}"]
    F += [pk2("mul", P + j, P + j, t0) for j in E] + [f"v_cvt_pk_bf16_f32 v{out+j}, v{P+2*j}, v{P+2*j+1}" for j in range(8)]
    return F
def softmax(P, out, t0, t1):
    F = [f"v_max3_f32 {t0}, v{P}, v{P+1}, v{P+2}", f"v_max3_f32 {t1}, v{P+3}, v{P+4}, v{P+5}",
         f"v_max3_f32 {t0}, {t0}, v{P+6}, v{P+7}", f"v_max3_f32 {t1}, {t1}, v{P+8}, v{P+9}",
         f"v_max3_f32 {t0}, {t0}, v{P+10}, v{P+11}", f"v_max3_f32 {t1}, {t1}, v{P+12}, v{P+13}",
         f"v_max3_f32 {t0}, {t0}, v{P+14}, v{P+15}", f"v_max_f32 {t0}, {t0}, {t1}", f"v_mul_f32_e64 {t0}, -{t0}, {vRSL}"]
    for j in range(16): F.append(f"v_fma_f32 v{P+j}, v{P+j}, {vRSL}, {t0}")
    for j in range(16): F.append(f"v_exp_f32 v{P+j}, v{P+j}")
    F += [f"v_add_f32 {t0}, v{P}, v{P+1}", f"v_add_f32 {t1}, v{P+2}, v{P+3}"]
    for j in range(4, 16, 2):
        F += [f"v_add_f32 {t0}, {t0}, v{P+j}", f"v_add_f32 {t1}, {t1}, v{P+j+1}"]
    F += [f"v_add_f32 {t0}, {t0}, {t1}", f"v_rcp_f32 {t0}, {t0}"]
    for j in range(16): F.append(f"v_mul_f32 v{P+j}, v{P+j}, {t0}")
    for j in range(8): F.append(f"v_cvt_pk_bf16_f32 v{out+j}, v{P+2*j}, v{P+2*j+1}")
    return F
def pack16(acc, out): return [f"v_cvt_pk_bf16_f32 v{out+j}, v{acc+2*j}, v{acc+2*j+1}" for j in range(8)]
def phi_frags():
    F = ["v_bfe_u32 v25, v0, 2, 2", "v_lshrrev_b32 v26, 5, v0", "v_lshl_add_u32 v25, v26, 2, v25", "v_lshlrev_b32 v25, 5, v25",
         "v_bfe_u32 v26, v0, 4, 1", "v_lshl_add_u32 v25, v26, 4, v25", "v_bfe_u32 v26, v0, 1, 1", "v_lshl_add_u32 v25, v26, 3, v25",
         blk(f"s_lshl_b32 s4, {sCH}, 10\ns_add_u32 s4, s4, {SCR_PHI}\nv_add_u32 v25, s4, v25")]
    for h in range(2):
        for rd in range(2): F.append(f"ds_read_b64_tr_b16 {R(PHI+4*h+2*rd,2)}, v25 offset:{h*512 + rd*256}")
    F += ["v_bfe_u32 v26, v0, 2, 1", "v_mul_u32_u24 v26, 0x8000, v26", "v_lshl_or_b32 v26, v26, 16, v26"]
    for j in range(8): F.append(f"v_xor_b32 v{PHI+j}, v26, v{PHI+j}")
    return F

BIASL = {}
def prologue(s):
    s.e("s_load_dwordx2 s[64:65], s[0:1], 0\ns_load_dwordx8 s[68:75], s[0:1], 8\ns_load_dwordx8 s[76:83], s[0:1], 40")
    s.e("s_load_dwordx2 s[84:85], s[0:1], 80\ns_load_dwordx2 s[66:67], s[0:1], 72")
    s.e("s_cmp_ge_u32 s2, 256\ns_cbranch_scc1 L_end")
    s.e("v_lshrrev_b32 v2, 6, v0\nv_and_b32 v0, 63, v0\ns_and_b32 s3, s2, 7\ns_lshr_b32 s87, s2, 3")
    s.e(f"v_readfirstlane_b32 {sW}, v2")
    s.e(f"v_lshrrev_b32 v33, 4, v0\nv_and_b32 v34, 15, v0")
    s.e(f"s_cmp_lg_u32 {sW}, {CFG['PWW']}\ns_cbranch_scc1 L_nopw")
    s.e(f"s_getpc_b64 s[90:91]\nL_pc0:\ns_sub_u32 s90, s90, L_pc0-{KNAME}\ns_subb_u32 s91, s91, 0\ns_lshl_b32 s5, s87, 11\nv_lshlrev_b32 v35, 7, v34\nv_add_u32 v35, s5, v35")
    s.raw("global_load_dword v26, v35, s[90:91]")
    s.e("L_nopw:")
    s.e(f"s_and_b32 s5, s3, 1\ns_lshl_b32 s5, s5, 3\ns_and_b32 {sI}, s87, 7\ns_add_u32 {sI}, {sI}, s5")
    s.e(f"s_and_b32 {sRT2}, {sW}, 1\ns_lshl_b32 {sM0W}, {sW}, 11\ns_lshl_b32 s5, {sRT2}, 3")
    for h in range(2):
        s.e(f"v_add_u32 v35, {4*h}, v33\nv_add_u32 v36, s5, v35\nv_xor_b32 v36, v34, v36\nv_lshlrev_b32 v36, 4, v36\nv_lshl_add_u32 v{XD+h}, v35, 10, v36")
    s.e(f"s_lshr_b32 s{ROT0}, s3, 1\ns_lshl_b32 s{ROT0+1}, s3, 1\ns_add_u32 s{ROT0}, s{ROT0}, s{ROT0+1}")
    for c in range(1, 4): s.e(f"s_add_u32 s{ROT0+c}, s{ROT0}, {c}\ns_and_b32 s{ROT0+c}, s{ROT0+c}, 3")
    s.e(f"s_and_b32 s{ROT0}, s{ROT0}, 3")
    s.e(f"s_lshl_b32 {sXb}, {sI}, 17\ns_lshl_b32 s5, {sW}, 13\ns_add_u32 {sXb}, {sXb}, s5\ns_mov_b32 s10, {2048*512*2}\ns_mov_b32 s11, 0x20000")
    s.e("v_lshrrev_b32 v36, 3, v0\nv_and_b32 v37, 7, v0\nv_lshlrev_b32 v38, 1, v36\nv_and_b32 v38, 4, v38\nv_xor_b32 v37, v37, v38\nv_lshlrev_b32 v37, 4, v37")
    s.raw("s_waitcnt lgkmcnt(0)")
    s.e("s_mov_b32 s8, s64\ns_and_b32 s9, s65, 0xffff")
    srd(s, sWs, "s84", "s85", 0x10000000)
    s.e(f"v_lshlrev_b32 {vA16}, 4, v0\ns_cmp_lg_u32 s3, 1\ns_cbranch_scc1 L_noinit")
    s.e("v_mov_b32 v40, 0\nv_mov_b32 v41, 0\nv_mov_b32 v42, 0\nv_mov_b32 v43, 0")
    s.e(f"s_lshl_b32 s5, s87, 13\ns_lshl_b32 s4, {sW}, 10\ns_add_u32 s5, s5, s4\ns_add_u32 s5, s5, {Z_OFF}")
    s.raw(f"buffer_store_dwordx4 v[40:43], {vA16}, {sWs}, s5 offen sc1")
    s.e("s_add_u32 s5, s5, 0x40000")
    s.raw(f"buffer_store_dwordx4 v[40:43], {vA16}, {sWs}, s5 offen sc1")
    s.e("L_noinit:")
    r0 = Ring(x_items(0) + x_items(1), range(9), 0); r0.assign(s)
    r0.pump(s, 4)
    s.e(f"v_mul_u32_u24 {vDq}, 3072, v36\nv_add_u32 {vDq}, {vDq}, v37\nv_mul_u32_u24 {vD1}, 3584, v36\nv_add_u32 {vD1}, {vD1}, v37")
    s.e(f"s_lshr_b32 s5, s3, 1\ns_lshl_b32 s5, s5, 2\ns_lshr_b32 s6, s87, 3\ns_add_u32 s5, s5, s6")
    s.e(f"s_lshr_b32 {sG}, s5, 1\ns_and_b32 {sTY}, s5, 1\ns_lshl_b32 {sRB}, s3, 2\ns_add_u32 {sRB}, {sRB}, s6\ns_and_b32 {sCB}, s87, 7")
    s.e(f"s_lshr_b32 {sKQ}, {sW}, 1\ns_and_b32 {sRT}, {sW}, 3\ns_lshr_b32 {sCH}, {sW}, 2\ns_mov_b32 s88, s2")
    srd(s, sWq, "s68", "s69", 512 * 1536 * 2)
    srd(s, sW1, "s76", "s77", 512 * 1792 * 2)
    def wpair(c, first):
        l1, l2 = label(), label()
        s.e(f"s_cmp_eq_u32 {sTY}, 0\ns_cbranch_scc1 {l1}")
        vm0 = list(s.vm)
        for typ, it in (('B', w_items("W", sW1, vD1, sUA, 3584)), ('A', w_items("W", sWq, vDq, sUA, 3072))):
            s.vm = list(vm0)
            if typ == 'A': s.e(f"{l1}:")
            if first: BIASL[typ] = unit_bases(s, typ)
            r = Ring([it[c]], [4 + c], 0); r.assign(s); r.pump(s, 2)
            if typ == 'B': s.e(f"s_branch {l2}")
        s.e(f"{l2}:")
    wpair(0, True)
    s.e(f"v_lshl_add_u32 {vDB}, v36, 10, v37")
    prologue2(s)
    r0.rkey = None
    r0.pump(s, 4)
    wpair(1, False)

def prologue2(s):
    srd(s, sPhi, "s70", "s71", 32 * 512)
    srd(s, sB1, "s78", "s79", 1792 * 2)
    srd(s, sW2, "s80", "s81", 1792 * 512 * 2)
    srd(s, sWo, "s72", "s73", 512 * 512 * 2)
    srd(s, sOut, "s82", "s83", 2048 * 512 * 2)
    srd(s, sDbg, "s66", "s67", 256)
    s.e(f"s_mov_b32 {sBID}, s88\ns_mov_b32 {sC11}, 0x3f803f80")
    s.e(f"v_lshrrev_b32 v36, 2, v0\nv_and_b32 v37, 3, v0\nv_lshlrev_b32 v37, 4, v37\nv_mul_u32_u24 {vD5}, 3584, v36\nv_add_u32 {vD5}, {vD5}, v37")
    s.e(f"v_and_b32 {vP4}, 31, v0\nv_lshlrev_b32 {vP4}, 2, {vP4}")
    s.e(f"v_mov_b32 v29, 0\nv_mov_b32 {vFO}, {BIG}\nv_cmp_eq_u32 vcc, 0, v0\nv_cndmask_b32 {vFO}, {vFO}, 0, vcc")
    s.e("v_bfe_u32 v36, v0, 2, 2\nv_and_b32 v37, 3, v0\nv_bfe_u32 v38, v0, 4, 1\nv_lshrrev_b32 v39, 5, v0")
    s.e("v_lshlrev_b32 v40, 3, v37\nv_lshl_add_u32 v40, v38, 5, v40\nv_lshl_add_u32 v41, v39, 3, v36")
    s.e(f"v_lshrrev_b32 v42, 1, v36\nv_xor_b32 v42, {sCH}, v42\nv_lshlrev_b32 v42, 6, v42")
    s.e(f"v_lshl_add_u32 v43, v41, 7, v40\nv_add_u32 v43, v43, v42")
    for j in range(4):
        s.e(f"s_xor_b32 s5, {sRT}, {j}\ns_lshl_b32 s5, s5, 12\ns_add_u32 s5, s5, {SLOT}\nv_add_u32 v{VW+j}, s5, v43\nv_add_u32 v{VW+4+j}, 0x10000, v{VW+j}")
    s.e(f"v_and_b32 v44, 31, v0\ns_lshl_b32 s5, {sRT}, 5\nv_add_u32 v45, s5, v44\nv_xor_b32 v46, v39, v34\nv_lshlrev_b32 v46, 4, v46\nv_lshl_add_u32 v{XR}, v45, 8, v46")
    s.e(f"s_lshl_b32 s5, {sRT}, 6\nv_xor_b32 v{XR}, s5, v{XR}")
    for t in range(1, 8): s.e(f"v_xor_b32 v{XR+t}, {t<<5}, v{XR}")
    s.e(f"v_lshlrev_b32 v44, 2, v38\nv_cmp_eq_u32 vcc, v44, v34\nv_mov_b32 v44, {sC11}\nv_cndmask_b32 v{ASEL}, 0, v44, vcc")
    for j in range(1, 4): s.e(f"v_mov_b32 v{ASEL+j}, v{ASEL}")
    s.e(f"v_mov_b32 v{CF+4}, 0\nv_mov_b32 v{CF+5}, 0")
    s.e(f"s_lshl_b32 s3, {sI}, 2\ns_add_u32 s3, s3, {sRT}\ns_mul_i32 {sAF}, s3, {144*1024}")
    s.e(f"s_mul_i32 {sKS}, {sG}, {14*1024}\ns_add_u32 {sKS}, {sKS}, {sAF}")
    s.e(f"s_lshl_b32 {sFL}, s3, 2\ns_lshr_b32 s4, {sG}, 1\ns_add_u32 {sFL}, {sFL}, s4\ns_mul_i32 {sFL}, {sFL}, 640")
    s.e(f"s_and_b32 s4, {sG}, 1\ns_lshl_b32 s4, s4, 3\ns_lshl_b32 s5, {sCH}, 2\ns_add_u32 s4, s4, s5\ns_add_u32 {sFL}, {sFL}, s4\ns_add_u32 {sFL}, {sFL}, {ACTFLAG_OFF}")
    s.e(f"s_lshl_b32 s3, {sRB}, 1\ns_add_u32 s3, s3, {sRT2}\ns_mul_i32 {sAF2}, s3, {144*1024}")
    s.e(f"s_lshl_b32 {sFL2}, s3, 2\ns_add_u32 {sFL2}, {sFL2}, {sKQ}\ns_mul_i32 {sFL2}, {sFL2}, 640\ns_add_u32 {sFL2}, {sFL2}, {ACTFLAG_OFF}")
    s.e(f"s_mul_i32 {sB2}, {sCH}, {448*1024}\ns_lshl_b32 s4, {sRT}, 14\ns_lshl_b32 s5, {sCB}, 7\ns_add_u32 s4, s4, s5\ns_add_u32 {sB2}, {sB2}, s4")
    s.e(f"s_lshl_b32 {sBo}, {sCH}, 17\ns_add_u32 {sBo}, {sBo}, s4")
    s.e(f"s_lshl_b32 s3, {sG}, 2\ns_add_u32 s3, s3, {sKQ}\ns_mul_i32 {sKVs}, s3, 2176\ns_add_u32 {sKVs}, {sKVs}, {KV_OFF}")
    s.e(f"s_lshl_b32 s3, {sG}, 3\ns_add_u32 s3, s3, {sW}\ns_lshl_b32 {sKVF}, s3, 11\ns_add_u32 {sKVF}, {sKVF}, {KVFLAG_OFF}")
    s.e(f"s_mul_i32 s3, {sKQ}, {28*1024}\ns_add_u32 {sA2y}, {sAF2}, s3")
    s.e(f"s_lshl_b32 s3, {sKQ}, 13\ns_add_u32 {sA2s}, {sAF2}, s3\ns_add_u32 {sA2s}, {sA2s}, {112*1024}")
    s.e(f"v_lshrrev_b32 {vT}, 1, {vP4}")

def unit_bases(s, typ):
    s.e(f"s_mul_i32 s3, {sW}, {16*3072}\ns_lshl_b32 s4, {sG}, 7\ns_add_u32 s3, s3, s4")
    s.e(f"s_mul_i32 s4, {sG}, 448\ns_and_b32 s5, {sG}, 1\ns_cmp_eq_u32 s5, 0")
    if typ == 'A':
        s.e(f"s_cselect_b32 s5, 0, 320\ns_add_u32 s4, s4, s5")
        s.e(f"s_add_u32 {sUA}, s3, 1024\ns_add_u32 {sUB}, s3, 2048")
        s.e(f"s_mul_i32 {sUC}, {sW}, {16*3584}\ns_add_u32 {sUC}, {sUC}, s4")
        s.e(f"s_lshl_b32 s5, {sCH}, 6\ns_add_u32 s92, s4, s5")
        return [f"buffer_load_ushort v{BI0}, {vT}, {sB1}, s92 offen"]
    s.e(f"s_cselect_b32 s5, 128, 64\ns_cselect_b32 {sUD}, 384, 0")
    s.e(f"s_add_u32 s5, s4, s5\ns_add_u32 s92, s4, {sUD}\ns_mov_b32 {sUC}, s3")
    s.e(f"s_mul_i32 {sUA}, {sW}, {16*3584}\ns_add_u32 {sUA}, {sUA}, s5\ns_add_u32 {sUB}, {sUA}, 128")
    s.e(f"s_mul_i32 {sUD}, {sRT}, {32*3584}\ns_add_u32 {sUD}, {sUD}, s92")
    s.e(f"s_lshl_b32 s3, {sCH}, 6\ns_add_u32 s93, s5, s3")
    return [f"buffer_load_ushort v{BI2}, {vT}, {sB1}, s92 offen", f"buffer_load_ushort v{BI0}, {vT}, {sB1}, s93 offen",
            f"buffer_load_ushort v{BI1}, {vT}, {sB1}, s93 offen offset:128"]

def start(s, ring, n0):
    ring.assign(s, upto=ring.upto0)
    pre = ["XL0", "XH0", n0 + "0", "XL1", "XH1", n0 + "1"]
    assert [ring.slot[x] for x in pre] == [0, 1, 4, 2, 3, 5]
    ring.q = [e for e in ring.q if e[0][0] not in pre]
    s.vm = [(d, (n0 + tg[1] if tg in ("W0", "W1") else tg)) for d, tg in s.vm]
def touch_all(s, which):
    specs = dict(x=(sX, 64, 4), q=(sWq, 48, 5), w1=(sW1, 56, 6), w2=(sW2, 56, 4), wo=(sWo, 16, 5))
    for nm in which:
        srd_, nl, wv = specs[nm]
        lab = label()
        s.e(f"s_cmp_lg_u32 {sW}, {wv}\ns_cbranch_scc1 {lab}")
        s.e(f"v_min_u32 v47, {nl-1}, v0\nv_lshlrev_b32 v47, 7, v47\ns_mul_i32 s5, s88, {nl*128}\ns_mov_b32 m0, {SCR + 15360}\ns_nop 0")
        s.raw(f"buffer_load_dword v47, {srd_}, s5 offen lds")
        s.e(f"{lab}:")
def late_loads(biasloads):
    def f(s):
        s.e(f"v_lshrrev_b32 {vT}, 1, {vP4}")
        for x in biasloads: s.e(x)
        s.e(f"s_lshl_b32 s3, {sG}, 11\ns_lshl_b32 s4, {sRT2}, 10\ns_add_u32 s3, s3, s4\ns_add_u32 m0, s4, {SCR_PHI}")
        s.e(f"buffer_load_dwordx4 {vA16}, {sPhi}, s3 offen lds", tag="phi")
    return f

MF = "v_mfma_f32_32x32x16_bf16"
def bar(s, ring, name, needs=(), rel=(), owner='all', lg0=False, upto=None, extra=(), maxn=99):
    if CFG.get('SB'): stamp("<" + name)(s)
    for n in needs: ring.need(s, n)
    if lg0: s.wait(lg=0)
    s.wait_dswrites()
    s.e("s_barrier")
    stamp(name)(s)
    s.marks[name] = 1
    for n in rel: ring.release(n)
    ring.free += list(extra)
    if owner == 'all':
        k = 'x' if name[0] == 'b' else ('a' if name[0] in 'ae' else 'p')
        if k in CFG['OWN'] and not (s.name[0] == 'B' and name in ('c3', 'd3', 'e1')): owner = 0
    ring.assign(s, owner, upto, maxn)
def B(ring, *a, **k): return lambda s: bar(s, ring, *a, **k)

class MSeg:
    def __init__(self, ring, u, ch, events=None, posts=None, xpass=False, dma=0):
        self.ring, self.u, self.ch, self.ev, self.posts, self.xp, self.dma = ring, u, ch, events or {}, posts or {}, xpass, dma
        self.nr = 0; self.hs = None
    def reads(self, s, t):
        u, ring = self.u, self.ring
        for e in self.ev.get(t, []): e(s)
        c, p = t // 8, t % 8
        if self.xp:
            for x in {0: (0, 1), 1: (2, 3, 4), 2: (5, 6, 7)}.get(p, ()):
                s.e(f"ds_read_b128 {R(XA+32*c+4*x,4)}, v{XR+x} offset:{(c&1)*32768}")
        it = f"{u['name']}{c}" if u['kind'] == 'w' else f"{u['name']}{c//2}"
        assert ring.log[it][1] is not None, f"{it} read before certified"
        sl = ring.slot[it]; buf = WB + 4 * (t % 4)
        if u['kind'] == 'h5' and self.hs != sl:
            if self.hs is None:
                s.e("v_bfe_u32 v116, v0, 2, 2\nv_lshrrev_b32 v117, 5, v0\nv_lshl_add_u32 v116, v117, 3, v116\nv_lshlrev_b32 v116, 6, v116\nv_bfe_u32 v117, v0, 4, 1\nv_lshl_add_u32 v116, v117, 5, v116\nv_and_b32 v117, 3, v0\nv_lshl_add_u32 v116, v117, 3, v116")
                for j in range(4): s.e(f"s_xor_b32 s3, {sRT}, {j}\ns_lshl_b32 s3, s3, 11\ns_add_u32 s3, s3, {sl*SLOT}\nv_add_u32 v{HR+j}, s3, v116")
            else:
                for j in range(4): s.e(f"v_add_u32 v{HR+j}, {((sl-self.hs)*SLOT) & 0xffffffff:#x}, v{HR+j}")
            self.hs = sl
        for k in range(2):
            if u['kind'] == 'w':
                w = 0 if sl <= 4 else 1
                r, off = f"v{VW+4*w+p//2}", (sl - 1 - 4 * w) * SLOT + (p & 1) * 2048 + k * 512
            else: r, off = f"v{HR+p//2}", (c % 2) * 8192 + (p & 1) * 1024 + k * 256
            s.e(f"ds_read_b64_tr_b16 {R(buf+2*k,2)}, {r} offset:{off}")
    def pre(self, s, n=None):
        n = CFG['PF'] if n is None else n
        while self.nr < n: self.reads(s, self.nr); self.nr += 1
    def run(self, s, nxt=None, F=None, budget=0):
        u = self.u; ch = self.ch
        credit = 0
        if CFG['PRIO'] and not self.xp: s.e("s_setprio 1")
        self.pre(s)
        for t in range(32):
            c, p = t // 8, t % 8
            buf = WB + 4 * (t % 4)
            cin = R(u['acc'], 16) if t > 0 else "0"
            a, b = (R(buf, 4), R(XA + 4 * t, 4)) if u['trans'] else (R(XA + 4 * t, 4), R(buf, 4))
            s.e(f"{MF} {R(u['acc'],16)}, {a}, {b}, {cin}")
            if p < 2 and not (CFG.get('NOCS') and t > 0): s.e(f"v_mfma_f32_16x16x32_bf16 {R(CSA,4)}, {R(ASEL,4)}, {R(buf,4)}, {R(CSA,4) if t > 0 else '0'}")
            if self.nr < 32: self.reads(s, self.nr); self.nr += 1
            elif nxt is not None: nxt.pre(s, t - 31 + CFG['PF'])
            if self.xp and t < 25 and CFG['PAR'] == 2:
                if t % 2 == ch or ('x' in CFG['OWN'] and ch == 0): self.ring.pump(s, 2)
            elif self.xp and t < 25: self.ring.pump(s, 1)
            elif self.xp: self.ring.pace(s, CFG['ST'])
            elif self.dma and CFG['PAR']:
                if 'p' in CFG['OWN']: self.ring.pace(s, self.dma, 1)
                elif t % 2 == ch: self.ring.pace(s, 2 * self.dma, 1)
            elif self.dma: self.ring.pace(s, self.dma)
            if t == 27:
                s.e(f"s_lshl_b32 s3, {sRT}, 2\ns_add_u32 s3, s3, {SCR_CS + u['csi']*2048 + ch*1024}\nv_add_u32 v{CSA+1}, s3, {vA16}\nds_write_b32 v{CSA+1}, v{CSA}")
            if self.xp and p in (1, 3):
                for x in ((ch, ch + 2) if p == 1 else (ch + 4, ch + 6)):
                    for j in range(4):
                        r = XA + 32 * c + 4 * x + j
                        first = (c == 0 and p == 1 and x == ch and j < 2)
                        s.e(f"v_dot2_f32_bf16 v{STA+(j&1)}, v{r}, {sC11}, {'0' if first else f'v{STA+(j&1)}'}")
                        s.e(f"v_dot2_f32_bf16 v{STA+2+(j&1)}, v{r}, v{r}, {'0' if first else f'v{STA+2+(j&1)}'}")
                if t == 27:
                    q = f"v{STA+2}"
                    s.e(f"v_add_f32 v{STA}, v{STA}, v{STA+1}\nv_add_f32 v{STA+1}, v{STA+2}, v{STA+3}\nv_lshrrev_b32 {q}, 5, v0\nv_lshlrev_b32 {q}, 3, {q}\n"
                        f"v_lshl_add_u32 {q}, {vP4}, 3, {q}\ns_lshl_b32 s3, {sRT}, 10\ns_add_u32 s3, s3, {SCR_ST + ch*16}\nv_add_u32 {q}, s3, {q}\nds_write_b64 {q}, {R(STA,2)}")
            for e in self.posts.get(t, []): e(s)
            if F is not None: credit = fill(s, F, (budget(t) if callable(budget) else budget) + min(credit, CFG['CRED']))
        if CFG['PRIO'] and not self.xp: s.e("s_setprio 0")

def fill(s, F, budget, force=False):
    while budget > 0 and F:
        f = F[0]
        if isinstance(f, tuple) and f[0] == 'wait':
            if f[1] in s.marks: F.pop(0); continue
            return 0
        if isinstance(f, tuple) and f[0] == 'nextbar': f = F[0] = ('barge', s.nbar + 1)
        if isinstance(f, tuple) and f[0] == 'barge':
            if s.nbar >= f[1]: F.pop(0); continue
            return 0
        if isinstance(f, tuple) and f[0] in ('hold', 'tilt'):
            if budget <= 1: F.pop(0); continue
            return 0
        if isinstance(f, tuple) and f[0] == 'gap':
            f = F[0] = ('until', s.n_issued + f[1])
        if isinstance(f, tuple) and f[0] == 'until':
            if s.n_issued >= f[1] or force: F.pop(0); continue
            return 0
        if callable(f):
            F.pop(0); n0 = s.n_issued; f(s); budget -= max(1, (s.n_issued - n0) * 0.5); continue
        txt, tag = (f if isinstance(f, tuple) else (f, None))
        need, age = s.cost(txt)
        if not force and (need > 1 or (age is not None and age < CFG['AGE'])): return budget
        F.pop(0); s.e(txt, tag)
        k = I(txt).kind
        budget -= 2 if k == 'trans' else (0.5 if k in ('salu', 'ds', 'vm') else 1)
    return 0
def until(s, ring, F, name, every=None):
    n = 0
    while name not in s.marks:
        assert F, name
        l = len(F); fill(s, F, 1, force=True)
        assert len(F) < l, ("stuck", F[0], name, s.name)
        n += 1
        ring.pace(s, 9)
    return n
def vrun(s, ring, F, slots, every=None, flush=True):
    every = every or CFG['VD']
    while slots > 0 and F:
        l = len(F); fill(s, F, min(every, slots), force=True); slots -= every
        ring.pace(s, 9 * every)
        if len(F) == l: break
    if flush: ring.pump(s, 99)

def vseg(s, ring, F, every=None, flush=True):
    every = every or CFG['VD']
    n = 0
    for f in F:
        if isinstance(f, tuple) and f[0] in ('after', 'skip', 'wait', 'gap', 'until'): continue
        drain(s, [f]); n += 1
        ring.pace(s, 10)
    if flush: ring.pump(s, 99)
def split(F, frac, item):
    k = int(len(F) * frac)
    return F[:k] + [item] + F[k:]

def pass0(s, ring, u, ch, bl, nextname, nextneed):
    ev = {}
    NBX = CFG['NBX']; n = u['name']
    for c in range(4):
        def b0(s, c=c):
            if c == 3: s.wait_tag("phi")
            lag = CFG['LG0'] == 0
            if lag: rel = [f"{n}{c-2}"] if (c >= 2 and c - 1 >= NBX) else []
            else: rel = [f"{n}{c-1}"] if c else []
            if c - 1 >= NBX: rel += [f"XL{c-1}", f"XH{c-1}"]
            up = CFG['UP'][2 * c]
            bar(s, ring, f"b0{c}", [f"{n}{c}", f"XL{c}", f"XH{c}"] + (nextneed if (c == 3 and NBX < 4) else []), rel, lg0=not lag, upto=(nextname[0] + str(up) if up < 4 else None))
            if c == 0 and ch == 0:
                lab = label()
                s.e(f"s_and_b32 s3, {sBID}, 7\ns_cmp_lg_u32 s3, 1\ns_cbranch_scc1 {lab}\ns_cmp_lg_u32 {sW}, 0\ns_cbranch_scc1 {lab}\ns_lshl_b32 s3, s87, 2")
                s.raw(f"buffer_store_dword {vOne}, {vFO}, {sDbg}, s3 offen offset:128 sc1")
                s.e(f"{lab}:")
        def bx(s, c=c):
            s.wait_regs([f"v{r}" for r in range(XA + 32 * c, XA + 32 * c + 32)])
            bar(s, ring, f"bx{c}", nextneed if c == 3 else [], [f"XL{c}", f"XH{c}"] + ([f"{n}{c-1}"] if (c and CFG['LG0'] == 0) else []),
                upto=(nextname[0] + str(CFG['UP'][2 * c + 1]) if c < 3 else None))
        ev[8 * c] = [b0]
        if c < NBX: ev[8 * c + 4] = [bx]
    ring.c1rel = (["XL3", "XH3"] if NBX < 4 else []) + ([f"{n}2"] if (CFG['LG0'] == 0 and NBX < 4) else [])
    return MSeg(ring, u, ch, ev, {6: [late_loads(bl)], CFG['TBT']: [lambda s: touchB(s)], CFG['TWT']: [lambda s: touchW(s)]}, xpass=True, dma=1)

def stats_fin(T):
    F = [blk(f"s_lshl_b32 s4, {sRT}, 10\ns_add_u32 s4, s4, {SCR_ST}\nv_lshlrev_b32 {vT}, 3, {vP4}\nv_add_u32 {vT}, s4, {vT}"),
         f"ds_read_b128 {R(T,4)}, {vT}", f"ds_read_b128 {R(T+4,4)}, {vT} offset:16",
         blk(f"s_lshl_b32 s4, {sRT}, 7\ns_add_u32 s4, s4, {SCR_RS}\nv_add_u32 {vT}, s4, {vP4}\nv_cmp_gt_u32 s[94:95], 32, v0")]
    a, b = f"v{T}", f"v{T+1}"
    F += [f"v_add_f32 {a}, {a}, v{T+2}", f"v_add_f32 {b}, {b}, v{T+3}", f"v_add_f32 v{T+4}, v{T+4}, v{T+6}", f"v_add_f32 v{T+5}, v{T+5}, v{T+7}",
          f"v_add_f32 {a}, {a}, v{T+4}", f"v_add_f32 {b}, {b}, v{T+5}", f"v_mul_f32 {a}, 0xbb000000, {a}", f"v_mul_f32 {b}, 0x3b000000, {b}",
          f"v_fma_f32 {b}, -{a}, {a}, {b}", f"v_max_f32 {b}, 0, {b}", f"v_cvt_pk_bf16_f32 {b}, {b}, {b}", f"v_lshlrev_b32 {b}, 16, {b}",
          f"v_add_f32 {b}, 0x3727c5ac, {b}", f"v_cvt_pk_bf16_f32 {b}, {b}, {b}", f"v_lshlrev_b32 {b}, 16, {b}", f"v_sqrt_f32 {b}, {b}",
          f"v_cvt_pk_bf16_f32 {b}, {b}, {a}", f"v_lshlrev_b32 {vRS}, 16, {b}", f"v_rcp_f32 {vRS}, {vRS}",
          f"v_cndmask_b32 v{CF+2}, 0, {b}, s[94:95]", f"v_lshrrev_b32 v{CF+3}, 16, v{CF+2}",
          f"v_mul_f32 {vRSL}, 0x3fb8aa3b, {vRS}", f"v_mul_f32 {vM2}, -2.0, {vRS}", f"ds_write_b32 {vT}, {vRS}"]
    return F
def correct(u, ch, T, bias=None):
    F = [f"v_lshlrev_b32 v{T}, 2, {vP4}", f"v_add_u32 v{T}, {SCR_CS + u['csi']*2048 + ch*1024}, v{T}", f"ds_read_b128 {R(T,4)}, v{T}",
         f"v_add_f32 v{T}, v{T}, v{T+1}", f"v_add_f32 v{T+2}, v{T+2}, v{T+3}", f"v_add_f32 v{T}, v{T}, v{T+2}",
         f"v_cvt_pk_bf16_f32 v{T+1}, v{T}, v{T}", f"v_and_b32 v{CF}, 0xffff0000, v{T+1}", f"v_sub_f32 v{T}, v{T}, v{CF}", f"v_cvt_pk_bf16_f32 v{CF+1}, v{T}, v{T}"]
    if bias is not None: F.append(f"v_or_b32 v{CF}, v{CF}, v{bias}")
    a, b = (R(CF, 4), R(CF + 2, 4)) if u['trans'] else (R(CF + 2, 4), R(CF, 4))
    F.append(f"{MF} {R(u['acc'],16)}, {a}, {b}, {R(u['acc'],16)}")
    return F

def mark(name): return lambda s: s.marks.__setitem__(name, 1)
YA = [192, 208]; SA = [32, 48]
vB0, vB1 = "v5", "v24"
XW = ["v6", "v7", "v8"]; XRD = ["v11", "v12", "v13"]
LB = 128
NR = 8
def breg(t): return XA + 8 * t if t < NR else LB + 8 * (t % 4)
def bnm(ch, c): return f"B{'ab'[ch]}{c}"
def bread(ring, ch, t):
    def f(s):
        nm = bnm(ch, t // 4)
        assert ring.log[nm][1] is not None, f"{nm} read before certified"
        sl = ring.slot[nm]
        if ring.bsl != sl:
            d = ((sl - ring.bsl) * SLOT) & 0xffffffff
            s.e(f"v_add_u32 {vB0}, {d:#x}, {vB0}\nv_add_u32 {vB1}, {d:#x}, {vB1}")
            ring.bsl = sl
        for ct, r in enumerate((vB0, vB1)):
            for k in range(2):
                s.e(f"ds_read_b64_tr_b16 {R(breg(t) + 4*ct + 2*k, 2)}, {r} offset:{(t%4)*2048 + k*1024}")
    return f
def pull(ring, ch, c): return [bread(ring, ch, 4 * c + k) for k in range(4)]
def p2_setup(ring):
    def chk(s):
        assert not any(x[0][0] == 'F' for x in ring.items) and not any(x[0][0][0] == 'F' for x in ring.q)
        ring.bsl = 0
    return [chk, f"v_bfe_u32 {vB0}, v0, 2, 2", f"v_lshrrev_b32 {vB1}, 5, v0", f"v_lshl_add_u32 {vB0}, {vB1}, 2, {vB0}", f"v_lshlrev_b32 {vB0}, 7, {vB0}",
     f"v_bfe_u32 {vB1}, v0, 3, 1", f"v_lshl_add_u32 {vB0}, {vB1}, 6, {vB0}", f"v_bfe_u32 {vB1}, v0, 4, 1", f"v_lshl_add_u32 {vB0}, {vB1}, 5, {vB0}",
     f"v_and_b32 {vB1}, 3, v0", f"v_lshl_add_u32 {vB0}, {vB1}, 3, {vB0}", blk(f"s_lshl_b32 s3, {sKQ}, 5\nv_xor_b32 {vB0}, s3, {vB0}\ns_and_b32 s3, {sKQ}, 1\ns_lshl_b32 s3, s3, 13\nv_add_u32 {vB0}, s3, {vB0}"), f"v_xor_b32 {vB1}, 64, {vB0}"]

def xaddr(slots):
    F = []
    for j in range(1, 4):
        F.append(blk(f"s_xor_b32 s4, {sKQ}, {j}\ns_lshl_b32 s4, s4, 12\ns_add_u32 s4, s4, {slots[j-1]*SLOT}\nv_add_u32 {XW[j-1]}, s4, v9"))
    return F
def xwrite(acc2):
    F = []
    for j in (2, 3, 1):
        src = acc2[j >> 1] + 8 * (j & 1)
        F += [f"ds_write_b128 {XW[j-1]}, {R(src+4*h,4)} offset:{h*1024}" for h in range(2)]
    return F
def xread(slots, own, tmp):
    F = []
    for i in range(3):
        for h in range(2):
            r, off = ldsaddr(XRD, slots[i] * SLOT + h * 1024)
            F.append(f"ds_read_b128 {R(tmp+8*i+4*h,4)}, {r} offset:{off}")
    G = []
    for i in range(3):
        for j in range(8): G.append(f"v_add_f32 v{own+j}, v{own+j}, v{tmp+8*i+j}")
    return F, G
def fin_setup():
    return [blk(f"s_lshl_b32 {sUC}, {sRB}, 16\ns_lshl_b32 s4, {sRT2}, 15\ns_add_u32 {sUC}, {sUC}, s4\ns_lshl_b32 s4, {sCB}, 7\ns_add_u32 {sUC}, {sUC}, s4\ns_lshl_b32 s4, {sKQ}, 5\ns_add_u32 {sUC}, {sUC}, s4"),
            f"v_lshlrev_b32 v20, 8, {vP4}", "v_lshrrev_b32 v21, 5, v0", "v_lshl_add_u32 v20, v21, 4, v20",
            f"buffer_load_dwordx4 v[16:19], v20, {sX}, {sUC} offen",
            blk(f"s_lshl_b32 s4, {sW}, 11\nv_add_u32 v11, s4, {vA16}"), "v_add_u32 v12, 0x10000, v11", "v_add_u32 v13, 0x20000, v11"]

def aphase(s, ring, ch, F, early, late, toff):
    G = CFG['GT']
    groups = {0: (0xf, ['f1'], 0, 0), 8: (0xf, ['f2'], G[3], 128), 16: (0x5, ['f3'], G[0], 384), 20: (0xf, ['f3'], G[1], 256), 28: (0xf, ['fo'], G[2], 512)}
    pr = lambda c: [bnm(0, c), bnm(1, c)]
    bars = {8: (pr(2) + pr(3), ring.rel8), 12: ([], pr(2)), 16: (pr(4) + pr(5), pr(3)), 20: ([], pr(4)), 24: (pr(6) + pr(7), pr(5)), 30: (pr(8), pr(6))}
    if CFG['FB4']: bars = {8: (pr(2) + pr(3), ring.rel8), 16: (pr(4) + pr(5), pr(2) + pr(3)), 24: (pr(6) + pr(7), pr(4) + pr(5)), 30: (pr(8), pr(6))}
    cert = {n: k for k, v in bars.items() for n in v[0]}
    pool = list(range(224, 256, 4)) + list(early); restricted = set(early)
    late = dict(late)
    for v in late.values(): restricted |= set(v)
    areg = {}; arr = {}
    st = dict(clk=0, pipe=0, nxt=0, polled={0: 0}, checked=set(), tch=set())
    LT, LAT, QD = CFG['LT'], CFG['LAT'], CFG['QD']
    OWNY = YA[0]; OWNS = SA[0]; XT = 64
    PB = CFG['PB2']
    bars[32] = bars.pop(30)
    YB = 33 - PB
    cert = {n: k for k, v in bars.items() for n in v[0]}
    W = []
    PR = {0: vPoll, 8: vPoll, 16: 'v2', 20: 'v3', 28: 'v23'}
    PS = dict(zip((16, 20, 28), CFG['PS' + s.name[0]]))
    def issue_cost():
        st['pipe'] = max(st['pipe'], st['clk']) + (LT if 'v0' not in s.marks else CFG['LT2']); st['clk'] += 16
        return st['pipe'] + LAT
    def try_load(step, must=None):
        for m in list(late):
            if m in s.marks: pool.extend(late.pop(m))
        t = st['nxt']
        for g in sorted(groups):
            if g >= t and g not in st['polled']:
                if (g != 8 or 0 in st['checked']) and ((st['clk'] >= groups[g][2] + toff - CFG['PLT'] if g == 8 else (step >= PS[g][0] and (PS[g][0] > 0 or len(F) < CFG['PVL']))) or must == g):
                    poll_issue(s, sWs, sFL2, PR[g], imm=groups[g][3]); st['polled'][g] = max(st['pipe'], st['clk']) + LAT; st['clk'] += 16
                    log.append(f"pl{g}@{step}")
                    return True
        if must is None and st['pipe'] - st['clk'] > (QD if 'v0' not in s.marks else CFG['QD2']): return False
        bneed = cert.get(ring.q[0][0][0], 0) - CFG['BL'] if ring.q else 99
        aok = False
        if t < 36:
            ok = [r for r in pool if not (r in restricted and t > 26)]
            aok = bool(ok)
            if t in groups and t not in st['checked']:
                ready = t in st['polled'] and ((st['clk'] >= st['polled'][t] and st['clk'] >= groups[t][2] + toff) if t <= 8 else step >= PS[t][1]) and all(r in s.marks for r in groups[t][1]) and (t <= 8 or 'v0' in s.marks)
                aok = aok and (ready or must == t)
        if aok and (t <= bneed or must is not None):
            if t in groups and t not in st['checked']:
                for r in groups[t][1]:
                    n = until(s, ring, F, r)
                    if n: print("   forced", n, "fillers for", r, "in", s.name)
                poll_check(s, sWs, sFL2, groups[t][0], PR[t], imm=groups[t][3]); st['checked'].add(t); log.append(f"chk{t}@{step}/{st['clk']}")
            areg[t] = ok[0]; pool.remove(ok[0])
            base, off = (sA2y, ORDER[t] * 1024) if t < 28 else (sA2s, (t - 28) * 1024)
            s.e(f"s_add_u32 {sSoW}, {base}, {off & ~4095}\nbuffer_load_dwordx4 {R(areg[t],4)}, {vA16}, {sWs}, {sSoW} offen offset:{off & 4095} sc1")
            arr[t] = issue_cost(); st['nxt'] += 1; log.append(f"A{t}@{step}")
            return True
        if ring.q and must is None:
            half = ring.log[ring.q[0][0][0]][2] != 'all'
            ring.pump(s, 1); issue_cost()
            if half: st['pipe'] -= CFG['LT2'] // 2
            return True
        return False
    log = []
    V = []
    for t in range(36):
        vdone = 0
        while True:
            if try_load(t): continue
            if CFG['MIX'] and t in arr and st['clk'] >= arr[t] + CFG['MG'] and vdone >= CFG['MIX'] and (t < 4 or 'p1' in s.marks) and (t < 7 or 'vbar' in s.marks): break
            if F and isinstance(F[0], tuple) and F[0][0] == 'hold':
                F[0] = ('tilt', t + F[0][1])
            if F and isinstance(F[0], tuple) and F[0][0] == 'tilt' and t >= F[0][1]: F.pop(0)
            if F and not (t in arr and st['clk'] >= arr[t] and not pool and st['nxt'] < 36):
                l = len(F); n0 = s.n_issued
                fill(s, F, 6, force=True)
                st['clk'] += (s.n_issued - n0) * CFG['VC']; vdone += s.n_issued - n0
                if len(F) < l: continue
            if t not in arr:
                assert try_load(t, must=st['nxt']); continue
            if st['clk'] < arr[t] and (st['nxt'] < 36 or ring.q):
                nclk = min(arr[t], st['clk'] + 32)
                if nclk < arr[t]:
                    st['clk'] = nclk
                    if try_load(t): continue
                    continue
            break
        st['clk'] = max(st['clk'], arr[t])
        if t == 4: until(s, ring, F, 'p1')
        for ct in ((1, 0) if t in (27, 35) else (0, 1)):
            acc = (YA if t < 28 else SA)[ct]
            cin = "0" if t in (0, 28) else R(acc, 16)
            s.e(f"{MF} {R(acc,16)}, {R(breg(t)+4*ct,4)}, {R(areg[t],4)}, {cin}")
        st['clk'] += 128 if not (F and CFG['MIX']) else 48
        pool.append(areg[t])
        if 4 <= t <= 7: pool += [XA + 8 * t, XA + 8 * t + 4]
        rs_ = t + PB
        if rs_ in bars:
            if rs_ == 8:
                n = until(s, ring, F, 'vbar')
                if n: print("   forced", n, "fillers before a8 in", s.name)
            bar(s, ring, f"a{rs_}", bars[rs_][0], bars[rs_][1], lg0=True); log.append(f"|a{rs_}/{st['clk']}")
        if NR <= rs_ < 36: bread(ring, ch, rs_)(s)
        if t == 26: assert not F, F
        if t == 25:
            ys = [ring.free.pop(0) for _ in range(3)]
            drain(s, [blk(f"s_lshl_b32 s4, {sRT2}, 11\nv_add_u32 v9, s4, {vA16}")] + xaddr(ys))
        if t == 27:
            stamp('yend')(s)
            drain(s, ["v_permlane32_swap_b32 v16, v18", "v_permlane32_swap_b32 v17, v19"])
            for j in range(4): drain(s, [f"v_lshlrev_b32 v{XT+24+2*j}, 16, v{16+j}", f"v_and_b32 v{XT+25+2*j}, 0xffff0000, v{16+j}"])
            W = xwrite(YA)
        if 27 <= t < YB - 1:
            k = -(-len(W) // (YB - 1 - t))
            drain(s, W[:k]); W = W[k:]
        if t == YB - 1:
            ss = [ring.free.pop(0) for _ in range(2)] + [9]
            rdl, V = xread(ys, OWNY, XT)
            drain(s, rdl + xaddr(ss))
            for j in range(8): V.append(f"v_mul_f32 v{XT+j}, 0xbfb8aa3b, v{OWNY+j}")
            for j in range(8): V.append(f"v_exp_f32 v{XT+j}, v{XT+j}")
            for j in range(8): V.append(f"v_add_f32 v{XT+j}, 1.0, v{XT+j}")
            for j in range(8): V.append(f"v_rcp_f32 v{XT+j}, v{XT+j}")
            for j in range(8): V.append(f"v_mul_f32 v{OWNY+j}, v{OWNY+j}, v{XT+j}")
        if YB <= t < 35:
            drain(s, V[:CFG['TV']]); V = V[CFG['TV']:]
    print("   sched", s.name, " ".join(log), "end", st['clk'])
    stamp('send')(s)
    W = xwrite(SA)
    drain(s, V[:10]); V = V[10:]
    for w in W:
        drain(s, [w] + V[:6]); V = V[6:]
    drain(s, V)
    s.wait(lg=0); s.e("s_barrier")
    rdl, V = xread(ss, OWNS, XT)
    if CFG['PKT']:
        V = [pk2("add", XT + j, XT + j, XT + 8 + j) for j in range(0, 8, 2)] + [pk2("add", OWNS + j, OWNS + j, XT + 16 + j) for j in range(0, 8, 2)] + [pk2("add", OWNS + j, OWNS + j, XT + j) for j in range(0, 8, 2)]
    drain(s, rdl + V)
    for j in range(8): s.e(f"v_fma_f32 v{OWNS+j}, v{OWNS+j}, v{OWNY+j}, v{XT+24+j}")
    for j in range(4): s.e(f"v_cvt_pk_bf16_f32 v{16+j}, v{OWNS+2*j}, v{OWNS+2*j+1}")
    s.e("v_permlane32_swap_b32 v16, v18\nv_permlane32_swap_b32 v17, v19")
    s.e(f"buffer_store_dwordx4 v[16:19], v20, {sOut}, {sUC} offen")
    stamp('st')(s)
    if PROFILE:
        s.raw("s_waitcnt vmcnt(0) lgkmcnt(0)")
        stamp("end")(s)
        s.raw("s_waitcnt lgkmcnt(0)")
        n = len(s.snames)
        for i in (n - 2, n - 1): s.raw(f"v_writelane_b32 v29, s{STAMP0+2*(i%4)}, {i}")
        s.e(f"v_subrev_u32 v29, s96, v29\nv_lshlrev_b32 v16, 2, v0")
        s.raw("s_memrealtime s[84:85]\ns_waitcnt lgkmcnt(0)\nv_writelane_b32 v29, s58, 62\nv_writelane_b32 v29, s84, 63")
        s.e(f"s_lshl_b32 s3, {sBID}, 11\ns_lshl_b32 s4, {sW}, 8\ns_add_u32 s3, s3, s4\ns_add_u32 s3, s3, {PROF_OFF}")
        s.e(f"buffer_store_dword v29, v16, {sWs}, s3 offen")
        if CFG.get('DBG') is not None:
            lab = label()
            s.e(f"s_cmp_lg_u32 {sBID}, {CFG['DBG']}\ns_cbranch_scc1 {lab}\ns_cmp_lg_u32 {sW}, 0\ns_cbranch_scc1 {lab}")
            idx = list(range(n - 1, -1, -3))[:16][::-1]
            for k, i in enumerate(idx):
                s.raw(f"v_readlane_b32 s4, v29, {i}\ns_nop 1\nv_mov_b32 v17, s4\nbuffer_store_dword v17, {vFO}, {sDbg}, 0 offen offset:{4*k}\ns_nop 1")
            s.e(f"{lab}:")
            if s.name in ('A0', 'B0'): print("DBG", s.name, [s.snames[i] for i in idx])
        open(f"snames_{s.name}.txt", "w").write(" ".join(s.snames))
    s.e("s_endpgm")
    s.slots = (dict(ring.slot), ys, ss)
    print("   ring", s.name, " ".join(f"{k}:{v[0]}>{v[1]}" for k, v in ring.log.items()))

SCR_DUM = SCR + 15360
def touchB(s):
    if not CFG['TB']: return
    s.e(f"s_lshl_b32 s4, {sBID}, 3\ns_add_u32 s4, s4, {sW}\ns_mul_i32 s5, s4, 896\ns_lshl_b32 s4, s4, 8\ns_mov_b32 m0, {SCR_DUM}")
    s.e(f"v_min_u32 {vT}, 6, v0\nv_lshlrev_b32 {vT}, 7, {vT}")
    s.e(f"buffer_load_dword {vT}, {sW2}, s5 offen lds")
    s.e(f"v_min_u32 {vT}, 1, v0\nv_lshlrev_b32 {vT}, 7, {vT}")
    s.e(f"buffer_load_dword {vT}, {sWo}, s4 offen lds")
def touchW(s):
    if not CFG['TW']: return
    s.e(f"s_lshl_b32 s4, {sBID}, 3\ns_add_u32 s4, s4, {sW}\ns_mul_i32 s5, s4, 896\ns_mul_i32 s4, s4, 768\ns_mov_b32 m0, {SCR_DUM}")
    s.e(f"v_min_u32 {vT}, 6, v0\nv_lshlrev_b32 {vT}, 7, {vT}")
    s.e(f"buffer_load_dword {vT}, {sW1}, s5 offen lds")
    s.e(f"v_min_u32 {vT}, 5, v0\nv_lshlrev_b32 {vT}, 7, {vT}")
    s.e(f"buffer_load_dword {vT}, {sWq}, s4 offen lds")
def touch2(c, hf=None):
    def f(s):
        if c == 0 and not hf:
            if hf is None: s.e(f"s_lshl_b32 s4, s87, 3")
            else: s.e(f"s_lshr_b32 s4, s87, 4\ns_lshl_b32 s4, s4, 3\ns_and_b32 s5, s87, 7\ns_add_u32 s4, s4, s5\ns_lshl_b32 s4, s4, 3")
            s.e(f"s_add_u32 s4, s4, {sW}\ns_lshr_b32 s5, s4, 6\ns_and_b32 s4, s4, 63\ns_lshl_b32 s4, s4, 10\n"
                f"s_mul_i32 s90, s5, {448*1024}\ns_add_u32 s90, s90, s4\ns_lshl_b32 s91, s5, 17\ns_add_u32 s91, s91, s4")
        s.e(f"s_mov_b32 m0, {SCR_DUM}")
        h = hf or 0
        if c < 7: s.e(f"s_add_u32 {sSoW}, s90, {ORDER[4*c]*16384 + h*896*1024}\nbuffer_load_dwordx4 {vA16}, {sW2}, {sSoW} offen lds")
        else: s.e(f"s_add_u32 {sSoW}, s91, {(c-7)*65536 + h*256*1024}\nbuffer_load_dwordx4 {vA16}, {sWo}, {sSoW} offen lds")
    return f
def touch3(c, ch):
    def f(s):
        wv = CFG['T3W'][c]
        if wv // 4 != ch: return
        lab = label()
        s.e(f"s_cmp_lg_u32 {sW}, {wv}\ns_cbranch_scc1 {lab}")
        mul = 448 * 1024 if c < 7 else 128 * 1024
        off = ORDER[4 * c] * 16384 if c < 7 else (c - 7) * 65536
        s.e(f"s_lshr_b32 s90, s87, 3\ns_mul_i32 s90, s90, {mul}\ns_and_b32 s91, s87, 7\ns_lshl_b32 s91, s91, 13\ns_add_u32 s90, s90, s91\ns_add_u32 s90, s90, {off}\ns_mov_b32 m0, {SCR_DUM}")
        s.e(f"v_lshlrev_b32 v{CSA+3}, 7, v0")
        s.raw(f"buffer_load_dword v{CSA+3}, {sW2 if c < 7 else sWo}, s90 offen lds")
        s.e(f"{lab}:")
    return f
def touch4(k, ch):
    def f(s):
        if ch: return
        lab = label()
        n = (28, 28, 16)[k]
        s.e(f"s_cmp_lg_u32 {sW}, {k}\ns_cbranch_scc1 {lab}")
        s.e(f"s_mul_i32 s90, s87, {(56, 56, 16)[k]*1024}\ns_add_u32 s90, s90, {CFG['SC']*128 + (28*1024 if k == 1 else 0)}\ns_mov_b32 m0, {SCR_DUM}")
        s.e(f"v_min_u32 v{CSA+3}, {n-1}, v0\nv_lshlrev_b32 v{CSA+3}, 10, v{CSA+3}")
        s.raw(f"buffer_load_dword v{CSA+3}, {sW2 if k < 2 else sWo}, s90 offen lds")
        s.e(f"{lab}:")
    return f
def add_touch(segs, typ):
    if CFG['T2'] == 4:
        for k, at in enumerate(CFG['T4AT']): segs[at // 32].posts.setdefault(at % 32, []).append(touch4(k, segs[0].ch))
    if CFG['T2'] == 3:
        for c, at in enumerate(CFG['T2AT']): segs[at // 32].posts.setdefault(at % 32, []).append(touch3(c, segs[0].ch))
    for c, at in enumerate(CFG['T2AT']):
        if CFG['T2'] == 1: segs[at // 32].posts.setdefault(at % 32, []).append(touch2(c))
        if CFG['T2'] == 2 and typ == 'A':
            segs[at // 32].posts.setdefault(at % 32, []).append(touch2(c, 0))
            segs[(at + 2) // 32].posts.setdefault((at + 2) % 32, []).append(touch2(c, 1))

def touchA(t0, n, mask, T, T2, vp=vPoll):
    def f(s):
        if not CFG['TA']: return
        lab = label()
        s.e(f"v_min_u32 {T}, {n-1}, v0")
        if t0 < 28 and n > 4:
            d = ORDER[t0 + 4] - ORDER[t0] - 4
            s.e(f"v_lshrrev_b32 {T2}, 2, {T}\nv_mul_u32_u24 {T2}, {d}, {T2}\nv_add_u32 {T}, {T}, {T2}")
        off = ORDER[t0] * 1024 if t0 < 28 else 0
        s.e(f"v_lshlrev_b32 {T}, 10, {T}\ns_lshl_b32 {sSoW}, {sCB}, 7\ns_add_u32 {sSoW}, {sSoW}, {sA2y if t0 < 28 else sA2s}\ns_add_u32 {sSoW}, {sSoW}, {off}\ns_mov_b32 m0, {SCR_DUM}")
        s.e(f"v_cmp_ne_u32 vcc, 0, {vp}\ns_andn2_b32 {sT0}, {mask:#x}, vcc_lo\ns_cbranch_scc1 {lab}")
        s.raw(f"buffer_load_dword {T}, {sWs}, {sSoW} offen sc1 lds")
        s.e(f"{lab}:")
    return f

def ilv(st, co):
    out = st[:3] + co[:3] + [st[3]]
    a, b = st[4:], co[3:-1]
    while a or b:
        if a: out.append(a.pop(0))
        if a and len(a) > 2 * len(b): out.append(a.pop(0))
        if b: out.append(b.pop(0))
    return out + co[-1:]
def p0_items(a, b):
    it = []
    for c in range(4): it += x_items(c) + [a[c]]
    return it + b
def packin(acc): return [f"v_cvt_pk_bf16_f32 v{acc+j}, v{acc+2*j}, v{acc+2*j+1}" for j in range(8)]
def N(n, lo, hi): return [f"{n}{c}" for c in range(lo, hi)]
def initchk(s):
    poll_check(s, sDbg, "0", 0xffffffff, imm=128); s.marks["init"] = 1
initpoll = lambda s: poll_issue(s, sDbg, "0", imm=128)
pollA = lambda s: poll_issue(s, sWs, sFL2)

def stream_A(s0, ch):
    CB, DB = CFG['CB'], CFG['DB']
    s = s0.fork(f"A{ch}"); s.e(f"L_typeA{ch}:")
    bl = BIASL['A']
    items = p0_items(w_items("K", sWq, vDq, sUA, 3072), w_items("V", sWq, vDq, sUB, 3072)) + w_items("H", sW1, vD1, sUC, 3584) + b_items(0)
    ring = Ring(items, range(9), ch); ring.hold = ('XL3', 'XH3'); ring.upto0 = "V3"
    start(s, ring, 'K')
    s.e(f"s_lshl_b32 {sSCRW}, {sW}, 12\ns_add_u32 {sSCRW}, {sSCRW}, {2*SLOT}")
    s.marks.update(f1=1, f2=1, fo=1)
    uK = dict(name="K", acc=ACC_A, trans=True, kind='w', csi=0)
    uV = dict(name="V", acc=ACC_B, trans=False, kind='w', csi=1)
    uH = dict(name="H", acc=ACC_C, trans=True, kind='w', csi=0)
    F = [('wait', 'c1')] + ilv(stats_fin(PT), correct(uK, ch, PT + 8))
    F += ["v_lshrrev_b32 v26, 5, v0", "v_lshlrev_b32 v26, 1, v26", "v_bfe_u32 v25, v0, 1, 2", "v_xor_b32 v26, v25, v26", f"v_lshlrev_b32 v25, 4, {vP4}", "v_lshl_add_u32 v25, v26, 4, v25",
          f"v_add_u32 v25, {sSCRW}, v25", "v_xor_b32 v24, 16, v25"]
    F += packin(ACC_A)
    F += [f"{MF} {R(PT,16)}, {R(PHI,4)}, {R(ACC_A,4)}, 0", f"{MF} {R(ACC_C,16)}, {R(PHI+4,4)}, {R(ACC_A+4,4)}, 0", ('gap', 12)]
    for h, P in enumerate((PT, ACC_C)):
        if h == 1 and CFG['PKA']:
            sm = softmax_pk(P, ACC_A + 8, "v26", vT, PHI); F += sm[:9] + [('wait', 'c2')] + sm[9:]
        else: F += softmax(P, ACC_A + 8, "v26", vT)
        F += [f"ds_write_b128 v25, {R(ACC_A+8,4)} offset:{2048*h}", f"ds_write_b128 v24, {R(ACC_A+12,4)} offset:{2048*h}"]
    F += [('wait', 'c2')]
    F += ["v_lshrrev_b32 v26, 5, v0", "v_lshlrev_b32 v26, 4, v26", blk(f"s_lshl_b32 s4, {sRT}, 7\ns_add_u32 s4, s4, {SCR_RS}\nv_add_u32 {vT}, s4, v26")]
    for q in range(4): F.append(f"ds_read_b128 {R(PT+4*q,4)}, {vT} offset:{32*q}")
    F += ["v_bfe_u32 v25, v0, 2, 2", "v_lshlrev_b32 v25, 6, v25", "v_lshl_add_u32 v25, v26, 4, v25", f"v_bfe_u32 {vT}, v0, 4, 1", f"v_cmp_eq_u32 s[94:95], 1, {vT}",
          "v_lshrrev_b32 v24, 5, v0", f"v_xor_b32 {vT}, v24, {vT}", f"v_lshl_add_u32 v25, {vT}, 5, v25",
          "v_lshrrev_b32 v24, 2, v0", "v_xor_b32 v24, v24, v0", "v_bfe_u32 v24, v24, 1, 1", "v_lshl_add_u32 v25, v24, 4, v25",
          f"v_and_b32 {vT}, 1, v0", f"v_lshl_add_u32 v25, {vT}, 3, v25", f"v_add_u32 v25, {sSCRW}, v25", f"v_mov_b32 {vT}, {sC11}"]
    for t in range(2):
        for rd in range(2): F.append(f"ds_read_b64_tr_b16 {R(PHI+4*t+2*rd,2)}, v25 offset:{2048 + t*1024 + rd*512}")
    F += [pk2("mul", ACC_B + r, ACC_B + r, PT + r) for r in range(0, 16, 2)] if CFG['PKA'] else [f"v_mul_f32 v{ACC_B+r}, v{ACC_B+r}, v{PT+r}" for r in range(16)]
    F += packin(ACC_B)
    for t in range(2):
        for rd in range(2): F.append(f"ds_read_b64_tr_b16 {R(ACC_B+8+4*t+2*rd,2)}, v25 offset:{t*1024 + rd*512}")
    for j in range(8): F.append(f"v_cndmask_b32 v{ACC_A+8+j}, {vT}, v{ACC_B+j}, s[94:95]")
    for j in range(8): F.append(f"v_cndmask_b32 v{ACC_A+j}, v{ACC_B+j}, {vT}, s[94:95]")
    F += [f"{MF} {R(PT,16)}, {R(ACC_A,4)}, {R(ACC_B+8,4)}, 0", f"{MF} {R(PT,16)}, {R(ACC_A+4,4)}, {R(ACC_B+12,4)}, {R(PT,16)}",
          f"{MF} {R(ACC_B,16)}, {R(ACC_A+8,4)}, {R(PHI,4)}, 0", f"{MF} {R(ACC_B,16)}, {R(ACC_A+12,4)}, {R(PHI+4,4)}, {R(ACC_B,16)}"]
    F += [f"v_add_u32 v25, {sSCRW}, {vA16}", blk(f"s_lshl_b32 s4, {sW}, 9\ns_add_u32 s4, s4, {SCR_Z}\nv_lshlrev_b32 v26, 2, v0\nv_add_u32 v26, s4, v26")]
    F += [f"ds_write_b128 v25, {R(PT,4)}", f"ds_write_b128 v25, {R(PT+4,4)} offset:1024", f"ds_write_b32 v26, v{PT+8}",
          f"ds_write_b128 v25, {R(ACC_B+8,4)} offset:2048", f"ds_write_b128 v25, {R(ACC_B+12,4)} offset:3072", f"ds_write_b32 v26, v{ACC_B} offset:256"]
    F += [blk(f"s_lshl_b32 s4, {sRT}, 10\ns_add_u32 s4, s4, {2*SLOT + ch*SLOT}\nv_add_u32 v25, s4, {vA16}"),
          blk(f"s_lshr_b32 s4, {sRT}, 1\ns_lshl_b32 s4, s4, 8\ns_add_u32 s4, s4, {SCR_Z + ch*2048}\nv_add_u32 v26, s4, {vP4}"), mark('kvw')]
    ER = [f"ds_read_b128 {R(PT+4*r,4)}, v25 offset:{r*4096}" for r in range(4)] + [f"ds_read_b32 v{ACC_A+r}, v26 offset:{r*512}" for r in range(4)]
    ER += ["v_lshrrev_b32 v25, 5, v0", f"v_lshl_add_u32 v25, v25, 9, {vP4}", blk(f"s_lshl_b32 s5, {sRT2}, 10\nv_add_u32 v25, s5, v25"),
           f"v_lshrrev_b32 {vT}, 4, v0", f"v_cmp_eq_u32 s[94:95], {sRT2}, {vT}", f"v_mov_b32 {vT}, {BIG}",
           blk(f"s_and_b32 s5, {sG}, 1\ns_mul_i32 s5, s5, {10*1024}\ns_add_u32 s5, s5, {ch*2048}\ns_add_u32 {sUD}, {sKS}, s5\ns_lshl_b32 s4, {sI}, 7\ns_add_u32 {sKVF}, {sKVF}, s4"),
           f"v_cndmask_b32 v26, {vT}, {vP4}, s[94:95]"]
    for j in range(4): ER += [f"v_add_f32 v{PT+j}, v{PT+j}, v{PT+4+j}", f"v_add_f32 v{PT+8+j}, v{PT+8+j}, v{PT+12+j}"]
    for j in range(4): ER.append(f"v_add_f32 v{PT+j}, v{PT+j}, v{PT+8+j}")
    ER += [f"v_add_f32 v{ACC_A}, v{ACC_A}, v{ACC_A+1}", f"v_add_f32 v{ACC_A+2}, v{ACC_A+2}, v{ACC_A+3}", f"v_add_f32 v{ACC_A}, v{ACC_A}, v{ACC_A+2}"]
    for j in range(4): ER.append((f"buffer_atomic_add_f32 v{PT+j}, v25, {sWs}, {sKVs} offen offset:{j*128}", "kv"))
    ER += [(f"buffer_atomic_add_f32 v{ACC_A}, v26, {sWs}, {sKVs} offen offset:2048", "kv"), stamp('kvat')]
    EH = correct(uH, ch, PHI, BI0) + fin_setup() + (mish_pk if CFG['PKH'] else mish)(ACC_C, PT + 8, sUD, "actA")
    fkv = flag_store("kv", sKVF, 0, 'fkv'); f3 = flag_store("actA", sFL, 2 * 128, 'f3')
    pr = lambda c: [bnm(0, c), bnm(1, c)]
    m0 = pass0(s, ring, uK, ch, bl, "V3", ["V0"])
    mV = MSeg(ring, uV, ch, {CB: [B(ring, "c1", ["V1", "V2"], ["K3"] + ring.c1rel)], DB: [B(ring, "d1", ["V3", "H0"], N("V", 0, 2))]}, dma=CFG['ST'])
    if CFG['EA']:
        def h1(s):
            until(s, ring, FH, 'erd')
            bar(s, ring, "h1", [], ["H0"] + pr(0), extra=[2, 3])
        mH = MSeg(ring, uH, ch, {15: [h1], DB + 2: [B(ring, "h2", ["H3"] + pr(1), ["H1"])]},
              {6: [lambda s: drain(s, p2_setup(ring))], 7: pull(ring, ch, 0)[:2], 8: pull(ring, ch, 0)[2:], 22: pull(ring, ch, 1)[:2], 24: pull(ring, ch, 1)[2:], 27: [pollA], CFG['KVW']: [fkv]}, dma=CFG['ST'])
    else:
        mH = MSeg(ring, uH, ch, {DB: [B(ring, "h2", ["H3"] + pr(0), N("H", 0, 2), extra=[2, 3])]},
                  {18: [lambda s: drain(s, p2_setup(ring))], 22: pull(ring, ch, 0)[:2], 24: pull(ring, ch, 0)[2:], 27: [pollA], CFG['KVW']: [fkv]}, dma=CFG['ST'])
    m0.posts.setdefault(29, []).append(lambda s: drain(s, phi_frags()))
    add_touch([m0, mV, mH], 'A')
    mV.posts.setdefault(30, []).append(initpoll)
    m0.run(s, mV); mV.run(s, None, F, CFG['KB'] + CFG['KD'] * (1 - 2 * ch))
    bar(s, ring, "c2", [], N("V", 2, 4), lg0=True)
    print("   A V-only block:", len(F))
    VB_ = correct(uV, ch, WB) + F + [initchk, mH.pre]
    if CFG.get('VST'):
        for k in range(len(VB_) // 12 * 12, 0, -12): VB_.insert(k, stamp(f"v{k}"))
    vseg(s, ring, VB_, flush=False)
    bar(s, ring, "d2", ["H1", "H2"] + (pr(0) if CFG['EA'] else []))
    FH = list(ER) + [mark('erd')]
    mH.run(s, None, FH, CFG['VB'])
    assert not FH
    if CFG['EA']:
        bar(s, ring, "e1", [], N("H", 2, 4) + pr(1), lg0=True); ring.rel8 = []
    else:
        bar(s, ring, "e1", pr(1), N("H", 2, 4) + pr(0), lg0=True)
        drain(s, pull(ring, ch, 1))
        ring.rel8 = pr(1)
    s.marks.update(vbar=1, p1=1)
    F = EH + [mark('v1'), mark('v0'), ('hold', CFG['F3G']), f3]
    aphase(s, ring, ch, F, list(range(36, 64, 4)) + list(range(80, 96, 4)) + [100, 120, 124], {'v1': [104, 108, 112, 116]}, CFG['TOFF'])
    return s

def stream_B(s0, ch):
    CB, DB = CFG['CB'], CFG['DB']
    s = s0.fork(f"B{ch}"); s.e(f"L_typeB{ch}:")
    bl = BIASL['B']
    H5 = [(f"F{c}", sW1, vD5, sUD, 0, 16 * 3584, 0, 128 * 3584, lambda hf, c=c: 2 * c + hf) for c in range(2)]
    items = p0_items(w_items("U", sW1, vD1, sUA, 3584), w_items("Y", sW1, vD1, sUB, 3584))
    Qi = w_items("Q", sWq, vDq, sUC, 3072); bi = b_items(1)
    items += H5 + [Qi[0]] + bi[:2] + [Qi[1], Qi[2]] + bi[2:4] + [Qi[3]] + bi[4:] if CFG['EB'] else H5 + Qi + bi
    ring = Ring(items, range(9), ch); ring.upto0 = "Y3"; ring.strict = bool(CFG['EB'])
    start(s, ring, 'U')
    s.e(f"s_and_b32 s5, {sG}, 1\ns_cmp_eq_u32 s5, 0\ns_cselect_b32 s5, 4, 2\ns_cselect_b32 s4, {12*1024}, 0\ns_lshl_b32 s5, s5, 10\n"
        f"s_add_u32 {sSCRW}, {sKS}, s4\ns_add_u32 s5, s5, {ch*2048}\ns_add_u32 {sKS}, {sKS}, s5")
    uU = dict(name="U", acc=ACC_A, trans=True, kind='w', csi=0)
    uY = dict(name="Y", acc=ACC_B, trans=True, kind='w', csi=1)
    uF = dict(name="F", acc=ACC_C, trans=True, kind='h5', csi=0)
    uQ = dict(name="Q", acc=ACC_A, trans=True, kind='w', csi=1)
    EU = ilv(stats_fin(PT), correct(uU, ch, PT + 8, BI0)) + [('gap', 14)] + mish(ACC_A, PT, sKS, "act1") + [f"s_add_u32 {sKS}, {sKS}, 4096"]
    EY = correct(uY, ch, PT + 8, BI1) + [mark('b1dead'), ('gap', 16)] + mish(ACC_B, PT, sKS, "act2")
    EF = correct(uF, ch, PT + 8, BI2) + [('gap', 16)] + mish(ACC_C, PT, sSCRW, "act5")
    EQ = correct(uQ, ch, PT + 12) + phi_frags() + pack16(ACC_A, PK)
    EQ += [f"{MF} {R(PT,16)}, {R(PHI,4)}, {R(PK,4)}, 0", f"{MF} {R(ACC_B,16)}, {R(PHI+4,4)}, {R(PK+4,4)}, 0"] + fin_setup()
    if CFG['PK']: EQ += softmax_pk(PT, ACC_A, "v26", vT, PHI) + softmax_pk(ACC_B, ACC_A + 8, "v26", vT, PHI)
    else: EQ += softmax(PT, ACC_A, "v26", vT) + softmax(ACC_B, ACC_A + 8, "v26", vT)
    f1 = flag_store("act1", sFL, 0, 'f1'); f2 = flag_store("act2", sFL, 128, 'f2'); f3 = flag_store("act5", sFL, 3 * 128, 'f3')
    pr = lambda c: [bnm(0, c), bnm(1, c)]
    FG = ('gap', CFG['FG'])
    F = [('wait', 'c1')] + EU + [mark('m1'), ('wait', 'c2')] + split(EY, 0.6, lambda s: (initchk(s), f1(s))) + [mark('m2')]
    if ch == 0: F += [('wait', 'c3')] + split(EF, 0.6, f2) + [mark('m3')]
    else: F += [FG, f2, mark('m3'), mark('f3')]
    m0 = pass0(s, ring, uU, ch, bl, "Y3", ["Y0"])
    mY = MSeg(ring, uY, ch, {CB: [B(ring, "c1", ["Y1", "Y2"], ["U3"] + ring.c1rel)], DB: [B(ring, "d1", ["Y3", "F0"], N("Y", 0, 2))]}, dma=CFG['ST'])
    c2 = B(ring, "c2", ["F1", "Q0"], N("Y", 2, 4), owner=1)
    if CFG['EB']:
        mQ = MSeg(ring, uQ, ch, {CB: [B(ring, "c3", ["Q1", "Q2"] + pr(0), ["F0", "F1"])], 15: [B(ring, "q1", pr(1), pr(0) + ["Q0"])], DB + 2: [B(ring, "d3", ["Q3"], ["Q1"] + pr(1))]},
              {5: [lambda s: (until(s, ring, F, 'b1dead'), drain(s, p2_setup(ring)))], 7: pull(ring, ch, 0)[:2], 8: pull(ring, ch, 0)[2:], 15: pull(ring, ch, 1)[:2], 16: pull(ring, ch, 1)[2:], 27: [pollA]}, dma=CFG['ST'])
    else:
        mQ = MSeg(ring, uQ, ch, {CB: [B(ring, "c3", ["Q1", "Q2"], ["F0", "F1"])], DB: [B(ring, "d3", ["Q3"] + pr(0), N("Q", 0, 2))]},
                  {15: [lambda s: (until(s, ring, F, 'b1dead'), drain(s, p2_setup(ring)))], 22: pull(ring, ch, 0)[:2], 24: pull(ring, ch, 0)[2:], CFG['TAP']: [pollA], CFG['TAT']: [touchA(0, 8, 0xf, 'v160', 'v161')], 27: [pollA]}, dma=CFG['ST'])
    add_touch([m0, mY, mQ], 'B')
    mY.posts.setdefault(28, []).append(initpoll)
    m0.run(s, mY)
    if ch == 0:
        mF = MSeg(ring, uF, ch, {CB: [c2]}, dma=CFG['ST'] // 2)
        mY.run(s, mF, F, CFG['P1B'] + CFG['PD']); mF.run(s, mQ, F, CFG['FB'])
    else:
        mY.run(s, None, F, CFG['P1B'] - CFG['PD']); c2(s); vrun(s, ring, F, CFG['IB']); mQ.pre(s)
    print("   B forced m1:", until(s, ring, F, 'm1'))
    mQ.run(s, None, F, CFG['QB'][ch])
    KS, OD, OD2, OF, OP = WB, PT, ACC_B, PHI, PK
    def kvfetch(s):
        poll_check(s, sWs, sKVF, 0xffff, vPoll2, vo="v21")
        s.e(f"s_lshl_b32 s5, {sRT2}, 10\ns_add_u32 s5, s5, {sKVs}")
        s.e(f"buffer_load_dwordx4 {R(KS,4)}, {vA16}, {sWs}, s5 offen sc1")
        s.e(f"v_and_b32 v21, 3, v0\nv_lshlrev_b32 v21, 4, v21\ns_lshl_b32 s5, {sRT2}, 6\ns_add_u32 s5, s5, {sKVs}")
        s.e(f"buffer_load_dwordx4 {R(KS+4,4)}, v21, {sWs}, s5 offen offset:2048 sc1")
    IM = [f"v_cvt_pk_bf16_f32 v{KS}, v{KS}, v{KS+1}", f"v_cvt_pk_bf16_f32 v{KS+1}, v{KS+2}, v{KS+3}",
          f"v_cvt_pk_bf16_f32 v{KS+4}, v{KS+4}, v{KS+5}", f"v_cvt_pk_bf16_f32 v{KS+5}, v{KS+6}, v{KS+7}",
          blk(f"s_mul_i32 s5, {sKQ}, 1088\ns_add_u32 s5, s5, {SCR_KV}\ns_lshl_b32 s4, {sRT2}, 9\ns_add_u32 s4, s4, s5\nv_lshlrev_b32 v25, 3, v0\nv_add_u32 v25, s4, v25\n"
              f"ds_write_b64 v25, {R(KS,2)}\ns_lshl_b32 s4, {sRT2}, 5\ns_add_u32 s4, s4, s5\nv_lshrrev_b32 v21, 1, v21\nv_add_u32 v21, s4, v21\nds_write_b64 v21, {R(KS+4,2)} offset:1024"),
          f"v_min_u32 v25, 64, {vP4}", "v_lshlrev_b32 v25, 4, v25", "v_lshrrev_b32 v26, 5, v0", "v_lshl_add_u32 v25, v26, 5, v25",
          blk(f"v_add_u32 v25, {SCR_KV + ch*2176}, v25\ns_lshl_b32 s5, {sG}, 12\ns_add_u32 s5, s5, {sAF}\ns_add_u32 {sSCRW}, s5, {112*1024 + ch*2048}")]
    O = [f"ds_read_b128 {R(OF,4)}, v25", f"ds_read_b128 {R(OF+4,4)}, v25 offset:16", f"ds_read_b128 {R(OP,4)}, v25 offset:1088", f"ds_read_b128 {R(OP+4,4)}, v25 offset:1104"]
    O += [f"{MF} {R(OD,16)}, {R(OF,4)}, {R(ACC_A,4)}, 0", f"{MF} {R(OD,16)}, {R(OF+4,4)}, {R(ACC_A+4,4)}, {R(OD,16)}",
          f"{MF} {R(OD2,16)}, {R(OP,4)}, {R(ACC_A+8,4)}, 0", f"{MF} {R(OD2,16)}, {R(OP+4,4)}, {R(ACC_A+12,4)}, {R(OD2,16)}"]
    for h, D in enumerate((OD, OD2)):
        O += [f"v_add_f32 v26, 0x358637bd, v{D+8}", "v_rcp_f32 v26, v26"]
        for j in range(8): O.append(f"v_mul_f32 v{D+j}, v{D+j}, v26")
        for j in range(4): O.append(f"v_cvt_pk_bf16_f32 v{ACC_A+4*h+j}, v{D+2*j}, v{D+2*j+1}")
        O.append((f"buffer_store_dwordx4 {R(ACC_A+4*h,4)}, {vA16}, {sWs}, {sSCRW} offen offset:{h*1024} sc1", "o"))
    O.append(stamp('ost'))
    if CFG['EB']: bar(s, ring, "e1", [], N("Q", 2, 4), lg0=True)
    else:
        bar(s, ring, "e1", pr(1), N("Q", 2, 4) + pr(0), lg0=True)
        drain(s, pull(ring, ch, 1))
    s.marks['p1'] = 1
    ring.rel8 = []
    def ins(L, back, item): return L[:len(L) - back] + [item] + L[len(L) - back:]
    F2 = F + EQ
    if ch == 0: F2 = ins(F2, 110, f3)
    kp = lambda s: (s.e("v_min_u32 v21, 15, v0\nv_lshlrev_b32 v21, 7, v21"), poll_issue(s, sWs, sKVF, vPoll2, vo="v21"))
    K1, K2, K3 = CFG['KS']
    if CFG['KM'] == 0:
        F2 = ins(ins(F2, CFG['KP'], kp), CFG['KF'], kvfetch)
        F2 += IM + [B(ring, "e2", [], [] if CFG['EB'] else pr(1), lg0=True), mark('vbar')] + O + [mark('v1'), mark('v0'), ('hold', CFG['OW']), flag_store("o", sFL, 4 * 128, 'fo')]
    elif CFG['KM'] == 2:
        s.marks['vbar'] = 1
        F2 = ins(ins(F2, CFG['KP'], kp), CFG['KF'], kvfetch)
        F2 += [mark('v0')] + IM + [('nextbar',)] + O + [mark('v1'), ('hold', CFG['OW']), flag_store("o", sFL, 4 * 128, 'fo')]
    else: F2 += [mark('v0'), mark('vbar'), ('tilt', K1), kp, ('tilt', K2), kvfetch, ('tilt', K3)] + IM + [('nextbar',)] + O + [mark('v1'), ('hold', CFG['OW']), flag_store("o", sFL, 4 * 128, 'fo')]
    ring.rel8 = pr(1) if (CFG['KM'] and not CFG['EB']) else []
    aphase(s, ring, ch, F2, [88, 92], {'f3': [64, 68, 72, 76], 'v1': [80, 84] + list(range(40, 64, 4)) + list(range(96, 128, 4))}, 0)
    return s

def build(path, listform=True):
    s0 = Stream("P")
    if PROFILE: s0.e("s_memtime s[96:97]\ns_memrealtime s[58:59]")
    prologue(s0)
    s0.e(f"s_lshl_b32 s5, {sTY}, 1\ns_add_u32 s5, s5, {sCH}\ns_cmp_eq_u32 s5, 0\ns_cbranch_scc1 L_typeA0\ns_cmp_eq_u32 s5, 1\ns_cbranch_scc1 L_typeA1\ns_cmp_eq_u32 s5, 3\ns_cbranch_scc1 L_typeB1")
    B0 = stream_B(s0, 0); B1 = stream_B(s0, 1); A0 = stream_A(s0, 0); A1 = stream_A(s0, 1)
    assert B0.nbar == B1.nbar and A0.nbar == A1.nbar
    assert B0.slots == B1.slots and A0.slots == A1.slots
    hdr = open("recurrent_scan__linear_kernel_hedgehog__dense_activation_mish__prompt.s.ref").read().split("; Override")[0]
    T = [hdr.rstrip(), f"; @launch {'kernel=' + KNAME + ' ' if listform else ''}grid=(256,1,1) block=(512,1,1) lds=163840",
         '.amdgcn_target "amdgcn-amd-amdhsa--gfx950"', ".text", f".globl {KNAME}", ".p2align 8", f".type {KNAME},@function", f"{KNAME}:"]
    S = [s0, B0, B1, A0, A1]
    for st in S:
        T.append(f"; ---- stream {st.name}  nops={st.stats['nop']} waits={st.stats['wait']} barriers={st.nbar}")
        T.append(st.text())
    for st in S: T += st.ool
    T.append("L_end:\n  s_endpgm")
    T.append(".fill 6144, 4, 0xbf800000")
    T.append(f'''.section .rodata,"a"
.p2align 6
.amdhsa_kernel {KNAME}
  .amdhsa_next_free_vgpr 256
  .amdhsa_next_free_sgpr 102
  .amdhsa_accum_offset 256
  .amdhsa_group_segment_fixed_size 0
  .amdhsa_kernarg_size 88
  .amdhsa_user_sgpr_count 2
  .amdhsa_user_sgpr_kernarg_segment_ptr 1
  .amdhsa_system_sgpr_workgroup_id_x 1
.end_amdhsa_kernel''')
    open(path, "w").write("\n".join(T) + "\n")
    for st in S: print(st.name, "instrs", len(st.out), st.stats, "barriers", st.nbar)

if __name__ == "__main__":
    for a in sys.argv[2:]:
        if a == "prof": PROFILE = True
        elif '=' in a:
            k, v = a.split('='); CFG[k] = eval(v)
    build(sys.argv[1], listform=("final" not in sys.argv))
```

```python
import sys
sys.path.insert(0, 'gen')
from ab import *

KNAME = "recurrent_scan__linear_kernel_hedgehog__dense_activation_mish__prompt_kernel"
PROFILE = False
SLOT = 16384
SCR = 9 * SLOT
SCR_PHI = SCR
SCR_RS = SCR + 2048
SCR_ST = SCR + 2560
SCR_CS = SCR + 6656
SCR_Z = SCR + 10752
SCR_KV = SCR + 10752
Z_OFF = 0x900000
KV_OFF = Z_OFF
KVFLAG_OFF = Z_OFF + 0x20000 + 5120 * 128
ACTFLAG_OFF = Z_OFF + 0x20000
PROF_OFF = 0xA00000
BIG = 0x40000000
CFG = dict(AD=16, A0=8, AN=2, BN=1, G8=1, F3G=4, PB=[(200, 40), (80, 55), (80, 40)], SLP=8, SC=3, T4AT=[30, 36, 38], NBX=2, LG0=0, PWW=0, PVL=60, PSA=[(3, 7), (11, 14), (18, 21)], PSB=[(0, 1), (5, 8), (11, 15)], PB2=3, YB=31, PKT=1, MIX=0, MG=300, EB=0, EA=1, PKH=1, T3W=[0, 1, 2, 3, 0, 1, 2, 3, 0], OWN='', KD=0, PD=0, UP=[0, 0, 0, 1, 2, 2, 4], PAR=2, FB4=0, PKA=1, PK=0, KM=0, KVW=16, KS=(0, 5, 10), KVP=12, TAP=8, TAT=20, TAD=2, CB=6, DB=22, TW=1, TWT=2, GT=[2000, 4000, 5500, 500], TOFF=-1000, LT=200, LT2=200, QD2=800, LAT=900, QD=800, PLT=1500, BL=6, VC=9, T2=4, T2AT=[30, 35, 40, 45, 50, 55, 60, 66, 72], PF=4, PL=4, S0=6, S1=6, PRIO=0, VD=10, KP=160, KF=110, OW=4, G16=8, G28=20, TV=10, TB=1, TBT=28, TA=0, TO=11, T0=0, T1=0, ROT=2, RATE=38, BURST=24576, ST=90,
    CRED=6, AGE=14, P1B=6, FB=5, QB=[9, 3], IB=150, KB=6, VB=8, KVG=60, EH0=60, FG=60, E1=[120, 100], E2=[100, 80])

sX, sWq, sW1, sW2, sWo, sPhi, sB1, sOut, sDbg, sWs = [f"s[{8+4*i}:{11+4*i}]" for i in range(10)]
sW, sRT, sCH, sI, sG, sTY, sRB, sCB, sKQ, sRT2 = [f"s{48+i}" for i in range(10)]
sT0 = "s3"
sC10, sC01, sC11 = "s58", "s59", "s60"
sM0W = "s61"; sSoW = "s62"
sUA, sUB, sUC, sUD = "s63", "s6", "s7", "s2"
sAF, sFL, sAF2, sFL2, sB2, sBo, sKVs, sKVF, sSCRW, sCNT, sKS, sBID = [f"s{64+i}" for i in range(12)]
sA2y, sA2s, sOo = "s0", "s1", "s5"
STAMP0 = 76

vA16 = "v1"; vDq = "v2"; vD1 = "v3"; vDB = "v4"; vD5 = "v5"
VW = 6
vRS, vRSL, vM2 = "v14", "v15", "v22"
CF = 16
BI0, BI1, BI2 = 23, 24, 25
vPoll = "v27"; vFO = "v28"; vOne = "v10"; vP4 = "v30"; vT = "v31"; vPoll2 = "v9"
ACC_A, ACC_B, ACC_C = 32, 48, 64
WB = 80; PT = 96; PHI = 112; PK = 120; XA = 128
XR = 64; XD = 72; HR = 112; STA = 96; CSB = 116; ASEL = 120; CSA = 124
sXb = "s86"; sRot = "s89"; ROT0 = 98

def R(b, n): return f"v[{b}:{b+n-1}]"
def ldsaddr(regs, byte): return regs[byte >> 16], byte & 0xffff
_nl = [0]
def label():
    _nl[0] += 1; return f"L{_nl[0]}"
def stamp(name):
    def f(s):
        if not PROFILE: return
        if not hasattr(s, 'snames'): s.snames = []
        idx = len(s.snames)
        if idx >= 61: return
        s.snames.append(str(name))
        s.e(f"s_memtime s[{STAMP0+2*(idx%4)}:{STAMP0+1+2*(idx%4)}]")
        if idx >= 2: s.raw(f"v_writelane_b32 v29, s{STAMP0+2*((idx-2)%4)}, {idx-2}")
    return f
def srd(s, dst, lo, hi, size):
    b = int(dst[2:dst.index(':')])
    s.e(f"s_mov_b32 s{b}, {lo}\ns_and_b32 s{b+1}, {hi}, 0xffff\ns_mov_b32 s{b+2}, {size}\ns_mov_b32 s{b+3}, 0x20000")
def _pl(srd_, soff, vp, imm, nl):
    if nl is None: return f"buffer_load_dword {vp}, {vP4}, {srd_}, {soff} offen offset:{imm} sc1"
    return f"v_min_u32 {vp}, {nl-1}, v0\nv_lshlrev_b32 {vp}, 7, {vp}\nbuffer_load_dword {vp}, {vp}, {srd_}, {soff} offen offset:{imm} sc1"
def poll_issue(s, srd_, soff, vp=vPoll, imm=0, nl=4):
    assert srd_ == sDbg or 'init' in s.marks
    s.e(_pl(srd_, soff, vp, imm, nl))
def poll_check(s, srd_, soff, mask, vp=vPoll, imm=0, nl=4):
    l1, l2, l3 = label(), label(), label()
    stamp(f"[p{imm//512}_{mask:x}")(s)
    s.e(f"v_cmp_ne_u32 vcc, 0, {vp}\ns_andn2_b32 {sT0}, {mask:#x}, vcc_lo\ns_cbranch_scc1 {l1}\n{l2}:")
    stamp(f"p]")(s)
    s.ool.append(f"""{l1}:
  s_mov_b32 {sCNT}, 0x10000
{l3}:
  s_sleep {CFG['SLP']}
{_pl(srd_, soff, vp, imm, nl)}
  s_waitcnt vmcnt(0)
  v_cmp_ne_u32 vcc, 0, {vp}
  s_nop 1
  s_andn2_b32 {sT0}, {mask:#x}, vcc_lo
  s_cbranch_scc0 {l2}
  s_sub_u32 {sCNT}, {sCNT}, 1
  s_cmp_lg_u32 {sCNT}, 0
  s_cbranch_scc1 {l3}
  s_branch {l2}""")
def flag_store(tagwait, soff, imm, mark):
    def f(s):
        assert 'init' in s.marks
        stamp("(" + mark)(s)
        s.wait_tag(tagwait)
        stamp(mark + ")")(s)
        s.e(f"buffer_store_dword {vOne}, {vFO}, {sWs}, {soff} offen offset:{imm} sc1")
        s.marks[mark] = 1
    return f
def blk(text): return lambda s: s.e(text)

class Ring:
    hold = ()
    def __init__(self, items, free, ch):
        self.items = list(items); self.free = list(free); self.slot = {}; self.q = []; self.log = {}; self.ch = ch
        self.order = {it[0]: k for k, it in enumerate(items)}; self.xres = True
    def release(self, name):
        if name not in self.hold: self.free.append(self.slot[name])
    def assign(self, s, owner='all', upto=None, maxn=99):
        k = 0
        while k < len(self.items) and maxn > 0:
            it = self.items[k]; nm = it[0]
            if upto is not None and self.order[nm] > self.order[upto]: break
            if nm[0] == 'X':
                want = 2 * (int(nm[2]) & 1) + (nm[1] == 'H')
                ok = [x for x in self.free if x == want]
                if not ok: k += 1; continue
            elif nm[0] in 'BF': ok = [x for x in self.free if not (self.xres and x < 4)]
            else: ok = [x for x in self.free if x != 0 and not (self.xres and x < 4)]
            if not ok:
                if nm[0] != 'B' and not self.strict: k += 1; continue
                break
            if nm[0] in 'BF' and 0 in ok: ok = [0]
            self.items.pop(k); sl = ok[0]; self.free.remove(sl); self.slot[nm] = sl; maxn -= 1
            self.log[nm] = [s.nbar, None, owner]
            if owner == 'all': self.q += [(it, sl, h, 0) for h in range(2)]
            elif owner == self.ch: self.q += [(it, sl, h, o) for o in range(2) for h in range(2)]
            if nm == 'XH3': self.xres = False
        self.q.sort(key=lambda e: self.order[e[0][0]])
    def pump(self, s, n=1):
        while n > 0 and self.q:
            it, sl, h, other = self.q.pop(0)
            name, srd_, voff, sbase, o0, o1, dl = it[:7]
            sg = (1 if self.ch == 0 else -1) * other
            vo = voff[h] if isinstance(voff, tuple) else voff
            s.e(f"s_add_u32 m0, {sM0W}, {(sl*SLOT + h*1024 + sg*8192) & 0xffffffff:#x}")
            if len(it) > 7:
                mul, cidx = it[7], it[8](self.ch if not other else 1 - self.ch)
                key = (sbase, mul, cidx)
                if self.rkey != key:
                    s.e(f"s_mul_i32 {sRot}, s{ROT0+cidx}, {mul}\ns_add_u32 {sRot}, {sRot}, {sbase}")
                    self.rkey = key
                sbase = sRot
            s.e(f"s_add_u32 {sSoW}, {sbase}, {((o0, o1)[h] + sg*dl) & 0xffffffff:#x}")
            s.e(f"buffer_load_dwordx4 {vo}, {srd_}, {sSoW} offen lds", tag=name)
            n -= 1
    rkey = None
    strict = False
    cred = 0
    def pace(self, s, cycles, mx=99):
        self.cred = min(self.cred + cycles * CFG['RATE'], CFG['BURST'])
        while self.q and mx > 0:
            mx -= 1
            e = self.q[0]
            cost = (8192 if self.log[e[0][0]][2] == 'all' else 4096) * (2 if e[0][0][0] == 'F' else 1)
            if self.cred < cost: break
            self.cred -= cost; self.pump(s, 1)
    def need(self, s, name):
        assert name in self.slot, f"{name} has no slot yet"
        while any(e[0][0] == name for e in self.q):
            print("  warning: forced DMA issue for", name, "in", s.name)
            self.pump(s)
        if self.log[name][1] is None: self.log[name][1] = s.nbar
        s.wait_tag(name)
def x_items(q):
    return [(f"XL{q}", sX, (f"v{XD}", f"v{XD+1}"), sXb, 0, 0, 32768, 256, lambda c: q), (f"XH{q}", sX, (f"v{XD}", f"v{XD+1}"), sXb, 65536, 65536, 32768, 256, lambda c: q)]
def w_items(name, srd_, voff, sbase, stride):
    return [(f"{name}{c}", srd_, voff, sbase, 0, 8 * stride, 64 * stride, 128 * stride, lambda ch, c=c: c) for c in range(4)]
ORDER = [4, 5, 6, 7, 16, 17, 18, 19, 8, 9, 10, 11, 20, 21, 22, 23, 12, 13, 14, 15, 0, 1, 2, 3, 24, 25, 26, 27]
def b_item(hf, c):
    nm = f"B{'ab'[hf]}{c}"
    if c < 7:
        o = hf * 896 * 1024 + ORDER[4 * c] * 16384
        return (nm, sW2, vDB, sB2, o, o + 8192, 448 * 1024)
    o = hf * 256 * 1024 + (c - 7) * 65536
    return (nm, sWo, vDB, sBo, o, o + 8192, 128 * 1024)
def b_items(first):
    it = []
    for c in range(9): it += [b_item(0, c), b_item(1, c)]
    return it

def mish(acc, tmp, so, tag):
    F = []
    for hb in range(2):
        a = acc + 8 * hb
        for j in range(8): F.append(f"v_mul_f32 v{tmp+j}, v{a+j}, {vRSL}")
        for j in range(8): F.append(f"v_exp_f32 v{tmp+j}, v{tmp+j}")
        for j in range(8): F.append(f"v_add_f32 v{tmp+j}, 1.0, v{tmp+j}")
        for j in range(8): F.append(f"v_fma_f32 v{tmp+j}, v{tmp+j}, v{tmp+j}, 1.0")
        for j in range(8): F.append(f"v_rcp_f32 v{tmp+j}, v{tmp+j}")
        for j in range(8): F.append(f"v_fma_f32 v{tmp+j}, v{tmp+j}, {vM2}, {vRS}")
        for j in range(8): F.append(f"v_mul_f32 v{tmp+j}, v{a+j}, v{tmp+j}")
        for j in range(4): F.append(f"v_cvt_pk_bf16_f32 v{a+j}, v{tmp+2*j}, v{tmp+2*j+1}")
        F.append((f"buffer_store_dwordx4 {R(a,4)}, {vA16}, {sWs}, {so} offen offset:{hb*1024} sc1", tag))
    return F
def bc(r):
    n = int(r[1:]); return R(n & ~1, 2), n & 1
def pk2(op, d, a, b, c=None):
    ops = [R(a, 2)]; lo = [0]; hi = [1]
    for x in (b, c):
        if x is None: continue
        if isinstance(x, int): ops.append(R(x, 2)); lo.append(0); hi.append(1)
        elif x[0] == 'v':
            p, o = bc(x); ops.append(p); lo.append(o); hi.append(o)
        else: ops.append(x); lo.append(0); hi.append(0)
    f = lambda L: "[" + ",".join(map(str, L)) + "]"
    return f"v_pk_{op}_f32 {R(d,2)}, " + ", ".join(ops) + f" op_sel:{f(lo)} op_sel_hi:{f(hi)}"
def mish_pk(acc, tmp, so, tag):
    F = []
    for hb in range(2):
        a = acc + 8 * hb; E = range(0, 8, 2)
        F += [pk2("mul", tmp + j, a + j, vRSL) for j in E] + [f"v_exp_f32 v{tmp+j}, v{tmp+j}" for j in range(8)]
        F += [pk2("add", tmp + j, tmp + j, "1.0") for j in E] + [pk2("fma", tmp + j, tmp + j, tmp + j, "1.0") for j in E]
        F += [f"v_rcp_f32 v{tmp+j}, v{tmp+j}" for j in range(8)]
        F += [pk2("fma", tmp + j, tmp + j, vM2, vRS) for j in E] + [pk2("mul", tmp + j, tmp + j, a + j) for j in E]
        F += [f"v_cvt_pk_bf16_f32 v{a+j}, v{tmp+2*j}, v{tmp+2*j+1}" for j in range(4)]
        F.append((f"buffer_store_dwordx4 {R(a,4)}, {vA16}, {sWs}, {so} offen offset:{hb*1024} sc1", tag))
    return F
def softmax_pk(P, out, t0, t1, tp):
    F = softmax(P, out, t0, t1)[:9]; E = range(0, 16, 2)
    F += [pk2("fma", P + j, P + j, vRSL, t0) for j in E] + [f"v_exp_f32 v{P+j}, v{P+j}" for j in range(16)]
    F += [pk2("add", tp, P, P + 2), pk2("add", tp + 2, P + 4, P + 6), pk2("add", tp, tp, P + 8), pk2("add", tp + 2, tp + 2, P + 10),
          pk2("add", tp, tp, P + 12), pk2("add", tp + 2, tp + 2, P + 14), pk2("add", tp, tp, tp + 2), f"v_add_f32 {t0}, v{tp}, v{tp+1}", f"v_rcp_f32 {t0}, {t0}"]
    F += [pk2("mul", P + j, P + j, t0) for j in E] + [f"v_cvt_pk_bf16_f32 v{out+j}, v{P+2*j}, v{P+2*j+1}" for j in range(8)]
    return F
def softmax(P, out, t0, t1):
    F = [f"v_max3_f32 {t0}, v{P}, v{P+1}, v{P+2}", f"v_max3_f32 {t1}, v{P+3}, v{P+4}, v{P+5}",
         f"v_max3_f32 {t0}, {t0}, v{P+6}, v{P+7}", f"v_max3_f32 {t1}, {t1}, v{P+8}, v{P+9}",
         f"v_max3_f32 {t0}, {t0}, v{P+10}, v{P+11}", f"v_max3_f32 {t1}, {t1}, v{P+12}, v{P+13}",
         f"v_max3_f32 {t0}, {t0}, v{P+14}, v{P+15}", f"v_max_f32 {t0}, {t0}, {t1}", f"v_mul_f32_e64 {t0}, -{t0}, {vRSL}"]
    for j in range(16): F.append(f"v_fma_f32 v{P+j}, v{P+j}, {vRSL}, {t0}")
    for j in range(16): F.append(f"v_exp_f32 v{P+j}, v{P+j}")
    F += [f"v_add_f32 {t0}, v{P}, v{P+1}", f"v_add_f32 {t1}, v{P+2}, v{P+3}"]
    for j in range(4, 16, 2):
        F += [f"v_add_f32 {t0}, {t0}, v{P+j}", f"v_add_f32 {t1}, {t1}, v{P+j+1}"]
    F += [f"v_add_f32 {t0}, {t0}, {t1}", f"v_rcp_f32 {t0}, {t0}"]
    for j in range(16): F.append(f"v_mul_f32 v{P+j}, v{P+j}, {t0}")
    for j in range(8): F.append(f"v_cvt_pk_bf16_f32 v{out+j}, v{P+2*j}, v{P+2*j+1}")
    return F
def pack16(acc, out): return [f"v_cvt_pk_bf16_f32 v{out+j}, v{acc+2*j}, v{acc+2*j+1}" for j in range(8)]
def phi_frags():
    F = ["v_bfe_u32 v25, v0, 2, 2", "v_lshrrev_b32 v26, 5, v0", "v_lshl_add_u32 v25, v26, 2, v25", "v_lshlrev_b32 v25, 5, v25",
         "v_bfe_u32 v26, v0, 4, 1", "v_lshl_add_u32 v25, v26, 4, v25", "v_bfe_u32 v26, v0, 1, 1", "v_lshl_add_u32 v25, v26, 3, v25",
         blk(f"s_lshl_b32 s4, {sCH}, 10\ns_add_u32 s4, s4, {SCR_PHI}\nv_add_u32 v25, s4, v25")]
    for h in range(2):
        for rd in range(2): F.append(f"ds_read_b64_tr_b16 {R(PHI+4*h+2*rd,2)}, v25 offset:{h*512 + rd*256}")
    F += ["v_bfe_u32 v26, v0, 2, 1", "v_mul_u32_u24 v26, 0x8000, v26", "v_lshl_or_b32 v26, v26, 16, v26"]
    for j in range(8): F.append(f"v_xor_b32 v{PHI+j}, v26, v{PHI+j}")
    return F

BIASL = {}
def prologue(s):
    s.e("s_load_dwordx2 s[64:65], s[0:1], 0\ns_load_dwordx8 s[68:75], s[0:1], 8\ns_load_dwordx8 s[76:83], s[0:1], 40")
    s.e("s_load_dwordx2 s[84:85], s[0:1], 80\ns_load_dwordx2 s[66:67], s[0:1], 72")
    s.e("s_cmp_ge_u32 s2, 256\ns_cbranch_scc1 L_end")
    s.e("v_lshrrev_b32 v2, 6, v0\nv_and_b32 v0, 63, v0\ns_and_b32 s3, s2, 7\ns_lshr_b32 s87, s2, 3")
    s.e(f"v_readfirstlane_b32 {sW}, v2")
    s.e(f"v_lshrrev_b32 v33, 4, v0\nv_and_b32 v34, 15, v0")
    s.e(f"s_cmp_lg_u32 {sW}, {CFG['PWW']}\ns_cbranch_scc1 L_nopw")
    s.e(f"s_getpc_b64 s[90:91]\nL_pc0:\ns_sub_u32 s90, s90, L_pc0-{KNAME}\ns_subb_u32 s91, s91, 0\ns_lshl_b32 s5, s87, 11\nv_lshlrev_b32 v35, 7, v34\nv_add_u32 v35, s5, v35")
    s.raw("global_load_dword v26, v35, s[90:91]")
    s.e("L_nopw:")
    s.e(f"s_and_b32 s5, s3, 1\ns_lshl_b32 s5, s5, 3\ns_and_b32 {sI}, s87, 7\ns_add_u32 {sI}, {sI}, s5")
    s.e(f"s_and_b32 {sRT2}, {sW}, 1\ns_lshl_b32 {sM0W}, {sW}, 11\ns_lshl_b32 s5, {sRT2}, 3")
    for h in range(2):
        s.e(f"v_add_u32 v35, {4*h}, v33\nv_add_u32 v36, s5, v35\nv_xor_b32 v36, v34, v36\nv_lshlrev_b32 v36, 4, v36\nv_lshl_add_u32 v{XD+h}, v35, 10, v36")
    s.e(f"s_lshr_b32 s{ROT0}, s3, 1\ns_lshl_b32 s{ROT0+1}, s3, 1\ns_add_u32 s{ROT0}, s{ROT0}, s{ROT0+1}")
    for c in range(1, 4): s.e(f"s_add_u32 s{ROT0+c}, s{ROT0}, {c}\ns_and_b32 s{ROT0+c}, s{ROT0+c}, 3")
    s.e(f"s_and_b32 s{ROT0}, s{ROT0}, 3")
    s.e(f"s_lshl_b32 {sXb}, {sI}, 17\ns_lshl_b32 s5, {sW}, 13\ns_add_u32 {sXb}, {sXb}, s5\ns_mov_b32 s10, {2048*512*2}\ns_mov_b32 s11, 0x20000")
    s.e("v_lshrrev_b32 v36, 3, v0\nv_and_b32 v37, 7, v0\nv_lshlrev_b32 v38, 1, v36\nv_and_b32 v38, 4, v38\nv_xor_b32 v37, v37, v38\nv_lshlrev_b32 v37, 4, v37")
    s.raw("s_waitcnt lgkmcnt(0)")
    s.e("s_mov_b32 s8, s64\ns_and_b32 s9, s65, 0xffff")
    srd(s, sWs, "s84", "s85", 0x10000000)
    s.e(f"v_lshlrev_b32 {vA16}, 4, v0")
    r0 = Ring(x_items(0) + x_items(1), range(9), 0); r0.assign(s)
    r0.pump(s, 4)
    s.e(f"v_mul_u32_u24 {vDq}, 3072, v36\nv_add_u32 {vDq}, {vDq}, v37\nv_mul_u32_u24 {vD1}, 3584, v36\nv_add_u32 {vD1}, {vD1}, v37")
    s.e(f"s_lshr_b32 s5, s3, 1\ns_lshl_b32 s5, s5, 2\ns_lshr_b32 s6, s87, 3\ns_add_u32 s5, s5, s6")
    s.e(f"s_lshr_b32 {sG}, s5, 1\ns_and_b32 {sTY}, s5, 1\ns_lshl_b32 {sRB}, s3, 2\ns_add_u32 {sRB}, {sRB}, s6\ns_and_b32 {sCB}, s87, 7")
    s.e(f"s_lshr_b32 {sKQ}, {sW}, 1\ns_and_b32 {sRT}, {sW}, 3\ns_lshr_b32 {sCH}, {sW}, 2\ns_mov_b32 s88, s2")
    srd(s, sWq, "s68", "s69", 512 * 1536 * 2)
    srd(s, sW1, "s76", "s77", 512 * 1792 * 2)
    def wpair(c, first):
        l1, l2 = label(), label()
        s.e(f"s_cmp_eq_u32 {sTY}, 0\ns_cbranch_scc1 {l1}")
        vm0 = list(s.vm)
        for typ, it in (('B', w_items("W", sW1, vD1, sUA, 3584)), ('A', w_items("W", sWq, vDq, sUA, 3072))):
            s.vm = list(vm0)
            if typ == 'A': s.e(f"{l1}:")
            if first: BIASL[typ] = unit_bases(s, typ)
            r = Ring([it[c]], [4 + c], 0); r.assign(s); r.pump(s, 2)
            if typ == 'B': s.e(f"s_branch {l2}")
        s.e(f"{l2}:")
    wpair(0, True)
    s.e(f"v_lshl_add_u32 {vDB}, v36, 10, v37")
    prologue2(s)
    r0.rkey = None
    r0.pump(s, 4)
    wpair(1, False)
    s.e("s_and_b32 s3, s88, 7\ns_cmp_lg_u32 s3, 1\ns_cbranch_scc1 L_noinit")
    s.e("v_mov_b32 v40, 0\nv_mov_b32 v41, 0\nv_mov_b32 v42, 0\nv_mov_b32 v43, 0")
    s.e(f"s_lshl_b32 s5, s87, 15\ns_lshl_b32 s4, {sW}, 12\ns_add_u32 s5, s5, s4\ns_add_u32 s5, s5, {Z_OFF}")
    for k in range(4): s.raw(f"buffer_store_dwordx4 v[40:43], {vA16}, {sWs}, s5 offen offset:{k*1024} sc1")
    s.e("s_nop 1\nL_noinit:")

def prologue2(s):
    srd(s, sPhi, "s70", "s71", 32 * 512)
    srd(s, sB1, "s78", "s79", 1792 * 2)
    srd(s, sW2, "s80", "s81", 1792 * 512 * 2)
    srd(s, sWo, "s72", "s73", 512 * 512 * 2)
    srd(s, sOut, "s82", "s83", 2048 * 512 * 2)
    srd(s, sDbg, "s66", "s67", 256)
    s.e(f"s_mov_b32 {sBID}, s88\ns_mov_b32 {sC11}, 0x3f803f80")
    s.e(f"v_lshrrev_b32 v36, 2, v0\nv_and_b32 v37, 3, v0\nv_lshlrev_b32 v37, 4, v37\nv_mul_u32_u24 {vD5}, 3584, v36\nv_add_u32 {vD5}, {vD5}, v37")
    s.e(f"v_and_b32 {vP4}, 31, v0\nv_lshlrev_b32 {vP4}, 2, {vP4}")
    s.e(f"v_mov_b32 v29, 0\nv_mov_b32 {vFO}, {BIG}\nv_cmp_eq_u32 vcc, 0, v0\nv_cndmask_b32 {vFO}, {vFO}, 0, vcc")
    s.e("v_bfe_u32 v36, v0, 2, 2\nv_and_b32 v37, 3, v0\nv_bfe_u32 v38, v0, 4, 1\nv_lshrrev_b32 v39, 5, v0")
    s.e("v_lshlrev_b32 v40, 3, v37\nv_lshl_add_u32 v40, v38, 5, v40\nv_lshl_add_u32 v41, v39, 3, v36")
    s.e(f"v_lshrrev_b32 v42, 1, v36\nv_xor_b32 v42, {sCH}, v42\nv_lshlrev_b32 v42, 6, v42")
    s.e(f"v_lshl_add_u32 v43, v41, 7, v40\nv_add_u32 v43, v43, v42")
    for j in range(4):
        s.e(f"s_xor_b32 s5, {sRT}, {j}\ns_lshl_b32 s5, s5, 12\ns_add_u32 s5, s5, {SLOT}\nv_add_u32 v{VW+j}, s5, v43\nv_add_u32 v{VW+4+j}, 0x10000, v{VW+j}")
    s.e(f"v_and_b32 v44, 31, v0\ns_lshl_b32 s5, {sRT}, 5\nv_add_u32 v45, s5, v44\nv_xor_b32 v46, v39, v34\nv_lshlrev_b32 v46, 4, v46\nv_lshl_add_u32 v{XR}, v45, 8, v46")
    s.e(f"s_lshl_b32 s5, {sRT}, 6\nv_xor_b32 v{XR}, s5, v{XR}")
    for t in range(1, 8): s.e(f"v_xor_b32 v{XR+t}, {t<<5}, v{XR}")
    s.e(f"v_lshlrev_b32 v44, 2, v38\nv_cmp_eq_u32 vcc, v44, v34\nv_mov_b32 v44, {sC11}\nv_cndmask_b32 v{ASEL}, 0, v44, vcc")
    for j in range(1, 4): s.e(f"v_mov_b32 v{ASEL+j}, v{ASEL}")
    s.e(f"v_mov_b32 v{CF+4}, 0\nv_mov_b32 v{CF+5}, 0")
    s.e(f"s_lshl_b32 s3, {sI}, 2\ns_add_u32 s3, s3, {sRT}\ns_mul_i32 {sAF}, s3, {144*1024}")
    s.e(f"s_mul_i32 {sKS}, {sG}, {14*1024}\ns_add_u32 {sKS}, {sKS}, {sAF}")
    s.e(f"s_lshl_b32 {sFL}, s3, 2\ns_lshr_b32 s4, {sG}, 1\ns_add_u32 {sFL}, {sFL}, s4\ns_mul_i32 {sFL}, {sFL}, 2560")
    s.e(f"s_and_b32 s4, {sG}, 1\ns_lshl_b32 s4, s4, 8\ns_lshl_b32 s5, {sCH}, 7\ns_add_u32 s4, s4, s5\ns_add_u32 {sFL}, {sFL}, s4\ns_add_u32 {sFL}, {sFL}, {ACTFLAG_OFF}")
    s.e(f"s_lshl_b32 s3, {sRB}, 1\ns_add_u32 s3, s3, {sRT2}\ns_mul_i32 {sAF2}, s3, {144*1024}")
    s.e(f"s_lshl_b32 {sFL2}, s3, 2\ns_add_u32 {sFL2}, {sFL2}, {sKQ}\ns_mul_i32 {sFL2}, {sFL2}, 2560\ns_add_u32 {sFL2}, {sFL2}, {ACTFLAG_OFF}")
    s.e(f"s_mul_i32 {sB2}, {sCH}, {448*1024}\ns_lshl_b32 s4, {sRT}, 14\ns_lshl_b32 s5, {sCB}, 7\ns_add_u32 s4, s4, s5\ns_add_u32 {sB2}, {sB2}, s4")
    s.e(f"s_lshl_b32 {sBo}, {sCH}, 17\ns_add_u32 {sBo}, {sBo}, s4")
    s.e(f"s_lshl_b32 s3, {sG}, 2\ns_add_u32 s3, s3, {sKQ}\ns_mul_i32 {sKVs}, s3, 2176\ns_add_u32 {sKVs}, {sKVs}, {KV_OFF}")
    s.e(f"s_lshl_b32 s3, {sG}, 3\ns_add_u32 s3, s3, {sW}\ns_lshl_b32 {sKVF}, s3, 11\ns_add_u32 {sKVF}, {sKVF}, {KVFLAG_OFF}")
    s.e(f"s_mul_i32 s3, {sKQ}, {28*1024}\ns_add_u32 {sA2y}, {sAF2}, s3")
    s.e(f"s_lshl_b32 s3, {sKQ}, 13\ns_add_u32 {sA2s}, {sAF2}, s3\ns_add_u32 {sA2s}, {sA2s}, {112*1024}")
    s.e(f"v_lshrrev_b32 {vT}, 1, {vP4}")

def unit_bases(s, typ):
    s.e(f"s_mul_i32 s3, {sW}, {16*3072}\ns_lshl_b32 s4, {sG}, 7\ns_add_u32 s3, s3, s4")
    s.e(f"s_mul_i32 s4, {sG}, 448\ns_and_b32 s5, {sG}, 1\ns_cmp_eq_u32 s5, 0")
    if typ == 'A':
        s.e(f"s_cselect_b32 s5, 0, 320\ns_add_u32 s4, s4, s5")
        s.e(f"s_add_u32 {sUA}, s3, 1024\ns_add_u32 {sUB}, s3, 2048")
        s.e(f"s_mul_i32 {sUC}, {sW}, {16*3584}\ns_add_u32 {sUC}, {sUC}, s4")
        s.e(f"s_lshl_b32 s5, {sCH}, 6\ns_add_u32 s92, s4, s5")
        return [f"buffer_load_ushort v{BI0}, {vT}, {sB1}, s92 offen"]
    s.e(f"s_cselect_b32 s5, 128, 64\ns_cselect_b32 {sUD}, 384, 0")
    s.e(f"s_add_u32 s5, s4, s5\ns_add_u32 s92, s4, {sUD}\ns_mov_b32 {sUC}, s3")
    s.e(f"s_mul_i32 {sUA}, {sW}, {16*3584}\ns_add_u32 {sUA}, {sUA}, s5\ns_add_u32 {sUB}, {sUA}, 128")
    s.e(f"s_mul_i32 {sUD}, {sRT}, {32*3584}\ns_add_u32 {sUD}, {sUD}, s92")
    s.e(f"s_lshl_b32 s3, {sCH}, 6\ns_add_u32 s93, s5, s3")
    return [f"buffer_load_ushort v{BI2}, {vT}, {sB1}, s92 offen", f"buffer_load_ushort v{BI0}, {vT}, {sB1}, s93 offen",
            f"buffer_load_ushort v{BI1}, {vT}, {sB1}, s93 offen offset:128"]

def start(s, ring, n0):
    ring.assign(s, upto=ring.upto0)
    pre = ["XL0", "XH0", n0 + "0", "XL1", "XH1", n0 + "1"]
    assert [ring.slot[x] for x in pre] == [0, 1, 4, 2, 3, 5]
    ring.q = [e for e in ring.q if e[0][0] not in pre]
    s.vm = [(d, (n0 + tg[1] if tg in ("W0", "W1") else tg)) for d, tg in s.vm]
def touch_all(s, which):
    specs = dict(x=(sX, 64, 4), q=(sWq, 48, 5), w1=(sW1, 56, 6), w2=(sW2, 56, 4), wo=(sWo, 16, 5))
    for nm in which:
        srd_, nl, wv = specs[nm]
        lab = label()
        s.e(f"s_cmp_lg_u32 {sW}, {wv}\ns_cbranch_scc1 {lab}")
        s.e(f"v_min_u32 v47, {nl-1}, v0\nv_lshlrev_b32 v47, 7, v47\ns_mul_i32 s5, s88, {nl*128}\ns_mov_b32 m0, {SCR + 15360}\ns_nop 0")
        s.raw(f"buffer_load_dword v47, {srd_}, s5 offen lds")
        s.e(f"{lab}:")
def late_loads(biasloads):
    def f(s):
        s.e(f"v_lshrrev_b32 {vT}, 1, {vP4}")
        for x in biasloads: s.e(x)
        s.e(f"s_lshl_b32 s3, {sG}, 11\ns_lshl_b32 s4, {sRT2}, 10\ns_add_u32 s3, s3, s4\ns_add_u32 m0, s4, {SCR_PHI}")
        s.e(f"buffer_load_dwordx4 {vA16}, {sPhi}, s3 offen lds", tag="phi")
    return f

MF = "v_mfma_f32_32x32x16_bf16"
def bar(s, ring, name, needs=(), rel=(), owner='all', lg0=False, upto=None, extra=(), maxn=99):
    if CFG.get('SB'): stamp("<" + name)(s)
    for n in needs: ring.need(s, n)
    if lg0: s.wait(lg=0)
    s.wait_dswrites()
    s.e("s_barrier")
    stamp(name)(s)
    s.marks[name] = 1
    for n in rel: ring.release(n)
    ring.free += list(extra)
    if owner == 'all':
        k = 'x' if name[0] == 'b' else ('a' if name[0] in 'ae' else 'p')
        if k in CFG['OWN'] and not (s.name[0] == 'B' and name in ('c3', 'd3', 'e1')): owner = 0
    ring.assign(s, owner, upto, maxn)
def B(ring, *a, **k): return lambda s: bar(s, ring, *a, **k)

class MSeg:
    def __init__(self, ring, u, ch, events=None, posts=None, xpass=False, dma=0):
        self.ring, self.u, self.ch, self.ev, self.posts, self.xp, self.dma = ring, u, ch, events or {}, posts or {}, xpass, dma
        self.nr = 0; self.hs = None
    def reads(self, s, t):
        u, ring = self.u, self.ring
        for e in self.ev.get(t, []): e(s)
        c, p = t // 8, t % 8
        if self.xp:
            for x in {0: (0, 1), 1: (2, 3, 4), 2: (5, 6, 7)}.get(p, ()):
                s.e(f"ds_read_b128 {R(XA+32*c+4*x,4)}, v{XR+x} offset:{(c&1)*32768}")
        it = f"{u['name']}{c}" if u['kind'] == 'w' else f"{u['name']}{c//2}"
        assert ring.log[it][1] is not None, f"{it} read before certified"
        sl = ring.slot[it]; buf = WB + 4 * (t % 4)
        if u['kind'] == 'h5' and self.hs != sl:
            if self.hs is None:
                s.e("v_bfe_u32 v116, v0, 2, 2\nv_lshrrev_b32 v117, 5, v0\nv_lshl_add_u32 v116, v117, 3, v116\nv_lshlrev_b32 v116, 6, v116\nv_bfe_u32 v117, v0, 4, 1\nv_lshl_add_u32 v116, v117, 5, v116\nv_and_b32 v117, 3, v0\nv_lshl_add_u32 v116, v117, 3, v116")
                for j in range(4): s.e(f"s_xor_b32 s3, {sRT}, {j}\ns_lshl_b32 s3, s3, 11\ns_add_u32 s3, s3, {sl*SLOT}\nv_add_u32 v{HR+j}, s3, v116")
            else:
                for j in range(4): s.e(f"v_add_u32 v{HR+j}, {((sl-self.hs)*SLOT) & 0xffffffff:#x}, v{HR+j}")
            self.hs = sl
        for k in range(2):
            if u['kind'] == 'w':
                w = 0 if sl <= 4 else 1
                r, off = f"v{VW+4*w+p//2}", (sl - 1 - 4 * w) * SLOT + (p & 1) * 2048 + k * 512
            else: r, off = f"v{HR+p//2}", (c % 2) * 8192 + (p & 1) * 1024 + k * 256
            s.e(f"ds_read_b64_tr_b16 {R(buf+2*k,2)}, {r} offset:{off}")
    def pre(self, s, n=None):
        n = CFG['PF'] if n is None else n
        while self.nr < n: self.reads(s, self.nr); self.nr += 1
    def run(self, s, nxt=None, F=None, budget=0):
        u = self.u; ch = self.ch
        credit = 0
        if CFG['PRIO'] and not self.xp: s.e("s_setprio 1")
        self.pre(s)
        for t in range(32):
            c, p = t // 8, t % 8
            buf = WB + 4 * (t % 4)
            cin = R(u['acc'], 16) if t > 0 else "0"
            a, b = (R(buf, 4), R(XA + 4 * t, 4)) if u['trans'] else (R(XA + 4 * t, 4), R(buf, 4))
            s.e(f"{MF} {R(u['acc'],16)}, {a}, {b}, {cin}")
            if p < 2 and not (CFG.get('NOCS') and t > 0): s.e(f"v_mfma_f32_16x16x32_bf16 {R(CSA,4)}, {R(ASEL,4)}, {R(buf,4)}, {R(CSA,4) if t > 0 else '0'}")
            if self.nr < 32: self.reads(s, self.nr); self.nr += 1
            elif nxt is not None: nxt.pre(s, t - 31 + CFG['PF'])
            if self.xp and t < 25 and CFG['PAR'] == 2:
                if t % 2 == ch or ('x' in CFG['OWN'] and ch == 0): self.ring.pump(s, 2)
            elif self.xp and t < 25: self.ring.pump(s, 1)
            elif self.xp: self.ring.pace(s, CFG['ST'])
            elif self.dma and CFG['PAR']:
                if 'p' in CFG['OWN']: self.ring.pace(s, self.dma, 1)
                elif t % 2 == ch: self.ring.pace(s, 2 * self.dma, 1)
            elif self.dma: self.ring.pace(s, self.dma)
            if t == 27:
                s.e(f"s_lshl_b32 s3, {sRT}, 2\ns_add_u32 s3, s3, {SCR_CS + u['csi']*2048 + ch*1024}\nv_add_u32 v{CSA+1}, s3, {vA16}\nds_write_b32 v{CSA+1}, v{CSA}")
            if self.xp and p in (1, 3):
                for x in ((ch, ch + 2) if p == 1 else (ch + 4, ch + 6)):
                    for j in range(4):
                        r = XA + 32 * c + 4 * x + j
                        first = (c == 0 and p == 1 and x == ch and j < 2)
                        s.e(f"v_dot2_f32_bf16 v{STA+(j&1)}, v{r}, {sC11}, {'0' if first else f'v{STA+(j&1)}'}")
                        s.e(f"v_dot2_f32_bf16 v{STA+2+(j&1)}, v{r}, v{r}, {'0' if first else f'v{STA+2+(j&1)}'}")
                if t == 27:
                    q = f"v{STA+2}"
                    s.e(f"v_add_f32 v{STA}, v{STA}, v{STA+1}\nv_add_f32 v{STA+1}, v{STA+2}, v{STA+3}\nv_lshrrev_b32 {q}, 5, v0\nv_lshlrev_b32 {q}, 3, {q}\n"
                        f"v_lshl_add_u32 {q}, {vP4}, 3, {q}\ns_lshl_b32 s3, {sRT}, 10\ns_add_u32 s3, s3, {SCR_ST + ch*16}\nv_add_u32 {q}, s3, {q}\nds_write_b64 {q}, {R(STA,2)}")
            for e in self.posts.get(t, []): e(s)
            if F is not None: credit = fill(s, F, (budget(t) if callable(budget) else budget) + min(credit, CFG['CRED']))
        if CFG['PRIO'] and not self.xp: s.e("s_setprio 0")

def fill(s, F, budget, force=False):
    while budget > 0 and F:
        f = F[0]
        if isinstance(f, tuple) and f[0] == 'wait':
            if f[1] in s.marks: F.pop(0); continue
            return 0
        if isinstance(f, tuple) and f[0] == 'nextbar': f = F[0] = ('barge', s.nbar + 1)
        if isinstance(f, tuple) and f[0] == 'barge':
            if s.nbar >= f[1]: F.pop(0); continue
            return 0
        if isinstance(f, tuple) and f[0] in ('hold', 'tilt'):
            if budget <= 1: F.pop(0); continue
            return 0
        if isinstance(f, tuple) and f[0] == 'gap':
            f = F[0] = ('until', s.n_issued + f[1])
        if isinstance(f, tuple) and f[0] == 'until':
            if s.n_issued >= f[1] or force: F.pop(0); continue
            return 0
        if callable(f):
            F.pop(0); n0 = s.n_issued; f(s); budget -= max(1, (s.n_issued - n0) * 0.5); continue
        txt, tag = (f if isinstance(f, tuple) else (f, None))
        need, age = s.cost(txt)
        if not force and (need > 1 or (age is not None and age < CFG['AGE'])): return budget
        F.pop(0); s.e(txt, tag)
        k = I(txt).kind
        budget -= 2 if k == 'trans' else (0.5 if k in ('salu', 'ds', 'vm') else 1)
    return 0
def until(s, ring, F, name, every=None):
    n = 0
    while name not in s.marks:
        assert F, name
        l = len(F); fill(s, F, 1, force=True)
        assert len(F) < l, ("stuck", F[0], name, s.name)
        n += 1
        ring.pace(s, 9)
    return n
def vrun(s, ring, F, slots, every=None, flush=True):
    every = every or CFG['VD']
    while slots > 0 and F:
        l = len(F); fill(s, F, min(every, slots), force=True); slots -= every
        ring.pace(s, 9 * every)
        if len(F) == l: break
    if flush: ring.pump(s, 99)

def vseg(s, ring, F, every=None, flush=True):
    every = every or CFG['VD']
    n = 0
    for f in F:
        if isinstance(f, tuple) and f[0] in ('after', 'skip', 'wait', 'gap', 'until'): continue
        drain(s, [f]); n += 1
        ring.pace(s, 10)
    if flush: ring.pump(s, 99)
def split(F, frac, item):
    k = int(len(F) * frac)
    return F[:k] + [item] + F[k:]

def pass0(s, ring, u, ch, bl, nextname, nextneed):
    ev = {}
    NBX = CFG['NBX']; n = u['name']
    for c in range(4):
        def b0(s, c=c):
            if c == 3: s.wait_tag("phi")
            lag = CFG['LG0'] == 0
            if lag: rel = [f"{n}{c-2}"] if (c >= 2 and c - 1 >= NBX) else []
            else: rel = [f"{n}{c-1}"] if c else []
            if c - 1 >= NBX: rel += [f"XL{c-1}", f"XH{c-1}"]
            up = CFG['UP'][2 * c]
            bar(s, ring, f"b0{c}", [f"{n}{c}", f"XL{c}", f"XH{c}"] + (nextneed if (c == 3 and NBX < 4) else []), rel, lg0=not lag, upto=(nextname[0] + str(up) if up < 4 else None))
            if c == 2 and ch == 0:
                lab = label()
                s.e(f"s_and_b32 s3, {sBID}, 7\ns_cmp_lg_u32 s3, 1\ns_cbranch_scc1 {lab}\ns_cmp_lg_u32 {sW}, 0\ns_cbranch_scc1 {lab}\ns_lshl_b32 s3, s87, 2")
                s.raw(f"buffer_store_dword {vOne}, {vFO}, {sDbg}, s3 offen offset:128 sc1")
                s.e(f"{lab}:")
        def bx(s, c=c):
            s.wait_regs([f"v{r}" for r in range(XA + 32 * c, XA + 32 * c + 32)])
            bar(s, ring, f"bx{c}", nextneed if c == 3 else [], [f"XL{c}", f"XH{c}"] + ([f"{n}{c-1}"] if (c and CFG['LG0'] == 0) else []),
                upto=(nextname[0] + str(CFG['UP'][2 * c + 1]) if c < 3 else None))
        ev[8 * c] = [b0]
        if c < NBX: ev[8 * c + 4] = [bx]
    ring.c1rel = (["XL3", "XH3"] if NBX < 4 else []) + ([f"{n}2"] if (CFG['LG0'] == 0 and NBX < 4) else [])
    return MSeg(ring, u, ch, ev, {6: [late_loads(bl)], CFG['TBT']: [lambda s: touchB(s)], CFG['TWT']: [lambda s: touchW(s)]}, xpass=True, dma=1)

def stats_fin(T):
    F = [blk(f"s_lshl_b32 s4, {sRT}, 10\ns_add_u32 s4, s4, {SCR_ST}\nv_lshlrev_b32 {vT}, 3, {vP4}\nv_add_u32 {vT}, s4, {vT}"),
         f"ds_read_b128 {R(T,4)}, {vT}", f"ds_read_b128 {R(T+4,4)}, {vT} offset:16",
         blk(f"s_lshl_b32 s4, {sRT}, 7\ns_add_u32 s4, s4, {SCR_RS}\nv_add_u32 {vT}, s4, {vP4}\nv_cmp_gt_u32 s[94:95], 32, v0")]
    a, b = f"v{T}", f"v{T+1}"
    F += [f"v_add_f32 {a}, {a}, v{T+2}", f"v_add_f32 {b}, {b}, v{T+3}", f"v_add_f32 v{T+4}, v{T+4}, v{T+6}", f"v_add_f32 v{T+5}, v{T+5}, v{T+7}",
          f"v_add_f32 {a}, {a}, v{T+4}", f"v_add_f32 {b}, {b}, v{T+5}", f"v_mul_f32 {a}, 0xbb000000, {a}", f"v_mul_f32 {b}, 0x3b000000, {b}",
          f"v_fma_f32 {b}, -{a}, {a}, {b}", f"v_max_f32 {b}, 0, {b}", f"v_cvt_pk_bf16_f32 {b}, {b}, {b}", f"v_lshlrev_b32 {b}, 16, {b}",
          f"v_add_f32 {b}, 0x3727c5ac, {b}", f"v_cvt_pk_bf16_f32 {b}, {b}, {b}", f"v_lshlrev_b32 {b}, 16, {b}", f"v_sqrt_f32 {b}, {b}",
          f"v_cvt_pk_bf16_f32 {b}, {b}, {a}", f"v_lshlrev_b32 {vRS}, 16, {b}", f"v_rcp_f32 {vRS}, {vRS}",
          f"v_cndmask_b32 v{CF+2}, 0, {b}, s[94:95]", f"v_lshrrev_b32 v{CF+3}, 16, v{CF+2}",
          f"v_mul_f32 {vRSL}, 0x3fb8aa3b, {vRS}", f"v_mul_f32 {vM2}, -2.0, {vRS}", f"ds_write_b32 {vT}, {vRS}"]
    return F
def correct(u, ch, T, bias=None):
    F = [f"v_lshlrev_b32 v{T}, 2, {vP4}", f"v_add_u32 v{T}, {SCR_CS + u['csi']*2048 + ch*1024}, v{T}", f"ds_read_b128 {R(T,4)}, v{T}",
         f"v_add_f32 v{T}, v{T}, v{T+1}", f"v_add_f32 v{T+2}, v{T+2}, v{T+3}", f"v_add_f32 v{T}, v{T}, v{T+2}",
         f"v_cvt_pk_bf16_f32 v{T+1}, v{T}, v{T}", f"v_and_b32 v{CF}, 0xffff0000, v{T+1}", f"v_sub_f32 v{T}, v{T}, v{CF}", f"v_cvt_pk_bf16_f32 v{CF+1}, v{T}, v{T}"]
    if bias is not None: F.append(f"v_or_b32 v{CF}, v{CF}, v{bias}")
    a, b = (R(CF, 4), R(CF + 2, 4)) if u['trans'] else (R(CF + 2, 4), R(CF, 4))
    F.append(f"{MF} {R(u['acc'],16)}, {a}, {b}, {R(u['acc'],16)}")
    return F

def mark(name): return lambda s: s.marks.__setitem__(name, 1)
YA = [192, 208]; SA = [32, 48]
vB0, vB1 = "v5", "v24"
XW = ["v6", "v7", "v8"]; XRD = ["v11", "v12", "v13"]
LB = 128
NR = 8
def breg(t): return XA + 8 * t if t < NR else LB + 8 * (t % 4)
def bnm(ch, c): return f"B{'ab'[ch]}{c}"
def bread(ring, ch, t):
    def f(s):
        nm = bnm(ch, t // 4)
        assert ring.log[nm][1] is not None, f"{nm} read before certified"
        sl = ring.slot[nm]
        if ring.bsl != sl:
            d = ((sl - ring.bsl) * SLOT) & 0xffffffff
            s.e(f"v_add_u32 {vB0}, {d:#x}, {vB0}\nv_add_u32 {vB1}, {d:#x}, {vB1}")
            ring.bsl = sl
        for ct, r in enumerate((vB0, vB1)):
            for k in range(2):
                s.e(f"ds_read_b64_tr_b16 {R(breg(t) + 4*ct + 2*k, 2)}, {r} offset:{(t%4)*2048 + k*1024}")
    return f
def pull(ring, ch, c): return [bread(ring, ch, 4 * c + k) for k in range(4)]
def p2_setup(ring):
    def chk(s):
        assert not any(x[0][0] == 'F' for x in ring.items) and not any(x[0][0][0] == 'F' for x in ring.q)
        ring.bsl = 0
    return [chk, f"v_bfe_u32 {vB0}, v0, 2, 2", f"v_lshrrev_b32 {vB1}, 5, v0", f"v_lshl_add_u32 {vB0}, {vB1}, 2, {vB0}", f"v_lshlrev_b32 {vB0}, 7, {vB0}",
     f"v_bfe_u32 {vB1}, v0, 3, 1", f"v_lshl_add_u32 {vB0}, {vB1}, 6, {vB0}", f"v_bfe_u32 {vB1}, v0, 4, 1", f"v_lshl_add_u32 {vB0}, {vB1}, 5, {vB0}",
     f"v_and_b32 {vB1}, 3, v0", f"v_lshl_add_u32 {vB0}, {vB1}, 3, {vB0}", blk(f"s_lshl_b32 s3, {sKQ}, 5\nv_xor_b32 {vB0}, s3, {vB0}\ns_and_b32 s3, {sKQ}, 1\ns_lshl_b32 s3, s3, 13\nv_add_u32 {vB0}, s3, {vB0}"), f"v_xor_b32 {vB1}, 64, {vB0}"]

def xaddr(slots):
    F = []
    for j in range(1, 4):
        F.append(blk(f"s_xor_b32 s4, {sKQ}, {j}\ns_lshl_b32 s4, s4, 12\ns_add_u32 s4, s4, {slots[j-1]*SLOT}\nv_add_u32 {XW[j-1]}, s4, v9"))
    return F
def xwrite(acc2):
    F = []
    for j in (2, 3, 1):
        src = acc2[j >> 1] + 8 * (j & 1)
        F += [f"ds_write_b128 {XW[j-1]}, {R(src+4*h,4)} offset:{h*1024}" for h in range(2)]
    return F
def xread(slots, own, tmp):
    F = []
    for i in range(3):
        for h in range(2):
            r, off = ldsaddr(XRD, slots[i] * SLOT + h * 1024)
            F.append(f"ds_read_b128 {R(tmp+8*i+4*h,4)}, {r} offset:{off}")
    G = []
    for i in range(3):
        for j in range(8): G.append(f"v_add_f32 v{own+j}, v{own+j}, v{tmp+8*i+j}")
    return F, G
def fin_setup():
    return [blk(f"s_lshl_b32 {sUC}, {sRB}, 16\ns_lshl_b32 s4, {sRT2}, 15\ns_add_u32 {sUC}, {sUC}, s4\ns_lshl_b32 s4, {sCB}, 7\ns_add_u32 {sUC}, {sUC}, s4\ns_lshl_b32 s4, {sKQ}, 5\ns_add_u32 {sUC}, {sUC}, s4"),
            f"v_lshlrev_b32 v20, 8, {vP4}", "v_lshrrev_b32 v21, 5, v0", "v_lshl_add_u32 v20, v21, 4, v20",
            f"buffer_load_dwordx4 v[16:19], v20, {sX}, {sUC} offen",
            blk(f"s_lshl_b32 s4, {sW}, 11\nv_add_u32 v11, s4, {vA16}"), "v_add_u32 v12, 0x10000, v11", "v_add_u32 v13, 0x20000, v11"]

def aphase(s, ring, ch, F, early, late, toff):
    G = CFG['GT']
    groups = {0: (0xf, ['f1'], 0, 0), 8: (0xf, ['f2'], G[3], 512), 16: (0x5, ['f3'], G[0], 1536), 20: (0xf, ['f3'], G[1], 1024), 28: (0xf, ['fo'], G[2], 2048)}
    pr = lambda c: [bnm(0, c), bnm(1, c)]
    bars = {8: (pr(2) + pr(3), ring.rel8), 12: ([], pr(2)), 16: (pr(4) + pr(5), pr(3)), 20: ([], pr(4)), 24: (pr(6) + pr(7), pr(5)), 30: (pr(8), pr(6))}
    if CFG['FB4']: bars = {8: (pr(2) + pr(3), ring.rel8), 16: (pr(4) + pr(5), pr(2) + pr(3)), 24: (pr(6) + pr(7), pr(4) + pr(5)), 30: (pr(8), pr(6))}
    cert = {n: k for k, v in bars.items() for n in v[0]}
    pool = list(range(224, 256, 4)) + list(early); restricted = set(early)
    late = dict(late)
    for v in late.values(): restricted |= set(v)
    areg = {}; arr = {}
    st = dict(clk=0, pipe=0, nxt=0, polled={0: 0}, checked=set(), tch=set())
    LT, LAT, QD = CFG['LT'], CFG['LAT'], CFG['QD']
    OWNY = YA[0]; OWNS = SA[0]; XT = 64
    PB = CFG['PB2']
    bars[32] = bars.pop(30)
    YB = 33 - PB
    cert = {n: k for k, v in bars.items() for n in v[0]}
    W = []
    PR = {0: vPoll, 8: vPoll, 16: 'v2', 20: 'v3', 28: 'v23'}
    PS = dict(zip((16, 20, 28), CFG['PS' + s.name[0]]))
    def issue_cost():
        st['pipe'] = max(st['pipe'], st['clk']) + (LT if 'v0' not in s.marks else CFG['LT2']); st['clk'] += 16
        return st['pipe'] + LAT
    def try_load(step, must=None):
        for m in list(late):
            if m in s.marks: pool.extend(late.pop(m))
        t = st['nxt']
        for g in sorted(groups):
            if g >= t and g not in st['polled']:
                if (g != 8 or 0 in st['checked']) and ((st['clk'] >= groups[g][2] + toff - CFG['PLT'] if g == 8 else (step >= PS[g][0] and (PS[g][0] > 0 or len(F) < CFG['PVL']))) or must == g):
                    poll_issue(s, sWs, sFL2, PR[g], imm=groups[g][3]); st['polled'][g] = max(st['pipe'], st['clk']) + LAT; st['clk'] += 16
                    log.append(f"pl{g}@{step}")
                    return True
        if must is None and st['pipe'] - st['clk'] > (QD if 'v0' not in s.marks else CFG['QD2']): return False
        bneed = cert.get(ring.q[0][0][0], 0) - CFG['BL'] if ring.q else 99
        aok = False
        if t < 36:
            ok = [r for r in pool if not (r in restricted and t > 26)]
            aok = bool(ok)
            if t in groups and t not in st['checked']:
                ready = t in st['polled'] and ((st['clk'] >= st['polled'][t] and st['clk'] >= groups[t][2] + toff) if t <= 8 else step >= PS[t][1]) and all(r in s.marks for r in groups[t][1]) and (t <= 8 or 'v0' in s.marks)
                aok = aok and (ready or must == t)
        if aok and (t <= bneed or must is not None):
            if t in groups and t not in st['checked']:
                for r in groups[t][1]:
                    n = until(s, ring, F, r)
                    if n: print("   forced", n, "fillers for", r, "in", s.name)
                poll_check(s, sWs, sFL2, groups[t][0], PR[t], imm=groups[t][3]); st['checked'].add(t); log.append(f"chk{t}@{step}/{st['clk']}")
            areg[t] = ok[0]; pool.remove(ok[0])
            base, off = (sA2y, ORDER[t] * 1024) if t < 28 else (sA2s, (t - 28) * 1024)
            s.e(f"s_add_u32 {sSoW}, {base}, {off & ~4095}\nbuffer_load_dwordx4 {R(areg[t],4)}, {vA16}, {sWs}, {sSoW} offen offset:{off & 4095} sc1")
            arr[t] = issue_cost(); st['nxt'] += 1; log.append(f"A{t}@{step}")
            return True
        if ring.q and must is None:
            half = ring.log[ring.q[0][0][0]][2] != 'all'
            ring.pump(s, 1); issue_cost()
            if half: st['pipe'] -= CFG['LT2'] // 2
            return True
        return False
    log = []
    V = []
    for t in range(36):
        vdone = 0
        while True:
            if try_load(t): continue
            if CFG['MIX'] and t in arr and st['clk'] >= arr[t] + CFG['MG'] and vdone >= CFG['MIX'] and (t < 4 or 'p1' in s.marks) and (t < 7 or 'vbar' in s.marks): break
            if F and isinstance(F[0], tuple) and F[0][0] == 'hold':
                F[0] = ('tilt', t + F[0][1])
            if F and isinstance(F[0], tuple) and F[0][0] == 'tilt' and t >= F[0][1]: F.pop(0)
            if F and not (t in arr and st['clk'] >= arr[t] and not pool and st['nxt'] < 36):
                l = len(F); n0 = s.n_issued
                fill(s, F, 6, force=True)
                st['clk'] += (s.n_issued - n0) * CFG['VC']; vdone += s.n_issued - n0
                if len(F) < l: continue
            if t not in arr:
                assert try_load(t, must=st['nxt']); continue
            if st['clk'] < arr[t] and (st['nxt'] < 36 or ring.q):
                nclk = min(arr[t], st['clk'] + 32)
                if nclk < arr[t]:
                    st['clk'] = nclk
                    if try_load(t): continue
                    continue
            break
        st['clk'] = max(st['clk'], arr[t])
        if t == 4: until(s, ring, F, 'p1')
        for ct in ((1, 0) if t in (27, 35) else (0, 1)):
            acc = (YA if t < 28 else SA)[ct]
            cin = "0" if t in (0, 28) else R(acc, 16)
            s.e(f"{MF} {R(acc,16)}, {R(breg(t)+4*ct,4)}, {R(areg[t],4)}, {cin}")
        st['clk'] += 128 if not (F and CFG['MIX']) else 48
        pool.append(areg[t])
        if 4 <= t <= 7: pool += [XA + 8 * t, XA + 8 * t + 4]
        rs_ = t + PB
        if rs_ in bars:
            if rs_ == 8:
                n = until(s, ring, F, 'vbar')
                if n: print("   forced", n, "fillers before a8 in", s.name)
            bar(s, ring, f"a{rs_}", bars[rs_][0], bars[rs_][1], lg0=True); log.append(f"|a{rs_}/{st['clk']}")
        if NR <= rs_ < 36: bread(ring, ch, rs_)(s)
        if t == 26: assert not F, F
        if t == 25:
            ys = [ring.free.pop(0) for _ in range(3)]
            drain(s, [blk(f"s_lshl_b32 s4, {sRT2}, 11\nv_add_u32 v9, s4, {vA16}")] + xaddr(ys))
        if t == 27:
            stamp('yend')(s)
            drain(s, ["v_permlane32_swap_b32 v16, v18", "v_permlane32_swap_b32 v17, v19"])
            for j in range(4): drain(s, [f"v_lshlrev_b32 v{XT+24+2*j}, 16, v{16+j}", f"v_and_b32 v{XT+25+2*j}, 0xffff0000, v{16+j}"])
            W = xwrite(YA)
        if 27 <= t < YB - 1:
            k = -(-len(W) // (YB - 1 - t))
            drain(s, W[:k]); W = W[k:]
        if t == YB - 1:
            ss = [ring.free.pop(0) for _ in range(2)] + [9]
            rdl, V = xread(ys, OWNY, XT)
            drain(s, rdl + xaddr(ss))
            for j in range(8): V.append(f"v_mul_f32 v{XT+j}, 0xbfb8aa3b, v{OWNY+j}")
            for j in range(8): V.append(f"v_exp_f32 v{XT+j}, v{XT+j}")
            for j in range(8): V.append(f"v_add_f32 v{XT+j}, 1.0, v{XT+j}")
            for j in range(8): V.append(f"v_rcp_f32 v{XT+j}, v{XT+j}")
            for j in range(8): V.append(f"v_mul_f32 v{OWNY+j}, v{OWNY+j}, v{XT+j}")
        if YB <= t < 35:
            drain(s, V[:CFG['TV']]); V = V[CFG['TV']:]
    print("   sched", s.name, " ".join(log), "end", st['clk'])
    stamp('send')(s)
    W = xwrite(SA)
    drain(s, V[:10]); V = V[10:]
    for w in W:
        drain(s, [w] + V[:6]); V = V[6:]
    drain(s, V)
    s.wait(lg=0); s.e("s_barrier")
    rdl, V = xread(ss, OWNS, XT)
    if CFG['PKT']:
        V = [pk2("add", XT + j, XT + j, XT + 8 + j) for j in range(0, 8, 2)] + [pk2("add", OWNS + j, OWNS + j, XT + 16 + j) for j in range(0, 8, 2)] + [pk2("add", OWNS + j, OWNS + j, XT + j) for j in range(0, 8, 2)]
    drain(s, rdl + V)
    for j in range(8): s.e(f"v_fma_f32 v{OWNS+j}, v{OWNS+j}, v{OWNY+j}, v{XT+24+j}")
    for j in range(4): s.e(f"v_cvt_pk_bf16_f32 v{16+j}, v{OWNS+2*j}, v{OWNS+2*j+1}")
    s.e("v_permlane32_swap_b32 v16, v18\nv_permlane32_swap_b32 v17, v19")
    s.e(f"buffer_store_dwordx4 v[16:19], v20, {sOut}, {sUC} offen")
    stamp('st')(s)
    if PROFILE:
        s.raw("s_waitcnt vmcnt(0) lgkmcnt(0)")
        stamp("end")(s)
        s.raw("s_waitcnt lgkmcnt(0)")
        n = len(s.snames)
        for i in (n - 2, n - 1): s.raw(f"v_writelane_b32 v29, s{STAMP0+2*(i%4)}, {i}")
        s.e(f"v_subrev_u32 v29, s96, v29\nv_lshlrev_b32 v16, 2, v0")
        s.raw("s_memrealtime s[84:85]\ns_waitcnt lgkmcnt(0)\nv_writelane_b32 v29, s58, 62\nv_writelane_b32 v29, s84, 63")
        s.e(f"s_lshl_b32 s3, {sBID}, 11\ns_lshl_b32 s4, {sW}, 8\ns_add_u32 s3, s3, s4\ns_add_u32 s3, s3, {PROF_OFF}")
        s.e(f"buffer_store_dword v29, v16, {sWs}, s3 offen")
        if CFG.get('DBG') is not None:
            lab = label()
            s.e(f"s_cmp_lg_u32 {sBID}, {CFG['DBG']}\ns_cbranch_scc1 {lab}\ns_cmp_lg_u32 {sW}, 0\ns_cbranch_scc1 {lab}")
            idx = list(range(n - 1, -1, -3))[:16][::-1]
            for k, i in enumerate(idx):
                s.raw(f"v_readlane_b32 s4, v29, {i}\ns_nop 1\nv_mov_b32 v17, s4\nbuffer_store_dword v17, {vFO}, {sDbg}, 0 offen offset:{4*k}\ns_nop 1")
            s.e(f"{lab}:")
            if s.name in ('A0', 'B0'): print("DBG", s.name, [s.snames[i] for i in idx])
        open(f"snames_{s.name}.txt", "w").write(" ".join(s.snames))
    s.e("s_endpgm")
    s.slots = (dict(ring.slot), ys, ss)
    print("   ring", s.name, " ".join(f"{k}:{v[0]}>{v[1]}" for k, v in ring.log.items()))

SCR_DUM = SCR + 15360
def touchB(s):
    if not CFG['TB']: return
    s.e(f"s_lshl_b32 s4, {sBID}, 3\ns_add_u32 s4, s4, {sW}\ns_mul_i32 s5, s4, 896\ns_lshl_b32 s4, s4, 8\ns_mov_b32 m0, {SCR_DUM}")
    s.e(f"v_min_u32 {vT}, 6, v0\nv_lshlrev_b32 {vT}, 7, {vT}")
    s.e(f"buffer_load_dword {vT}, {sW2}, s5 offen lds")
    s.e(f"v_min_u32 {vT}, 1, v0\nv_lshlrev_b32 {vT}, 7, {vT}")
    s.e(f"buffer_load_dword {vT}, {sWo}, s4 offen lds")
def touchW(s):
    if not CFG['TW']: return
    s.e(f"s_lshl_b32 s4, {sBID}, 3\ns_add_u32 s4, s4, {sW}\ns_mul_i32 s5, s4, 896\ns_mul_i32 s4, s4, 768\ns_mov_b32 m0, {SCR_DUM}")
    s.e(f"v_min_u32 {vT}, 6, v0\nv_lshlrev_b32 {vT}, 7, {vT}")
    s.e(f"buffer_load_dword {vT}, {sW1}, s5 offen lds")
    s.e(f"v_min_u32 {vT}, 5, v0\nv_lshlrev_b32 {vT}, 7, {vT}")
    s.e(f"buffer_load_dword {vT}, {sWq}, s4 offen lds")
def touch2(c, hf=None):
    def f(s):
        if c == 0 and not hf:
            if hf is None: s.e(f"s_lshl_b32 s4, s87, 3")
            else: s.e(f"s_lshr_b32 s4, s87, 4\ns_lshl_b32 s4, s4, 3\ns_and_b32 s5, s87, 7\ns_add_u32 s4, s4, s5\ns_lshl_b32 s4, s4, 3")
            s.e(f"s_add_u32 s4, s4, {sW}\ns_lshr_b32 s5, s4, 6\ns_and_b32 s4, s4, 63\ns_lshl_b32 s4, s4, 10\n"
                f"s_mul_i32 s90, s5, {448*1024}\ns_add_u32 s90, s90, s4\ns_lshl_b32 s91, s5, 17\ns_add_u32 s91, s91, s4")
        s.e(f"s_mov_b32 m0, {SCR_DUM}")
        h = hf or 0
        if c < 7: s.e(f"s_add_u32 {sSoW}, s90, {ORDER[4*c]*16384 + h*896*1024}\nbuffer_load_dwordx4 {vA16}, {sW2}, {sSoW} offen lds")
        else: s.e(f"s_add_u32 {sSoW}, s91, {(c-7)*65536 + h*256*1024}\nbuffer_load_dwordx4 {vA16}, {sWo}, {sSoW} offen lds")
    return f
def touch3(c, ch):
    def f(s):
        wv = CFG['T3W'][c]
        if wv // 4 != ch: return
        lab = label()
        s.e(f"s_cmp_lg_u32 {sW}, {wv}\ns_cbranch_scc1 {lab}")
        mul = 448 * 1024 if c < 7 else 128 * 1024
        off = ORDER[4 * c] * 16384 if c < 7 else (c - 7) * 65536
        s.e(f"s_lshr_b32 s90, s87, 3\ns_mul_i32 s90, s90, {mul}\ns_and_b32 s91, s87, 7\ns_lshl_b32 s91, s91, 13\ns_add_u32 s90, s90, s91\ns_add_u32 s90, s90, {off}\ns_mov_b32 m0, {SCR_DUM}")
        s.e(f"v_lshlrev_b32 v{CSA+3}, 7, v0")
        s.raw(f"buffer_load_dword v{CSA+3}, {sW2 if c < 7 else sWo}, s90 offen lds")
        s.e(f"{lab}:")
    return f
def touch4(k, ch):
    def f(s):
        if ch: return
        lab = label()
        n = (28, 28, 16)[k]
        s.e(f"s_cmp_lg_u32 {sW}, {k}\ns_cbranch_scc1 {lab}")
        s.e(f"s_mul_i32 s90, s87, {(56, 56, 16)[k]*1024}\ns_add_u32 s90, s90, {CFG['SC']*128 + (28*1024 if k == 1 else 0)}\ns_mov_b32 m0, {SCR_DUM}")
        s.e(f"v_min_u32 v{CSA+3}, {n-1}, v0\nv_lshlrev_b32 v{CSA+3}, 10, v{CSA+3}")
        s.raw(f"buffer_load_dword v{CSA+3}, {sW2 if k < 2 else sWo}, s90 offen lds")
        s.e(f"{lab}:")
    return f
def add_touch(segs, typ):
    if CFG['T2'] == 4:
        for k, at in enumerate(CFG['T4AT']): segs[at // 32].posts.setdefault(at % 32, []).append(touch4(k, segs[0].ch))
    if CFG['T2'] == 3:
        for c, at in enumerate(CFG['T2AT']): segs[at // 32].posts.setdefault(at % 32, []).append(touch3(c, segs[0].ch))
    for c, at in enumerate(CFG['T2AT']):
        if CFG['T2'] == 1: segs[at // 32].posts.setdefault(at % 32, []).append(touch2(c))
        if CFG['T2'] == 2 and typ == 'A':
            segs[at // 32].posts.setdefault(at % 32, []).append(touch2(c, 0))
            segs[(at + 2) // 32].posts.setdefault((at + 2) % 32, []).append(touch2(c, 1))

def touchA(t0, n, mask, T, T2, vp=vPoll):
    def f(s):
        if not CFG['TA']: return
        lab = label()
        s.e(f"v_min_u32 {T}, {n-1}, v0")
        if t0 < 28 and n > 4:
            d = ORDER[t0 + 4] - ORDER[t0] - 4
            s.e(f"v_lshrrev_b32 {T2}, 2, {T}\nv_mul_u32_u24 {T2}, {d}, {T2}\nv_add_u32 {T}, {T}, {T2}")
        off = ORDER[t0] * 1024 if t0 < 28 else 0
        s.e(f"v_lshlrev_b32 {T}, 10, {T}\ns_lshl_b32 {sSoW}, {sCB}, 7\ns_add_u32 {sSoW}, {sSoW}, {sA2y if t0 < 28 else sA2s}\ns_add_u32 {sSoW}, {sSoW}, {off}\ns_mov_b32 m0, {SCR_DUM}")
        s.e(f"v_cmp_ne_u32 vcc, 0, {vp}\ns_andn2_b32 {sT0}, {mask:#x}, vcc_lo\ns_cbranch_scc1 {lab}")
        s.raw(f"buffer_load_dword {T}, {sWs}, {sSoW} offen sc1 lds")
        s.e(f"{lab}:")
    return f

def ilv(st, co):
    out = st[:3] + co[:3] + [st[3]]
    a, b = st[4:], co[3:-1]
    while a or b:
        if a: out.append(a.pop(0))
        if a and len(a) > 2 * len(b): out.append(a.pop(0))
        if b: out.append(b.pop(0))
    return out + co[-1:]
def p0_items(a, b):
    it = []
    for c in range(4): it += x_items(c) + [a[c]]
    return it + b
def packin(acc): return [f"v_cvt_pk_bf16_f32 v{acc+j}, v{acc+2*j}, v{acc+2*j+1}" for j in range(8)]
def N(n, lo, hi): return [f"{n}{c}" for c in range(lo, hi)]
def initchk(s):
    poll_check(s, sDbg, "0", 0xffffffff, imm=128, nl=None); s.marks["init"] = 1
initpoll = lambda s: poll_issue(s, sDbg, "0", imm=128, nl=None)
pollA = lambda s: poll_issue(s, sWs, sFL2)

def stream_A(s0, ch):
    CB, DB = CFG['CB'], CFG['DB']
    s = s0.fork(f"A{ch}"); s.e(f"L_typeA{ch}:")
    bl = BIASL['A']
    items = p0_items(w_items("K", sWq, vDq, sUA, 3072), w_items("V", sWq, vDq, sUB, 3072)) + w_items("H", sW1, vD1, sUC, 3584) + b_items(0)
    ring = Ring(items, range(9), ch); ring.hold = ('XL3', 'XH3'); ring.upto0 = "V3"
    start(s, ring, 'K')
    s.e(f"s_lshl_b32 {sSCRW}, {sW}, 12\ns_add_u32 {sSCRW}, {sSCRW}, {2*SLOT}")
    s.marks.update(f1=1, f2=1, fo=1)
    uK = dict(name="K", acc=ACC_A, trans=True, kind='w', csi=0)
    uV = dict(name="V", acc=ACC_B, trans=False, kind='w', csi=1)
    uH = dict(name="H", acc=ACC_C, trans=True, kind='w', csi=0)
    F = [('wait', 'c1')] + ilv(stats_fin(PT), correct(uK, ch, PT + 8))
    F += ["v_lshrrev_b32 v26, 5, v0", "v_lshlrev_b32 v26, 1, v26", "v_bfe_u32 v25, v0, 1, 2", "v_xor_b32 v26, v25, v26", f"v_lshlrev_b32 v25, 4, {vP4}", "v_lshl_add_u32 v25, v26, 4, v25",
          f"v_add_u32 v25, {sSCRW}, v25", "v_xor_b32 v24, 16, v25"]
    F += packin(ACC_A)
    F += [f"{MF} {R(PT,16)}, {R(PHI,4)}, {R(ACC_A,4)}, 0", f"{MF} {R(ACC_C,16)}, {R(PHI+4,4)}, {R(ACC_A+4,4)}, 0", ('gap', 12)]
    for h, P in enumerate((PT, ACC_C)):
        if h == 1 and CFG['PKA']:
            sm = softmax_pk(P, ACC_A + 8, "v26", vT, PHI); F += sm[:9] + [('wait', 'c2')] + sm[9:]
        else: F += softmax(P, ACC_A + 8, "v26", vT)
        F += [f"ds_write_b128 v25, {R(ACC_A+8,4)} offset:{2048*h}", f"ds_write_b128 v24, {R(ACC_A+12,4)} offset:{2048*h}"]
    F += [('wait', 'c2')]
    F += ["v_lshrrev_b32 v26, 5, v0", "v_lshlrev_b32 v26, 4, v26", blk(f"s_lshl_b32 s4, {sRT}, 7\ns_add_u32 s4, s4, {SCR_RS}\nv_add_u32 {vT}, s4, v26")]
    for q in range(4): F.append(f"ds_read_b128 {R(PT+4*q,4)}, {vT} offset:{32*q}")
    F += ["v_bfe_u32 v25, v0, 2, 2", "v_lshlrev_b32 v25, 6, v25", "v_lshl_add_u32 v25, v26, 4, v25", f"v_bfe_u32 {vT}, v0, 4, 1", f"v_cmp_eq_u32 s[94:95], 1, {vT}",
          "v_lshrrev_b32 v24, 5, v0", f"v_xor_b32 {vT}, v24, {vT}", f"v_lshl_add_u32 v25, {vT}, 5, v25",
          "v_lshrrev_b32 v24, 2, v0", "v_xor_b32 v24, v24, v0", "v_bfe_u32 v24, v24, 1, 1", "v_lshl_add_u32 v25, v24, 4, v25",
          f"v_and_b32 {vT}, 1, v0", f"v_lshl_add_u32 v25, {vT}, 3, v25", f"v_add_u32 v25, {sSCRW}, v25", f"v_mov_b32 {vT}, {sC11}"]
    for t in range(2):
        for rd in range(2): F.append(f"ds_read_b64_tr_b16 {R(PHI+4*t+2*rd,2)}, v25 offset:{2048 + t*1024 + rd*512}")
    F += [pk2("mul", ACC_B + r, ACC_B + r, PT + r) for r in range(0, 16, 2)] if CFG['PKA'] else [f"v_mul_f32 v{ACC_B+r}, v{ACC_B+r}, v{PT+r}" for r in range(16)]
    F += packin(ACC_B)
    for t in range(2):
        for rd in range(2): F.append(f"ds_read_b64_tr_b16 {R(ACC_B+8+4*t+2*rd,2)}, v25 offset:{t*1024 + rd*512}")
    for j in range(8): F.append(f"v_cndmask_b32 v{ACC_A+8+j}, {vT}, v{ACC_B+j}, s[94:95]")
    for j in range(8): F.append(f"v_cndmask_b32 v{ACC_A+j}, v{ACC_B+j}, {vT}, s[94:95]")
    F += [f"{MF} {R(PT,16)}, {R(ACC_A,4)}, {R(ACC_B+8,4)}, 0", f"{MF} {R(PT,16)}, {R(ACC_A+4,4)}, {R(ACC_B+12,4)}, {R(PT,16)}",
          f"{MF} {R(ACC_B,16)}, {R(ACC_A+8,4)}, {R(PHI,4)}, 0", f"{MF} {R(ACC_B,16)}, {R(ACC_A+12,4)}, {R(PHI+4,4)}, {R(ACC_B,16)}"]
    F += [f"v_add_u32 v25, {sSCRW}, {vA16}", blk(f"s_lshl_b32 s4, {sW}, 9\ns_add_u32 s4, s4, {SCR_Z}\nv_lshlrev_b32 v26, 2, v0\nv_add_u32 v26, s4, v26")]
    F += [f"ds_write_b128 v25, {R(PT,4)}", f"ds_write_b128 v25, {R(PT+4,4)} offset:1024", f"ds_write_b32 v26, v{PT+8}",
          f"ds_write_b128 v25, {R(ACC_B+8,4)} offset:2048", f"ds_write_b128 v25, {R(ACC_B+12,4)} offset:3072", f"ds_write_b32 v26, v{ACC_B} offset:256"]
    F += [blk(f"s_lshl_b32 s4, {sRT}, 10\ns_add_u32 s4, s4, {2*SLOT + ch*SLOT}\nv_add_u32 v25, s4, {vA16}"),
          blk(f"s_lshr_b32 s4, {sRT}, 1\ns_lshl_b32 s4, s4, 8\ns_add_u32 s4, s4, {SCR_Z + ch*2048}\nv_add_u32 v26, s4, {vP4}"), mark('kvw')]
    ER = [f"ds_read_b128 {R(PT+4*r,4)}, v25 offset:{r*4096}" for r in range(4)] + [f"ds_read_b32 v{ACC_A+r}, v26 offset:{r*512}" for r in range(4)]
    ER += ["v_lshrrev_b32 v25, 5, v0", f"v_lshl_add_u32 v25, v25, 9, {vP4}", blk(f"s_lshl_b32 s5, {sRT2}, 10\nv_add_u32 v25, s5, v25"),
           f"v_lshrrev_b32 {vT}, 4, v0", f"v_cmp_eq_u32 s[94:95], {sRT2}, {vT}", f"v_mov_b32 {vT}, {BIG}",
           blk(f"s_and_b32 s5, {sG}, 1\ns_mul_i32 s5, s5, {10*1024}\ns_add_u32 s5, s5, {ch*2048}\ns_add_u32 {sUD}, {sKS}, s5\ns_lshl_b32 s4, {sI}, 7\ns_add_u32 {sKVF}, {sKVF}, s4"),
           f"v_cndmask_b32 v26, {vT}, {vP4}, s[94:95]"]
    for j in range(4): ER += [f"v_add_f32 v{PT+j}, v{PT+j}, v{PT+4+j}", f"v_add_f32 v{PT+8+j}, v{PT+8+j}, v{PT+12+j}"]
    for j in range(4): ER.append(f"v_add_f32 v{PT+j}, v{PT+j}, v{PT+8+j}")
    ER += [f"v_add_f32 v{ACC_A}, v{ACC_A}, v{ACC_A+1}", f"v_add_f32 v{ACC_A+2}, v{ACC_A+2}, v{ACC_A+3}", f"v_add_f32 v{ACC_A}, v{ACC_A}, v{ACC_A+2}"]
    for j in range(4): ER.append((f"buffer_atomic_add_f32 v{PT+j}, v25, {sWs}, {sKVs} offen offset:{j*128}", "kv"))
    ER += [(f"buffer_atomic_add_f32 v{ACC_A}, v26, {sWs}, {sKVs} offen offset:2048", "kv"), stamp('kvat')]
    EH = correct(uH, ch, PHI, BI0) + fin_setup() + (mish_pk if CFG['PKH'] else mish)(ACC_C, PT + 8, sUD, "actA")
    fkv = flag_store("kv", sKVF, 0, 'fkv'); f3 = flag_store("actA", sFL, 2 * 512, 'f3')
    pr = lambda c: [bnm(0, c), bnm(1, c)]
    m0 = pass0(s, ring, uK, ch, bl, "V3", ["V0"])
    mV = MSeg(ring, uV, ch, {CB: [B(ring, "c1", ["V1", "V2"], ["K3"] + ring.c1rel)], DB: [B(ring, "d1", ["V3", "H0"], N("V", 0, 2))]}, dma=CFG['ST'])
    if CFG['EA']:
        def h1(s):
            until(s, ring, FH, 'erd')
            bar(s, ring, "h1", [], ["H0"] + pr(0), extra=[2, 3])
        mH = MSeg(ring, uH, ch, {15: [h1], DB + 2: [B(ring, "h2", ["H3"] + pr(1), ["H1"])]},
              {6: [lambda s: drain(s, p2_setup(ring))], 7: pull(ring, ch, 0)[:2], 8: pull(ring, ch, 0)[2:], 22: pull(ring, ch, 1)[:2], 24: pull(ring, ch, 1)[2:], 27: [pollA], CFG['KVW']: [fkv]}, dma=CFG['ST'])
    else:
        mH = MSeg(ring, uH, ch, {DB: [B(ring, "h2", ["H3"] + pr(0), N("H", 0, 2), extra=[2, 3])]},
                  {18: [lambda s: drain(s, p2_setup(ring))], 22: pull(ring, ch, 0)[:2], 24: pull(ring, ch, 0)[2:], 27: [pollA], CFG['KVW']: [fkv]}, dma=CFG['ST'])
    m0.posts.setdefault(29, []).append(lambda s: drain(s, phi_frags()))
    add_touch([m0, mV, mH], 'A')
    mV.posts.setdefault(30, []).append(initpoll)
    m0.run(s, mV); mV.run(s, None, F, CFG['KB'] + CFG['KD'] * (1 - 2 * ch))
    bar(s, ring, "c2", [], N("V", 2, 4), lg0=True)
    print("   A V-only block:", len(F))
    VB_ = correct(uV, ch, WB) + F + [initchk, mH.pre]
    if CFG.get('VST'):
        for k in range(len(VB_) // 12 * 12, 0, -12): VB_.insert(k, stamp(f"v{k}"))
    vseg(s, ring, VB_, flush=False)
    bar(s, ring, "d2", ["H1", "H2"] + (pr(0) if CFG['EA'] else []))
    FH = list(ER) + [mark('erd')]
    mH.run(s, None, FH, CFG['VB'])
    assert not FH
    if CFG['EA']:
        bar(s, ring, "e1", [], N("H", 2, 4) + pr(1), lg0=True); ring.rel8 = []
    else:
        bar(s, ring, "e1", pr(1), N("H", 2, 4) + pr(0), lg0=True)
        drain(s, pull(ring, ch, 1))
        ring.rel8 = pr(1)
    s.marks.update(vbar=1, p1=1)
    F = EH + [mark('v1'), mark('v0'), ('hold', CFG['F3G']), f3]
    aphase(s, ring, ch, F, list(range(36, 64, 4)) + list(range(80, 96, 4)) + [100, 120, 124], {'v1': [104, 108, 112, 116]}, CFG['TOFF'])
    return s

def stream_B(s0, ch):
    CB, DB = CFG['CB'], CFG['DB']
    s = s0.fork(f"B{ch}"); s.e(f"L_typeB{ch}:")
    bl = BIASL['B']
    H5 = [(f"F{c}", sW1, vD5, sUD, 0, 16 * 3584, 0, 128 * 3584, lambda hf, c=c: 2 * c + hf) for c in range(2)]
    items = p0_items(w_items("U", sW1, vD1, sUA, 3584), w_items("Y", sW1, vD1, sUB, 3584))
    Qi = w_items("Q", sWq, vDq, sUC, 3072); bi = b_items(1)
    items += H5 + [Qi[0]] + bi[:2] + [Qi[1], Qi[2]] + bi[2:4] + [Qi[3]] + bi[4:] if CFG['EB'] else H5 + Qi + bi
    ring = Ring(items, range(9), ch); ring.upto0 = "Y3"; ring.strict = bool(CFG['EB'])
    start(s, ring, 'U')
    s.e(f"s_and_b32 s5, {sG}, 1\ns_cmp_eq_u32 s5, 0\ns_cselect_b32 s5, 4, 2\ns_cselect_b32 s4, {12*1024}, 0\ns_lshl_b32 s5, s5, 10\n"
        f"s_add_u32 {sSCRW}, {sKS}, s4\ns_add_u32 s5, s5, {ch*2048}\ns_add_u32 {sKS}, {sKS}, s5")
    uU = dict(name="U", acc=ACC_A, trans=True, kind='w', csi=0)
    uY = dict(name="Y", acc=ACC_B, trans=True, kind='w', csi=1)
    uF = dict(name="F", acc=ACC_C, trans=True, kind='h5', csi=0)
    uQ = dict(name="Q", acc=ACC_A, trans=True, kind='w', csi=1)
    EU = ilv(stats_fin(PT), correct(uU, ch, PT + 8, BI0)) + [('gap', 14)] + mish(ACC_A, PT, sKS, "act1") + [f"s_add_u32 {sKS}, {sKS}, 4096"]
    EY = correct(uY, ch, PT + 8, BI1) + [mark('b1dead'), ('gap', 16)] + mish(ACC_B, PT, sKS, "act2")
    EF = correct(uF, ch, PT + 8, BI2) + [('gap', 16)] + mish(ACC_C, PT, sSCRW, "act5")
    EQ = correct(uQ, ch, PT + 12) + phi_frags() + pack16(ACC_A, PK)
    EQ += [f"{MF} {R(PT,16)}, {R(PHI,4)}, {R(PK,4)}, 0", f"{MF} {R(ACC_B,16)}, {R(PHI+4,4)}, {R(PK+4,4)}, 0"] + fin_setup()
    if CFG['PK']: EQ += softmax_pk(PT, ACC_A, "v26", vT, PHI) + softmax_pk(ACC_B, ACC_A + 8, "v26", vT, PHI)
    else: EQ += softmax(PT, ACC_A, "v26", vT) + softmax(ACC_B, ACC_A + 8, "v26", vT)
    f1 = flag_store("act1", sFL, 0, 'f1'); f2 = flag_store("act2", sFL, 512, 'f2'); f3 = flag_store("act5", sFL, 3 * 512, 'f3')
    pr = lambda c: [bnm(0, c), bnm(1, c)]
    FG = ('gap', CFG['FG'])
    F = [('wait', 'c1')] + EU + [mark('m1'), ('wait', 'c2')] + split(EY, 0.6, lambda s: (initchk(s), f1(s))) + [mark('m2')]
    if ch == 0: F += [('wait', 'c3')] + split(EF, 0.6, f2) + [mark('m3')]
    else: F += [FG, f2, mark('m3'), mark('f3')]
    m0 = pass0(s, ring, uU, ch, bl, "Y3", ["Y0"])
    mY = MSeg(ring, uY, ch, {CB: [B(ring, "c1", ["Y1", "Y2"], ["U3"] + ring.c1rel)], DB: [B(ring, "d1", ["Y3", "F0"], N("Y", 0, 2))]}, dma=CFG['ST'])
    c2 = B(ring, "c2", ["F1", "Q0"], N("Y", 2, 4), owner=1)
    if CFG['EB']:
        mQ = MSeg(ring, uQ, ch, {CB: [B(ring, "c3", ["Q1", "Q2"] + pr(0), ["F0", "F1"])], 15: [B(ring, "q1", pr(1), pr(0) + ["Q0"])], DB + 2: [B(ring, "d3", ["Q3"], ["Q1"] + pr(1))]},
              {5: [lambda s: (until(s, ring, F, 'b1dead'), drain(s, p2_setup(ring)))], 7: pull(ring, ch, 0)[:2], 8: pull(ring, ch, 0)[2:], 15: pull(ring, ch, 1)[:2], 16: pull(ring, ch, 1)[2:], 27: [pollA]}, dma=CFG['ST'])
    else:
        mQ = MSeg(ring, uQ, ch, {CB: [B(ring, "c3", ["Q1", "Q2"], ["F0", "F1"])], DB: [B(ring, "d3", ["Q3"] + pr(0), N("Q", 0, 2))]},
                  {15: [lambda s: (until(s, ring, F, 'b1dead'), drain(s, p2_setup(ring)))], 22: pull(ring, ch, 0)[:2], 24: pull(ring, ch, 0)[2:], CFG['TAT']: [touchA(0, 8, 0xf, 'v160', 'v161')], 27: [pollA]}, dma=CFG['ST'])
    add_touch([m0, mY, mQ], 'B')
    mY.posts.setdefault(28, []).append(initpoll)
    m0.run(s, mY)
    if ch == 0:
        mF = MSeg(ring, uF, ch, {CB: [c2]}, dma=CFG['ST'] // 2)
        mY.run(s, mF, F, CFG['P1B'] + CFG['PD']); mF.run(s, mQ, F, CFG['FB'])
    else:
        mY.run(s, None, F, CFG['P1B'] - CFG['PD']); c2(s); vrun(s, ring, F, CFG['IB']); mQ.pre(s)
    print("   B forced m1:", until(s, ring, F, 'm1'))
    mQ.run(s, None, F, CFG['QB'][ch])
    KS, OD, OD2, OF, OP = WB, PT, ACC_B, PHI, PK
    def kvfetch(s):
        poll_check(s, sWs, sKVF, 0xffff, vPoll2, nl=16)
        s.e(f"s_lshl_b32 s5, {sRT2}, 10\ns_add_u32 s5, s5, {sKVs}")
        s.e(f"buffer_load_dwordx4 {R(KS,4)}, {vA16}, {sWs}, s5 offen sc1")
        s.e(f"v_and_b32 v21, 3, v0\nv_lshlrev_b32 v21, 4, v21\ns_lshl_b32 s5, {sRT2}, 6\ns_add_u32 s5, s5, {sKVs}")
        s.e(f"buffer_load_dwordx4 {R(KS+4,4)}, v21, {sWs}, s5 offen offset:2048 sc1")
    IM = [f"v_cvt_pk_bf16_f32 v{KS}, v{KS}, v{KS+1}", f"v_cvt_pk_bf16_f32 v{KS+1}, v{KS+2}, v{KS+3}",
          f"v_cvt_pk_bf16_f32 v{KS+4}, v{KS+4}, v{KS+5}", f"v_cvt_pk_bf16_f32 v{KS+5}, v{KS+6}, v{KS+7}",
          blk(f"s_mul_i32 s5, {sKQ}, 1088\ns_add_u32 s5, s5, {SCR_KV}\ns_lshl_b32 s4, {sRT2}, 9\ns_add_u32 s4, s4, s5\nv_lshlrev_b32 v25, 3, v0\nv_add_u32 v25, s4, v25\n"
              f"ds_write_b64 v25, {R(KS,2)}\ns_lshl_b32 s4, {sRT2}, 5\ns_add_u32 s4, s4, s5\nv_lshrrev_b32 v21, 1, v21\nv_add_u32 v21, s4, v21\nds_write_b64 v21, {R(KS+4,2)} offset:1024"),
          f"v_min_u32 v25, 64, {vP4}", "v_lshlrev_b32 v25, 4, v25", "v_lshrrev_b32 v26, 5, v0", "v_lshl_add_u32 v25, v26, 5, v25",
          blk(f"v_add_u32 v25, {SCR_KV + ch*2176}, v25\ns_lshl_b32 s5, {sG}, 12\ns_add_u32 s5, s5, {sAF}\ns_add_u32 {sSCRW}, s5, {112*1024 + ch*2048}")]
    O = [f"ds_read_b128 {R(OF,4)}, v25", f"ds_read_b128 {R(OF+4,4)}, v25 offset:16", f"ds_read_b128 {R(OP,4)}, v25 offset:1088", f"ds_read_b128 {R(OP+4,4)}, v25 offset:1104"]
    O += [f"{MF} {R(OD,16)}, {R(OF,4)}, {R(ACC_A,4)}, 0", f"{MF} {R(OD,16)}, {R(OF+4,4)}, {R(ACC_A+4,4)}, {R(OD,16)}",
          f"{MF} {R(OD2,16)}, {R(OP,4)}, {R(ACC_A+8,4)}, 0", f"{MF} {R(OD2,16)}, {R(OP+4,4)}, {R(ACC_A+12,4)}, {R(OD2,16)}"]
    for h, D in enumerate((OD, OD2)):
        O += [f"v_add_f32 v26, 0x358637bd, v{D+8}", "v_rcp_f32 v26, v26"]
        for j in range(8): O.append(f"v_mul_f32 v{D+j}, v{D+j}, v26")
        for j in range(4): O.append(f"v_cvt_pk_bf16_f32 v{ACC_A+4*h+j}, v{D+2*j}, v{D+2*j+1}")
        O.append((f"buffer_store_dwordx4 {R(ACC_A+4*h,4)}, {vA16}, {sWs}, {sSCRW} offen offset:{h*1024} sc1", "o"))
    O.append(stamp('ost'))
    if CFG['EB']: bar(s, ring, "e1", [], N("Q", 2, 4), lg0=True)
    else:
        bar(s, ring, "e1", pr(1), N("Q", 2, 4) + pr(0), lg0=True)
        drain(s, pull(ring, ch, 1))
    s.marks['p1'] = 1
    ring.rel8 = []
    def ins(L, back, item): return L[:len(L) - back] + [item] + L[len(L) - back:]
    F2 = F + EQ
    if ch == 0: F2 = ins(F2, 110, f3)
    kp = lambda s: poll_issue(s, sWs, sKVF, vPoll2, nl=16)
    K1, K2, K3 = CFG['KS']
    if CFG['KM'] == 0:
        F2 = ins(ins(F2, CFG['KP'], kp), CFG['KF'], kvfetch)
        F2 += IM + [B(ring, "e2", [], [] if CFG['EB'] else pr(1), lg0=True), mark('vbar')] + O + [mark('v1'), mark('v0'), ('hold', CFG['OW']), flag_store("o", sFL, 4 * 512, 'fo')]
    elif CFG['KM'] == 2:
        s.marks['vbar'] = 1
        F2 = ins(ins(F2, CFG['KP'], kp), CFG['KF'], kvfetch)
        F2 += [mark('v0')] + IM + [('nextbar',)] + O + [mark('v1'), ('hold', CFG['OW']), flag_store("o", sFL, 4 * 512, 'fo')]
    else: F2 += [mark('v0'), mark('vbar'), ('tilt', K1), kp, ('tilt', K2), kvfetch, ('tilt', K3)] + IM + [('nextbar',)] + O + [mark('v1'), ('hold', CFG['OW']), flag_store("o", sFL, 4 * 512, 'fo')]
    ring.rel8 = pr(1) if (CFG['KM'] and not CFG['EB']) else []
    aphase(s, ring, ch, F2, [88, 92], {'f3': [64, 68, 72, 76], 'v1': [80, 84] + list(range(40, 64, 4)) + list(range(96, 128, 4))}, 0)
    return s

def build(path, listform=True):
    s0 = Stream("P")
    if PROFILE: s0.e("s_memtime s[96:97]\ns_memrealtime s[58:59]")
    prologue(s0)
    s0.e(f"s_lshl_b32 s5, {sTY}, 1\ns_add_u32 s5, s5, {sCH}\ns_cmp_eq_u32 s5, 0\ns_cbranch_scc1 L_typeA0\ns_cmp_eq_u32 s5, 1\ns_cbranch_scc1 L_typeA1\ns_cmp_eq_u32 s5, 3\ns_cbranch_scc1 L_typeB1")
    B0 = stream_B(s0, 0); B1 = stream_B(s0, 1); A0 = stream_A(s0, 0); A1 = stream_A(s0, 1)
    assert B0.nbar == B1.nbar and A0.nbar == A1.nbar
    assert B0.slots == B1.slots and A0.slots == A1.slots
    hdr = open("recurrent_scan__linear_kernel_hedgehog__dense_activation_mish__prompt.s.ref").read().split("; Override")[0]
    T = [hdr.rstrip(), f"; @launch {'kernel=' + KNAME + ' ' if listform else ''}grid=(256,1,1) block=(512,1,1) lds=163840",
         '.amdgcn_target "amdgcn-amd-amdhsa--gfx950"', ".text", f".globl {KNAME}", ".p2align 8", f".type {KNAME},@function", f"{KNAME}:"]
    S = [s0, B0, B1, A0, A1]
    for st in S:
        T.append(f"; ---- stream {st.name}  nops={st.stats['nop']} waits={st.stats['wait']} barriers={st.nbar}")
        T.append(st.text())
    for st in S: T += st.ool
    T.append("L_end:\n  s_endpgm")
    T.append(".fill 6144, 4, 0xbf800000")
    T.append(f'''.section .rodata,"a"
.p2align 6
.amdhsa_kernel {KNAME}
  .amdhsa_next_free_vgpr 256
  .amdhsa_next_free_sgpr 102
  .amdhsa_accum_offset 256
  .amdhsa_group_segment_fixed_size 0
  .amdhsa_kernarg_size 88
  .amdhsa_user_sgpr_count 2
  .amdhsa_user_sgpr_kernarg_segment_ptr 1
  .amdhsa_system_sgpr_workgroup_id_x 1
.end_amdhsa_kernel''')
    open(path, "w").write("\n".join(T) + "\n")
    for st in S: print(st.name, "instrs", len(st.out), st.stats, "barriers", st.nbar)

if __name__ == "__main__":
    for a in sys.argv[2:]:
        if a == "prof": PROFILE = True
        elif '=' in a:
            k, v = a.split('='); CFG[k] = eval(v)
    build(sys.argv[1], listform=("final" not in sys.argv))
```

```python
import sys
sys.path.insert(0, 'gen')
from ab import *

KNAME = "recurrent_scan__linear_kernel_hedgehog__dense_activation_mish__prompt_kernel"
PROFILE = False
SLOT = 16384
SCR = 9 * SLOT
SCR_PHI = SCR
SCR_RS = SCR + 2048
SCR_ST = SCR + 2560
SCR_CS = SCR + 6656
SCR_Z = SCR + 10752
SCR_KV = SCR + 10752
Z_OFF = 0x900000
KV_OFF = Z_OFF
KVFLAG_OFF = Z_OFF + 0x40000
ACTFLAG_OFF = Z_OFF + 0x16000
PROF_OFF = 0xA00000
BIG = 0x40000000
CFG = dict(AD=16, A0=8, AN=2, BN=1, G8=1, F3G=1, PB=[(200, 40), (80, 55), (80, 40)], SLP=8, PCA=[4, 10], PCB=[4, 10], GIA={4: 1}, GIB={4: 2}, HS=8, CVE=5, EAR=2, EPA=12, EPB=12, XAT=15, S9A=4, S9B=7, NPB=6, LG=6, LVA=[15, 80], LVB=[15, 80], CV0A=15, CV0B=15, CVA=11, CVB=12, PIA={4: 0, 8: 3.5, 10: 5.5, 14: 9.5}, PIB={4: 1, 8: 3.5, 10: 5.5, 14: 9.5}, LLT=6, SC=3, T4AT=[30, 36, 38], NBX=2, LG0=0, PWW=0, PVL=60, PSA=[(3, 7), (11, 14), (18, 21)], PSB=[(0, 1), (5, 8), (11, 15)], PB2=3, YB=31, PKT=1, MIX=0, MG=300, EB=0, EA=1, PKH=1, T3W=[0, 1, 2, 3, 0, 1, 2, 3, 0], OWN='', KD=0, PD=0, UP=[0, 0, 0, 1, 2, 2, 4], PAR=2, FB4=0, PKA=1, PK=0, KM=0, KVW=17, KS=(0, 5, 10), KVP=12, TAP=8, TAT=20, TAD=2, CB=6, DB=22, TW=1, TWT=2, GT=[2000, 4000, 5500, 500], TOFF=-1000, LT=200, LT2=200, QD2=800, LAT=900, QD=800, PLT=1500, BL=6, VC=9, T2=4, T2AT=[30, 35, 40, 45, 50, 55, 60, 66, 72], PF=4, PL=4, S0=6, S1=6, PRIO=0, VD=10, KP=160, KF=110, OW=1, G16=8, G28=20, TV=10, TB=1, TBT=28, TA=0, TO=11, T0=0, T1=0, ROT=2, RATE=38, BURST=24576, ST=90,
    CRED=6, AGE=14, P1B=6, FB=5, QB=[9, 3], IB=150, KB=6, VB=8, KVG=60, EH0=60, FG=60, E1=[120, 100], E2=[100, 80])

sX, sWq, sW1, sW2, sWo, sPhi, sB1, sOut, sDbg, sWs = [f"s[{8+4*i}:{11+4*i}]" for i in range(10)]
sW, sRT, sCH, sI, sG, sTY, sRB, sCB, sKQ, sRT2 = [f"s{48+i}" for i in range(10)]
sT0 = "s3"
sC10, sC01, sC11 = "s58", "s59", "s60"
sM0W = "s61"; sSoW = "s62"
sUA, sUB, sUC, sUD = "s63", "s6", "s7", "s2"
sAF, sFL, sAF2, sFL2, sB2, sBo, sKVs, sKVF, sSCRW, sCNT, sKS, sBID = [f"s{64+i}" for i in range(12)]
sA2y, sA2s, sOo = "s0", "s1", "s5"
STAMP0 = 76

vA16 = "v1"; vDq = "v2"; vD1 = "v3"; vDB = "v4"; vD5 = "v5"
VW = 6
vRS, vRSL, vM2 = "v14", "v15", "v22"
CF = 16
BI0, BI1, BI2 = 23, 24, 25
vPoll = "v27"; vFO = "v28"; vOne = "v10"; vP4 = "v30"; vT = "v31"; vPoll2 = "v9"
ACC_A, ACC_B, ACC_C = 32, 48, 64
WB = 80; PT = 96; PHI = 112; PK = 120; XA = 128
XR = 64; XD = 72; HR = 112; STA = 96; CSB = 116; ASEL = 120; CSA = 124
sXb = "s86"; sRot = "s89"; ROT0 = 98

def R(b, n): return f"v[{b}:{b+n-1}]"
def ldsaddr(regs, byte): return regs[byte >> 16], byte & 0xffff
_nl = [0]
def label():
    _nl[0] += 1; return f"L{_nl[0]}"
def stamp(name):
    def f(s):
        if not PROFILE: return
        if not hasattr(s, 'snames'): s.snames = []
        idx = len(s.snames)
        if idx >= 61: return
        s.snames.append(str(name))
        s.e(f"s_memtime s[{STAMP0+2*(idx%4)}:{STAMP0+1+2*(idx%4)}]")
        if idx >= 2: s.raw(f"v_writelane_b32 v29, s{STAMP0+2*((idx-2)%4)}, {idx-2}")
    return f
def srd(s, dst, lo, hi, size):
    b = int(dst[2:dst.index(':')])
    s.e(f"s_mov_b32 s{b}, {lo}\ns_and_b32 s{b+1}, {hi}, 0xffff\ns_mov_b32 s{b+2}, {size}\ns_mov_b32 s{b+3}, 0x20000")
def poll_issue(s, srd_, soff, vp=vPoll, imm=0, vo=vP4):
    assert srd_ == sDbg or 'init' in s.marks
    s.e(f"buffer_load_dword {vp}, {vo}, {srd_}, {soff} offen offset:{imm} sc1")
def poll_check(s, srd_, soff, mask, vp=vPoll, imm=0, vo=vP4):
    l1, l2, l3 = label(), label(), label()
    stamp(f"[p{imm//128}_{mask:x}")(s)
    s.e(f"v_cmp_ne_u32 vcc, 0, {vp}\ns_andn2_b32 {sT0}, {mask:#x}, vcc_lo\ns_cbranch_scc1 {l1}\n{l2}:")
    stamp(f"p]")(s)
    s.ool.append(f"""{l1}:
  s_mov_b32 {sCNT}, 0x10000
{l3}:
  s_sleep {CFG['SLP']}
  buffer_load_dword {vp}, {vo}, {srd_}, {soff} offen offset:{imm} sc1
  s_waitcnt vmcnt(0)
  v_cmp_ne_u32 vcc, 0, {vp}
  s_nop 1
  s_andn2_b32 {sT0}, {mask:#x}, vcc_lo
  s_cbranch_scc0 {l2}
  s_sub_u32 {sCNT}, {sCNT}, 1
  s_cmp_lg_u32 {sCNT}, 0
  s_cbranch_scc1 {l3}
  s_branch {l2}""")
def flag_store(tagwait, soff, imm, mark):
    def f(s):
        assert 'init' in s.marks
        stamp("(" + mark)(s)
        s.wait_tag(tagwait)
        stamp(mark + ")")(s)
        s.e(f"buffer_store_dword {vOne}, {vFO}, {sWs}, {soff} offen offset:{imm} sc1")
        s.marks[mark] = 1
    return f
def blk(text): return lambda s: s.e(text)

class Ring:
    hold = ()
    def __init__(self, items, free, ch):
        self.items = list(items); self.free = list(free); self.slot = {}; self.q = []; self.log = {}; self.ch = ch
        self.order = {it[0]: k for k, it in enumerate(items)}; self.xres = True; self.gate = {}; self.lim = None
    def release(self, name):
        if name not in self.hold: self.free.append(self.slot[name])
    def assign(self, s, owner='all', upto=None, maxn=99):
        k = 0
        while k < len(self.items) and maxn > 0:
            it = self.items[k]; nm = it[0]
            if upto is not None and self.order[nm] > self.order[upto]: break
            if self.lim is not None and self.order[nm] > self.order[self.lim]: break
            if nm[0] == 'X':
                want = 2 * (int(nm[2]) & 1) + (nm[1] == 'H')
                ok = [x for x in self.free if x == want]
                if not ok: k += 1; continue
            elif nm[0] in 'BFA': ok = [x for x in self.free if not (self.xres and x < 4)]
            else: ok = [x for x in self.free if x != 0 and not (self.xres and x < 4)]
            if not ok:
                if nm[0] not in 'BA' and not self.strict: k += 1; continue
                break
            if nm[0] in 'BF' and 0 in ok: ok = [0]
            self.items.pop(k); sl = ok[0]; self.free.remove(sl); self.slot[nm] = sl; maxn -= 1
            self.log[nm] = [s.nbar, None, owner]
            if owner == 'all': self.q += [(it, sl, h, 0) for h in range(2)]
            elif owner == self.ch: self.q += [(it, sl, h, o) for o in range(1 if nm == 'BX' else 2) for h in range(2)]
            if nm == 'XH3': self.xres = False
        self.q.sort(key=lambda e: self.order[e[0][0]])
    def pump(self, s, n=1):
        while n > 0 and self.q:
            if self.q[0][0][0] in self.gate: self.gate.pop(self.q[0][0][0])(s)
            it, sl, h, other = self.q.pop(0)
            name, srd_, voff, sbase, o0, o1, dl = it[:7]
            sg = (1 if self.ch == 0 else -1) * other
            vo = voff[h] if isinstance(voff, tuple) else voff
            s.e(f"s_add_u32 m0, {sM0W}, {(sl*SLOT + h*1024 + sg*8192) & 0xffffffff:#x}")
            if len(it) > 7:
                mul, cidx = it[7], it[8](self.ch if not other else 1 - self.ch)
                key = (sbase, mul, cidx)
                if self.rkey != key:
                    s.e(f"s_mul_i32 {sRot}, s{ROT0+cidx}, {mul}\ns_add_u32 {sRot}, {sRot}, {sbase}")
                    self.rkey = key
                sbase = sRot
            s.e(f"s_add_u32 {sSoW}, {sbase}, {((o0, o1)[h] + sg*dl) & 0xffffffff:#x}")
            s.e(f"buffer_load_dwordx4 {vo}, {srd_}, {sSoW} offen {'sc1 ' if name[0] == 'A' else ''}lds", tag=name)
            n -= 1
    rkey = None
    strict = False
    cred = 0
    def pace(self, s, cycles, mx=99):
        self.cred = min(self.cred + cycles * CFG['RATE'], CFG['BURST'])
        while self.q and mx > 0:
            mx -= 1
            e = self.q[0]
            cost = (8192 if self.log[e[0][0]][2] == 'all' else 4096) * (2 if e[0][0][0] == 'F' else 1)
            if self.cred < cost: break
            self.cred -= cost; self.pump(s, 1)
    def need(self, s, name):
        assert name in self.slot, f"{name} has no slot yet"
        while any(e[0][0] == name for e in self.q):
            print("  warning: forced DMA issue for", name, "in", s.name)
            self.pump(s)
        if self.log[name][1] is None: self.log[name][1] = s.nbar
        s.wait_tag(name)
def x_items(q):
    return [(f"XL{q}", sX, (f"v{XD}", f"v{XD+1}"), sXb, 0, 0, 32768, 256, lambda c: q), (f"XH{q}", sX, (f"v{XD}", f"v{XD+1}"), sXb, 65536, 65536, 32768, 256, lambda c: q)]
def w_items(name, srd_, voff, sbase, stride):
    return [(f"{name}{c}", srd_, voff, sbase, 0, 8 * stride, 64 * stride, 128 * stride, lambda ch, c=c: c) for c in range(4)]
ORDER = [4, 5, 6, 7, 16, 17, 18, 19, 8, 9, 10, 11, 20, 21, 22, 23, 12, 13, 14, 15, 0, 1, 2, 3, 24, 25, 26, 27]
def b_item(hf, c):
    nm = f"B{'ab'[hf]}{c}"
    if c < 7:
        o = hf * 896 * 1024 + ORDER[4 * c] * 16384
        return (nm, sW2, vDB, sB2, o, o + 8192, 448 * 1024)
    o = hf * 256 * 1024 + (c - 7) * 65536
    return (nm, sWo, vDB, sBo, o, o + 8192, 128 * 1024)
def a_item(hf, c):
    nm = f"A{'ab'[hf]}{c}"
    if c < 7:
        o = (56 * hf + ORDER[4 * c]) * 1024
        return (nm, sWs, vA16, sA2y, o, o + 144 * 1024, 28 * 1024)
    o = (16 * hf + 4 * (c - 7)) * 1024
    return (nm, sWs, vA16, sA2s, o, o + 144 * 1024, 8 * 1024)
def CB_(n): return f"B{'ab'[n & 1]}{n >> 1}"
def CA_(n): return f"A{'ab'[n & 1]}{n >> 1}"
def b_items(first):
    npre = CFG['NPB']
    it = [b_item(n & 1, n >> 1) for n in range(npre)]
    for n in range(18):
        it.append(a_item(n & 1, n >> 1))
        if npre <= n + 2 < 18: it.append(b_item(n & 1, (n + 2) >> 1))
        if n == CFG['XAT']: it.append(("BX", sX, vDB, "s91", 0, 8192, 0))
    return it

def mish(acc, tmp, so, tag):
    F = []
    for hb in range(2):
        a = acc + 8 * hb
        for j in range(8): F.append(f"v_mul_f32 v{tmp+j}, v{a+j}, {vRSL}")
        for j in range(8): F.append(f"v_exp_f32 v{tmp+j}, v{tmp+j}")
        for j in range(8): F.append(f"v_add_f32 v{tmp+j}, 1.0, v{tmp+j}")
        for j in range(8): F.append(f"v_fma_f32 v{tmp+j}, v{tmp+j}, v{tmp+j}, 1.0")
        for j in range(8): F.append(f"v_rcp_f32 v{tmp+j}, v{tmp+j}")
        for j in range(8): F.append(f"v_fma_f32 v{tmp+j}, v{tmp+j}, {vM2}, {vRS}")
        for j in range(8): F.append(f"v_mul_f32 v{tmp+j}, v{a+j}, v{tmp+j}")
        for j in range(4): F.append(f"v_cvt_pk_bf16_f32 v{a+j}, v{tmp+2*j}, v{tmp+2*j+1}")
        F.append((f"buffer_store_dwordx4 {R(a,4)}, {vA16}, {sWs}, {so} offen offset:{hb*1024} sc1", tag))
    return F
def bc(r):
    n = int(r[1:]); return R(n & ~1, 2), n & 1
def pk2(op, d, a, b, c=None):
    ops = [R(a, 2)]; lo = [0]; hi = [1]
    for x in (b, c):
        if x is None: continue
        if isinstance(x, int): ops.append(R(x, 2)); lo.append(0); hi.append(1)
        elif x[0] == 'v':
            p, o = bc(x); ops.append(p); lo.append(o); hi.append(o)
        else: ops.append(x); lo.append(0); hi.append(0)
    f = lambda L: "[" + ",".join(map(str, L)) + "]"
    return f"v_pk_{op}_f32 {R(d,2)}, " + ", ".join(ops) + f" op_sel:{f(lo)} op_sel_hi:{f(hi)}"
def mish_pk(acc, tmp, so, tag):
    F = []
    for hb in range(2):
        a = acc + 8 * hb; E = range(0, 8, 2)
        F += [pk2("mul", tmp + j, a + j, vRSL) for j in E] + [f"v_exp_f32 v{tmp+j}, v{tmp+j}" for j in range(8)]
        F += [pk2("add", tmp + j, tmp + j, "1.0") for j in E] + [pk2("fma", tmp + j, tmp + j, tmp + j, "1.0") for j in E]
        F += [f"v_rcp_f32 v{tmp+j}, v{tmp+j}" for j in range(8)]
        F += [pk2("fma", tmp + j, tmp + j, vM2, vRS) for j in E] + [pk2("mul", tmp + j, tmp + j, a + j) for j in E]
        F += [f"v_cvt_pk_bf16_f32 v{a+j}, v{tmp+2*j}, v{tmp+2*j+1}" for j in range(4)]
        F.append((f"buffer_store_dwordx4 {R(a,4)}, {vA16}, {sWs}, {so} offen offset:{hb*1024} sc1", tag))
    return F
def softmax_pk(P, out, t0, t1, tp):
    F = softmax(P, out, t0, t1)[:9]; E = range(0, 16, 2)
    F += [pk2("fma", P + j, P + j, vRSL, t0) for j in E] + [f"v_exp_f32 v{P+j}, v{P+j}" for j in range(16)]
    F += [pk2("add", tp, P, P + 2), pk2("add", tp + 2, P + 4, P + 6), pk2("add", tp, tp, P + 8), pk2("add", tp + 2, tp + 2, P + 10),
          pk2("add", tp, tp, P + 12), pk2("add", tp + 2, tp + 2, P + 14), pk2("add", tp, tp, tp + 2), f"v_add_f32 {t0}, v{tp}, v{tp+1}", f"v_rcp_f32 {t0}, {t0}"]
    F += [pk2("mul", P + j, P + j, t0) for j in E] + [f"v_cvt_pk_bf16_f32 v{out+j}, v{P+2*j}, v{P+2*j+1}" for j in range(8)]
    return F
def softmax(P, out, t0, t1):
    F = [f"v_max3_f32 {t0}, v{P}, v{P+1}, v{P+2}", f"v_max3_f32 {t1}, v{P+3}, v{P+4}, v{P+5}",
         f"v_max3_f32 {t0}, {t0}, v{P+6}, v{P+7}", f"v_max3_f32 {t1}, {t1}, v{P+8}, v{P+9}",
         f"v_max3_f32 {t0}, {t0}, v{P+10}, v{P+11}", f"v_max3_f32 {t1}, {t1}, v{P+12}, v{P+13}",
         f"v_max3_f32 {t0}, {t0}, v{P+14}, v{P+15}", f"v_max_f32 {t0}, {t0}, {t1}", f"v_mul_f32_e64 {t0}, -{t0}, {vRSL}"]
    for j in range(16): F.append(f"v_fma_f32 v{P+j}, v{P+j}, {vRSL}, {t0}")
    for j in range(16): F.append(f"v_exp_f32 v{P+j}, v{P+j}")
    F += [f"v_add_f32 {t0}, v{P}, v{P+1}", f"v_add_f32 {t1}, v{P+2}, v{P+3}"]
    for j in range(4, 16, 2):
        F += [f"v_add_f32 {t0}, {t0}, v{P+j}", f"v_add_f32 {t1}, {t1}, v{P+j+1}"]
    F += [f"v_add_f32 {t0}, {t0}, {t1}", f"v_rcp_f32 {t0}, {t0}"]
    for j in range(16): F.append(f"v_mul_f32 v{P+j}, v{P+j}, {t0}")
    for j in range(8): F.append(f"v_cvt_pk_bf16_f32 v{out+j}, v{P+2*j}, v{P+2*j+1}")
    return F
def pack16(acc, out): return [f"v_cvt_pk_bf16_f32 v{out+j}, v{acc+2*j}, v{acc+2*j+1}" for j in range(8)]
def phi_frags():
    F = ["v_bfe_u32 v25, v0, 2, 2", "v_lshrrev_b32 v26, 5, v0", "v_lshl_add_u32 v25, v26, 2, v25", "v_lshlrev_b32 v25, 5, v25",
         "v_bfe_u32 v26, v0, 4, 1", "v_lshl_add_u32 v25, v26, 4, v25", "v_bfe_u32 v26, v0, 1, 1", "v_lshl_add_u32 v25, v26, 3, v25",
         blk(f"s_lshl_b32 s4, {sCH}, 10\ns_add_u32 s4, s4, {SCR_PHI}\nv_add_u32 v25, s4, v25")]
    for h in range(2):
        for rd in range(2): F.append(f"ds_read_b64_tr_b16 {R(PHI+4*h+2*rd,2)}, v25 offset:{h*512 + rd*256}")
    F += ["v_bfe_u32 v26, v0, 2, 1", "v_mul_u32_u24 v26, 0x8000, v26", "v_lshl_or_b32 v26, v26, 16, v26"]
    for j in range(8): F.append(f"v_xor_b32 v{PHI+j}, v26, v{PHI+j}")
    return F

BIASL = {}
def prologue(s):
    s.e("s_load_dwordx2 s[64:65], s[0:1], 0\ns_load_dwordx8 s[68:75], s[0:1], 8\ns_load_dwordx8 s[76:83], s[0:1], 40")
    s.e("s_load_dwordx2 s[84:85], s[0:1], 80\ns_load_dwordx2 s[66:67], s[0:1], 72")
    s.e("s_cmp_ge_u32 s2, 256\ns_cbranch_scc1 L_end")
    s.e("v_lshrrev_b32 v2, 6, v0\nv_and_b32 v0, 63, v0\ns_and_b32 s3, s2, 7\ns_lshr_b32 s87, s2, 3")
    s.e(f"v_readfirstlane_b32 {sW}, v2")
    s.e(f"v_lshrrev_b32 v33, 4, v0\nv_and_b32 v34, 15, v0")
    s.e(f"s_cmp_lg_u32 {sW}, {CFG['PWW']}\ns_cbranch_scc1 L_nopw")
    s.e(f"s_getpc_b64 s[90:91]\nL_pc0:\ns_sub_u32 s90, s90, L_pc0-{KNAME}\ns_subb_u32 s91, s91, 0\ns_lshl_b32 s5, s87, 11\nv_lshlrev_b32 v35, 7, v34\nv_add_u32 v35, s5, v35")
    s.raw("global_load_dword v26, v35, s[90:91]")
    s.e("L_nopw:")
    s.e(f"s_and_b32 s5, s3, 1\ns_lshl_b32 s5, s5, 3\ns_and_b32 {sI}, s87, 7\ns_add_u32 {sI}, {sI}, s5")
    s.e(f"s_and_b32 {sRT2}, {sW}, 1\ns_lshl_b32 {sM0W}, {sW}, 11\ns_lshl_b32 s5, {sRT2}, 3")
    for h in range(2):
        s.e(f"v_add_u32 v35, {4*h}, v33\nv_add_u32 v36, s5, v35\nv_xor_b32 v36, v34, v36\nv_lshlrev_b32 v36, 4, v36\nv_lshl_add_u32 v{XD+h}, v35, 10, v36")
    s.e(f"s_lshr_b32 s{ROT0}, s3, 1\ns_lshl_b32 s{ROT0+1}, s3, 1\ns_add_u32 s{ROT0}, s{ROT0}, s{ROT0+1}")
    for c in range(1, 4): s.e(f"s_add_u32 s{ROT0+c}, s{ROT0}, {c}\ns_and_b32 s{ROT0+c}, s{ROT0+c}, 3")
    s.e(f"s_and_b32 s{ROT0}, s{ROT0}, 3")
    s.e(f"s_lshl_b32 {sXb}, {sI}, 17\ns_lshl_b32 s5, {sW}, 13\ns_add_u32 {sXb}, {sXb}, s5\ns_mov_b32 s10, {2048*512*2}\ns_mov_b32 s11, 0x20000")
    s.e("v_lshrrev_b32 v36, 3, v0\nv_and_b32 v37, 7, v0\nv_lshlrev_b32 v38, 1, v36\nv_and_b32 v38, 4, v38\nv_xor_b32 v37, v37, v38\nv_lshlrev_b32 v37, 4, v37")
    s.raw("s_waitcnt lgkmcnt(0)")
    s.e("s_mov_b32 s8, s64\ns_and_b32 s9, s65, 0xffff")
    srd(s, sWs, "s84", "s85", 0x10000000)
    s.e(f"v_lshlrev_b32 {vA16}, 4, v0\ns_cmp_lg_u32 s3, 1\ns_cbranch_scc1 L_noinit")
    s.e("v_mov_b32 v40, 0\nv_mov_b32 v41, 0\nv_mov_b32 v42, 0\nv_mov_b32 v43, 0")
    s.e(f"s_lshl_b32 s5, s87, 13\ns_lshl_b32 s4, {sW}, 10\ns_add_u32 s5, s5, s4\ns_add_u32 s5, s5, {Z_OFF}")
    s.raw(f"buffer_store_dwordx4 v[40:43], {vA16}, {sWs}, s5 offen sc1")
    s.e("s_add_u32 s5, s5, 0x40000")
    s.raw(f"buffer_store_dwordx4 v[40:43], {vA16}, {sWs}, s5 offen sc1")
    s.e("L_noinit:")
    r0 = Ring(x_items(0) + x_items(1), range(9), 0); r0.assign(s)
    r0.pump(s, 4)
    s.e(f"v_mul_u32_u24 {vDq}, 3072, v36\nv_add_u32 {vDq}, {vDq}, v37\nv_mul_u32_u24 {vD1}, 3584, v36\nv_add_u32 {vD1}, {vD1}, v37")
    s.e(f"s_lshr_b32 s5, s3, 1\ns_lshl_b32 s5, s5, 2\ns_lshr_b32 s6, s87, 3\ns_add_u32 s5, s5, s6")
    s.e(f"s_lshr_b32 {sG}, s5, 1\ns_and_b32 {sTY}, s5, 1\ns_lshl_b32 {sRB}, s3, 2\ns_add_u32 {sRB}, {sRB}, s6\ns_and_b32 {sCB}, s87, 7")
    s.e(f"s_lshr_b32 {sKQ}, {sW}, 1\ns_and_b32 {sRT}, {sW}, 3\ns_lshr_b32 {sCH}, {sW}, 2\ns_mov_b32 s88, s2")
    srd(s, sWq, "s68", "s69", 512 * 1536 * 2)
    srd(s, sW1, "s76", "s77", 512 * 1792 * 2)
    def wpair(c, first):
        l1, l2 = label(), label()
        s.e(f"s_cmp_eq_u32 {sTY}, 0\ns_cbranch_scc1 {l1}")
        vm0 = list(s.vm)
        for typ, it in (('B', w_items("W", sW1, vD1, sUA, 3584)), ('A', w_items("W", sWq, vDq, sUA, 3072))):
            s.vm = list(vm0)
            if typ == 'A': s.e(f"{l1}:")
            if first: BIASL[typ] = unit_bases(s, typ)
            r = Ring([it[c]], [4 + c], 0); r.assign(s); r.pump(s, 2)
            if typ == 'B': s.e(f"s_branch {l2}")
        s.e(f"{l2}:")
    wpair(0, True)
    s.e(f"v_lshl_add_u32 {vDB}, v36, 10, v37")
    prologue2(s)
    r0.rkey = None
    r0.pump(s, 4)
    wpair(1, False)

def prologue2(s):
    srd(s, sPhi, "s70", "s71", 32 * 512)
    srd(s, sB1, "s78", "s79", 1792 * 2)
    srd(s, sW2, "s80", "s81", 1792 * 512 * 2)
    srd(s, sWo, "s72", "s73", 512 * 512 * 2)
    srd(s, sOut, "s82", "s83", 2048 * 512 * 2)
    srd(s, sDbg, "s66", "s67", 256)
    s.e(f"s_mov_b32 {sBID}, s88\ns_mov_b32 {sC11}, 0x3f803f80")
    s.e(f"v_lshrrev_b32 v36, 2, v0\nv_and_b32 v37, 3, v0\nv_lshlrev_b32 v37, 4, v37\nv_mul_u32_u24 {vD5}, 3584, v36\nv_add_u32 {vD5}, {vD5}, v37")
    s.e(f"v_and_b32 {vP4}, 31, v0\nv_lshlrev_b32 {vP4}, 2, {vP4}")
    s.e(f"v_mov_b32 v29, 0\nv_mov_b32 {vFO}, {BIG}\nv_cmp_eq_u32 vcc, 0, v0\nv_cndmask_b32 {vFO}, {vFO}, 0, vcc")
    s.e("v_bfe_u32 v36, v0, 2, 2\nv_and_b32 v37, 3, v0\nv_bfe_u32 v38, v0, 4, 1\nv_lshrrev_b32 v39, 5, v0")
    s.e("v_lshlrev_b32 v40, 3, v37\nv_lshl_add_u32 v40, v38, 5, v40\nv_lshl_add_u32 v41, v39, 3, v36")
    s.e(f"v_lshrrev_b32 v42, 1, v36\nv_xor_b32 v42, {sCH}, v42\nv_lshlrev_b32 v42, 6, v42")
    s.e(f"v_lshl_add_u32 v43, v41, 7, v40\nv_add_u32 v43, v43, v42")
    for j in range(4):
        s.e(f"s_xor_b32 s5, {sRT}, {j}\ns_lshl_b32 s5, s5, 12\ns_add_u32 s5, s5, {SLOT}\nv_add_u32 v{VW+j}, s5, v43\nv_add_u32 v{VW+4+j}, 0x10000, v{VW+j}")
    s.e(f"v_and_b32 v44, 31, v0\ns_lshl_b32 s5, {sRT}, 5\nv_add_u32 v45, s5, v44\nv_xor_b32 v46, v39, v34\nv_lshlrev_b32 v46, 4, v46\nv_lshl_add_u32 v{XR}, v45, 8, v46")
    s.e(f"s_lshl_b32 s5, {sRT}, 6\nv_xor_b32 v{XR}, s5, v{XR}")
    for t in range(1, 8): s.e(f"v_xor_b32 v{XR+t}, {t<<5}, v{XR}")
    s.e(f"v_lshlrev_b32 v44, 2, v38\nv_cmp_eq_u32 vcc, v44, v34\nv_mov_b32 v44, {sC11}\nv_cndmask_b32 v{ASEL}, 0, v44, vcc")
    for j in range(1, 4): s.e(f"v_mov_b32 v{ASEL+j}, v{ASEL}")
    s.e(f"v_mov_b32 v{CF+4}, 0\nv_mov_b32 v{CF+5}, 0")
    s.e(f"s_lshl_b32 s3, {sI}, 2\ns_add_u32 s3, s3, {sRT}\ns_mul_i32 {sAF}, s3, {144*1024}")
    s.e(f"s_mul_i32 {sKS}, {sG}, {14*1024}\ns_add_u32 {sKS}, {sKS}, {sAF}")
    s.e(f"s_lshl_b32 {sFL}, s3, 2\ns_lshr_b32 s4, {sG}, 1\ns_add_u32 {sFL}, {sFL}, s4\ns_mul_i32 {sFL}, {sFL}, 640")
    s.e(f"s_and_b32 s4, {sG}, 1\ns_lshl_b32 s4, s4, 3\ns_lshl_b32 s5, {sCH}, 2\ns_add_u32 s4, s4, s5\ns_add_u32 {sFL}, {sFL}, s4\ns_add_u32 {sFL}, {sFL}, {ACTFLAG_OFF}")
    s.e(f"s_mul_i32 {sAF2}, {sRB}, {288*1024}\ns_lshl_b32 s3, {sRT}, 10\ns_add_u32 {sAF2}, {sAF2}, s3")
    s.e(f"s_mul_i32 {sFL2}, {sRB}, 5120\ns_add_u32 {sFL2}, {sFL2}, {ACTFLAG_OFF}")
    s.e(f"s_mul_i32 {sB2}, {sCH}, {448*1024}\ns_lshl_b32 s4, {sRT}, 14\ns_lshl_b32 s5, {sCB}, 7\ns_add_u32 s4, s4, s5\ns_add_u32 {sB2}, {sB2}, s4")
    s.e(f"s_lshl_b32 {sBo}, {sCH}, 17\ns_add_u32 {sBo}, {sBo}, s4")
    s.e(f"s_lshl_b32 s3, {sG}, 2\ns_add_u32 s3, s3, {sKQ}\ns_mul_i32 {sKVs}, s3, 2176\ns_add_u32 {sKVs}, {sKVs}, {KV_OFF}")
    s.e(f"s_lshl_b32 s3, {sG}, 3\ns_add_u32 s3, s3, {sW}\ns_lshl_b32 {sKVF}, s3, 11\ns_add_u32 {sKVF}, {sKVF}, {KVFLAG_OFF}")
    s.e(f"s_mul_i32 s3, {sCH}, {28*1024}\ns_add_u32 {sA2y}, {sAF2}, s3")
    s.e(f"s_lshl_b32 s3, {sCH}, 13\ns_add_u32 {sA2s}, {sAF2}, s3\ns_add_u32 {sA2s}, {sA2s}, {112*1024}")
    s.e(f"v_lshrrev_b32 {vT}, 1, {vP4}")

def unit_bases(s, typ):
    s.e(f"s_mul_i32 s3, {sW}, {16*3072}\ns_lshl_b32 s4, {sG}, 7\ns_add_u32 s3, s3, s4")
    s.e(f"s_mul_i32 s4, {sG}, 448\ns_and_b32 s5, {sG}, 1\ns_cmp_eq_u32 s5, 0")
    if typ == 'A':
        s.e(f"s_cselect_b32 s5, 0, 320\ns_add_u32 s4, s4, s5")
        s.e(f"s_add_u32 {sUA}, s3, 1024\ns_add_u32 {sUB}, s3, 2048")
        s.e(f"s_mul_i32 {sUC}, {sW}, {16*3584}\ns_add_u32 {sUC}, {sUC}, s4")
        s.e(f"s_lshl_b32 s5, {sCH}, 6\ns_add_u32 s92, s4, s5")
        return [f"buffer_load_ushort v{BI0}, {vT}, {sB1}, s92 offen"]
    s.e(f"s_cselect_b32 s5, 128, 64\ns_cselect_b32 {sUD}, 384, 0")
    s.e(f"s_add_u32 s5, s4, s5\ns_add_u32 s92, s4, {sUD}\ns_mov_b32 {sUC}, s3")
    s.e(f"s_mul_i32 {sUA}, {sW}, {16*3584}\ns_add_u32 {sUA}, {sUA}, s5\ns_add_u32 {sUB}, {sUA}, 128")
    s.e(f"s_mul_i32 {sUD}, {sRT}, {32*3584}\ns_add_u32 {sUD}, {sUD}, s92")
    s.e(f"s_lshl_b32 s3, {sCH}, 6\ns_add_u32 s93, s5, s3")
    return [f"buffer_load_ushort v{BI2}, {vT}, {sB1}, s92 offen", f"buffer_load_ushort v{BI0}, {vT}, {sB1}, s93 offen",
            f"buffer_load_ushort v{BI1}, {vT}, {sB1}, s93 offen offset:128"]

def start(s, ring, n0):
    ring.assign(s, upto=ring.upto0)
    pre = ["XL0", "XH0", n0 + "0", "XL1", "XH1", n0 + "1"]
    assert [ring.slot[x] for x in pre] == [0, 1, 4, 2, 3, 5]
    ring.q = [e for e in ring.q if e[0][0] not in pre]
    s.vm = [(d, (n0 + tg[1] if tg in ("W0", "W1") else tg)) for d, tg in s.vm]
def touch_all(s, which):
    specs = dict(x=(sX, 64, 4), q=(sWq, 48, 5), w1=(sW1, 56, 6), w2=(sW2, 56, 4), wo=(sWo, 16, 5))
    for nm in which:
        srd_, nl, wv = specs[nm]
        lab = label()
        s.e(f"s_cmp_lg_u32 {sW}, {wv}\ns_cbranch_scc1 {lab}")
        s.e(f"v_min_u32 v47, {nl-1}, v0\nv_lshlrev_b32 v47, 7, v47\ns_mul_i32 s5, s88, {nl*128}\ns_mov_b32 m0, {SCR + 15360}\ns_nop 0")
        s.raw(f"buffer_load_dword v47, {srd_}, s5 offen lds")
        s.e(f"{lab}:")
def late_loads(biasloads):
    def f(s):
        s.e(f"v_lshrrev_b32 {vT}, 1, {vP4}")
        for x in biasloads: s.e(x)
        s.e(f"s_lshl_b32 s3, {sG}, 11\ns_lshl_b32 s4, {sRT2}, 10\ns_add_u32 s3, s3, s4\ns_add_u32 m0, s4, {SCR_PHI}")
        s.e(f"buffer_load_dwordx4 {vA16}, {sPhi}, s3 offen lds", tag="phi")
    return f

MF = "v_mfma_f32_32x32x16_bf16"
def bar(s, ring, name, needs=(), rel=(), owner='all', lg0=False, upto=None, extra=(), maxn=99):
    if CFG.get('SB'): stamp("<" + name)(s)
    for n in needs: ring.need(s, n)
    if lg0: s.wait(lg=0)
    s.wait_dswrites()
    pend = [k for k, (_, tg) in enumerate(s.lg) if tg in rel]
    if pend:
        s.wait(lg=len(s.lg) - 1 - max(pend))
    for n in rel: s.released.add(n)
    if extra: assert not any(tg is None for _, tg in s.lg), f"scratch release at {name} with untagged LDS ops pending"
    s.e("s_barrier")
    stamp(name)(s)
    s.marks[name] = 1
    for n in rel: ring.release(n)
    ring.free += list(extra)
    if owner == 'all':
        k = 'x' if name[0] == 'b' else ('a' if name[0] in 'ae' else 'p')
        if k in CFG['OWN'] and not (s.name[0] == 'B' and name in ('c3', 'd3', 'e1')): owner = 0
    ring.assign(s, owner, upto, maxn)
def B(ring, *a, **k): return lambda s: bar(s, ring, *a, **k)

class MSeg:
    def __init__(self, ring, u, ch, events=None, posts=None, xpass=False, dma=0):
        self.ring, self.u, self.ch, self.ev, self.posts, self.xp, self.dma = ring, u, ch, events or {}, posts or {}, xpass, dma
        self.nr = 0; self.hs = None
    def reads(self, s, t):
        u, ring = self.u, self.ring
        for e in self.ev.get(t, []): e(s)
        c, p = t // 8, t % 8
        if self.xp:
            for x in {0: (0, 1), 1: (2, 3, 4), 2: (5, 6, 7)}.get(p, ()):
                s.e(f"ds_read_b128 {R(XA+32*c+4*x,4)}, v{XR+x} offset:{(c&1)*32768}", tag=f"XL{c}")
        it = f"{u['name']}{c}" if u['kind'] == 'w' else f"{u['name']}{c//2}"
        assert ring.log[it][1] is not None, f"{it} read before certified"
        assert it not in s.released and not (self.xp and p < 3 and f"XL{c}" in s.released)
        sl = ring.slot[it]; buf = WB + 4 * (t % 4)
        if u['kind'] == 'h5' and self.hs != sl:
            if self.hs is None:
                s.e("v_bfe_u32 v116, v0, 2, 2\nv_lshrrev_b32 v117, 5, v0\nv_lshl_add_u32 v116, v117, 3, v116\nv_lshlrev_b32 v116, 6, v116\nv_bfe_u32 v117, v0, 4, 1\nv_lshl_add_u32 v116, v117, 5, v116\nv_and_b32 v117, 3, v0\nv_lshl_add_u32 v116, v117, 3, v116")
                for j in range(4): s.e(f"s_xor_b32 s3, {sRT}, {j}\ns_lshl_b32 s3, s3, 11\ns_add_u32 s3, s3, {sl*SLOT}\nv_add_u32 v{HR+j}, s3, v116")
            else:
                for j in range(4): s.e(f"v_add_u32 v{HR+j}, {((sl-self.hs)*SLOT) & 0xffffffff:#x}, v{HR+j}")
            self.hs = sl
        for k in range(2):
            if u['kind'] == 'w':
                w = 0 if sl <= 4 else 1
                r, off = f"v{VW+4*w+p//2}", (sl - 1 - 4 * w) * SLOT + (p & 1) * 2048 + k * 512
            else: r, off = f"v{HR+p//2}", (c % 2) * 8192 + (p & 1) * 1024 + k * 256
            s.e(f"ds_read_b64_tr_b16 {R(buf+2*k,2)}, {r} offset:{off}", tag=it); s.seen.add(it)
    def pre(self, s, n=None):
        n = CFG['PF'] if n is None else n
        while self.nr < n: self.reads(s, self.nr); self.nr += 1
    def run(self, s, nxt=None, F=None, budget=0):
        u = self.u; ch = self.ch
        credit = 0
        if CFG['PRIO'] and not self.xp: s.e("s_setprio 1")
        self.pre(s)
        for t in range(32):
            c, p = t // 8, t % 8
            buf = WB + 4 * (t % 4)
            cin = R(u['acc'], 16) if t > 0 else "0"
            a, b = (R(buf, 4), R(XA + 4 * t, 4)) if u['trans'] else (R(XA + 4 * t, 4), R(buf, 4))
            s.e(f"{MF} {R(u['acc'],16)}, {a}, {b}, {cin}")
            if p < 2 and not (CFG.get('NOCS') and t > 0): s.e(f"v_mfma_f32_16x16x32_bf16 {R(CSA,4)}, {R(ASEL,4)}, {R(buf,4)}, {R(CSA,4) if t > 0 else '0'}")
            if self.nr < 32: self.reads(s, self.nr); self.nr += 1
            elif nxt is not None: nxt.pre(s, t - 31 + CFG['PF'])
            if self.xp and t < 25 and CFG['PAR'] == 2:
                if t % 2 == ch or ('x' in CFG['OWN'] and ch == 0): self.ring.pump(s, 2)
            elif self.xp and t < 25: self.ring.pump(s, 1)
            elif self.xp: self.ring.pace(s, CFG['ST'])
            elif self.dma and CFG['PAR']:
                if 'p' in CFG['OWN']: self.ring.pace(s, self.dma, 1)
                elif t % 2 == ch: self.ring.pace(s, 2 * self.dma, 2)
            elif self.dma: self.ring.pace(s, self.dma)
            if t == 27:
                s.e(f"s_lshl_b32 s3, {sRT}, 2\ns_add_u32 s3, s3, {SCR_CS + u['csi']*2048 + ch*1024}\nv_add_u32 v{CSA+1}, s3, {vA16}\nds_write_b32 v{CSA+1}, v{CSA}")
            if self.xp and p in (1, 3):
                for x in ((ch, ch + 2) if p == 1 else (ch + 4, ch + 6)):
                    for j in range(4):
                        r = XA + 32 * c + 4 * x + j
                        first = (c == 0 and p == 1 and x == ch and j < 2)
                        s.e(f"v_dot2_f32_bf16 v{STA+(j&1)}, v{r}, {sC11}, {'0' if first else f'v{STA+(j&1)}'}")
                        s.e(f"v_dot2_f32_bf16 v{STA+2+(j&1)}, v{r}, v{r}, {'0' if first else f'v{STA+2+(j&1)}'}")
                if t == 27:
                    q = f"v{STA+2}"
                    s.e(f"v_add_f32 v{STA}, v{STA}, v{STA+1}\nv_add_f32 v{STA+1}, v{STA+2}, v{STA+3}\nv_lshrrev_b32 {q}, 5, v0\nv_lshlrev_b32 {q}, 3, {q}\n"
                        f"v_lshl_add_u32 {q}, {vP4}, 3, {q}\ns_lshl_b32 s3, {sRT}, 10\ns_add_u32 s3, s3, {SCR_ST + ch*16}\nv_add_u32 {q}, s3, {q}\nds_write_b64 {q}, {R(STA,2)}")
            for e in self.posts.get(t, []): e(s)
            if F is not None: credit = fill(s, F, (budget(t) if callable(budget) else budget) + min(credit, CFG['CRED']))
        if CFG['PRIO'] and not self.xp: s.e("s_setprio 0")

def fill(s, F, budget, force=False, pop=False):
    while budget > 0 and F:
        f = F[0]
        if isinstance(f, tuple) and f[0] == 'wait':
            if f[1] in s.marks: F.pop(0); continue
            return 0
        if isinstance(f, tuple) and f[0] == 'nextbar': f = F[0] = ('barge', s.nbar + 1)
        if isinstance(f, tuple) and f[0] in ('barge', 'bhold'):
            if s.nbar >= f[1]: F.pop(0); continue
            return 0
        if isinstance(f, tuple) and f[0] in ('hold', 'tilt'):
            if pop: F.pop(0); continue
            return 0
        if isinstance(f, tuple) and f[0] == 'gap':
            f = F[0] = ('until', s.n_issued + f[1])
        if isinstance(f, tuple) and f[0] == 'until':
            if s.n_issued >= f[1] or force: F.pop(0); continue
            return 0
        if callable(f):
            F.pop(0); n0 = s.n_issued; f(s); budget -= max(1, (s.n_issued - n0) * 0.5); continue
        txt, tag = (f if isinstance(f, tuple) else (f, None))
        need, age = s.cost(txt)
        if not force and (need > 1 or (age is not None and age < CFG['AGE'])): return budget
        F.pop(0); s.e(txt, tag)
        k = I(txt).kind
        budget -= 2 if k == 'trans' else (0.5 if k in ('salu', 'ds', 'vm') else 1)
    return 0
def until(s, ring, F, name, every=None, nopace=False):
    n = 0
    while name not in s.marks:
        assert F, name
        if isinstance(F[0], tuple) and F[0][0] == 'bhold': F.pop(0)
        l = len(F); fill(s, F, 1, force=True, pop=True)
        assert len(F) < l, ("stuck", F[0], name, s.name)
        n += 1
        if not nopace: ring.pace(s, 9)
    return n
def vrun(s, ring, F, slots, every=None, flush=True):
    every = every or CFG['VD']
    while slots > 0 and F:
        l = len(F); fill(s, F, min(every, slots), force=True); slots -= every
        ring.pace(s, 9 * every)
        if len(F) == l: break
    if flush: ring.pump(s, 99)

def vseg(s, ring, F, every=None, flush=True):
    every = every or CFG['VD']
    n = 0
    for f in F:
        if isinstance(f, tuple) and f[0] in ('after', 'skip', 'wait', 'gap', 'until'): continue
        drain(s, [f]); n += 1
        ring.pace(s, 10)
    if flush: ring.pump(s, 99)
def split(F, frac, item):
    k = int(len(F) * frac)
    return F[:k] + [item] + F[k:]

def pass0(s, ring, u, ch, bl, nextname, nextneed):
    ev = {}
    NBX = CFG['NBX']; n = u['name']
    for c in range(4):
        def b0(s, c=c):
            if c == 3: s.wait_tag("phi")
            lag = CFG['LG0'] == 0
            if lag: rel = [f"{n}{c-2}"] if (c >= 2 and c - 1 >= NBX) else []
            else: rel = [f"{n}{c-1}"] if c else []
            if c - 1 >= NBX: rel += [f"XL{c-1}", f"XH{c-1}"]
            up = CFG['UP'][2 * c]
            bar(s, ring, f"b0{c}", [f"{n}{c}", f"XL{c}", f"XH{c}"] + (nextneed if (c == 3 and NBX < 4) else []), rel, lg0=not lag, upto=(nextname[0] + str(up) if up < 4 else None))
            if c == 0 and ch == 0:
                lab = label()
                s.e(f"s_and_b32 s3, {sBID}, 7\ns_cmp_lg_u32 s3, 1\ns_cbranch_scc1 {lab}\ns_cmp_lg_u32 {sW}, 0\ns_cbranch_scc1 {lab}\ns_lshl_b32 s3, s87, 2")
                s.raw(f"buffer_store_dword {vOne}, {vFO}, {sDbg}, s3 offen offset:128 sc1")
                s.e(f"{lab}:")
        def bx(s, c=c):
            s.wait_regs([f"v{r}" for r in range(XA + 32 * c, XA + 32 * c + 32)])
            bar(s, ring, f"bx{c}", nextneed if c == 3 else [], [f"XL{c}", f"XH{c}"] + ([f"{n}{c-1}"] if (c and CFG['LG0'] == 0) else []),
                upto=(nextname[0] + str(CFG['UP'][2 * c + 1]) if c < 3 else None))
        ev[8 * c] = [b0]
        if c < NBX: ev[8 * c + 4] = [bx]
    ring.c1rel = (["XL3", "XH3"] if NBX < 4 else []) + ([f"{n}2"] if (CFG['LG0'] == 0 and NBX < 4) else [])
    return MSeg(ring, u, ch, ev, {CFG['LLT']: [late_loads(bl)], CFG['TBT']: [lambda s: touchB(s)], CFG['TWT']: [lambda s: touchW(s)]}, xpass=True, dma=1)

def stats_fin(T):
    F = [blk(f"s_lshl_b32 s4, {sRT}, 10\ns_add_u32 s4, s4, {SCR_ST}\nv_lshlrev_b32 {vT}, 3, {vP4}\nv_add_u32 {vT}, s4, {vT}"),
         f"ds_read_b128 {R(T,4)}, {vT}", f"ds_read_b128 {R(T+4,4)}, {vT} offset:16",
         blk(f"s_lshl_b32 s4, {sRT}, 7\ns_add_u32 s4, s4, {SCR_RS}\nv_add_u32 {vT}, s4, {vP4}\nv_cmp_gt_u32 s[94:95], 32, v0")]
    a, b = f"v{T}", f"v{T+1}"
    F += [f"v_add_f32 {a}, {a}, v{T+2}", f"v_add_f32 {b}, {b}, v{T+3}", f"v_add_f32 v{T+4}, v{T+4}, v{T+6}", f"v_add_f32 v{T+5}, v{T+5}, v{T+7}",
          f"v_add_f32 {a}, {a}, v{T+4}", f"v_add_f32 {b}, {b}, v{T+5}", f"v_mul_f32 {a}, 0xbb000000, {a}", f"v_mul_f32 {b}, 0x3b000000, {b}",
          f"v_fma_f32 {b}, -{a}, {a}, {b}", f"v_max_f32 {b}, 0, {b}", f"v_cvt_pk_bf16_f32 {b}, {b}, {b}", f"v_lshlrev_b32 {b}, 16, {b}",
          f"v_add_f32 {b}, 0x3727c5ac, {b}", f"v_cvt_pk_bf16_f32 {b}, {b}, {b}", f"v_lshlrev_b32 {b}, 16, {b}", f"v_sqrt_f32 {b}, {b}",
          f"v_cvt_pk_bf16_f32 {b}, {b}, {a}", f"v_lshlrev_b32 {vRS}, 16, {b}", f"v_rcp_f32 {vRS}, {vRS}",
          f"v_cndmask_b32 v{CF+2}, 0, {b}, s[94:95]", f"v_lshrrev_b32 v{CF+3}, 16, v{CF+2}",
          f"v_mul_f32 {vRSL}, 0x3fb8aa3b, {vRS}", f"v_mul_f32 {vM2}, -2.0, {vRS}", f"ds_write_b32 {vT}, {vRS}"]
    return F
def correct(u, ch, T, bias=None):
    F = [f"v_lshlrev_b32 v{T}, 2, {vP4}", f"v_add_u32 v{T}, {SCR_CS + u['csi']*2048 + ch*1024}, v{T}", f"ds_read_b128 {R(T,4)}, v{T}",
         f"v_add_f32 v{T}, v{T}, v{T+1}", f"v_add_f32 v{T+2}, v{T+2}, v{T+3}", f"v_add_f32 v{T}, v{T}, v{T+2}",
         f"v_cvt_pk_bf16_f32 v{T+1}, v{T}, v{T}", f"v_and_b32 v{CF}, 0xffff0000, v{T+1}", f"v_sub_f32 v{T}, v{T}, v{CF}", f"v_cvt_pk_bf16_f32 v{CF+1}, v{T}, v{T}"]
    if bias is not None: F.append(f"v_or_b32 v{CF}, v{CF}, v{bias}")
    a, b = (R(CF, 4), R(CF + 2, 4)) if u['trans'] else (R(CF + 2, 4), R(CF, 4))
    F.append(f"{MF} {R(u['acc'],16)}, {a}, {b}, {R(u['acc'],16)}")
    return F

def mark(name): return lambda s: s.marks.__setitem__(name, 1)
YA, SA, AB, XT = 224, 32, 240, 48
vB0, vA0 = "v5", "v24"
NRI = 3
def bnm(ch, c): return f"B{'ab'[ch]}{c}"
def breg(t): return XA + 4 * (t % 24)
def bread(ring, t):
    def f(s):
        nm = CB_(t // 8)
        assert ring.log[nm][1] is not None and nm not in s.released, nm
        sl = ring.slot[nm]
        if ring.bsl != sl:
            s.e(f"v_add_u32 {vB0}, {((sl - ring.bsl) * SLOT) & 0xffffffff:#x}, {vB0}"); ring.bsl = sl
        for k in range(2): s.e(f"ds_read_b64_tr_b16 {R(breg(t) + 2*k, 2)}, {vB0} offset:{(t%8)*2048 + k*1024}", tag=nm)
    return f
def aread(ring, t):
    def f(s):
        nm = CA_(t // 8)
        assert ring.log[nm][1] is not None and nm not in s.released, nm
        sl = ring.slot[nm]
        if ring.asl != sl:
            s.e(f"v_add_u32 {vA0}, {((sl - ring.asl) * SLOT) & 0xffffffff:#x}, {vA0}"); ring.asl = sl
        s.e(f"ds_read_b128 {R(AB + 4 * (t % 4), 4)}, {vA0} offset:{(t%8)*2048}", tag=nm)
    return f
def pulln(ring, ch, n): return [bread(ring, 8 * n + k) for k in range(8)] if ch == 0 else []
def p2_setup(ring):
    def chk(s):
        assert not any(x[0][0] == 'F' for x in ring.items) and not any(x[0][0][0] == 'F' for x in ring.q)
        ring.bsl = 0; ring.asl = 0
    if ring.ch == 1:
        return [chk, f"v_bfe_u32 {vB0}, v0, 2, 3", f"v_mul_u32_u24 {vB0}, 640, {vB0}", f"v_and_b32 {vA0}, 3, v0", f"v_lshl_add_u32 {vB0}, {vA0}, 2, {vB0}"]
    return [chk, f"v_bfe_u32 {vB0}, v0, 2, 2", f"v_lshrrev_b32 {vA0}, 5, v0", f"v_lshl_add_u32 {vB0}, {vA0}, 2, {vB0}", f"v_lshlrev_b32 {vB0}, 7, {vB0}",
     f"v_bfe_u32 {vA0}, v0, 3, 1", f"v_lshl_add_u32 {vB0}, {vA0}, 6, {vB0}", f"v_bfe_u32 {vA0}, v0, 4, 1", f"v_lshl_add_u32 {vB0}, {vA0}, 5, {vB0}",
     f"v_and_b32 {vA0}, 3, v0", f"v_lshl_add_u32 {vB0}, {vA0}, 3, {vB0}",
     blk(f"s_lshl_b32 s3, {sKQ}, 6\nv_xor_b32 {vB0}, s3, {vB0}\ns_lshl_b32 s3, {sRT2}, 10\nv_add_u32 {vA0}, s3, {vA16}")]
def fin_setup(): return []
PH = {0: (0, 0xffffffff, 'f1'), 4: (128, 0xffffffff, 'f2'), 8: (384, 0x55555555, 'f3'), 10: (256, 0xffffffff, 'f3'), 14: (512, 0xffffffff, 'fo')}
XCHK = {}
def endk(s, ring):
    if PROFILE:
        s.raw("s_waitcnt vmcnt(0) lgkmcnt(0)")
        stamp("end")(s)
        s.raw("s_waitcnt lgkmcnt(0)")
        n = len(s.snames)
        for i in (n - 2, n - 1): s.raw(f"v_writelane_b32 v29, s{STAMP0+2*(i%4)}, {i}")
        s.e(f"v_subrev_u32 v29, s96, v29\nv_lshlrev_b32 v16, 2, v0")
        s.raw("s_memrealtime s[84:85]\ns_waitcnt lgkmcnt(0)\nv_writelane_b32 v29, s58, 62\nv_writelane_b32 v29, s84, 63")
        s.e(f"s_lshl_b32 s3, {sBID}, 11\ns_lshl_b32 s4, {sW}, 8\ns_add_u32 s3, s3, s4\ns_add_u32 s3, s3, {PROF_OFF}")
        s.e(f"buffer_store_dword v29, v16, {sWs}, s3 offen")
        if CFG.get('DBG') is not None:
            lab = label()
            s.e(f"s_cmp_lg_u32 {sBID}, {CFG['DBG']}\ns_cbranch_scc1 {lab}\ns_cmp_lg_u32 {sW}, 0\ns_cbranch_scc1 {lab}")
            idx = list(range(n - 1, -1, -3))[:16][::-1]
            for k, i in enumerate(idx):
                s.raw(f"v_readlane_b32 s4, v29, {i}\ns_nop 1\nv_mov_b32 v17, s4\nbuffer_store_dword v17, {vFO}, {sDbg}, 0 offen offset:{4*k}\ns_nop 1")
            s.e(f"{lab}:")
            if s.name in ('A0', 'B0'): print("DBG", s.name, [s.snames[i] for i in idx])
        open(f"snames_{s.name}.txt", "w").write(" ".join(s.snames))
    s.e("s_endpgm")
    s.slots = dict(ring.slot)
    print("   ring", s.name, " ".join(f"{k}:{v[0]}>{v[1]}" for k, v in ring.log.items()))

def gate0(ring):
    def g(s):
        assert 'f1' in s.marks
        poll_check(s, sWs, sFL2, 0xffffffff, vo=vB0); s.marks[('chk', 0)] = 1
    if ring.ch == 1 and CFG['EAR']: ring.gate[CA_(0)] = g
def earlyA(ring, f):
    def h(s):
        if CFG['EAR']: ring.lim = CA_(CFG['EAR'] - 1); ring.strict = True
        f(s)
    return h
def aphase(s, ring, ch, F, rel0):
    typ = s.name[0]
    def cbar(n):
        needs = [CA_(n)] + ([CB_(n + 2)] if NRI <= n + 2 < 18 else []) + (['BX'] if n == CFG['XAT'] + 1 else [])
        rel = (rel0 if n == 0 else [CA_(n - 1)] + ([CB_(n + 1)] if NRI <= n + 1 < 18 else []))
        if not ring.items: rel = []
        x9 = (n == CFG['S9' + typ])
        if x9: assert 'scrfree' in s.marks, s.name
        bar(s, ring, f"a{n}", needs, rel, owner=1, extra=([9] if x9 else []))
    if ch == 1:
        s.e(f"s_lshl_b32 s91, {sRB}, 16\ns_lshl_b32 s4, {sRT}, 14\ns_add_u32 s91, s91, s4\ns_lshl_b32 s4, {sCB}, 7\ns_add_u32 s91, s91, s4")
        polled = {0}
        PRG = lambda n0: vPoll if n0 == 0 else f"v{200 + n0}"
        for n0, (imm, mask, mk) in PH.items():
            def g(s, n0=n0, imm=imm, mask=mask, mk=mk):
                k = until(s, ring, F, mk, nopace=True)
                if k: print("   forced", k, "fillers for", mk, "in", s.name)
                if n0 not in polled: poll_issue(s, sWs, sFL2, PRG(n0), imm=imm, vo=vB0); polled.add(n0); print("   late poll", n0, s.name)
                XCHK[(typ, mk, n0)] = s.nbar
                poll_check(s, sWs, sFL2, mask, PRG(n0), imm=imm, vo=vB0); s.marks[('chk', n0)] = 1
            if ('chk', n0) not in s.marks: ring.gate[CA_(n0)] = g
        LV = CFG['LV' + typ]
        for n in range(18):
            def polls(pos):
                for n0 in PH:
                    if n0 not in polled and pos >= CFG['PI' + typ][n0]:
                        poll_issue(s, sWs, sFL2, PRG(n0), imm=PH[n0][0], vo=vB0); polled.add(n0)
            polls(n)
            bud = LV[min(n, len(LV) - 1)]
            PC = CFG['PC' + typ]; cap = PC[min(n, len(PC) - 1)]
            gi = {CA_(k): v for k, v in CFG['GI' + typ].items()}
            def can(): return ring.q and cap > 0 and not (ring.q[0][0][0] in ring.gate and n < gi.get(ring.q[0][0][0], 0))
            while can() or (bud > 0 and F):
                if can(): ring.pump(s, 1); cap -= 1
                if F and bud > 0:
                    l = len(F); fill(s, F, CFG['LG'], force=True); bud -= CFG['LG']
                    if len(F) == l: bud = 0
            if F and isinstance(F[0], tuple) and F[0][0] == 'hold': F[0] = ('tilt', n + F[0][1])
            if F and isinstance(F[0], tuple) and F[0][0] == 'tilt' and n >= F[0][1]:
                F.pop(0); fill(s, F, 5, force=True)
            polls(n + 0.5)
            cbar(n)
        assert not F and not ring.q and not ring.items
        endk(s, ring); return
    s.e(f"s_lshl_b32 {sUC}, {sRB}, 16\ns_lshl_b32 s4, {sRT2}, 15\ns_add_u32 {sUC}, {sUC}, s4\ns_lshl_b32 s4, {sCB}, 7\ns_add_u32 {sUC}, {sUC}, s4\ns_lshl_b32 s4, {sKQ}, 6\ns_add_u32 {sUC}, {sUC}, s4")
    ring.pump(s, 99)
    fill(s, F, CFG['CV0' + typ], force=True)
    PF = 4
    def reads(t):
        if t % 8 == 0: cbar(t // 8)
        aread(ring, t)(s)
        if 8 * NRI <= t + 16 < 144: bread(ring, t + 16)(s)
    for t in range(PF): reads(t)
    credit = 0
    for t in range(144):
        acc = YA if t < 112 else SA
        s.e(f"{MF} {R(acc,16)}, {R(breg(t),4)}, {R(AB + 4 * (t % 4),4)}, {'0' if t in (0, 112) else R(acc,16)}")
        if t + PF < 144: reads(t + PF)
        if t == 60:
            assert not F, len(F)
            F += [f"v_lshlrev_b32 v20, 8, {vP4}", "v_lshrrev_b32 v21, 5, v0", "v_lshl_add_u32 v20, v21, 4, v20",
                  f"v_lshlrev_b32 v19, 5, {vP4}", "v_lshl_add_u32 v19, v21, 4, v19", "v_bfe_u32 v21, v0, 1, 1", f"v_xor_b32 v21, {sKQ}, v21", "v_lshl_add_u32 v19, v21, 6, v19"]
        if t == 8 * (CFG['XAT'] + 1) - 2:
            G = [blk(f"s_lshl_b32 s4, {sRT2}, 12\ns_add_u32 s4, s4, {ring.slot['BX']*SLOT + 8192}\nv_add_u32 v19, s4, v19"),
                 f"ds_read_b128 {R(XT,4)}, v19", f"ds_read_b128 {R(XT+4,4)}, v19 offset:32"]
            drain(s, G)
            for b_ in range(2): F += [f"v_permlane32_swap_b32 v{XT+4*b_}, v{XT+4*b_+2}", f"v_permlane32_swap_b32 v{XT+4*b_+1}, v{XT+4*b_+3}"]
            for j in range(8): F += [f"v_lshlrev_b32 v{XT+16+2*j}, 16, v{XT+j}", f"v_and_b32 v{XT+17+2*j}, 0xffff0000, v{XT+j}"]
        if t == 113:
            stamp('yend')(s)
            T = XT + 32
            F += [f"v_mul_f32 v{T+j}, 0xbfb8aa3b, v{YA+j}" for j in range(16)] + [f"v_exp_f32 v{T+j}, v{T+j}" for j in range(16)]
            F += [f"v_add_f32 v{T+j}, 1.0, v{T+j}" for j in range(16)] + [f"v_rcp_f32 v{T+j}, v{T+j}" for j in range(16)] + [f"v_mul_f32 v{YA+j}, v{YA+j}, v{T+j}" for j in range(16)]
        if F and isinstance(F[0], tuple) and F[0][0] == 'hold': F[0] = ('tilt', t + CFG['HS'])
        if F and isinstance(F[0], tuple) and F[0][0] == 'tilt' and t >= F[0][1]: F.pop(0)
        if F and t < 143: credit = fill(s, F, (CFG['CV' + typ] if t < 60 else CFG['CVE']) + min(credit, CFG['CRED']))
        for mk in ('f3', 'fo'):
            if mk in s.marks and (typ, mk) not in XCHK: XCHK[(typ, mk)] = s.nbar
    drain(s, F)
    stamp('send')(s)
    for b_ in range(2):
        for j in range(8): s.e(f"v_fma_f32 v{SA+8*b_+j}, v{SA+8*b_+j}, v{YA+8*b_+j}, v{XT+16+8*b_+j}")
        for j in range(4): s.e(f"v_cvt_pk_bf16_f32 v{XT+4*b_+j}, v{SA+8*b_+2*j}, v{SA+8*b_+2*j+1}")
        s.e(f"v_permlane32_swap_b32 v{XT+4*b_}, v{XT+4*b_+2}\nv_permlane32_swap_b32 v{XT+4*b_+1}, v{XT+4*b_+3}")
        s.e(f"buffer_store_dwordx4 {R(XT+4*b_,4)}, v20, {sOut}, {sUC} offen offset:{32*b_}")
    stamp('st')(s)
    endk(s, ring)

SCR_DUM = SCR + 15360
def touchB(s):
    if not CFG['TB']: return
    s.e(f"s_lshl_b32 s4, {sBID}, 3\ns_add_u32 s4, s4, {sW}\ns_mul_i32 s5, s4, 896\ns_lshl_b32 s4, s4, 8\ns_mov_b32 m0, {SCR_DUM}")
    s.e(f"v_min_u32 {vT}, 6, v0\nv_lshlrev_b32 {vT}, 7, {vT}")
    s.e(f"buffer_load_dword {vT}, {sW2}, s5 offen lds")
    s.e(f"v_min_u32 {vT}, 1, v0\nv_lshlrev_b32 {vT}, 7, {vT}")
    s.e(f"buffer_load_dword {vT}, {sWo}, s4 offen lds")
def touchW(s):
    if not CFG['TW']: return
    if CFG['TW'] == 2:
        s.e(f"s_lshl_b32 s4, {sBID}, 1\ns_add_u32 s4, s4, {sCH}\ns_mul_i32 s5, s4, 3584\ns_mul_i32 s3, {sRT}, 896\ns_add_u32 s5, s5, s3\ns_mul_i32 s4, s4, 3072\ns_lshl_b32 s3, {sRT}, 8\ns_add_u32 s4, s4, s3\ns_mov_b32 m0, {SCR_DUM}")
        s.e(f"v_min_u32 {vT}, 2, v0\nv_mul_u32_u24 {vT}, 384, {vT}")
        s.e(f"buffer_load_dword {vT}, {sW1}, s5 offen lds")
        s.e(f"v_min_u32 {vT}, 1, v0\nv_lshlrev_b32 {vT}, 7, {vT}")
        s.e(f"buffer_load_dword {vT}, {sWq}, s4 offen lds")
        return
    s.e(f"s_lshl_b32 s4, {sBID}, 3\ns_add_u32 s4, s4, {sW}\ns_mul_i32 s5, s4, 896\ns_mul_i32 s4, s4, 768\ns_mov_b32 m0, {SCR_DUM}")
    s.e(f"v_min_u32 {vT}, 6, v0\nv_lshlrev_b32 {vT}, 7, {vT}")
    s.e(f"buffer_load_dword {vT}, {sW1}, s5 offen lds")
    s.e(f"v_min_u32 {vT}, 5, v0\nv_lshlrev_b32 {vT}, 7, {vT}")
    s.e(f"buffer_load_dword {vT}, {sWq}, s4 offen lds")
def touch2(c, hf=None):
    def f(s):
        if c == 0 and not hf:
            if hf is None: s.e(f"s_lshl_b32 s4, s87, 3")
            else: s.e(f"s_lshr_b32 s4, s87, 4\ns_lshl_b32 s4, s4, 3\ns_and_b32 s5, s87, 7\ns_add_u32 s4, s4, s5\ns_lshl_b32 s4, s4, 3")
            s.e(f"s_add_u32 s4, s4, {sW}\ns_lshr_b32 s5, s4, 6\ns_and_b32 s4, s4, 63\ns_lshl_b32 s4, s4, 10\n"
                f"s_mul_i32 s90, s5, {448*1024}\ns_add_u32 s90, s90, s4\ns_lshl_b32 s91, s5, 17\ns_add_u32 s91, s91, s4")
        s.e(f"s_mov_b32 m0, {SCR_DUM}")
        h = hf or 0
        if c < 7: s.e(f"s_add_u32 {sSoW}, s90, {ORDER[4*c]*16384 + h*896*1024}\nbuffer_load_dwordx4 {vA16}, {sW2}, {sSoW} offen lds")
        else: s.e(f"s_add_u32 {sSoW}, s91, {(c-7)*65536 + h*256*1024}\nbuffer_load_dwordx4 {vA16}, {sWo}, {sSoW} offen lds")
    return f
def touch3(c, ch):
    def f(s):
        wv = CFG['T3W'][c]
        if wv // 4 != ch: return
        lab = label()
        s.e(f"s_cmp_lg_u32 {sW}, {wv}\ns_cbranch_scc1 {lab}")
        mul = 448 * 1024 if c < 7 else 128 * 1024
        off = ORDER[4 * c] * 16384 if c < 7 else (c - 7) * 65536
        s.e(f"s_lshr_b32 s90, s87, 3\ns_mul_i32 s90, s90, {mul}\ns_and_b32 s91, s87, 7\ns_lshl_b32 s91, s91, 13\ns_add_u32 s90, s90, s91\ns_add_u32 s90, s90, {off}\ns_mov_b32 m0, {SCR_DUM}")
        s.e(f"v_lshlrev_b32 v{CSA+3}, 7, v0")
        s.raw(f"buffer_load_dword v{CSA+3}, {sW2 if c < 7 else sWo}, s90 offen lds")
        s.e(f"{lab}:")
    return f
def touch4(k, ch):
    def f(s):
        if ch: return
        lab = label()
        n = (28, 28, 16)[k]
        s.e(f"s_cmp_lg_u32 {sW}, {k}\ns_cbranch_scc1 {lab}")
        s.e(f"s_mul_i32 s90, s87, {(56, 56, 16)[k]*1024}\ns_add_u32 s90, s90, {CFG['SC']*128 + (28*1024 if k == 1 else 0)}\ns_mov_b32 m0, {SCR_DUM}")
        s.e(f"v_min_u32 v{CSA+3}, {n-1}, v0\nv_lshlrev_b32 v{CSA+3}, 10, v{CSA+3}")
        s.raw(f"buffer_load_dword v{CSA+3}, {sW2 if k < 2 else sWo}, s90 offen lds")
        s.e(f"{lab}:")
    return f
def add_touch(segs, typ):
    if CFG['T2'] == 4:
        for k, at in enumerate(CFG['T4AT']): segs[at // 32].posts.setdefault(at % 32, []).append(touch4(k, segs[0].ch))
    if CFG['T2'] == 3:
        for c, at in enumerate(CFG['T2AT']): segs[at // 32].posts.setdefault(at % 32, []).append(touch3(c, segs[0].ch))
    for c, at in enumerate(CFG['T2AT']):
        if CFG['T2'] == 1: segs[at // 32].posts.setdefault(at % 32, []).append(touch2(c))
        if CFG['T2'] == 2 and typ == 'A':
            segs[at // 32].posts.setdefault(at % 32, []).append(touch2(c, 0))
            segs[(at + 2) // 32].posts.setdefault((at + 2) % 32, []).append(touch2(c, 1))

def touchA(t0, n, mask, T, T2, vp=vPoll):
    def f(s):
        if not CFG['TA']: return
        lab = label()
        s.e(f"v_min_u32 {T}, {n-1}, v0")
        if t0 < 28 and n > 4:
            d = ORDER[t0 + 4] - ORDER[t0] - 4
            s.e(f"v_lshrrev_b32 {T2}, 2, {T}\nv_mul_u32_u24 {T2}, {d}, {T2}\nv_add_u32 {T}, {T}, {T2}")
        off = ORDER[t0] * 1024 if t0 < 28 else 0
        s.e(f"v_lshlrev_b32 {T}, 10, {T}\ns_lshl_b32 {sSoW}, {sCB}, 7\ns_add_u32 {sSoW}, {sSoW}, {sA2y if t0 < 28 else sA2s}\ns_add_u32 {sSoW}, {sSoW}, {off}\ns_mov_b32 m0, {SCR_DUM}")
        s.e(f"v_cmp_ne_u32 vcc, 0, {vp}\ns_andn2_b32 {sT0}, {mask:#x}, vcc_lo\ns_cbranch_scc1 {lab}")
        s.raw(f"buffer_load_dword {T}, {sWs}, {sSoW} offen sc1 lds")
        s.e(f"{lab}:")
    return f

def ilv(st, co):
    out = st[:3] + co[:3] + [st[3]]
    a, b = st[4:], co[3:-1]
    while a or b:
        if a: out.append(a.pop(0))
        if a and len(a) > 2 * len(b): out.append(a.pop(0))
        if b: out.append(b.pop(0))
    return out + co[-1:]
def p0_items(a, b):
    it = []
    for c in range(4): it += x_items(c) + [a[c]]
    return it + b
def packin(acc): return [f"v_cvt_pk_bf16_f32 v{acc+j}, v{acc+2*j}, v{acc+2*j+1}" for j in range(8)]
def N(n, lo, hi): return [f"{n}{c}" for c in range(lo, hi)]
def initchk(s):
    poll_check(s, sDbg, "0", 0xffffffff, imm=128); s.marks["init"] = 1
initpoll = lambda s: poll_issue(s, sDbg, "0", imm=128)
def pollA(s):
    if s.name[1] == '1': poll_issue(s, sWs, sFL2, vo=vB0)

def stream_A(s0, ch):
    CB, DB = CFG['CB'], CFG['DB']
    s = s0.fork(f"A{ch}"); s.e(f"L_typeA{ch}:")
    bl = BIASL['A']
    items = p0_items(w_items("K", sWq, vDq, sUA, 3072), w_items("V", sWq, vDq, sUB, 3072)) + w_items("H", sW1, vD1, sUC, 3584) + b_items(0)
    ring = Ring(items, range(9), ch); ring.hold = ('XL3', 'XH3'); ring.upto0 = "V3"
    start(s, ring, 'K')
    s.e(f"s_lshl_b32 {sSCRW}, {sW}, 12\ns_add_u32 {sSCRW}, {sSCRW}, {2*SLOT}")
    s.marks.update(f1=1, f2=1, fo=1)
    uK = dict(name="K", acc=ACC_A, trans=True, kind='w', csi=0)
    uV = dict(name="V", acc=ACC_B, trans=False, kind='w', csi=1)
    uH = dict(name="H", acc=ACC_C, trans=True, kind='w', csi=0)
    F = [('wait', 'c1')] + ilv(stats_fin(PT), correct(uK, ch, PT + 8))
    F += ["v_lshrrev_b32 v26, 5, v0", "v_lshlrev_b32 v26, 1, v26", "v_bfe_u32 v25, v0, 1, 2", "v_xor_b32 v26, v25, v26", f"v_lshlrev_b32 v25, 4, {vP4}", "v_lshl_add_u32 v25, v26, 4, v25",
          f"v_add_u32 v25, {sSCRW}, v25", "v_xor_b32 v24, 16, v25"]
    F += packin(ACC_A)
    F += [f"{MF} {R(PT,16)}, {R(PHI,4)}, {R(ACC_A,4)}, 0", f"{MF} {R(ACC_C,16)}, {R(PHI+4,4)}, {R(ACC_A+4,4)}, 0", ('gap', 12)]
    for h, P in enumerate((PT, ACC_C)):
        if h == 1 and CFG['PKA']:
            sm = softmax_pk(P, ACC_A + 8, "v26", vT, PHI); F += sm[:9] + [('wait', 'c2')] + sm[9:]
        else: F += softmax(P, ACC_A + 8, "v26", vT)
        F += [f"ds_write_b128 v25, {R(ACC_A+8,4)} offset:{2048*h}", f"ds_write_b128 v24, {R(ACC_A+12,4)} offset:{2048*h}"]
    F += [('wait', 'c2')]
    F += ["v_lshrrev_b32 v26, 5, v0", "v_lshlrev_b32 v26, 4, v26", blk(f"s_lshl_b32 s4, {sRT}, 7\ns_add_u32 s4, s4, {SCR_RS}\nv_add_u32 {vT}, s4, v26")]
    for q in range(4): F.append(f"ds_read_b128 {R(PT+4*q,4)}, {vT} offset:{32*q}")
    F += ["v_bfe_u32 v25, v0, 2, 2", "v_lshlrev_b32 v25, 6, v25", "v_lshl_add_u32 v25, v26, 4, v25", f"v_bfe_u32 {vT}, v0, 4, 1", f"v_cmp_eq_u32 s[94:95], 1, {vT}",
          "v_lshrrev_b32 v24, 5, v0", f"v_xor_b32 {vT}, v24, {vT}", f"v_lshl_add_u32 v25, {vT}, 5, v25",
          "v_lshrrev_b32 v24, 2, v0", "v_xor_b32 v24, v24, v0", "v_bfe_u32 v24, v24, 1, 1", "v_lshl_add_u32 v25, v24, 4, v25",
          f"v_and_b32 {vT}, 1, v0", f"v_lshl_add_u32 v25, {vT}, 3, v25", f"v_add_u32 v25, {sSCRW}, v25", f"v_mov_b32 {vT}, {sC11}"]
    for t in range(2):
        for rd in range(2): F.append(f"ds_read_b64_tr_b16 {R(PHI+4*t+2*rd,2)}, v25 offset:{2048 + t*1024 + rd*512}")
    F += [pk2("mul", ACC_B + r, ACC_B + r, PT + r) for r in range(0, 16, 2)] if CFG['PKA'] else [f"v_mul_f32 v{ACC_B+r}, v{ACC_B+r}, v{PT+r}" for r in range(16)]
    F += packin(ACC_B)
    for t in range(2):
        for rd in range(2): F.append(f"ds_read_b64_tr_b16 {R(ACC_B+8+4*t+2*rd,2)}, v25 offset:{t*1024 + rd*512}")
    for j in range(8): F.append(f"v_cndmask_b32 v{ACC_A+8+j}, {vT}, v{ACC_B+j}, s[94:95]")
    for j in range(8): F.append(f"v_cndmask_b32 v{ACC_A+j}, v{ACC_B+j}, {vT}, s[94:95]")
    F += [f"{MF} {R(PT,16)}, {R(ACC_A,4)}, {R(ACC_B+8,4)}, 0", f"{MF} {R(PT,16)}, {R(ACC_A+4,4)}, {R(ACC_B+12,4)}, {R(PT,16)}",
          f"{MF} {R(ACC_B,16)}, {R(ACC_A+8,4)}, {R(PHI,4)}, 0", f"{MF} {R(ACC_B,16)}, {R(ACC_A+12,4)}, {R(PHI+4,4)}, {R(ACC_B,16)}"]
    F += [f"v_add_u32 v25, {sSCRW}, {vA16}", blk(f"s_lshl_b32 s4, {sW}, 9\ns_add_u32 s4, s4, {SCR_Z}\nv_lshlrev_b32 v26, 2, v0\nv_add_u32 v26, s4, v26")]
    F += [f"ds_write_b128 v25, {R(PT,4)}", f"ds_write_b128 v25, {R(PT+4,4)} offset:1024", f"ds_write_b32 v26, v{PT+8}",
          f"ds_write_b128 v25, {R(ACC_B+8,4)} offset:2048", f"ds_write_b128 v25, {R(ACC_B+12,4)} offset:3072", f"ds_write_b32 v26, v{ACC_B} offset:256"]
    F += [blk(f"s_lshl_b32 s4, {sRT}, 10\ns_add_u32 s4, s4, {2*SLOT + ch*SLOT}\nv_add_u32 v25, s4, {vA16}"),
          blk(f"s_lshr_b32 s4, {sRT}, 1\ns_lshl_b32 s4, s4, 8\ns_add_u32 s4, s4, {SCR_Z + ch*2048}\nv_add_u32 v26, s4, {vP4}"), mark('kvw')]
    ER = [f"ds_read_b128 {R(PT+4*r,4)}, v25 offset:{r*4096}" for r in range(4)] + [f"ds_read_b32 v{ACC_A+r}, v26 offset:{r*512}" for r in range(4)]
    ER += ["v_lshrrev_b32 v25, 5, v0", f"v_lshl_add_u32 v25, v25, 9, {vP4}", blk(f"s_lshl_b32 s5, {sRT2}, 10\nv_add_u32 v25, s5, v25"),
           f"v_lshrrev_b32 {vT}, 4, v0", f"v_cmp_eq_u32 s[94:95], {sRT2}, {vT}", f"v_mov_b32 {vT}, {BIG}",
           blk(f"s_and_b32 s5, {sG}, 1\ns_mul_i32 s5, s5, {10*1024}\ns_add_u32 s5, s5, {ch*2048}\ns_add_u32 {sUD}, {sKS}, s5\ns_lshl_b32 s4, {sI}, 7\ns_add_u32 {sKVF}, {sKVF}, s4"),
           f"v_cndmask_b32 v26, {vT}, {vP4}, s[94:95]"]
    for j in range(4): ER += [f"v_add_f32 v{PT+j}, v{PT+j}, v{PT+4+j}", f"v_add_f32 v{PT+8+j}, v{PT+8+j}, v{PT+12+j}"]
    for j in range(4): ER.append(f"v_add_f32 v{PT+j}, v{PT+j}, v{PT+8+j}")
    ER += [f"v_add_f32 v{ACC_A}, v{ACC_A}, v{ACC_A+1}", f"v_add_f32 v{ACC_A+2}, v{ACC_A+2}, v{ACC_A+3}", f"v_add_f32 v{ACC_A}, v{ACC_A}, v{ACC_A+2}"]
    for j in range(4): ER.append((f"buffer_atomic_add_f32 v{PT+j}, v25, {sWs}, {sKVs} offen offset:{j*128}", "kv"))
    ER += [(f"buffer_atomic_add_f32 v{ACC_A}, v26, {sWs}, {sKVs} offen offset:2048", "kv"), stamp('kvat')]
    EH = correct(uH, ch, PHI, BI0) + fin_setup() + (mish_pk if CFG['PKH'] else mish)(ACC_C, PT + 8, sUD, "actA")
    fkv = flag_store("kv", sKVF, 0, 'fkv'); f3 = flag_store("actA", sFL, 2 * 128, 'f3')
    pr = lambda c: [bnm(0, c), bnm(1, c)]
    m0 = pass0(s, ring, uK, ch, bl, "V3", ["V0"])
    mV = MSeg(ring, uV, ch, {CB: [B(ring, "c1", ["V1", "V2"], ["K3"] + ring.c1rel)], DB: [B(ring, "d1", ["V3", "H0"], N("V", 0, 2))]}, dma=CFG['ST'])
    def h1(s):
        until(s, ring, FH, 'erd')
        bar(s, ring, "h1", [], ["H0", CB_(0)], extra=[2, 3])
    P0_, P1_, P2_ = pulln(ring, ch, 0), pulln(ring, ch, 1), pulln(ring, ch, 2)
    mH = MSeg(ring, uH, ch, {15: [h1], DB + 2: [earlyA(ring, B(ring, "h2", ["H3", CB_(2)], ["H1", CB_(1)], owner=(1 if CFG['EAR'] else 'all')))]},
              {6: [lambda s: drain(s, p2_setup(ring))], 7: P0_[:4], 8: P0_[4:], 15: P1_[:4], 16: P1_[4:], 23: P2_[:4], 24: P2_[4:], (CFG['EPA'] if CFG['EAR'] else 27): [pollA], CFG['KVW']: [fkv]}, dma=CFG['ST'])
    ring.lim = CB_(CFG['NPB'] - 1); gate0(ring)
    m0.posts.setdefault(29, []).append(lambda s: drain(s, phi_frags()))
    add_touch([m0, mV, mH], 'A')
    mV.posts.setdefault(30, []).append(initpoll)
    m0.run(s, mV); mV.run(s, None, F, CFG['KB'] + CFG['KD'] * (1 - 2 * ch))
    bar(s, ring, "c2", [], N("V", 2, 4), lg0=True)
    print("   A V-only block:", len(F))
    VB_ = correct(uV, ch, WB) + F + [initchk, mH.pre]
    if CFG.get('VST'):
        for k in range(len(VB_) // 12 * 12, 0, -12): VB_.insert(k, stamp(f"v{k}"))
    vseg(s, ring, VB_, flush=False)
    bar(s, ring, "d2", ["H1", "H2"] + pr(0))
    FH = list(ER) + [mark('erd')]
    mH.run(s, None, FH, CFG['VB'])
    assert not FH
    ring.lim = None; ring.strict = True
    bar(s, ring, "e1", [], N("H", 2, 4) + [CB_(2)], lg0=True, owner=1)
    F = EH + [mark('scrfree'), ('hold', CFG['F3G']), f3]
    aphase(s, ring, ch, F, [])
    return s

def stream_B(s0, ch):
    CB, DB = CFG['CB'], CFG['DB']
    s = s0.fork(f"B{ch}"); s.e(f"L_typeB{ch}:")
    bl = BIASL['B']
    H5 = [(f"F{c}", sW1, vD5, sUD, 0, 16 * 3584, 0, 128 * 3584, lambda hf, c=c: 2 * c + hf) for c in range(2)]
    items = p0_items(w_items("U", sW1, vD1, sUA, 3584), w_items("Y", sW1, vD1, sUB, 3584))
    Qi = w_items("Q", sWq, vDq, sUC, 3072); bi = b_items(1)
    items += H5 + [Qi[0]] + bi[:2] + [Qi[1], Qi[2]] + bi[2:4] + [Qi[3]] + bi[4:] if CFG['EB'] else H5 + Qi + bi
    ring = Ring(items, range(9), ch); ring.upto0 = "Y3"; ring.strict = bool(CFG['EB'])
    start(s, ring, 'U')
    s.e(f"s_and_b32 s5, {sG}, 1\ns_cmp_eq_u32 s5, 0\ns_cselect_b32 s5, 4, 2\ns_cselect_b32 s4, {12*1024}, 0\ns_lshl_b32 s5, s5, 10\n"
        f"s_add_u32 {sSCRW}, {sKS}, s4\ns_add_u32 s5, s5, {ch*2048}\ns_add_u32 {sKS}, {sKS}, s5")
    uU = dict(name="U", acc=ACC_A, trans=True, kind='w', csi=0)
    uY = dict(name="Y", acc=ACC_B, trans=True, kind='w', csi=1)
    uF = dict(name="F", acc=ACC_C, trans=True, kind='h5', csi=0)
    uQ = dict(name="Q", acc=ACC_A, trans=True, kind='w', csi=1)
    EU = ilv(stats_fin(PT), correct(uU, ch, PT + 8, BI0)) + [('gap', 14)] + mish(ACC_A, PT, sKS, "act1") + [f"s_add_u32 {sKS}, {sKS}, 4096"]
    EY = correct(uY, ch, PT + 8, BI1) + [mark('b1dead'), ('gap', 16)] + mish(ACC_B, PT, sKS, "act2")
    EF = correct(uF, ch, PT + 8, BI2) + [('gap', 16)] + mish(ACC_C, PT, sSCRW, "act5")
    EQ = correct(uQ, ch, PT + 12) + phi_frags() + pack16(ACC_A, PK)
    EQ += [f"{MF} {R(PT,16)}, {R(PHI,4)}, {R(PK,4)}, 0", f"{MF} {R(ACC_B,16)}, {R(PHI+4,4)}, {R(PK+4,4)}, 0"] + fin_setup()
    if CFG['PK']: EQ += softmax_pk(PT, ACC_A, "v26", vT, PHI) + softmax_pk(ACC_B, ACC_A + 8, "v26", vT, PHI)
    else: EQ += softmax(PT, ACC_A, "v26", vT) + softmax(ACC_B, ACC_A + 8, "v26", vT)
    f1 = flag_store("act1", sFL, 0, 'f1'); f2 = flag_store("act2", sFL, 128, 'f2'); f3 = flag_store("act5", sFL, 3 * 128, 'f3')
    pr = lambda c: [bnm(0, c), bnm(1, c)]
    FG = ('gap', CFG['FG'])
    F = [('wait', 'c1')] + EU + [mark('m1'), ('wait', 'c2')] + split(EY, 0.6, lambda s: (initchk(s), f1(s))) + [mark('m2')]
    if ch == 0: F += [('wait', 'c3')] + split(EF, 0.6, f2) + [mark('m3')]
    else: F += [FG, f2, mark('m3'), mark('f3')]
    m0 = pass0(s, ring, uU, ch, bl, "Y3", ["Y0"])
    mY = MSeg(ring, uY, ch, {CB: [B(ring, "c1", ["Y1", "Y2"], ["U3"] + ring.c1rel)], DB: [B(ring, "d1", ["Y3", "F0"], N("Y", 0, 2))]}, dma=CFG['ST'])
    c2 = B(ring, "c2", ["F1", "Q0"], N("Y", 2, 4), owner=1)
    P0_, P1_, P2_ = pulln(ring, ch, 0), pulln(ring, ch, 1), pulln(ring, ch, 2)
    mQ = MSeg(ring, uQ, ch, {CB: [B(ring, "c3", ["Q1", "Q2", CB_(0)], ["F0", "F1"])], DB: [earlyA(ring, B(ring, "d3", ["Q3", CB_(1), CB_(2)], N("Q", 0, 2) + [CB_(0)], owner=(1 if CFG['EAR'] else 'all')))]},
              {7: [lambda s: (until(s, ring, F, 'b1dead'), drain(s, p2_setup(ring)))], 9: P0_[:4], 11: P0_[4:], 19: P1_[:4], 21: P1_[4:], 24: P2_[:4], 26: P2_[4:], (CFG['EPB'] if CFG['EAR'] else 27): [pollA]}, dma=CFG['ST'])
    ring.lim = CB_(CFG['NPB'] - 1); gate0(ring)
    add_touch([m0, mY, mQ], 'B')
    mY.posts.setdefault(28, []).append(initpoll)
    m0.run(s, mY)
    if ch == 0:
        mF = MSeg(ring, uF, ch, {CB: [c2]}, dma=CFG['ST'] // 2)
        mY.run(s, mF, F, CFG['P1B'] + CFG['PD']); mF.run(s, mQ, F, CFG['FB'])
    else:
        mY.run(s, None, F, CFG['P1B'] - CFG['PD']); c2(s); vrun(s, ring, F, CFG['IB']); mQ.pre(s)
    print("   B forced m1:", until(s, ring, F, 'm1'))
    mQ.run(s, None, F, CFG['QB'][ch])
    KS, OD, OD2, OF, OP = WB, PT, ACC_B, PHI, PK
    def kvfetch(s):
        poll_check(s, sWs, sKVF, 0xffff, vPoll2, vo="v21")
        s.e(f"s_lshl_b32 s5, {sRT2}, 10\ns_add_u32 s5, s5, {sKVs}")
        s.e(f"buffer_load_dwordx4 {R(KS,4)}, {vA16}, {sWs}, s5 offen sc1")
        s.e(f"v_and_b32 v21, 3, v0\nv_lshlrev_b32 v21, 4, v21\ns_lshl_b32 s5, {sRT2}, 6\ns_add_u32 s5, s5, {sKVs}")
        s.e(f"buffer_load_dwordx4 {R(KS+4,4)}, v21, {sWs}, s5 offen offset:2048 sc1")
    IM = [f"v_cvt_pk_bf16_f32 v{KS}, v{KS}, v{KS+1}", f"v_cvt_pk_bf16_f32 v{KS+1}, v{KS+2}, v{KS+3}",
          f"v_cvt_pk_bf16_f32 v{KS+4}, v{KS+4}, v{KS+5}", f"v_cvt_pk_bf16_f32 v{KS+5}, v{KS+6}, v{KS+7}",
          blk(f"s_mul_i32 s5, {sKQ}, 1088\ns_add_u32 s5, s5, {SCR_KV}\ns_lshl_b32 s4, {sRT2}, 9\ns_add_u32 s4, s4, s5\nv_lshlrev_b32 v25, 3, v0\nv_add_u32 v25, s4, v25\n"
              f"ds_write_b64 v25, {R(KS,2)}\ns_lshl_b32 s4, {sRT2}, 5\ns_add_u32 s4, s4, s5\nv_lshrrev_b32 v21, 1, v21\nv_add_u32 v21, s4, v21\nds_write_b64 v21, {R(KS+4,2)} offset:1024"),
          f"v_min_u32 v25, 64, {vP4}", "v_lshlrev_b32 v25, 4, v25", "v_lshrrev_b32 v26, 5, v0", "v_lshl_add_u32 v25, v26, 5, v25",
          blk(f"v_add_u32 v25, {SCR_KV + ch*2176}, v25\ns_lshl_b32 s5, {sG}, 12\ns_add_u32 s5, s5, {sAF}\ns_add_u32 {sSCRW}, s5, {112*1024 + ch*2048}")]
    O = [f"ds_read_b128 {R(OF,4)}, v25", f"ds_read_b128 {R(OF+4,4)}, v25 offset:16", f"ds_read_b128 {R(OP,4)}, v25 offset:1088", f"ds_read_b128 {R(OP+4,4)}, v25 offset:1104"]
    O += [f"{MF} {R(OD,16)}, {R(OF,4)}, {R(ACC_A,4)}, 0", f"{MF} {R(OD,16)}, {R(OF+4,4)}, {R(ACC_A+4,4)}, {R(OD,16)}",
          f"{MF} {R(OD2,16)}, {R(OP,4)}, {R(ACC_A+8,4)}, 0", f"{MF} {R(OD2,16)}, {R(OP+4,4)}, {R(ACC_A+12,4)}, {R(OD2,16)}"]
    for h, D in enumerate((OD, OD2)):
        O += [f"v_add_f32 v26, 0x358637bd, v{D+8}", "v_rcp_f32 v26, v26"]
        for j in range(8): O.append(f"v_mul_f32 v{D+j}, v{D+j}, v26")
        for j in range(4): O.append(f"v_cvt_pk_bf16_f32 v{ACC_A+4*h+j}, v{D+2*j}, v{D+2*j+1}")
        O.append((f"buffer_store_dwordx4 {R(ACC_A+4*h,4)}, {vA16}, {sWs}, {sSCRW} offen offset:{h*1024} sc1", "o"))
    O.append(stamp('ost'))
    ring.lim = None; ring.strict = True
    bar(s, ring, "e1", [], N("Q", 2, 4) + [CB_(1), CB_(2)], lg0=True, owner=1)
    def ins(L, back, item): return L[:len(L) - back] + [item] + L[len(L) - back:]
    F2 = F + EQ
    if ch == 0: F2 = ins(F2, 110, f3)
    kp = lambda s: (s.e("v_min_u32 v21, 15, v0\nv_lshlrev_b32 v21, 7, v21"), poll_issue(s, sWs, sKVF, vPoll2, vo="v21"))
    F2 = ins(ins(F2, CFG['KP'], kp), CFG['KF'], kvfetch)
    F2 += IM + [('nextbar',)] + O + [mark('scrfree'), ('hold', CFG['OW']), flag_store("o", sFL, 4 * 128, 'fo')]
    aphase(s, ring, ch, F2, [])
    return s

def build(path, listform=True):
    s0 = Stream("P")
    if PROFILE: s0.e("s_memtime s[96:97]\ns_memrealtime s[58:59]")
    prologue(s0)
    s0.e(f"s_lshl_b32 s5, {sTY}, 1\ns_add_u32 s5, s5, {sCH}\ns_cmp_eq_u32 s5, 0\ns_cbranch_scc1 L_typeA0\ns_cmp_eq_u32 s5, 1\ns_cbranch_scc1 L_typeA1\ns_cmp_eq_u32 s5, 3\ns_cbranch_scc1 L_typeB1")
    B0 = stream_B(s0, 0); B1 = stream_B(s0, 1); A0 = stream_A(s0, 0); A1 = stream_A(s0, 1)
    assert B0.nbar == B1.nbar and A0.nbar == A1.nbar
    assert B0.slots == B1.slots and A0.slots == A1.slots
    print(XCHK)
    for k, v in XCHK.items():
        if len(k) == 3 and k[:2] in XCHK: assert XCHK[k[:2]] <= v, (k, v, XCHK[k[:2]])
    hdr = open("recurrent_scan__linear_kernel_hedgehog__dense_activation_mish__prompt.s.ref").read().split("; Override")[0]
    T = [hdr.rstrip(), f"; @launch {'kernel=' + KNAME + ' ' if listform else ''}grid=(256,1,1) block=(512,1,1) lds=163840",
         '.amdgcn_target "amdgcn-amd-amdhsa--gfx950"', ".text", f".globl {KNAME}", ".p2align 8", f".type {KNAME},@function", f"{KNAME}:"]
    S = [s0, B0, B1, A0, A1]
    for st in S:
        T.append(f"; ---- stream {st.name}  nops={st.stats['nop']} waits={st.stats['wait']} barriers={st.nbar}")
        T.append(st.text())
    for st in S: T += st.ool
    T.append("L_end:\n  s_endpgm")
    T.append(".fill 6144, 4, 0xbf800000")
    T.append(f'''.section .rodata,"a"
.p2align 6
.amdhsa_kernel {KNAME}
  .amdhsa_next_free_vgpr 256
  .amdhsa_next_free_sgpr 102
  .amdhsa_accum_offset 256
  .amdhsa_group_segment_fixed_size 0
  .amdhsa_kernarg_size 88
  .amdhsa_user_sgpr_count 2
  .amdhsa_user_sgpr_kernarg_segment_ptr 1
  .amdhsa_system_sgpr_workgroup_id_x 1
.end_amdhsa_kernel''')
    open(path, "w").write("\n".join(T) + "\n")
    for st in S: print(st.name, "instrs", len(st.out), st.stats, "barriers", st.nbar)

if __name__ == "__main__":
    for a in sys.argv[2:]:
        if a == "prof": PROFILE = True
        elif '=' in a:
            k, v = a.split('='); CFG[k] = eval(v)
    build(sys.argv[1], listform=("final" not in sys.argv))
```

```python
import sys
sys.path.insert(0, 'gen')
from ab import *

KNAME = "recurrent_scan__linear_kernel_hedgehog__dense_activation_mish__prompt_kernel"
PROFILE = False
SLOT = 16384
SCR = 9 * SLOT
SCR_PHI = SCR
SCR_RS = SCR + 2048
SCR_ST = SCR + 2560
SCR_CS = SCR + 6656
SCR_Z = SCR + 10752
SCR_KV = SCR + 10752
Z_OFF = 0x900000
KV_OFF = Z_OFF
KVFLAG_OFF = Z_OFF + 0x40000
ACTFLAG_OFF = Z_OFF + 0x16000
PROF_OFF = 0xA00000
BIG = 0x40000000
CFG = dict(AD=16, A0=8, AN=2, BN=1, G8=1, F3G=1, PB=[(200, 40), (80, 55), (80, 40)], SLP=8, PCA=[4, 10, 10, 8, 8, 8, 7], PCB=[4, 10, 10, 8, 8, 8, 7], GIA={4: 1}, GIB={4: 2}, HS=8, CVE=5, EAR=2, EPA=12, EPB=12, XAT=15, S9A=4, S9B=7, NPB=6, LG=6, LVA=[15, 80], LVB=[15, 80], CV0A=15, CV0B=15, CVA=11, CVB=12, PIA={4: 0, 8: 4, 10: 6.5, 14: 11}, PIB={4: 1, 8: 4, 10: 6.5, 14: 11}, LLT=6, SC=3, T4AT=[30, 36, 38], NBX=2, LG0=0, PWW=0, PVL=60, PSA=[(3, 7), (11, 14), (18, 21)], PSB=[(0, 1), (5, 8), (11, 15)], PB2=3, YB=31, PKT=1, MIX=0, MG=300, EB=0, EA=1, PKH=1, T3W=[0, 1, 2, 3, 0, 1, 2, 3, 0], OWN='', KD=0, PD=0, UP=[0, 0, 0, 1, 2, 2, 4], PAR=2, FB4=0, PKA=1, PK=0, KM=0, KVW=17, KS=(0, 5, 10), KVP=12, TAP=8, TAT=20, TAD=2, CB=6, DB=22, TW=1, TWT=2, GT=[2000, 4000, 5500, 500], TOFF=-1000, LT=200, LT2=200, QD2=800, LAT=900, QD=800, PLT=1500, BL=6, VC=9, T2=4, T2AT=[30, 35, 40, 45, 50, 55, 60, 66, 72], PF=4, PL=4, S0=6, S1=6, PRIO=0, VD=10, KP=160, KF=110, OW=1, G16=8, G28=20, TV=10, TB=1, TBT=28, TA=0, TO=11, T0=0, T1=0, ROT=2, RATE=38, BURST=24576, ST=90,
    CRED=6, AGE=14, P1B=6, FB=5, QB=[9, 3], IB=150, KB=6, VB=8, KVG=60, EH0=60, FG=60, E1=[120, 100], E2=[100, 80])

sX, sWq, sW1, sW2, sWo, sPhi, sB1, sOut, sDbg, sWs = [f"s[{8+4*i}:{11+4*i}]" for i in range(10)]
sW, sRT, sCH, sI, sG, sTY, sRB, sCB, sKQ, sRT2 = [f"s{48+i}" for i in range(10)]
sT0 = "s3"
sC10, sC01, sC11 = "s58", "s59", "s60"
sM0W = "s61"; sSoW = "s62"
sUA, sUB, sUC, sUD = "s63", "s6", "s7", "s2"
sAF, sFL, sAF2, sFL2, sB2, sBo, sKVs, sKVF, sSCRW, sCNT, sKS, sBID = [f"s{64+i}" for i in range(12)]
sA2y, sA2s, sOo = "s0", "s1", "s5"
STAMP0 = 76

vA16 = "v1"; vDq = "v2"; vD1 = "v3"; vDB = "v4"; vD5 = "v5"
VW = 6
vRS, vRSL, vM2 = "v14", "v15", "v22"
CF = 16
BI0, BI1, BI2 = 23, 24, 25
vPoll = "v27"; vFO = "v28"; vOne = "v10"; vP4 = "v30"; vT = "v31"; vPoll2 = "v9"
ACC_A, ACC_B, ACC_C = 32, 48, 64
WB = 80; PT = 96; PHI = 112; PK = 120; XA = 128
XR = 64; XD = 72; HR = 112; STA = 96; CSB = 116; ASEL = 120; CSA = 124
sXb = "s86"; sRot = "s89"; ROT0 = 98

def R(b, n): return f"v[{b}:{b+n-1}]"
def ldsaddr(regs, byte): return regs[byte >> 16], byte & 0xffff
_nl = [0]
def label():
    _nl[0] += 1; return f"L{_nl[0]}"
def stamp(name):
    def f(s):
        if not PROFILE: return
        if not hasattr(s, 'snames'): s.snames = []
        idx = len(s.snames)
        if idx >= 61: return
        s.snames.append(str(name))
        s.e(f"s_memtime s[{STAMP0+2*(idx%4)}:{STAMP0+1+2*(idx%4)}]")
        if idx >= 2: s.raw(f"v_writelane_b32 v29, s{STAMP0+2*((idx-2)%4)}, {idx-2}")
    return f
def srd(s, dst, lo, hi, size):
    b = int(dst[2:dst.index(':')])
    s.e(f"s_mov_b32 s{b}, {lo}\ns_and_b32 s{b+1}, {hi}, 0xffff\ns_mov_b32 s{b+2}, {size}\ns_mov_b32 s{b+3}, 0x20000")
def poll_issue(s, srd_, soff, vp=vPoll, imm=0, vo=vP4):
    assert srd_ == sDbg or 'init' in s.marks
    s.e(f"buffer_load_dword {vp}, {vo}, {srd_}, {soff} offen offset:{imm} sc1")
def poll_check(s, srd_, soff, mask, vp=vPoll, imm=0, vo=vP4):
    l1, l2, l3 = label(), label(), label()
    stamp(f"[p{imm//128}_{mask:x}")(s)
    s.e(f"v_cmp_ne_u32 vcc, 0, {vp}\ns_andn2_b32 {sT0}, {mask:#x}, vcc_lo\ns_cbranch_scc1 {l1}\n{l2}:")
    stamp(f"p]")(s)
    s.ool.append(f"""{l1}:
  s_mov_b32 {sCNT}, 0x10000
{l3}:
  s_sleep {CFG['SLP']}
  buffer_load_dword {vp}, {vo}, {srd_}, {soff} offen offset:{imm} sc1
  s_waitcnt vmcnt(0)
  v_cmp_ne_u32 vcc, 0, {vp}
  s_nop 1
  s_andn2_b32 {sT0}, {mask:#x}, vcc_lo
  s_cbranch_scc0 {l2}
  s_sub_u32 {sCNT}, {sCNT}, 1
  s_cmp_lg_u32 {sCNT}, 0
  s_cbranch_scc1 {l3}
  s_branch {l2}""")
def flag_store(tagwait, soff, imm, mark):
    def f(s):
        assert 'init' in s.marks
        stamp("(" + mark)(s)
        s.wait_tag(tagwait)
        stamp(mark + ")")(s)
        s.e(f"buffer_store_dword {vOne}, {vFO}, {sWs}, {soff} offen offset:{imm} sc1")
        s.marks[mark] = 1
    return f
def blk(text): return lambda s: s.e(text)

class Ring:
    hold = ()
    def __init__(self, items, free, ch):
        self.items = list(items); self.free = list(free); self.slot = {}; self.q = []; self.log = {}; self.ch = ch
        self.order = {it[0]: k for k, it in enumerate(items)}; self.xres = True; self.gate = {}; self.lim = None
    def release(self, name):
        if name not in self.hold: self.free.append(self.slot[name])
    def assign(self, s, owner='all', upto=None, maxn=99):
        k = 0
        while k < len(self.items) and maxn > 0:
            it = self.items[k]; nm = it[0]
            if upto is not None and self.order[nm] > self.order[upto]: break
            if self.lim is not None and self.order[nm] > self.order[self.lim]: break
            if nm[0] == 'X':
                want = 2 * (int(nm[2]) & 1) + (nm[1] == 'H')
                ok = [x for x in self.free if x == want]
                if not ok: k += 1; continue
            elif nm[0] in 'BFA': ok = [x for x in self.free if not (self.xres and x < 4)]
            else: ok = [x for x in self.free if x != 0 and not (self.xres and x < 4)]
            if not ok:
                if nm[0] not in 'BA' and not self.strict: k += 1; continue
                break
            if nm[0] in 'BF' and 0 in ok: ok = [0]
            self.items.pop(k); sl = ok[0]; self.free.remove(sl); self.slot[nm] = sl; maxn -= 1
            self.log[nm] = [s.nbar, None, owner]
            if owner == 'all': self.q += [(it, sl, h, 0) for h in range(2)]
            elif owner == self.ch: self.q += [(it, sl, h, o) for o in range(1 if nm == 'BX' else 2) for h in range(2)]
            if nm == 'XH3': self.xres = False
        self.q.sort(key=lambda e: self.order[e[0][0]])
    def pump(self, s, n=1):
        while n > 0 and self.q:
            if self.q[0][0][0] in self.gate: self.gate.pop(self.q[0][0][0])(s)
            it, sl, h, other = self.q.pop(0)
            name, srd_, voff, sbase, o0, o1, dl = it[:7]
            sg = (1 if self.ch == 0 else -1) * other
            vo = voff[h] if isinstance(voff, tuple) else voff
            s.e(f"s_add_u32 m0, {sM0W}, {(sl*SLOT + h*1024 + sg*8192) & 0xffffffff:#x}")
            if len(it) > 7:
                mul, cidx = it[7], it[8](self.ch if not other else 1 - self.ch)
                key = (sbase, mul, cidx)
                if self.rkey != key:
                    s.e(f"s_mul_i32 {sRot}, s{ROT0+cidx}, {mul}\ns_add_u32 {sRot}, {sRot}, {sbase}")
                    self.rkey = key
                sbase = sRot
            s.e(f"s_add_u32 {sSoW}, {sbase}, {((o0, o1)[h] + sg*dl) & 0xffffffff:#x}")
            s.e(f"buffer_load_dwordx4 {vo}, {srd_}, {sSoW} offen {'sc1 ' if name[0] == 'A' else ''}lds", tag=name)
            n -= 1
    rkey = None
    strict = False
    cred = 0
    def pace(self, s, cycles, mx=99):
        self.cred = min(self.cred + cycles * CFG['RATE'], CFG['BURST'])
        while self.q and mx > 0:
            mx -= 1
            e = self.q[0]
            cost = (8192 if self.log[e[0][0]][2] == 'all' else 4096) * (2 if e[0][0][0] == 'F' else 1)
            if self.cred < cost: break
            self.cred -= cost; self.pump(s, 1)
    def need(self, s, name):
        assert name in self.slot, f"{name} has no slot yet"
        while any(e[0][0] == name for e in self.q):
            print("  warning: forced DMA issue for", name, "in", s.name)
            self.pump(s)
        if self.log[name][1] is None: self.log[name][1] = s.nbar
        s.wait_tag(name)
def x_items(q):
    return [(f"XL{q}", sX, (f"v{XD}", f"v{XD+1}"), sXb, 0, 0, 32768, 256, lambda c: q), (f"XH{q}", sX, (f"v{XD}", f"v{XD+1}"), sXb, 65536, 65536, 32768, 256, lambda c: q)]
def w_items(name, srd_, voff, sbase, stride):
    return [(f"{name}{c}", srd_, voff, sbase, 0, 8 * stride, 64 * stride, 128 * stride, lambda ch, c=c: c) for c in range(4)]
ORDER = [4, 5, 6, 7, 16, 17, 18, 19, 8, 9, 10, 11, 20, 21, 22, 23, 12, 13, 14, 15, 0, 1, 2, 3, 24, 25, 26, 27]
def b_item(hf, c):
    nm = f"B{'ab'[hf]}{c}"
    if c < 7:
        o = hf * 896 * 1024 + ORDER[4 * c] * 16384
        return (nm, sW2, vDB, sB2, o, o + 8192, 448 * 1024)
    o = hf * 256 * 1024 + (c - 7) * 65536
    return (nm, sWo, vDB, sBo, o, o + 8192, 128 * 1024)
def a_item(hf, c):
    nm = f"A{'ab'[hf]}{c}"
    if c < 7:
        o = (56 * hf + ORDER[4 * c]) * 1024
        return (nm, sWs, vA16, sA2y, o, o + 144 * 1024, 28 * 1024)
    o = (16 * hf + 4 * (c - 7)) * 1024
    return (nm, sWs, vA16, sA2s, o, o + 144 * 1024, 8 * 1024)
def CB_(n): return f"B{'ab'[n & 1]}{n >> 1}"
def CA_(n): return f"A{'ab'[n & 1]}{n >> 1}"
def b_items(first):
    npre = CFG['NPB']
    it = [b_item(n & 1, n >> 1) for n in range(npre)]
    for n in range(18):
        it.append(a_item(n & 1, n >> 1))
        if npre <= n + 2 < 18: it.append(b_item(n & 1, (n + 2) >> 1))
        if n == CFG['XAT']: it.append(("BX", sX, vDB, "s91", 0, 8192, 0))
    return it

def mish(acc, tmp, so, tag):
    F = []
    for hb in range(2):
        a = acc + 8 * hb
        for j in range(8): F.append(f"v_mul_f32 v{tmp+j}, v{a+j}, {vRSL}")
        for j in range(8): F.append(f"v_exp_f32 v{tmp+j}, v{tmp+j}")
        for j in range(8): F.append(f"v_add_f32 v{tmp+j}, 1.0, v{tmp+j}")
        for j in range(8): F.append(f"v_fma_f32 v{tmp+j}, v{tmp+j}, v{tmp+j}, 1.0")
        for j in range(8): F.append(f"v_rcp_f32 v{tmp+j}, v{tmp+j}")
        for j in range(8): F.append(f"v_fma_f32 v{tmp+j}, v{tmp+j}, {vM2}, {vRS}")
        for j in range(8): F.append(f"v_mul_f32 v{tmp+j}, v{a+j}, v{tmp+j}")
        for j in range(4): F.append(f"v_cvt_pk_bf16_f32 v{a+j}, v{tmp+2*j}, v{tmp+2*j+1}")
        F.append((f"buffer_store_dwordx4 {R(a,4)}, {vA16}, {sWs}, {so} offen offset:{hb*1024} sc1", tag))
    return F
def bc(r):
    n = int(r[1:]); return R(n & ~1, 2), n & 1
def pk2(op, d, a, b, c=None):
    ops = [R(a, 2)]; lo = [0]; hi = [1]
    for x in (b, c):
        if x is None: continue
        if isinstance(x, int): ops.append(R(x, 2)); lo.append(0); hi.append(1)
        elif x[0] == 'v':
            p, o = bc(x); ops.append(p); lo.append(o); hi.append(o)
        else: ops.append(x); lo.append(0); hi.append(0)
    f = lambda L: "[" + ",".join(map(str, L)) + "]"
    return f"v_pk_{op}_f32 {R(d,2)}, " + ", ".join(ops) + f" op_sel:{f(lo)} op_sel_hi:{f(hi)}"
def mish_pk(acc, tmp, so, tag):
    F = []
    for hb in range(2):
        a = acc + 8 * hb; E = range(0, 8, 2)
        F += [pk2("mul", tmp + j, a + j, vRSL) for j in E] + [f"v_exp_f32 v{tmp+j}, v{tmp+j}" for j in range(8)]
        F += [pk2("add", tmp + j, tmp + j, "1.0") for j in E] + [pk2("fma", tmp + j, tmp + j, tmp + j, "1.0") for j in E]
        F += [f"v_rcp_f32 v{tmp+j}, v{tmp+j}" for j in range(8)]
        F += [pk2("fma", tmp + j, tmp + j, vM2, vRS) for j in E] + [pk2("mul", tmp + j, tmp + j, a + j) for j in E]
        F += [f"v_cvt_pk_bf16_f32 v{a+j}, v{tmp+2*j}, v{tmp+2*j+1}" for j in range(4)]
        F.append((f"buffer_store_dwordx4 {R(a,4)}, {vA16}, {sWs}, {so} offen offset:{hb*1024} sc1", tag))
    return F
def softmax_pk(P, out, t0, t1, tp):
    F = softmax(P, out, t0, t1)[:9]; E = range(0, 16, 2)
    F += [pk2("fma", P + j, P + j, vRSL, t0) for j in E] + [f"v_exp_f32 v{P+j}, v{P+j}" for j in range(16)]
    F += [pk2("add", tp, P, P + 2), pk2("add", tp + 2, P + 4, P + 6), pk2("add", tp, tp, P + 8), pk2("add", tp + 2, tp + 2, P + 10),
          pk2("add", tp, tp, P + 12), pk2("add", tp + 2, tp + 2, P + 14), pk2("add", tp, tp, tp + 2), f"v_add_f32 {t0}, v{tp}, v{tp+1}", f"v_rcp_f32 {t0}, {t0}"]
    F += [pk2("mul", P + j, P + j, t0) for j in E] + [f"v_cvt_pk_bf16_f32 v{out+j}, v{P+2*j}, v{P+2*j+1}" for j in range(8)]
    return F
def softmax(P, out, t0, t1):
    F = [f"v_max3_f32 {t0}, v{P}, v{P+1}, v{P+2}", f"v_max3_f32 {t1}, v{P+3}, v{P+4}, v{P+5}",
         f"v_max3_f32 {t0}, {t0}, v{P+6}, v{P+7}", f"v_max3_f32 {t1}, {t1}, v{P+8}, v{P+9}",
         f"v_max3_f32 {t0}, {t0}, v{P+10}, v{P+11}", f"v_max3_f32 {t1}, {t1}, v{P+12}, v{P+13}",
         f"v_max3_f32 {t0}, {t0}, v{P+14}, v{P+15}", f"v_max_f32 {t0}, {t0}, {t1}", f"v_mul_f32_e64 {t0}, -{t0}, {vRSL}"]
    for j in range(16): F.append(f"v_fma_f32 v{P+j}, v{P+j}, {vRSL}, {t0}")
    for j in range(16): F.append(f"v_exp_f32 v{P+j}, v{P+j}")
    F += [f"v_add_f32 {t0}, v{P}, v{P+1}", f"v_add_f32 {t1}, v{P+2}, v{P+3}"]
    for j in range(4, 16, 2):
        F += [f"v_add_f32 {t0}, {t0}, v{P+j}", f"v_add_f32 {t1}, {t1}, v{P+j+1}"]
    F += [f"v_add_f32 {t0}, {t0}, {t1}", f"v_rcp_f32 {t0}, {t0}"]
    for j in range(16): F.append(f"v_mul_f32 v{P+j}, v{P+j}, {t0}")
    for j in range(8): F.append(f"v_cvt_pk_bf16_f32 v{out+j}, v{P+2*j}, v{P+2*j+1}")
    return F
def pack16(acc, out): return [f"v_cvt_pk_bf16_f32 v{out+j}, v{acc+2*j}, v{acc+2*j+1}" for j in range(8)]
def phi_frags():
    F = ["v_bfe_u32 v25, v0, 2, 2", "v_lshrrev_b32 v26, 5, v0", "v_lshl_add_u32 v25, v26, 2, v25", "v_lshlrev_b32 v25, 5, v25",
         "v_bfe_u32 v26, v0, 4, 1", "v_lshl_add_u32 v25, v26, 4, v25", "v_bfe_u32 v26, v0, 1, 1", "v_lshl_add_u32 v25, v26, 3, v25",
         blk(f"s_lshl_b32 s4, {sCH}, 10\ns_add_u32 s4, s4, {SCR_PHI}\nv_add_u32 v25, s4, v25")]
    for h in range(2):
        for rd in range(2): F.append(f"ds_read_b64_tr_b16 {R(PHI+4*h+2*rd,2)}, v25 offset:{h*512 + rd*256}")
    F += ["v_bfe_u32 v26, v0, 2, 1", "v_mul_u32_u24 v26, 0x8000, v26", "v_lshl_or_b32 v26, v26, 16, v26"]
    for j in range(8): F.append(f"v_xor_b32 v{PHI+j}, v26, v{PHI+j}")
    return F

BIASL = {}
def prologue(s):
    s.e("s_load_dwordx2 s[64:65], s[0:1], 0\ns_load_dwordx8 s[68:75], s[0:1], 8\ns_load_dwordx8 s[76:83], s[0:1], 40")
    s.e("s_load_dwordx2 s[84:85], s[0:1], 80\ns_load_dwordx2 s[66:67], s[0:1], 72")
    s.e("s_cmp_ge_u32 s2, 256\ns_cbranch_scc1 L_end")
    s.e("v_lshrrev_b32 v2, 6, v0\nv_and_b32 v0, 63, v0\ns_and_b32 s3, s2, 7\ns_lshr_b32 s87, s2, 3")
    s.e(f"v_readfirstlane_b32 {sW}, v2")
    s.e(f"v_lshrrev_b32 v33, 4, v0\nv_and_b32 v34, 15, v0")
    s.e(f"s_cmp_lg_u32 {sW}, {CFG['PWW']}\ns_cbranch_scc1 L_nopw")
    s.e(f"s_getpc_b64 s[90:91]\nL_pc0:\ns_sub_u32 s90, s90, L_pc0-{KNAME}\ns_subb_u32 s91, s91, 0\ns_lshl_b32 s5, s87, 11\nv_lshlrev_b32 v35, 7, v34\nv_add_u32 v35, s5, v35")
    s.raw("global_load_dword v26, v35, s[90:91]")
    s.e("L_nopw:")
    s.e(f"s_and_b32 s5, s3, 1\ns_lshl_b32 s5, s5, 3\ns_and_b32 {sI}, s87, 7\ns_add_u32 {sI}, {sI}, s5")
    s.e(f"s_and_b32 {sRT2}, {sW}, 1\ns_lshl_b32 {sM0W}, {sW}, 11\ns_lshl_b32 s5, {sRT2}, 3")
    for h in range(2):
        s.e(f"v_add_u32 v35, {4*h}, v33\nv_add_u32 v36, s5, v35\nv_xor_b32 v36, v34, v36\nv_lshlrev_b32 v36, 4, v36\nv_lshl_add_u32 v{XD+h}, v35, 10, v36")
    s.e(f"s_lshr_b32 s{ROT0}, s3, 1\ns_lshl_b32 s{ROT0+1}, s3, 1\ns_add_u32 s{ROT0}, s{ROT0}, s{ROT0+1}")
    for c in range(1, 4): s.e(f"s_add_u32 s{ROT0+c}, s{ROT0}, {c}\ns_and_b32 s{ROT0+c}, s{ROT0+c}, 3")
    s.e(f"s_and_b32 s{ROT0}, s{ROT0}, 3")
    s.e(f"s_lshl_b32 {sXb}, {sI}, 17\ns_lshl_b32 s5, {sW}, 13\ns_add_u32 {sXb}, {sXb}, s5\ns_mov_b32 s10, {2048*512*2}\ns_mov_b32 s11, 0x20000")
    s.e("v_lshrrev_b32 v36, 3, v0\nv_and_b32 v37, 7, v0\nv_lshlrev_b32 v38, 1, v36\nv_and_b32 v38, 4, v38\nv_xor_b32 v37, v37, v38\nv_lshlrev_b32 v37, 4, v37")
    s.raw("s_waitcnt lgkmcnt(0)")
    s.e("s_mov_b32 s8, s64\ns_and_b32 s9, s65, 0xffff")
    srd(s, sWs, "s84", "s85", 0x10000000)
    s.e(f"v_lshlrev_b32 {vA16}, 4, v0\ns_cmp_lg_u32 s3, 1\ns_cbranch_scc1 L_noinit")
    s.e("v_mov_b32 v40, 0\nv_mov_b32 v41, 0\nv_mov_b32 v42, 0\nv_mov_b32 v43, 0")
    s.e(f"s_lshl_b32 s5, s87, 13\ns_lshl_b32 s4, {sW}, 10\ns_add_u32 s5, s5, s4\ns_add_u32 s5, s5, {Z_OFF}")
    s.raw(f"buffer_store_dwordx4 v[40:43], {vA16}, {sWs}, s5 offen sc1")
    s.e("s_add_u32 s5, s5, 0x40000")
    s.raw(f"buffer_store_dwordx4 v[40:43], {vA16}, {sWs}, s5 offen sc1")
    s.e("L_noinit:")
    r0 = Ring(x_items(0) + x_items(1), range(9), 0); r0.assign(s)
    r0.pump(s, 4)
    s.e(f"v_mul_u32_u24 {vDq}, 3072, v36\nv_add_u32 {vDq}, {vDq}, v37\nv_mul_u32_u24 {vD1}, 3584, v36\nv_add_u32 {vD1}, {vD1}, v37")
    s.e(f"s_lshr_b32 s5, s3, 1\ns_lshl_b32 s5, s5, 2\ns_lshr_b32 s6, s87, 3\ns_add_u32 s5, s5, s6")
    s.e(f"s_lshr_b32 {sG}, s5, 1\ns_and_b32 {sTY}, s5, 1\ns_lshl_b32 {sRB}, s3, 2\ns_add_u32 {sRB}, {sRB}, s6\ns_and_b32 {sCB}, s87, 7")
    s.e(f"s_lshr_b32 {sKQ}, {sW}, 1\ns_and_b32 {sRT}, {sW}, 3\ns_lshr_b32 {sCH}, {sW}, 2\ns_mov_b32 s88, s2")
    srd(s, sWq, "s68", "s69", 512 * 1536 * 2)
    srd(s, sW1, "s76", "s77", 512 * 1792 * 2)
    def wpair(c, first):
        l1, l2 = label(), label()
        s.e(f"s_cmp_eq_u32 {sTY}, 0\ns_cbranch_scc1 {l1}")
        vm0 = list(s.vm)
        for typ, it in (('B', w_items("W", sW1, vD1, sUA, 3584)), ('A', w_items("W", sWq, vDq, sUA, 3072))):
            s.vm = list(vm0)
            if typ == 'A': s.e(f"{l1}:")
            if first: BIASL[typ] = unit_bases(s, typ)
            r = Ring([it[c]], [4 + c], 0); r.assign(s); r.pump(s, 2)
            if typ == 'B': s.e(f"s_branch {l2}")
        s.e(f"{l2}:")
    wpair(0, True)
    s.e(f"v_lshl_add_u32 {vDB}, v36, 10, v37")
    prologue2(s)
    r0.rkey = None
    r0.pump(s, 4)
    wpair(1, False)

def prologue2(s):
    srd(s, sPhi, "s70", "s71", 32 * 512)
    srd(s, sB1, "s78", "s79", 1792 * 2)
    srd(s, sW2, "s80", "s81", 1792 * 512 * 2)
    srd(s, sWo, "s72", "s73", 512 * 512 * 2)
    srd(s, sOut, "s82", "s83", 2048 * 512 * 2)
    srd(s, sDbg, "s66", "s67", 256)
    s.e(f"s_mov_b32 {sBID}, s88\ns_mov_b32 {sC11}, 0x3f803f80")
    s.e(f"v_lshrrev_b32 v36, 2, v0\nv_and_b32 v37, 3, v0\nv_lshlrev_b32 v37, 4, v37\nv_mul_u32_u24 {vD5}, 3584, v36\nv_add_u32 {vD5}, {vD5}, v37")
    s.e(f"v_and_b32 {vP4}, 31, v0\nv_lshlrev_b32 {vP4}, 2, {vP4}")
    s.e(f"v_mov_b32 v29, 0\nv_mov_b32 {vFO}, {BIG}\nv_cmp_eq_u32 vcc, 0, v0\nv_cndmask_b32 {vFO}, {vFO}, 0, vcc")
    s.e("v_bfe_u32 v36, v0, 2, 2\nv_and_b32 v37, 3, v0\nv_bfe_u32 v38, v0, 4, 1\nv_lshrrev_b32 v39, 5, v0")
    s.e("v_lshlrev_b32 v40, 3, v37\nv_lshl_add_u32 v40, v38, 5, v40\nv_lshl_add_u32 v41, v39, 3, v36")
    s.e(f"v_lshrrev_b32 v42, 1, v36\nv_xor_b32 v42, {sCH}, v42\nv_lshlrev_b32 v42, 6, v42")
    s.e(f"v_lshl_add_u32 v43, v41, 7, v40\nv_add_u32 v43, v43, v42")
    for j in range(4):
        s.e(f"s_xor_b32 s5, {sRT}, {j}\ns_lshl_b32 s5, s5, 12\ns_add_u32 s5, s5, {SLOT}\nv_add_u32 v{VW+j}, s5, v43\nv_add_u32 v{VW+4+j}, 0x10000, v{VW+j}")
    s.e(f"v_and_b32 v44, 31, v0\ns_lshl_b32 s5, {sRT}, 5\nv_add_u32 v45, s5, v44\nv_xor_b32 v46, v39, v34\nv_lshlrev_b32 v46, 4, v46\nv_lshl_add_u32 v{XR}, v45, 8, v46")
    s.e(f"s_lshl_b32 s5, {sRT}, 6\nv_xor_b32 v{XR}, s5, v{XR}")
    for t in range(1, 8): s.e(f"v_xor_b32 v{XR+t}, {t<<5}, v{XR}")
    s.e(f"v_lshlrev_b32 v44, 2, v38\nv_cmp_eq_u32 vcc, v44, v34\nv_mov_b32 v44, {sC11}\nv_cndmask_b32 v{ASEL}, 0, v44, vcc")
    for j in range(1, 4): s.e(f"v_mov_b32 v{ASEL+j}, v{ASEL}")
    s.e(f"v_mov_b32 v{CF+4}, 0\nv_mov_b32 v{CF+5}, 0")
    s.e(f"s_lshl_b32 s3, {sI}, 2\ns_add_u32 s3, s3, {sRT}\ns_mul_i32 {sAF}, s3, {144*1024}")
    s.e(f"s_mul_i32 {sKS}, {sG}, {14*1024}\ns_add_u32 {sKS}, {sKS}, {sAF}")
    s.e(f"s_lshl_b32 {sFL}, s3, 2\ns_lshr_b32 s4, {sG}, 1\ns_add_u32 {sFL}, {sFL}, s4\ns_mul_i32 {sFL}, {sFL}, 640")
    s.e(f"s_and_b32 s4, {sG}, 1\ns_lshl_b32 s4, s4, 3\ns_lshl_b32 s5, {sCH}, 2\ns_add_u32 s4, s4, s5\ns_add_u32 {sFL}, {sFL}, s4\ns_add_u32 {sFL}, {sFL}, {ACTFLAG_OFF}")
    s.e(f"s_mul_i32 {sAF2}, {sRB}, {288*1024}\ns_lshl_b32 s3, {sRT}, 10\ns_add_u32 {sAF2}, {sAF2}, s3")
    s.e(f"s_mul_i32 {sFL2}, {sRB}, 5120\ns_add_u32 {sFL2}, {sFL2}, {ACTFLAG_OFF}")
    s.e(f"s_mul_i32 {sB2}, {sCH}, {448*1024}\ns_lshl_b32 s4, {sRT}, 14\ns_lshl_b32 s5, {sCB}, 7\ns_add_u32 s4, s4, s5\ns_add_u32 {sB2}, {sB2}, s4")
    s.e(f"s_lshl_b32 {sBo}, {sCH}, 17\ns_add_u32 {sBo}, {sBo}, s4")
    s.e(f"s_lshl_b32 s3, {sG}, 2\ns_add_u32 s3, s3, {sKQ}\ns_mul_i32 {sKVs}, s3, 2176\ns_add_u32 {sKVs}, {sKVs}, {KV_OFF}")
    s.e(f"s_lshl_b32 s3, {sG}, 3\ns_add_u32 s3, s3, {sW}\ns_lshl_b32 {sKVF}, s3, 11\ns_add_u32 {sKVF}, {sKVF}, {KVFLAG_OFF}")
    s.e(f"s_mul_i32 s3, {sCH}, {28*1024}\ns_add_u32 {sA2y}, {sAF2}, s3")
    s.e(f"s_lshl_b32 s3, {sCH}, 13\ns_add_u32 {sA2s}, {sAF2}, s3\ns_add_u32 {sA2s}, {sA2s}, {112*1024}")
    s.e(f"v_lshrrev_b32 {vT}, 1, {vP4}")

def unit_bases(s, typ):
    s.e(f"s_mul_i32 s3, {sW}, {16*3072}\ns_lshl_b32 s4, {sG}, 7\ns_add_u32 s3, s3, s4")
    s.e(f"s_mul_i32 s4, {sG}, 448\ns_and_b32 s5, {sG}, 1\ns_cmp_eq_u32 s5, 0")
    if typ == 'A':
        s.e(f"s_cselect_b32 s5, 0, 320\ns_add_u32 s4, s4, s5")
        s.e(f"s_add_u32 {sUA}, s3, 1024\ns_add_u32 {sUB}, s3, 2048")
        s.e(f"s_mul_i32 {sUC}, {sW}, {16*3584}\ns_add_u32 {sUC}, {sUC}, s4")
        s.e(f"s_lshl_b32 s5, {sCH}, 6\ns_add_u32 s92, s4, s5")
        return [f"buffer_load_ushort v{BI0}, {vT}, {sB1}, s92 offen"]
    s.e(f"s_cselect_b32 s5, 128, 64\ns_cselect_b32 {sUD}, 384, 0")
    s.e(f"s_add_u32 s5, s4, s5\ns_add_u32 s92, s4, {sUD}\ns_mov_b32 {sUC}, s3")
    s.e(f"s_mul_i32 {sUA}, {sW}, {16*3584}\ns_add_u32 {sUA}, {sUA}, s5\ns_add_u32 {sUB}, {sUA}, 128")
    s.e(f"s_mul_i32 {sUD}, {sRT}, {32*3584}\ns_add_u32 {sUD}, {sUD}, s92")
    s.e(f"s_lshl_b32 s3, {sCH}, 6\ns_add_u32 s93, s5, s3")
    return [f"buffer_load_ushort v{BI2}, {vT}, {sB1}, s92 offen", f"buffer_load_ushort v{BI0}, {vT}, {sB1}, s93 offen",
            f"buffer_load_ushort v{BI1}, {vT}, {sB1}, s93 offen offset:128"]

def start(s, ring, n0):
    ring.assign(s, upto=ring.upto0)
    pre = ["XL0", "XH0", n0 + "0", "XL1", "XH1", n0 + "1"]
    assert [ring.slot[x] for x in pre] == [0, 1, 4, 2, 3, 5]
    ring.q = [e for e in ring.q if e[0][0] not in pre]
    s.vm = [(d, (n0 + tg[1] if tg in ("W0", "W1") else tg)) for d, tg in s.vm]
def touch_all(s, which):
    specs = dict(x=(sX, 64, 4), q=(sWq, 48, 5), w1=(sW1, 56, 6), w2=(sW2, 56, 4), wo=(sWo, 16, 5))
    for nm in which:
        srd_, nl, wv = specs[nm]
        lab = label()
        s.e(f"s_cmp_lg_u32 {sW}, {wv}\ns_cbranch_scc1 {lab}")
        s.e(f"v_min_u32 v47, {nl-1}, v0\nv_lshlrev_b32 v47, 7, v47\ns_mul_i32 s5, s88, {nl*128}\ns_mov_b32 m0, {SCR + 15360}\ns_nop 0")
        s.raw(f"buffer_load_dword v47, {srd_}, s5 offen lds")
        s.e(f"{lab}:")
def late_loads(biasloads):
    def f(s):
        s.e(f"v_lshrrev_b32 {vT}, 1, {vP4}")
        for x in biasloads: s.e(x)
        s.e(f"s_lshl_b32 s3, {sG}, 11\ns_lshl_b32 s4, {sRT2}, 10\ns_add_u32 s3, s3, s4\ns_add_u32 m0, s4, {SCR_PHI}")
        s.e(f"buffer_load_dwordx4 {vA16}, {sPhi}, s3 offen lds", tag="phi")
    return f

MF = "v_mfma_f32_32x32x16_bf16"
def bar(s, ring, name, needs=(), rel=(), owner='all', lg0=False, upto=None, extra=(), maxn=99):
    if CFG.get('SB'): stamp("<" + name)(s)
    for n in needs: ring.need(s, n)
    if lg0: s.wait(lg=0)
    s.wait_dswrites()
    pend = [k for k, (_, tg) in enumerate(s.lg) if tg in rel]
    if pend:
        s.wait(lg=len(s.lg) - 1 - max(pend))
    for n in rel: s.released.add(n)
    if extra: assert not any(tg is None for _, tg in s.lg), f"scratch release at {name} with untagged LDS ops pending"
    s.e("s_barrier")
    stamp(name)(s)
    s.marks[name] = 1
    for n in rel: ring.release(n)
    ring.free += list(extra)
    if owner == 'all':
        k = 'x' if name[0] == 'b' else ('a' if name[0] in 'ae' else 'p')
        if k in CFG['OWN'] and not (s.name[0] == 'B' and name in ('c3', 'd3', 'e1')): owner = 0
    ring.assign(s, owner, upto, maxn)
def B(ring, *a, **k): return lambda s: bar(s, ring, *a, **k)

class MSeg:
    def __init__(self, ring, u, ch, events=None, posts=None, xpass=False, dma=0):
        self.ring, self.u, self.ch, self.ev, self.posts, self.xp, self.dma = ring, u, ch, events or {}, posts or {}, xpass, dma
        self.nr = 0; self.hs = None
    def reads(self, s, t):
        u, ring = self.u, self.ring
        for e in self.ev.get(t, []): e(s)
        c, p = t // 8, t % 8
        if self.xp:
            for x in {0: (0, 1), 1: (2, 3, 4), 2: (5, 6, 7)}.get(p, ()):
                s.e(f"ds_read_b128 {R(XA+32*c+4*x,4)}, v{XR+x} offset:{(c&1)*32768}", tag=f"XL{c}")
        it = f"{u['name']}{c}" if u['kind'] == 'w' else f"{u['name']}{c//2}"
        assert ring.log[it][1] is not None, f"{it} read before certified"
        assert it not in s.released and not (self.xp and p < 3 and f"XL{c}" in s.released)
        sl = ring.slot[it]; buf = WB + 4 * (t % 4)
        if u['kind'] == 'h5' and self.hs != sl:
            if self.hs is None:
                s.e("v_bfe_u32 v116, v0, 2, 2\nv_lshrrev_b32 v117, 5, v0\nv_lshl_add_u32 v116, v117, 3, v116\nv_lshlrev_b32 v116, 6, v116\nv_bfe_u32 v117, v0, 4, 1\nv_lshl_add_u32 v116, v117, 5, v116\nv_and_b32 v117, 3, v0\nv_lshl_add_u32 v116, v117, 3, v116")
                for j in range(4): s.e(f"s_xor_b32 s3, {sRT}, {j}\ns_lshl_b32 s3, s3, 11\ns_add_u32 s3, s3, {sl*SLOT}\nv_add_u32 v{HR+j}, s3, v116")
            else:
                for j in range(4): s.e(f"v_add_u32 v{HR+j}, {((sl-self.hs)*SLOT) & 0xffffffff:#x}, v{HR+j}")
            self.hs = sl
        for k in range(2):
            if u['kind'] == 'w':
                w = 0 if sl <= 4 else 1
                r, off = f"v{VW+4*w+p//2}", (sl - 1 - 4 * w) * SLOT + (p & 1) * 2048 + k * 512
            else: r, off = f"v{HR+p//2}", (c % 2) * 8192 + (p & 1) * 1024 + k * 256
            s.e(f"ds_read_b64_tr_b16 {R(buf+2*k,2)}, {r} offset:{off}", tag=it); s.seen.add(it)
    def pre(self, s, n=None):
        n = CFG['PF'] if n is None else n
        while self.nr < n: self.reads(s, self.nr); self.nr += 1
    def run(self, s, nxt=None, F=None, budget=0):
        u = self.u; ch = self.ch
        credit = 0
        if CFG['PRIO'] and not self.xp: s.e("s_setprio 1")
        self.pre(s)
        for t in range(32):
            c, p = t // 8, t % 8
            buf = WB + 4 * (t % 4)
            cin = R(u['acc'], 16) if t > 0 else "0"
            a, b = (R(buf, 4), R(XA + 4 * t, 4)) if u['trans'] else (R(XA + 4 * t, 4), R(buf, 4))
            s.e(f"{MF} {R(u['acc'],16)}, {a}, {b}, {cin}")
            if p < 2 and not (CFG.get('NOCS') and t > 0): s.e(f"v_mfma_f32_16x16x32_bf16 {R(CSA,4)}, {R(ASEL,4)}, {R(buf,4)}, {R(CSA,4) if t > 0 else '0'}")
            if self.nr < 32: self.reads(s, self.nr); self.nr += 1
            elif nxt is not None: nxt.pre(s, t - 31 + CFG['PF'])
            if self.xp and t < 25 and CFG['PAR'] == 2:
                if t % 2 == ch or ('x' in CFG['OWN'] and ch == 0): self.ring.pump(s, 2)
            elif self.xp and t < 25: self.ring.pump(s, 1)
            elif self.xp: self.ring.pace(s, CFG['ST'])
            elif self.dma and CFG['PAR']:
                if 'p' in CFG['OWN']: self.ring.pace(s, self.dma, 1)
                elif t % 2 == ch: self.ring.pace(s, 2 * self.dma, 2)
            elif self.dma: self.ring.pace(s, self.dma)
            if t == 27:
                s.e(f"s_lshl_b32 s3, {sRT}, 2\ns_add_u32 s3, s3, {SCR_CS + u['csi']*2048 + ch*1024}\nv_add_u32 v{CSA+1}, s3, {vA16}\nds_write_b32 v{CSA+1}, v{CSA}")
            if self.xp and p in (1, 3):
                for x in ((ch, ch + 2) if p == 1 else (ch + 4, ch + 6)):
                    for j in range(4):
                        r = XA + 32 * c + 4 * x + j
                        first = (c == 0 and p == 1 and x == ch and j < 2)
                        s.e(f"v_dot2_f32_bf16 v{STA+(j&1)}, v{r}, {sC11}, {'0' if first else f'v{STA+(j&1)}'}")
                        s.e(f"v_dot2_f32_bf16 v{STA+2+(j&1)}, v{r}, v{r}, {'0' if first else f'v{STA+2+(j&1)}'}")
                if t == 27:
                    q = f"v{STA+2}"
                    s.e(f"v_add_f32 v{STA}, v{STA}, v{STA+1}\nv_add_f32 v{STA+1}, v{STA+2}, v{STA+3}\nv_lshrrev_b32 {q}, 5, v0\nv_lshlrev_b32 {q}, 3, {q}\n"
                        f"v_lshl_add_u32 {q}, {vP4}, 3, {q}\ns_lshl_b32 s3, {sRT}, 10\ns_add_u32 s3, s3, {SCR_ST + ch*16}\nv_add_u32 {q}, s3, {q}\nds_write_b64 {q}, {R(STA,2)}")
            for e in self.posts.get(t, []): e(s)
            if F is not None: credit = fill(s, F, (budget(t) if callable(budget) else budget) + min(credit, CFG['CRED']))
        if CFG['PRIO'] and not self.xp: s.e("s_setprio 0")

def fill(s, F, budget, force=False, pop=False):
    while budget > 0 and F:
        f = F[0]
        if isinstance(f, tuple) and f[0] == 'wait':
            if f[1] in s.marks: F.pop(0); continue
            return 0
        if isinstance(f, tuple) and f[0] == 'nextbar': f = F[0] = ('barge', s.nbar + 1)
        if isinstance(f, tuple) and f[0] in ('barge', 'bhold'):
            if s.nbar >= f[1]: F.pop(0); continue
            return 0
        if isinstance(f, tuple) and f[0] in ('hold', 'tilt'):
            if pop: F.pop(0); continue
            return 0
        if isinstance(f, tuple) and f[0] == 'gap':
            f = F[0] = ('until', s.n_issued + f[1])
        if isinstance(f, tuple) and f[0] == 'until':
            if s.n_issued >= f[1] or force: F.pop(0); continue
            return 0
        if callable(f):
            F.pop(0); n0 = s.n_issued; f(s); budget -= max(1, (s.n_issued - n0) * 0.5); continue
        txt, tag = (f if isinstance(f, tuple) else (f, None))
        need, age = s.cost(txt)
        if not force and (need > 1 or (age is not None and age < CFG['AGE'])): return budget
        F.pop(0); s.e(txt, tag)
        k = I(txt).kind
        budget -= 2 if k == 'trans' else (0.5 if k in ('salu', 'ds', 'vm') else 1)
    return 0
def until(s, ring, F, name, every=None, nopace=False):
    n = 0
    while name not in s.marks:
        assert F, name
        if isinstance(F[0], tuple) and F[0][0] == 'bhold': F.pop(0)
        l = len(F); fill(s, F, 1, force=True, pop=True)
        assert len(F) < l, ("stuck", F[0], name, s.name)
        n += 1
        if not nopace: ring.pace(s, 9)
    return n
def vrun(s, ring, F, slots, every=None, flush=True):
    every = every or CFG['VD']
    while slots > 0 and F:
        l = len(F); fill(s, F, min(every, slots), force=True); slots -= every
        ring.pace(s, 9 * every)
        if len(F) == l: break
    if flush: ring.pump(s, 99)

def vseg(s, ring, F, every=None, flush=True):
    every = every or CFG['VD']
    n = 0
    for f in F:
        if isinstance(f, tuple) and f[0] in ('after', 'skip', 'wait', 'gap', 'until'): continue
        drain(s, [f]); n += 1
        ring.pace(s, 10)
    if flush: ring.pump(s, 99)
def split(F, frac, item):
    k = int(len(F) * frac)
    return F[:k] + [item] + F[k:]

def pass0(s, ring, u, ch, bl, nextname, nextneed):
    ev = {}
    NBX = CFG['NBX']; n = u['name']
    for c in range(4):
        def b0(s, c=c):
            if c == 3: s.wait_tag("phi")
            lag = CFG['LG0'] == 0
            if lag: rel = [f"{n}{c-2}"] if (c >= 2 and c - 1 >= NBX) else []
            else: rel = [f"{n}{c-1}"] if c else []
            if c - 1 >= NBX: rel += [f"XL{c-1}", f"XH{c-1}"]
            up = CFG['UP'][2 * c]
            bar(s, ring, f"b0{c}", [f"{n}{c}", f"XL{c}", f"XH{c}"] + (nextneed if (c == 3 and NBX < 4) else []), rel, lg0=not lag, upto=(nextname[0] + str(up) if up < 4 else None))
            if c == 0 and ch == 0:
                lab = label()
                s.e(f"s_and_b32 s3, {sBID}, 7\ns_cmp_lg_u32 s3, 1\ns_cbranch_scc1 {lab}\ns_cmp_lg_u32 {sW}, 0\ns_cbranch_scc1 {lab}\ns_lshl_b32 s3, s87, 2")
                s.raw(f"buffer_store_dword {vOne}, {vFO}, {sDbg}, s3 offen offset:128 sc1")
                s.e(f"{lab}:")
        def bx(s, c=c):
            s.wait_regs([f"v{r}" for r in range(XA + 32 * c, XA + 32 * c + 32)])
            bar(s, ring, f"bx{c}", nextneed if c == 3 else [], [f"XL{c}", f"XH{c}"] + ([f"{n}{c-1}"] if (c and CFG['LG0'] == 0) else []),
                upto=(nextname[0] + str(CFG['UP'][2 * c + 1]) if c < 3 else None))
        ev[8 * c] = [b0]
        if c < NBX: ev[8 * c + 4] = [bx]
    ring.c1rel = (["XL3", "XH3"] if NBX < 4 else []) + ([f"{n}2"] if (CFG['LG0'] == 0 and NBX < 4) else [])
    return MSeg(ring, u, ch, ev, {CFG['LLT']: [late_loads(bl)], CFG['TBT']: [lambda s: touchB(s)], CFG['TWT']: [lambda s: touchW(s)]}, xpass=True, dma=1)

def stats_fin(T):
    F = [blk(f"s_lshl_b32 s4, {sRT}, 10\ns_add_u32 s4, s4, {SCR_ST}\nv_lshlrev_b32 {vT}, 3, {vP4}\nv_add_u32 {vT}, s4, {vT}"),
         f"ds_read_b128 {R(T,4)}, {vT}", f"ds_read_b128 {R(T+4,4)}, {vT} offset:16",
         blk(f"s_lshl_b32 s4, {sRT}, 7\ns_add_u32 s4, s4, {SCR_RS}\nv_add_u32 {vT}, s4, {vP4}\nv_cmp_gt_u32 s[94:95], 32, v0")]
    a, b = f"v{T}", f"v{T+1}"
    F += [f"v_add_f32 {a}, {a}, v{T+2}", f"v_add_f32 {b}, {b}, v{T+3}", f"v_add_f32 v{T+4}, v{T+4}, v{T+6}", f"v_add_f32 v{T+5}, v{T+5}, v{T+7}",
          f"v_add_f32 {a}, {a}, v{T+4}", f"v_add_f32 {b}, {b}, v{T+5}", f"v_mul_f32 {a}, 0xbb000000, {a}", f"v_mul_f32 {b}, 0x3b000000, {b}",
          f"v_fma_f32 {b}, -{a}, {a}, {b}", f"v_max_f32 {b}, 0, {b}", f"v_cvt_pk_bf16_f32 {b}, {b}, {b}", f"v_lshlrev_b32 {b}, 16, {b}",
          f"v_add_f32 {b}, 0x3727c5ac, {b}", f"v_cvt_pk_bf16_f32 {b}, {b}, {b}", f"v_lshlrev_b32 {b}, 16, {b}", f"v_sqrt_f32 {b}, {b}",
          f"v_cvt_pk_bf16_f32 {b}, {b}, {a}", f"v_lshlrev_b32 {vRS}, 16, {b}", f"v_rcp_f32 {vRS}, {vRS}",
          f"v_cndmask_b32 v{CF+2}, 0, {b}, s[94:95]", f"v_lshrrev_b32 v{CF+3}, 16, v{CF+2}",
          f"v_mul_f32 {vRSL}, 0x3fb8aa3b, {vRS}", f"v_mul_f32 {vM2}, -2.0, {vRS}", f"ds_write_b32 {vT}, {vRS}"]
    return F
def correct(u, ch, T, bias=None):
    F = [f"v_lshlrev_b32 v{T}, 2, {vP4}", f"v_add_u32 v{T}, {SCR_CS + u['csi']*2048 + ch*1024}, v{T}", f"ds_read_b128 {R(T,4)}, v{T}",
         f"v_add_f32 v{T}, v{T}, v{T+1}", f"v_add_f32 v{T+2}, v{T+2}, v{T+3}", f"v_add_f32 v{T}, v{T}, v{T+2}",
         f"v_cvt_pk_bf16_f32 v{T+1}, v{T}, v{T}", f"v_and_b32 v{CF}, 0xffff0000, v{T+1}", f"v_sub_f32 v{T}, v{T}, v{CF}", f"v_cvt_pk_bf16_f32 v{CF+1}, v{T}, v{T}"]
    if bias is not None: F.append(f"v_or_b32 v{CF}, v{CF}, v{bias}")
    a, b = (R(CF, 4), R(CF + 2, 4)) if u['trans'] else (R(CF + 2, 4), R(CF, 4))
    F.append(f"{MF} {R(u['acc'],16)}, {a}, {b}, {R(u['acc'],16)}")
    return F

def mark(name): return lambda s: s.marks.__setitem__(name, 1)
YA, SA, AB, XT = 224, 32, 240, 48
vB0, vA0 = "v5", "v24"
NRI = 3
def bnm(ch, c): return f"B{'ab'[ch]}{c}"
def breg(t): return XA + 4 * (t % 24)
def bread(ring, t):
    def f(s):
        nm = CB_(t // 8)
        assert ring.log[nm][1] is not None and nm not in s.released, nm
        sl = ring.slot[nm]
        if ring.bsl != sl:
            s.e(f"v_add_u32 {vB0}, {((sl - ring.bsl) * SLOT) & 0xffffffff:#x}, {vB0}"); ring.bsl = sl
        for k in range(2): s.e(f"ds_read_b64_tr_b16 {R(breg(t) + 2*k, 2)}, {vB0} offset:{(t%8)*2048 + k*1024}", tag=nm)
    return f
def aread(ring, t):
    def f(s):
        nm = CA_(t // 8)
        assert ring.log[nm][1] is not None and nm not in s.released, nm
        sl = ring.slot[nm]
        if ring.asl != sl:
            s.e(f"v_add_u32 {vA0}, {((sl - ring.asl) * SLOT) & 0xffffffff:#x}, {vA0}"); ring.asl = sl
        s.e(f"ds_read_b128 {R(AB + 4 * (t % 4), 4)}, {vA0} offset:{(t%8)*2048}", tag=nm)
    return f
def pulln(ring, ch, n): return [bread(ring, 8 * n + k) for k in range(8)] if ch == 0 else []
def p2_setup(ring):
    def chk(s):
        assert not any(x[0][0] == 'F' for x in ring.items) and not any(x[0][0][0] == 'F' for x in ring.q)
        ring.bsl = 0; ring.asl = 0
    if ring.ch == 1:
        return [chk, f"v_bfe_u32 {vB0}, v0, 2, 3", f"v_mul_u32_u24 {vB0}, 640, {vB0}", f"v_and_b32 {vA0}, 3, v0", f"v_lshl_add_u32 {vB0}, {vA0}, 2, {vB0}"]
    return [chk, f"v_bfe_u32 {vB0}, v0, 2, 2", f"v_lshrrev_b32 {vA0}, 5, v0", f"v_lshl_add_u32 {vB0}, {vA0}, 2, {vB0}", f"v_lshlrev_b32 {vB0}, 7, {vB0}",
     f"v_bfe_u32 {vA0}, v0, 3, 1", f"v_lshl_add_u32 {vB0}, {vA0}, 6, {vB0}", f"v_bfe_u32 {vA0}, v0, 4, 1", f"v_lshl_add_u32 {vB0}, {vA0}, 5, {vB0}",
     f"v_and_b32 {vA0}, 3, v0", f"v_lshl_add_u32 {vB0}, {vA0}, 3, {vB0}",
     blk(f"s_lshl_b32 s3, {sKQ}, 6\nv_xor_b32 {vB0}, s3, {vB0}\ns_lshl_b32 s3, {sRT2}, 10\nv_add_u32 {vA0}, s3, {vA16}")]
def fin_setup(): return []
PH = {0: (0, 0xffffffff, 'f1'), 4: (128, 0xffffffff, 'f2'), 8: (384, 0x55555555, 'f3'), 10: (256, 0xffffffff, 'f3'), 14: (512, 0xffffffff, 'fo')}
XCHK = {}
def endk(s, ring):
    if PROFILE:
        s.raw("s_waitcnt vmcnt(0) lgkmcnt(0)")
        stamp("end")(s)
        s.raw("s_waitcnt lgkmcnt(0)")
        n = len(s.snames)
        for i in (n - 2, n - 1): s.raw(f"v_writelane_b32 v29, s{STAMP0+2*(i%4)}, {i}")
        s.e(f"v_subrev_u32 v29, s96, v29\nv_lshlrev_b32 v16, 2, v0")
        s.raw("s_memrealtime s[84:85]\ns_waitcnt lgkmcnt(0)\nv_writelane_b32 v29, s58, 62\nv_writelane_b32 v29, s84, 63")
        s.e(f"s_lshl_b32 s3, {sBID}, 11\ns_lshl_b32 s4, {sW}, 8\ns_add_u32 s3, s3, s4\ns_add_u32 s3, s3, {PROF_OFF}")
        s.e(f"buffer_store_dword v29, v16, {sWs}, s3 offen")
        if CFG.get('DBG') is not None:
            lab = label()
            s.e(f"s_cmp_lg_u32 {sBID}, {CFG['DBG']}\ns_cbranch_scc1 {lab}\ns_cmp_lg_u32 {sW}, 0\ns_cbranch_scc1 {lab}")
            idx = list(range(n - 1, -1, -3))[:16][::-1]
            for k, i in enumerate(idx):
                s.raw(f"v_readlane_b32 s4, v29, {i}\ns_nop 1\nv_mov_b32 v17, s4\nbuffer_store_dword v17, {vFO}, {sDbg}, 0 offen offset:{4*k}\ns_nop 1")
            s.e(f"{lab}:")
            if s.name in ('A0', 'B0'): print("DBG", s.name, [s.snames[i] for i in idx])
        open(f"snames_{s.name}.txt", "w").write(" ".join(s.snames))
    s.e("s_endpgm")
    s.slots = dict(ring.slot)
    print("   ring", s.name, " ".join(f"{k}:{v[0]}>{v[1]}" for k, v in ring.log.items()))

def gate0(ring):
    def g(s):
        assert 'f1' in s.marks
        poll_check(s, sWs, sFL2, 0xffffffff, vo=vB0); s.marks[('chk', 0)] = 1
    if ring.ch == 1 and CFG['EAR']: ring.gate[CA_(0)] = g
def earlyA(ring, f):
    def h(s):
        if CFG['EAR']: ring.lim = CA_(CFG['EAR'] - 1); ring.strict = True
        f(s)
    return h
def aphase(s, ring, ch, F, rel0):
    typ = s.name[0]
    def cbar(n):
        needs = [CA_(n)] + ([CB_(n + 2)] if NRI <= n + 2 < 18 else []) + (['BX'] if n == CFG['XAT'] + 1 else [])
        rel = (rel0 if n == 0 else [CA_(n - 1)] + ([CB_(n + 1)] if NRI <= n + 1 < 18 else []))
        if not ring.items: rel = []
        x9 = (n == CFG['S9' + typ])
        if x9: assert 'scrfree' in s.marks, s.name
        bar(s, ring, f"a{n}", needs, rel, owner=1, extra=([9] if x9 else []))
    if ch == 1:
        s.e(f"s_lshl_b32 s91, {sRB}, 16\ns_lshl_b32 s4, {sRT}, 14\ns_add_u32 s91, s91, s4\ns_lshl_b32 s4, {sCB}, 7\ns_add_u32 s91, s91, s4")
        polled = {0}
        PRG = lambda n0: vPoll if n0 == 0 else f"v{200 + n0}"
        for n0, (imm, mask, mk) in PH.items():
            def g(s, n0=n0, imm=imm, mask=mask, mk=mk):
                k = until(s, ring, F, mk, nopace=True)
                if k: print("   forced", k, "fillers for", mk, "in", s.name)
                if n0 not in polled: poll_issue(s, sWs, sFL2, PRG(n0), imm=imm, vo=vB0); polled.add(n0); print("   late poll", n0, s.name)
                XCHK[(typ, mk, n0)] = s.nbar
                poll_check(s, sWs, sFL2, mask, PRG(n0), imm=imm, vo=vB0); s.marks[('chk', n0)] = 1
            if ('chk', n0) not in s.marks: ring.gate[CA_(n0)] = g
        LV = CFG['LV' + typ]; bl_ = [len(ring.q)]
        for n in range(18):
            def polls(pos):
                for n0 in PH:
                    if n0 not in polled and pos >= CFG['PI' + typ][n0]:
                        poll_issue(s, sWs, sFL2, PRG(n0), imm=PH[n0][0], vo=vB0); polled.add(n0)
            polls(n)
            bud = LV[min(n, len(LV) - 1)]
            PC = CFG['PC' + typ]; cap = PC[min(n, len(PC) - 1)]
            gi = {CA_(k): v for k, v in CFG['GI' + typ].items()}
            def can(): return ring.q and cap > 0 and not (ring.q[0][0][0] in ring.gate and n < gi.get(ring.q[0][0][0], 0))
            while can() or (bud > 0 and F):
                if can(): ring.pump(s, 1); cap -= 1
                if F and bud > 0:
                    l = len(F); fill(s, F, CFG['LG'], force=True); bud -= CFG['LG']
                    if len(F) == l: bud = 0
            if F and isinstance(F[0], tuple) and F[0][0] == 'hold': F[0] = ('tilt', n + F[0][1])
            if F and isinstance(F[0], tuple) and F[0][0] == 'tilt' and n >= F[0][1]:
                F.pop(0); fill(s, F, 5, force=True)
            polls(n + 0.5)
            bl_.append(len(ring.q))
            cbar(n)
        print('   backlog', s.name, bl_)
        assert not F and not ring.q and not ring.items
        endk(s, ring); return
    s.e(f"s_lshl_b32 {sUC}, {sRB}, 16\ns_lshl_b32 s4, {sRT2}, 15\ns_add_u32 {sUC}, {sUC}, s4\ns_lshl_b32 s4, {sCB}, 7\ns_add_u32 {sUC}, {sUC}, s4\ns_lshl_b32 s4, {sKQ}, 6\ns_add_u32 {sUC}, {sUC}, s4")
    ring.pump(s, 99)
    fill(s, F, CFG['CV0' + typ], force=True)
    PF = 4
    def reads(t):
        if t % 8 == 0: cbar(t // 8)
        aread(ring, t)(s)
        if 8 * NRI <= t + 16 < 144: bread(ring, t + 16)(s)
    for t in range(PF): reads(t)
    credit = 0
    for t in range(144):
        acc = YA if t < 112 else SA
        s.e(f"{MF} {R(acc,16)}, {R(breg(t),4)}, {R(AB + 4 * (t % 4),4)}, {'0' if t in (0, 112) else R(acc,16)}")
        if t + PF < 144: reads(t + PF)
        if t == 60:
            assert not F, len(F)
            F += [f"v_lshlrev_b32 v20, 8, {vP4}", "v_lshrrev_b32 v21, 5, v0", "v_lshl_add_u32 v20, v21, 4, v20",
                  f"v_lshlrev_b32 v19, 5, {vP4}", "v_lshl_add_u32 v19, v21, 4, v19", "v_bfe_u32 v21, v0, 1, 1", f"v_xor_b32 v21, {sKQ}, v21", "v_lshl_add_u32 v19, v21, 6, v19"]
        if t == 8 * (CFG['XAT'] + 1) - 2:
            G = [blk(f"s_lshl_b32 s4, {sRT2}, 12\ns_add_u32 s4, s4, {ring.slot['BX']*SLOT + 8192}\nv_add_u32 v19, s4, v19"),
                 f"ds_read_b128 {R(XT,4)}, v19", f"ds_read_b128 {R(XT+4,4)}, v19 offset:32"]
            drain(s, G)
            for b_ in range(2): F += [f"v_permlane32_swap_b32 v{XT+4*b_}, v{XT+4*b_+2}", f"v_permlane32_swap_b32 v{XT+4*b_+1}, v{XT+4*b_+3}"]
            for j in range(8): F += [f"v_lshlrev_b32 v{XT+16+2*j}, 16, v{XT+j}", f"v_and_b32 v{XT+17+2*j}, 0xffff0000, v{XT+j}"]
        if t == 113:
            stamp('yend')(s)
            T = XT + 32
            F += [f"v_mul_f32 v{T+j}, 0xbfb8aa3b, v{YA+j}" for j in range(16)] + [f"v_exp_f32 v{T+j}, v{T+j}" for j in range(16)]
            F += [f"v_add_f32 v{T+j}, 1.0, v{T+j}" for j in range(16)] + [f"v_rcp_f32 v{T+j}, v{T+j}" for j in range(16)] + [f"v_mul_f32 v{YA+j}, v{YA+j}, v{T+j}" for j in range(16)]
        if F and isinstance(F[0], tuple) and F[0][0] == 'hold': F[0] = ('tilt', t + CFG['HS'])
        if F and isinstance(F[0], tuple) and F[0][0] == 'tilt' and t >= F[0][1]: F.pop(0)
        if F and t < 143: credit = fill(s, F, (CFG['CV' + typ] if t < 60 else CFG['CVE']) + min(credit, CFG['CRED']))
        for mk in ('f3', 'fo'):
            if mk in s.marks and (typ, mk) not in XCHK: XCHK[(typ, mk)] = s.nbar
    drain(s, F)
    stamp('send')(s)
    for b_ in range(2):
        for j in range(8): s.e(f"v_fma_f32 v{SA+8*b_+j}, v{SA+8*b_+j}, v{YA+8*b_+j}, v{XT+16+8*b_+j}")
        for j in range(4): s.e(f"v_cvt_pk_bf16_f32 v{XT+4*b_+j}, v{SA+8*b_+2*j}, v{SA+8*b_+2*j+1}")
        s.e(f"v_permlane32_swap_b32 v{XT+4*b_}, v{XT+4*b_+2}\nv_permlane32_swap_b32 v{XT+4*b_+1}, v{XT+4*b_+3}")
        s.e(f"buffer_store_dwordx4 {R(XT+4*b_,4)}, v20, {sOut}, {sUC} offen offset:{32*b_}")
    stamp('st')(s)
    endk(s, ring)

SCR_DUM = SCR + 15360
def touchB(s):
    if not CFG['TB']: return
    s.e(f"s_lshl_b32 s4, {sBID}, 3\ns_add_u32 s4, s4, {sW}\ns_mul_i32 s5, s4, 896\ns_lshl_b32 s4, s4, 8\ns_mov_b32 m0, {SCR_DUM}")
    s.e(f"v_min_u32 {vT}, 6, v0\nv_lshlrev_b32 {vT}, 7, {vT}")
    s.e(f"buffer_load_dword {vT}, {sW2}, s5 offen lds")
    s.e(f"v_min_u32 {vT}, 1, v0\nv_lshlrev_b32 {vT}, 7, {vT}")
    s.e(f"buffer_load_dword {vT}, {sWo}, s4 offen lds")
def touchW(s):
    if not CFG['TW']: return
    if CFG['TW'] == 2:
        s.e(f"s_lshl_b32 s4, {sBID}, 1\ns_add_u32 s4, s4, {sCH}\ns_mul_i32 s5, s4, 3584\ns_mul_i32 s3, {sRT}, 896\ns_add_u32 s5, s5, s3\ns_mul_i32 s4, s4, 3072\ns_lshl_b32 s3, {sRT}, 8\ns_add_u32 s4, s4, s3\ns_mov_b32 m0, {SCR_DUM}")
        s.e(f"v_min_u32 {vT}, 2, v0\nv_mul_u32_u24 {vT}, 384, {vT}")
        s.e(f"buffer_load_dword {vT}, {sW1}, s5 offen lds")
        s.e(f"v_min_u32 {vT}, 1, v0\nv_lshlrev_b32 {vT}, 7, {vT}")
        s.e(f"buffer_load_dword {vT}, {sWq}, s4 offen lds")
        return
    s.e(f"s_lshl_b32 s4, {sBID}, 3\ns_add_u32 s4, s4, {sW}\ns_mul_i32 s5, s4, 896\ns_mul_i32 s4, s4, 768\ns_mov_b32 m0, {SCR_DUM}")
    s.e(f"v_min_u32 {vT}, 6, v0\nv_lshlrev_b32 {vT}, 7, {vT}")
    s.e(f"buffer_load_dword {vT}, {sW1}, s5 offen lds")
    s.e(f"v_min_u32 {vT}, 5, v0\nv_lshlrev_b32 {vT}, 7, {vT}")
    s.e(f"buffer_load_dword {vT}, {sWq}, s4 offen lds")
def touch2(c, hf=None):
    def f(s):
        if c == 0 and not hf:
            if hf is None: s.e(f"s_lshl_b32 s4, s87, 3")
            else: s.e(f"s_lshr_b32 s4, s87, 4\ns_lshl_b32 s4, s4, 3\ns_and_b32 s5, s87, 7\ns_add_u32 s4, s4, s5\ns_lshl_b32 s4, s4, 3")
            s.e(f"s_add_u32 s4, s4, {sW}\ns_lshr_b32 s5, s4, 6\ns_and_b32 s4, s4, 63\ns_lshl_b32 s4, s4, 10\n"
                f"s_mul_i32 s90, s5, {448*1024}\ns_add_u32 s90, s90, s4\ns_lshl_b32 s91, s5, 17\ns_add_u32 s91, s91, s4")
        s.e(f"s_mov_b32 m0, {SCR_DUM}")
        h = hf or 0
        if c < 7: s.e(f"s_add_u32 {sSoW}, s90, {ORDER[4*c]*16384 + h*896*1024}\nbuffer_load_dwordx4 {vA16}, {sW2}, {sSoW} offen lds")
        else: s.e(f"s_add_u32 {sSoW}, s91, {(c-7)*65536 + h*256*1024}\nbuffer_load_dwordx4 {vA16}, {sWo}, {sSoW} offen lds")
    return f
def touch3(c, ch):
    def f(s):
        wv = CFG['T3W'][c]
        if wv // 4 != ch: return
        lab = label()
        s.e(f"s_cmp_lg_u32 {sW}, {wv}\ns_cbranch_scc1 {lab}")
        mul = 448 * 1024 if c < 7 else 128 * 1024
        off = ORDER[4 * c] * 16384 if c < 7 else (c - 7) * 65536
        s.e(f"s_lshr_b32 s90, s87, 3\ns_mul_i32 s90, s90, {mul}\ns_and_b32 s91, s87, 7\ns_lshl_b32 s91, s91, 13\ns_add_u32 s90, s90, s91\ns_add_u32 s90, s90, {off}\ns_mov_b32 m0, {SCR_DUM}")
        s.e(f"v_lshlrev_b32 v{CSA+3}, 7, v0")
        s.raw(f"buffer_load_dword v{CSA+3}, {sW2 if c < 7 else sWo}, s90 offen lds")
        s.e(f"{lab}:")
    return f
def touch4(k, ch):
    def f(s):
        if ch: return
        lab = label()
        n = (28, 28, 16)[k]
        s.e(f"s_cmp_lg_u32 {sW}, {k}\ns_cbranch_scc1 {lab}")
        s.e(f"s_mul_i32 s90, s87, {(56, 56, 16)[k]*1024}\ns_add_u32 s90, s90, {CFG['SC']*128 + (28*1024 if k == 1 else 0)}\ns_mov_b32 m0, {SCR_DUM}")
        s.e(f"v_min_u32 v{CSA+3}, {n-1}, v0\nv_lshlrev_b32 v{CSA+3}, 10, v{CSA+3}")
        s.raw(f"buffer_load_dword v{CSA+3}, {sW2 if k < 2 else sWo}, s90 offen lds")
        s.e(f"{lab}:")
    return f
def add_touch(segs, typ):
    if CFG['T2'] == 4:
        for k, at in enumerate(CFG['T4AT']): segs[at // 32].posts.setdefault(at % 32, []).append(touch4(k, segs[0].ch))
    if CFG['T2'] == 3:
        for c, at in enumerate(CFG['T2AT']): segs[at // 32].posts.setdefault(at % 32, []).append(touch3(c, segs[0].ch))
    for c, at in enumerate(CFG['T2AT']):
        if CFG['T2'] == 1: segs[at // 32].posts.setdefault(at % 32, []).append(touch2(c))
        if CFG['T2'] == 2 and typ == 'A':
            segs[at // 32].posts.setdefault(at % 32, []).append(touch2(c, 0))
            segs[(at + 2) // 32].posts.setdefault((at + 2) % 32, []).append(touch2(c, 1))

def touchA(t0, n, mask, T, T2, vp=vPoll):
    def f(s):
        if not CFG['TA']: return
        lab = label()
        s.e(f"v_min_u32 {T}, {n-1}, v0")
        if t0 < 28 and n > 4:
            d = ORDER[t0 + 4] - ORDER[t0] - 4
            s.e(f"v_lshrrev_b32 {T2}, 2, {T}\nv_mul_u32_u24 {T2}, {d}, {T2}\nv_add_u32 {T}, {T}, {T2}")
        off = ORDER[t0] * 1024 if t0 < 28 else 0
        s.e(f"v_lshlrev_b32 {T}, 10, {T}\ns_lshl_b32 {sSoW}, {sCB}, 7\ns_add_u32 {sSoW}, {sSoW}, {sA2y if t0 < 28 else sA2s}\ns_add_u32 {sSoW}, {sSoW}, {off}\ns_mov_b32 m0, {SCR_DUM}")
        s.e(f"v_cmp_ne_u32 vcc, 0, {vp}\ns_andn2_b32 {sT0}, {mask:#x}, vcc_lo\ns_cbranch_scc1 {lab}")
        s.raw(f"buffer_load_dword {T}, {sWs}, {sSoW} offen sc1 lds")
        s.e(f"{lab}:")
    return f

def ilv(st, co):
    out = st[:3] + co[:3] + [st[3]]
    a, b = st[4:], co[3:-1]
    while a or b:
        if a: out.append(a.pop(0))
        if a and len(a) > 2 * len(b): out.append(a.pop(0))
        if b: out.append(b.pop(0))
    return out + co[-1:]
def p0_items(a, b):
    it = []
    for c in range(4): it += x_items(c) + [a[c]]
    return it + b
def packin(acc): return [f"v_cvt_pk_bf16_f32 v{acc+j}, v{acc+2*j}, v{acc+2*j+1}" for j in range(8)]
def N(n, lo, hi): return [f"{n}{c}" for c in range(lo, hi)]
def initchk(s):
    poll_check(s, sDbg, "0", 0xffffffff, imm=128); s.marks["init"] = 1
initpoll = lambda s: poll_issue(s, sDbg, "0", imm=128)
def pollA(s):
    if s.name[1] == '1': poll_issue(s, sWs, sFL2, vo=vB0)

def stream_A(s0, ch):
    CB, DB = CFG['CB'], CFG['DB']
    s = s0.fork(f"A{ch}"); s.e(f"L_typeA{ch}:")
    bl = BIASL['A']
    items = p0_items(w_items("K", sWq, vDq, sUA, 3072), w_items("V", sWq, vDq, sUB, 3072)) + w_items("H", sW1, vD1, sUC, 3584) + b_items(0)
    ring = Ring(items, range(9), ch); ring.hold = ('XL3', 'XH3'); ring.upto0 = "V3"
    start(s, ring, 'K')
    s.e(f"s_lshl_b32 {sSCRW}, {sW}, 12\ns_add_u32 {sSCRW}, {sSCRW}, {2*SLOT}")
    s.marks.update(f1=1, f2=1, fo=1)
    uK = dict(name="K", acc=ACC_A, trans=True, kind='w', csi=0)
    uV = dict(name="V", acc=ACC_B, trans=False, kind='w', csi=1)
    uH = dict(name="H", acc=ACC_C, trans=True, kind='w', csi=0)
    F = [('wait', 'c1')] + ilv(stats_fin(PT), correct(uK, ch, PT + 8))
    F += ["v_lshrrev_b32 v26, 5, v0", "v_lshlrev_b32 v26, 1, v26", "v_bfe_u32 v25, v0, 1, 2", "v_xor_b32 v26, v25, v26", f"v_lshlrev_b32 v25, 4, {vP4}", "v_lshl_add_u32 v25, v26, 4, v25",
          f"v_add_u32 v25, {sSCRW}, v25", "v_xor_b32 v24, 16, v25"]
    F += packin(ACC_A)
    F += [f"{MF} {R(PT,16)}, {R(PHI,4)}, {R(ACC_A,4)}, 0", f"{MF} {R(ACC_C,16)}, {R(PHI+4,4)}, {R(ACC_A+4,4)}, 0", ('gap', 12)]
    for h, P in enumerate((PT, ACC_C)):
        if h == 1 and CFG['PKA']:
            sm = softmax_pk(P, ACC_A + 8, "v26", vT, PHI); F += sm[:9] + [('wait', 'c2')] + sm[9:]
        else: F += softmax(P, ACC_A + 8, "v26", vT)
        F += [f"ds_write_b128 v25, {R(ACC_A+8,4)} offset:{2048*h}", f"ds_write_b128 v24, {R(ACC_A+12,4)} offset:{2048*h}"]
    F += [('wait', 'c2')]
    F += ["v_lshrrev_b32 v26, 5, v0", "v_lshlrev_b32 v26, 4, v26", blk(f"s_lshl_b32 s4, {sRT}, 7\ns_add_u32 s4, s4, {SCR_RS}\nv_add_u32 {vT}, s4, v26")]
    for q in range(4): F.append(f"ds_read_b128 {R(PT+4*q,4)}, {vT} offset:{32*q}")
    F += ["v_bfe_u32 v25, v0, 2, 2", "v_lshlrev_b32 v25, 6, v25", "v_lshl_add_u32 v25, v26, 4, v25", f"v_bfe_u32 {vT}, v0, 4, 1", f"v_cmp_eq_u32 s[94:95], 1, {vT}",
          "v_lshrrev_b32 v24, 5, v0", f"v_xor_b32 {vT}, v24, {vT}", f"v_lshl_add_u32 v25, {vT}, 5, v25",
          "v_lshrrev_b32 v24, 2, v0", "v_xor_b32 v24, v24, v0", "v_bfe_u32 v24, v24, 1, 1", "v_lshl_add_u32 v25, v24, 4, v25",
          f"v_and_b32 {vT}, 1, v0", f"v_lshl_add_u32 v25, {vT}, 3, v25", f"v_add_u32 v25, {sSCRW}, v25", f"v_mov_b32 {vT}, {sC11}"]
    for t in range(2):
        for rd in range(2): F.append(f"ds_read_b64_tr_b16 {R(PHI+4*t+2*rd,2)}, v25 offset:{2048 + t*1024 + rd*512}")
    F += [pk2("mul", ACC_B + r, ACC_B + r, PT + r) for r in range(0, 16, 2)] if CFG['PKA'] else [f"v_mul_f32 v{ACC_B+r}, v{ACC_B+r}, v{PT+r}" for r in range(16)]
    F += packin(ACC_B)
    for t in range(2):
        for rd in range(2): F.append(f"ds_read_b64_tr_b16 {R(ACC_B+8+4*t+2*rd,2)}, v25 offset:{t*1024 + rd*512}")
    for j in range(8): F.append(f"v_cndmask_b32 v{ACC_A+8+j}, {vT}, v{ACC_B+j}, s[94:95]")
    for j in range(8): F.append(f"v_cndmask_b32 v{ACC_A+j}, v{ACC_B+j}, {vT}, s[94:95]")
    F += [f"{MF} {R(PT,16)}, {R(ACC_A,4)}, {R(ACC_B+8,4)}, 0", f"{MF} {R(PT,16)}, {R(ACC_A+4,4)}, {R(ACC_B+12,4)}, {R(PT,16)}",
          f"{MF} {R(ACC_B,16)}, {R(ACC_A+8,4)}, {R(PHI,4)}, 0", f"{MF} {R(ACC_B,16)}, {R(ACC_A+12,4)}, {R(PHI+4,4)}, {R(ACC_B,16)}"]
    F += [f"v_add_u32 v25, {sSCRW}, {vA16}", blk(f"s_lshl_b32 s4, {sW}, 9\ns_add_u32 s4, s4, {SCR_Z}\nv_lshlrev_b32 v26, 2, v0\nv_add_u32 v26, s4, v26")]
    F += [f"ds_write_b128 v25, {R(PT,4)}", f"ds_write_b128 v25, {R(PT+4,4)} offset:1024", f"ds_write_b32 v26, v{PT+8}",
          f"ds_write_b128 v25, {R(ACC_B+8,4)} offset:2048", f"ds_write_b128 v25, {R(ACC_B+12,4)} offset:3072", f"ds_write_b32 v26, v{ACC_B} offset:256"]
    F += [blk(f"s_lshl_b32 s4, {sRT}, 10\ns_add_u32 s4, s4, {2*SLOT + ch*SLOT}\nv_add_u32 v25, s4, {vA16}"),
          blk(f"s_lshr_b32 s4, {sRT}, 1\ns_lshl_b32 s4, s4, 8\ns_add_u32 s4, s4, {SCR_Z + ch*2048}\nv_add_u32 v26, s4, {vP4}"), mark('kvw')]
    ER = [f"ds_read_b128 {R(PT+4*r,4)}, v25 offset:{r*4096}" for r in range(4)] + [f"ds_read_b32 v{ACC_A+r}, v26 offset:{r*512}" for r in range(4)]
    ER += ["v_lshrrev_b32 v25, 5, v0", f"v_lshl_add_u32 v25, v25, 9, {vP4}", blk(f"s_lshl_b32 s5, {sRT2}, 10\nv_add_u32 v25, s5, v25"),
           f"v_lshrrev_b32 {vT}, 4, v0", f"v_cmp_eq_u32 s[94:95], {sRT2}, {vT}", f"v_mov_b32 {vT}, {BIG}",
           blk(f"s_and_b32 s5, {sG}, 1\ns_mul_i32 s5, s5, {10*1024}\ns_add_u32 s5, s5, {ch*2048}\ns_add_u32 {sUD}, {sKS}, s5\ns_lshl_b32 s4, {sI}, 7\ns_add_u32 {sKVF}, {sKVF}, s4"),
           f"v_cndmask_b32 v26, {vT}, {vP4}, s[94:95]"]
    for j in range(4): ER += [f"v_add_f32 v{PT+j}, v{PT+j}, v{PT+4+j}", f"v_add_f32 v{PT+8+j}, v{PT+8+j}, v{PT+12+j}"]
    for j in range(4): ER.append(f"v_add_f32 v{PT+j}, v{PT+j}, v{PT+8+j}")
    ER += [f"v_add_f32 v{ACC_A}, v{ACC_A}, v{ACC_A+1}", f"v_add_f32 v{ACC_A+2}, v{ACC_A+2}, v{ACC_A+3}", f"v_add_f32 v{ACC_A}, v{ACC_A}, v{ACC_A+2}"]
    for j in range(4): ER.append((f"buffer_atomic_add_f32 v{PT+j}, v25, {sWs}, {sKVs} offen offset:{j*128}", "kv"))
    ER += [(f"buffer_atomic_add_f32 v{ACC_A}, v26, {sWs}, {sKVs} offen offset:2048", "kv"), stamp('kvat')]
    EH = correct(uH, ch, PHI, BI0) + fin_setup() + (mish_pk if CFG['PKH'] else mish)(ACC_C, PT + 8, sUD, "actA")
    fkv = flag_store("kv", sKVF, 0, 'fkv'); f3 = flag_store("actA", sFL, 2 * 128, 'f3')
    pr = lambda c: [bnm(0, c), bnm(1, c)]
    m0 = pass0(s, ring, uK, ch, bl, "V3", ["V0"])
    mV = MSeg(ring, uV, ch, {CB: [B(ring, "c1", ["V1", "V2"], ["K3"] + ring.c1rel)], DB: [B(ring, "d1", ["V3", "H0"], N("V", 0, 2))]}, dma=CFG['ST'])
    def h1(s):
        until(s, ring, FH, 'erd')
        bar(s, ring, "h1", [], ["H0", CB_(0)], extra=[2, 3])
    P0_, P1_, P2_ = pulln(ring, ch, 0), pulln(ring, ch, 1), pulln(ring, ch, 2)
    mH = MSeg(ring, uH, ch, {15: [h1], DB + 2: [earlyA(ring, B(ring, "h2", ["H3", CB_(2)], ["H1", CB_(1)], owner=(1 if CFG['EAR'] else 'all')))]},
              {6: [lambda s: drain(s, p2_setup(ring))], 7: P0_[:4], 8: P0_[4:], 15: P1_[:4], 16: P1_[4:], 23: P2_[:4], 24: P2_[4:], (CFG['EPA'] if CFG['EAR'] else 27): [pollA], CFG['KVW']: [fkv]}, dma=CFG['ST'])
    ring.lim = CB_(CFG['NPB'] - 1); gate0(ring)
    m0.posts.setdefault(29, []).append(lambda s: drain(s, phi_frags()))
    add_touch([m0, mV, mH], 'A')
    mV.posts.setdefault(30, []).append(initpoll)
    m0.run(s, mV); mV.run(s, None, F, CFG['KB'] + CFG['KD'] * (1 - 2 * ch))
    bar(s, ring, "c2", [], N("V", 2, 4), lg0=True)
    print("   A V-only block:", len(F))
    VB_ = correct(uV, ch, WB) + F + [initchk, mH.pre]
    if CFG.get('VST'):
        for k in range(len(VB_) // 12 * 12, 0, -12): VB_.insert(k, stamp(f"v{k}"))
    vseg(s, ring, VB_, flush=False)
    bar(s, ring, "d2", ["H1", "H2"] + pr(0))
    FH = list(ER) + [mark('erd')]
    mH.run(s, None, FH, CFG['VB'])
    assert not FH
    ring.lim = None; ring.strict = True
    bar(s, ring, "e1", [], N("H", 2, 4) + [CB_(2)], lg0=True, owner=1)
    F = EH + [mark('scrfree'), ('hold', CFG['F3G']), f3]
    aphase(s, ring, ch, F, [])
    return s

def stream_B(s0, ch):
    CB, DB = CFG['CB'], CFG['DB']
    s = s0.fork(f"B{ch}"); s.e(f"L_typeB{ch}:")
    bl = BIASL['B']
    H5 = [(f"F{c}", sW1, vD5, sUD, 0, 16 * 3584, 0, 128 * 3584, lambda hf, c=c: 2 * c + hf) for c in range(2)]
    items = p0_items(w_items("U", sW1, vD1, sUA, 3584), w_items("Y", sW1, vD1, sUB, 3584))
    Qi = w_items("Q", sWq, vDq, sUC, 3072); bi = b_items(1)
    items += H5 + [Qi[0]] + bi[:2] + [Qi[1], Qi[2]] + bi[2:4] + [Qi[3]] + bi[4:] if CFG['EB'] else H5 + Qi + bi
    ring = Ring(items, range(9), ch); ring.upto0 = "Y3"; ring.strict = bool(CFG['EB'])
    start(s, ring, 'U')
    s.e(f"s_and_b32 s5, {sG}, 1\ns_cmp_eq_u32 s5, 0\ns_cselect_b32 s5, 4, 2\ns_cselect_b32 s4, {12*1024}, 0\ns_lshl_b32 s5, s5, 10\n"
        f"s_add_u32 {sSCRW}, {sKS}, s4\ns_add_u32 s5, s5, {ch*2048}\ns_add_u32 {sKS}, {sKS}, s5")
    uU = dict(name="U", acc=ACC_A, trans=True, kind='w', csi=0)
    uY = dict(name="Y", acc=ACC_B, trans=True, kind='w', csi=1)
    uF = dict(name="F", acc=ACC_C, trans=True, kind='h5', csi=0)
    uQ = dict(name="Q", acc=ACC_A, trans=True, kind='w', csi=1)
    EU = ilv(stats_fin(PT), correct(uU, ch, PT + 8, BI0)) + [('gap', 14)] + mish(ACC_A, PT, sKS, "act1") + [f"s_add_u32 {sKS}, {sKS}, 4096"]
    EY = correct(uY, ch, PT + 8, BI1) + [mark('b1dead'), ('gap', 16)] + mish(ACC_B, PT, sKS, "act2")
    EF = correct(uF, ch, PT + 8, BI2) + [('gap', 16)] + mish(ACC_C, PT, sSCRW, "act5")
    EQ = correct(uQ, ch, PT + 12) + phi_frags() + pack16(ACC_A, PK)
    EQ += [f"{MF} {R(PT,16)}, {R(PHI,4)}, {R(PK,4)}, 0", f"{MF} {R(ACC_B,16)}, {R(PHI+4,4)}, {R(PK+4,4)}, 0"] + fin_setup()
    if CFG['PK']: EQ += softmax_pk(PT, ACC_A, "v26", vT, PHI) + softmax_pk(ACC_B, ACC_A + 8, "v26", vT, PHI)
    else: EQ += softmax(PT, ACC_A, "v26", vT) + softmax(ACC_B, ACC_A + 8, "v26", vT)
    f1 = flag_store("act1", sFL, 0, 'f1'); f2 = flag_store("act2", sFL, 128, 'f2'); f3 = flag_store("act5", sFL, 3 * 128, 'f3')
    pr = lambda c: [bnm(0, c), bnm(1, c)]
    FG = ('gap', CFG['FG'])
    F = [('wait', 'c1')] + EU + [mark('m1'), ('wait', 'c2')] + split(EY, 0.6, lambda s: (initchk(s), f1(s))) + [mark('m2')]
    if ch == 0: F += [('wait', 'c3')] + split(EF, 0.6, f2) + [mark('m3')]
    else: F += [FG, f2, mark('m3'), mark('f3')]
    m0 = pass0(s, ring, uU, ch, bl, "Y3", ["Y0"])
    mY = MSeg(ring, uY, ch, {CB: [B(ring, "c1", ["Y1", "Y2"], ["U3"] + ring.c1rel)], DB: [B(ring, "d1", ["Y3", "F0"], N("Y", 0, 2))]}, dma=CFG['ST'])
    c2 = B(ring, "c2", ["F1", "Q0"], N("Y", 2, 4), owner=1)
    P0_, P1_, P2_ = pulln(ring, ch, 0), pulln(ring, ch, 1), pulln(ring, ch, 2)
    mQ = MSeg(ring, uQ, ch, {CB: [B(ring, "c3", ["Q1", "Q2", CB_(0)], ["F0", "F1"])], DB: [earlyA(ring, B(ring, "d3", ["Q3", CB_(1), CB_(2)], N("Q", 0, 2) + [CB_(0)], owner=(1 if CFG['EAR'] else 'all')))]},
              {7: [lambda s: (until(s, ring, F, 'b1dead'), drain(s, p2_setup(ring)))], 9: P0_[:4], 11: P0_[4:], 19: P1_[:4], 21: P1_[4:], 24: P2_[:4], 26: P2_[4:], (CFG['EPB'] if CFG['EAR'] else 27): [pollA]}, dma=CFG['ST'])
    ring.lim = CB_(CFG['NPB'] - 1); gate0(ring)
    add_touch([m0, mY, mQ], 'B')
    mY.posts.setdefault(28, []).append(initpoll)
    m0.run(s, mY)
    if ch == 0:
        mF = MSeg(ring, uF, ch, {CB: [c2]}, dma=CFG['ST'] // 2)
        mY.run(s, mF, F, CFG['P1B'] + CFG['PD']); mF.run(s, mQ, F, CFG['FB'])
    else:
        mY.run(s, None, F, CFG['P1B'] - CFG['PD']); c2(s); vrun(s, ring, F, CFG['IB']); mQ.pre(s)
    print("   B forced m1:", until(s, ring, F, 'm1'))
    mQ.run(s, None, F, CFG['QB'][ch])
    KS, OD, OD2, OF, OP = WB, PT, ACC_B, PHI, PK
    def kvfetch(s):
        poll_check(s, sWs, sKVF, 0xffff, vPoll2, vo="v21")
        s.e(f"s_lshl_b32 s5, {sRT2}, 10\ns_add_u32 s5, s5, {sKVs}")
        s.e(f"buffer_load_dwordx4 {R(KS,4)}, {vA16}, {sWs}, s5 offen sc1")
        s.e(f"v_and_b32 v21, 3, v0\nv_lshlrev_b32 v21, 4, v21\ns_lshl_b32 s5, {sRT2}, 6\ns_add_u32 s5, s5, {sKVs}")
        s.e(f"buffer_load_dwordx4 {R(KS+4,4)}, v21, {sWs}, s5 offen offset:2048 sc1")
    IM = [f"v_cvt_pk_bf16_f32 v{KS}, v{KS}, v{KS+1}", f"v_cvt_pk_bf16_f32 v{KS+1}, v{KS+2}, v{KS+3}",
          f"v_cvt_pk_bf16_f32 v{KS+4}, v{KS+4}, v{KS+5}", f"v_cvt_pk_bf16_f32 v{KS+5}, v{KS+6}, v{KS+7}",
          blk(f"s_mul_i32 s5, {sKQ}, 1088\ns_add_u32 s5, s5, {SCR_KV}\ns_lshl_b32 s4, {sRT2}, 9\ns_add_u32 s4, s4, s5\nv_lshlrev_b32 v25, 3, v0\nv_add_u32 v25, s4, v25\n"
              f"ds_write_b64 v25, {R(KS,2)}\ns_lshl_b32 s4, {sRT2}, 5\ns_add_u32 s4, s4, s5\nv_lshrrev_b32 v21, 1, v21\nv_add_u32 v21, s4, v21\nds_write_b64 v21, {R(KS+4,2)} offset:1024"),
          f"v_min_u32 v25, 64, {vP4}", "v_lshlrev_b32 v25, 4, v25", "v_lshrrev_b32 v26, 5, v0", "v_lshl_add_u32 v25, v26, 5, v25",
          blk(f"v_add_u32 v25, {SCR_KV + ch*2176}, v25\ns_lshl_b32 s5, {sG}, 12\ns_add_u32 s5, s5, {sAF}\ns_add_u32 {sSCRW}, s5, {112*1024 + ch*2048}")]
    O = [f"ds_read_b128 {R(OF,4)}, v25", f"ds_read_b128 {R(OF+4,4)}, v25 offset:16", f"ds_read_b128 {R(OP,4)}, v25 offset:1088", f"ds_read_b128 {R(OP+4,4)}, v25 offset:1104"]
    O += [f"{MF} {R(OD,16)}, {R(OF,4)}, {R(ACC_A,4)}, 0", f"{MF} {R(OD,16)}, {R(OF+4,4)}, {R(ACC_A+4,4)}, {R(OD,16)}",
          f"{MF} {R(OD2,16)}, {R(OP,4)}, {R(ACC_A+8,4)}, 0", f"{MF} {R(OD2,16)}, {R(OP+4,4)}, {R(ACC_A+12,4)}, {R(OD2,16)}"]
    for h, D in enumerate((OD, OD2)):
        O += [f"v_add_f32 v26, 0x358637bd, v{D+8}", "v_rcp_f32 v26, v26"]
        for j in range(8): O.append(f"v_mul_f32 v{D+j}, v{D+j}, v26")
        for j in range(4): O.append(f"v_cvt_pk_bf16_f32 v{ACC_A+4*h+j}, v{D+2*j}, v{D+2*j+1}")
        O.append((f"buffer_store_dwordx4 {R(ACC_A+4*h,4)}, {vA16}, {sWs}, {sSCRW} offen offset:{h*1024} sc1", "o"))
    O.append(stamp('ost'))
    ring.lim = None; ring.strict = True
    bar(s, ring, "e1", [], N("Q", 2, 4) + [CB_(1), CB_(2)], lg0=True, owner=1)
    def ins(L, back, item): return L[:len(L) - back] + [item] + L[len(L) - back:]
    F2 = F + EQ
    if ch == 0: F2 = ins(F2, 110, f3)
    kp = lambda s: (s.e("v_min_u32 v21, 15, v0\nv_lshlrev_b32 v21, 7, v21"), poll_issue(s, sWs, sKVF, vPoll2, vo="v21"))
    F2 = ins(ins(F2, CFG['KP'], kp), CFG['KF'], kvfetch)
    F2 += IM + [('nextbar',)] + O + [mark('scrfree'), ('hold', CFG['OW']), flag_store("o", sFL, 4 * 128, 'fo')]
    aphase(s, ring, ch, F2, [])
    return s

def build(path, listform=True):
    s0 = Stream("P")
    if PROFILE: s0.e("s_memtime s[96:97]\ns_memrealtime s[58:59]")
    prologue(s0)
    s0.e(f"s_lshl_b32 s5, {sTY}, 1\ns_add_u32 s5, s5, {sCH}\ns_cmp_eq_u32 s5, 0\ns_cbranch_scc1 L_typeA0\ns_cmp_eq_u32 s5, 1\ns_cbranch_scc1 L_typeA1\ns_cmp_eq_u32 s5, 3\ns_cbranch_scc1 L_typeB1")
    B0 = stream_B(s0, 0); B1 = stream_B(s0, 1); A0 = stream_A(s0, 0); A1 = stream_A(s0, 1)
    assert B0.nbar == B1.nbar and A0.nbar == A1.nbar
    assert B0.slots == B1.slots and A0.slots == A1.slots
    print(XCHK)
    for k, v in XCHK.items():
        if len(k) == 3 and k[:2] in XCHK: assert XCHK[k[:2]] <= v, (k, v, XCHK[k[:2]])
    hdr = open("recurrent_scan__linear_kernel_hedgehog__dense_activation_mish__prompt.s.ref").read().split("; Override")[0]
    T = [hdr.rstrip(), f"; @launch {'kernel=' + KNAME + ' ' if listform else ''}grid=(256,1,1) block=(512,1,1) lds=163840",
         '.amdgcn_target "amdgcn-amd-amdhsa--gfx950"', ".text", f".globl {KNAME}", ".p2align 8", f".type {KNAME},@function", f"{KNAME}:"]
    S = [s0, B0, B1, A0, A1]
    for st in S:
        T.append(f"; ---- stream {st.name}  nops={st.stats['nop']} waits={st.stats['wait']} barriers={st.nbar}")
        T.append(st.text())
    for st in S: T += st.ool
    T.append("L_end:\n  s_endpgm")
    T.append(".fill 6144, 4, 0xbf800000")
    T.append(f'''.section .rodata,"a"
.p2align 6
.amdhsa_kernel {KNAME}
  .amdhsa_next_free_vgpr 256
  .amdhsa_next_free_sgpr 102
  .amdhsa_accum_offset 256
  .amdhsa_group_segment_fixed_size 0
  .amdhsa_kernarg_size 88
  .amdhsa_user_sgpr_count 2
  .amdhsa_user_sgpr_kernarg_segment_ptr 1
  .amdhsa_system_sgpr_workgroup_id_x 1
.end_amdhsa_kernel''')
    open(path, "w").write("\n".join(T) + "\n")
    for st in S: print(st.name, "instrs", len(st.out), st.stats, "barriers", st.nbar)

if __name__ == "__main__":
    for a in sys.argv[2:]:
        if a == "prof": PROFILE = True
        elif '=' in a:
            k, v = a.split('='); CFG[k] = eval(v)
    build(sys.argv[1], listform=("final" not in sys.argv))
```

```python
import sys
sys.path.insert(0, 'gen')
from ab import *

KNAME = "recurrent_scan__linear_kernel_hedgehog__dense_activation_mish__prompt_kernel"
PROFILE = False
SLOT = 16384
SCR = 9 * SLOT
SCR_PHI = SCR
SCR_RS = SCR + 2048
SCR_ST = SCR + 2560
SCR_CS = SCR + 6656
SCR_Z = SCR + 10752
SCR_KV = SCR + 10752
Z_OFF = 0x900000
KV_OFF = Z_OFF
KVFLAG_OFF = Z_OFF + 0x40000
ACTFLAG_OFF = Z_OFF + 0x16000
PROF_OFF = 0xA00000
BIG = 0x40000000
CFG = dict(AD=16, A0=8, AN=2, BN=1, G8=1, F3G=1, PB=[(200, 40), (80, 55), (80, 40)], SLP=4, LPR=0, PCA=[16, 10, 8, 8, 8, 8, 7], PCB=[16, 10, 8, 8, 8, 8, 7], GIA={4: 1}, GIB={4: 2}, HS=8, CVE=5, EAR=0, EPA=12, EPB=12, XAT=15, S9A=4, S9B=7, NPB=8, LG=6, LVA=[70, 80], LVB=[80, 90], CV0A=70, CV0B=80, CVA=11, CVB=13, PIA={4: 0, 8: 4, 10: 6.5, 14: 11}, PIB={4: 1, 8: 4, 10: 6.5, 14: 11}, LLT=6, SC=3, T4AT=[30, 36, 38], NBX=2, LG0=0, PWW=0, PVL=60, PSA=[(3, 7), (11, 14), (18, 21)], PSB=[(0, 1), (5, 8), (11, 15)], PB2=3, YB=31, PKT=1, MIX=0, MG=300, EB=0, EA=1, PKH=1, T3W=[0, 1, 2, 3, 0, 1, 2, 3, 0], OWN='', KD=0, PD=0, UP=[0, 0, 0, 1, 2, 2, 4], PAR=2, FB4=0, PKA=1, PK=0, KM=0, KVW=17, KS=(0, 5, 10), KVP=12, TAP=8, TAT=20, TAD=2, CB=6, DB=22, TW=1, TWT=2, GT=[2000, 4000, 5500, 500], TOFF=-1000, LT=200, LT2=200, QD2=800, LAT=900, QD=800, PLT=1500, BL=6, VC=9, T2=4, T2AT=[30, 35, 40, 45, 50, 55, 60, 66, 72], PF=4, PL=4, S0=6, S1=6, PRIO=0, VD=10, KP=160, KF=110, OW=1, G16=8, G28=20, TV=10, TB=1, TBT=28, TA=0, TO=11, T0=0, T1=0, ROT=2, RATE=38, BURST=24576, ST=90,
    CRED=6, AGE=14, P1B=6, FB=5, QB=[9, 3], IB=150, KB=6, VB=8, KVG=60, EH0=60, FG=60, E1=[120, 100], E2=[100, 80])

sX, sWq, sW1, sW2, sWo, sPhi, sB1, sOut, sDbg, sWs = [f"s[{8+4*i}:{11+4*i}]" for i in range(10)]
sW, sRT, sCH, sI, sG, sTY, sRB, sCB, sKQ, sRT2 = [f"s{48+i}" for i in range(10)]
sT0 = "s3"
sC10, sC01, sC11 = "s58", "s59", "s60"
sM0W = "s61"; sSoW = "s62"
sUA, sUB, sUC, sUD = "s63", "s6", "s7", "s2"
sAF, sFL, sAF2, sFL2, sB2, sBo, sKVs, sKVF, sSCRW, sCNT, sKS, sBID = [f"s{64+i}" for i in range(12)]
sA2y, sA2s, sOo = "s0", "s1", "s5"
STAMP0 = 76

vA16 = "v1"; vDq = "v2"; vD1 = "v3"; vDB = "v4"; vD5 = "v5"
VW = 6
vRS, vRSL, vM2 = "v14", "v15", "v22"
CF = 16
BI0, BI1, BI2 = 23, 24, 25
vPoll = "v27"; vFO = "v28"; vOne = "v10"; vP4 = "v30"; vT = "v31"; vPoll2 = "v9"
ACC_A, ACC_B, ACC_C = 32, 48, 64
WB = 80; PT = 96; PHI = 112; PK = 120; XA = 128
XR = 64; XD = 72; HR = 112; STA = 96; CSB = 116; ASEL = 120; CSA = 124
sXb = "s86"; sRot = "s89"; ROT0 = 98

def R(b, n): return f"v[{b}:{b+n-1}]"
def ldsaddr(regs, byte): return regs[byte >> 16], byte & 0xffff
_nl = [0]
def label():
    _nl[0] += 1; return f"L{_nl[0]}"
def stamp(name):
    def f(s):
        if not PROFILE: return
        if CFG.get('LITE') and name not in ('st', 'end', 'a17'): return
        if not hasattr(s, 'snames'): s.snames = []
        idx = len(s.snames)
        if idx >= 61: return
        s.snames.append(str(name))
        s.e(f"s_memtime s[{STAMP0+2*(idx%4)}:{STAMP0+1+2*(idx%4)}]")
        if idx >= 2: s.raw(f"v_writelane_b32 v29, s{STAMP0+2*((idx-2)%4)}, {idx-2}")
    return f
def srd(s, dst, lo, hi, size):
    b = int(dst[2:dst.index(':')])
    s.e(f"s_mov_b32 s{b}, {lo}\ns_and_b32 s{b+1}, {hi}, 0xffff\ns_mov_b32 s{b+2}, {size}\ns_mov_b32 s{b+3}, 0x20000")
def poll_issue(s, srd_, soff, vp=vPoll, imm=0, vo=vP4):
    assert srd_ == sDbg or 'init' in s.marks
    s.e(f"buffer_load_dword {vp}, {vo}, {srd_}, {soff} offen offset:{imm} sc1")
def poll_check(s, srd_, soff, mask, vp=vPoll, imm=0, vo=vP4):
    l1, l2, l3 = label(), label(), label()
    stamp(f"[p{imm//128}_{mask:x}")(s)
    s.e(f"v_cmp_ne_u32 vcc, 0, {vp}\ns_andn2_b32 {sT0}, {mask:#x}, vcc_lo\ns_cbranch_scc1 {l1}\n{l2}:")
    stamp(f"p]")(s)
    s.ool.append(f"""{l1}:
  s_mov_b32 {sCNT}, 0x100000
{l3}:
  s_sleep {CFG['SLP']}
  buffer_load_dword {vp}, {vo}, {srd_}, {soff} offen offset:{imm} sc1
  s_waitcnt vmcnt(0)
  v_cmp_ne_u32 vcc, 0, {vp}
  s_nop 1
  s_andn2_b32 {sT0}, {mask:#x}, vcc_lo
  s_cbranch_scc0 {l2}
  s_sub_u32 {sCNT}, {sCNT}, 1
  s_cmp_lg_u32 {sCNT}, 0
  s_cbranch_scc1 {l3}
  s_branch {l2}""")
def flag_store(tagwait, soff, imm, mark):
    def f(s):
        assert 'init' in s.marks
        stamp("(" + mark)(s)
        s.wait_tag(tagwait)
        stamp(mark + ")")(s)
        s.e(f"buffer_store_dword {vOne}, {vFO}, {sWs}, {soff} offen offset:{imm} sc1")
        s.marks[mark] = 1
    return f
def blk(text): return lambda s: s.e(text)

class Ring:
    hold = ()
    def __init__(self, items, free, ch):
        self.items = list(items); self.free = list(free); self.slot = {}; self.q = []; self.log = {}; self.ch = ch
        self.order = {it[0]: k for k, it in enumerate(items)}; self.xres = True; self.gate = {}; self.lim = None
    def release(self, name):
        if name not in self.hold: self.free.append(self.slot[name])
    def assign(self, s, owner='all', upto=None, maxn=99):
        k = 0
        while k < len(self.items) and maxn > 0:
            it = self.items[k]; nm = it[0]
            if upto is not None and self.order[nm] > self.order[upto]: break
            if self.lim is not None and self.order[nm] > self.order[self.lim]: break
            if nm[0] == 'X':
                want = 2 * (int(nm[2]) & 1) + (nm[1] == 'H')
                ok = [x for x in self.free if x == want]
                if not ok: k += 1; continue
            elif nm[0] in 'BFA': ok = [x for x in self.free if not (self.xres and x < 4)]
            else: ok = [x for x in self.free if x != 0 and not (self.xres and x < 4)]
            if not ok:
                if nm[0] not in 'BA' and not self.strict: k += 1; continue
                break
            if nm[0] in 'BF' and 0 in ok: ok = [0]
            self.items.pop(k); sl = ok[0]; self.free.remove(sl); self.slot[nm] = sl; maxn -= 1
            self.log[nm] = [s.nbar, None, owner]
            if owner == 'all': self.q += [(it, sl, h, 0) for h in range(2)]
            elif owner == self.ch: self.q += [(it, sl, h, o) for o in range(1 if nm == 'BX' else 2) for h in range(2)]
            if nm == 'XH3': self.xres = False
        self.q.sort(key=lambda e: self.order[e[0][0]])
    def pump(self, s, n=1):
        while n > 0 and self.q:
            if self.q[0][0][0] in self.gate: self.gate.pop(self.q[0][0][0])(s)
            it, sl, h, other = self.q.pop(0)
            name, srd_, voff, sbase, o0, o1, dl = it[:7]
            sg = (1 if self.ch == 0 else -1) * other
            vo = voff[h] if isinstance(voff, tuple) else voff
            s.e(f"s_add_u32 m0, {sM0W}, {(sl*SLOT + h*1024 + sg*8192) & 0xffffffff:#x}")
            if len(it) > 7:
                mul, cidx = it[7], it[8](self.ch if not other else 1 - self.ch)
                key = (sbase, mul, cidx)
                if self.rkey != key:
                    s.e(f"s_mul_i32 {sRot}, s{ROT0+cidx}, {mul}\ns_add_u32 {sRot}, {sRot}, {sbase}")
                    self.rkey = key
                sbase = sRot
            s.e(f"s_add_u32 {sSoW}, {sbase}, {((o0, o1)[h] + sg*dl) & 0xffffffff:#x}")
            s.e(f"buffer_load_dwordx4 {vo}, {srd_}, {sSoW} offen {'sc1 ' if name[0] == 'A' else ''}lds", tag=name)
            n -= 1
    rkey = None
    strict = False
    cred = 0
    def pace(self, s, cycles, mx=99):
        self.cred = min(self.cred + cycles * CFG['RATE'], CFG['BURST'])
        while self.q and mx > 0:
            mx -= 1
            e = self.q[0]
            cost = (8192 if self.log[e[0][0]][2] == 'all' else 4096) * (2 if e[0][0][0] == 'F' else 1)
            if self.cred < cost: break
            self.cred -= cost; self.pump(s, 1)
    def need(self, s, name):
        assert name in self.slot, f"{name} has no slot yet"
        while any(e[0][0] == name for e in self.q):
            print("  warning: forced DMA issue for", name, "in", s.name)
            self.pump(s)
        if self.log[name][1] is None: self.log[name][1] = s.nbar
        s.wait_tag(name)
def x_items(q):
    return [(f"XL{q}", sX, (f"v{XD}", f"v{XD+1}"), sXb, 0, 0, 32768, 256, lambda c: q), (f"XH{q}", sX, (f"v{XD}", f"v{XD+1}"), sXb, 65536, 65536, 32768, 256, lambda c: q)]
def w_items(name, srd_, voff, sbase, stride):
    return [(f"{name}{c}", srd_, voff, sbase, 0, 8 * stride, 64 * stride, 128 * stride, lambda ch, c=c: c) for c in range(4)]
ORDER = [4, 5, 6, 7, 16, 17, 18, 19, 8, 9, 10, 11, 20, 21, 22, 23, 12, 13, 14, 15, 0, 1, 2, 3, 24, 25, 26, 27]
def b_item(hf, c):
    nm = f"B{'ab'[hf]}{c}"
    if c < 7:
        o = hf * 896 * 1024 + ORDER[4 * c] * 16384
        return (nm, sW2, vDB, sB2, o, o + 8192, 448 * 1024)
    o = hf * 256 * 1024 + (c - 7) * 65536
    return (nm, sWo, vDB, sBo, o, o + 8192, 128 * 1024)
def a_item(hf, c):
    nm = f"A{'ab'[hf]}{c}"
    if c < 7:
        o = (56 * hf + ORDER[4 * c]) * 1024
        return (nm, sWs, vA16, sA2y, o, o + 144 * 1024, 28 * 1024)
    o = (16 * hf + 4 * (c - 7)) * 1024
    return (nm, sWs, vA16, sA2s, o, o + 144 * 1024, 8 * 1024)
def CB_(n): return f"B{'ab'[n & 1]}{n >> 1}"
def CA_(n): return f"A{'ab'[n & 1]}{n >> 1}"
def b_items(first):
    npre = CFG['NPB']
    it = [b_item(n & 1, n >> 1) for n in range(npre)]
    for n in range(18):
        it.append(a_item(n & 1, n >> 1))
        if npre <= n + 2 < 18: it.append(b_item(n & 1, (n + 2) >> 1))
        if n == CFG['XAT']: it.append(("BX", sX, vDB, "s91", 0, 8192, 0))
    return it

def mish(acc, tmp, so, tag):
    F = []
    for hb in range(2):
        a = acc + 8 * hb
        for j in range(8): F.append(f"v_mul_f32 v{tmp+j}, v{a+j}, {vRSL}")
        for j in range(8): F.append(f"v_exp_f32 v{tmp+j}, v{tmp+j}")
        for j in range(8): F.append(f"v_add_f32 v{tmp+j}, 1.0, v{tmp+j}")
        for j in range(8): F.append(f"v_fma_f32 v{tmp+j}, v{tmp+j}, v{tmp+j}, 1.0")
        for j in range(8): F.append(f"v_rcp_f32 v{tmp+j}, v{tmp+j}")
        for j in range(8): F.append(f"v_fma_f32 v{tmp+j}, v{tmp+j}, {vM2}, {vRS}")
        for j in range(8): F.append(f"v_mul_f32 v{tmp+j}, v{a+j}, v{tmp+j}")
        for j in range(4): F.append(f"v_cvt_pk_bf16_f32 v{a+j}, v{tmp+2*j}, v{tmp+2*j+1}")
        F.append((f"buffer_store_dwordx4 {R(a,4)}, {vA16}, {sWs}, {so} offen offset:{hb*1024} sc1", tag))
    return F
def bc(r):
    n = int(r[1:]); return R(n & ~1, 2), n & 1
def pk2(op, d, a, b, c=None):
    ops = [R(a, 2)]; lo = [0]; hi = [1]
    for x in (b, c):
        if x is None: continue
        if isinstance(x, int): ops.append(R(x, 2)); lo.append(0); hi.append(1)
        elif x[0] == 'v':
            p, o = bc(x); ops.append(p); lo.append(o); hi.append(o)
        else: ops.append(x); lo.append(0); hi.append(0)
    f = lambda L: "[" + ",".join(map(str, L)) + "]"
    return f"v_pk_{op}_f32 {R(d,2)}, " + ", ".join(ops) + f" op_sel:{f(lo)} op_sel_hi:{f(hi)}"
def mish_pk(acc, tmp, so, tag):
    F = []
    for hb in range(2):
        a = acc + 8 * hb; E = range(0, 8, 2)
        F += [pk2("mul", tmp + j, a + j, vRSL) for j in E] + [f"v_exp_f32 v{tmp+j}, v{tmp+j}" for j in range(8)]
        F += [pk2("add", tmp + j, tmp + j, "1.0") for j in E] + [pk2("fma", tmp + j, tmp + j, tmp + j, "1.0") for j in E]
        F += [f"v_rcp_f32 v{tmp+j}, v{tmp+j}" for j in range(8)]
        F += [pk2("fma", tmp + j, tmp + j, vM2, vRS) for j in E] + [pk2("mul", tmp + j, tmp + j, a + j) for j in E]
        F += [f"v_cvt_pk_bf16_f32 v{a+j}, v{tmp+2*j}, v{tmp+2*j+1}" for j in range(4)]
        F.append((f"buffer_store_dwordx4 {R(a,4)}, {vA16}, {sWs}, {so} offen offset:{hb*1024} sc1", tag))
    return F
def softmax_pk(P, out, t0, t1, tp):
    F = softmax(P, out, t0, t1)[:9]; E = range(0, 16, 2)
    F += [pk2("fma", P + j, P + j, vRSL, t0) for j in E] + [f"v_exp_f32 v{P+j}, v{P+j}" for j in range(16)]
    F += [pk2("add", tp, P, P + 2), pk2("add", tp + 2, P + 4, P + 6), pk2("add", tp, tp, P + 8), pk2("add", tp + 2, tp + 2, P + 10),
          pk2("add", tp, tp, P + 12), pk2("add", tp + 2, tp + 2, P + 14), pk2("add", tp, tp, tp + 2), f"v_add_f32 {t0}, v{tp}, v{tp+1}", f"v_rcp_f32 {t0}, {t0}"]
    F += [pk2("mul", P + j, P + j, t0) for j in E] + [f"v_cvt_pk_bf16_f32 v{out+j}, v{P+2*j}, v{P+2*j+1}" for j in range(8)]
    return F
def softmax(P, out, t0, t1):
    F = [f"v_max3_f32 {t0}, v{P}, v{P+1}, v{P+2}", f"v_max3_f32 {t1}, v{P+3}, v{P+4}, v{P+5}",
         f"v_max3_f32 {t0}, {t0}, v{P+6}, v{P+7}", f"v_max3_f32 {t1}, {t1}, v{P+8}, v{P+9}",
         f"v_max3_f32 {t0}, {t0}, v{P+10}, v{P+11}", f"v_max3_f32 {t1}, {t1}, v{P+12}, v{P+13}",
         f"v_max3_f32 {t0}, {t0}, v{P+14}, v{P+15}", f"v_max_f32 {t0}, {t0}, {t1}", f"v_mul_f32_e64 {t0}, -{t0}, {vRSL}"]
    for j in range(16): F.append(f"v_fma_f32 v{P+j}, v{P+j}, {vRSL}, {t0}")
    for j in range(16): F.append(f"v_exp_f32 v{P+j}, v{P+j}")
    F += [f"v_add_f32 {t0}, v{P}, v{P+1}", f"v_add_f32 {t1}, v{P+2}, v{P+3}"]
    for j in range(4, 16, 2):
        F += [f"v_add_f32 {t0}, {t0}, v{P+j}", f"v_add_f32 {t1}, {t1}, v{P+j+1}"]
    F += [f"v_add_f32 {t0}, {t0}, {t1}", f"v_rcp_f32 {t0}, {t0}"]
    for j in range(16): F.append(f"v_mul_f32 v{P+j}, v{P+j}, {t0}")
    for j in range(8): F.append(f"v_cvt_pk_bf16_f32 v{out+j}, v{P+2*j}, v{P+2*j+1}")
    return F
def pack16(acc, out): return [f"v_cvt_pk_bf16_f32 v{out+j}, v{acc+2*j}, v{acc+2*j+1}" for j in range(8)]
def phi_frags():
    F = ["v_bfe_u32 v25, v0, 2, 2", "v_lshrrev_b32 v26, 5, v0", "v_lshl_add_u32 v25, v26, 2, v25", "v_lshlrev_b32 v25, 5, v25",
         "v_bfe_u32 v26, v0, 4, 1", "v_lshl_add_u32 v25, v26, 4, v25", "v_bfe_u32 v26, v0, 1, 1", "v_lshl_add_u32 v25, v26, 3, v25",
         blk(f"s_lshl_b32 s4, {sCH}, 10\ns_add_u32 s4, s4, {SCR_PHI}\nv_add_u32 v25, s4, v25")]
    for h in range(2):
        for rd in range(2): F.append(f"ds_read_b64_tr_b16 {R(PHI+4*h+2*rd,2)}, v25 offset:{h*512 + rd*256}")
    F += ["v_bfe_u32 v26, v0, 2, 1", "v_mul_u32_u24 v26, 0x8000, v26", "v_lshl_or_b32 v26, v26, 16, v26"]
    for j in range(8): F.append(f"v_xor_b32 v{PHI+j}, v26, v{PHI+j}")
    return F

BIASL = {}
def prologue(s):
    s.e("s_load_dwordx2 s[64:65], s[0:1], 0\ns_load_dwordx8 s[68:75], s[0:1], 8\ns_load_dwordx8 s[76:83], s[0:1], 40")
    s.e("s_load_dwordx2 s[84:85], s[0:1], 80\ns_load_dwordx2 s[66:67], s[0:1], 72")
    s.e("s_cmp_ge_u32 s2, 256\ns_cbranch_scc1 L_end")
    s.e("v_lshrrev_b32 v2, 6, v0\nv_and_b32 v0, 63, v0\ns_and_b32 s3, s2, 7\ns_lshr_b32 s87, s2, 3")
    s.e(f"v_readfirstlane_b32 {sW}, v2")
    s.e(f"v_lshrrev_b32 v33, 4, v0\nv_and_b32 v34, 15, v0")
    s.e(f"s_cmp_lg_u32 {sW}, {CFG['PWW']}\ns_cbranch_scc1 L_nopw")
    s.e(f"s_getpc_b64 s[90:91]\nL_pc0:\ns_sub_u32 s90, s90, L_pc0-{KNAME}\ns_subb_u32 s91, s91, 0\ns_lshl_b32 s5, s87, 11\nv_lshlrev_b32 v35, 7, v34\nv_add_u32 v35, s5, v35")
    s.raw("global_load_dword v26, v35, s[90:91]")
    s.e("L_nopw:")
    s.e(f"s_and_b32 s5, s3, 1\ns_lshl_b32 s5, s5, 3\ns_and_b32 {sI}, s87, 7\ns_add_u32 {sI}, {sI}, s5")
    s.e(f"s_and_b32 {sRT2}, {sW}, 1\ns_lshl_b32 {sM0W}, {sW}, 11\ns_lshl_b32 s5, {sRT2}, 3")
    for h in range(2):
        s.e(f"v_add_u32 v35, {4*h}, v33\nv_add_u32 v36, s5, v35\nv_xor_b32 v36, v34, v36\nv_lshlrev_b32 v36, 4, v36\nv_lshl_add_u32 v{XD+h}, v35, 10, v36")
    s.e(f"s_lshr_b32 s{ROT0}, s3, 1\ns_lshl_b32 s{ROT0+1}, s3, 1\ns_add_u32 s{ROT0}, s{ROT0}, s{ROT0+1}")
    for c in range(1, 4): s.e(f"s_add_u32 s{ROT0+c}, s{ROT0}, {c}\ns_and_b32 s{ROT0+c}, s{ROT0+c}, 3")
    s.e(f"s_and_b32 s{ROT0}, s{ROT0}, 3")
    s.e(f"s_lshl_b32 {sXb}, {sI}, 17\ns_lshl_b32 s5, {sW}, 13\ns_add_u32 {sXb}, {sXb}, s5\ns_mov_b32 s10, {2048*512*2}\ns_mov_b32 s11, 0x20000")
    s.e("v_lshrrev_b32 v36, 3, v0\nv_and_b32 v37, 7, v0\nv_lshlrev_b32 v38, 1, v36\nv_and_b32 v38, 4, v38\nv_xor_b32 v37, v37, v38\nv_lshlrev_b32 v37, 4, v37")
    s.raw("s_waitcnt lgkmcnt(0)")
    s.e("s_mov_b32 s8, s64\ns_and_b32 s9, s65, 0xffff")
    srd(s, sWs, "s84", "s85", 0x10000000)
    s.e(f"v_lshlrev_b32 {vA16}, 4, v0\ns_cmp_lg_u32 s3, 1\ns_cbranch_scc1 L_noinit")
    s.e("v_mov_b32 v40, 0\nv_mov_b32 v41, 0\nv_mov_b32 v42, 0\nv_mov_b32 v43, 0")
    s.e(f"s_lshl_b32 s5, s87, 13\ns_lshl_b32 s4, {sW}, 10\ns_add_u32 s5, s5, s4\ns_add_u32 s5, s5, {Z_OFF}")
    s.raw(f"buffer_store_dwordx4 v[40:43], {vA16}, {sWs}, s5 offen sc1")
    s.e("s_add_u32 s5, s5, 0x40000")
    s.raw(f"buffer_store_dwordx4 v[40:43], {vA16}, {sWs}, s5 offen sc1")
    s.e("L_noinit:")
    r0 = Ring(x_items(0) + x_items(1), range(9), 0); r0.assign(s)
    r0.pump(s, 4)
    s.e(f"v_mul_u32_u24 {vDq}, 3072, v36\nv_add_u32 {vDq}, {vDq}, v37\nv_mul_u32_u24 {vD1}, 3584, v36\nv_add_u32 {vD1}, {vD1}, v37")
    s.e(f"s_lshr_b32 s5, s3, 1\ns_lshl_b32 s5, s5, 2\ns_lshr_b32 s6, s87, 3\ns_add_u32 s5, s5, s6")
    s.e(f"s_lshr_b32 {sG}, s5, 1\ns_and_b32 {sTY}, s5, 1\ns_lshl_b32 {sRB}, s3, 2\ns_add_u32 {sRB}, {sRB}, s6\ns_and_b32 {sCB}, s87, 7")
    s.e(f"s_lshr_b32 {sKQ}, {sW}, 1\ns_and_b32 {sRT}, {sW}, 3\ns_lshr_b32 {sCH}, {sW}, 2\ns_mov_b32 s88, s2")
    srd(s, sWq, "s68", "s69", 512 * 1536 * 2)
    srd(s, sW1, "s76", "s77", 512 * 1792 * 2)
    def wpair(c, first):
        l1, l2 = label(), label()
        s.e(f"s_cmp_eq_u32 {sTY}, 0\ns_cbranch_scc1 {l1}")
        vm0 = list(s.vm)
        for typ, it in (('B', w_items("W", sW1, vD1, sUA, 3584)), ('A', w_items("W", sWq, vDq, sUA, 3072))):
            s.vm = list(vm0)
            if typ == 'A': s.e(f"{l1}:")
            if first: BIASL[typ] = unit_bases(s, typ)
            r = Ring([it[c]], [4 + c], 0); r.assign(s); r.pump(s, 2)
            if typ == 'B': s.e(f"s_branch {l2}")
        s.e(f"{l2}:")
    wpair(0, True)
    s.e(f"v_lshl_add_u32 {vDB}, v36, 10, v37")
    prologue2(s)
    r0.rkey = None
    r0.pump(s, 4)
    wpair(1, False)

def prologue2(s):
    srd(s, sPhi, "s70", "s71", 32 * 512)
    srd(s, sB1, "s78", "s79", 1792 * 2)
    srd(s, sW2, "s80", "s81", 1792 * 512 * 2)
    srd(s, sWo, "s72", "s73", 512 * 512 * 2)
    srd(s, sOut, "s82", "s83", 2048 * 512 * 2)
    srd(s, sDbg, "s66", "s67", 256)
    s.e(f"s_mov_b32 {sBID}, s88\ns_mov_b32 {sC11}, 0x3f803f80")
    s.e(f"v_lshrrev_b32 v36, 2, v0\nv_and_b32 v37, 3, v0\nv_lshlrev_b32 v37, 4, v37\nv_mul_u32_u24 {vD5}, 3584, v36\nv_add_u32 {vD5}, {vD5}, v37")
    s.e(f"v_and_b32 {vP4}, 31, v0\nv_lshlrev_b32 {vP4}, 2, {vP4}")
    s.e(f"v_mov_b32 v29, 0\nv_mov_b32 {vFO}, {BIG}\nv_cmp_eq_u32 vcc, 0, v0\nv_cndmask_b32 {vFO}, {vFO}, 0, vcc")
    s.e("v_bfe_u32 v36, v0, 2, 2\nv_and_b32 v37, 3, v0\nv_bfe_u32 v38, v0, 4, 1\nv_lshrrev_b32 v39, 5, v0")
    s.e("v_lshlrev_b32 v40, 3, v37\nv_lshl_add_u32 v40, v38, 5, v40\nv_lshl_add_u32 v41, v39, 3, v36")
    s.e(f"v_lshrrev_b32 v42, 1, v36\nv_xor_b32 v42, {sCH}, v42\nv_lshlrev_b32 v42, 6, v42")
    s.e(f"v_lshl_add_u32 v43, v41, 7, v40\nv_add_u32 v43, v43, v42")
    for j in range(4):
        s.e(f"s_xor_b32 s5, {sRT}, {j}\ns_lshl_b32 s5, s5, 12\ns_add_u32 s5, s5, {SLOT}\nv_add_u32 v{VW+j}, s5, v43\nv_add_u32 v{VW+4+j}, 0x10000, v{VW+j}")
    s.e(f"v_and_b32 v44, 31, v0\ns_lshl_b32 s5, {sRT}, 5\nv_add_u32 v45, s5, v44\nv_xor_b32 v46, v39, v34\nv_lshlrev_b32 v46, 4, v46\nv_lshl_add_u32 v{XR}, v45, 8, v46")
    s.e(f"s_lshl_b32 s5, {sRT}, 6\nv_xor_b32 v{XR}, s5, v{XR}")
    for t in range(1, 8): s.e(f"v_xor_b32 v{XR+t}, {t<<5}, v{XR}")
    s.e(f"v_lshlrev_b32 v44, 2, v38\nv_cmp_eq_u32 vcc, v44, v34\nv_mov_b32 v44, {sC11}\nv_cndmask_b32 v{ASEL}, 0, v44, vcc")
    for j in range(1, 4): s.e(f"v_mov_b32 v{ASEL+j}, v{ASEL}")
    s.e(f"v_mov_b32 v{CF+4}, 0\nv_mov_b32 v{CF+5}, 0")
    s.e(f"s_lshl_b32 s3, {sI}, 2\ns_add_u32 s3, s3, {sRT}\ns_mul_i32 {sAF}, s3, {144*1024}")
    s.e(f"s_mul_i32 {sKS}, {sG}, {14*1024}\ns_add_u32 {sKS}, {sKS}, {sAF}")
    s.e(f"s_lshl_b32 {sFL}, s3, 2\ns_lshr_b32 s4, {sG}, 1\ns_add_u32 {sFL}, {sFL}, s4\ns_mul_i32 {sFL}, {sFL}, 640")
    s.e(f"s_and_b32 s4, {sG}, 1\ns_lshl_b32 s4, s4, 3\ns_lshl_b32 s5, {sCH}, 2\ns_add_u32 s4, s4, s5\ns_add_u32 {sFL}, {sFL}, s4\ns_add_u32 {sFL}, {sFL}, {ACTFLAG_OFF}")
    s.e(f"s_mul_i32 {sAF2}, {sRB}, {288*1024}\ns_lshl_b32 s3, {sRT}, 10\ns_add_u32 {sAF2}, {sAF2}, s3")
    s.e(f"s_mul_i32 {sFL2}, {sRB}, 5120\ns_add_u32 {sFL2}, {sFL2}, {ACTFLAG_OFF}")
    s.e(f"s_mul_i32 {sB2}, {sCH}, {448*1024}\ns_lshl_b32 s4, {sRT}, 14\ns_lshl_b32 s5, {sCB}, 7\ns_add_u32 s4, s4, s5\ns_add_u32 {sB2}, {sB2}, s4")
    s.e(f"s_lshl_b32 {sBo}, {sCH}, 17\ns_add_u32 {sBo}, {sBo}, s4")
    s.e(f"s_lshl_b32 s3, {sG}, 2\ns_add_u32 s3, s3, {sKQ}\ns_mul_i32 {sKVs}, s3, 2176\ns_add_u32 {sKVs}, {sKVs}, {KV_OFF}")
    s.e(f"s_lshl_b32 s3, {sG}, 3\ns_add_u32 s3, s3, {sW}\ns_lshl_b32 {sKVF}, s3, 11\ns_add_u32 {sKVF}, {sKVF}, {KVFLAG_OFF}")
    s.e(f"s_mul_i32 s3, {sCH}, {28*1024}\ns_add_u32 {sA2y}, {sAF2}, s3")
    s.e(f"s_lshl_b32 s3, {sCH}, 13\ns_add_u32 {sA2s}, {sAF2}, s3\ns_add_u32 {sA2s}, {sA2s}, {112*1024}")
    s.e(f"v_lshrrev_b32 {vT}, 1, {vP4}")

def unit_bases(s, typ):
    s.e(f"s_mul_i32 s3, {sW}, {16*3072}\ns_lshl_b32 s4, {sG}, 7\ns_add_u32 s3, s3, s4")
    s.e(f"s_mul_i32 s4, {sG}, 448\ns_and_b32 s5, {sG}, 1\ns_cmp_eq_u32 s5, 0")
    if typ == 'A':
        s.e(f"s_cselect_b32 s5, 0, 320\ns_add_u32 s4, s4, s5")
        s.e(f"s_add_u32 {sUA}, s3, 1024\ns_add_u32 {sUB}, s3, 2048")
        s.e(f"s_mul_i32 {sUC}, {sW}, {16*3584}\ns_add_u32 {sUC}, {sUC}, s4")
        s.e(f"s_lshl_b32 s5, {sCH}, 6\ns_add_u32 s92, s4, s5")
        return [f"buffer_load_ushort v{BI0}, {vT}, {sB1}, s92 offen"]
    s.e(f"s_cselect_b32 s5, 128, 64\ns_cselect_b32 {sUD}, 384, 0")
    s.e(f"s_add_u32 s5, s4, s5\ns_add_u32 s92, s4, {sUD}\ns_mov_b32 {sUC}, s3")
    s.e(f"s_mul_i32 {sUA}, {sW}, {16*3584}\ns_add_u32 {sUA}, {sUA}, s5\ns_add_u32 {sUB}, {sUA}, 128")
    s.e(f"s_mul_i32 {sUD}, {sRT}, {32*3584}\ns_add_u32 {sUD}, {sUD}, s92")
    s.e(f"s_lshl_b32 s3, {sCH}, 6\ns_add_u32 s93, s5, s3")
    return [f"buffer_load_ushort v{BI2}, {vT}, {sB1}, s92 offen", f"buffer_load_ushort v{BI0}, {vT}, {sB1}, s93 offen",
            f"buffer_load_ushort v{BI1}, {vT}, {sB1}, s93 offen offset:128"]

def start(s, ring, n0):
    ring.assign(s, upto=ring.upto0)
    pre = ["XL0", "XH0", n0 + "0", "XL1", "XH1", n0 + "1"]
    assert [ring.slot[x] for x in pre] == [0, 1, 4, 2, 3, 5]
    ring.q = [e for e in ring.q if e[0][0] not in pre]
    s.vm = [(d, (n0 + tg[1] if tg in ("W0", "W1") else tg)) for d, tg in s.vm]
def touch_all(s, which):
    specs = dict(x=(sX, 64, 4), q=(sWq, 48, 5), w1=(sW1, 56, 6), w2=(sW2, 56, 4), wo=(sWo, 16, 5))
    for nm in which:
        srd_, nl, wv = specs[nm]
        lab = label()
        s.e(f"s_cmp_lg_u32 {sW}, {wv}\ns_cbranch_scc1 {lab}")
        s.e(f"v_min_u32 v47, {nl-1}, v0\nv_lshlrev_b32 v47, 7, v47\ns_mul_i32 s5, s88, {nl*128}\ns_mov_b32 m0, {SCR + 15360}\ns_nop 0")
        s.raw(f"buffer_load_dword v47, {srd_}, s5 offen lds")
        s.e(f"{lab}:")
def late_loads(biasloads):
    def f(s):
        s.e(f"v_lshrrev_b32 {vT}, 1, {vP4}")
        for x in biasloads: s.e(x)
        s.e(f"s_lshl_b32 s3, {sG}, 11\ns_lshl_b32 s4, {sRT2}, 10\ns_add_u32 s3, s3, s4\ns_add_u32 m0, s4, {SCR_PHI}")
        s.e(f"buffer_load_dwordx4 {vA16}, {sPhi}, s3 offen lds", tag="phi")
    return f

MF = "v_mfma_f32_32x32x16_bf16"
def bar(s, ring, name, needs=(), rel=(), owner='all', lg0=False, upto=None, extra=(), maxn=99):
    if CFG.get('SB'): stamp("<" + name)(s)
    for n in needs: ring.need(s, n)
    if lg0: s.wait(lg=0)
    s.wait_dswrites()
    pend = [k for k, (_, tg) in enumerate(s.lg) if tg in rel]
    if pend:
        s.wait(lg=len(s.lg) - 1 - max(pend))
    for n in rel: s.released.add(n)
    if extra: assert not any(tg is None for _, tg in s.lg), f"scratch release at {name} with untagged LDS ops pending"
    s.e("s_barrier")
    stamp(name)(s)
    s.marks[name] = 1
    for n in rel: ring.release(n)
    ring.free += list(extra)
    if owner == 'all':
        k = 'x' if name[0] == 'b' else ('a' if name[0] in 'ae' else 'p')
        if k in CFG['OWN'] and not (s.name[0] == 'B' and name in ('c3', 'd3', 'e1')): owner = 0
    ring.assign(s, owner, upto, maxn)
def B(ring, *a, **k): return lambda s: bar(s, ring, *a, **k)

class MSeg:
    def __init__(self, ring, u, ch, events=None, posts=None, xpass=False, dma=0):
        self.ring, self.u, self.ch, self.ev, self.posts, self.xp, self.dma = ring, u, ch, events or {}, posts or {}, xpass, dma
        self.nr = 0; self.hs = None
    def reads(self, s, t):
        u, ring = self.u, self.ring
        for e in self.ev.get(t, []): e(s)
        c, p = t // 8, t % 8
        if self.xp:
            for x in {0: (0, 1), 1: (2, 3, 4), 2: (5, 6, 7)}.get(p, ()):
                s.e(f"ds_read_b128 {R(XA+32*c+4*x,4)}, v{XR+x} offset:{(c&1)*32768}", tag=f"XL{c}")
        it = f"{u['name']}{c}" if u['kind'] == 'w' else f"{u['name']}{c//2}"
        assert ring.log[it][1] is not None, f"{it} read before certified"
        assert it not in s.released and not (self.xp and p < 3 and f"XL{c}" in s.released)
        sl = ring.slot[it]; buf = WB + 4 * (t % 4)
        if u['kind'] == 'h5' and self.hs != sl:
            if self.hs is None:
                s.e("v_bfe_u32 v116, v0, 2, 2\nv_lshrrev_b32 v117, 5, v0\nv_lshl_add_u32 v116, v117, 3, v116\nv_lshlrev_b32 v116, 6, v116\nv_bfe_u32 v117, v0, 4, 1\nv_lshl_add_u32 v116, v117, 5, v116\nv_and_b32 v117, 3, v0\nv_lshl_add_u32 v116, v117, 3, v116")
                for j in range(4): s.e(f"s_xor_b32 s3, {sRT}, {j}\ns_lshl_b32 s3, s3, 11\ns_add_u32 s3, s3, {sl*SLOT}\nv_add_u32 v{HR+j}, s3, v116")
            else:
                for j in range(4): s.e(f"v_add_u32 v{HR+j}, {((sl-self.hs)*SLOT) & 0xffffffff:#x}, v{HR+j}")
            self.hs = sl
        for k in range(2):
            if u['kind'] == 'w':
                w = 0 if sl <= 4 else 1
                r, off = f"v{VW+4*w+p//2}", (sl - 1 - 4 * w) * SLOT + (p & 1) * 2048 + k * 512
            else: r, off = f"v{HR+p//2}", (c % 2) * 8192 + (p & 1) * 1024 + k * 256
            s.e(f"ds_read_b64_tr_b16 {R(buf+2*k,2)}, {r} offset:{off}", tag=it); s.seen.add(it)
    def pre(self, s, n=None):
        n = CFG['PF'] if n is None else n
        while self.nr < n: self.reads(s, self.nr); self.nr += 1
    def run(self, s, nxt=None, F=None, budget=0):
        u = self.u; ch = self.ch
        credit = 0
        if CFG['PRIO'] and not self.xp: s.e("s_setprio 1")
        self.pre(s)
        for t in range(32):
            c, p = t // 8, t % 8
            buf = WB + 4 * (t % 4)
            cin = R(u['acc'], 16) if t > 0 else "0"
            a, b = (R(buf, 4), R(XA + 4 * t, 4)) if u['trans'] else (R(XA + 4 * t, 4), R(buf, 4))
            s.e(f"{MF} {R(u['acc'],16)}, {a}, {b}, {cin}")
            if p < 2 and not (CFG.get('NOCS') and t > 0): s.e(f"v_mfma_f32_16x16x32_bf16 {R(CSA,4)}, {R(ASEL,4)}, {R(buf,4)}, {R(CSA,4) if t > 0 else '0'}")
            if self.nr < 32: self.reads(s, self.nr); self.nr += 1
            elif nxt is not None: nxt.pre(s, t - 31 + CFG['PF'])
            if self.xp and t < 25 and CFG['PAR'] == 2:
                if t % 2 == ch or ('x' in CFG['OWN'] and ch == 0): self.ring.pump(s, 2)
            elif self.xp and t < 25: self.ring.pump(s, 1)
            elif self.xp: self.ring.pace(s, CFG['ST'])
            elif self.dma and CFG['PAR']:
                if 'p' in CFG['OWN']: self.ring.pace(s, self.dma, 1)
                elif t % 2 == ch: self.ring.pace(s, 2 * self.dma, 2)
            elif self.dma: self.ring.pace(s, self.dma)
            if t == 27:
                s.e(f"s_lshl_b32 s3, {sRT}, 2\ns_add_u32 s3, s3, {SCR_CS + u['csi']*2048 + ch*1024}\nv_add_u32 v{CSA+1}, s3, {vA16}\nds_write_b32 v{CSA+1}, v{CSA}")
            if self.xp and p in (1, 3):
                for x in ((ch, ch + 2) if p == 1 else (ch + 4, ch + 6)):
                    for j in range(4):
                        r = XA + 32 * c + 4 * x + j
                        first = (c == 0 and p == 1 and x == ch and j < 2)
                        s.e(f"v_dot2_f32_bf16 v{STA+(j&1)}, v{r}, {sC11}, {'0' if first else f'v{STA+(j&1)}'}")
                        s.e(f"v_dot2_f32_bf16 v{STA+2+(j&1)}, v{r}, v{r}, {'0' if first else f'v{STA+2+(j&1)}'}")
                if t == 27:
                    q = f"v{STA+2}"
                    s.e(f"v_add_f32 v{STA}, v{STA}, v{STA+1}\nv_add_f32 v{STA+1}, v{STA+2}, v{STA+3}\nv_lshrrev_b32 {q}, 5, v0\nv_lshlrev_b32 {q}, 3, {q}\n"
                        f"v_lshl_add_u32 {q}, {vP4}, 3, {q}\ns_lshl_b32 s3, {sRT}, 10\ns_add_u32 s3, s3, {SCR_ST + ch*16}\nv_add_u32 {q}, s3, {q}\nds_write_b64 {q}, {R(STA,2)}")
            for e in self.posts.get(t, []): e(s)
            if F is not None: credit = fill(s, F, (budget(t) if callable(budget) else budget) + min(credit, CFG['CRED']))
        if CFG['PRIO'] and not self.xp: s.e("s_setprio 0")

def fill(s, F, budget, force=False, pop=False):
    while budget > 0 and F:
        f = F[0]
        if isinstance(f, tuple) and f[0] == 'wait':
            if f[1] in s.marks: F.pop(0); continue
            return 0
        if isinstance(f, tuple) and f[0] == 'nextbar': f = F[0] = ('barge', s.nbar + 1)
        if isinstance(f, tuple) and f[0] in ('barge', 'bhold'):
            if s.nbar >= f[1]: F.pop(0); continue
            return 0
        if isinstance(f, tuple) and f[0] in ('hold', 'tilt'):
            if pop: F.pop(0); continue
            return 0
        if isinstance(f, tuple) and f[0] == 'gap':
            f = F[0] = ('until', s.n_issued + f[1])
        if isinstance(f, tuple) and f[0] == 'until':
            if s.n_issued >= f[1] or force: F.pop(0); continue
            return 0
        if callable(f):
            F.pop(0); n0 = s.n_issued; f(s); budget -= max(1, (s.n_issued - n0) * 0.5); continue
        txt, tag = (f if isinstance(f, tuple) else (f, None))
        need, age = s.cost(txt)
        if not force and (need > 1 or (age is not None and age < CFG['AGE'])): return budget
        F.pop(0); s.e(txt, tag)
        k = I(txt).kind
        budget -= 2 if k == 'trans' else (0.5 if k in ('salu', 'ds', 'vm') else 1)
    return 0
def until(s, ring, F, name, every=None, nopace=False):
    n = 0
    while name not in s.marks:
        assert F, name
        if isinstance(F[0], tuple) and F[0][0] == 'bhold': F.pop(0)
        l = len(F); fill(s, F, 1, force=True, pop=True)
        assert len(F) < l, ("stuck", F[0], name, s.name)
        n += 1
        if not nopace: ring.pace(s, 9)
    return n
def vrun(s, ring, F, slots, every=None, flush=True):
    every = every or CFG['VD']
    while slots > 0 and F:
        l = len(F); fill(s, F, min(every, slots), force=True); slots -= every
        ring.pace(s, 9 * every)
        if len(F) == l: break
    if flush: ring.pump(s, 99)

def vseg(s, ring, F, every=None, flush=True):
    every = every or CFG['VD']
    n = 0
    for f in F:
        if isinstance(f, tuple) and f[0] in ('after', 'skip', 'wait', 'gap', 'until'): continue
        drain(s, [f]); n += 1
        ring.pace(s, 10)
    if flush: ring.pump(s, 99)
def split(F, frac, item):
    k = int(len(F) * frac)
    return F[:k] + [item] + F[k:]

def pass0(s, ring, u, ch, bl, nextname, nextneed):
    ev = {}
    NBX = CFG['NBX']; n = u['name']
    for c in range(4):
        def b0(s, c=c):
            if c == 3: s.wait_tag("phi")
            lag = CFG['LG0'] == 0
            if lag: rel = [f"{n}{c-2}"] if (c >= 2 and c - 1 >= NBX) else []
            else: rel = [f"{n}{c-1}"] if c else []
            if c - 1 >= NBX: rel += [f"XL{c-1}", f"XH{c-1}"]
            up = CFG['UP'][2 * c]
            bar(s, ring, f"b0{c}", [f"{n}{c}", f"XL{c}", f"XH{c}"] + (nextneed if (c == 3 and NBX < 4) else []), rel, lg0=not lag, upto=(nextname[0] + str(up) if up < 4 else None))
            if c == 0 and ch == 0:
                lab = label()
                s.e(f"s_and_b32 s3, {sBID}, 7\ns_cmp_lg_u32 s3, 1\ns_cbranch_scc1 {lab}\ns_cmp_lg_u32 {sW}, 0\ns_cbranch_scc1 {lab}\ns_lshl_b32 s3, s87, 2")
                s.raw(f"buffer_store_dword {vOne}, {vFO}, {sDbg}, s3 offen offset:128 sc1")
                s.e(f"{lab}:")
        def bx(s, c=c):
            s.wait_regs([f"v{r}" for r in range(XA + 32 * c, XA + 32 * c + 32)])
            bar(s, ring, f"bx{c}", nextneed if c == 3 else [], [f"XL{c}", f"XH{c}"] + ([f"{n}{c-1}"] if (c and CFG['LG0'] == 0) else []),
                upto=(nextname[0] + str(CFG['UP'][2 * c + 1]) if c < 3 else None))
        ev[8 * c] = [b0]
        if c < NBX: ev[8 * c + 4] = [bx]
    ring.c1rel = (["XL3", "XH3"] if NBX < 4 else []) + ([f"{n}2"] if (CFG['LG0'] == 0 and NBX < 4) else [])
    return MSeg(ring, u, ch, ev, {CFG['LLT']: [late_loads(bl)], CFG['TBT']: [lambda s: touchB(s)], CFG['TWT']: [lambda s: touchW(s)]}, xpass=True, dma=1)

def stats_fin(T):
    F = [blk(f"s_lshl_b32 s4, {sRT}, 10\ns_add_u32 s4, s4, {SCR_ST}\nv_lshlrev_b32 {vT}, 3, {vP4}\nv_add_u32 {vT}, s4, {vT}"),
         f"ds_read_b128 {R(T,4)}, {vT}", f"ds_read_b128 {R(T+4,4)}, {vT} offset:16",
         blk(f"s_lshl_b32 s4, {sRT}, 7\ns_add_u32 s4, s4, {SCR_RS}\nv_add_u32 {vT}, s4, {vP4}\nv_cmp_gt_u32 s[94:95], 32, v0")]
    a, b = f"v{T}", f"v{T+1}"
    F += [f"v_add_f32 {a}, {a}, v{T+2}", f"v_add_f32 {b}, {b}, v{T+3}", f"v_add_f32 v{T+4}, v{T+4}, v{T+6}", f"v_add_f32 v{T+5}, v{T+5}, v{T+7}",
          f"v_add_f32 {a}, {a}, v{T+4}", f"v_add_f32 {b}, {b}, v{T+5}", f"v_mul_f32 {a}, 0xbb000000, {a}", f"v_mul_f32 {b}, 0x3b000000, {b}",
          f"v_fma_f32 {b}, -{a}, {a}, {b}", f"v_max_f32 {b}, 0, {b}", f"v_cvt_pk_bf16_f32 {b}, {b}, {b}", f"v_lshlrev_b32 {b}, 16, {b}",
          f"v_add_f32 {b}, 0x3727c5ac, {b}", f"v_cvt_pk_bf16_f32 {b}, {b}, {b}", f"v_lshlrev_b32 {b}, 16, {b}", f"v_sqrt_f32 {b}, {b}",
          f"v_cvt_pk_bf16_f32 {b}, {b}, {a}", f"v_lshlrev_b32 {vRS}, 16, {b}", f"v_rcp_f32 {vRS}, {vRS}",
          f"v_cndmask_b32 v{CF+2}, 0, {b}, s[94:95]", f"v_lshrrev_b32 v{CF+3}, 16, v{CF+2}",
          f"v_mul_f32 {vRSL}, 0x3fb8aa3b, {vRS}", f"v_mul_f32 {vM2}, -2.0, {vRS}", f"ds_write_b32 {vT}, {vRS}"]
    return F
def correct(u, ch, T, bias=None):
    F = [f"v_lshlrev_b32 v{T}, 2, {vP4}", f"v_add_u32 v{T}, {SCR_CS + u['csi']*2048 + ch*1024}, v{T}", f"ds_read_b128 {R(T,4)}, v{T}",
         f"v_add_f32 v{T}, v{T}, v{T+1}", f"v_add_f32 v{T+2}, v{T+2}, v{T+3}", f"v_add_f32 v{T}, v{T}, v{T+2}",
         f"v_cvt_pk_bf16_f32 v{T+1}, v{T}, v{T}", f"v_and_b32 v{CF}, 0xffff0000, v{T+1}", f"v_sub_f32 v{T}, v{T}, v{CF}", f"v_cvt_pk_bf16_f32 v{CF+1}, v{T}, v{T}"]
    if bias is not None: F.append(f"v_or_b32 v{CF}, v{CF}, v{bias}")
    a, b = (R(CF, 4), R(CF + 2, 4)) if u['trans'] else (R(CF + 2, 4), R(CF, 4))
    F.append(f"{MF} {R(u['acc'],16)}, {a}, {b}, {R(u['acc'],16)}")
    return F

def mark(name): return lambda s: s.marks.__setitem__(name, 1)
YA, SA, AB, XT = 224, 32, 240, 48
vB0, vA0 = "v5", "v24"
NRI = 3
def bnm(ch, c): return f"B{'ab'[ch]}{c}"
def breg(t): return XA + 4 * (t % 24)
def bread(ring, t):
    def f(s):
        nm = CB_(t // 8)
        assert ring.log[nm][1] is not None and nm not in s.released, nm
        sl = ring.slot[nm]
        if ring.bsl != sl:
            s.e(f"v_add_u32 {vB0}, {((sl - ring.bsl) * SLOT) & 0xffffffff:#x}, {vB0}"); ring.bsl = sl
        for k in range(2): s.e(f"ds_read_b64_tr_b16 {R(breg(t) + 2*k, 2)}, {vB0} offset:{(t%8)*2048 + k*1024}", tag=nm)
    return f
def aread(ring, t):
    def f(s):
        nm = CA_(t // 8)
        assert ring.log[nm][1] is not None and nm not in s.released, nm
        sl = ring.slot[nm]
        if ring.asl != sl:
            s.e(f"v_add_u32 {vA0}, {((sl - ring.asl) * SLOT) & 0xffffffff:#x}, {vA0}"); ring.asl = sl
        s.e(f"ds_read_b128 {R(AB + 4 * (t % 4), 4)}, {vA0} offset:{(t%8)*2048}", tag=nm)
    return f
def pulln(ring, ch, n): return [bread(ring, 8 * n + k) for k in range(8)] if ch == 0 else []
def p2_setup(ring):
    def chk(s):
        assert not any(x[0][0] == 'F' for x in ring.items) and not any(x[0][0][0] == 'F' for x in ring.q)
        ring.bsl = 0; ring.asl = 0
    if ring.ch == 1:
        return [chk, f"v_bfe_u32 {vB0}, v0, 2, 3", f"v_mul_u32_u24 {vB0}, 640, {vB0}", f"v_and_b32 {vA0}, 3, v0", f"v_lshl_add_u32 {vB0}, {vA0}, 2, {vB0}"]
    return [chk, f"v_bfe_u32 {vB0}, v0, 2, 2", f"v_lshrrev_b32 {vA0}, 5, v0", f"v_lshl_add_u32 {vB0}, {vA0}, 2, {vB0}", f"v_lshlrev_b32 {vB0}, 7, {vB0}",
     f"v_bfe_u32 {vA0}, v0, 3, 1", f"v_lshl_add_u32 {vB0}, {vA0}, 6, {vB0}", f"v_bfe_u32 {vA0}, v0, 4, 1", f"v_lshl_add_u32 {vB0}, {vA0}, 5, {vB0}",
     f"v_and_b32 {vA0}, 3, v0", f"v_lshl_add_u32 {vB0}, {vA0}, 3, {vB0}",
     blk(f"s_lshl_b32 s3, {sKQ}, 6\nv_xor_b32 {vB0}, s3, {vB0}\ns_lshl_b32 s3, {sRT2}, 10\nv_add_u32 {vA0}, s3, {vA16}")]
def fin_setup(): return []
PH = {0: (0, 0xffffffff, 'f1'), 4: (128, 0xffffffff, 'f2'), 8: (384, 0x55555555, 'f3'), 10: (256, 0xffffffff, 'f3'), 14: (512, 0xffffffff, 'fo')}
XCHK = {}
def endk(s, ring):
    if PROFILE:
        s.raw("s_waitcnt vmcnt(0) lgkmcnt(0)")
        stamp("end")(s)
        s.raw("s_waitcnt lgkmcnt(0)")
        n = len(s.snames)
        for i in (n - 2, n - 1): s.raw(f"v_writelane_b32 v29, s{STAMP0+2*(i%4)}, {i}")
        s.e(f"v_subrev_u32 v29, s96, v29\nv_lshlrev_b32 v16, 2, v0")
        s.raw("s_memrealtime s[84:85]\ns_waitcnt lgkmcnt(0)\nv_writelane_b32 v29, s58, 62\nv_writelane_b32 v29, s84, 63")
        s.e(f"s_lshl_b32 s3, {sBID}, 11\ns_lshl_b32 s4, {sW}, 8\ns_add_u32 s3, s3, s4\ns_add_u32 s3, s3, {PROF_OFF}")
        s.e(f"buffer_store_dword v29, v16, {sWs}, s3 offen")
        if CFG.get('DBG') is not None:
            lab = label()
            s.e(f"s_cmp_lg_u32 {sBID}, {CFG['DBG']}\ns_cbranch_scc1 {lab}\ns_cmp_lg_u32 {sW}, 0\ns_cbranch_scc1 {lab}")
            idx = list(range(n - 1, -1, -3))[:16][::-1]
            for k, i in enumerate(idx):
                s.raw(f"v_readlane_b32 s4, v29, {i}\ns_nop 1\nv_mov_b32 v17, s4\nbuffer_store_dword v17, {vFO}, {sDbg}, 0 offen offset:{4*k}\ns_nop 1")
            s.e(f"{lab}:")
            if s.name in ('A0', 'B0'): print("DBG", s.name, [s.snames[i] for i in idx])
        open(f"snames_{s.name}.txt", "w").write(" ".join(s.snames))
    s.e("s_endpgm")
    s.slots = dict(ring.slot)
    print("   ring", s.name, " ".join(f"{k}:{v[0]}>{v[1]}" for k, v in ring.log.items()))

def gate0(ring):
    def g(s):
        assert 'f1' in s.marks
        poll_check(s, sWs, sFL2, 0xffffffff, vo=vB0); s.marks[('chk', 0)] = 1
    if ring.ch == 1 and CFG['EAR']: ring.gate[CA_(0)] = g
def earlyA(ring, f):
    def h(s):
        if CFG['EAR']: ring.lim = CA_(CFG['EAR'] - 1); ring.strict = True
        f(s)
    return h
def aphase(s, ring, ch, F, rel0):
    typ = s.name[0]
    def cbar(n):
        needs = [CA_(n)] + ([CB_(n + 2)] if NRI <= n + 2 < 18 else []) + (['BX'] if n == CFG['XAT'] + 1 else [])
        rel = (rel0 if n == 0 else [CA_(n - 1)] + ([CB_(n + 1)] if NRI <= n + 1 < 18 else []))
        if not ring.items: rel = []
        x9 = (n == CFG['S9' + typ])
        if x9: assert 'scrfree' in s.marks, s.name
        bar(s, ring, f"a{n}", needs, rel, owner=1, extra=([9] if x9 else []))
    if ch == 1:
        s.e(f"s_lshl_b32 s91, {sRB}, 16\ns_lshl_b32 s4, {sRT}, 14\ns_add_u32 s91, s91, s4\ns_lshl_b32 s4, {sCB}, 7\ns_add_u32 s91, s91, s4")
        polled = {0}
        if CFG['LPR']: s.e('s_setprio 1')
        PRG = lambda n0: vPoll if n0 == 0 else f"v{200 + n0}"
        for n0, (imm, mask, mk) in PH.items():
            def g(s, n0=n0, imm=imm, mask=mask, mk=mk):
                k = until(s, ring, F, mk, nopace=True)
                if k: print("   forced", k, "fillers for", mk, "in", s.name)
                if n0 not in polled: poll_issue(s, sWs, sFL2, PRG(n0), imm=imm, vo=vB0); polled.add(n0); print("   late poll", n0, s.name)
                XCHK[(typ, mk, n0)] = s.nbar
                poll_check(s, sWs, sFL2, mask, PRG(n0), imm=imm, vo=vB0); s.marks[('chk', n0)] = 1
            if ('chk', n0) not in s.marks: ring.gate[CA_(n0)] = g
        LV = CFG['LV' + typ]; bl_ = [len(ring.q)]
        for n in range(18):
            def polls(pos):
                for n0 in PH:
                    if n0 not in polled and pos >= CFG['PI' + typ][n0]:
                        poll_issue(s, sWs, sFL2, PRG(n0), imm=PH[n0][0], vo=vB0); polled.add(n0)
            polls(n)
            bud = LV[min(n, len(LV) - 1)]
            PC = CFG['PC' + typ]; cap = PC[min(n, len(PC) - 1)]
            gi = {CA_(k): v for k, v in CFG['GI' + typ].items()}
            def can(): return ring.q and cap > 0 and not (ring.q[0][0][0] in ring.gate and n < gi.get(ring.q[0][0][0], 0))
            while can() or (bud > 0 and F):
                if can(): ring.pump(s, 1); cap -= 1
                if F and bud > 0:
                    l = len(F); fill(s, F, CFG['LG'], force=True); bud -= CFG['LG']
                    if len(F) == l: bud = 0
            if F and isinstance(F[0], tuple) and F[0][0] == 'hold': F[0] = ('tilt', n + F[0][1])
            if F and isinstance(F[0], tuple) and F[0][0] == 'tilt' and n >= F[0][1]:
                F.pop(0); fill(s, F, 5, force=True)
            polls(n + 0.5)
            bl_.append(len(ring.q))
            cbar(n)
        print('   backlog', s.name, bl_)
        assert not F and not ring.q and not ring.items
        endk(s, ring); return
    s.e(f"s_lshl_b32 {sUC}, {sRB}, 16\ns_lshl_b32 s4, {sRT2}, 15\ns_add_u32 {sUC}, {sUC}, s4\ns_lshl_b32 s4, {sCB}, 7\ns_add_u32 {sUC}, {sUC}, s4\ns_lshl_b32 s4, {sKQ}, 6\ns_add_u32 {sUC}, {sUC}, s4")
    ring.pump(s, 99)
    fill(s, F, CFG['CV0' + typ], force=True)
    PF = 4
    def reads(t):
        if t % 8 == 0: cbar(t // 8)
        aread(ring, t)(s)
        if 8 * NRI <= t + 16 < 144: bread(ring, t + 16)(s)
    for t in range(PF): reads(t)
    credit = 0
    for t in range(144):
        acc = YA if t < 112 else SA
        s.e(f"{MF} {R(acc,16)}, {R(breg(t),4)}, {R(AB + 4 * (t % 4),4)}, {'0' if t in (0, 112) else R(acc,16)}")
        if t + PF < 144: reads(t + PF)
        if t == 60:
            assert not F, len(F)
            F += [f"v_lshlrev_b32 v20, 8, {vP4}", "v_lshrrev_b32 v21, 5, v0", "v_lshl_add_u32 v20, v21, 4, v20",
                  f"v_lshlrev_b32 v19, 5, {vP4}", "v_lshl_add_u32 v19, v21, 4, v19", "v_bfe_u32 v21, v0, 1, 1", f"v_xor_b32 v21, {sKQ}, v21", "v_lshl_add_u32 v19, v21, 6, v19"]
        if t == 8 * (CFG['XAT'] + 1) - 2:
            G = [blk(f"s_lshl_b32 s4, {sRT2}, 12\ns_add_u32 s4, s4, {ring.slot['BX']*SLOT + 8192}\nv_add_u32 v19, s4, v19"),
                 f"ds_read_b128 {R(XT,4)}, v19", f"ds_read_b128 {R(XT+4,4)}, v19 offset:32"]
            drain(s, G)
            for b_ in range(2): F += [f"v_permlane32_swap_b32 v{XT+4*b_}, v{XT+4*b_+2}", f"v_permlane32_swap_b32 v{XT+4*b_+1}, v{XT+4*b_+3}"]
            for j in range(8): F += [f"v_lshlrev_b32 v{XT+16+2*j}, 16, v{XT+j}", f"v_and_b32 v{XT+17+2*j}, 0xffff0000, v{XT+j}"]
        if t == 113:
            stamp('yend')(s)
            T = XT + 32
            F += [f"v_mul_f32 v{T+j}, 0xbfb8aa3b, v{YA+j}" for j in range(16)] + [f"v_exp_f32 v{T+j}, v{T+j}" for j in range(16)]
            F += [f"v_add_f32 v{T+j}, 1.0, v{T+j}" for j in range(16)] + [f"v_rcp_f32 v{T+j}, v{T+j}" for j in range(16)] + [f"v_mul_f32 v{YA+j}, v{YA+j}, v{T+j}" for j in range(16)]
        if F and isinstance(F[0], tuple) and F[0][0] == 'hold': F[0] = ('tilt', t + CFG['HS'])
        if F and isinstance(F[0], tuple) and F[0][0] == 'tilt' and t >= F[0][1]: F.pop(0)
        if F and t < 143: credit = fill(s, F, (CFG['CV' + typ] if t < 60 else CFG['CVE']) + min(credit, CFG['CRED']))
        for mk in ('f3', 'fo'):
            if mk in s.marks and (typ, mk) not in XCHK: XCHK[(typ, mk)] = s.nbar
    drain(s, F)
    stamp('send')(s)
    for b_ in range(2):
        for j in range(8): s.e(f"v_fma_f32 v{SA+8*b_+j}, v{SA+8*b_+j}, v{YA+8*b_+j}, v{XT+16+8*b_+j}")
        for j in range(4): s.e(f"v_cvt_pk_bf16_f32 v{XT+4*b_+j}, v{SA+8*b_+2*j}, v{SA+8*b_+2*j+1}")
        s.e(f"v_permlane32_swap_b32 v{XT+4*b_}, v{XT+4*b_+2}\nv_permlane32_swap_b32 v{XT+4*b_+1}, v{XT+4*b_+3}")
        s.e(f"buffer_store_dwordx4 {R(XT+4*b_,4)}, v20, {sOut}, {sUC} offen offset:{32*b_}")
    stamp('st')(s)
    endk(s, ring)

SCR_DUM = SCR + 15360
def touchB(s):
    if not CFG['TB']: return
    s.e(f"s_lshl_b32 s4, {sBID}, 3\ns_add_u32 s4, s4, {sW}\ns_mul_i32 s5, s4, 896\ns_lshl_b32 s4, s4, 8\ns_mov_b32 m0, {SCR_DUM}")
    s.e(f"v_min_u32 {vT}, 6, v0\nv_lshlrev_b32 {vT}, 7, {vT}")
    s.e(f"buffer_load_dword {vT}, {sW2}, s5 offen lds")
    s.e(f"v_min_u32 {vT}, 1, v0\nv_lshlrev_b32 {vT}, 7, {vT}")
    s.e(f"buffer_load_dword {vT}, {sWo}, s4 offen lds")
def touchW(s):
    if not CFG['TW']: return
    if CFG['TW'] == 2:
        s.e(f"s_lshl_b32 s4, {sBID}, 1\ns_add_u32 s4, s4, {sCH}\ns_mul_i32 s5, s4, 3584\ns_mul_i32 s3, {sRT}, 896\ns_add_u32 s5, s5, s3\ns_mul_i32 s4, s4, 3072\ns_lshl_b32 s3, {sRT}, 8\ns_add_u32 s4, s4, s3\ns_mov_b32 m0, {SCR_DUM}")
        s.e(f"v_min_u32 {vT}, 2, v0\nv_mul_u32_u24 {vT}, 384, {vT}")
        s.e(f"buffer_load_dword {vT}, {sW1}, s5 offen lds")
        s.e(f"v_min_u32 {vT}, 1, v0\nv_lshlrev_b32 {vT}, 7, {vT}")
        s.e(f"buffer_load_dword {vT}, {sWq}, s4 offen lds")
        return
    s.e(f"s_lshl_b32 s4, {sBID}, 3\ns_add_u32 s4, s4, {sW}\ns_mul_i32 s5, s4, 896\ns_mul_i32 s4, s4, 768\ns_mov_b32 m0, {SCR_DUM}")
    s.e(f"v_min_u32 {vT}, 6, v0\nv_lshlrev_b32 {vT}, 7, {vT}")
    s.e(f"buffer_load_dword {vT}, {sW1}, s5 offen lds")
    s.e(f"v_min_u32 {vT}, 5, v0\nv_lshlrev_b32 {vT}, 7, {vT}")
    s.e(f"buffer_load_dword {vT}, {sWq}, s4 offen lds")
def touch2(c, hf=None):
    def f(s):
        if c == 0 and not hf:
            if hf is None: s.e(f"s_lshl_b32 s4, s87, 3")
            else: s.e(f"s_lshr_b32 s4, s87, 4\ns_lshl_b32 s4, s4, 3\ns_and_b32 s5, s87, 7\ns_add_u32 s4, s4, s5\ns_lshl_b32 s4, s4, 3")
            s.e(f"s_add_u32 s4, s4, {sW}\ns_lshr_b32 s5, s4, 6\ns_and_b32 s4, s4, 63\ns_lshl_b32 s4, s4, 10\n"
                f"s_mul_i32 s90, s5, {448*1024}\ns_add_u32 s90, s90, s4\ns_lshl_b32 s91, s5, 17\ns_add_u32 s91, s91, s4")
        s.e(f"s_mov_b32 m0, {SCR_DUM}")
        h = hf or 0
        if c < 7: s.e(f"s_add_u32 {sSoW}, s90, {ORDER[4*c]*16384 + h*896*1024}\nbuffer_load_dwordx4 {vA16}, {sW2}, {sSoW} offen lds")
        else: s.e(f"s_add_u32 {sSoW}, s91, {(c-7)*65536 + h*256*1024}\nbuffer_load_dwordx4 {vA16}, {sWo}, {sSoW} offen lds")
    return f
def touch3(c, ch):
    def f(s):
        wv = CFG['T3W'][c]
        if wv // 4 != ch: return
        lab = label()
        s.e(f"s_cmp_lg_u32 {sW}, {wv}\ns_cbranch_scc1 {lab}")
        mul = 448 * 1024 if c < 7 else 128 * 1024
        off = ORDER[4 * c] * 16384 if c < 7 else (c - 7) * 65536
        s.e(f"s_lshr_b32 s90, s87, 3\ns_mul_i32 s90, s90, {mul}\ns_and_b32 s91, s87, 7\ns_lshl_b32 s91, s91, 13\ns_add_u32 s90, s90, s91\ns_add_u32 s90, s90, {off}\ns_mov_b32 m0, {SCR_DUM}")
        s.e(f"v_lshlrev_b32 v{CSA+3}, 7, v0")
        s.raw(f"buffer_load_dword v{CSA+3}, {sW2 if c < 7 else sWo}, s90 offen lds")
        s.e(f"{lab}:")
    return f
def touch4(k, ch):
    def f(s):
        if ch: return
        lab = label()
        n = (28, 28, 16)[k]
        s.e(f"s_cmp_lg_u32 {sW}, {k}\ns_cbranch_scc1 {lab}")
        s.e(f"s_mul_i32 s90, s87, {(56, 56, 16)[k]*1024}\ns_add_u32 s90, s90, {CFG['SC']*128 + (28*1024 if k == 1 else 0)}\ns_mov_b32 m0, {SCR_DUM}")
        s.e(f"v_min_u32 v{CSA+3}, {n-1}, v0\nv_lshlrev_b32 v{CSA+3}, 10, v{CSA+3}")
        s.raw(f"buffer_load_dword v{CSA+3}, {sW2 if k < 2 else sWo}, s90 offen lds")
        s.e(f"{lab}:")
    return f
def add_touch(segs, typ):
    if CFG['T2'] == 4:
        for k, at in enumerate(CFG['T4AT']): segs[at // 32].posts.setdefault(at % 32, []).append(touch4(k, segs[0].ch))
    if CFG['T2'] == 3:
        for c, at in enumerate(CFG['T2AT']): segs[at // 32].posts.setdefault(at % 32, []).append(touch3(c, segs[0].ch))
    for c, at in enumerate(CFG['T2AT']):
        if CFG['T2'] == 1: segs[at // 32].posts.setdefault(at % 32, []).append(touch2(c))
        if CFG['T2'] == 2 and typ == 'A':
            segs[at // 32].posts.setdefault(at % 32, []).append(touch2(c, 0))
            segs[(at + 2) // 32].posts.setdefault((at + 2) % 32, []).append(touch2(c, 1))

def touchA(t0, n, mask, T, T2, vp=vPoll):
    def f(s):
        if not CFG['TA']: return
        lab = label()
        s.e(f"v_min_u32 {T}, {n-1}, v0")
        if t0 < 28 and n > 4:
            d = ORDER[t0 + 4] - ORDER[t0] - 4
            s.e(f"v_lshrrev_b32 {T2}, 2, {T}\nv_mul_u32_u24 {T2}, {d}, {T2}\nv_add_u32 {T}, {T}, {T2}")
        off = ORDER[t0] * 1024 if t0 < 28 else 0
        s.e(f"v_lshlrev_b32 {T}, 10, {T}\ns_lshl_b32 {sSoW}, {sCB}, 7\ns_add_u32 {sSoW}, {sSoW}, {sA2y if t0 < 28 else sA2s}\ns_add_u32 {sSoW}, {sSoW}, {off}\ns_mov_b32 m0, {SCR_DUM}")
        s.e(f"v_cmp_ne_u32 vcc, 0, {vp}\ns_andn2_b32 {sT0}, {mask:#x}, vcc_lo\ns_cbranch_scc1 {lab}")
        s.raw(f"buffer_load_dword {T}, {sWs}, {sSoW} offen sc1 lds")
        s.e(f"{lab}:")
    return f

def ilv(st, co):
    out = st[:3] + co[:3] + [st[3]]
    a, b = st[4:], co[3:-1]
    while a or b:
        if a: out.append(a.pop(0))
        if a and len(a) > 2 * len(b): out.append(a.pop(0))
        if b: out.append(b.pop(0))
    return out + co[-1:]
def p0_items(a, b):
    it = []
    for c in range(4): it += x_items(c) + [a[c]]
    return it + b
def packin(acc): return [f"v_cvt_pk_bf16_f32 v{acc+j}, v{acc+2*j}, v{acc+2*j+1}" for j in range(8)]
def N(n, lo, hi): return [f"{n}{c}" for c in range(lo, hi)]
def initchk(s):
    poll_check(s, sDbg, "0", 0xffffffff, imm=128); s.marks["init"] = 1
initpoll = lambda s: poll_issue(s, sDbg, "0", imm=128)
def pollA(s):
    if s.name[1] == '1': poll_issue(s, sWs, sFL2, vo=vB0)

def stream_A(s0, ch):
    CB, DB = CFG['CB'], CFG['DB']
    s = s0.fork(f"A{ch}"); s.e(f"L_typeA{ch}:")
    bl = BIASL['A']
    items = p0_items(w_items("K", sWq, vDq, sUA, 3072), w_items("V", sWq, vDq, sUB, 3072)) + w_items("H", sW1, vD1, sUC, 3584) + b_items(0)
    ring = Ring(items, range(9), ch); ring.hold = ('XL3', 'XH3'); ring.upto0 = "V3"
    start(s, ring, 'K')
    s.e(f"s_lshl_b32 {sSCRW}, {sW}, 12\ns_add_u32 {sSCRW}, {sSCRW}, {2*SLOT}")
    s.marks.update(f1=1, f2=1, fo=1)
    uK = dict(name="K", acc=ACC_A, trans=True, kind='w', csi=0)
    uV = dict(name="V", acc=ACC_B, trans=False, kind='w', csi=1)
    uH = dict(name="H", acc=ACC_C, trans=True, kind='w', csi=0)
    F = [('wait', 'c1')] + ilv(stats_fin(PT), correct(uK, ch, PT + 8))
    F += ["v_lshrrev_b32 v26, 5, v0", "v_lshlrev_b32 v26, 1, v26", "v_bfe_u32 v25, v0, 1, 2", "v_xor_b32 v26, v25, v26", f"v_lshlrev_b32 v25, 4, {vP4}", "v_lshl_add_u32 v25, v26, 4, v25",
          f"v_add_u32 v25, {sSCRW}, v25", "v_xor_b32 v24, 16, v25"]
    F += packin(ACC_A)
    F += [f"{MF} {R(PT,16)}, {R(PHI,4)}, {R(ACC_A,4)}, 0", f"{MF} {R(ACC_C,16)}, {R(PHI+4,4)}, {R(ACC_A+4,4)}, 0", ('gap', 12)]
    for h, P in enumerate((PT, ACC_C)):
        if h == 1 and CFG['PKA']:
            sm = softmax_pk(P, ACC_A + 8, "v26", vT, PHI); F += sm[:9] + [('wait', 'c2')] + sm[9:]
        else: F += softmax(P, ACC_A + 8, "v26", vT)
        F += [f"ds_write_b128 v25, {R(ACC_A+8,4)} offset:{2048*h}", f"ds_write_b128 v24, {R(ACC_A+12,4)} offset:{2048*h}"]
    F += [('wait', 'c2')]
    F += ["v_lshrrev_b32 v26, 5, v0", "v_lshlrev_b32 v26, 4, v26", blk(f"s_lshl_b32 s4, {sRT}, 7\ns_add_u32 s4, s4, {SCR_RS}\nv_add_u32 {vT}, s4, v26")]
    for q in range(4): F.append(f"ds_read_b128 {R(PT+4*q,4)}, {vT} offset:{32*q}")
    F += ["v_bfe_u32 v25, v0, 2, 2", "v_lshlrev_b32 v25, 6, v25", "v_lshl_add_u32 v25, v26, 4, v25", f"v_bfe_u32 {vT}, v0, 4, 1", f"v_cmp_eq_u32 s[94:95], 1, {vT}",
          "v_lshrrev_b32 v24, 5, v0", f"v_xor_b32 {vT}, v24, {vT}", f"v_lshl_add_u32 v25, {vT}, 5, v25",
          "v_lshrrev_b32 v24, 2, v0", "v_xor_b32 v24, v24, v0", "v_bfe_u32 v24, v24, 1, 1", "v_lshl_add_u32 v25, v24, 4, v25",
          f"v_and_b32 {vT}, 1, v0", f"v_lshl_add_u32 v25, {vT}, 3, v25", f"v_add_u32 v25, {sSCRW}, v25", f"v_mov_b32 {vT}, {sC11}"]
    for t in range(2):
        for rd in range(2): F.append(f"ds_read_b64_tr_b16 {R(PHI+4*t+2*rd,2)}, v25 offset:{2048 + t*1024 + rd*512}")
    F += [pk2("mul", ACC_B + r, ACC_B + r, PT + r) for r in range(0, 16, 2)] if CFG['PKA'] else [f"v_mul_f32 v{ACC_B+r}, v{ACC_B+r}, v{PT+r}" for r in range(16)]
    F += packin(ACC_B)
    for t in range(2):
        for rd in range(2): F.append(f"ds_read_b64_tr_b16 {R(ACC_B+8+4*t+2*rd,2)}, v25 offset:{t*1024 + rd*512}")
    for j in range(8): F.append(f"v_cndmask_b32 v{ACC_A+8+j}, {vT}, v{ACC_B+j}, s[94:95]")
    for j in range(8): F.append(f"v_cndmask_b32 v{ACC_A+j}, v{ACC_B+j}, {vT}, s[94:95]")
    F += [f"{MF} {R(PT,16)}, {R(ACC_A,4)}, {R(ACC_B+8,4)}, 0", f"{MF} {R(PT,16)}, {R(ACC_A+4,4)}, {R(ACC_B+12,4)}, {R(PT,16)}",
          f"{MF} {R(ACC_B,16)}, {R(ACC_A+8,4)}, {R(PHI,4)}, 0", f"{MF} {R(ACC_B,16)}, {R(ACC_A+12,4)}, {R(PHI+4,4)}, {R(ACC_B,16)}"]
    F += [f"v_add_u32 v25, {sSCRW}, {vA16}", blk(f"s_lshl_b32 s4, {sW}, 9\ns_add_u32 s4, s4, {SCR_Z}\nv_lshlrev_b32 v26, 2, v0\nv_add_u32 v26, s4, v26")]
    F += [f"ds_write_b128 v25, {R(PT,4)}", f"ds_write_b128 v25, {R(PT+4,4)} offset:1024", f"ds_write_b32 v26, v{PT+8}",
          f"ds_write_b128 v25, {R(ACC_B+8,4)} offset:2048", f"ds_write_b128 v25, {R(ACC_B+12,4)} offset:3072", f"ds_write_b32 v26, v{ACC_B} offset:256"]
    F += [blk(f"s_lshl_b32 s4, {sRT}, 10\ns_add_u32 s4, s4, {2*SLOT + ch*SLOT}\nv_add_u32 v25, s4, {vA16}"),
          blk(f"s_lshr_b32 s4, {sRT}, 1\ns_lshl_b32 s4, s4, 8\ns_add_u32 s4, s4, {SCR_Z + ch*2048}\nv_add_u32 v26, s4, {vP4}"), mark('kvw')]
    ER = [f"ds_read_b128 {R(PT+4*r,4)}, v25 offset:{r*4096}" for r in range(4)] + [f"ds_read_b32 v{ACC_A+r}, v26 offset:{r*512}" for r in range(4)]
    ER += ["v_lshrrev_b32 v25, 5, v0", f"v_lshl_add_u32 v25, v25, 9, {vP4}", blk(f"s_lshl_b32 s5, {sRT2}, 10\nv_add_u32 v25, s5, v25"),
           f"v_lshrrev_b32 {vT}, 4, v0", f"v_cmp_eq_u32 s[94:95], {sRT2}, {vT}", f"v_mov_b32 {vT}, {BIG}",
           blk(f"s_and_b32 s5, {sG}, 1\ns_mul_i32 s5, s5, {10*1024}\ns_add_u32 s5, s5, {ch*2048}\ns_add_u32 {sUD}, {sKS}, s5\ns_lshl_b32 s4, {sI}, 7\ns_add_u32 {sKVF}, {sKVF}, s4"),
           f"v_cndmask_b32 v26, {vT}, {vP4}, s[94:95]"]
    for j in range(4): ER += [f"v_add_f32 v{PT+j}, v{PT+j}, v{PT+4+j}", f"v_add_f32 v{PT+8+j}, v{PT+8+j}, v{PT+12+j}"]
    for j in range(4): ER.append(f"v_add_f32 v{PT+j}, v{PT+j}, v{PT+8+j}")
    ER += [f"v_add_f32 v{ACC_A}, v{ACC_A}, v{ACC_A+1}", f"v_add_f32 v{ACC_A+2}, v{ACC_A+2}, v{ACC_A+3}", f"v_add_f32 v{ACC_A}, v{ACC_A}, v{ACC_A+2}"]
    for j in range(4): ER.append((f"buffer_atomic_add_f32 v{PT+j}, v25, {sWs}, {sKVs} offen offset:{j*128}", "kv"))
    ER += [(f"buffer_atomic_add_f32 v{ACC_A}, v26, {sWs}, {sKVs} offen offset:2048", "kv"), stamp('kvat')]
    EH = correct(uH, ch, PHI, BI0) + fin_setup() + (mish_pk if CFG['PKH'] else mish)(ACC_C, PT + 8, sUD, "actA")
    fkv = flag_store("kv", sKVF, 0, 'fkv'); f3 = flag_store("actA", sFL, 2 * 128, 'f3')
    pr = lambda c: [bnm(0, c), bnm(1, c)]
    m0 = pass0(s, ring, uK, ch, bl, "V3", ["V0"])
    mV = MSeg(ring, uV, ch, {CB: [B(ring, "c1", ["V1", "V2"], ["K3"] + ring.c1rel)], DB: [B(ring, "d1", ["V3", "H0"], N("V", 0, 2))]}, dma=CFG['ST'])
    def h1(s):
        until(s, ring, FH, 'erd')
        bar(s, ring, "h1", [], ["H0", CB_(0)], extra=[2, 3])
    P0_, P1_, P2_ = pulln(ring, ch, 0), pulln(ring, ch, 1), pulln(ring, ch, 2)
    mH = MSeg(ring, uH, ch, {15: [h1], DB + 2: [earlyA(ring, B(ring, "h2", ["H3", CB_(2)], ["H1", CB_(1)], owner=(1 if CFG['EAR'] else 'all')))]},
              {6: [lambda s: drain(s, p2_setup(ring))], 7: P0_[:4], 8: P0_[4:], 15: P1_[:4], 16: P1_[4:], 23: P2_[:4], 24: P2_[4:], (CFG['EPA'] if CFG['EAR'] else 27): [pollA], CFG['KVW']: [fkv]}, dma=CFG['ST'])
    ring.lim = CB_(CFG['NPB'] - 1); gate0(ring)
    m0.posts.setdefault(29, []).append(lambda s: drain(s, phi_frags()))
    add_touch([m0, mV, mH], 'A')
    mV.posts.setdefault(30, []).append(initpoll)
    m0.run(s, mV); mV.run(s, None, F, CFG['KB'] + CFG['KD'] * (1 - 2 * ch))
    bar(s, ring, "c2", [], N("V", 2, 4), lg0=True)
    print("   A V-only block:", len(F))
    VB_ = correct(uV, ch, WB) + F + [initchk, mH.pre]
    if CFG.get('VST'):
        for k in range(len(VB_) // 12 * 12, 0, -12): VB_.insert(k, stamp(f"v{k}"))
    vseg(s, ring, VB_, flush=False)
    bar(s, ring, "d2", ["H1", "H2"] + pr(0))
    FH = list(ER) + [mark('erd')]
    mH.run(s, None, FH, CFG['VB'])
    assert not FH
    ring.lim = None; ring.strict = True
    bar(s, ring, "e1", [], N("H", 2, 4) + [CB_(2)], lg0=True, owner=1)
    F = EH + [mark('scrfree'), ('hold', CFG['F3G']), f3]
    aphase(s, ring, ch, F, [])
    return s

def stream_B(s0, ch):
    CB, DB = CFG['CB'], CFG['DB']
    s = s0.fork(f"B{ch}"); s.e(f"L_typeB{ch}:")
    bl = BIASL['B']
    H5 = [(f"F{c}", sW1, vD5, sUD, 0, 16 * 3584, 0, 128 * 3584, lambda hf, c=c: 2 * c + hf) for c in range(2)]
    items = p0_items(w_items("U", sW1, vD1, sUA, 3584), w_items("Y", sW1, vD1, sUB, 3584))
    Qi = w_items("Q", sWq, vDq, sUC, 3072); bi = b_items(1)
    items += H5 + [Qi[0]] + bi[:2] + [Qi[1], Qi[2]] + bi[2:4] + [Qi[3]] + bi[4:] if CFG['EB'] else H5 + Qi + bi
    ring = Ring(items, range(9), ch); ring.upto0 = "Y3"; ring.strict = bool(CFG['EB'])
    start(s, ring, 'U')
    s.e(f"s_and_b32 s5, {sG}, 1\ns_cmp_eq_u32 s5, 0\ns_cselect_b32 s5, 4, 2\ns_cselect_b32 s4, {12*1024}, 0\ns_lshl_b32 s5, s5, 10\n"
        f"s_add_u32 {sSCRW}, {sKS}, s4\ns_add_u32 s5, s5, {ch*2048}\ns_add_u32 {sKS}, {sKS}, s5")
    uU = dict(name="U", acc=ACC_A, trans=True, kind='w', csi=0)
    uY = dict(name="Y", acc=ACC_B, trans=True, kind='w', csi=1)
    uF = dict(name="F", acc=ACC_C, trans=True, kind='h5', csi=0)
    uQ = dict(name="Q", acc=ACC_A, trans=True, kind='w', csi=1)
    EU = ilv(stats_fin(PT), correct(uU, ch, PT + 8, BI0)) + [('gap', 14)] + mish(ACC_A, PT, sKS, "act1") + [f"s_add_u32 {sKS}, {sKS}, 4096"]
    EY = correct(uY, ch, PT + 8, BI1) + [mark('b1dead'), ('gap', 16)] + mish(ACC_B, PT, sKS, "act2")
    EF = correct(uF, ch, PT + 8, BI2) + [('gap', 16)] + mish(ACC_C, PT, sSCRW, "act5")
    EQ = correct(uQ, ch, PT + 12) + phi_frags() + pack16(ACC_A, PK)
    EQ += [f"{MF} {R(PT,16)}, {R(PHI,4)}, {R(PK,4)}, 0", f"{MF} {R(ACC_B,16)}, {R(PHI+4,4)}, {R(PK+4,4)}, 0"] + fin_setup()
    if CFG['PK']: EQ += softmax_pk(PT, ACC_A, "v26", vT, PHI) + softmax_pk(ACC_B, ACC_A + 8, "v26", vT, PHI)
    else: EQ += softmax(PT, ACC_A, "v26", vT) + softmax(ACC_B, ACC_A + 8, "v26", vT)
    f1 = flag_store("act1", sFL, 0, 'f1'); f2 = flag_store("act2", sFL, 128, 'f2'); f3 = flag_store("act5", sFL, 3 * 128, 'f3')
    pr = lambda c: [bnm(0, c), bnm(1, c)]
    FG = ('gap', CFG['FG'])
    F = [('wait', 'c1')] + EU + [mark('m1'), ('wait', 'c2')] + split(EY, 0.6, lambda s: (initchk(s), f1(s))) + [mark('m2')]
    if ch == 0: F += [('wait', 'c3')] + split(EF, 0.6, f2) + [mark('m3')]
    else: F += [FG, f2, mark('m3'), mark('f3')]
    m0 = pass0(s, ring, uU, ch, bl, "Y3", ["Y0"])
    mY = MSeg(ring, uY, ch, {CB: [B(ring, "c1", ["Y1", "Y2"], ["U3"] + ring.c1rel)], DB: [B(ring, "d1", ["Y3", "F0"], N("Y", 0, 2))]}, dma=CFG['ST'])
    c2 = B(ring, "c2", ["F1", "Q0"], N("Y", 2, 4), owner=1)
    P0_, P1_, P2_ = pulln(ring, ch, 0), pulln(ring, ch, 1), pulln(ring, ch, 2)
    mQ = MSeg(ring, uQ, ch, {CB: [B(ring, "c3", ["Q1", "Q2", CB_(0)], ["F0", "F1"])], DB: [earlyA(ring, B(ring, "d3", ["Q3", CB_(1), CB_(2)], N("Q", 0, 2) + [CB_(0)], owner=(1 if CFG['EAR'] else 'all')))]},
              {7: [lambda s: (until(s, ring, F, 'b1dead'), drain(s, p2_setup(ring)))], 9: P0_[:4], 11: P0_[4:], 19: P1_[:4], 21: P1_[4:], 24: P2_[:4], 26: P2_[4:], (CFG['EPB'] if CFG['EAR'] else 27): [pollA]}, dma=CFG['ST'])
    ring.lim = CB_(CFG['NPB'] - 1); gate0(ring)
    add_touch([m0, mY, mQ], 'B')
    mY.posts.setdefault(28, []).append(initpoll)
    m0.run(s, mY)
    if ch == 0:
        mF = MSeg(ring, uF, ch, {CB: [c2]}, dma=CFG['ST'] // 2)
        mY.run(s, mF, F, CFG['P1B'] + CFG['PD']); mF.run(s, mQ, F, CFG['FB'])
    else:
        mY.run(s, None, F, CFG['P1B'] - CFG['PD']); c2(s); vrun(s, ring, F, CFG['IB']); mQ.pre(s)
    print("   B forced m1:", until(s, ring, F, 'm1'))
    mQ.run(s, None, F, CFG['QB'][ch])
    KS, OD, OD2, OF, OP = WB, PT, ACC_B, PHI, PK
    def kvfetch(s):
        poll_check(s, sWs, sKVF, 0xffff, vPoll2, vo="v21")
        s.e(f"s_lshl_b32 s5, {sRT2}, 10\ns_add_u32 s5, s5, {sKVs}")
        s.e(f"buffer_load_dwordx4 {R(KS,4)}, {vA16}, {sWs}, s5 offen sc1")
        s.e(f"v_and_b32 v21, 3, v0\nv_lshlrev_b32 v21, 4, v21\ns_lshl_b32 s5, {sRT2}, 6\ns_add_u32 s5, s5, {sKVs}")
        s.e(f"buffer_load_dwordx4 {R(KS+4,4)}, v21, {sWs}, s5 offen offset:2048 sc1")
    IM = [f"v_cvt_pk_bf16_f32 v{KS}, v{KS}, v{KS+1}", f"v_cvt_pk_bf16_f32 v{KS+1}, v{KS+2}, v{KS+3}",
          f"v_cvt_pk_bf16_f32 v{KS+4}, v{KS+4}, v{KS+5}", f"v_cvt_pk_bf16_f32 v{KS+5}, v{KS+6}, v{KS+7}",
          blk(f"s_mul_i32 s5, {sKQ}, 1088\ns_add_u32 s5, s5, {SCR_KV}\ns_lshl_b32 s4, {sRT2}, 9\ns_add_u32 s4, s4, s5\nv_lshlrev_b32 v25, 3, v0\nv_add_u32 v25, s4, v25\n"
              f"ds_write_b64 v25, {R(KS,2)}\ns_lshl_b32 s4, {sRT2}, 5\ns_add_u32 s4, s4, s5\nv_lshrrev_b32 v21, 1, v21\nv_add_u32 v21, s4, v21\nds_write_b64 v21, {R(KS+4,2)} offset:1024"),
          f"v_min_u32 v25, 64, {vP4}", "v_lshlrev_b32 v25, 4, v25", "v_lshrrev_b32 v26, 5, v0", "v_lshl_add_u32 v25, v26, 5, v25",
          blk(f"v_add_u32 v25, {SCR_KV + ch*2176}, v25\ns_lshl_b32 s5, {sG}, 12\ns_add_u32 s5, s5, {sAF}\ns_add_u32 {sSCRW}, s5, {112*1024 + ch*2048}")]
    O = [f"ds_read_b128 {R(OF,4)}, v25", f"ds_read_b128 {R(OF+4,4)}, v25 offset:16", f"ds_read_b128 {R(OP,4)}, v25 offset:1088", f"ds_read_b128 {R(OP+4,4)}, v25 offset:1104"]
    O += [f"{MF} {R(OD,16)}, {R(OF,4)}, {R(ACC_A,4)}, 0", f"{MF} {R(OD,16)}, {R(OF+4,4)}, {R(ACC_A+4,4)}, {R(OD,16)}",
          f"{MF} {R(OD2,16)}, {R(OP,4)}, {R(ACC_A+8,4)}, 0", f"{MF} {R(OD2,16)}, {R(OP+4,4)}, {R(ACC_A+12,4)}, {R(OD2,16)}"]
    for h, D in enumerate((OD, OD2)):
        O += [f"v_add_f32 v26, 0x358637bd, v{D+8}", "v_rcp_f32 v26, v26"]
        for j in range(8): O.append(f"v_mul_f32 v{D+j}, v{D+j}, v26")
        for j in range(4): O.append(f"v_cvt_pk_bf16_f32 v{ACC_A+4*h+j}, v{D+2*j}, v{D+2*j+1}")
        O.append((f"buffer_store_dwordx4 {R(ACC_A+4*h,4)}, {vA16}, {sWs}, {sSCRW} offen offset:{h*1024} sc1", "o"))
    O.append(stamp('ost'))
    ring.lim = None; ring.strict = True
    bar(s, ring, "e1", [], N("Q", 2, 4) + [CB_(1), CB_(2)], lg0=True, owner=1)
    def ins(L, back, item): return L[:len(L) - back] + [item] + L[len(L) - back:]
    F2 = F + EQ
    if ch == 0: F2 = ins(F2, 110, f3)
    kp = lambda s: (s.e("v_min_u32 v21, 15, v0\nv_lshlrev_b32 v21, 7, v21"), poll_issue(s, sWs, sKVF, vPoll2, vo="v21"))
    F2 = ins(ins(F2, CFG['KP'], kp), CFG['KF'], kvfetch)
    F2 += IM + [('nextbar',)] + O + [mark('scrfree'), ('hold', CFG['OW']), flag_store("o", sFL, 4 * 128, 'fo')]
    aphase(s, ring, ch, F2, [])
    return s

DOC = """; One persistent launch, 256 workgroups (one per CU) x 8 waves; generated by a hand-written Python scheduler.
; Phase 1: WG = 128 rows x {K,V,h | h,h,h/2,Q} column units. Raw x fragments stay in registers, weights stream through an
;   LDS ring (LDS-DMA + transposing reads). LayerNorm is applied exactly through a rank-1 MFMA correction (-mean*colsum,
;   bias*std) and the 1/std factor in the epilogues. mish / dual softmax run lane-local on the accumulators; kv and z are
;   reduced with f32 atomics; act and o are published fragment-major in d_ws (write-through stores + per-phase flags).
; Phase 2: WG = 64x64 output tile; waves 4-7 stream act/o/w2/wo into the ring, waves 0-3 run the MFMAs and the
;   x + s*silu(y) epilogue. Flags and accumulators in d_ws are zeroed in-launch and announced through d_debug."""
def build(path, listform=True):
    s0 = Stream("P")
    if PROFILE: s0.e("s_memtime s[96:97]\ns_memrealtime s[58:59]")
    if CFG.get('SKEW'):
        s0.e(f"s_and_b32 s3, s2, 7\ns_lshr_b32 s3, {CFG['SKEW']}, s3\ns_and_b32 s3, s3, 1\ns_cmp_eq_u32 s3, 0\ns_cbranch_scc1 L_nsk\ns_sleep 40\nL_nsk:")
    prologue(s0)
    s0.e(f"s_lshl_b32 s5, {sTY}, 1\ns_add_u32 s5, s5, {sCH}\ns_cmp_eq_u32 s5, 0\ns_cbranch_scc1 L_typeA0\ns_cmp_eq_u32 s5, 1\ns_cbranch_scc1 L_typeA1\ns_cmp_eq_u32 s5, 3\ns_cbranch_scc1 L_typeB1")
    B0 = stream_B(s0, 0); B1 = stream_B(s0, 1); A0 = stream_A(s0, 0); A1 = stream_A(s0, 1)
    assert B0.nbar == B1.nbar and A0.nbar == A1.nbar
    assert B0.slots == B1.slots and A0.slots == A1.slots
    print(XCHK)
    for k, v in XCHK.items():
        if len(k) == 3 and k[:2] in XCHK: assert XCHK[k[:2]] <= v, (k, v, XCHK[k[:2]])
    hdr = open("recurrent_scan__linear_kernel_hedgehog__dense_activation_mish__prompt.s.ref").read().split("; Override")[0]
    T = [hdr.rstrip(), f"; @launch {'kernel=' + KNAME + ' ' if listform else ''}grid=(256,1,1) block=(512,1,1) lds=163840",
         DOC, '.amdgcn_target "amdgcn-amd-amdhsa--gfx950"', ".text", f".globl {KNAME}", ".p2align 8", f".type {KNAME},@function", f"{KNAME}:"]
    S = [s0, B0, B1, A0, A1]
    for st in S:
        T.append(f"; ---- stream {st.name}  nops={st.stats['nop']} waits={st.stats['wait']} barriers={st.nbar}")
        T.append(st.text())
    for st in S: T += st.ool
    T.append("L_end:\n  s_endpgm")
    T.append(".fill 2048, 4, 0xbf810000")
    T.append(f'''.section .rodata,"a"
.p2align 6
.amdhsa_kernel {KNAME}
  .amdhsa_next_free_vgpr 256
  .amdhsa_next_free_sgpr 102
  .amdhsa_accum_offset 256
  .amdhsa_group_segment_fixed_size 0
  .amdhsa_kernarg_size 88
  .amdhsa_user_sgpr_count 2
  .amdhsa_user_sgpr_kernarg_segment_ptr 1
  .amdhsa_system_sgpr_workgroup_id_x 1
.end_amdhsa_kernel''')
    open(path, "w").write("\n".join(T) + "\n")
    for st in S: print(st.name, "instrs", len(st.out), st.stats, "barriers", st.nbar)

if __name__ == "__main__":
    for a in sys.argv[2:]:
        if a == "prof": PROFILE = True
        elif '=' in a:
            k, v = a.split('='); CFG[k] = eval(v)
    build(sys.argv[1], listform=("final" not in sys.argv))
```

```python
import sys
sys.path.insert(0, 'gen')
from ab import *

KNAME = "recurrent_scan__linear_kernel_hedgehog__dense_activation_mish__prompt_kernel"
PROFILE = False
SLOT = 16384
SCR = 9 * SLOT
SCR_PHI = SCR
SCR_RS = SCR + 2048
SCR_ST = SCR + 2560
SCR_CS = SCR + 6656
SCR_Z = SCR + 10752
SCR_KV = SCR + 10752
Z_OFF = 0x900000
KV_OFF = Z_OFF
KVFLAG_OFF = Z_OFF + 0x40000
ACTFLAG_OFF = Z_OFF + 0x16000
PROF_OFF = 0xA00000
BIG = 0x40000000
CFG = dict(AD=16, A0=8, AN=2, BN=1, G8=1, F3G=1, PB=[(200, 40), (80, 55), (80, 40)], SLP=4, PKL=0, TP=3, TX=0, LPR=0, PCA=[16, 10, 8, 8, 8, 8, 7], PCB=[16, 10, 8, 8, 8, 8, 7], GIA={4: 1}, GIB={4: 2}, HS=8, CVE=5, EAR=0, EPA=12, EPB=12, XAT=15, S9A=4, S9B=7, NPB=8, LG=4, LVA=[70, 80], LVB=[80, 90], CV0A=70, CV0B=80, CVA=11, CVB=13, PIA={4: 0, 8: 4, 10: 6.5, 14: 11}, PIB={4: 1, 8: 4, 10: 6.5, 14: 11}, LLT=6, SC=3, T4AT=[30, 36, 38], NBX=2, LG0=0, PWW=0, PVL=60, PSA=[(3, 7), (11, 14), (18, 21)], PSB=[(0, 1), (5, 8), (11, 15)], PB2=3, YB=31, PKT=1, MIX=0, MG=300, EB=0, EA=1, PKH=1, T3W=[0, 1, 2, 3, 0, 1, 2, 3, 0], OWN='', KD=0, PD=0, UP=[0, 0, 0, 1, 2, 2, 4], PAR=2, FB4=0, PKA=1, PK=0, KM=0, KVW=17, KS=(0, 5, 10), KVP=12, TAP=8, TAT=20, TAD=2, CB=6, DB=22, TW=0, TWT=2, GT=[2000, 4000, 5500, 500], TOFF=-1000, LT=200, LT2=200, QD2=800, LAT=900, QD=800, PLT=1500, BL=6, VC=9, T2=4, T2AT=[30, 35, 40, 45, 50, 55, 60, 66, 72], PF=4, PL=4, S0=6, S1=6, PRIO=0, VD=10, KP=160, KF=110, OW=1, G16=8, G28=20, TV=10, TB=1, TBT=28, TA=0, TO=11, T0=0, T1=0, ROT=2, RATE=38, BURST=24576, ST=90,
    CRED=6, AGE=14, P1B=6, FB=5, QB=[9, 3], IB=150, KB=6, VB=8, KVG=60, EH0=60, FG=60, E1=[120, 100], E2=[100, 80])

sX, sWq, sW1, sW2, sWo, sPhi, sB1, sOut, sDbg, sWs = [f"s[{8+4*i}:{11+4*i}]" for i in range(10)]
sW, sRT, sCH, sI, sG, sTY, sRB, sCB, sKQ, sRT2 = [f"s{48+i}" for i in range(10)]
sT0 = "s3"
sC10, sC01, sC11 = "s58", "s59", "s60"
sM0W = "s61"; sSoW = "s62"
sUA, sUB, sUC, sUD = "s63", "s6", "s7", "s2"
sAF, sFL, sAF2, sFL2, sB2, sBo, sKVs, sKVF, sSCRW, sCNT, sKS, sBID = [f"s{64+i}" for i in range(12)]
sA2y, sA2s, sOo = "s0", "s1", "s5"
STAMP0 = 76

vA16 = "v1"; vDq = "v2"; vD1 = "v3"; vDB = "v4"; vD5 = "v5"
VW = 6
vRS, vRSL, vM2 = "v14", "v15", "v22"
CF = 16
BI0, BI1, BI2 = 23, 24, 25
vPoll = "v27"; vFO = "v28"; vOne = "v10"; vP4 = "v30"; vT = "v31"; vPoll2 = "v9"
ACC_A, ACC_B, ACC_C = 32, 48, 64
WB = 80; PT = 96; PHI = 112; PK = 120; XA = 128
XR = 64; XD = 72; HR = 112; STA = 96; CSB = 116; ASEL = 120; CSA = 124
sXb = "s86"; sRot = "s89"; ROT0 = 98

def R(b, n): return f"v[{b}:{b+n-1}]"
def ldsaddr(regs, byte): return regs[byte >> 16], byte & 0xffff
_nl = [0]
def label():
    _nl[0] += 1; return f"L{_nl[0]}"
def stamp(name):
    def f(s):
        if not PROFILE: return
        if CFG.get('LITE') and name not in ('st', 'end', 'a17'): return
        if not hasattr(s, 'snames'): s.snames = []
        idx = len(s.snames)
        if idx >= 61: return
        s.snames.append(str(name))
        s.e(f"s_memtime s[{STAMP0+2*(idx%4)}:{STAMP0+1+2*(idx%4)}]")
        if idx >= 2: s.raw(f"v_writelane_b32 v29, s{STAMP0+2*((idx-2)%4)}, {idx-2}")
    return f
def srd(s, dst, lo, hi, size):
    b = int(dst[2:dst.index(':')])
    s.e(f"s_mov_b32 s{b}, {lo}\ns_and_b32 s{b+1}, {hi}, 0xffff\ns_mov_b32 s{b+2}, {size}\ns_mov_b32 s{b+3}, 0x20000")
def poll_issue(s, srd_, soff, vp=vPoll, imm=0, vo=vP4):
    assert srd_ == sDbg or 'init' in s.marks
    s.e(f"buffer_load_dword {vp}, {vo}, {srd_}, {soff} offen offset:{imm} sc1")
def poll_check(s, srd_, soff, mask, vp=vPoll, imm=0, vo=vP4):
    l1, l2, l3 = label(), label(), label()
    stamp(f"[p{imm//128}_{mask:x}")(s)
    s.e(f"v_cmp_ne_u32 vcc, 0, {vp}\ns_andn2_b32 {sT0}, {mask:#x}, vcc_lo\ns_cbranch_scc1 {l1}\n{l2}:")
    stamp(f"p]")(s)
    s.ool.append(f"""{l1}:
  s_mov_b32 {sCNT}, 0x100000
{l3}:
  s_sleep {CFG['SLP']}
  buffer_load_dword {vp}, {vo}, {srd_}, {soff} offen offset:{imm} sc1
  s_waitcnt vmcnt(0)
  v_cmp_ne_u32 vcc, 0, {vp}
  s_nop 1
  s_andn2_b32 {sT0}, {mask:#x}, vcc_lo
  s_cbranch_scc0 {l2}
  s_sub_u32 {sCNT}, {sCNT}, 1
  s_cmp_lg_u32 {sCNT}, 0
  s_cbranch_scc1 {l3}
  s_branch {l2}""")
def flag_store(tagwait, soff, imm, mark):
    def f(s):
        assert 'init' in s.marks
        stamp("(" + mark)(s)
        s.wait_tag(tagwait)
        stamp(mark + ")")(s)
        s.e(f"buffer_store_dword {vOne}, {vFO}, {sWs}, {soff} offen offset:{imm} sc1")
        s.marks[mark] = 1
    return f
def blk(text): return lambda s: s.e(text)

class Ring:
    hold = ()
    def __init__(self, items, free, ch):
        self.items = list(items); self.free = list(free); self.slot = {}; self.q = []; self.log = {}; self.ch = ch
        self.order = {it[0]: k for k, it in enumerate(items)}; self.xres = True; self.gate = {}; self.lim = None
    def release(self, name):
        if name not in self.hold: self.free.append(self.slot[name])
    def assign(self, s, owner='all', upto=None, maxn=99):
        k = 0
        while k < len(self.items) and maxn > 0:
            it = self.items[k]; nm = it[0]
            if upto is not None and self.order[nm] > self.order[upto]: break
            if self.lim is not None and self.order[nm] > self.order[self.lim]: break
            if nm[0] == 'X':
                want = 2 * (int(nm[2]) & 1) + (nm[1] == 'H')
                ok = [x for x in self.free if x == want]
                if not ok: k += 1; continue
            elif nm[0] in 'BFA': ok = [x for x in self.free if not (self.xres and x < 4)]
            else: ok = [x for x in self.free if x != 0 and not (self.xres and x < 4)]
            if not ok:
                if nm[0] not in 'BA' and not self.strict: k += 1; continue
                break
            if nm[0] in 'BF' and 0 in ok: ok = [0]
            self.items.pop(k); sl = ok[0]; self.free.remove(sl); self.slot[nm] = sl; maxn -= 1
            self.log[nm] = [s.nbar, None, owner]
            if owner == 'all': self.q += [(it, sl, h, 0) for h in range(2)]
            elif owner == self.ch: self.q += [(it, sl, h, o) for o in range(1 if nm == 'BX' else 2) for h in range(2)]
            if nm == 'XH3': self.xres = False
        self.q.sort(key=lambda e: self.order[e[0][0]])
    def pump(self, s, n=1):
        while n > 0 and self.q:
            if self.q[0][0][0] in self.gate: self.gate.pop(self.q[0][0][0])(s)
            it, sl, h, other = self.q.pop(0)
            name, srd_, voff, sbase, o0, o1, dl = it[:7]
            sg = (1 if self.ch == 0 else -1) * other
            vo = voff[h] if isinstance(voff, tuple) else voff
            s.e(f"s_add_u32 m0, {sM0W}, {(sl*SLOT + h*1024 + sg*8192) & 0xffffffff:#x}")
            if len(it) > 7:
                mul, cidx = it[7], it[8](self.ch if not other else 1 - self.ch)
                key = (sbase, mul, cidx)
                if self.rkey != key:
                    s.e(f"s_mul_i32 {sRot}, s{ROT0+cidx}, {mul}\ns_add_u32 {sRot}, {sRot}, {sbase}")
                    self.rkey = key
                sbase = sRot
            s.e(f"s_add_u32 {sSoW}, {sbase}, {((o0, o1)[h] + sg*dl) & 0xffffffff:#x}")
            s.e(f"buffer_load_dwordx4 {vo}, {srd_}, {sSoW} offen {'sc1 ' if name[0] == 'A' else ''}lds", tag=name)
            n -= 1
    rkey = None
    strict = False
    cred = 0
    def pace(self, s, cycles, mx=99):
        self.cred = min(self.cred + cycles * CFG['RATE'], CFG['BURST'])
        while self.q and mx > 0:
            mx -= 1
            e = self.q[0]
            cost = (8192 if self.log[e[0][0]][2] == 'all' else 4096) * (2 if e[0][0][0] == 'F' else 1)
            if self.cred < cost: break
            self.cred -= cost; self.pump(s, 1)
    def need(self, s, name):
        assert name in self.slot, f"{name} has no slot yet"
        while any(e[0][0] == name for e in self.q):
            print("  warning: forced DMA issue for", name, "in", s.name)
            self.pump(s)
        if self.log[name][1] is None: self.log[name][1] = s.nbar
        s.wait_tag(name)
def x_items(q):
    return [(f"XL{q}", sX, (f"v{XD}", f"v{XD+1}"), sXb, 0, 0, 32768, 256, lambda c: q), (f"XH{q}", sX, (f"v{XD}", f"v{XD+1}"), sXb, 65536, 65536, 32768, 256, lambda c: q)]
def w_items(name, srd_, voff, sbase, stride):
    return [(f"{name}{c}", srd_, voff, sbase, 0, 8 * stride, 64 * stride, 128 * stride, lambda ch, c=c: c) for c in range(4)]
ORDER = [4, 5, 6, 7, 16, 17, 18, 19, 8, 9, 10, 11, 20, 21, 22, 23, 12, 13, 14, 15, 0, 1, 2, 3, 24, 25, 26, 27]
def b_item(hf, c):
    nm = f"B{'ab'[hf]}{c}"
    if c < 7:
        o = hf * 896 * 1024 + ORDER[4 * c] * 16384
        return (nm, sW2, vDB, sB2, o, o + 8192, 448 * 1024)
    o = hf * 256 * 1024 + (c - 7) * 65536
    return (nm, sWo, vDB, sBo, o, o + 8192, 128 * 1024)
def a_item(hf, c):
    nm = f"A{'ab'[hf]}{c}"
    if c < 7:
        o = (56 * hf + ORDER[4 * c]) * 1024
        return (nm, sWs, vA16, sA2y, o, o + 144 * 1024, 28 * 1024)
    o = (16 * hf + 4 * (c - 7)) * 1024
    return (nm, sWs, vA16, sA2s, o, o + 144 * 1024, 8 * 1024)
def CB_(n): return f"B{'ab'[n & 1]}{n >> 1}"
def CA_(n): return f"A{'ab'[n & 1]}{n >> 1}"
def b_items(first):
    npre = CFG['NPB']
    it = [b_item(n & 1, n >> 1) for n in range(npre)]
    for n in range(18):
        it.append(a_item(n & 1, n >> 1))
        if npre <= n + 2 < 18: it.append(b_item(n & 1, (n + 2) >> 1))
        if n == CFG['XAT']: it.append(("BX", sX, vDB, "s91", 0, 8192, 0))
    return it

def mish(acc, tmp, so, tag):
    F = []
    for hb in range(2):
        a = acc + 8 * hb
        for j in range(8): F.append(f"v_mul_f32 v{tmp+j}, v{a+j}, {vRSL}")
        for j in range(8): F.append(f"v_exp_f32 v{tmp+j}, v{tmp+j}")
        for j in range(8): F.append(f"v_add_f32 v{tmp+j}, 1.0, v{tmp+j}")
        for j in range(8): F.append(f"v_fma_f32 v{tmp+j}, v{tmp+j}, v{tmp+j}, 1.0")
        for j in range(8): F.append(f"v_rcp_f32 v{tmp+j}, v{tmp+j}")
        for j in range(8): F.append(f"v_fma_f32 v{tmp+j}, v{tmp+j}, {vM2}, {vRS}")
        for j in range(8): F.append(f"v_mul_f32 v{tmp+j}, v{a+j}, v{tmp+j}")
        for j in range(4): F.append(f"v_cvt_pk_bf16_f32 v{a+j}, v{tmp+2*j}, v{tmp+2*j+1}")
        F.append((f"buffer_store_dwordx4 {R(a,4)}, {vA16}, {sWs}, {so} offen offset:{hb*1024} sc1", tag))
    return F
def bc(r):
    n = int(r[1:]); return R(n & ~1, 2), n & 1
def pk2(op, d, a, b, c=None):
    ops = [R(a, 2)]; lo = [0]; hi = [1]
    for x in (b, c):
        if x is None: continue
        if isinstance(x, int): ops.append(R(x, 2)); lo.append(0); hi.append(1)
        elif x[0] == 'v':
            p, o = bc(x); ops.append(p); lo.append(o); hi.append(o)
        else: ops.append(x); lo.append(0); hi.append(0)
    f = lambda L: "[" + ",".join(map(str, L)) + "]"
    return f"v_pk_{op}_f32 {R(d,2)}, " + ", ".join(ops) + f" op_sel:{f(lo)} op_sel_hi:{f(hi)}"
def mish_pk(acc, tmp, so, tag):
    F = []
    for hb in range(2):
        a = acc + 8 * hb; E = range(0, 8, 2)
        F += [pk2("mul", tmp + j, a + j, vRSL) for j in E] + [f"v_exp_f32 v{tmp+j}, v{tmp+j}" for j in range(8)]
        F += [pk2("add", tmp + j, tmp + j, "1.0") for j in E] + [pk2("fma", tmp + j, tmp + j, tmp + j, "1.0") for j in E]
        F += [f"v_rcp_f32 v{tmp+j}, v{tmp+j}" for j in range(8)]
        F += [pk2("fma", tmp + j, tmp + j, vM2, vRS) for j in E] + [pk2("mul", tmp + j, tmp + j, a + j) for j in E]
        F += [f"v_cvt_pk_bf16_f32 v{a+j}, v{tmp+2*j}, v{tmp+2*j+1}" for j in range(4)]
        F.append((f"buffer_store_dwordx4 {R(a,4)}, {vA16}, {sWs}, {so} offen offset:{hb*1024} sc1", tag))
    return F
def softmax_pk(P, out, t0, t1, tp):
    F = softmax(P, out, t0, t1)[:9]; E = range(0, 16, 2)
    F += [pk2("fma", P + j, P + j, vRSL, t0) for j in E] + [f"v_exp_f32 v{P+j}, v{P+j}" for j in range(16)]
    F += [pk2("add", tp, P, P + 2), pk2("add", tp + 2, P + 4, P + 6), pk2("add", tp, tp, P + 8), pk2("add", tp + 2, tp + 2, P + 10),
          pk2("add", tp, tp, P + 12), pk2("add", tp + 2, tp + 2, P + 14), pk2("add", tp, tp, tp + 2), f"v_add_f32 {t0}, v{tp}, v{tp+1}", f"v_rcp_f32 {t0}, {t0}"]
    F += [pk2("mul", P + j, P + j, t0) for j in E] + [f"v_cvt_pk_bf16_f32 v{out+j}, v{P+2*j}, v{P+2*j+1}" for j in range(8)]
    return F
def softmax(P, out, t0, t1):
    F = [f"v_max3_f32 {t0}, v{P}, v{P+1}, v{P+2}", f"v_max3_f32 {t1}, v{P+3}, v{P+4}, v{P+5}",
         f"v_max3_f32 {t0}, {t0}, v{P+6}, v{P+7}", f"v_max3_f32 {t1}, {t1}, v{P+8}, v{P+9}",
         f"v_max3_f32 {t0}, {t0}, v{P+10}, v{P+11}", f"v_max3_f32 {t1}, {t1}, v{P+12}, v{P+13}",
         f"v_max3_f32 {t0}, {t0}, v{P+14}, v{P+15}", f"v_max_f32 {t0}, {t0}, {t1}", f"v_mul_f32_e64 {t0}, -{t0}, {vRSL}"]
    for j in range(16): F.append(f"v_fma_f32 v{P+j}, v{P+j}, {vRSL}, {t0}")
    for j in range(16): F.append(f"v_exp_f32 v{P+j}, v{P+j}")
    F += [f"v_add_f32 {t0}, v{P}, v{P+1}", f"v_add_f32 {t1}, v{P+2}, v{P+3}"]
    for j in range(4, 16, 2):
        F += [f"v_add_f32 {t0}, {t0}, v{P+j}", f"v_add_f32 {t1}, {t1}, v{P+j+1}"]
    F += [f"v_add_f32 {t0}, {t0}, {t1}", f"v_rcp_f32 {t0}, {t0}"]
    for j in range(16): F.append(f"v_mul_f32 v{P+j}, v{P+j}, {t0}")
    for j in range(8): F.append(f"v_cvt_pk_bf16_f32 v{out+j}, v{P+2*j}, v{P+2*j+1}")
    return F
def pack16(acc, out): return [f"v_cvt_pk_bf16_f32 v{out+j}, v{acc+2*j}, v{acc+2*j+1}" for j in range(8)]
def phi_frags():
    F = ["v_bfe_u32 v25, v0, 2, 2", "v_lshrrev_b32 v26, 5, v0", "v_lshl_add_u32 v25, v26, 2, v25", "v_lshlrev_b32 v25, 5, v25",
         "v_bfe_u32 v26, v0, 4, 1", "v_lshl_add_u32 v25, v26, 4, v25", "v_bfe_u32 v26, v0, 1, 1", "v_lshl_add_u32 v25, v26, 3, v25",
         blk(f"s_lshl_b32 s4, {sCH}, 10\ns_add_u32 s4, s4, {SCR_PHI}\nv_add_u32 v25, s4, v25")]
    for h in range(2):
        for rd in range(2): F.append(f"ds_read_b64_tr_b16 {R(PHI+4*h+2*rd,2)}, v25 offset:{h*512 + rd*256}")
    F += ["v_bfe_u32 v26, v0, 2, 1", "v_mul_u32_u24 v26, 0x8000, v26", "v_lshl_or_b32 v26, v26, 16, v26"]
    for j in range(8): F.append(f"v_xor_b32 v{PHI+j}, v26, v{PHI+j}")
    return F

BIASL = {}
def touch0(s):
    s.e(f"s_lshl_b32 s4, s88, 3\ns_add_u32 s4, s4, {sW}\ns_mov_b32 m0, {SCR + 15360}")
    for srd_, n in (((sX, 8),) if CFG['TX'] else ()) + (((sW1, 7), (sWq, 6)) if CFG['TX'] < 2 else ()):
        s.e(f"s_mul_i32 s5, s4, {n*128}\nv_min_u32 v47, {n-1}, v0\nv_lshlrev_b32 v47, 7, v47")
        s.e(f"buffer_load_dword v47, {srd_}, s5 offen lds")
def prologue(s):
    s.e("s_load_dwordx2 s[64:65], s[0:1], 0\ns_load_dwordx8 s[68:75], s[0:1], 8\ns_load_dwordx8 s[76:83], s[0:1], 40")
    s.e("s_load_dwordx2 s[84:85], s[0:1], 80\ns_load_dwordx2 s[66:67], s[0:1], 72")
    s.e("s_cmp_ge_u32 s2, 256\ns_cbranch_scc1 L_end")
    s.e("v_lshrrev_b32 v2, 6, v0\nv_and_b32 v0, 63, v0\ns_and_b32 s3, s2, 7\ns_lshr_b32 s87, s2, 3")
    s.e(f"v_readfirstlane_b32 {sW}, v2")
    s.e(f"v_lshrrev_b32 v33, 4, v0\nv_and_b32 v34, 15, v0")
    s.e(f"s_cmp_lg_u32 {sW}, {CFG['PWW']}\ns_cbranch_scc1 L_nopw")
    s.e(f"s_getpc_b64 s[90:91]\nL_pc0:\ns_sub_u32 s90, s90, L_pc0-{KNAME}\ns_subb_u32 s91, s91, 0\ns_lshl_b32 s5, s87, 11\nv_lshlrev_b32 v35, 7, v34\nv_add_u32 v35, s5, v35")
    s.raw("global_load_dword v26, v35, s[90:91]")
    s.e("L_nopw:")
    s.e(f"s_and_b32 s5, s3, 1\ns_lshl_b32 s5, s5, 3\ns_and_b32 {sI}, s87, 7\ns_add_u32 {sI}, {sI}, s5")
    s.e(f"s_and_b32 {sRT2}, {sW}, 1\ns_lshl_b32 {sM0W}, {sW}, 11\ns_lshl_b32 s5, {sRT2}, 3")
    for h in range(2):
        s.e(f"v_add_u32 v35, {4*h}, v33\nv_add_u32 v36, s5, v35\nv_xor_b32 v36, v34, v36\nv_lshlrev_b32 v36, 4, v36\nv_lshl_add_u32 v{XD+h}, v35, 10, v36")
    s.e({2: f"s_lshr_b32 s{ROT0}, s3, 1\ns_lshl_b32 s{ROT0+1}, s3, 1\ns_add_u32 s{ROT0}, s{ROT0}, s{ROT0+1}", 0: f"s_mov_b32 s{ROT0}, 0", 3: f"s_lshr_b32 s{ROT0}, s3, 1\ns_xor_b32 s{ROT0}, s{ROT0}, s3\ns_lshl_b32 s{ROT0}, s{ROT0}, 1"}[CFG['ROT']])
    for c in range(1, 4): s.e(f"s_add_u32 s{ROT0+c}, s{ROT0}, {c}\ns_and_b32 s{ROT0+c}, s{ROT0+c}, 3")
    s.e(f"s_and_b32 s{ROT0}, s{ROT0}, 3")
    s.e(f"s_lshl_b32 {sXb}, {sI}, 17\ns_lshl_b32 s5, {sW}, 13\ns_add_u32 {sXb}, {sXb}, s5\ns_mov_b32 s10, {2048*512*2}\ns_mov_b32 s11, 0x20000")
    s.e("v_lshrrev_b32 v36, 3, v0\nv_and_b32 v37, 7, v0\nv_lshlrev_b32 v38, 1, v36\nv_and_b32 v38, 4, v38\nv_xor_b32 v37, v37, v38\nv_lshlrev_b32 v37, 4, v37")
    s.raw("s_waitcnt lgkmcnt(0)")
    s.e("s_mov_b32 s8, s64\ns_and_b32 s9, s65, 0xffff")
    srd(s, sWs, "s84", "s85", 0x10000000)
    s.e(f"v_lshlrev_b32 {vA16}, 4, v0\ns_cmp_lg_u32 s3, 1\ns_cbranch_scc1 L_noinit")
    s.e("v_mov_b32 v40, 0\nv_mov_b32 v41, 0\nv_mov_b32 v42, 0\nv_mov_b32 v43, 0")
    s.e(f"s_lshl_b32 s5, s87, 13\ns_lshl_b32 s4, {sW}, 10\ns_add_u32 s5, s5, s4\ns_add_u32 s5, s5, {Z_OFF}")
    s.raw(f"buffer_store_dwordx4 v[40:43], {vA16}, {sWs}, s5 offen sc1")
    s.e("s_add_u32 s5, s5, 0x40000")
    s.raw(f"buffer_store_dwordx4 v[40:43], {vA16}, {sWs}, s5 offen sc1")
    s.e("L_noinit:")
    r0 = Ring(x_items(0) + x_items(1), range(9), 0); r0.assign(s)
    r0.pump(s, 4)
    s.e(f"v_mul_u32_u24 {vDq}, 3072, v36\nv_add_u32 {vDq}, {vDq}, v37\nv_mul_u32_u24 {vD1}, 3584, v36\nv_add_u32 {vD1}, {vD1}, v37")
    s.e(f"s_lshr_b32 s5, s3, 1\ns_lshl_b32 s5, s5, 2\ns_lshr_b32 s6, s87, 3\ns_add_u32 s5, s5, s6")
    s.e(f"s_lshr_b32 {sG}, s5, 1\ns_and_b32 {sTY}, s5, 1\ns_lshl_b32 {sRB}, s3, 2\ns_add_u32 {sRB}, {sRB}, s6\ns_and_b32 {sCB}, s87, 7")
    s.e(f"s_lshr_b32 {sKQ}, {sW}, 1\ns_and_b32 {sRT}, {sW}, 3\ns_lshr_b32 {sCH}, {sW}, 2\ns_mov_b32 s88, s2")
    srd(s, sWq, "s68", "s69", 512 * 1536 * 2)
    srd(s, sW1, "s76", "s77", 512 * 1792 * 2)
    def wpair(c, first):
        l1, l2 = label(), label()
        s.e(f"s_cmp_eq_u32 {sTY}, 0\ns_cbranch_scc1 {l1}")
        vm0 = list(s.vm)
        for typ, it in (('B', w_items("W", sW1, vD1, sUA, 3584)), ('A', w_items("W", sWq, vDq, sUA, 3072))):
            s.vm = list(vm0)
            if typ == 'A': s.e(f"{l1}:")
            if first: BIASL[typ] = unit_bases(s, typ)
            r = Ring([it[c]], [4 + c], 0); r.assign(s); r.pump(s, 2)
            if typ == 'B': s.e(f"s_branch {l2}")
        s.e(f"{l2}:")
    wpair(0, True)
    s.e(f"v_lshl_add_u32 {vDB}, v36, 10, v37")
    if CFG['TP'] == 1: touch0(s)
    prologue2(s)
    if CFG['TP'] == 2: touch0(s)
    r0.rkey = None
    r0.pump(s, 4)
    wpair(1, False)
    if CFG['TP'] == 3: touch0(s)

def prologue2(s):
    srd(s, sPhi, "s70", "s71", 32 * 512)
    srd(s, sB1, "s78", "s79", 1792 * 2)
    srd(s, sW2, "s80", "s81", 1792 * 512 * 2)
    srd(s, sWo, "s72", "s73", 512 * 512 * 2)
    srd(s, sOut, "s82", "s83", 2048 * 512 * 2)
    srd(s, sDbg, "s66", "s67", 256)
    s.e(f"s_mov_b32 {sBID}, s88\ns_mov_b32 {sC11}, 0x3f803f80")
    s.e(f"v_lshrrev_b32 v36, 2, v0\nv_and_b32 v37, 3, v0\nv_lshlrev_b32 v37, 4, v37\nv_mul_u32_u24 {vD5}, 3584, v36\nv_add_u32 {vD5}, {vD5}, v37")
    s.e(f"v_and_b32 {vP4}, 31, v0\nv_lshlrev_b32 {vP4}, 2, {vP4}")
    s.e(f"v_mov_b32 v29, 0\nv_mov_b32 {vFO}, {BIG}\nv_cmp_eq_u32 vcc, 0, v0\nv_cndmask_b32 {vFO}, {vFO}, 0, vcc")
    s.e("v_bfe_u32 v36, v0, 2, 2\nv_and_b32 v37, 3, v0\nv_bfe_u32 v38, v0, 4, 1\nv_lshrrev_b32 v39, 5, v0")
    s.e("v_lshlrev_b32 v40, 3, v37\nv_lshl_add_u32 v40, v38, 5, v40\nv_lshl_add_u32 v41, v39, 3, v36")
    s.e(f"v_lshrrev_b32 v42, 1, v36\nv_xor_b32 v42, {sCH}, v42\nv_lshlrev_b32 v42, 6, v42")
    s.e(f"v_lshl_add_u32 v43, v41, 7, v40\nv_add_u32 v43, v43, v42")
    for j in range(4):
        s.e(f"s_xor_b32 s5, {sRT}, {j}\ns_lshl_b32 s5, s5, 12\ns_add_u32 s5, s5, {SLOT}\nv_add_u32 v{VW+j}, s5, v43\nv_add_u32 v{VW+4+j}, 0x10000, v{VW+j}")
    s.e(f"v_and_b32 v44, 31, v0\ns_lshl_b32 s5, {sRT}, 5\nv_add_u32 v45, s5, v44\nv_xor_b32 v46, v39, v34\nv_lshlrev_b32 v46, 4, v46\nv_lshl_add_u32 v{XR}, v45, 8, v46")
    s.e(f"s_lshl_b32 s5, {sRT}, 6\nv_xor_b32 v{XR}, s5, v{XR}")
    for t in range(1, 8): s.e(f"v_xor_b32 v{XR+t}, {t<<5}, v{XR}")
    s.e(f"v_lshlrev_b32 v44, 2, v38\nv_cmp_eq_u32 vcc, v44, v34\nv_mov_b32 v44, {sC11}\nv_cndmask_b32 v{ASEL}, 0, v44, vcc")
    for j in range(1, 4): s.e(f"v_mov_b32 v{ASEL+j}, v{ASEL}")
    s.e(f"v_mov_b32 v{CF+4}, 0\nv_mov_b32 v{CF+5}, 0")
    s.e(f"s_lshl_b32 s3, {sI}, 2\ns_add_u32 s3, s3, {sRT}\ns_mul_i32 {sAF}, s3, {144*1024}")
    s.e(f"s_mul_i32 {sKS}, {sG}, {14*1024}\ns_add_u32 {sKS}, {sKS}, {sAF}")
    s.e(f"s_lshl_b32 {sFL}, s3, 2\ns_lshr_b32 s4, {sG}, 1\ns_add_u32 {sFL}, {sFL}, s4\ns_mul_i32 {sFL}, {sFL}, 640")
    s.e(f"s_and_b32 s4, {sG}, 1\ns_lshl_b32 s4, s4, 3\ns_lshl_b32 s5, {sCH}, 2\ns_add_u32 s4, s4, s5\ns_add_u32 {sFL}, {sFL}, s4\ns_add_u32 {sFL}, {sFL}, {ACTFLAG_OFF}")
    s.e(f"s_mul_i32 {sAF2}, {sRB}, {288*1024}\ns_lshl_b32 s3, {sRT}, 10\ns_add_u32 {sAF2}, {sAF2}, s3")
    s.e(f"s_mul_i32 {sFL2}, {sRB}, 5120\ns_add_u32 {sFL2}, {sFL2}, {ACTFLAG_OFF}")
    s.e(f"s_mul_i32 {sB2}, {sCH}, {448*1024}\ns_lshl_b32 s4, {sRT}, 14\ns_lshl_b32 s5, {sCB}, 7\ns_add_u32 s4, s4, s5\ns_add_u32 {sB2}, {sB2}, s4")
    s.e(f"s_lshl_b32 {sBo}, {sCH}, 17\ns_add_u32 {sBo}, {sBo}, s4")
    s.e(f"s_lshl_b32 s3, {sG}, 2\ns_add_u32 s3, s3, {sKQ}\ns_mul_i32 {sKVs}, s3, 2176\ns_add_u32 {sKVs}, {sKVs}, {KV_OFF}")
    s.e(f"s_lshl_b32 s3, {sG}, 3\ns_add_u32 s3, s3, {sW}\ns_lshl_b32 {sKVF}, s3, 11\ns_add_u32 {sKVF}, {sKVF}, {KVFLAG_OFF}")
    s.e(f"s_mul_i32 s3, {sCH}, {28*1024}\ns_add_u32 {sA2y}, {sAF2}, s3")
    s.e(f"s_lshl_b32 s3, {sCH}, 13\ns_add_u32 {sA2s}, {sAF2}, s3\ns_add_u32 {sA2s}, {sA2s}, {112*1024}")
    s.e(f"v_lshrrev_b32 {vT}, 1, {vP4}")

def unit_bases(s, typ):
    s.e(f"s_mul_i32 s3, {sW}, {16*3072}\ns_lshl_b32 s4, {sG}, 7\ns_add_u32 s3, s3, s4")
    s.e(f"s_mul_i32 s4, {sG}, 448\ns_and_b32 s5, {sG}, 1\ns_cmp_eq_u32 s5, 0")
    if typ == 'A':
        s.e(f"s_cselect_b32 s5, 0, 320\ns_add_u32 s4, s4, s5")
        s.e(f"s_add_u32 {sUA}, s3, 1024\ns_add_u32 {sUB}, s3, 2048")
        s.e(f"s_mul_i32 {sUC}, {sW}, {16*3584}\ns_add_u32 {sUC}, {sUC}, s4")
        s.e(f"s_lshl_b32 s5, {sCH}, 6\ns_add_u32 s92, s4, s5")
        return [f"buffer_load_ushort v{BI0}, {vT}, {sB1}, s92 offen"]
    s.e(f"s_cselect_b32 s5, 128, 64\ns_cselect_b32 {sUD}, 384, 0")
    s.e(f"s_add_u32 s5, s4, s5\ns_add_u32 s92, s4, {sUD}\ns_mov_b32 {sUC}, s3")
    s.e(f"s_mul_i32 {sUA}, {sW}, {16*3584}\ns_add_u32 {sUA}, {sUA}, s5\ns_add_u32 {sUB}, {sUA}, 128")
    s.e(f"s_mul_i32 {sUD}, {sRT}, {32*3584}\ns_add_u32 {sUD}, {sUD}, s92")
    s.e(f"s_lshl_b32 s3, {sCH}, 6\ns_add_u32 s93, s5, s3")
    return [f"buffer_load_ushort v{BI2}, {vT}, {sB1}, s92 offen", f"buffer_load_ushort v{BI0}, {vT}, {sB1}, s93 offen",
            f"buffer_load_ushort v{BI1}, {vT}, {sB1}, s93 offen offset:128"]

def start(s, ring, n0):
    ring.assign(s, upto=ring.upto0)
    pre = ["XL0", "XH0", n0 + "0", "XL1", "XH1", n0 + "1"]
    assert [ring.slot[x] for x in pre] == [0, 1, 4, 2, 3, 5]
    ring.q = [e for e in ring.q if e[0][0] not in pre]
    s.vm = [(d, (n0 + tg[1] if tg in ("W0", "W1") else tg)) for d, tg in s.vm]
def touch_all(s, which):
    specs = dict(x=(sX, 64, 4), q=(sWq, 48, 5), w1=(sW1, 56, 6), w2=(sW2, 56, 4), wo=(sWo, 16, 5))
    for nm in which:
        srd_, nl, wv = specs[nm]
        lab = label()
        s.e(f"s_cmp_lg_u32 {sW}, {wv}\ns_cbranch_scc1 {lab}")
        s.e(f"v_min_u32 v47, {nl-1}, v0\nv_lshlrev_b32 v47, 7, v47\ns_mul_i32 s5, s88, {nl*128}\ns_mov_b32 m0, {SCR + 15360}\ns_nop 0")
        s.raw(f"buffer_load_dword v47, {srd_}, s5 offen lds")
        s.e(f"{lab}:")
def late_loads(biasloads):
    def f(s):
        s.e(f"v_lshrrev_b32 {vT}, 1, {vP4}")
        for x in biasloads: s.e(x)
        s.e(f"s_lshl_b32 s3, {sG}, 11\ns_lshl_b32 s4, {sRT2}, 10\ns_add_u32 s3, s3, s4\ns_add_u32 m0, s4, {SCR_PHI}")
        s.e(f"buffer_load_dwordx4 {vA16}, {sPhi}, s3 offen lds", tag="phi")
    return f

MF = "v_mfma_f32_32x32x16_bf16"
def bar(s, ring, name, needs=(), rel=(), owner='all', lg0=False, upto=None, extra=(), maxn=99):
    if CFG.get('SB'): stamp("<" + name)(s)
    for n in needs: ring.need(s, n)
    if lg0: s.wait(lg=0)
    s.wait_dswrites()
    pend = [k for k, (_, tg) in enumerate(s.lg) if tg in rel]
    if pend:
        s.wait(lg=len(s.lg) - 1 - max(pend))
    for n in rel: s.released.add(n)
    if extra: assert not any(tg is None for _, tg in s.lg), f"scratch release at {name} with untagged LDS ops pending"
    s.e("s_barrier")
    stamp(name)(s)
    s.marks[name] = 1
    for n in rel: ring.release(n)
    ring.free += list(extra)
    if owner == 'all':
        k = 'x' if name[0] == 'b' else ('a' if name[0] in 'ae' else 'p')
        if k in CFG['OWN'] and not (s.name[0] == 'B' and name in ('c3', 'd3', 'e1')): owner = 0
    ring.assign(s, owner, upto, maxn)
def B(ring, *a, **k): return lambda s: bar(s, ring, *a, **k)

class MSeg:
    def __init__(self, ring, u, ch, events=None, posts=None, xpass=False, dma=0):
        self.ring, self.u, self.ch, self.ev, self.posts, self.xp, self.dma = ring, u, ch, events or {}, posts or {}, xpass, dma
        self.nr = 0; self.hs = None
    def reads(self, s, t):
        u, ring = self.u, self.ring
        for e in self.ev.get(t, []): e(s)
        c, p = t // 8, t % 8
        if self.xp:
            for x in {0: (0, 1), 1: (2, 3, 4), 2: (5, 6, 7)}.get(p, ()):
                s.e(f"ds_read_b128 {R(XA+32*c+4*x,4)}, v{XR+x} offset:{(c&1)*32768}", tag=f"XL{c}")
        it = f"{u['name']}{c}" if u['kind'] == 'w' else f"{u['name']}{c//2}"
        assert ring.log[it][1] is not None, f"{it} read before certified"
        assert it not in s.released and not (self.xp and p < 3 and f"XL{c}" in s.released)
        sl = ring.slot[it]; buf = WB + 4 * (t % 4)
        if u['kind'] == 'h5' and self.hs != sl:
            if self.hs is None:
                s.e("v_bfe_u32 v116, v0, 2, 2\nv_lshrrev_b32 v117, 5, v0\nv_lshl_add_u32 v116, v117, 3, v116\nv_lshlrev_b32 v116, 6, v116\nv_bfe_u32 v117, v0, 4, 1\nv_lshl_add_u32 v116, v117, 5, v116\nv_and_b32 v117, 3, v0\nv_lshl_add_u32 v116, v117, 3, v116")
                for j in range(4): s.e(f"s_xor_b32 s3, {sRT}, {j}\ns_lshl_b32 s3, s3, 11\ns_add_u32 s3, s3, {sl*SLOT}\nv_add_u32 v{HR+j}, s3, v116")
            else:
                for j in range(4): s.e(f"v_add_u32 v{HR+j}, {((sl-self.hs)*SLOT) & 0xffffffff:#x}, v{HR+j}")
            self.hs = sl
        for k in range(2):
            if u['kind'] == 'w':
                w = 0 if sl <= 4 else 1
                r, off = f"v{VW+4*w+p//2}", (sl - 1 - 4 * w) * SLOT + (p & 1) * 2048 + k * 512
            else: r, off = f"v{HR+p//2}", (c % 2) * 8192 + (p & 1) * 1024 + k * 256
            s.e(f"ds_read_b64_tr_b16 {R(buf+2*k,2)}, {r} offset:{off}", tag=it); s.seen.add(it)
    def pre(self, s, n=None):
        n = CFG['PF'] if n is None else n
        while self.nr < n: self.reads(s, self.nr); self.nr += 1
    def run(self, s, nxt=None, F=None, budget=0):
        u = self.u; ch = self.ch
        credit = 0
        if CFG['PRIO'] and not self.xp: s.e("s_setprio 1")
        self.pre(s)
        for t in range(32):
            c, p = t // 8, t % 8
            buf = WB + 4 * (t % 4)
            cin = R(u['acc'], 16) if t > 0 else "0"
            a, b = (R(buf, 4), R(XA + 4 * t, 4)) if u['trans'] else (R(XA + 4 * t, 4), R(buf, 4))
            s.e(f"{MF} {R(u['acc'],16)}, {a}, {b}, {cin}")
            if p < 2 and not (CFG.get('NOCS') and t > 0): s.e(f"v_mfma_f32_16x16x32_bf16 {R(CSA,4)}, {R(ASEL,4)}, {R(buf,4)}, {R(CSA,4) if t > 0 else '0'}")
            if self.nr < 32: self.reads(s, self.nr); self.nr += 1
            elif nxt is not None: nxt.pre(s, t - 31 + CFG['PF'])
            if self.xp and t < 25 and CFG['PAR'] == 2:
                if t % 2 == ch or ('x' in CFG['OWN'] and ch == 0): self.ring.pump(s, 2)
            elif self.xp and t < 25: self.ring.pump(s, 1)
            elif self.xp: self.ring.pace(s, CFG['ST'])
            elif self.dma and CFG['PAR']:
                if 'p' in CFG['OWN']: self.ring.pace(s, self.dma, 1)
                elif t % 2 == ch: self.ring.pace(s, 2 * self.dma, 2)
            elif self.dma: self.ring.pace(s, self.dma)
            if t == 27:
                s.e(f"s_lshl_b32 s3, {sRT}, 2\ns_add_u32 s3, s3, {SCR_CS + u['csi']*2048 + ch*1024}\nv_add_u32 v{CSA+1}, s3, {vA16}\nds_write_b32 v{CSA+1}, v{CSA}")
            if self.xp and p in (1, 3):
                for x in ((ch, ch + 2) if p == 1 else (ch + 4, ch + 6)):
                    for j in range(4):
                        r = XA + 32 * c + 4 * x + j
                        first = (c == 0 and p == 1 and x == ch and j < 2)
                        s.e(f"v_dot2_f32_bf16 v{STA+(j&1)}, v{r}, {sC11}, {'0' if first else f'v{STA+(j&1)}'}")
                        s.e(f"v_dot2_f32_bf16 v{STA+2+(j&1)}, v{r}, v{r}, {'0' if first else f'v{STA+2+(j&1)}'}")
                if t == 27:
                    q = f"v{STA+2}"
                    s.e(f"v_add_f32 v{STA}, v{STA}, v{STA+1}\nv_add_f32 v{STA+1}, v{STA+2}, v{STA+3}\nv_lshrrev_b32 {q}, 5, v0\nv_lshlrev_b32 {q}, 3, {q}\n"
                        f"v_lshl_add_u32 {q}, {vP4}, 3, {q}\ns_lshl_b32 s3, {sRT}, 10\ns_add_u32 s3, s3, {SCR_ST + ch*16}\nv_add_u32 {q}, s3, {q}\nds_write_b64 {q}, {R(STA,2)}")
            for e in self.posts.get(t, []): e(s)
            if F is not None: credit = fill(s, F, (budget(t) if callable(budget) else budget) + min(credit, CFG['CRED']))
        if CFG['PRIO'] and not self.xp: s.e("s_setprio 0")

def fill(s, F, budget, force=False, pop=False):
    while budget > 0 and F:
        f = F[0]
        if isinstance(f, tuple) and f[0] == 'wait':
            if f[1] in s.marks: F.pop(0); continue
            return 0
        if isinstance(f, tuple) and f[0] == 'nextbar': f = F[0] = ('barge', s.nbar + 1)
        if isinstance(f, tuple) and f[0] in ('barge', 'bhold'):
            if s.nbar >= f[1]: F.pop(0); continue
            return 0
        if isinstance(f, tuple) and f[0] in ('hold', 'tilt'):
            if pop: F.pop(0); continue
            return 0
        if isinstance(f, tuple) and f[0] == 'gap':
            f = F[0] = ('until', s.n_issued + f[1])
        if isinstance(f, tuple) and f[0] == 'until':
            if s.n_issued >= f[1] or force: F.pop(0); continue
            return 0
        if callable(f):
            F.pop(0); n0 = s.n_issued; f(s); budget -= max(1, (s.n_issued - n0) * 0.5); continue
        txt, tag = (f if isinstance(f, tuple) else (f, None))
        need, age = s.cost(txt)
        if not force and (need > 1 or (age is not None and age < CFG['AGE'])): return budget
        F.pop(0); s.e(txt, tag)
        k = I(txt).kind
        budget -= 2 if k == 'trans' else (0.5 if k in ('salu', 'ds', 'vm') else 1)
    return 0
def until(s, ring, F, name, every=None, nopace=False):
    n = 0
    while name not in s.marks:
        assert F, name
        if isinstance(F[0], tuple) and F[0][0] == 'bhold': F.pop(0)
        l = len(F); fill(s, F, 1, force=True, pop=True)
        assert len(F) < l, ("stuck", F[0], name, s.name)
        n += 1
        if not nopace: ring.pace(s, 9)
    return n
def vrun(s, ring, F, slots, every=None, flush=True):
    every = every or CFG['VD']
    while slots > 0 and F:
        l = len(F); fill(s, F, min(every, slots), force=True); slots -= every
        ring.pace(s, 9 * every)
        if len(F) == l: break
    if flush: ring.pump(s, 99)

def vseg(s, ring, F, every=None, flush=True):
    every = every or CFG['VD']
    n = 0
    for f in F:
        if isinstance(f, tuple) and f[0] in ('after', 'skip', 'wait', 'gap', 'until'): continue
        drain(s, [f]); n += 1
        ring.pace(s, 10)
    if flush: ring.pump(s, 99)
def split(F, frac, item):
    k = int(len(F) * frac)
    return F[:k] + [item] + F[k:]

def pass0(s, ring, u, ch, bl, nextname, nextneed):
    ev = {}
    NBX = CFG['NBX']; n = u['name']
    for c in range(4):
        def b0(s, c=c):
            if c == 3: s.wait_tag("phi")
            lag = CFG['LG0'] == 0
            if lag: rel = [f"{n}{c-2}"] if (c >= 2 and c - 1 >= NBX) else []
            else: rel = [f"{n}{c-1}"] if c else []
            if c - 1 >= NBX: rel += [f"XL{c-1}", f"XH{c-1}"]
            up = CFG['UP'][2 * c]
            bar(s, ring, f"b0{c}", [f"{n}{c}", f"XL{c}", f"XH{c}"] + (nextneed if (c == 3 and NBX < 4) else []), rel, lg0=not lag, upto=(nextname[0] + str(up) if up < 4 else None))
            if c == 0 and ch == 0:
                lab = label()
                s.e(f"s_and_b32 s3, {sBID}, 7\ns_cmp_lg_u32 s3, 1\ns_cbranch_scc1 {lab}\ns_cmp_lg_u32 {sW}, 0\ns_cbranch_scc1 {lab}\ns_lshl_b32 s3, s87, 2")
                s.raw(f"buffer_store_dword {vOne}, {vFO}, {sDbg}, s3 offen offset:128 sc1")
                s.e(f"{lab}:")
        def bx(s, c=c):
            s.wait_regs([f"v{r}" for r in range(XA + 32 * c, XA + 32 * c + 32)])
            bar(s, ring, f"bx{c}", nextneed if c == 3 else [], [f"XL{c}", f"XH{c}"] + ([f"{n}{c-1}"] if (c and CFG['LG0'] == 0) else []),
                upto=(nextname[0] + str(CFG['UP'][2 * c + 1]) if c < 3 else None))
        ev[8 * c] = [b0]
        if c < NBX: ev[8 * c + 4] = [bx]
    ring.c1rel = (["XL3", "XH3"] if NBX < 4 else []) + ([f"{n}2"] if (CFG['LG0'] == 0 and NBX < 4) else [])
    return MSeg(ring, u, ch, ev, {CFG['LLT']: [late_loads(bl)], CFG['TBT']: [lambda s: touchB(s)], CFG['TWT']: [lambda s: touchW(s)]}, xpass=True, dma=1)

def stats_fin(T):
    F = [blk(f"s_lshl_b32 s4, {sRT}, 10\ns_add_u32 s4, s4, {SCR_ST}\nv_lshlrev_b32 {vT}, 3, {vP4}\nv_add_u32 {vT}, s4, {vT}"),
         f"ds_read_b128 {R(T,4)}, {vT}", f"ds_read_b128 {R(T+4,4)}, {vT} offset:16",
         blk(f"s_lshl_b32 s4, {sRT}, 7\ns_add_u32 s4, s4, {SCR_RS}\nv_add_u32 {vT}, s4, {vP4}\nv_cmp_gt_u32 s[94:95], 32, v0")]
    a, b = f"v{T}", f"v{T+1}"
    F += [f"v_add_f32 {a}, {a}, v{T+2}", f"v_add_f32 {b}, {b}, v{T+3}", f"v_add_f32 v{T+4}, v{T+4}, v{T+6}", f"v_add_f32 v{T+5}, v{T+5}, v{T+7}",
          f"v_add_f32 {a}, {a}, v{T+4}", f"v_add_f32 {b}, {b}, v{T+5}", f"v_mul_f32 {a}, 0xbb000000, {a}", f"v_mul_f32 {b}, 0x3b000000, {b}",
          f"v_fma_f32 {b}, -{a}, {a}, {b}", f"v_max_f32 {b}, 0, {b}", f"v_cvt_pk_bf16_f32 {b}, {b}, {b}", f"v_lshlrev_b32 {b}, 16, {b}",
          f"v_add_f32 {b}, 0x3727c5ac, {b}", f"v_cvt_pk_bf16_f32 {b}, {b}, {b}", f"v_lshlrev_b32 {b}, 16, {b}", f"v_sqrt_f32 {b}, {b}",
          f"v_cvt_pk_bf16_f32 {b}, {b}, {a}", f"v_lshlrev_b32 {vRS}, 16, {b}", f"v_rcp_f32 {vRS}, {vRS}",
          f"v_cndmask_b32 v{CF+2}, 0, {b}, s[94:95]", f"v_lshrrev_b32 v{CF+3}, 16, v{CF+2}",
          f"v_mul_f32 {vRSL}, 0x3fb8aa3b, {vRS}", f"v_mul_f32 {vM2}, -2.0, {vRS}", f"ds_write_b32 {vT}, {vRS}"]
    return F
def correct(u, ch, T, bias=None):
    F = [f"v_lshlrev_b32 v{T}, 2, {vP4}", f"v_add_u32 v{T}, {SCR_CS + u['csi']*2048 + ch*1024}, v{T}", f"ds_read_b128 {R(T,4)}, v{T}",
         f"v_add_f32 v{T}, v{T}, v{T+1}", f"v_add_f32 v{T+2}, v{T+2}, v{T+3}", f"v_add_f32 v{T}, v{T}, v{T+2}",
         f"v_cvt_pk_bf16_f32 v{T+1}, v{T}, v{T}", f"v_and_b32 v{CF}, 0xffff0000, v{T+1}", f"v_sub_f32 v{T}, v{T}, v{CF}", f"v_cvt_pk_bf16_f32 v{CF+1}, v{T}, v{T}"]
    if bias is not None: F.append(f"v_or_b32 v{CF}, v{CF}, v{bias}")
    a, b = (R(CF, 4), R(CF + 2, 4)) if u['trans'] else (R(CF + 2, 4), R(CF, 4))
    F.append(f"{MF} {R(u['acc'],16)}, {a}, {b}, {R(u['acc'],16)}")
    return F

def mark(name): return lambda s: s.marks.__setitem__(name, 1)
YA, SA, AB, XT = 224, 32, 240, 48
vB0, vA0 = "v5", "v24"
NRI = 3
def bnm(ch, c): return f"B{'ab'[ch]}{c}"
def breg(t): return XA + 4 * (t % 24)
def bread(ring, t):
    def f(s):
        nm = CB_(t // 8)
        assert ring.log[nm][1] is not None and nm not in s.released, nm
        sl = ring.slot[nm]
        if ring.bsl != sl:
            s.e(f"v_add_u32 {vB0}, {((sl - ring.bsl) * SLOT) & 0xffffffff:#x}, {vB0}"); ring.bsl = sl
        for k in range(2): s.e(f"ds_read_b64_tr_b16 {R(breg(t) + 2*k, 2)}, {vB0} offset:{(t%8)*2048 + k*1024}", tag=nm)
    return f
def aread(ring, t):
    def f(s):
        nm = CA_(t // 8)
        assert ring.log[nm][1] is not None and nm not in s.released, nm
        sl = ring.slot[nm]
        if ring.asl != sl:
            s.e(f"v_add_u32 {vA0}, {((sl - ring.asl) * SLOT) & 0xffffffff:#x}, {vA0}"); ring.asl = sl
        s.e(f"ds_read_b128 {R(AB + 4 * (t % 4), 4)}, {vA0} offset:{(t%8)*2048}", tag=nm)
    return f
def pulln(ring, ch, n): return [bread(ring, 8 * n + k) for k in range(8)] if ch == 0 else []
def p2_setup(ring):
    def chk(s):
        assert not any(x[0][0] == 'F' for x in ring.items) and not any(x[0][0][0] == 'F' for x in ring.q)
        ring.bsl = 0; ring.asl = 0
    if ring.ch == 1:
        return [chk, f"v_bfe_u32 {vB0}, v0, 2, 3", f"v_mul_u32_u24 {vB0}, 640, {vB0}", f"v_and_b32 {vA0}, 3, v0", f"v_lshl_add_u32 {vB0}, {vA0}, 2, {vB0}"]
    return [chk, f"v_bfe_u32 {vB0}, v0, 2, 2", f"v_lshrrev_b32 {vA0}, 5, v0", f"v_lshl_add_u32 {vB0}, {vA0}, 2, {vB0}", f"v_lshlrev_b32 {vB0}, 7, {vB0}",
     f"v_bfe_u32 {vA0}, v0, 3, 1", f"v_lshl_add_u32 {vB0}, {vA0}, 6, {vB0}", f"v_bfe_u32 {vA0}, v0, 4, 1", f"v_lshl_add_u32 {vB0}, {vA0}, 5, {vB0}",
     f"v_and_b32 {vA0}, 3, v0", f"v_lshl_add_u32 {vB0}, {vA0}, 3, {vB0}",
     blk(f"s_lshl_b32 s3, {sKQ}, 6\nv_xor_b32 {vB0}, s3, {vB0}\ns_lshl_b32 s3, {sRT2}, 10\nv_add_u32 {vA0}, s3, {vA16}")]
def fin_setup(): return []
PH = {0: (0, 0xffffffff, 'f1'), 4: (128, 0xffffffff, 'f2'), 8: (384, 0x55555555, 'f3'), 10: (256, 0xffffffff, 'f3'), 14: (512, 0xffffffff, 'fo')}
XCHK = {}
def endk(s, ring):
    if PROFILE:
        s.raw("s_waitcnt vmcnt(0) lgkmcnt(0)")
        stamp("end")(s)
        s.raw("s_waitcnt lgkmcnt(0)")
        n = len(s.snames)
        for i in (n - 2, n - 1): s.raw(f"v_writelane_b32 v29, s{STAMP0+2*(i%4)}, {i}")
        s.e(f"v_subrev_u32 v29, s96, v29\nv_lshlrev_b32 v16, 2, v0")
        s.raw("s_memrealtime s[84:85]\ns_waitcnt lgkmcnt(0)\nv_writelane_b32 v29, s58, 62\nv_writelane_b32 v29, s84, 63")
        s.e(f"s_lshl_b32 s3, {sBID}, 11\ns_lshl_b32 s4, {sW}, 8\ns_add_u32 s3, s3, s4\ns_add_u32 s3, s3, {PROF_OFF}")
        s.e(f"buffer_store_dword v29, v16, {sWs}, s3 offen")
        if CFG.get('DBG') is not None:
            lab = label()
            s.e(f"s_cmp_lg_u32 {sBID}, {CFG['DBG']}\ns_cbranch_scc1 {lab}\ns_cmp_lg_u32 {sW}, 0\ns_cbranch_scc1 {lab}")
            idx = list(range(n - 1, -1, -3))[:16][::-1]
            for k, i in enumerate(idx):
                s.raw(f"v_readlane_b32 s4, v29, {i}\ns_nop 1\nv_mov_b32 v17, s4\nbuffer_store_dword v17, {vFO}, {sDbg}, 0 offen offset:{4*k}\ns_nop 1")
            s.e(f"{lab}:")
            if s.name in ('A0', 'B0'): print("DBG", s.name, [s.snames[i] for i in idx])
        open(f"snames_{s.name}.txt", "w").write(" ".join(s.snames))
    s.e("s_endpgm")
    s.slots = dict(ring.slot)
    print("   ring", s.name, " ".join(f"{k}:{v[0]}>{v[1]}" for k, v in ring.log.items()))

def gate0(ring):
    def g(s):
        assert 'f1' in s.marks
        poll_check(s, sWs, sFL2, 0xffffffff, vo=vB0); s.marks[('chk', 0)] = 1
    if ring.ch == 1 and CFG['EAR']: ring.gate[CA_(0)] = g
def earlyA(ring, f):
    def h(s):
        if CFG['EAR']: ring.lim = CA_(CFG['EAR'] - 1); ring.strict = True
        f(s)
    return h
def aphase(s, ring, ch, F, rel0):
    typ = s.name[0]
    def cbar(n):
        needs = [CA_(n)] + ([CB_(n + 2)] if NRI <= n + 2 < 18 else []) + (['BX'] if n == CFG['XAT'] + 1 else [])
        rel = (rel0 if n == 0 else [CA_(n - 1)] + ([CB_(n + 1)] if NRI <= n + 1 < 18 else []))
        if not ring.items: rel = []
        x9 = (n == CFG['S9' + typ])
        if x9: assert 'scrfree' in s.marks, s.name
        bar(s, ring, f"a{n}", needs, rel, owner=1, extra=([9] if x9 else []))
    if ch == 1:
        s.e(f"s_lshl_b32 s91, {sRB}, 16\ns_lshl_b32 s4, {sRT}, 14\ns_add_u32 s91, s91, s4\ns_lshl_b32 s4, {sCB}, 7\ns_add_u32 s91, s91, s4")
        polled = {0}
        if CFG['LPR']: s.e('s_setprio 1')
        PRG = lambda n0: vPoll if n0 == 0 else f"v{200 + n0}"
        for n0, (imm, mask, mk) in PH.items():
            def g(s, n0=n0, imm=imm, mask=mask, mk=mk):
                k = until(s, ring, F, mk, nopace=True)
                if k: print("   forced", k, "fillers for", mk, "in", s.name)
                if n0 not in polled: poll_issue(s, sWs, sFL2, PRG(n0), imm=imm, vo=vB0); polled.add(n0); print("   late poll", n0, s.name)
                XCHK[(typ, mk, n0)] = s.nbar
                poll_check(s, sWs, sFL2, mask, PRG(n0), imm=imm, vo=vB0); s.marks[('chk', n0)] = 1
            if ('chk', n0) not in s.marks: ring.gate[CA_(n0)] = g
        LV = CFG['LV' + typ]; bl_ = [len(ring.q)]
        for n in range(18):
            def polls(pos):
                for n0 in PH:
                    if n0 not in polled and pos >= CFG['PI' + typ][n0]:
                        poll_issue(s, sWs, sFL2, PRG(n0), imm=PH[n0][0], vo=vB0); polled.add(n0)
            polls(n)
            bud = LV[min(n, len(LV) - 1)]
            PC = CFG['PC' + typ]; cap = PC[min(n, len(PC) - 1)]
            gi = {CA_(k): v for k, v in CFG['GI' + typ].items()}
            def can(): return ring.q and cap > 0 and not (ring.q[0][0][0] in ring.gate and n < gi.get(ring.q[0][0][0], 0))
            while can() or (bud > 0 and F):
                if can(): ring.pump(s, 1); cap -= 1
                if F and bud > 0:
                    l = len(F); fill(s, F, CFG['LG'], force=True); bud -= CFG['LG']
                    if len(F) == l: bud = 0
            if F and isinstance(F[0], tuple) and F[0][0] == 'hold': F[0] = ('tilt', n + F[0][1])
            if F and isinstance(F[0], tuple) and F[0][0] == 'tilt' and n >= F[0][1]:
                F.pop(0); fill(s, F, 5, force=True)
            polls(n + 0.5)
            bl_.append(len(ring.q))
            cbar(n)
        print('   backlog', s.name, bl_)
        assert not F and not ring.q and not ring.items
        endk(s, ring); return
    s.e(f"s_lshl_b32 {sUC}, {sRB}, 16\ns_lshl_b32 s4, {sRT2}, 15\ns_add_u32 {sUC}, {sUC}, s4\ns_lshl_b32 s4, {sCB}, 7\ns_add_u32 {sUC}, {sUC}, s4\ns_lshl_b32 s4, {sKQ}, 6\ns_add_u32 {sUC}, {sUC}, s4")
    ring.pump(s, 99)
    fill(s, F, CFG['CV0' + typ], force=True)
    PF = 4
    def reads(t):
        if t % 8 == 0: cbar(t // 8)
        aread(ring, t)(s)
        if 8 * NRI <= t + 16 < 144: bread(ring, t + 16)(s)
    for t in range(PF): reads(t)
    credit = 0
    for t in range(144):
        acc = YA if t < 112 else SA
        s.e(f"{MF} {R(acc,16)}, {R(breg(t),4)}, {R(AB + 4 * (t % 4),4)}, {'0' if t in (0, 112) else R(acc,16)}")
        if t + PF < 144: reads(t + PF)
        if t == 60:
            assert not F, len(F)
            F += [f"v_lshlrev_b32 v20, 8, {vP4}", "v_lshrrev_b32 v21, 5, v0", "v_lshl_add_u32 v20, v21, 4, v20",
                  f"v_lshlrev_b32 v19, 5, {vP4}", "v_lshl_add_u32 v19, v21, 4, v19", "v_bfe_u32 v21, v0, 1, 1", f"v_xor_b32 v21, {sKQ}, v21", "v_lshl_add_u32 v19, v21, 6, v19"]
        if t == 8 * (CFG['XAT'] + 1) - 2:
            G = [blk(f"s_lshl_b32 s4, {sRT2}, 12\ns_add_u32 s4, s4, {ring.slot['BX']*SLOT + 8192}\nv_add_u32 v19, s4, v19"),
                 f"ds_read_b128 {R(XT,4)}, v19", f"ds_read_b128 {R(XT+4,4)}, v19 offset:32"]
            drain(s, G)
            for b_ in range(2): F += [f"v_permlane32_swap_b32 v{XT+4*b_}, v{XT+4*b_+2}", f"v_permlane32_swap_b32 v{XT+4*b_+1}, v{XT+4*b_+3}"]
            for j in range(8): F += [f"v_lshlrev_b32 v{XT+16+2*j}, 16, v{XT+j}", f"v_and_b32 v{XT+17+2*j}, 0xffff0000, v{XT+j}"]
        if t == 113:
            stamp('yend')(s)
            T = XT + 32
            F += [f"v_mul_f32 v{T+j}, 0xbfb8aa3b, v{YA+j}" for j in range(16)] + [f"v_exp_f32 v{T+j}, v{T+j}" for j in range(16)]
            F += [f"v_add_f32 v{T+j}, 1.0, v{T+j}" for j in range(16)] + [f"v_rcp_f32 v{T+j}, v{T+j}" for j in range(16)] + [f"v_mul_f32 v{YA+j}, v{YA+j}, v{T+j}" for j in range(16)]
        if F and isinstance(F[0], tuple) and F[0][0] == 'hold': F[0] = ('tilt', t + CFG['HS'])
        if F and isinstance(F[0], tuple) and F[0][0] == 'tilt' and t >= F[0][1]: F.pop(0)
        if F and t < 143: credit = fill(s, F, (CFG['CV' + typ] if t < 60 else CFG['CVE']) + min(credit, CFG['CRED']))
        for mk in ('f3', 'fo'):
            if mk in s.marks and (typ, mk) not in XCHK: XCHK[(typ, mk)] = s.nbar
    drain(s, F)
    stamp('send')(s)
    for b_ in range(2):
        for j in range(8): s.e(f"v_fma_f32 v{SA+8*b_+j}, v{SA+8*b_+j}, v{YA+8*b_+j}, v{XT+16+8*b_+j}")
        for j in range(4): s.e(f"v_cvt_pk_bf16_f32 v{XT+4*b_+j}, v{SA+8*b_+2*j}, v{SA+8*b_+2*j+1}")
        s.e(f"v_permlane32_swap_b32 v{XT+4*b_}, v{XT+4*b_+2}\nv_permlane32_swap_b32 v{XT+4*b_+1}, v{XT+4*b_+3}")
        s.e(f"buffer_store_dwordx4 {R(XT+4*b_,4)}, v20, {sOut}, {sUC} offen offset:{32*b_}")
    stamp('st')(s)
    endk(s, ring)

SCR_DUM = SCR + 15360
def touchB(s):
    if not CFG['TB']: return
    s.e(f"s_lshl_b32 s4, {sBID}, 3\ns_add_u32 s4, s4, {sW}\ns_mul_i32 s5, s4, 896\ns_lshl_b32 s4, s4, 8\ns_mov_b32 m0, {SCR_DUM}")
    s.e(f"v_min_u32 {vT}, 6, v0\nv_lshlrev_b32 {vT}, 7, {vT}")
    s.e(f"buffer_load_dword {vT}, {sW2}, s5 offen lds")
    s.e(f"v_min_u32 {vT}, 1, v0\nv_lshlrev_b32 {vT}, 7, {vT}")
    s.e(f"buffer_load_dword {vT}, {sWo}, s4 offen lds")
def touchW(s):
    if not CFG['TW']: return
    if CFG['TW'] == 2:
        s.e(f"s_lshl_b32 s4, {sBID}, 1\ns_add_u32 s4, s4, {sCH}\ns_mul_i32 s5, s4, 3584\ns_mul_i32 s3, {sRT}, 896\ns_add_u32 s5, s5, s3\ns_mul_i32 s4, s4, 3072\ns_lshl_b32 s3, {sRT}, 8\ns_add_u32 s4, s4, s3\ns_mov_b32 m0, {SCR_DUM}")
        s.e(f"v_min_u32 {vT}, 2, v0\nv_mul_u32_u24 {vT}, 384, {vT}")
        s.e(f"buffer_load_dword {vT}, {sW1}, s5 offen lds")
        s.e(f"v_min_u32 {vT}, 1, v0\nv_lshlrev_b32 {vT}, 7, {vT}")
        s.e(f"buffer_load_dword {vT}, {sWq}, s4 offen lds")
        return
    s.e(f"s_lshl_b32 s4, {sBID}, 3\ns_add_u32 s4, s4, {sW}\ns_mul_i32 s5, s4, 896\ns_mul_i32 s4, s4, 768\ns_mov_b32 m0, {SCR_DUM}")
    s.e(f"v_min_u32 {vT}, 6, v0\nv_lshlrev_b32 {vT}, 7, {vT}")
    s.e(f"buffer_load_dword {vT}, {sW1}, s5 offen lds")
    s.e(f"v_min_u32 {vT}, 5, v0\nv_lshlrev_b32 {vT}, 7, {vT}")
    s.e(f"buffer_load_dword {vT}, {sWq}, s4 offen lds")
def touch2(c, hf=None):
    def f(s):
        if c == 0 and not hf:
            if hf is None: s.e(f"s_lshl_b32 s4, s87, 3")
            else: s.e(f"s_lshr_b32 s4, s87, 4\ns_lshl_b32 s4, s4, 3\ns_and_b32 s5, s87, 7\ns_add_u32 s4, s4, s5\ns_lshl_b32 s4, s4, 3")
            s.e(f"s_add_u32 s4, s4, {sW}\ns_lshr_b32 s5, s4, 6\ns_and_b32 s4, s4, 63\ns_lshl_b32 s4, s4, 10\n"
                f"s_mul_i32 s90, s5, {448*1024}\ns_add_u32 s90, s90, s4\ns_lshl_b32 s91, s5, 17\ns_add_u32 s91, s91, s4")
        s.e(f"s_mov_b32 m0, {SCR_DUM}")
        h = hf or 0
        if c < 7: s.e(f"s_add_u32 {sSoW}, s90, {ORDER[4*c]*16384 + h*896*1024}\nbuffer_load_dwordx4 {vA16}, {sW2}, {sSoW} offen lds")
        else: s.e(f"s_add_u32 {sSoW}, s91, {(c-7)*65536 + h*256*1024}\nbuffer_load_dwordx4 {vA16}, {sWo}, {sSoW} offen lds")
    return f
def touch3(c, ch):
    def f(s):
        wv = CFG['T3W'][c]
        if wv // 4 != ch: return
        lab = label()
        s.e(f"s_cmp_lg_u32 {sW}, {wv}\ns_cbranch_scc1 {lab}")
        mul = 448 * 1024 if c < 7 else 128 * 1024
        off = ORDER[4 * c] * 16384 if c < 7 else (c - 7) * 65536
        s.e(f"s_lshr_b32 s90, s87, 3\ns_mul_i32 s90, s90, {mul}\ns_and_b32 s91, s87, 7\ns_lshl_b32 s91, s91, 13\ns_add_u32 s90, s90, s91\ns_add_u32 s90, s90, {off}\ns_mov_b32 m0, {SCR_DUM}")
        s.e(f"v_lshlrev_b32 v{CSA+3}, 7, v0")
        s.raw(f"buffer_load_dword v{CSA+3}, {sW2 if c < 7 else sWo}, s90 offen lds")
        s.e(f"{lab}:")
    return f
def touch4(k, ch):
    def f(s):
        if ch: return
        lab = label()
        n = (28, 28, 16)[k]
        s.e(f"s_cmp_lg_u32 {sW}, {k}\ns_cbranch_scc1 {lab}")
        s.e(f"s_mul_i32 s90, s87, {(56, 56, 16)[k]*1024}\ns_add_u32 s90, s90, {CFG['SC']*128 + (28*1024 if k == 1 else 0)}\ns_mov_b32 m0, {SCR_DUM}")
        s.e(f"v_min_u32 v{CSA+3}, {n-1}, v0\nv_lshlrev_b32 v{CSA+3}, 10, v{CSA+3}")
        s.raw(f"buffer_load_dword v{CSA+3}, {sW2 if k < 2 else sWo}, s90 offen lds")
        s.e(f"{lab}:")
    return f
def add_touch(segs, typ):
    if CFG['T2'] == 4:
        for k, at in enumerate(CFG['T4AT']): segs[at // 32].posts.setdefault(at % 32, []).append(touch4(k, segs[0].ch))
    if CFG['T2'] == 3:
        for c, at in enumerate(CFG['T2AT']): segs[at // 32].posts.setdefault(at % 32, []).append(touch3(c, segs[0].ch))
    for c, at in enumerate(CFG['T2AT']):
        if CFG['T2'] == 1: segs[at // 32].posts.setdefault(at % 32, []).append(touch2(c))
        if CFG['T2'] == 2 and typ == 'A':
            segs[at // 32].posts.setdefault(at % 32, []).append(touch2(c, 0))
            segs[(at + 2) // 32].posts.setdefault((at + 2) % 32, []).append(touch2(c, 1))

def touchA(t0, n, mask, T, T2, vp=vPoll):
    def f(s):
        if not CFG['TA']: return
        lab = label()
        s.e(f"v_min_u32 {T}, {n-1}, v0")
        if t0 < 28 and n > 4:
            d = ORDER[t0 + 4] - ORDER[t0] - 4
            s.e(f"v_lshrrev_b32 {T2}, 2, {T}\nv_mul_u32_u24 {T2}, {d}, {T2}\nv_add_u32 {T}, {T}, {T2}")
        off = ORDER[t0] * 1024 if t0 < 28 else 0
        s.e(f"v_lshlrev_b32 {T}, 10, {T}\ns_lshl_b32 {sSoW}, {sCB}, 7\ns_add_u32 {sSoW}, {sSoW}, {sA2y if t0 < 28 else sA2s}\ns_add_u32 {sSoW}, {sSoW}, {off}\ns_mov_b32 m0, {SCR_DUM}")
        s.e(f"v_cmp_ne_u32 vcc, 0, {vp}\ns_andn2_b32 {sT0}, {mask:#x}, vcc_lo\ns_cbranch_scc1 {lab}")
        s.raw(f"buffer_load_dword {T}, {sWs}, {sSoW} offen sc1 lds")
        s.e(f"{lab}:")
    return f

def ilv(st, co):
    out = st[:3] + co[:3] + [st[3]]
    a, b = st[4:], co[3:-1]
    while a or b:
        if a: out.append(a.pop(0))
        if a and len(a) > 2 * len(b): out.append(a.pop(0))
        if b: out.append(b.pop(0))
    return out + co[-1:]
def p0_items(a, b):
    it = []
    for c in range(4): it += x_items(c) + [a[c]]
    return it + b
def packin(acc): return [f"v_cvt_pk_bf16_f32 v{acc+j}, v{acc+2*j}, v{acc+2*j+1}" for j in range(8)]
def N(n, lo, hi): return [f"{n}{c}" for c in range(lo, hi)]
def initchk(s):
    poll_check(s, sDbg, "0", 0xffffffff, imm=128); s.marks["init"] = 1
initpoll = lambda s: poll_issue(s, sDbg, "0", imm=128)
def pollA(s):
    if s.name[1] == '1': poll_issue(s, sWs, sFL2, vo=vB0)

def stream_A(s0, ch):
    CB, DB = CFG['CB'], CFG['DB']
    s = s0.fork(f"A{ch}"); s.e(f"L_typeA{ch}:")
    bl = BIASL['A']
    items = p0_items(w_items("K", sWq, vDq, sUA, 3072), w_items("V", sWq, vDq, sUB, 3072)) + w_items("H", sW1, vD1, sUC, 3584) + b_items(0)
    ring = Ring(items, range(9), ch); ring.hold = ('XL3', 'XH3'); ring.upto0 = "V3"
    start(s, ring, 'K')
    s.e(f"s_lshl_b32 {sSCRW}, {sW}, 12\ns_add_u32 {sSCRW}, {sSCRW}, {2*SLOT}")
    s.marks.update(f1=1, f2=1, fo=1)
    uK = dict(name="K", acc=ACC_A, trans=True, kind='w', csi=0)
    uV = dict(name="V", acc=ACC_B, trans=False, kind='w', csi=1)
    uH = dict(name="H", acc=ACC_C, trans=True, kind='w', csi=0)
    F = [('wait', 'c1')] + ilv(stats_fin(PT), correct(uK, ch, PT + 8))
    F += ["v_lshrrev_b32 v26, 5, v0", "v_lshlrev_b32 v26, 1, v26", "v_bfe_u32 v25, v0, 1, 2", "v_xor_b32 v26, v25, v26", f"v_lshlrev_b32 v25, 4, {vP4}", "v_lshl_add_u32 v25, v26, 4, v25",
          f"v_add_u32 v25, {sSCRW}, v25", "v_xor_b32 v24, 16, v25"]
    F += packin(ACC_A)
    F += [f"{MF} {R(PT,16)}, {R(PHI,4)}, {R(ACC_A,4)}, 0", f"{MF} {R(ACC_C,16)}, {R(PHI+4,4)}, {R(ACC_A+4,4)}, 0", ('gap', 12)]
    for h, P in enumerate((PT, ACC_C)):
        if h == 1 and CFG['PKA']:
            sm = softmax_pk(P, ACC_A + 8, "v26", vT, PHI); F += sm[:9] + [('wait', 'c2')] + sm[9:]
        else: F += softmax(P, ACC_A + 8, "v26", vT)
        F += [f"ds_write_b128 v25, {R(ACC_A+8,4)} offset:{2048*h}", f"ds_write_b128 v24, {R(ACC_A+12,4)} offset:{2048*h}"]
    F += [('wait', 'c2')]
    F += ["v_lshrrev_b32 v26, 5, v0", "v_lshlrev_b32 v26, 4, v26", blk(f"s_lshl_b32 s4, {sRT}, 7\ns_add_u32 s4, s4, {SCR_RS}\nv_add_u32 {vT}, s4, v26")]
    for q in range(4): F.append(f"ds_read_b128 {R(PT+4*q,4)}, {vT} offset:{32*q}")
    F += ["v_bfe_u32 v25, v0, 2, 2", "v_lshlrev_b32 v25, 6, v25", "v_lshl_add_u32 v25, v26, 4, v25", f"v_bfe_u32 {vT}, v0, 4, 1", f"v_cmp_eq_u32 s[94:95], 1, {vT}",
          "v_lshrrev_b32 v24, 5, v0", f"v_xor_b32 {vT}, v24, {vT}", f"v_lshl_add_u32 v25, {vT}, 5, v25",
          "v_lshrrev_b32 v24, 2, v0", "v_xor_b32 v24, v24, v0", "v_bfe_u32 v24, v24, 1, 1", "v_lshl_add_u32 v25, v24, 4, v25",
          f"v_and_b32 {vT}, 1, v0", f"v_lshl_add_u32 v25, {vT}, 3, v25", f"v_add_u32 v25, {sSCRW}, v25", f"v_mov_b32 {vT}, {sC11}"]
    for t in range(2):
        for rd in range(2): F.append(f"ds_read_b64_tr_b16 {R(PHI+4*t+2*rd,2)}, v25 offset:{2048 + t*1024 + rd*512}")
    F += [pk2("mul", ACC_B + r, ACC_B + r, PT + r) for r in range(0, 16, 2)] if CFG['PKA'] else [f"v_mul_f32 v{ACC_B+r}, v{ACC_B+r}, v{PT+r}" for r in range(16)]
    F += packin(ACC_B)
    for t in range(2):
        for rd in range(2): F.append(f"ds_read_b64_tr_b16 {R(ACC_B+8+4*t+2*rd,2)}, v25 offset:{t*1024 + rd*512}")
    for j in range(8): F.append(f"v_cndmask_b32 v{ACC_A+8+j}, {vT}, v{ACC_B+j}, s[94:95]")
    for j in range(8): F.append(f"v_cndmask_b32 v{ACC_A+j}, v{ACC_B+j}, {vT}, s[94:95]")
    F += [f"{MF} {R(PT,16)}, {R(ACC_A,4)}, {R(ACC_B+8,4)}, 0", f"{MF} {R(PT,16)}, {R(ACC_A+4,4)}, {R(ACC_B+12,4)}, {R(PT,16)}",
          f"{MF} {R(ACC_B,16)}, {R(ACC_A+8,4)}, {R(PHI,4)}, 0", f"{MF} {R(ACC_B,16)}, {R(ACC_A+12,4)}, {R(PHI+4,4)}, {R(ACC_B,16)}"]
    F += [f"v_add_u32 v25, {sSCRW}, {vA16}", blk(f"s_lshl_b32 s4, {sW}, 9\ns_add_u32 s4, s4, {SCR_Z}\nv_lshlrev_b32 v26, 2, v0\nv_add_u32 v26, s4, v26")]
    F += [f"ds_write_b128 v25, {R(PT,4)}", f"ds_write_b128 v25, {R(PT+4,4)} offset:1024", f"ds_write_b32 v26, v{PT+8}",
          f"ds_write_b128 v25, {R(ACC_B+8,4)} offset:2048", f"ds_write_b128 v25, {R(ACC_B+12,4)} offset:3072", f"ds_write_b32 v26, v{ACC_B} offset:256"]
    F += [blk(f"s_lshl_b32 s4, {sRT}, 10\ns_add_u32 s4, s4, {2*SLOT + ch*SLOT}\nv_add_u32 v25, s4, {vA16}"),
          blk(f"s_lshr_b32 s4, {sRT}, 1\ns_lshl_b32 s4, s4, 8\ns_add_u32 s4, s4, {SCR_Z + ch*2048}\nv_add_u32 v26, s4, {vP4}"), mark('kvw')]
    ER = [f"ds_read_b128 {R(PT+4*r,4)}, v25 offset:{r*4096}" for r in range(4)] + [f"ds_read_b32 v{ACC_A+r}, v26 offset:{r*512}" for r in range(4)]
    ER += ["v_lshrrev_b32 v25, 5, v0", f"v_lshl_add_u32 v25, v25, 9, {vP4}", blk(f"s_lshl_b32 s5, {sRT2}, 10\nv_add_u32 v25, s5, v25"),
           f"v_lshrrev_b32 {vT}, 4, v0", f"v_cmp_eq_u32 s[94:95], {sRT2}, {vT}", f"v_mov_b32 {vT}, {BIG}",
           blk(f"s_and_b32 s5, {sG}, 1\ns_mul_i32 s5, s5, {10*1024}\ns_add_u32 s5, s5, {ch*2048}\ns_add_u32 {sUD}, {sKS}, s5\ns_lshl_b32 s4, {sI}, 7\ns_add_u32 {sKVF}, {sKVF}, s4"),
           f"v_cndmask_b32 v26, {vT}, {vP4}, s[94:95]"]
    for j in range(4): ER += [f"v_add_f32 v{PT+j}, v{PT+j}, v{PT+4+j}", f"v_add_f32 v{PT+8+j}, v{PT+8+j}, v{PT+12+j}"]
    for j in range(4): ER.append(f"v_add_f32 v{PT+j}, v{PT+j}, v{PT+8+j}")
    ER += [f"v_add_f32 v{ACC_A}, v{ACC_A}, v{ACC_A+1}", f"v_add_f32 v{ACC_A+2}, v{ACC_A+2}, v{ACC_A+3}", f"v_add_f32 v{ACC_A}, v{ACC_A}, v{ACC_A+2}"]
    for j in range(4): ER.append((f"buffer_atomic_add_f32 v{PT+j}, v25, {sWs}, {sKVs} offen offset:{j*128}", "kv"))
    ER += [(f"buffer_atomic_add_f32 v{ACC_A}, v26, {sWs}, {sKVs} offen offset:2048", "kv"), stamp('kvat')]
    EH = correct(uH, ch, PHI, BI0) + fin_setup() + (mish_pk if (CFG['PKH'] == 1 or (CFG['PKH'] == 2 and ch == 1)) else mish)(ACC_C, PT + 8, sUD, "actA")
    fkv = flag_store("kv", sKVF, 0, 'fkv'); f3 = flag_store("actA", sFL, 2 * 128, 'f3')
    pr = lambda c: [bnm(0, c), bnm(1, c)]
    m0 = pass0(s, ring, uK, ch, bl, "V3", ["V0"])
    mV = MSeg(ring, uV, ch, {CB: [B(ring, "c1", ["V1", "V2"], ["K3"] + ring.c1rel)], DB: [B(ring, "d1", ["V3", "H0"], N("V", 0, 2))]}, dma=CFG['ST'])
    def h1(s):
        until(s, ring, FH, 'erd')
        bar(s, ring, "h1", [], ["H0", CB_(0)], extra=[2, 3])
    P0_, P1_, P2_ = pulln(ring, ch, 0), pulln(ring, ch, 1), pulln(ring, ch, 2)
    mH = MSeg(ring, uH, ch, {15: [h1], DB + 2: [earlyA(ring, B(ring, "h2", ["H3", CB_(2)], ["H1", CB_(1)], owner=(1 if CFG['EAR'] else 'all')))]},
              {6: [lambda s: drain(s, p2_setup(ring))], 7: P0_[:4], 8: P0_[4:], 15: P1_[:4], 16: P1_[4:], 23: P2_[:4], 24: P2_[4:], (CFG['EPA'] if CFG['EAR'] else 27): [pollA], CFG['KVW']: [fkv]}, dma=CFG['ST'])
    ring.lim = CB_(CFG['NPB'] - 1); gate0(ring)
    m0.posts.setdefault(29, []).append(lambda s: drain(s, phi_frags()))
    add_touch([m0, mV, mH], 'A')
    mV.posts.setdefault(30, []).append(initpoll)
    m0.run(s, mV); mV.run(s, None, F, CFG['KB'] + CFG['KD'] * (1 - 2 * ch))
    bar(s, ring, "c2", [], N("V", 2, 4), lg0=True)
    print("   A V-only block:", len(F))
    VB_ = correct(uV, ch, WB) + F + [initchk, mH.pre]
    if CFG.get('VST'):
        for k in range(len(VB_) // 12 * 12, 0, -12): VB_.insert(k, stamp(f"v{k}"))
    vseg(s, ring, VB_, flush=False)
    bar(s, ring, "d2", ["H1", "H2"] + pr(0))
    FH = list(ER) + [mark('erd')]
    mH.run(s, None, FH, CFG['VB'])
    assert not FH
    ring.lim = None; ring.strict = True
    bar(s, ring, "e1", [], N("H", 2, 4) + [CB_(2)], lg0=True, owner=1)
    F = EH + [mark('scrfree'), ('hold', CFG['F3G']), f3]
    aphase(s, ring, ch, F, [])
    return s

def stream_B(s0, ch):
    CB, DB = CFG['CB'], CFG['DB']
    s = s0.fork(f"B{ch}"); s.e(f"L_typeB{ch}:")
    bl = BIASL['B']
    H5 = [(f"F{c}", sW1, vD5, sUD, 0, 16 * 3584, 0, 128 * 3584, lambda hf, c=c: 2 * c + hf) for c in range(2)]
    items = p0_items(w_items("U", sW1, vD1, sUA, 3584), w_items("Y", sW1, vD1, sUB, 3584))
    Qi = w_items("Q", sWq, vDq, sUC, 3072); bi = b_items(1)
    items += H5 + [Qi[0]] + bi[:2] + [Qi[1], Qi[2]] + bi[2:4] + [Qi[3]] + bi[4:] if CFG['EB'] else H5 + Qi + bi
    ring = Ring(items, range(9), ch); ring.upto0 = "Y3"; ring.strict = bool(CFG['EB'])
    start(s, ring, 'U')
    s.e(f"s_and_b32 s5, {sG}, 1\ns_cmp_eq_u32 s5, 0\ns_cselect_b32 s5, 4, 2\ns_cselect_b32 s4, {12*1024}, 0\ns_lshl_b32 s5, s5, 10\n"
        f"s_add_u32 {sSCRW}, {sKS}, s4\ns_add_u32 s5, s5, {ch*2048}\ns_add_u32 {sKS}, {sKS}, s5")
    uU = dict(name="U", acc=ACC_A, trans=True, kind='w', csi=0)
    uY = dict(name="Y", acc=ACC_B, trans=True, kind='w', csi=1)
    uF = dict(name="F", acc=ACC_C, trans=True, kind='h5', csi=0)
    uQ = dict(name="Q", acc=ACC_A, trans=True, kind='w', csi=1)
    EU = ilv(stats_fin(PT), correct(uU, ch, PT + 8, BI0)) + [('gap', 14)] + mish(ACC_A, PT, sKS, "act1") + [f"s_add_u32 {sKS}, {sKS}, 4096"]
    EY = correct(uY, ch, PT + 8, BI1) + [mark('b1dead'), ('gap', 16)] + mish(ACC_B, PT, sKS, "act2")
    EF = correct(uF, ch, PT + 8, BI2) + [('gap', 16)] + mish(ACC_C, PT, sSCRW, "act5")
    EQ = correct(uQ, ch, PT + 12) + phi_frags() + pack16(ACC_A, PK)
    EQ += [f"{MF} {R(PT,16)}, {R(PHI,4)}, {R(PK,4)}, 0", f"{MF} {R(ACC_B,16)}, {R(PHI+4,4)}, {R(PK+4,4)}, 0"] + fin_setup()
    if CFG['PK'] or (CFG['PKL'] and ch == 1): EQ += softmax_pk(PT, ACC_A, "v26", vT, PHI) + softmax_pk(ACC_B, ACC_A + 8, "v26", vT, PHI)
    else: EQ += softmax(PT, ACC_A, "v26", vT) + softmax(ACC_B, ACC_A + 8, "v26", vT)
    f1 = flag_store("act1", sFL, 0, 'f1'); f2 = flag_store("act2", sFL, 128, 'f2'); f3 = flag_store("act5", sFL, 3 * 128, 'f3')
    pr = lambda c: [bnm(0, c), bnm(1, c)]
    FG = ('gap', CFG['FG'])
    F = [('wait', 'c1')] + EU + [mark('m1'), ('wait', 'c2')] + split(EY, 0.6, lambda s: (initchk(s), f1(s))) + [mark('m2')]
    if ch == 0: F += [('wait', 'c3')] + split(EF, 0.6, f2) + [mark('m3')]
    else: F += [FG, f2, mark('m3'), mark('f3')]
    m0 = pass0(s, ring, uU, ch, bl, "Y3", ["Y0"])
    mY = MSeg(ring, uY, ch, {CB: [B(ring, "c1", ["Y1", "Y2"], ["U3"] + ring.c1rel)], DB: [B(ring, "d1", ["Y3", "F0"], N("Y", 0, 2))]}, dma=CFG['ST'])
    c2 = B(ring, "c2", ["F1", "Q0"], N("Y", 2, 4), owner=1)
    P0_, P1_, P2_ = pulln(ring, ch, 0), pulln(ring, ch, 1), pulln(ring, ch, 2)
    mQ = MSeg(ring, uQ, ch, {CB: [B(ring, "c3", ["Q1", "Q2", CB_(0)], ["F0", "F1"])], DB: [earlyA(ring, B(ring, "d3", ["Q3", CB_(1), CB_(2)], N("Q", 0, 2) + [CB_(0)], owner=(1 if CFG['EAR'] else 'all')))]},
              {7: [lambda s: (until(s, ring, F, 'b1dead'), drain(s, p2_setup(ring)))], 9: P0_[:4], 11: P0_[4:], 19: P1_[:4], 21: P1_[4:], 24: P2_[:4], 26: P2_[4:], (CFG['EPB'] if CFG['EAR'] else 27): [pollA]}, dma=CFG['ST'])
    ring.lim = CB_(CFG['NPB'] - 1); gate0(ring)
    add_touch([m0, mY, mQ], 'B')
    mY.posts.setdefault(28, []).append(initpoll)
    m0.run(s, mY)
    if ch == 0:
        mF = MSeg(ring, uF, ch, {CB: [c2]}, dma=CFG['ST'] // 2)
        mY.run(s, mF, F, CFG['P1B'] + CFG['PD']); mF.run(s, mQ, F, CFG['FB'])
    else:
        mY.run(s, None, F, CFG['P1B'] - CFG['PD']); c2(s); vrun(s, ring, F, CFG['IB']); mQ.pre(s)
    print("   B forced m1:", until(s, ring, F, 'm1'))
    mQ.run(s, None, F, CFG['QB'][ch])
    KS, OD, OD2, OF, OP = WB, PT, ACC_B, PHI, PK
    def kvfetch(s):
        poll_check(s, sWs, sKVF, 0xffff, vPoll2, vo="v21")
        s.e(f"s_lshl_b32 s5, {sRT2}, 10\ns_add_u32 s5, s5, {sKVs}")
        s.e(f"buffer_load_dwordx4 {R(KS,4)}, {vA16}, {sWs}, s5 offen sc1")
        s.e(f"v_and_b32 v21, 3, v0\nv_lshlrev_b32 v21, 4, v21\ns_lshl_b32 s5, {sRT2}, 6\ns_add_u32 s5, s5, {sKVs}")
        s.e(f"buffer_load_dwordx4 {R(KS+4,4)}, v21, {sWs}, s5 offen offset:2048 sc1")
    IM = [f"v_cvt_pk_bf16_f32 v{KS}, v{KS}, v{KS+1}", f"v_cvt_pk_bf16_f32 v{KS+1}, v{KS+2}, v{KS+3}",
          f"v_cvt_pk_bf16_f32 v{KS+4}, v{KS+4}, v{KS+5}", f"v_cvt_pk_bf16_f32 v{KS+5}, v{KS+6}, v{KS+7}",
          blk(f"s_mul_i32 s5, {sKQ}, 1088\ns_add_u32 s5, s5, {SCR_KV}\ns_lshl_b32 s4, {sRT2}, 9\ns_add_u32 s4, s4, s5\nv_lshlrev_b32 v25, 3, v0\nv_add_u32 v25, s4, v25\n"
              f"ds_write_b64 v25, {R(KS,2)}\ns_lshl_b32 s4, {sRT2}, 5\ns_add_u32 s4, s4, s5\nv_lshrrev_b32 v21, 1, v21\nv_add_u32 v21, s4, v21\nds_write_b64 v21, {R(KS+4,2)} offset:1024"),
          f"v_min_u32 v25, 64, {vP4}", "v_lshlrev_b32 v25, 4, v25", "v_lshrrev_b32 v26, 5, v0", "v_lshl_add_u32 v25, v26, 5, v25",
          blk(f"v_add_u32 v25, {SCR_KV + ch*2176}, v25\ns_lshl_b32 s5, {sG}, 12\ns_add_u32 s5, s5, {sAF}\ns_add_u32 {sSCRW}, s5, {112*1024 + ch*2048}")]
    O = [f"ds_read_b128 {R(OF,4)}, v25", f"ds_read_b128 {R(OF+4,4)}, v25 offset:16", f"ds_read_b128 {R(OP,4)}, v25 offset:1088", f"ds_read_b128 {R(OP+4,4)}, v25 offset:1104"]
    O += [f"{MF} {R(OD,16)}, {R(OF,4)}, {R(ACC_A,4)}, 0", f"{MF} {R(OD,16)}, {R(OF+4,4)}, {R(ACC_A+4,4)}, {R(OD,16)}",
          f"{MF} {R(OD2,16)}, {R(OP,4)}, {R(ACC_A+8,4)}, 0", f"{MF} {R(OD2,16)}, {R(OP+4,4)}, {R(ACC_A+12,4)}, {R(OD2,16)}"]
    for h, D in enumerate((OD, OD2)):
        O += [f"v_add_f32 v26, 0x358637bd, v{D+8}", "v_rcp_f32 v26, v26"]
        for j in range(8): O.append(f"v_mul_f32 v{D+j}, v{D+j}, v26")
        for j in range(4): O.append(f"v_cvt_pk_bf16_f32 v{ACC_A+4*h+j}, v{D+2*j}, v{D+2*j+1}")
        O.append((f"buffer_store_dwordx4 {R(ACC_A+4*h,4)}, {vA16}, {sWs}, {sSCRW} offen offset:{h*1024} sc1", "o"))
    O.append(stamp('ost'))
    ring.lim = None; ring.strict = True
    bar(s, ring, "e1", [], N("Q", 2, 4) + [CB_(1), CB_(2)], lg0=True, owner=1)
    def ins(L, back, item): return L[:len(L) - back] + [item] + L[len(L) - back:]
    F2 = F + EQ
    if ch == 0: F2 = ins(F2, 110, f3)
    kp = lambda s: (s.e("v_min_u32 v21, 15, v0\nv_lshlrev_b32 v21, 7, v21"), poll_issue(s, sWs, sKVF, vPoll2, vo="v21"))
    F2 = ins(ins(F2, CFG['KP'] - (44 if (CFG['PKL'] and ch) else 0), kp), CFG['KF'] - (35 if (CFG['PKL'] and ch) else 0), kvfetch)
    F2 += IM + [('nextbar',)] + O + [mark('scrfree'), ('hold', CFG['OW']), flag_store("o", sFL, 4 * 128, 'fo')]
    aphase(s, ring, ch, F2, [])
    return s

DOC = """; One persistent launch, 256 workgroups (one per CU) x 8 waves; generated by a hand-written Python scheduler.
; Phase 1: WG = 128 rows x {K,V,h | h,h,h/2,Q} column units. Raw x fragments stay in registers, weights stream through an
;   LDS ring (LDS-DMA + transposing reads). LayerNorm is applied exactly through a rank-1 MFMA correction (-mean*colsum,
;   bias*std) and the 1/std factor in the epilogues. mish / dual softmax run lane-local on the accumulators; kv and z are
;   reduced with f32 atomics; act and o are published fragment-major in d_ws (write-through stores + per-phase flags).
; Phase 2: WG = 64x64 output tile; waves 4-7 stream act/o/w2/wo into the ring, waves 0-3 run the MFMAs and the
;   x + s*silu(y) epilogue. Flags and accumulators in d_ws are zeroed in-launch and announced through d_debug."""
def build(path, listform=True):
    s0 = Stream("P")
    if PROFILE: s0.e("s_memtime s[96:97]\ns_memrealtime s[58:59]")
    if CFG.get('SKEW'):
        s0.e(f"s_and_b32 s3, s2, 7\ns_lshr_b32 s3, {CFG['SKEW']}, s3\ns_and_b32 s3, s3, 1\ns_cmp_eq_u32 s3, 0\ns_cbranch_scc1 L_nsk\ns_sleep 40\nL_nsk:")
    prologue(s0)
    s0.e(f"s_lshl_b32 s5, {sTY}, 1\ns_add_u32 s5, s5, {sCH}\ns_cmp_eq_u32 s5, 0\ns_cbranch_scc1 L_typeA0\ns_cmp_eq_u32 s5, 1\ns_cbranch_scc1 L_typeA1\ns_cmp_eq_u32 s5, 3\ns_cbranch_scc1 L_typeB1")
    B0 = stream_B(s0, 0); B1 = stream_B(s0, 1); A0 = stream_A(s0, 0); A1 = stream_A(s0, 1)
    assert B0.nbar == B1.nbar and A0.nbar == A1.nbar
    assert B0.slots == B1.slots and A0.slots == A1.slots
    print(XCHK)
    for k, v in XCHK.items():
        if len(k) == 3 and k[:2] in XCHK: assert XCHK[k[:2]] <= v, (k, v, XCHK[k[:2]])
    hdr = open("recurrent_scan__linear_kernel_hedgehog__dense_activation_mish__prompt.s.ref").read().split("; Override")[0]
    T = [hdr.rstrip(), f"; @launch {'kernel=' + KNAME + ' ' if listform else ''}grid=(256,1,1) block=(512,1,1) lds=163840",
         DOC, '.amdgcn_target "amdgcn-amd-amdhsa--gfx950"', ".text", f".globl {KNAME}", ".p2align 8", f".type {KNAME},@function", f"{KNAME}:"]
    S = [s0, B0, B1, A0, A1]
    for st in S:
        T.append(f"; ---- stream {st.name}  nops={st.stats['nop']} waits={st.stats['wait']} barriers={st.nbar}")
        T.append(st.text())
    for st in S: T += st.ool
    T.append("L_end:\n  s_endpgm")
    T.append(".fill 2048, 4, 0xbf810000")
    T.append(f'''.section .rodata,"a"
.p2align 6
.amdhsa_kernel {KNAME}
  .amdhsa_next_free_vgpr 256
  .amdhsa_next_free_sgpr 102
  .amdhsa_accum_offset 256
  .amdhsa_group_segment_fixed_size 0
  .amdhsa_kernarg_size 88
  .amdhsa_user_sgpr_count 2
  .amdhsa_user_sgpr_kernarg_segment_ptr 1
  .amdhsa_system_sgpr_workgroup_id_x 1
.end_amdhsa_kernel''')
    open(path, "w").write("\n".join(T) + "\n")
    for st in S: print(st.name, "instrs", len(st.out), st.stats, "barriers", st.nbar)

if __name__ == "__main__":
    for a in sys.argv[2:]:
        if a == "prof": PROFILE = True
        elif '=' in a:
            k, v = a.split('='); CFG[k] = eval(v)
    build(sys.argv[1], listform=("final" not in sys.argv))
```
